```python
import torch

def _softmax(x, axis=-1):
    return torch.softmax(x, dim=axis)
def _gelu(x):
    return torch.nn.functional.gelu(x, approximate="tanh")
def _silu(x):
    return torch.nn.functional.silu(x)
def _sigmoid(x):
    return torch.sigmoid(x)
def _layernorm(x, axis=-1, eps=1e-5):
    m = x.mean(dim=axis, keepdim=True)
    v = x.var(dim=axis, keepdim=True, unbiased=False)
    return (x - m) / torch.sqrt(v + eps)
def _scatter_add(tgt, idx, src, axis=0):
    return tgt.clone().index_add_(axis, idx, src)
def _segment_sum(src, seg, n):
    out = torch.zeros((n,) + src.shape[1:], dtype=src.dtype)
    return out.index_add_(0, seg, src)
def _pad(x, pw):
    flat = tuple(v for pair in reversed(pw) for v in pair)
    return torch.nn.functional.pad(x, flat)

kernel_name = 'interleave_layers__grouped_kv_mqa__mixer_channel_mlp__prompt'

def setup_inputs():

    _w = (lambda a: (lambda t: t.to(torch.bfloat16) if t.is_floating_point() else t)(torch.as_tensor(a)))
    def _A_setup():
        B, S, D, H = 1, 2048, 640, 32
        Dh = D // H
        return {
            "x": _w((lambda *s: torch.randn(*s, dtype=torch.bfloat16) * 0.05)(B, S, D)),
            "wq": _w((lambda *s: torch.randn(*s, dtype=torch.bfloat16) * 0.05)(D, H * Dh)),
            "wk": _w((lambda *s: torch.randn(*s, dtype=torch.bfloat16) * 0.05)(D, Dh)),
            "wv": _w((lambda *s: torch.randn(*s, dtype=torch.bfloat16) * 0.05)(D, Dh)),
            "wo": _w((lambda *s: torch.randn(*s, dtype=torch.bfloat16) * 0.05)(H * Dh, D)),
        }
    _A_in = _A_setup()

    def _B_setup():
        B, S, D, F = 1, 2048, 640, 1728
        return {
            "x": _w((lambda *s: torch.randn(*s, dtype=torch.bfloat16) * 0.05)(B, S, D)),
            "w1": _w((lambda *s: torch.randn(*s, dtype=torch.bfloat16) * 3.2)(D, F) * (D ** -0.5)),
            "b1": _w((lambda *s: torch.randn(*s, dtype=torch.bfloat16) * 0.8)(F)),
            "w2": _w((lambda *s: torch.randn(*s, dtype=torch.bfloat16) * 0.4)(F, D) * (F ** -0.5)),
            "b2": _w((lambda *s: torch.randn(*s, dtype=torch.bfloat16) * 0.4)(D)),
        }
    _B_in = _B_setup()

    return {
        "A_x": _A_in["x"],
        "A_wq": _A_in["wq"],
        "A_wk": _A_in["wk"],
        "A_wv": _A_in["wv"],
        "A_wo": _A_in["wo"],
        "B_x": _B_in["x"],
        "B_w1": _B_in["w1"],
        "B_b1": _B_in["b1"],
        "B_w2": _B_in["w2"],
        "B_b2": _B_in["b2"],
    }

def reference(A_x, A_wq, A_wk, A_wv, A_wo, B_x, B_w1, B_b1, B_w2, B_b2):
    def _A_ref(x, wq, wk, wv, wo):
        B, S, D = x.shape
        H = 32
        Dh = D // H
        q = (lambda x, *d: x.permute(*d))((x @ wq).reshape(B, S, H, Dh), 0, 2, 1, 3)
        k = x @ wk
        v = x @ wv
        scores = torch.einsum("bhqd,bkd->bhqk", q, k) * (Dh ** -0.5)
        p = _softmax(scores, axis=-1)
        o = torch.einsum("bhqk,bkd->bhqd", p, v)
        return (lambda x, *d: x.permute(*d))(o, 0, 2, 1, 3).reshape(B, S, H * Dh) @ wo

    def _B_ref(x, w1, b1, w2, b2):
        y = _layernorm(x, axis=-1)
        h = _gelu(torch.einsum("bsd,df->bsf", y, w1) + b1)
        return torch.einsum("bsf,fd->bsd", h, w2) + b2

    x = A_x
    x = x + _A_ref(_layernorm(x, axis=-1), A_wq, A_wk, A_wv, A_wo)
    x = x + _B_ref(_layernorm(x, axis=-1), B_w1, B_b1, B_w2, B_b2)
    x = x + _A_ref(_layernorm(x, axis=-1), A_wq, A_wk, A_wv, A_wo)
    x = x + _B_ref(_layernorm(x, axis=-1), B_w1, B_b1, B_w2, B_b2)
    return x
```

```python
import re

TRANS = ('v_exp_f32','v_log_f32','v_rcp_f32','v_rsq_f32','v_sqrt_f32','v_sin_f32','v_cos_f32','v_exp_f16','v_rcp_f16','v_rcp_iflag_f32')

def mfma_passes(op):
    if '32x32x16' in op or '32x32x8' in op: return 8
    if '16x16x32' in op or '16x16x16' in op: return 4
    raise ValueError(op)

_reg = re.compile(r'^(-|abs\()?([vas])(\d+)\)?$')
_rng = re.compile(r'^(-)?([vas])\[(\d+):(\d+)\]$')

def regs_of(tok):
    tok = tok.strip()
    if tok in ('vcc',): return {'vcc'}
    if tok in ('vcc_lo','vcc_hi'): return {'vcc'}
    if tok == 'exec' or tok in('exec_lo','exec_hi'): return {'exec'}
    if tok == 'm0': return {'m0'}
    if tok == 'scc': return {'scc'}
    m = _reg.match(tok)
    if m: return {m.group(2)+m.group(3)}
    m = _rng.match(tok)
    if m: return {m.group(2)+str(i) for i in range(int(m.group(3)), int(m.group(4))+1)}
    return set()

class Ins:
    __slots__=('text','op','ops','kind','dst','src','srcA','srcB','srcC','passes','label','target','mods','nops')
    def __init__(self, text):
        self.text=text; self.label=None; self.target=None; self.kind='other'
        self.dst=set(); self.src=set(); self.srcA=set(); self.srcB=set(); self.srcC=set(); self.passes=0; self.nops=1
        t=text.split(';')[0].strip()
        if t.endswith(':'):
            self.label=t[:-1]; self.kind='label'; self.op=''; self.nops=0; return
        if not t or t.startswith('.'):
            self.kind='dir'; self.op=''; self.nops=0; return
        parts=t.split(None,1); op=parts[0]; self.op=op
        rest=parts[1] if len(parts)>1 else ''
        toks=[x.strip() for x in rest.split(',')] if rest else []
        mods=''
        if toks:
            l=toks[-1].split()
            if l:
                toks[-1]=l[0]; mods=' '.join(l[1:])
        self.ops=toks; self.mods=mods
        R=lambda i: regs_of(toks[i]) if i<len(toks) else set()
        allsrc=lambda a: set().union(*[regs_of(x) for x in toks[a:]]) if len(toks)>a else set()
        if op.startswith('v_mfma'):
            self.kind='mfma'; self.passes=mfma_passes(op)
            self.dst=R(0); self.srcA=R(1); self.srcB=R(2); self.srcC=R(3); self.src=self.srcA|self.srcB|self.srcC
        elif op.startswith('v_cmpx'):
            self.kind='valu'; self.dst=R(0)|{'exec'}; self.src=allsrc(1)
        elif op.startswith('v_cmp'):
            self.kind='valu'; self.dst=R(0); self.src=allsrc(1)
        elif op.startswith('v_readfirstlane') or op.startswith('v_readlane'):
            self.kind='valu'; self.dst=R(0); self.src=allsrc(1)
        elif op.startswith('v_permlane') and 'swap' in op:
            self.kind='valu'; self.dst=R(0)|R(1); self.src=R(0)|R(1)
        elif op in ('v_add_co_u32','v_sub_co_u32','v_addc_co_u32','v_subb_co_u32'):
            self.kind='valu'; self.dst=R(0)|R(1); self.src=allsrc(2)
        elif op.startswith('v_'):
            self.kind='valu'; self.dst=R(0); self.src=allsrc(1)
            if op.startswith('v_fmac') or op.startswith('v_writelane') or 'pk_fmac' in op or op.startswith('v_dot2c'): self.src|=R(0)
            if op.startswith('v_cndmask') and len(toks)==3: self.src|={'vcc'}
            if 'dpp' in op or 'row_' in mods or 'quad_perm' in mods: self.kind='valu'; self.src|=R(0)
        elif op.startswith('ds_'):
            self.kind='ds'
            if op.startswith('ds_read') or op.startswith('ds_bpermute') or op.startswith('ds_permute') or op.startswith('ds_swizzle'):
                self.dst=R(0); self.src=allsrc(1)
            else:
                self.src=allsrc(0)
        elif op.startswith('buffer_') or op.startswith('global_'):
            self.kind='vmem'
            if op in ('buffer_inv','buffer_wbl2'): pass
            elif '_load' in op:
                if 'lds' in mods.split() or 'load_lds' in op:
                    self.src=allsrc(0)|{'m0'}; self.kind='vmem_lds'
                else:
                    self.dst=R(0); self.src=allsrc(1)
            elif '_store' in op:
                self.src=allsrc(0)
            elif 'atomic' in op:
                self.src=allsrc(0)
                if 'sc0' in mods.split(): self.dst=R(0)
        elif op.startswith('s_'):
            self.kind='salu'
            if op=='s_nop': self.nops=int(toks[0],0)+1
            elif op in ('s_branch',) or op.startswith('s_cbranch'):
                self.target=toks[0]
            elif op.startswith('s_cmp') or op.startswith('s_bitcmp'):
                self.dst={'scc'}; self.src=allsrc(0)
            elif op in ('s_waitcnt','s_barrier','s_endpgm','s_setprio','s_sleep','s_sethalt'):
                pass
            elif op.startswith('s_load') or op.startswith('s_buffer_load') or op in('s_memtime','s_memrealtime'):
                self.kind='smem'; self.dst=R(0); self.src=allsrc(1)
            elif op.endswith('saveexec_b64'):
                self.dst=R(0)|{'exec','scc'}; self.src=allsrc(1)|{'exec'}
            else:
                self.dst=R(0); self.src=allsrc(1)
        else:
            raise ValueError('unknown op: '+text)

    @property
    def is_trans(self): return self.op.replace('_e32','').replace('_e64','') in TRANS
    @property
    def is_wide_store(self):
        return self.kind=='vmem' and '_store' in self.op and ('x4' in self.op or 'x3' in self.op)

def isv(r): return r[0] in 'va' and r not in ('vcc',)
def iss(r): return (r[0]=='s' and r!='scc') or r=='vcc'

def required(prod, cons):
    need=0
    pk,ck=prod.kind,cons.kind
    pd=prod.dst
    if pk=='valu':
        vd={r for r in pd if isv(r)}
        sd={r for r in pd if iss(r)}
        if ck=='mfma' and vd & cons.src: need=max(need,2)
        if ck=='mfma' and 'exec' in pd: need=max(need,4)
        if ck=='valu':
            if prod.is_trans and (vd & cons.src) and not False: need=max(need,1)
            if cons.op.startswith('v_permlane') and vd & cons.src: need=max(need,2)
            if (cons.op.startswith('v_readfirstlane') or cons.op.startswith('v_readlane')) and vd & cons.src: need=max(need,1)
            if ('dpp' in cons.op or 'row_' in cons.mods or 'quad_perm' in cons.mods) and vd & cons.src: need=max(need,2)
            if sd & cons.src:
                need=max(need,2)
                if cons.op.startswith('v_readlane') or cons.op.startswith('v_writelane'): need=max(need,4)
            if 'exec' in pd and ('row_' in cons.mods or 'dpp' in cons.op): need=max(need,5)
            if 'exec' in pd and (cons.op.startswith('v_readlane') or cons.op.startswith('v_readfirstlane') or cons.op.startswith('v_permlane')): need=max(need,4)
        if ck in ('vmem','vmem_lds') and sd & cons.src: need=max(need,5)
    if pk=='mfma':
        p=prod.passes
        t_valu={2:5,4:8,8:12,16:20}[p]
        t_ovl={2:4,4:6,8:10,16:18}[p]
        if ck=='mfma':
            if pd & (cons.srcA|cons.srcB): need=max(need,t_valu)
            if pd & cons.srcC:
                if pd==cons.srcC and cons.passes==p: need=max(need,0 if p>=4 else 2)
                else: need=max(need,t_ovl)
            elif pd & cons.dst:
                need=max(need,t_ovl)
        elif ck in ('valu','vmem','vmem_lds','ds'):
            if pd & (cons.src|cons.dst): need=max(need,t_valu)
        if ck=='valu' and (prod.srcC & cons.dst): need=max(need,{2:1,4:3,8:7,16:15}[p])
    if prod.is_wide_store:
        data=regs_of(prod.ops[0]) if prod.op.startswith('buffer') else regs_of(prod.ops[1])
        if data & cons.dst:
            need=max(need,2 if ck=='valu' else 1)
    if pk=='salu' and 'm0' in pd and ck=='vmem_lds': need=max(need,1)
    return need

MAXW=20
def fix_hazards(lines, verbose=False):
    ins=[Ins(l) for l in lines]
    changed=True; total=0
    while changed:
        changed=False
        labels={x.label:i for i,x in enumerate(ins) if x.label}
        preds=[[] for _ in ins]
        for i,x in enumerate(ins):
            if x.op in ('s_endpgm',): continue
            if x.target is not None:
                if x.target in labels: preds[labels[x.target]].append(i)
                if x.op=='s_branch': continue
            if i+1<len(ins): preds[i+1].append(i)
        for i,c in enumerate(ins):
            if c.kind in ('label','dir','salu','smem') : continue
            worst=0
            stack=[(p,0) for p in preds[i]]
            seen={}
            while stack:
                j,d=stack.pop()
                if d>=MAXW: continue
                if j in seen and seen[j]<=d: continue
                seen[j]=d
                p=ins[j]
                if p.kind not in ('label','dir'):
                    r=required(p,c)
                    if r-d>worst: worst=r-d
                nd=d+p.nops
                for q in preds[j]: stack.append((q,nd))
            if worst>0:
                n=worst; new=[]
                while n>0:
                    k=min(n,16); new.append(Ins(f's_nop {k-1}')); n-=k
                if verbose: print(f'hazard: +{worst} before: {c.text}')
                ins[i:i]=new; total+=worst
                changed=True
                break
    return [x.text for x in ins], total

class Kern:
    def __init__(self,name,vgpr=128,agpr=0,sgpr=96):
        self.name=name; self.lines=[]; self.vgpr=vgpr; self.agpr=agpr; self.sgpr=sgpr; self._lab=0
    def __call__(self,s):
        for l in s.split('\n'):
            l=l.strip()
            if l: self.lines.append(l)
    def lab(self,base='L'):
        self._lab+=1; return f'{self.name}_{base}{self._lab}'
    def text(self,verbose=False):
        body,n=fix_hazards(self.lines,verbose)
        acc=(self.vgpr+3)//4*4
        out=[f'.text',f'.globl {self.name}','.p2align 8',f'.type {self.name},@function',f'{self.name}:']
        for l in body:
            out.append(l if l.endswith(':') else '    '+l)
        out+=['.section .rodata,"a"','.p2align 6',f'.amdhsa_kernel {self.name}',
              f'  .amdhsa_next_free_vgpr {acc+self.agpr if self.agpr else self.vgpr}',
              f'  .amdhsa_next_free_sgpr {self.sgpr}',
              f'  .amdhsa_accum_offset {acc}',
              '  .amdhsa_group_segment_fixed_size 0','  .amdhsa_kernarg_size 104',
              '  .amdhsa_user_sgpr_count 2','  .amdhsa_user_sgpr_kernarg_segment_ptr 1',
              '  .amdhsa_system_sgpr_workgroup_id_x 1',
              '.end_amdhsa_kernel']
        return '\n'.join(out)+'\n', n

def vr(b,n=1):
    return f'v{b}' if n==1 else f'v[{b}:{b+n-1}]'
def ar(b,n=1):
    return f'a{b}' if n==1 else f'a[{b}:{b+n-1}]'
def sr(b,n=1):
    return f's{b}' if n==1 else f's[{b}:{b+n-1}]'
```

```python
from asmlib import *
from layout import *
from k_prep import srd, KA_WS
from k_gemm import f2u, wg_decode_nos8

NSLOT=3
def gen_attn():
    k=Kern('attn_kernel',vgpr=128,sgpr=64)
    END=k.name+'_end'
    k('s_cmp_ge_u32 s2, 256')
    k(f's_cbranch_scc1 {END}')
    k(f's_load_dwordx2 s[4:5], s[0:1], {KA_WS}')
    wg_decode_nos8(k)
    k('s_waitcnt lgkmcnt(0)')
    srd(k,12,4,KV,KV_SZ); srd(k,16,4,QB,QB_SZ); srd(k,20,4,OF,X_SZ)
    Q1,Q2=8,12
    S=[16,32]
    O=48
    NEG=64
    P=80
    K1=[88,92]; K2=[96,98]; V=[100,108]
    AK1,AK2,AV=116,117,118
    BK1,BK2,BV=119,120,121
    k('s_and_b32 s8, s3, 3')
    k('s_lshl_b32 s9, s7, 2')
    k('s_add_u32 s8, s8, s9')
    k('s_lshr_b32 s9, s3, 2')
    k('s_lshl_b32 s10, s6, 6')
    k('s_lshl_b32 s11, s9, 5')
    k('s_add_u32 s10, s10, s11')
    k('v_and_b32 v6, 31, v2')
    k('v_lshrrev_b32 v7, 5, v2')
    k('v_add_u32 v14, s10, v6')
    def dma():
        k(f's_mul_i32 s26, s24, {CH}')
        k('s_lshl_b32 s27, s3, 10')
        k('s_add_u32 s26, s26, s27')
        k('s_add_u32 s27, s27, s25')
        for i in range(4):
            lab=None
            if i==3:
                lab=k.lab('nd'); k('s_cmp_ge_u32 s3, 4'); k(f's_cbranch_scc1 {lab}')
            k('s_mov_b32 m0, s27')
            k('buffer_load_dwordx4 v5, s[12:15], s26 offen lds')
            if i<3:
                k('s_add_u32 s26, s26, 8192'); k('s_add_u32 s27, s27, 8192')
            if lab: k(lab+':')
    k('s_movk_i32 s28, 1280')
    k('v_mul_lo_u32 v15, v14, s28')
    k('s_mul_i32 s29, s8, 40')
    k('v_add_u32 v15, s29, v15')
    k('v_lshl_add_u32 v122, v7, 4, v15')
    k(f'buffer_load_dwordx4 v[{Q1}:{Q1+3}], v122, s[16:19], 0 offen')
    k('v_add_u32 v122, 32, v15')
    k('v_cmp_eq_u32 vcc, 0, v7')
    k('v_mov_b32 v123, 0x40000000')
    k('v_cndmask_b32 v122, v123, v122, vcc')
    k(f'buffer_load_dwordx2 v[{Q2}:{Q2+1}], v122, s[16:19], 0 offen')
    for i in range(16): k(f'v_mov_b32 v{NEG+i}, 0')
    k(f'v_mov_b32 v122, {NSLOT*CH}')
    k('v_mov_b32 v123, 0')
    k('ds_write_b32 v122, v123')
    k('s_mov_b32 s31, 0')
    RESTART=k.lab('restart')
    k(RESTART+':')
    k('s_mov_b32 s24, 0'); k('s_mov_b32 s25, 0'); dma()
    k('s_mov_b32 s24, 1'); k(f's_mov_b32 s25, {CH}'); dma()
    k(f'v_mov_b32 v{AK1}, v5')
    k(f'v_lshlrev_b32 v{AK2}, 3, v2')
    k(f'v_add_u32 v{AK2}, 8192, v{AK2}')
    k(f'v_add_u32 v{AV}, 12288, v5')
    for a,b in ((AK1,BK1),(AK2,BK2),(AV,BV)):
        k(f'v_add_u32 v{b}, {CH}, v{a}')
    for i in range(16): k(f'v_mov_b32 v{O+i}, 0')
    k('s_waitcnt vmcnt(0) lgkmcnt(0)')
    k('s_barrier')
    MAXP=k.lab('maxpass')
    k('s_cmp_eq_u32 s31, 1')
    k(f's_cbranch_scc1 {MAXP}')

    def rdK(buf,tile,nxt):
        a1,a2=(BK1,BK2) if nxt else (AK1,AK2)
        k(f'ds_read_b128 v[{K1[buf]}:{K1[buf]+3}], v{a1} offset:{tile*1024}')
        k(f'ds_read_b64 v[{K2[buf]}:{K2[buf]+1}], v{a2} offset:{tile*512}')
    def rdV(buf,tile,nxt):
        a=BV if nxt else AV
        k(f'ds_read_b128 v[{V[buf]}:{V[buf]+3}], v{a} offset:{tile*2048}')
        k(f'ds_read_b128 v[{V[buf]+4}:{V[buf]+7}], v{a} offset:{tile*2048+1024}')
    def qk1(buf): k(f'v_mfma_f32_32x32x16_bf16 v[{S[buf]}:{S[buf]+15}], v[{K1[buf]}:{K1[buf]+3}], v[{Q1}:{Q1+3}], v[{NEG}:{NEG+15}]')
    def qk2(buf): k(f'v_mfma_f32_32x32x8_bf16 v[{S[buf]}:{S[buf]+15}], v[{K2[buf]}:{K2[buf]+1}], v[{Q2}:{Q2+1}], v[{S[buf]}:{S[buf]+15}]')
    def pv(buf,s): k(f'v_mfma_f32_32x32x16_bf16 v[{O}:{O+15}], v[{V[buf]+4*s}:{V[buf]+4*s+3}], v[{P+4*s}:{P+4*s+3}], v[{O}:{O+15}]')
    def ex(buf,a,n=4):
        for i in range(a,a+n): k(f'v_exp_f32 v{S[buf]+i}, v{S[buf]+i}')
    def cv(buf,a):
        k(f'v_cvt_pk_bf16_f32 v{P+a//2}, v{S[buf]+a}, v{S[buf]+a+1}')
        k(f'v_cvt_pk_bf16_f32 v{P+a//2+1}, v{S[buf]+a+2}, v{S[buf]+a+3}')

    def chunk_sync():
        k('s_waitcnt vmcnt(0)')
        k('s_barrier')
        lab=k.lab('nodma')
        k('s_add_u32 s24, s30, 2')
        k('s_cmp_ge_u32 s24, 8')
        k(f's_cbranch_scc1 {lab}')
        k('s_mov_b32 s25, s33')
        dma()
        k(lab+':')
    def chunk_advance():
        k('s_mov_b32 s35, s32')
        k('s_mov_b32 s32, s34')
        k('s_mov_b32 s34, s33')
        k('s_mov_b32 s33, s35')
        k('s_sub_u32 s35, s34, s32')
        for a,b in ((AK1,BK1),(AK2,BK2),(AV,BV)):
            k(f'v_mov_b32 v{a}, v{b}')
            k(f'v_add_u32 v{b}, s35, v{a}')
        k('s_add_u32 s30, s30, 1')

    k('s_mov_b32 s30, 0'); k('s_mov_b32 s32, 0'); k(f's_mov_b32 s34, {CH}'); k(f's_mov_b32 s33, {2*CH}')
    rdK(0,0,False); rdK(1,1,False); rdV(0,0,False)
    for i in range(4,8): k(f'v_mov_b32 v{P+i}, 0')
    for i in range(4,8): k(f'v_mov_b32 v{V[1]+i}, 0')
    k('s_waitcnt lgkmcnt(0)')
    qk1(0); qk2(0)
    LOOP=k.lab('loop')
    k(LOOP+':')
    for t in range(8):
        cur=t&1; nxt=cur^1
        if t==6: chunk_sync()
        k('s_waitcnt lgkmcnt(0)')
        qk1(nxt)
        pv(nxt,1)
        rdK(cur,(t+2)%8,t+2>=8)
        rdV(nxt,(t+1)%8,t+1>=8)
        ex(cur,0)
        qk2(nxt)
        ex(cur,4)
        cv(cur,0); cv(cur,4)
        ex(cur,8)
        pv(cur,0)
        ex(cur,12)
        cv(cur,8); cv(cur,12)
    chunk_advance()
    k('s_cmp_lt_u32 s30, 8')
    k(f's_cbranch_scc1 {LOOP}')
    k('s_waitcnt lgkmcnt(0)')
    pv(1,1)
    EPI=k.lab('epi')
    k(f'v_mov_b32 v88, v{O+8}')
    k(f'v_mov_b32 v89, v{O+8}')
    k('v_permlane32_swap_b32 v88, v89')
    k('s_cmp_eq_u32 s31, 2')
    k(f's_cbranch_scc1 {EPI}')
    k(f'v_mov_b32 v90, 0')
    for i in range(12):
        k(f'v_max_f32 v90, |v{O+i}|, v90') if False else k(f'v_max3_f32 v90, abs(v{O+i}), v90, v90')
    k(f's_mov_b32 s36, {hex(f2u(2.0**-30))}')
    k(f's_mov_b32 s37, {hex(f2u(2.0**60))}')
    k(f's_mov_b32 s38, {hex(f2u(2.0**120))}')
    k('v_cmp_nle_f32 s[40:41], s36, v89')
    k('v_cmp_nge_f32 s[42:43], s37, v89')
    k('s_or_b64 s[40:41], s[40:41], s[42:43]')
    k('v_cmp_nge_f32 s[42:43], s38, v90')
    k('s_or_b64 s[40:41], s[40:41], s[42:43]')
    for i in range(12):
        k(f'v_cmp_u_f32 s[42:43], v{O+i}, v{O+i}')
        k('s_or_b64 s[40:41], s[40:41], s[42:43]')
    ok=k.lab('ok')
    k('s_cmp_eq_u64 s[40:41], 0')
    k(f's_cbranch_scc1 {ok}')
    k(f'v_mov_b32 v122, {NSLOT*CH}')
    k('v_mov_b32 v123, 1')
    k('ds_write_b32 v122, v123')
    k(ok+':')
    k('s_waitcnt lgkmcnt(0)')
    k('s_barrier')
    k(f'v_mov_b32 v122, {NSLOT*CH}')
    k('ds_read_b32 v123, v122')
    k('s_waitcnt lgkmcnt(0)')
    k('v_readfirstlane_b32 s36, v123')
    k('s_cmp_eq_u32 s36, 0')
    k(f's_cbranch_scc1 {EPI}')
    k('s_barrier')
    k('s_mov_b32 s31, 1')
    k(f's_branch {RESTART}')

    k(MAXP+':')
    k('s_mov_b32 s30, 0'); k('s_mov_b32 s32, 0'); k(f's_mov_b32 s34, {CH}'); k(f's_mov_b32 s33, {2*CH}')
    for i in range(16): k(f'v_mov_b32 v{NEG+i}, 0')
    k(f'v_mov_b32 v124, {hex(0xff800000)}')
    ML=k.lab('mloop')
    k(ML+':')
    for t in range(8):
        if t==6: chunk_sync()
        rdK(0,t,False)
        k('s_waitcnt lgkmcnt(0)')
        qk1(0); qk2(0)
        for i in range(0,16,2):
            k(f'v_max3_f32 v124, v{S[0]+i}, v{S[0]+i+1}, v124')
    chunk_advance()
    k('s_cmp_lt_u32 s30, 8')
    k(f's_cbranch_scc1 {ML}')
    k('v_mov_b32 v125, v124')
    k('v_permlane32_swap_b32 v124, v125')
    k('v_max_f32 v124, v124, v125')
    for i in range(16): k(f'v_sub_f32 v{NEG+i}, 0, v124')
    k('s_barrier')
    k('s_mov_b32 s31, 2')
    k(f's_branch {RESTART}')

    k(EPI+':')
    k('v_rcp_f32 v89, v89')
    for i in range(12): k(f'v_mul_f32 v{O+i}, v{O+i}, v89')
    for p in range(6): k(f'v_cvt_pk_bf16_f32 v{88+p}, v{O+2*p}, v{O+2*p+1}') if p!=1 else k(f'v_cvt_pk_bf16_f32 v{89}, v{O+2}, v{O+3}')
    k('s_lshr_b32 s36, s8, 1')
    k('s_mul_i32 s36, s36, 5')
    k('s_and_b32 s37, s8, 1')
    k('s_lshl_b32 s38, s37, 1')
    k('s_add_u32 s38, s38, s36')
    k('v_add_u32 v100, s38, v7')
    k('v_lshrrev_b32 v101, 4, v14')
    k('v_mul_u32_u24 v101, 20, v101')
    k('v_lshrrev_b32 v102, 2, v100')
    k('v_add_u32 v102, v102, v101')
    k('v_lshlrev_b32 v102, 10, v102')
    k('v_and_b32 v103, 3, v100')
    k('v_lshl_add_u32 v102, v103, 8, v102')
    k('v_and_b32 v103, 15, v14')
    k('v_lshl_add_u32 v102, v103, 4, v102')
    k('buffer_store_dwordx4 v[88:91], v102, s[20:23], 0 offen')
    k('s_add_u32 s36, s36, 4')
    k('s_lshr_b32 s38, s36, 2')
    k('s_lshl_b32 s38, s38, 10')
    k('s_and_b32 s36, s36, 3')
    k('s_lshl_b32 s36, s36, 8')
    k('s_add_u32 s38, s38, s36')
    k('s_lshl_b32 s37, s37, 3')
    k('s_add_u32 s38, s38, s37')
    k('v_lshlrev_b32 v101, 10, v101')
    k('v_lshl_add_u32 v101, v103, 4, v101')
    k('v_add_u32 v101, s38, v101')
    k('v_cmp_eq_u32 vcc, 0, v7')
    k('v_mov_b32 v104, 0x40000000')
    k('v_cndmask_b32 v101, v104, v101, vcc')
    k('buffer_store_dwordx2 v[92:93], v101, s[20:23], 0 offen')
    k(END+':')
    k('s_endpgm')
    return k,(256,512,NSLOT*CH+64)
```

```python
from asmlib import *
from layout import *
from k_prep import srd, sum_over_g, KA_X,KA_WQ,KA_WK,KA_WV,KA_WO,KA_BX,KA_W1,KA_B1,KA_W2,KA_B2,KA_OUT,KA_DBG,KA_WS

import struct
def f2u(x): return struct.unpack('<I',struct.pack('<f',x))[0]

def wg_decode(k):
    k('v_lshrrev_b32 v1, 6, v0')
    k('v_and_b32 v2, 63, v0')
    k('v_readfirstlane_b32 s3, v1')
    k('s_and_b32 s6, s2, 7')
    k('s_lshl_b32 s6, s6, 2')
    k('s_lshr_b32 s7, s2, 3')
    k('s_and_b32 s8, s7, 3')
    k('s_add_u32 s6, s6, s8')
    k('s_lshr_b32 s7, s2, 5')
    k('v_and_b32 v3, 15, v2')
    k('v_lshrrev_b32 v4, 4, v2')
    k('v_lshlrev_b32 v5, 4, v2')

def load_stats(k, dst, vtok, s_srd, tmp):
    k(f'v_lshlrev_b32 v{tmp}, 6, v{vtok}')
    for q in range(4):
        k(f'buffer_load_dwordx4 v[{dst+4*q}:{dst+4*q+3}], v{tmp}, s[{s_srd}:{s_srd+3}], 0 offen offset:{16*q}')

def stats_finish(k, st, mean, rstd, double=False):
    for q in (1,2,3,4,5,6,7):
        k(f'v_add_f32 v{st}, v{st}, v{st+2*q}')
        k(f'v_add_f32 v{st+1}, v{st+1}, v{st+2*q+1}')
    k(f'v_mul_f32 v{mean}, {hex(f2u(1/640))}, v{st}')
    k(f'v_mul_f32 v{st+1}, {hex(f2u(1/640))}, v{st+1}')
    k(f'v_fma_f32 v{st+1}, -v{mean}, v{mean}, v{st+1}')
    k(f'v_max_f32 v{st+1}, 0, v{st+1}')
    k(f'v_add_f32 v{st+2}, {hex(f2u(1e-5))}, v{st+1}')
    k(f'v_rsq_f32 v{rstd}, v{st+2}')
    if double:
        k(f'v_mul_f32 v{st+3}, v{rstd}, v{rstd}')
        k(f'v_mul_f32 v{st+3}, v{st+3}, v{st+1}')
        k(f'v_add_f32 v{st+3}, {hex(f2u(1e-5))}, v{st+3}')
        k(f'v_rsq_f32 v{st+3}, v{st+3}')
        k(f'v_mul_f32 v{rstd}, v{rstd}, v{st+3}')

ACC=64

def reduce_scatter(k, nextra=0, extra_base=None):
    k('s_mul_i32 s40, s3, 6144')
    k('v_add_u32 v6, s40, v5')
    k('v_add_u32 v7, 49152, v6')
    for tt in range(4):
        for t in range(5):
            b=ACC+(tt*5+t)*4
            k(f'ds_write_b128 v{6+(tt>>1)}, v[{b}:{b+3}] offset:{(tt&1)*24576+t*1024}')
    for u in range(nextra):
        b=extra_base+4*u
        k(f'ds_write_b128 v6, v[{b}:{b+3}] offset:{u*24576+5*1024}')
    k('s_waitcnt lgkmcnt(0)')
    k('s_barrier')
    k('s_mul_i32 s40, s3, 24576')
    k('v_add_u32 v6, s40, v5')
    for s in range(4):
        for t in range(5):
            b=ACC+(s*5+t)*4
            k(f'ds_read_b128 v[{b}:{b+3}], v6 offset:{s*6144+t*1024}')
    if nextra:
        for s in range(4):
            b=extra_base+8+4*s
            k(f'ds_read_b128 v[{b}:{b+3}], v6 offset:{s*6144+5*1024}')
    k('s_waitcnt lgkmcnt(0)')
    for t in range(5):
        for i in range(4):
            d=ACC+t*4+i
            k(f'v_add_f32 v{d}, v{d}, v{ACC+(5+t)*4+i}')
            k(f'v_add_f32 v{ACC+(10+t)*4+i}, v{ACC+(10+t)*4+i}, v{ACC+(15+t)*4+i}')
            k(f'v_add_f32 v{d}, v{d}, v{ACC+(10+t)*4+i}')
    if nextra:
        for i in range(4):
            b=extra_base+8
            k(f'v_add_f32 v{b+i}, v{b+i}, v{b+4+i}')
            k(f'v_add_f32 v{b+8+i}, v{b+8+i}, v{b+12+i}')
            k(f'v_add_f32 v{extra_base+i}, v{b+i}, v{b+8+i}')

def out_stats(k, base, n, s_srd, vtok, slot_sgpr, t0=150):
    k(f'v_mov_b32 v{t0}, 0')
    k(f'v_mov_b32 v{t0+1}, 0')
    for r in range(base,base+n):
        k(f'v_add_f32 v{t0}, v{t0}, v{r}')
        k(f'v_fmac_f32 v{t0+1}, v{r}, v{r}')
    sum_over_g(k,t0,t0+2)
    sum_over_g(k,t0+1,t0+2)
    k(f'v_lshlrev_b32 v{t0+2}, 6, v{vtok}')
    k(f's_lshl_b32 s41, s{slot_sgpr}, 3')
    k(f'v_add_u32 v{t0+2}, s41, v{t0+2}')
    k(f'v_cmp_eq_u32 vcc, 0, v4')
    k(f'v_mov_b32 v{t0+3}, 0x40000000')
    k(f'v_cndmask_b32 v{t0+2}, v{t0+3}, v{t0+2}, vcc')
    k(f'buffer_store_dwordx2 v[{t0}:{t0+1}], v{t0+2}, s[{s_srd}:{s_srd+3}], 0 offen')

def gen_qkv():
    k=Kern('qkv_kernel',vgpr=256,agpr=224,sgpr=64)
    END=k.name+'_end'
    k('s_cmp_ge_u32 s2, 256')
    k(f's_cbranch_scc1 {END}')
    k(f's_load_dwordx2 s[4:5], s[0:1], {KA_WS}')
    wg_decode(k)
    k('s_waitcnt lgkmcnt(0)')
    srd(k,12,4,XA,X_SZ)
    srd(k,16,4,WQF,WQF_SZ)
    srd(k,20,4,WKVF,WKVF_SZ)
    srd(k,24,4,STA,ST_SZ)
    srd(k,28,4,CSQ,CSQ_SZ)
    srd(k,32,4,QB,QB_SZ)
    srd(k,36,4,KV,KV_SZ)
    AX,AW,AKV=0,80,180
    k('s_mul_i32 s40, s3, 5120')
    k('v_add_u32 v6, s40, v5')
    k('v_add_u32 v7, 4096, v6')
    k('s_mul_i32 s42, s6, 81920')
    for tt in range(4):
        k(f's_add_u32 s{44+tt}, s42, {tt*20480}')
    k('s_mul_i32 s42, s7, 102400')
    for t in range(5):
        k(f's_add_u32 s{48+t}, s42, {t*20480}')
    k('s_and_b32 s42, s7, 1')
    k('s_mul_i32 s42, s42, 40960')
    k('s_mov_b32 s53, s42')
    k('s_add_u32 s54, s42, 20480')
    for i in range(5):
        va,off=(6,i*1024) if i<4 else (7,0)
        for tt in range(4):
            b=AX+(i*4+tt)*4
            k(f'buffer_load_dwordx4 a[{b}:{b+3}], v{va}, s[12:15], s{44+tt} offen offset:{off}')
        for t in range(5):
            b=AW+(i*5+t)*4
            k(f'buffer_load_dwordx4 a[{b}:{b+3}], v{va}, s[16:19], s{48+t} offen offset:{off}')
        for u in range(2):
            b=AKV+(i*2+u)*4
            k(f'buffer_load_dwordx4 a[{b}:{b+3}], v{va}, s[20:23], s{53+u} offen offset:{off}')
    k('s_lshl_b32 s42, s6, 6')
    k('s_lshl_b32 s43, s3, 4')
    k('s_add_u32 s42, s42, s43')
    k('v_add_u32 v8, s42, v3')
    load_stats(k,16,8,24,9)
    k('s_lshr_b32 s43, s7, 1')
    k('s_lshl_b32 s43, s43, 4')
    k('s_lshl_b32 s42, s6, 6')
    k('s_add_u32 s42, s42, s43')
    k('s_mov_b32 s55, s42')
    k('v_add_u32 v10, s42, v3')
    load_stats(k,32,10,24,9)
    for i in range(5):
        k(f's_waitcnt vmcnt({63-11*(i+1)})')
        for tt in range(4):
            for t in range(5):
                c=ACC+(tt*5+t)*4
                a=AW+(i*5+t)*4; b=AX+(i*4+tt)*4
                cs='0' if i==0 else f'v[{c}:{c+3}]'
                k(f'v_mfma_f32_16x16x32_bf16 v[{c}:{c+3}], a[{a}:{a+3}], a[{b}:{b+3}], {cs}')
    EX=144
    done=k.lab('kvdone')
    vl=[k.lab('kvv') for _ in range(8)]
    for v in range(8):
        k(f's_cmp_eq_u32 s7, {v}')
        k(f's_cbranch_scc1 {vl[v]}')
    for v in range(8):
        k(vl[v]+':')
        tt=v>>1
        for i in range(5):
            for u in range(2):
                c=EX+4*u; w=AKV+(i*2+u)*4; x=AX+(i*4+tt)*4
                cs='0' if i==0 else f'v[{c}:{c+3}]'
                if v&1==0: k(f'v_mfma_f32_16x16x32_bf16 v[{c}:{c+3}], a[{w}:{w+3}], a[{x}:{x+3}], {cs}')
                else:      k(f'v_mfma_f32_16x16x32_bf16 v[{c}:{c+3}], a[{x}:{x+3}], a[{w}:{w+3}], {cs}')
        k(f's_branch {done}')
    k(done+':')
    k('s_mul_i32 s42, s7, 320')
    k('v_lshl_add_u32 v9, v4, 4, s42')
    for t in range(5):
        k(f'buffer_load_dwordx4 v[{200+4*t}:{203+4*t}], v9, s[28:31], 0 offen offset:{t*64}')
    k('s_lshl_b32 s42, s3, 6')
    k('v_lshl_add_u32 v9, v4, 4, s42')
    k(f'buffer_load_dwordx4 v[220:223], v9, s[28:31], 0 offen offset:{640*4}')
    k('v_lshl_add_u32 v9, v3, 2, s42')
    k(f'buffer_load_dword v224, v9, s[28:31], 0 offen offset:{672*4}')
    reduce_scatter(k,nextra=2,extra_base=EX)
    k('s_waitcnt vmcnt(0)')
    stats_finish(k,16,12,13)
    k(f'v_mul_f32 v13, {hex(f2u(QSCALE))}, v13')
    k(f'v_mul_f32 v12, v12, v13')
    for t in range(5):
        for i in range(4):
            r=ACC+t*4+i
            k(f'v_mul_f32 v{r}, v{r}, v13')
            k(f'v_fma_f32 v{r}, -v12, v{200+4*t+i}, v{r}')
        k(f'v_cvt_pk_bf16_f32 v{ACC+t*4}, v{ACC+t*4}, v{ACC+t*4+1}')
        k(f'v_cvt_pk_bf16_f32 v{ACC+t*4+1}, v{ACC+t*4+2}, v{ACC+t*4+3}')
    k('s_movk_i32 s42, 1280')
    k('v_mul_lo_u32 v9, v8, s42')
    k('s_mul_i32 s43, s7, 160')
    k('v_lshl_add_u32 v9, v4, 3, v9')
    k('v_add_u32 v9, s43, v9')
    for t in range(5):
        k(f'buffer_store_dwordx2 v[{ACC+t*4}:{ACC+t*4+1}], v9, s[32:35], 0 offen offset:{t*32}')
    k('s_cmp_ge_u32 s3, 2')
    k(f's_cbranch_scc1 {END}')
    stats_finish(k,32,12,13)
    k('v_mul_f32 v12, v12, v13')
    k('s_lshr_b32 s42, s55, 8')
    k(f's_mul_i32 s42, s42, {CH}')
    k('s_lshr_b32 s43, s55, 5')
    k('s_and_b32 s43, s43, 7')
    k('s_lshr_b32 s44, s55, 4')
    k('s_and_b32 s44, s44, 1')
    vlab=k.lab('vpath')
    k('s_and_b32 s45, s7, 1')
    k('s_cmp_eq_u32 s45, 1')
    k(f's_cbranch_scc1 {vlab}')
    for i in range(4):
        k(f'v_mul_f32 v{EX+i}, v{EX+i}, v13')
        k(f'v_fma_f32 v{EX+i}, -v12, v{220+i}, v{EX+i}')
    k(f'v_cvt_pk_bf16_f32 v{EX}, v{EX}, v{EX+1}')
    k(f'v_cvt_pk_bf16_f32 v{EX+1}, v{EX+2}, v{EX+3}')
    k('s_lshl_b32 s46, s3, 2')
    k('v_add_u32 v50, s46, v4')
    k('s_lshl_b32 s46, s44, 4')
    k('v_add_u32 v51, s46, v3')
    k('s_lshl_b32 s46, s43, 10')
    k('v_lshrrev_b32 v52, 1, v50')
    k('v_lshlrev_b32 v52, 9, v52')
    k('v_lshl_add_u32 v52, v51, 4, v52')
    k('v_and_b32 v53, 1, v50')
    k('v_lshl_add_u32 v52, v53, 3, v52')
    k('v_add_u32 v52, s46, v52')
    k('s_lshl_b32 s46, s43, 9')
    k('s_add_u32 s46, s46, 8192')
    k('v_subrev_u32 v53, 4, v50')
    k('v_lshlrev_b32 v53, 8, v53')
    k('v_lshl_add_u32 v53, v51, 3, v53')
    k('v_add_u32 v53, s46, v53')
    k('v_cmp_gt_u32 vcc, 4, v50')
    k('v_cndmask_b32 v52, v53, v52, vcc')
    k('v_cmp_gt_u32 vcc, 6, v50')
    k('v_mov_b32 v53, 0x40000000')
    k('v_cndmask_b32 v52, v53, v52, vcc')
    k('buffer_store_dwordx2 v[144:145], v52, s[36:39], s42 offen')
    k(f's_branch {END}')
    k(vlab+':')
    k('s_barrier') if False else None
    k('s_lshl_b32 s46, s3, 8')
    k(f's_add_u32 s46, s46, {98304}')
    k('v_lshl_add_u32 v50, v3, 3, s46')
    k('ds_write_b64 v50, v[12:13]')
    k('v_lshl_add_u32 v50, v4, 5, s46')
    k('s_waitcnt lgkmcnt(0)')
    k('ds_read_b128 v[52:55], v50')
    k('ds_read_b128 v[56:59], v50 offset:16')
    k('s_waitcnt lgkmcnt(0)')
    for i in range(4):
        k(f'v_mul_f32 v{EX+i}, v{EX+i}, v{52+2*i+1}')
        k(f'v_fma_f32 v{EX+i}, -v{52+2*i}, v224, v{EX+i}')
    k('s_lshl_b32 s46, s3, 4')
    k('v_add_u32 v50, s46, v3')
    k('v_cmp_eq_u32 vcc, 20, v50')
    for i in range(4):
        k(f'v_cndmask_b32 v{EX+i}, v{EX+i}, 1.0, vcc')
    k(f'v_cvt_pk_bf16_f32 v{EX}, v{EX}, v{EX+1}')
    k(f'v_cvt_pk_bf16_f32 v{EX+1}, v{EX+2}, v{EX+3}')
    k('s_lshl_b32 s46, s43, 11')
    k('s_lshl_b32 s47, s44, 10')
    k('s_add_u32 s46, s46, s47')
    k('s_add_u32 s46, s46, 12288')
    k('v_and_b32 v51, 1, v4')
    k('v_lshlrev_b32 v51, 9, v51')
    k('v_lshl_add_u32 v51, v50, 4, v51')
    k('v_lshrrev_b32 v52, 1, v4')
    k('v_lshl_add_u32 v51, v52, 3, v51')
    k('v_add_u32 v51, s46, v51')
    k('buffer_store_dwordx2 v[144:145], v51, s[36:39], s42 offen')
    k(END+':')
    k('s_endpgm')
    return k,(256,256,98304+1024)

def gen_proj(kind):
    fc2 = kind=='fc2'
    k=Kern(kind+'_kernel',vgpr=256,agpr=256,sgpr=64)
    END=k.name+'_end'
    KS=54 if fc2 else 20
    k('s_cmp_ge_u32 s2, 256')
    k(f's_cbranch_scc1 {END}')
    k(f's_load_dwordx2 s[4:5], s[0:1], {KA_WS}')
    if fc2:
        k(f's_load_dwordx2 s[8:9], s[0:1], {KA_B2}')
        k(f's_load_dwordx2 s[10:11], s[0:1], {KA_OUT}')
    wg_decode_nos8(k)
    k('s_waitcnt lgkmcnt(0)')
    if fc2:
        srd(k,12,4,HF,HF_SZ); srd(k,16,4,W2F,W2F_SZ); srd(k,20,4,XB,X_SZ); srd(k,24,4,XA,X_SZ); srd(k,28,4,STA,ST_SZ)
        srd(k,32,8,0,1280); srd(k,36,10,0,2048*1280)
    else:
        srd(k,12,4,OF,X_SZ); srd(k,16,4,WOF,WOF_SZ); srd(k,20,4,XA,X_SZ); srd(k,24,4,XB,X_SZ); srd(k,28,4,STB,ST_SZ)
    TS=KS*1024
    nst=(KS+3)//4
    k('s_lshl_b32 s40, s3, 10')
    k('v_add_u32 v6, s40, v5')
    k(f's_mul_i32 s42, s6, {4*TS}')
    for tt in range(4):
        k(f's_add_u32 s{44+tt}, s42, {tt*TS}')
    k(f's_mul_i32 s42, s7, {5*TS}')
    for t in range(5):
        k(f's_add_u32 s{48+t}, s42, {t*TS}')
    RING=5
    def issue(i):
        s=i%RING
        for tt in range(4):
            b=s*36+tt*4
            k(f'buffer_load_dwordx4 a[{b}:{b+3}], v6, s[12:15], s{44+tt} offen')
            k(f's_add_u32 s{44+tt}, s{44+tt}, 4096')
        for t in range(5):
            b=s*36+16+t*4
            k(f'buffer_load_dwordx4 a[{b}:{b+3}], v6, s[16:19], s{48+t} offen')
            k(f's_add_u32 s{48+t}, s{48+t}, 4096')
    def compute(i):
        s=i%RING
        for tt in range(4):
            for t in range(5):
                c=ACC+(tt*5+t)*4; a=s*36+16+t*4; b=s*36+tt*4
                cs='0' if i==0 else f'v[{c}:{c+3}]'
                k(f'v_mfma_f32_16x16x32_bf16 v[{c}:{c+3}], a[{a}:{a+3}], a[{b}:{b+3}], {cs}')
    k('s_lshl_b32 s42, s6, 6')
    k('s_lshl_b32 s43, s3, 4')
    k('s_add_u32 s42, s42, s43')
    k('v_add_u32 v8, s42, v3')
    k('s_lshl_b32 s42, s6, 2')
    k('s_add_u32 s42, s42, s3')
    k('s_mul_i32 s42, s42, 20480')
    k('s_mul_i32 s43, s7, 5')
    for t in range(5):
        k(f's_add_u32 s56, s43, {t}')
        k(f's_lshr_b32 s57, s56, 1')
        k(f's_lshl_b32 s57, s57, 10')
        k(f's_and_b32 s56, s56, 1')
        k(f's_lshl_b32 s56, s56, 3')
        k(f's_add_u32 s57, s57, s56')
        k(f's_add_u32 s{58+t}, s57, s42')
        k(f'buffer_load_dwordx2 v[{200+2*t}:{201+2*t}], v5, s[20:23], s{58+t} offen')
    nep=5
    if fc2:
        k('s_mul_i32 s42, s7, 160')
        k('v_lshl_add_u32 v9, v4, 3, s42')
        for t in range(5):
            k(f'buffer_load_dwordx2 v[{212+2*t}:{213+2*t}], v9, s[32:35], 0 offen offset:{t*32}')
        nep=10
    last_full = KS//4
    rem = KS%4
    pre=min(RING,nst)
    tail = (rem!=0)
    nfull = nst-1 if tail else nst
    skip1=k.lab('sk');
    issued=0
    for i in range(min(RING,nfull)):
        issue(i); issued+=1
    for i in range(nfull):
        rem_steps=issued-(i+1)
        k(f's_waitcnt vmcnt({rem_steps*9})')
        compute(i)
        if issued<nfull:
            issue(issued); issued+=1
        elif tail and issued==nfull:
            pass
    if tail:
        k(f's_cmp_ge_u32 s3, {rem}')
        k(f's_cbranch_scc1 {skip1}')
        issue(nfull)
        k('s_waitcnt vmcnt(0)')
        compute(nfull)
        k(skip1+':')
    reduce_scatter(k)
    k('s_waitcnt vmcnt(0)')
    k('s_mov_b32 s42, 0xffff0000')
    for t in range(5):
        r=ACC+t*4
        k(f'v_lshlrev_b32 v10, 16, v{200+2*t}')
        k(f'v_and_b32 v11, s42, v{200+2*t}')
        k(f'v_lshlrev_b32 v12, 16, v{201+2*t}')
        k(f'v_and_b32 v13, s42, v{201+2*t}')
        for i in range(4): k(f'v_add_f32 v{r+i}, v{r+i}, v{10+i}')
        if fc2:
            k(f'v_lshlrev_b32 v10, 16, v{212+2*t}')
            k(f'v_and_b32 v11, s42, v{212+2*t}')
            k(f'v_lshlrev_b32 v12, 16, v{213+2*t}')
            k(f'v_and_b32 v13, s42, v{213+2*t}')
            for i in range(4): k(f'v_add_f32 v{r+i}, v{r+i}, v{10+i}')
        k(f'v_cvt_pk_bf16_f32 v{160+2*t}, v{r}, v{r+1}')
        k(f'v_cvt_pk_bf16_f32 v{161+2*t}, v{r+2}, v{r+3}')
        k(f'buffer_store_dwordx2 v[{160+2*t}:{161+2*t}], v5, s[24:27], s{58+t} offen')
        k(f'v_lshlrev_b32 v{r}, 16, v{160+2*t}')
        k(f'v_and_b32 v{r+1}, s42, v{160+2*t}')
        k(f'v_lshlrev_b32 v{r+2}, 16, v{161+2*t}')
        k(f'v_and_b32 v{r+3}, s42, v{161+2*t}')
    if fc2:
        k('s_movk_i32 s43, 1280')
        k('v_mul_lo_u32 v9, v8, s43')
        k('s_mul_i32 s43, s7, 160')
        k('v_lshl_add_u32 v9, v4, 3, v9')
        k('v_add_u32 v9, s43, v9')
        for t in range(5):
            k(f'buffer_store_dwordx2 v[{160+2*t}:{161+2*t}], v9, s[36:39], 0 offen offset:{t*32}')
    out_stats(k,ACC,20,28,8,7,t0=180)
    k(END+':')
    k('s_endpgm')
    return k,(256,256,98304)

def wg_decode_nos8(k):
    k('v_lshrrev_b32 v1, 6, v0')
    k('v_and_b32 v2, 63, v0')
    k('v_readfirstlane_b32 s3, v1')
    k('s_and_b32 s6, s2, 7')
    k('s_lshl_b32 s6, s6, 2')
    k('s_lshr_b32 s7, s2, 3')
    k('s_and_b32 s7, s7, 3')
    k('s_add_u32 s6, s6, s7')
    k('s_lshr_b32 s7, s2, 5')
    k('v_and_b32 v3, 15, v2')
    k('v_lshrrev_b32 v4, 4, v2')
    k('v_lshlrev_b32 v5, 4, v2')

def gen_fc1():
    k=Kern('fc1_kernel',vgpr=256,sgpr=64)
    END=k.name+'_end'
    k('s_cmp_ge_u32 s2, 256')
    k(f's_cbranch_scc1 {END}')
    k(f's_load_dwordx2 s[4:5], s[0:1], {KA_WS}')
    k(f's_load_dwordx2 s[8:9], s[0:1], {KA_B1}')
    wg_decode_nos8(k)
    k('s_waitcnt lgkmcnt(0)')
    srd(k,12,4,XB,X_SZ); srd(k,16,4,W1F,W1F_SZ); srd(k,20,4,STB,ST_SZ); srd(k,24,4,CS1,CS1_SZ); srd(k,28,8,0,1728*2); srd(k,32,4,HF,HF_SZ)
    k('s_mul_i32 s40, s6, 81920')
    k('s_mul_i32 s41, s3, 10240')
    k('s_add_u32 s40, s40, s41')
    for i in range(10):
        k(f's_add_u32 m0, s41, {i*1024}')
        k(f'buffer_load_dwordx4 v5, s[12:15], s40 offen lds')
        k('s_add_u32 s40, s40, 1024')
    k('s_mul_i32 s42, s7, 7')
    k('s_sub_u32 s43, s7, 6')
    k('s_max_i32 s43, s43, 0')
    k('s_sub_u32 s42, s42, s43')
    k('s_mov_b32 s44, 7')
    k('s_cmp_ge_u32 s7, 6')
    k('s_cselect_b32 s44, 6, 7')
    k('s_add_u32 s45, s42, s3')
    idle=k.lab('idle')
    k('s_cmp_ge_u32 s3, s44')
    k(f's_cbranch_scc1 {idle}')
    k('v_and_b32 v6, 31, v2')
    k('v_lshrrev_b32 v7, 5, v2')
    k('v_lshrrev_b32 v8, 4, v6')
    k('s_movk_i32 s46, 20480')
    k('v_mul_lo_u32 v8, v8, s46')
    k('v_lshl_add_u32 v8, v7, 8, v8')
    k('v_lshl_add_u32 v8, v3, 4, v8')
    k('s_mul_i32 s46, s45, 40960')
    WB=64
    for ks in range(20):
        for u in range(2):
            b=WB+(ks*2+u)*4
            off=(ks%4)*1024+u*512
            k(f'buffer_load_dwordx4 v[{b}:{b+3}], v8, s[16:19], s46 offen offset:{off}')
        if ks%4==3: k('s_add_u32 s46, s46, 4096')
    k('s_waitcnt vmcnt(40)')
    k('s_barrier')
    k('v_lshrrev_b32 v9, 4, v6')
    k('s_movk_i32 s47, 20480')
    k('v_mul_lo_u32 v9, v9, s47')
    k('v_lshl_add_u32 v9, v7, 8, v9')
    k('v_lshl_add_u32 v9, v3, 4, v9')
    A0,A1=16,32
    XF=224
    def xread(step):
        ks,u=step//2,step%2
        s=(step%4)*8
        k(f'ds_read_b128 v[{XF+s}:{XF+s+3}], v9 offset:{ks*1024+u*512}')
        k(f'ds_read_b128 v[{XF+s+4}:{XF+s+7}], v9 offset:{40960+ks*1024+u*512}')
    xread(0); xread(1); xread(2)
    for step in range(40):
        if step+3<40: xread(step+3)
        nl=min(3,39-step)*2
        k(f's_waitcnt vmcnt({39-step}) lgkmcnt({nl})')
        b=WB+step*4; s=(step%4)*8
        c0='0' if step==0 else f'v[{A0}:{A0+15}]'
        c1='0' if step==0 else f'v[{A1}:{A1+15}]'
        k(f'v_mfma_f32_32x32x16_bf16 v[{A0}:{A0+15}], v[{b}:{b+3}], v[{XF+s}:{XF+s+3}], {c0}')
        k(f'v_mfma_f32_32x32x16_bf16 v[{A1}:{A1+15}], v[{b}:{b+3}], v[{XF+s+4}:{XF+s+7}], {c1}')
    k('s_lshl_b32 s46, s6, 6')
    k('v_add_u32 v10, s46, v6')
    k('v_add_u32 v11, 32, v10')
    load_stats(k,64,10,20,12)
    load_stats(k,80,11,20,12)
    k('s_lshl_b32 s46, s45, 7')
    k('v_lshl_add_u32 v12, v7, 4, s46')
    for a in range(4):
        k(f'buffer_load_dwordx4 v[{96+4*a}:{99+4*a}], v12, s[24:27], 0 offen offset:{a*32}')
    k('s_lshl_b32 s46, s45, 6')
    k('v_lshl_add_u32 v12, v7, 3, s46')
    for a in range(4):
        k(f'buffer_load_dwordx2 v[{112+2*a}:{113+2*a}], v12, s[28:31], 0 offen offset:{a*16}')
    k('s_waitcnt vmcnt(0)')
    k('s_mov_b32 s47, 0xffff0000')
    for a in range(4):
        k(f'v_lshlrev_b32 v{120+4*a}, 16, v{112+2*a}')
        k(f'v_and_b32 v{121+4*a}, s47, v{112+2*a}')
        k(f'v_lshlrev_b32 v{122+4*a}, 16, v{113+2*a}')
        k(f'v_and_b32 v{123+4*a}, s47, v{113+2*a}')
    c0=-2*0.7978845608028654*1.4426950408889634
    c1=c0*0.044715
    k(f's_mov_b32 s48, {hex(f2u(c0))}')
    k(f's_mov_b32 s49, {hex(f2u(c1))}')
    for tt in range(2):
        st=64+16*tt; A=A0 if tt==0 else A1
        stats_finish(k,st,140,141,double=True)
        k('v_mul_f32 v140, v140, v141')
        for i in range(16):
            r=A+i
            k(f'v_fma_f32 v142, -v140, v{96+i}, v{120+i}')
            k(f'v_fma_f32 v{r}, v{r}, v141, v142')
            k(f'v_mul_f32 v143, v{r}, v{r}')
            k(f'v_mov_b32 v144, s48')
            k(f'v_fmac_f32 v144, s49, v143')
            k(f'v_mul_f32 v144, v144, v{r}')
            k(f'v_exp_f32 v144, v144')
            k(f'v_add_f32 v144, 1.0, v144')
            k(f'v_rcp_f32 v144, v144')
            k(f'v_mul_f32 v{r}, v{r}, v144')
        for a in range(4):
            k(f'v_cvt_pk_bf16_f32 v{146+2*a}, v{A+4*a}, v{A+4*a+1}')
            k(f'v_cvt_pk_bf16_f32 v{147+2*a}, v{A+4*a+2}, v{A+4*a+3}')
        k('v_mov_b32 v156, v146'); k('v_mov_b32 v157, v147'); k('v_mov_b32 v158, v150'); k('v_mov_b32 v159, v151')
        k('v_mov_b32 v160, v148'); k('v_mov_b32 v161, v149'); k('v_mov_b32 v162, v152'); k('v_mov_b32 v163, v153')
        k('v_lshrrev_b32 v164, 4, v6')
        k(f's_mov_b32 s46, {54*1024}')
        k('v_mul_lo_u32 v164, v164, s46')
        k('v_lshl_add_u32 v164, v7, 8, v164')
        k('v_lshl_add_u32 v164, v3, 4, v164')
        k('s_lshl_b32 s46, s6, 2')
        k(f's_add_u32 s46, s46, {2*tt}')
        k('s_mul_i32 s46, s46, 54')
        k('s_add_u32 s46, s46, s45')
        k('s_lshl_b32 s46, s46, 10')
        k('buffer_store_dwordx4 v[156:159], v164, s[32:35], s46 offen')
        k('buffer_store_dwordx4 v[160:163], v164, s[32:35], s46 offen offset:512')
    k(f's_branch {END}')
    k(idle+':')
    k('s_waitcnt vmcnt(0)')
    k('s_barrier')
    k(END+':')
    k('s_endpgm')
    return k,(256,512,81920)
```

```python
from asmlib import *
from layout import *

KA_X,KA_WQ,KA_WK,KA_WV,KA_WO,KA_BX,KA_W1,KA_B1,KA_W2,KA_B2,KA_OUT,KA_DBG,KA_WS=0,8,16,24,32,40,48,56,64,72,80,88,96

def srd(k, d, p, off, size):
    if off:
        k(f's_add_u32 s{d}, s{p}, {off}')
        k(f's_addc_u32 s{d+1}, s{p+1}, 0')
    else:
        k(f's_mov_b32 s{d}, s{p}')
        k(f's_mov_b32 s{d+1}, s{p+1}')
    k(f's_and_b32 s{d+1}, s{d+1}, 0xffff')
    k(f's_mov_b32 s{d+2}, {size}')
    k(f's_mov_b32 s{d+3}, 0x20000')

def sum_over_g(k, x, tmp):
    k(f'v_mov_b32 v{tmp}, v{x}')
    k(f'v_permlane16_swap_b32 v{x}, v{tmp}')
    k(f'v_add_f32 v{x}, v{x}, v{tmp}')
    k(f'v_mov_b32 v{tmp}, v{x}')
    k(f'v_permlane32_swap_b32 v{x}, v{tmp}')
    k(f'v_add_f32 v{x}, v{x}, v{tmp}')

PREP_JOBS=[('x',128),('wq',40),('wk',2),('wv',2),('wo',40),('w1',108),('w2',108)]
PREP_NWG=sum(n for _,n in PREP_JOBS)

def gen_prep():
    k=Kern('prep_kernel',vgpr=96,sgpr=64)
    END=k.name+'_end'
    k(f's_cmp_ge_u32 s2, {PREP_NWG}')
    k(f's_cbranch_scc1 {END}')
    k(f's_load_dwordx2 s[4:5], s[0:1], {KA_WS}')
    k('v_lshrrev_b32 v1, 6, v0')
    k('v_and_b32 v2, 63, v0')
    k('v_readfirstlane_b32 s3, v1')
    k('v_and_b32 v3, 15, v2')
    k('v_lshrrev_b32 v4, 4, v2')
    k('v_lshlrev_b32 v5, 4, v2')
    start=0
    labs={}
    for name,n in PREP_JOBS:
        labs[name]=k.name+'_'+name
    start=0
    for name,n in PREP_JOBS:
        k(f's_sub_u32 s6, s2, {start}')
        k(f's_cmp_lt_u32 s2, {start+n}')
        k(f's_cbranch_scc1 {labs[name]}')
        start+=n
    k(f's_branch {END}')

    k(labs['x']+':')
    k(f's_load_dwordx2 s[8:9], s[0:1], {KA_X}')
    k('s_waitcnt lgkmcnt(0)')
    srd(k,12,8,0,2048*1280)
    srd(k,16,4,XA,X_SZ)
    srd(k,20,4,STA,ST_SZ)
    k('s_lshl_b32 s7, s6, 4')
    k('v_add_u32 v6, s7, v3')
    k('s_movk_i32 s24, 1280')
    k('v_mul_lo_u32 v7, v6, s24')
    k('v_lshl_add_u32 v7, v4, 3, v7')
    k('s_mul_i32 s25, s3, 320')
    k('v_add_u32 v7, s25, v7')
    for i in range(5):
        k(f'buffer_load_dwordx2 v[{10+4*i}:{11+4*i}], v7, s[12:15], 0 offen offset:{i*64}')
        k(f'buffer_load_dwordx2 v[{12+4*i}:{13+4*i}], v7, s[12:15], 0 offen offset:{i*64+32}')
    k('s_mul_i32 s26, s6, 20')
    k('s_mul_i32 s27, s3, 5')
    k('s_add_u32 s26, s26, s27')
    k('s_lshl_b32 s26, s26, 10')
    k('v_mov_b32 v40, 0')
    k('v_mov_b32 v41, 0')
    k('s_mov_b32 s28, 0xffff0000')
    k('s_waitcnt vmcnt(0)')
    for i in range(5):
        k(f'buffer_store_dwordx4 v[{10+4*i}:{13+4*i}], v5, s[16:19], s26 offen')
        k('s_add_u32 s26, s26, 1024')
    for r in range(10,30):
        k(f'v_lshlrev_b32 v42, 16, v{r}')
        k(f'v_and_b32 v43, s28, v{r}')
        k('v_add_f32 v40, v40, v42')
        k('v_fmac_f32 v41, v42, v42')
        k('v_add_f32 v40, v40, v43')
        k('v_fmac_f32 v41, v43, v43')
    sum_over_g(k,40,44)
    sum_over_g(k,41,44)
    k('v_cmp_eq_u32 vcc, 0, v4')
    k('v_cndmask_b32 v40, 0, v40, vcc')
    k('v_cndmask_b32 v41, 0, v41, vcc')
    k('v_lshlrev_b32 v45, 6, v6')
    k('v_lshl_add_u32 v45, v4, 5, v45')
    k('s_lshl_b32 s29, s3, 3')
    k('v_add_u32 v45, s29, v45')
    k('v_cmp_gt_u32 vcc, 2, v4')
    k('v_mov_b32 v46, 0x40000000')
    k('v_cndmask_b32 v45, v46, v45, vcc')
    k('buffer_store_dwordx2 v[40:41], v45, s[20:23], 0 offen')
    k(f's_branch {END}')

    def wjob(name, ka, N, K, KS, dst, dst_sz, mode, cs_off):
        N2=N*2
        k(labs[name]+':')
        k(f's_load_dwordx2 s[8:9], s[0:1], {ka}')
        k('s_waitcnt lgkmcnt(0)')
        srd(k,12,8,0,K*N2)
        srd(k,16,4,dst,dst_sz)
        for i in range(5):
            if KS==20:
                k(f's_mov_b32 s{30+i}, s6')
                k(f's_mul_i32 s{36+i}, s3, 5')
                k(f's_add_u32 s{36+i}, s{36+i}, {i}')
            else:
                k(f's_mul_i32 s42, s6, 20')
                k(f's_mul_i32 s43, s3, 5')
                k(f's_add_u32 s42, s42, s43')
                k(f's_add_u32 s42, s42, {i}')
                k(f's_mul_i32 s43, s42, 1214')
                k(f's_lshr_b32 s{30+i}, s43, 16')
                k(f's_mul_i32 s43, s{30+i}, {KS}')
                k(f's_sub_u32 s{36+i}, s42, s43')
        k(f's_mov_b32 s44, {N2}')
        k('v_lshlrev_b32 v6, 1, v3')
        if N==20:
            k('s_lshl_b32 s45, s6, 4')
            k('v_add_u32 v8, s45, v3')
            k('v_cmp_gt_u32 vcc, 20, v8')
            k('v_mov_b32 v9, 0x40000000')
            k('v_cndmask_b32 v6, v9, v6, vcc')
        if mode=='std':
            k('v_lshlrev_b32 v7, 2, v4')
            k('v_mul_lo_u32 v7, v7, s44')
            k('v_add_u32 v6, v6, v7')
            k(f'v_add_u32 v7, {16*N2}, v6')
            for i in range(5):
                k(f's_mul_i32 s46, s{36+i}, {32*N2}')
                k(f's_lshl_b32 s47, s{30+i}, 5')
                k(f's_add_u32 s46, s46, s47')
                for j in range(8):
                    va=6 if j<4 else 7
                    k(f'buffer_load_ushort v{10+8*i+j}, v{va}, s[12:15], s46 offen')
                    if j%4<3: k(f's_add_u32 s46, s46, {N2}')
                    elif j==3: k(f's_sub_u32 s46, s46, {3*N2}')
        else:
            for i in range(5):
                k(f's_lshl_b32 s46, s{36+i}, 2')
                k(f'v_add_u32 v50, s46, v4')
                k(f'v_mul_u32_u24 v51, 205, v50')
                k(f'v_lshrrev_b32 v51, 10, v51')
                k(f'v_mul_u32_u24 v52, 5, v51')
                k(f'v_sub_u32 v52, v50, v52')
                k(f'v_lshrrev_b32 v53, 1, v52')
                k(f'v_mul_u32_u24 v53, 20, v53')
                k(f'v_and_b32 v54, 1, v52')
                k(f'v_lshl_add_u32 v53, v54, 2, v53')
                k(f'v_cmp_gt_u32 vcc, 4, v52')
                k(f'v_cndmask_b32 v53, 16, v53, vcc')
                k(f'v_mov_b32 v55, 20')
                k(f'v_cndmask_b32 v54, v55, 8, vcc') if False else None
                k(f'v_mov_b32 v54, 8')
                k(f'v_cndmask_b32 v54, v55, v54, vcc')
                k(f'v_mul_u32_u24 v51, 40, v51')
                k(f'v_add_u32 v53, v53, v51')
                k(f'v_mul_lo_u32 v56, v53, s44')
                k(f'v_add_u32 v56, v56, v6')
                k(f'v_mul_lo_u32 v57, v54, s44')
                k(f'v_add_u32 v57, v57, v56')
                k(f's_lshl_b32 s46, s{30+i}, 5')
                for j in range(8):
                    va=56 if j<4 else 57
                    k(f'buffer_load_ushort v{10+8*i+j}, v{va}, s[12:15], s46 offen')
                    if j%4<3: k(f's_add_u32 s46, s46, {N2}')
                    elif j==3: k(f's_sub_u32 s46, s46, {3*N2}')
        k('v_mov_b32 v60, 0')
        for i in range(5):
            k(f's_waitcnt vmcnt({8*(4-i)+i})')
            for p in range(4):
                k(f'v_lshl_or_b32 v{64+4*i+p}, v{10+8*i+2*p+1}, 16, v{10+8*i+2*p}')
            if cs_off is not None:
                for j in range(8):
                    k(f'v_lshlrev_b32 v61, 16, v{10+8*i+j}')
                    k('v_add_f32 v60, v60, v61')
            k(f's_mul_i32 s46, s{30+i}, {KS}')
            k(f's_add_u32 s46, s46, s{36+i}')
            k(f's_lshl_b32 s46, s46, 10')
            k(f'buffer_store_dwordx4 v[{64+4*i}:{67+4*i}], v5, s[16:19], s46 offen')
        if cs_off is not None:
            reg,sz,off=cs_off
            srd(k,20,4,reg,sz)
            sum_over_g(k,60,61)
            k('s_lshl_b32 s46, s3, 6')
            k('v_lshl_add_u32 v62, v3, 2, s46')
            k('ds_write_b32 v62, v60')
            k('s_waitcnt lgkmcnt(0)')
            k('s_barrier')
            k('v_lshlrev_b32 v62, 2, v3')
            k('ds_read_b32 v63, v62')
            k('ds_read_b32 v61, v62 offset:64')
            k('ds_read_b32 v58, v62 offset:128')
            k('ds_read_b32 v59, v62 offset:192')
            k('s_waitcnt lgkmcnt(0)')
            k('v_add_f32 v63, v63, v61')
            k('v_add_f32 v58, v58, v59')
            k('v_add_f32 v63, v63, v58')
            k('s_lshl_b32 s46, s6, 6')
            k(f's_add_u32 s46, s46, {off}')
            k('v_add_u32 v62, s46, v62')
            k('v_cmp_gt_u32 vcc, 16, v0')
            k('v_mov_b32 v61, 0x40000000')
            k('v_cndmask_b32 v62, v61, v62, vcc')
            k('buffer_store_dword v63, v62, s[20:23], 0 offen')
        k(f's_branch {END}')
    wjob('wq',KA_WQ,640,640,20,WQF,WQF_SZ,'std',(CSQ,CSQ_SZ,0))
    wjob('wk',KA_WK,20,640,20,WKVF,40960,'std',(CSQ,CSQ_SZ,640*4))
    wjob('wv',KA_WV,20,640,20,WKVF+40960,40960,'std',(CSQ,CSQ_SZ,672*4))
    wjob('wo',KA_WO,640,640,20,WOF,WOF_SZ,'wo',None)
    wjob('w1',KA_W1,1728,640,20,W1F,W1F_SZ,'std',(CS1,CS1_SZ,0))
    wjob('w2',KA_W2,640,1728,54,W2F,W2F_SZ,'std',None)
    k(END+':')
    k('s_endpgm')
    return k, (PREP_NWG,256,1024)
```

```python
S,D,H,DH,F=2048,640,32,20,1728
def al(x,a=4096): return (x+a-1)//a*a
_o=0
def alloc(n):
    global _o
    r=_o; _o=al(_o+n); return r
WQF=alloc(40*20*1024);  WQF_SZ=40*20*1024
WKVF=alloc(4*20*1024);  WKVF_SZ=4*20*1024
WOF=alloc(40*20*1024);  WOF_SZ=40*20*1024
W1F=alloc(108*20*1024); W1F_SZ=108*20*1024
W2F=alloc(40*54*1024);  W2F_SZ=40*54*1024
CSQ=alloc(704*4);       CSQ_SZ=704*4
CS1=alloc(1728*4);      CS1_SZ=1728*4
XA=alloc(128*20*1024);  X_SZ=128*20*1024
XB=alloc(128*20*1024)
STA=alloc(2048*64);     ST_SZ=2048*64
STB=alloc(2048*64)
QB=alloc(2048*1280);    QB_SZ=2048*1280
CH=28672
KV=alloc(8*CH);         KV_SZ=8*CH
OF=alloc(128*20*1024)
HF=alloc(128*54*1024);  HF_SZ=128*54*1024
WS_USED=_o
QSCALE=(20**-0.5)*1.4426950408889634
```

```python
import sys
from asmlib import *
from layout import *
from k_prep import gen_prep
from k_gemm import gen_qkv, gen_proj, gen_fc1
from k_attn import gen_attn

NAME='interleave_layers__grouped_kv_mqa__mixer_channel_mlp__prompt'
HEADER=open(f'cdna_kernels/{NAME}.s.ref').read().split('; Override launch geometry')[0]

def build(order=None, verbose=False):
    ks={}
    for g in (gen_prep,gen_qkv,gen_attn,lambda:gen_proj('oproj'),gen_fc1,lambda:gen_proj('fc2')):
        k,geo=g(); ks[k.name]=(k,geo)
    if order is None:
        order=['prep_kernel']+['qkv_kernel','attn_kernel','oproj_kernel','fc1_kernel','fc2_kernel']*2
    out=[HEADER.rstrip('\n')]
    for n in order:
        _,(g,b,l)=ks[n]
        out.append(f'; @launch kernel={n} grid=({g},1,1) block=({b},1,1) lds={l}')
    out.append('.amdgcn_target "amdgcn-amd-amdhsa--gfx950"')
    for n in dict.fromkeys(order):
        t,nn=ks[n][0].text(verbose)
        print(f'{n}: {len(t.splitlines())} lines, {nn} nop states inserted',file=sys.stderr)
        out.append(t)
    return '\n'.join(out)

if __name__=='__main__':
    dst=sys.argv[1] if len(sys.argv)>1 else f'cdna_kernels/{NAME}.s'
    order=sys.argv[2].split(',') if len(sys.argv)>2 else None
    open(dst,'w').write(build(order))
```

```python
import sys
import gen
from asmlib import Kern
n=int(sys.argv[1]); dst=sys.argv[2]
txt=gen.build()
lines=txt.split('\n')
idx=[i for i,l in enumerate(lines) if l.startswith('; @launch')][-1]
extra=['; @launch kernel=nop_kernel grid=(256,1,1) block=(256,1,1) lds=0']*n
lines[idx+1:idx+1]=extra
k=Kern('nop_kernel',vgpr=8,sgpr=16); k('s_endpgm')
lines.append(k.text()[0])
open(dst,'w').write('\n'.join(lines))
```

```python
import re

TRANS = ('v_exp_f32','v_log_f32','v_rcp_f32','v_rsq_f32','v_sqrt_f32','v_sin_f32','v_cos_f32','v_exp_f16','v_rcp_f16','v_rcp_iflag_f32')

def mfma_passes(op):
    if '32x32x16' in op or '32x32x8' in op: return 8
    if '16x16x32' in op or '16x16x16' in op: return 4
    raise ValueError(op)

_reg = re.compile(r'^(-|abs\()?([vas])(\d+)\)?$')
_rng = re.compile(r'^(-)?([vas])\[(\d+):(\d+)\]$')

def regs_of(tok):
    tok = tok.strip()
    if tok in ('vcc',): return {'vcc'}
    if tok in ('vcc_lo','vcc_hi'): return {'vcc'}
    if tok == 'exec' or tok in('exec_lo','exec_hi'): return {'exec'}
    if tok == 'm0': return {'m0'}
    if tok == 'scc': return {'scc'}
    m = _reg.match(tok)
    if m: return {m.group(2)+m.group(3)}
    m = _rng.match(tok)
    if m: return {m.group(2)+str(i) for i in range(int(m.group(3)), int(m.group(4))+1)}
    return set()

class Ins:
    __slots__=('text','op','ops','kind','dst','src','srcA','srcB','srcC','passes','label','target','mods','nops')
    def __init__(self, text):
        self.text=text; self.label=None; self.target=None; self.kind='other'
        self.dst=set(); self.src=set(); self.srcA=set(); self.srcB=set(); self.srcC=set(); self.passes=0; self.nops=1
        t=text.split(';')[0].strip()
        if t.endswith(':'):
            self.label=t[:-1]; self.kind='label'; self.op=''; self.nops=0; return
        if not t or t.startswith('.'):
            self.kind='dir'; self.op=''; self.nops=0; return
        parts=t.split(None,1); op=parts[0]; self.op=op
        rest=parts[1] if len(parts)>1 else ''
        pm=re.search(r'\s(op_sel|op_sel_hi|neg_lo|neg_hi):',rest)
        if pm: rest=rest[:pm.start()]
        toks=[x.strip() for x in rest.split(',')] if rest else []
        mods=''
        if toks:
            l=toks[-1].split()
            if l:
                toks[-1]=l[0]; mods=' '.join(l[1:])
        self.ops=toks; self.mods=mods
        R=lambda i: regs_of(toks[i]) if i<len(toks) else set()
        allsrc=lambda a: set().union(*[regs_of(x) for x in toks[a:]]) if len(toks)>a else set()
        if op.startswith('v_mfma'):
            self.kind='mfma'; self.passes=mfma_passes(op)
            self.dst=R(0); self.srcA=R(1); self.srcB=R(2); self.srcC=R(3); self.src=self.srcA|self.srcB|self.srcC
        elif op.startswith('v_cmpx'):
            self.kind='valu'; self.dst=R(0)|{'exec'}; self.src=allsrc(1)
        elif op.startswith('v_cmp'):
            self.kind='valu'; self.dst=R(0); self.src=allsrc(1)
        elif op.startswith('v_readfirstlane') or op.startswith('v_readlane'):
            self.kind='valu'; self.dst=R(0); self.src=allsrc(1)
        elif op.startswith('v_permlane') and 'swap' in op:
            self.kind='valu'; self.dst=R(0)|R(1); self.src=R(0)|R(1)
        elif op in ('v_add_co_u32','v_sub_co_u32','v_addc_co_u32','v_subb_co_u32'):
            self.kind='valu'; self.dst=R(0)|R(1); self.src=allsrc(2)
        elif op.startswith('v_'):
            self.kind='valu'; self.dst=R(0); self.src=allsrc(1)
            if op.startswith('v_fmac') or op.startswith('v_writelane') or 'pk_fmac' in op or op.startswith('v_dot2c'): self.src|=R(0)
            if op.startswith('v_cndmask') and len(toks)==3: self.src|={'vcc'}
            if 'dpp' in op or 'row_' in mods or 'quad_perm' in mods: self.kind='valu'; self.src|=R(0)
        elif op.startswith('ds_'):
            self.kind='ds'
            if op.startswith('ds_read') or op.startswith('ds_bpermute') or op.startswith('ds_permute') or op.startswith('ds_swizzle'):
                self.dst=R(0); self.src=allsrc(1)
            else:
                self.src=allsrc(0)
        elif op.startswith('buffer_') or op.startswith('global_'):
            self.kind='vmem'
            if op in ('buffer_inv','buffer_wbl2'): pass
            elif '_load' in op:
                if 'lds' in mods.split() or 'load_lds' in op:
                    self.src=allsrc(0)|{'m0'}; self.kind='vmem_lds'
                else:
                    self.dst=R(0); self.src=allsrc(1)
            elif '_store' in op:
                self.src=allsrc(0)
            elif 'atomic' in op:
                self.src=allsrc(0)
                if 'sc0' in mods.split(): self.dst=R(0)
        elif op.startswith('s_'):
            self.kind='salu'
            if op=='s_nop': self.nops=int(toks[0],0)+1
            elif op in ('s_branch',) or op.startswith('s_cbranch'):
                self.target=toks[0]
            elif op.startswith('s_cmp') or op.startswith('s_bitcmp'):
                self.dst={'scc'}; self.src=allsrc(0)
            elif op=='s_getpc_b64':
                self.dst=R(0)
            elif op in ('s_waitcnt','s_barrier','s_endpgm','s_setprio','s_sleep','s_sethalt'):
                pass
            elif op.startswith('s_load') or op.startswith('s_buffer_load') or op in('s_memtime','s_memrealtime'):
                self.kind='smem'; self.dst=R(0); self.src=allsrc(1)
            elif op.endswith('saveexec_b64'):
                self.dst=R(0)|{'exec','scc'}; self.src=allsrc(1)|{'exec'}
            else:
                self.dst=R(0); self.src=allsrc(1)
        else:
            raise ValueError('unknown op: '+text)

    @property
    def is_trans(self): return self.op.replace('_e32','').replace('_e64','') in TRANS
    @property
    def is_wide_store(self):
        return self.kind=='vmem' and '_store' in self.op and ('x4' in self.op or 'x3' in self.op)

def isv(r): return r[0] in 'va' and r not in ('vcc',)
def iss(r): return (r[0]=='s' and r!='scc') or r=='vcc'

def required(prod, cons):
    need=0
    pk,ck=prod.kind,cons.kind
    pd=prod.dst
    if pk=='valu':
        vd={r for r in pd if isv(r)}
        sd={r for r in pd if iss(r)}
        if ck=='mfma' and vd & cons.src: need=max(need,2)
        if ck=='mfma' and 'exec' in pd: need=max(need,4)
        if ck=='valu':
            if prod.is_trans and (vd & cons.src) and not False: need=max(need,1)
            if cons.op.startswith('v_permlane') and vd & cons.src: need=max(need,2)
            if (cons.op.startswith('v_readfirstlane') or cons.op.startswith('v_readlane')) and vd & cons.src: need=max(need,1)
            if ('dpp' in cons.op or 'row_' in cons.mods or 'quad_perm' in cons.mods) and vd & cons.src: need=max(need,2)
            if sd & cons.src:
                need=max(need,2)
                if cons.op.startswith('v_readlane') or cons.op.startswith('v_writelane'): need=max(need,4)
            if 'exec' in pd and ('row_' in cons.mods or 'dpp' in cons.op): need=max(need,5)
            if 'exec' in pd and (cons.op.startswith('v_readlane') or cons.op.startswith('v_readfirstlane') or cons.op.startswith('v_permlane')): need=max(need,4)
        if ck in ('vmem','vmem_lds') and sd & cons.src: need=max(need,5)
        if prod.op.startswith('v_dot'):
            if vd & (cons.src|cons.dst):
                same = cons.op==prod.op
                if same:
                    ab=set().union(*[regs_of(x) for x in cons.ops[1:3]])
                    if vd & ab: need=max(need,3)
                else: need=max(need,3)
    if pk=='mfma':
        p=prod.passes
        t_valu={2:5,4:8,8:12,16:20}[p]
        t_ovl={2:4,4:6,8:10,16:18}[p]
        if ck=='mfma':
            if pd & (cons.srcA|cons.srcB): need=max(need,t_valu)
            if pd & cons.srcC:
                if pd==cons.srcC and cons.passes==p: need=max(need,0 if p>=4 else 2)
                else: need=max(need,t_ovl)
            elif pd & cons.dst:
                need=max(need,t_ovl)
        elif ck in ('valu','vmem','vmem_lds','ds'):
            if pd & (cons.src|cons.dst): need=max(need,t_valu)
        if ck=='valu' and (prod.srcC & cons.dst): need=max(need,{2:1,4:3,8:7,16:15}[p])
    if prod.is_wide_store:
        data=regs_of(prod.ops[0]) if prod.op.startswith('buffer') else regs_of(prod.ops[1])
        if data & cons.dst:
            need=max(need,2 if ck=='valu' else 1)
    if pk=='salu' and 'm0' in pd and ck=='vmem_lds': need=max(need,1)
    return need

MAXW=20
def fix_hazards(lines, verbose=False):
    ins=[Ins(l) for l in lines]
    changed=True; total=0
    while changed:
        changed=False
        labels={x.label:i for i,x in enumerate(ins) if x.label}
        preds=[[] for _ in ins]
        for i,x in enumerate(ins):
            if x.op in ('s_endpgm',): continue
            if x.target is not None:
                if x.target in labels: preds[labels[x.target]].append(i)
                if x.op=='s_branch': continue
            if i+1<len(ins): preds[i+1].append(i)
        for i,c in enumerate(ins):
            if c.kind in ('label','dir','salu','smem') : continue
            worst=0
            stack=[(p,0) for p in preds[i]]
            seen={}
            while stack:
                j,d=stack.pop()
                if d>=MAXW: continue
                if j in seen and seen[j]<=d: continue
                seen[j]=d
                p=ins[j]
                if p.kind not in ('label','dir'):
                    r=required(p,c)
                    if r-d>worst: worst=r-d
                nd=d+p.nops
                for q in preds[j]: stack.append((q,nd))
            if worst>0:
                n=worst; new=[]
                while n>0:
                    k=min(n,16); new.append(Ins(f's_nop {k-1}')); n-=k
                if verbose: print(f'hazard: +{worst} before: {c.text}')
                ins[i:i]=new; total+=worst
                changed=True
                break
    return [x.text for x in ins], total

class Kern:
    def __init__(self,name,vgpr=128,agpr=0,sgpr=96):
        self.name=name; self.lines=[]; self.vgpr=vgpr; self.agpr=agpr; self.sgpr=sgpr; self._lab=0
    def __call__(self,s):
        for l in s.split('\n'):
            l=l.strip()
            if l: self.lines.append(l)
    def mark(self,i):
        self.lines.append(f';MARK {i}')
    def lab(self,base='L'):
        self._lab+=1; return f'{self.name}_{base}{self._lab}'
    def add_stamps(self, stamp_off):
        L=self.lines
        nm=0
        for i,l in enumerate(L):
            if l.startswith(';MARK'):
                j=int(l.split()[1]); L[i]=f's_memtime s[{64+2*j}:{65+2*j}]'; nm=max(nm,j+1)
        self.nmarks=nm
        i0=[i for i,l in enumerate(L) if l.startswith('s_cbranch_scc1')][0]+1
        L[i0:i0]=['s_memrealtime s[84:85]','s_memtime s[92:93]']
        ie=[i for i,l in enumerate(L) if l=='s_endpgm'][-1]
        lab=L[ie-1]; assert lab.endswith(':')
        skip=self.name+'_stampskip'
        first=i0-1
        L[first]=L[first].split()[0]+' '+skip
        ie=[i for i,l in enumerate(L) if l=='s_endpgm'][-1]
        L[ie:ie]=['s_waitcnt vmcnt(0) lgkmcnt(0)','s_memrealtime s[86:87]','s_memtime s[94:95]',
            's_load_dwordx2 s[88:89], s[0:1], 88','s_load_dwordx2 s[90:91], s[0:1], 96','s_waitcnt lgkmcnt(0)',
            's_lshr_b32 s88, s88, 9','s_and_b32 s88, s88, 63','s_lshl_b32 s88, s88, 9','s_add_u32 s88, s88, s2','s_lshl_b32 s88, s88, 3','s_add_u32 s88, s88, s3','s_lshl_b32 s88, s88, 4',
            f's_add_u32 s88, s88, {stamp_off}','s_add_u32 s90, s90, s88','s_addc_u32 s91, s91, 0',
            'v_mov_b32 v0, s84','v_mov_b32 v1, s85','v_mov_b32 v2, s86','v_mov_b32 v3, s87','v_mov_b32 v4, 0',
            'global_store_dwordx4 v4, v[0:3], s[90:91]', 's_sub_u32 s94, s94, s92', 'v_mov_b32 v0, s94', 'v_mov_b32 v4, 0x400000', 'global_store_dword v4, v0, s[90:91]']+sum([[f's_sub_u32 s{64+2*j}, s{64+2*j}, s92', f'v_mov_b32 v0, s{64+2*j}', f'global_store_dword v4, v0, s[90:91] offset:{4*(j+1)}'] for j in range(min(self.nmarks,3))],[])+[skip+':']
        self.sgpr=max(self.sgpr,96)
    def text(self,verbose=False):
        self.lines=[l for l in self.lines if not l.startswith(';MARK')]
        body,n=fix_hazards(self.lines,verbose)
        acc=(self.vgpr+3)//4*4
        out=[f'.text',f'.globl {self.name}','.p2align 8',f'.type {self.name},@function',f'{self.name}:']
        for l in body:
            out.append(l if l.endswith(':') else '    '+l)
        out+=['.section .rodata,"a"','.p2align 6',f'.amdhsa_kernel {self.name}',
              f'  .amdhsa_next_free_vgpr {acc+self.agpr if self.agpr else self.vgpr}',
              f'  .amdhsa_next_free_sgpr {self.sgpr}',
              f'  .amdhsa_accum_offset {acc}',
              '  .amdhsa_group_segment_fixed_size 0','  .amdhsa_kernarg_size 104',
              '  .amdhsa_user_sgpr_count 2','  .amdhsa_user_sgpr_kernarg_segment_ptr 1',
              '  .amdhsa_system_sgpr_workgroup_id_x 1',
              '.end_amdhsa_kernel']
        return '\n'.join(out)+'\n', n

def vr(b,n=1):
    return f'v{b}' if n==1 else f'v[{b}:{b+n-1}]'
def ar(b,n=1):
    return f'a{b}' if n==1 else f'a[{b}:{b+n-1}]'
def sr(b,n=1):
    return f's{b}' if n==1 else f's[{b}:{b+n-1}]'
```

```python
import os, struct
from asmlib import *
from mlayout import *

def f2u(x): return struct.unpack('<I',struct.pack('<f',x))[0]
P_X,P_WQ,P_WK,P_WV,P_WO,P_W1,P_B1,P_W2,P_B2,P_OUT=64,66,68,70,72,76,78,80,82,84
WS=8
SA,SB,SC=16,20,24
OOB='0x40000000'
V_LANE,V_F,V_G,V_L16,V_L31,V_H,V_TR,V_RES,V_TOK,V_D=1,2,3,4,5,6,7,8,14,16
L_WKV=102400
L_RED=128000
L_KVR=148480
L_STAT=152576
L_CS=163200
L_QL=102400
L_COMB=112640
L_OIMG=137216
L_ORED=102400
L_TOKST=153600
L_CS1=154112
LDS_TOTAL=160*1024
STAMP_OFF=100<<20
POLLW=7

def srd(k,d,p,size,off=0):
    k(f's_add_u32 s{d}, s{p}, {off}' if off else f's_mov_b32 s{d}, s{p}')
    k(f's_addc_u32 s{d+1}, s{p+1}, 0' if off else f's_mov_b32 s{d+1}, s{p+1}')
    k(f's_and_b32 s{d+1}, s{d+1}, 0xffff')
    k(f's_mov_b32 s{d+2}, {size}')
    k(f's_mov_b32 s{d+3}, 0x20000')

def sum_g(k,x,tmp):
    k(f'v_mov_b32 v{tmp}, v{x}')
    k(f'v_permlane16_swap_b32 v{x}, v{tmp}')
    k(f'v_add_f32 v{x}, v{x}, v{tmp}')
    k(f'v_mov_b32 v{tmp}, v{x}')
    k(f'v_permlane32_swap_b32 v{x}, v{tmp}')
    k(f'v_add_f32 v{x}, v{x}, v{tmp}')

class Mega:
    def __init__(self, stamps=False, stop=None):
        self.k=Kern('mega_kernel',vgpr=256,sgpr=102)
        self.stamps=stamps; self.stop=stop; self.END='mega_kernel_end'
        self.mark_layer=int(os.environ.get('MARKL','1'))
    def mark(self,name):
        if not self.stamps: return
        ms=os.environ.get('MARKS','').split(',')
        if name not in ms: return
        i=ms.index(name)
        k=self.k
        k('s_memtime s[100:101]')
        k('s_waitcnt lgkmcnt(0)')
        k(f's_cmp_eq_u32 s12, {self.mark_layer}')
        k(f's_cselect_b32 s{88+i}, s100, s{88+i}')
    def stopat(self,name):
        if self.stop==name:
            k=self.k
            k(f's_cmp_eq_u32 s12, {int(os.environ.get("STOPL","0"))}')
            k(f's_cbranch_scc1 {self.END}')

    def publish(self,j):
        k=self.k
        k('s_waitcnt vmcnt(0)')
        k('s_barrier')
        lab=k.lab('pub')
        k('s_cmp_lg_u32 s3, 0')
        k(f's_cbranch_scc1 {lab}')
        k(f's_add_u32 s28, s13, {j}')
        k('v_mov_b32 v250, s28')
        k('s_lshl_b32 s29, s6, 6'); k('s_lshl_b32 s30, s7, 2'); k('s_add_u32 s29, s29, s30')
        k('v_mov_b32 v251, s29')
        k('s_mov_b64 exec, 1')
        k(f'buffer_store_dword v250, v251, s[{WS}:{WS+3}], 0 offen offset:{FLG} sc1')
        k('s_mov_b64 exec, -1')
        k(lab+':')
    def wait(self,j,allwg=False,others=None):
        k=self.k
        lab=k.lab('w'); loop=k.lab('poll'); done=k.lab('pd')
        wide = allwg or others is not None
        k(f's_cmp_lg_u32 s3, {POLLW}')
        k(f's_cbranch_scc1 {lab}')
        k(f's_add_u32 s28, s13, {j}')
        if wide:
            k(f'v_lshrrev_b32 v250, 1, v{V_LANE}'); k('v_lshlrev_b32 v251, 6, v250')
            k(f'v_and_b32 v252, 1, v{V_LANE}'); k('v_lshl_add_u32 v251, v252, 4, v251')
            if others is not None:
                k(f's_add_u32 s29, s13, {others}')
                k('v_cmp_eq_u32 vcc, s6, v250')
                k('v_mov_b32 v249, s29'); k('v_mov_b32 v250, s28')
                k('v_cndmask_b32 v250, v249, v250, vcc')
            else: k('v_mov_b32 v250, s28')
        else:
            k(f'v_and_b32 v251, 7, v{V_LANE}'); k('v_lshlrev_b32 v251, 2, v251')
            k('s_lshl_b32 s29, s6, 6'); k('v_add_u32 v251, s29, v251')
            k('v_mov_b32 v250, s28')
        k('s_mov_b32 s30, 0')
        k(loop+':')
        if wide:
            k(f'buffer_load_dwordx4 v[252:255], v251, s[{WS}:{WS+3}], 0 offen offset:{FLG} sc1')
            k('s_waitcnt vmcnt(0)')
            k('v_min_u32 v252, v252, v253'); k('v_min_u32 v254, v254, v255'); k('v_min_u32 v252, v252, v254')
        else:
            k(f'buffer_load_dword v252, v251, s[{WS}:{WS+3}], 0 offen offset:{FLG} sc1')
            k('s_waitcnt vmcnt(0)')
        k('v_cmp_gt_u32 vcc, v250, v252')
        k(f's_cbranch_vccz {done}')
        k('s_add_u32 s30, s30, 1')
        k(f's_cmp_lt_u32 s30, 0x40000')
        k(f's_cbranch_scc1 {loop}')
        k(done+':')
        k(lab+':')
        k('s_barrier')

    def dma_chunk160(self, s_srd, s_soff, s_m0):
        k=self.k
        for j in range(5):
            k(f's_mov_b32 m0, s{s_m0}')
            k(f'buffer_load_dwordx4 v{V_D+j}, s[{s_srd}:{s_srd+3}], s{s_soff} offen lds')
            if j<4: k(f's_add_u32 s{s_m0}, s{s_m0}, 1024')
    def dma_w160(self,ptr,skip_poller=False):
        k=self.k
        srd(k,SA,ptr,640*1280)
        nw=7 if skip_poller else 8
        end=k.lab('dw')
        if skip_poller:
            k(f's_cmp_eq_u32 s3, {POLLW}'); k(f's_cbranch_scc1 {end}')
        for t in range(3):
            lab=k.lab('wq')
            k(f's_add_u32 s28, s3, {nw*t}')
            if nw*t+nw>20:
                k('s_cmp_ge_u32 s28, 20'); k(f's_cbranch_scc1 {lab}')
            k('s_mul_i32 s29, s28, 40960'); k('s_mul_i32 s30, s28, 5120')
            self.dma_chunk160(SA,29,30)
            k(lab+':')
        k(end+':')
    def dma_wkv(self):
        k=self.k
        k('s_and_b32 s28, s7, 1'); k('s_cmp_eq_u32 s28, 0')
        k(f's_cselect_b32 s30, s{P_WK}, s{P_WV}'); k(f's_cselect_b32 s31, s{P_WK+1}, s{P_WV+1}')
        srd(k,SB,30,25600)
        for t in range(4):
            lab=k.lab('wk')
            k(f's_add_u32 s28, s3, {8*t}')
            if t==3:
                k('s_cmp_ge_u32 s28, 25'); k(f's_cbranch_scc1 {lab}')
            k('s_lshl_b32 s29, s28, 10'); k(f's_add_u32 s30, s29, {L_WKV}')
            k('s_mov_b32 m0, s30')
            k(f'buffer_load_dwordx4 v{V_L16}, s[{SB}:{SB+3}], s29 offen lds')
            k(lab+':')
    def l2_prefetch(self, s_srd, total, nwaves, wave0, vtmp, base_off=0):
        k=self.k
        per=(total//32+127)//128*128
        ninst=(per+8191)//8192
        pw=(ninst+nwaves-1)//nwaves
        k('s_and_b32 s28, s6, 3'); k('s_lshl_b32 s28, s28, 3'); k('s_add_u32 s28, s28, s7')
        k(f's_mul_i32 s28, s28, {per}')
        k(f's_sub_u32 s29, s3, {wave0}'); k(f's_mul_i32 s29, s29, {pw*8192}'); k('s_add_u32 s28, s28, s29')
        if base_off: k(f's_add_u32 s28, s28, {base_off}')
        k(f'v_lshlrev_b32 v{vtmp}, 7, v{V_LANE}')
        for n in range(pw):
            k(f'buffer_load_dword v{vtmp+1}, v{vtmp}, s[{s_srd}:{s_srd+3}], s28 offen')
            k('s_add_u32 s28, s28, 8192')
        return pw

    def prologue(self):
        k=self.k
        k('s_cmp_ge_u32 s2, 256')
        k(f's_cbranch_scc1 mega_kernel_exit')
        k('s_load_dwordx16 s[64:79], s[0:1], 0')
        k('s_load_dwordx4 s[80:83], s[0:1], 64')
        k('s_load_dwordx2 s[84:85], s[0:1], 80')
        k('s_load_dwordx2 s[86:87], s[0:1], 96')
        if self.stamps: k('s_memtime s[100:101]')
        k('v_lshrrev_b32 v24, 6, v0')
        k(f'v_and_b32 v{V_LANE}, 63, v0')
        k('v_readfirstlane_b32 s3, v24')
        k('s_and_b32 s4, s3, 3'); k('s_lshr_b32 s5, s3, 2')
        k('s_and_b32 s6, s2, 7'); k('s_lshl_b32 s6, s6, 2'); k('s_lshr_b32 s7, s2, 3'); k('s_and_b32 s7, s7, 3'); k('s_add_u32 s6, s6, s7'); k('s_lshr_b32 s7, s2, 5')
        k(f'v_and_b32 v{V_F}, 15, v{V_LANE}')
        k(f'v_lshrrev_b32 v{V_G}, 4, v{V_LANE}')
        k(f'v_lshlrev_b32 v{V_L16}, 4, v{V_LANE}')
        k(f'v_and_b32 v{V_L31}, 31, v{V_LANE}')
        k(f'v_lshrrev_b32 v{V_H}, 5, v{V_LANE}')
        k(f'v_lshrrev_b32 v24, 2, v{V_F}')
        k(f'v_and_b32 v25, 1, v{V_G}'); k('v_lshl_add_u32 v24, v25, 2, v24')
        k(f'v_lshrrev_b32 v25, 1, v{V_G}'); k('v_lshl_add_u32 v24, v25, 4, v24')
        k('v_mul_u32_u24 v24, 160, v24')
        k(f'v_and_b32 v25, 3, v{V_LANE}')
        k(f'v_lshl_add_u32 v{V_TR}, v25, 3, v24')
        k('s_lshl_b32 s28, s6, 6'); k('s_lshl_b32 s29, s4, 4'); k('s_add_u32 s28, s28, s29')
        k(f'v_add_u32 v{V_TOK}, s28, v{V_F}')
        k('s_mul_i32 s29, s7, 160')
        for j in range(5):
            k(f'v_add_u32 v24, {64*j}, v{V_LANE}')
            k('v_mul_u32_u24 v25, 6554, v24'); k('v_lshrrev_b32 v25, 16, v25')
            k('v_mul_u32_u24 v26, 10, v25'); k('v_sub_u32 v26, v24, v26')
            k('v_and_b32 v27, 0x13, v25')
            k('v_bfe_u32 v28, v25, 3, 1'); k('v_lshl_add_u32 v27, v28, 2, v27')
            k('v_bfe_u32 v28, v25, 2, 1'); k('v_lshl_add_u32 v27, v28, 3, v27')
            k('v_mul_u32_u24 v27, 1280, v27')
            k('v_lshl_add_u32 v27, v26, 4, v27')
            k(f'v_add_u32 v{V_D+j}, s29, v27')
        k('s_waitcnt lgkmcnt(0)')
        if self.stamps:
            k('s_mov_b32 s99, s100')
            for i in range(11): k(f's_mov_b32 s{88+i}, 0')
        srd(k,WS,86,WS_USED)
        k('s_mov_b32 s12, 0'); k('s_mov_b32 s13, 0')
        k('s_mul_i32 s40, s7, 7'); k('s_sub_u32 s28, s7, 6'); k('s_max_i32 s28, s28, 0'); k('s_sub_u32 s40, s40, s28')
        k('s_cmp_ge_u32 s7, 6'); k('s_cselect_b32 s41, 6, 7')
        k('s_add_u32 s40, s40, s3')

    def x0_loads(self,XF,T):
        k=self.k
        srd(k,SC,P_X,2048*1280)
        k('s_movk_i32 s28, 1280')
        k(f'v_mul_lo_u32 v{T}, v{V_TOK}, s28')
        k(f'v_lshl_add_u32 v{T+1}, v{V_G}, 4, v{T}')
        k('s_mul_i32 s29, s5, 640')
        k(f'v_add_u32 v{T+1}, s29, v{T+1}')
        for i in range(10):
            k(f'buffer_load_dwordx4 v[{XF+4*i}:{XF+4*i+3}], v{T+1}, s[{SC}:{SC+3}], 0 offen offset:{i*64}')
        k(f'v_lshl_add_u32 v{T+1}, v{V_G}, 3, v{T}')
        k('s_mul_i32 s29, s7, 160'); k('s_mul_i32 s30, s5, 96'); k('s_add_u32 s29, s29, s30')
        k(f'v_add_u32 v{T+1}, s29, v{T+1}')
        for j in range(3):
            k(f'buffer_load_dwordx2 v[{V_RES+2*j}:{V_RES+2*j+1}], v{T+1}, s[{SC}:{SC+3}], 0 offen offset:{j*32}')

    def conv_issue(self):
        k=self.k
        done=k.lab('cvd'); isw2=k.lab('cv2'); go=k.lab('cvg')
        k('s_mov_b32 s50, 0')
        k('s_lshl_b32 s28, s3, 8'); k('s_add_u32 s28, s28, s2')
        k('s_cmp_ge_u32 s28, 1080'); k(f's_cbranch_scc1 {done}')
        k('s_cmp_ge_u32 s28, 540'); k(f's_cbranch_scc1 {isw2}')
        k('s_mul_i32 s29, s28, 2428'); k('s_lshr_b32 s29, s29, 16')
        k('s_mul_i32 s30, s29, 27'); k('s_sub_u32 s30, s28, s30')
        srd(k,SA,P_W1,640*3456)
        k('s_movk_i32 s31, 3456')
        k('s_mov_b32 s50, 1')
        k('s_mul_i32 s51, s30, 80'); k('s_lshl_b32 s32, s29, 1'); k('s_add_u32 s51, s51, s32'); k('s_lshl_b32 s51, s51, 10'); k(f's_add_u32 s51, s51, {W1F}')
        k(f's_branch {go}')
        k(isw2+':')
        k('s_sub_u32 s28, s28, 540')
        k('s_mul_i32 s29, s28, 6554'); k('s_lshr_b32 s29, s29, 16')
        k('s_mul_i32 s30, s29, 10'); k('s_sub_u32 s30, s28, s30')
        srd(k,SA,P_W2,1728*1280)
        k('s_movk_i32 s31, 1280')
        k('s_mov_b32 s50, 2')
        k('s_mul_i32 s51, s30, 216'); k('s_add_u32 s51, s51, s29'); k('s_lshl_b32 s51, s51, 10'); k(f's_add_u32 s51, s51, {W2F}')
        k(go+':')
        k(f'v_lshrrev_b32 v160, 3, v{V_LANE}'); k('v_mul_lo_u32 v160, v160, s31')
        k(f'v_and_b32 v161, 7, v{V_LANE}'); k('v_lshl_add_u32 v160, v161, 4, v160')
        k('s_lshl_b32 s32, s29, 5'); k('s_mul_i32 s32, s32, s31'); k('s_lshl_b32 s33, s30, 7'); k('s_add_u32 s32, s32, s33')
        k('s_lshl_b32 s33, s31, 3')
        k('s_lshl_b32 s34, s3, 12'); k(f's_add_u32 s34, s34, {L_COMB}')
        for i in range(4):
            k('s_mov_b32 m0, s34')
            k(f'buffer_load_dwordx4 v160, s[{SA}:{SA+3}], s32 offen lds')
            if i<3:
                k('s_add_u32 s32, s32, s33'); k('s_add_u32 s34, s34, 1024')
        k(done+':')
    def conv_finish(self,T):
        k=self.k
        done=k.lab('cfd'); w2=k.lab('cf2')
        k('s_cmp_eq_u32 s50, 0'); k(f's_cbranch_scc1 {done}')
        k('s_lshl_b32 s34, s3, 12'); k(f's_add_u32 s34, s34, {L_COMB}')
        k(f'v_lshrrev_b32 v{T}, 2, v{V_F}')
        k(f'v_and_b32 v{T+1}, 3, v{V_LANE}')
        k('s_cmp_eq_u32 s50, 2'); k(f's_cbranch_scc1 {w2}')
        k(f'v_lshl_add_u32 v{T}, v{V_H}, 3, v{T}'); k(f'v_lshlrev_b32 v{T}, 7, v{T}')
        k(f'v_and_b32 v{T+2}, 1, v{V_G}'); k(f'v_lshl_add_u32 v{T}, v{T+2}, 5, v{T}')
        k(f'v_lshl_add_u32 v{T}, v{T+1}, 3, v{T}'); k(f'v_add_u32 v{T}, s34, v{T}')
        fr=[(p,u) for p in range(2) for u in range(2)]
        for n,(p,u) in enumerate(fr):
            b=T+4+4*n
            k(f'ds_read_b64_tr_b16 v[{b}:{b+1}], v{T} offset:{u*2048+p*64}')
            k(f'ds_read_b64_tr_b16 v[{b+2}:{b+3}], v{T} offset:{u*2048+p*64+512}')
        k('s_waitcnt lgkmcnt(0)')
        for n,(p,u) in enumerate(fr):
            b=T+4+4*n
            k(f's_add_u32 s32, s51, {(p*40+u)*1024}')
            k(f'buffer_store_dwordx4 v[{b}:{b+3}], v{V_L16}, s[{WS}:{WS+3}], s32 offen sc1')
        k(f's_branch {done}')
        k(w2+':')
        k(f'v_lshl_add_u32 v{T}, v{V_G}, 3, v{T}'); k(f'v_lshlrev_b32 v{T}, 7, v{T}')
        k(f'v_lshl_add_u32 v{T}, v{T+1}, 3, v{T}'); k(f'v_add_u32 v{T}, s34, v{T}')
        for n in range(4):
            b=T+4+4*n
            k(f'ds_read_b64_tr_b16 v[{b}:{b+1}], v{T} offset:{n*32}')
            k(f'ds_read_b64_tr_b16 v[{b+2}:{b+3}], v{T} offset:{n*32+512}')
        k('s_waitcnt lgkmcnt(0)')
        for n in range(4):
            b=T+4+4*n
            k(f's_add_u32 s32, s51, {n*54*1024}')
            k(f'buffer_store_dwordx4 v[{b}:{b+3}], v{V_L16}, s[{WS}:{WS+3}], s32 offen sc1')
        k(done+':')

    def frag_gemm(self, frags, WR, depth, nread):
        k=self.k
        n=len(frags); slots=depth+1
        reg=lambda i: WR+(i%slots)*4
        def issue(i):
            if frags[i].get('pre'): frags[i]['pre']()
            frags[i]['read'](reg(i))
        for i in range(min(depth,n)): issue(i)
        for i in range(n):
            if i+depth<n: issue(i+depth)
            rem=min(depth,n-1-i)
            w=f's_waitcnt lgkmcnt({rem*nread})'
            vm=frags[i].get('vm')
            if vm is not None:
                v=vm() if callable(vm) else vm
                if v is not None: w+=f' vmcnt({v})'
            k(w)
            frags[i]['mfma'](reg(i))

    def diag_stats(self,SX,SQ,S0,S1,tmp):
        k=self.k
        k(f'v_and_b32 v{tmp}, 3, v{V_LANE}')
        k(f'v_mov_b32 v{S1}, v{SQ}')
        for r in (1,2,3):
            k(f'v_cmp_eq_u32 vcc, {r}, v{tmp}'); k(f'v_cndmask_b32 v{S1}, v{S1}, v{SQ+r}, vcc')
        k(f'v_mov_b32 v{S0}, v{SX}')
    def diag_mask_on(self):
        k=self.k
        k('s_mov_b32 exec_lo, 0x00f0000f'); k('s_mov_b32 exec_hi, 0xf0000f00')
    def reduce_pairs(self, ACC, tmp, base):
        k=self.k
        k('s_mul_i32 s28, s4, 5120'); k(f's_add_u32 s28, s28, {base}')
        k(f'v_add_u32 v{tmp}, s28, v{V_L16}')
        l1=k.lab('r1'); l2=k.lab('r2')
        k('s_cmp_eq_u32 s5, 1'); k(f's_cbranch_scc1 {l1}')
        for ft in (3,4): k(f'ds_write_b128 v{tmp}, v[{ACC+4*ft}:{ACC+4*ft+3}] offset:{ft*1024}')
        k(f's_branch {l2}')
        k(l1+':')
        for ft in (0,1,2): k(f'ds_write_b128 v{tmp}, v[{ACC+4*ft}:{ACC+4*ft+3}] offset:{ft*1024}')
        for i in range(8): k(f'v_mov_b32 v{ACC+i}, v{ACC+12+i}')
        k(l2+':')
    def reduce_pairs_finish(self, ACC, tmp, T):
        k=self.k
        k('s_mul_i32 s29, s5, 3072')
        k(f'v_add_u32 v{tmp}, s29, v{tmp}')
        for j in range(3): k(f'ds_read_b128 v[{T+4*j}:{T+4*j+3}], v{tmp} offset:{j*1024}')
        k('s_waitcnt lgkmcnt(0)')
        for i in range(12): k(f'v_add_f32 v{ACC+i}, v{ACC+i}, v{T+i}')

    def tile_offsets(self, sbase):
        k=self.k
        k('s_lshl_b32 s28, s6, 2'); k('s_add_u32 s28, s28, s4'); k('s_mul_i32 s28, s28, 20480')
        k('s_mul_i32 s29, s7, 5'); k('s_mul_i32 s30, s5, 3'); k('s_add_u32 s29, s29, s30')
        for j in range(3):
            k(f's_add_u32 s30, s29, {j}'); k('s_lshl_b32 s30, s30, 9')
            k(f's_add_u32 s{sbase+j}, s30, s28')

    def x_loads(self,XF,n,base_const,layer_stride,KS,per_half):
        k=self.k
        k('s_lshl_b32 s28, s6, 2'); k('s_add_u32 s28, s28, s4'); k(f's_mul_i32 s28, s28, {KS}'); k(f's_mul_i32 s29, s5, {per_half}'); k('s_add_u32 s28, s28, s29')
        k('s_lshl_b32 s28, s28, 10')
        if layer_stride:
            k(f's_mul_i32 s29, s12, {layer_stride}'); k('s_add_u32 s28, s28, s29')
        k(f's_add_u32 s28, s28, {base_const}')
        for i in range(n):
            k(f'buffer_load_dwordx4 v[{XF+4*i}:{XF+4*i+3}], v{V_L16}, s[{WS}:{WS+3}], s28 offen offset:{(i%4)*1024} sc1')
            if i%4==3: k('s_add_u32 s28, s28, 4096')

    def phase_qkv(self):
        k=self.k
        XF,WR,ACC,CSA,KVA,KVC,ONES,T=24,64,96,116,124,132,140,144
        SX,SQ=176,180
        l0=k.lab('x0')
        k('s_cmp_eq_u32 s12, 0'); k(f's_cbranch_scc1 {l0}')
        self.x_loads(XF,10,X2B,0,20,10)
        k(l0+':')
        for i in range(4): k(f'v_mov_b32 v{ONES+i}, 0x3f803f80')
        k('s_waitcnt vmcnt(0)')
        k('s_barrier')
        self.mark("q.start")
        vA,vC=T,T+1
        S0,S1=T+2,T+3
        k('s_mul_i32 s28, s5, 51200')
        k(f'v_add_u32 v{vA}, s28, v{V_TR}')
        k('s_lshl_b32 s29, s4, 5')
        k(f'v_add_u32 v{vC}, s29, v{vA}')
        def mk(with_cs):
            fr=[]
            for i in range(10):
                for ft in range(5):
                    def rd(r,i=i,ft=ft):
                        k(f'ds_read_b64_tr_b16 v[{r}:{r+1}], v{vA} offset:{i*5120+ft*32}')
                        k(f'ds_read_b64_tr_b16 v[{r+2}:{r+3}], v{vA} offset:{i*5120+1280+ft*32}')
                    def mf(r,i=i,ft=ft):
                        c=ACC+4*ft; cs='0' if i==0 else f'v[{c}:{c+3}]'
                        k(f'v_mfma_f32_16x16x32_bf16 v[{c}:{c+3}], v[{r}:{r+3}], v[{XF+4*i}:{XF+4*i+3}], {cs}')
                        if with_cs and ft==4:
                            cs='0' if i==0 else f'v[{CSA+4}:{CSA+7}]'
                            k(f'v_mfma_f32_16x16x32_bf16 v[{CSA+4}:{CSA+7}], v[{r}:{r+3}], v[{ONES}:{ONES+3}], {cs}')
                        X=f'v[{XF+4*i}:{XF+4*i+3}]'
                        if ft==0:
                            cs='0' if i==0 else f'v[{SX}:{SX+3}]'
                            k(f'v_mfma_f32_16x16x32_bf16 v[{SX}:{SX+3}], v[{ONES}:{ONES+3}], {X}, {cs}')
                        if ft==2:
                            cs='0' if i==0 else f'v[{SQ}:{SQ+3}]'
                            k(f'v_mfma_f32_16x16x32_bf16 v[{SQ}:{SQ+3}], {X}, {X}, {cs}')
                    fr.append(dict(read=rd,mfma=mf))
                if with_cs:
                    def rd(r,i=i):
                        k(f'ds_read_b64_tr_b16 v[{r}:{r+1}], v{vC} offset:{i*5120}')
                        k(f'ds_read_b64_tr_b16 v[{r+2}:{r+3}], v{vC} offset:{i*5120+1280}')
                    def mf(r,i=i):
                        cs='0' if i==0 else f'v[{CSA}:{CSA+3}]'
                        k(f'v_mfma_f32_16x16x32_bf16 v[{CSA}:{CSA+3}], v[{r}:{r+3}], v[{ONES}:{ONES+3}], {cs}')
                    fr.append(dict(read=rd,mfma=mf))
            self.frag_gemm(fr,WR,7,2)
        m1=k.lab('m1'); m2=k.lab('m2')
        k('s_cmp_eq_u32 s12, 0'); k(f's_cbranch_scc0 {m1}')
        mk(True)
        k('s_mul_i32 s28, s5, 320'); k(f's_add_u32 s28, s28, {L_CS}')
        k(f'v_lshl_add_u32 v{T+7}, v{V_G}, 4, s28')
        k('s_lshl_b32 s29, s4, 6'); k(f'v_add_u32 v{T+8}, s29, v{T+7}')
        k(f'ds_write_b128 v{T+8}, v[{CSA}:{CSA+3}]')
        k(f'ds_write_b128 v{T+7}, v[{CSA+4}:{CSA+7}] offset:256')
        k(f's_branch {m2}')
        k(m1+':')
        mk(False)
        k(m2+':')
        self.mark("q.main")
        nokv=k.lab('nokv')
        k('s_lshr_b32 s28, s7, 1'); k('s_cmp_lg_u32 s28, s4'); k(f's_cbranch_scc1 {nokv}')
        k(f'v_lshrrev_b32 v{T+4}, 2, v{V_F}'); k(f'v_lshl_add_u32 v{T+4}, v{V_G}, 3, v{T+4}'); k(f'v_mul_u32_u24 v{T+4}, 40, v{T+4}')
        k(f'v_and_b32 v{T+5}, 3, v{V_LANE}'); k(f'v_lshl_add_u32 v{T+4}, v{T+5}, 3, v{T+4}')
        k('s_mul_i32 s28, s5, 12800'); k(f's_add_u32 s28, s28, {L_WKV}'); k(f'v_add_u32 v{T+4}, s28, v{T+4}')
        isv=k.lab('isv'); kvd=k.lab('kvd')
        k('s_and_b32 s28, s7, 1'); k('s_cmp_eq_u32 s28, 1'); k(f's_cbranch_scc1 {isv}')
        for variant in (0,1):
            if variant==1: k(isv+':')
            fr=[]
            for i in range(10):
                for u in range(2):
                    def rd(r,i=i,u=u):
                        k(f'ds_read_b64_tr_b16 v[{r}:{r+1}], v{T+4} offset:{i*1280+u*32}')
                        k(f'ds_read_b64_tr_b16 v[{r+2}:{r+3}], v{T+4} offset:{i*1280+160+u*32}')
                    def mf(r,i=i,u=u,variant=variant):
                        c=KVA+4*u; cc=KVC+4*u
                        cs='0' if i==0 else f'v[{c}:{c+3}]'; cs2='0' if i==0 else f'v[{cc}:{cc+3}]'
                        X=f'v[{XF+4*i}:{XF+4*i+3}]'; W=f'v[{r}:{r+3}]'; O_=f'v[{ONES}:{ONES+3}]'
                        if variant==0:
                            k(f'v_mfma_f32_16x16x32_bf16 v[{c}:{c+3}], {W}, {X}, {cs}'); k(f'v_mfma_f32_16x16x32_bf16 v[{cc}:{cc+3}], {W}, {O_}, {cs2}')
                        else:
                            k(f'v_mfma_f32_16x16x32_bf16 v[{c}:{c+3}], {X}, {W}, {cs}'); k(f'v_mfma_f32_16x16x32_bf16 v[{cc}:{cc+3}], {O_}, {W}, {cs2}')
                    fr.append(dict(read=rd,mfma=mf))
            self.frag_gemm(fr,WR,7,2)
            if variant==0: k(f's_branch {kvd}')
        k(kvd+':')
        k(f'v_add_u32 v{T+5}, {L_KVR}, v{V_L16}')
        a=k.lab('ka'); b_=k.lab('kb')
        k('s_cmp_eq_u32 s5, 1'); k(f's_cbranch_scc1 {a}')
        k(f'ds_write_b128 v{T+5}, v[{KVA+4}:{KVA+7}] offset:2048'); k(f'ds_write_b128 v{T+5}, v[{KVC+4}:{KVC+7}] offset:3072')
        k(f's_branch {b_}')
        k(a+':')
        k(f'ds_write_b128 v{T+5}, v[{KVA}:{KVA+3}]'); k(f'ds_write_b128 v{T+5}, v[{KVC}:{KVC+3}] offset:1024')
        for i in range(4):
            k(f'v_mov_b32 v{KVA+i}, v{KVA+4+i}'); k(f'v_mov_b32 v{KVC+i}, v{KVC+4+i}')
        k(b_+':')
        k(nokv+':')
        self.mark("q.mm")
        self.diag_stats(SX,SQ,S0,S1,T+6)
        k('s_lshl_b32 s28, s4, 8'); k('s_lshl_b32 s29, s5, 7'); k('s_add_u32 s28, s28, s29'); k(f's_add_u32 s28, s28, {L_STAT}')
        k(f'v_lshl_add_u32 v{T+6}, v{V_F}, 3, s28')
        self.diag_mask_on()
        k(f'ds_write_b64 v{T+6}, v[{S0}:{S1}]')
        k('s_mov_b64 exec, -1')
        self.reduce_pairs(ACC,T+9,L_RED)
        k('s_waitcnt lgkmcnt(0)')
        k('s_barrier')
        Z=XF
        k('s_lshl_b32 s28, s4, 8'); k(f's_add_u32 s28, s28, {L_STAT}')
        k(f'v_lshl_add_u32 v{T+6}, v{V_F}, 3, s28')
        k(f'ds_read_b64 v[{T+10}:{T+11}], v{T+6}'); k(f'ds_read_b64 v[{T+12}:{T+13}], v{T+6} offset:128')
        k('s_mul_i32 s28, s5, 192'); k(f's_add_u32 s28, s28, {L_CS}')
        k(f'v_lshl_add_u32 v{T+7}, v{V_G}, 4, s28')
        CS0=Z+12
        for j in range(3):
            k(f'ds_read_b128 v[{CS0+8*j}:{CS0+8*j+3}], v{T+7} offset:{j*64}')
            k(f'ds_read_b128 v[{CS0+8*j+4}:{CS0+8*j+7}], v{T+7} offset:{320+j*64}')
        self.reduce_pairs_finish(ACC,T+9,Z)
        MEAN,RSTD=T+14,T+15
        k(f'v_add_f32 v{T+10}, v{T+10}, v{T+12}'); k(f'v_add_f32 v{T+11}, v{T+11}, v{T+13}')
        k(f'v_mul_f32 v{MEAN}, {hex(f2u(1/640))}, v{T+10}'); k(f'v_mul_f32 v{T+11}, {hex(f2u(1/640))}, v{T+11}')
        k(f'v_fma_f32 v{T+11}, -v{MEAN}, v{MEAN}, v{T+11}'); k(f'v_max_f32 v{T+11}, 0, v{T+11}')
        k(f'v_add_f32 v{T+11}, {hex(f2u(1e-5))}, v{T+11}'); k(f'v_rsq_f32 v{RSTD}, v{T+11}')
        k(f'v_mul_f32 v{MEAN}, v{MEAN}, v{RSTD}')
        nokv2=k.lab('nokv2')
        k('s_lshr_b32 s28, s7, 1'); k('s_cmp_lg_u32 s28, s4'); k(f's_cbranch_scc1 {nokv2}')
        KW=WR
        k('s_lshl_b32 s28, s5, 11'); k(f's_add_u32 s28, s28, {L_KVR}')
        k(f'v_add_u32 v{T+5}, s28, v{V_L16}')
        k(f'ds_read_b128 v[{KW}:{KW+3}], v{T+5}'); k(f'ds_read_b128 v[{KW+4}:{KW+7}], v{T+5} offset:1024')
        k('s_waitcnt lgkmcnt(0)')
        for i in range(4):
            k(f'v_add_f32 v{KVA+i}, v{KVA+i}, v{KW+i}'); k(f'v_add_f32 v{KVC+i}, v{KVC+i}, v{KW+4+i}')
        k('s_lshl_b32 s30, s6, 6'); k('s_lshl_b32 s31, s4, 4'); k('s_add_u32 s30, s30, s31')
        k('s_lshr_b32 s31, s30, 5'); k('s_mul_i32 s31, s31, 3584')
        k(f's_mul_i32 s32, s12, {KV_D}'); k('s_add_u32 s31, s31, s32'); k(f's_add_u32 s31, s31, {KVB[0]}')
        k('s_lshr_b32 s32, s30, 4'); k('s_and_b32 s32, s32, 1')
        isv2=k.lab('isv2')
        k('s_and_b32 s28, s7, 1'); k('s_cmp_eq_u32 s28, 1'); k(f's_cbranch_scc1 {isv2}')
        for i in range(4):
            k(f'v_mul_f32 v{KVA+i}, v{KVA+i}, v{RSTD}'); k(f'v_fma_f32 v{KVA+i}, -v{MEAN}, v{KVC+i}, v{KVA+i}')
        k('s_lshl_b32 s28, s5, 2'); k(f'v_add_u32 v{T+6}, s28, v{V_G}')
        k(f'v_cmp_eq_u32 vcc, 5, v{T+6}')
        for i in range(4): k(f'v_cndmask_b32 v{KVA+i}, v{KVA+i}, 0, vcc')
        k(f'v_cvt_pk_bf16_f32 v{KVA}, v{KVA}, v{KVA+1}'); k(f'v_cvt_pk_bf16_f32 v{KVA+1}, v{KVA+2}, v{KVA+3}')
        k('s_lshl_b32 s28, s32, 4'); k(f'v_add_u32 v{T+7}, s28, v{V_F}')
        k(f'v_lshrrev_b32 v{T+8}, 1, v{T+6}'); k(f'v_lshlrev_b32 v{T+8}, 9, v{T+8}')
        k(f'v_lshl_add_u32 v{T+8}, v{T+7}, 4, v{T+8}')
        k(f'v_and_b32 v{T+9}, 1, v{T+6}'); k(f'v_lshl_add_u32 v{T+8}, v{T+9}, 3, v{T+8}')
        k(f'v_subrev_u32 v{T+9}, 4, v{T+6}'); k(f'v_lshlrev_b32 v{T+9}, 8, v{T+9}')
        k(f'v_lshl_add_u32 v{T+9}, v{T+7}, 3, v{T+9}'); k(f'v_add_u32 v{T+9}, 3072, v{T+9}')
        k(f'v_cmp_gt_u32 vcc, 4, v{T+6}'); k(f'v_cndmask_b32 v{T+8}, v{T+9}, v{T+8}, vcc')
        k(f'v_cmp_gt_u32 vcc, 6, v{T+6}'); k(f'v_mov_b32 v{T+9}, {OOB}'); k(f'v_cndmask_b32 v{T+8}, v{T+9}, v{T+8}, vcc')
        k(f'buffer_store_dwordx2 v[{KVA}:{KVA+1}], v{T+8}, s[{WS}:{WS+3}], s31 offen sc1')
        k(f's_branch {nokv2}')
        k(isv2+':')
        k('s_lshl_b32 s28, s4, 8'); k(f's_add_u32 s28, s28, {L_STAT}')
        k(f'v_lshl_add_u32 v{T+6}, v{V_G}, 5, s28')
        Y=WR+8
        k(f'ds_read_b128 v[{Y}:{Y+3}], v{T+6}'); k(f'ds_read_b128 v[{Y+4}:{Y+7}], v{T+6} offset:16')
        k(f'ds_read_b128 v[{Y+8}:{Y+11}], v{T+6} offset:128'); k(f'ds_read_b128 v[{Y+12}:{Y+15}], v{T+6} offset:144')
        k('s_waitcnt lgkmcnt(0)')
        for i in range(4):
            s_,q_=Y+2*i,Y+2*i+1
            k(f'v_add_f32 v{s_}, v{s_}, v{s_+8}'); k(f'v_add_f32 v{q_}, v{q_}, v{q_+8}')
            k(f'v_mul_f32 v{s_}, {hex(f2u(1/640))}, v{s_}'); k(f'v_mul_f32 v{q_}, {hex(f2u(1/640))}, v{q_}')
            k(f'v_fma_f32 v{q_}, -v{s_}, v{s_}, v{q_}'); k(f'v_max_f32 v{q_}, 0, v{q_}'); k(f'v_add_f32 v{q_}, {hex(f2u(1e-5))}, v{q_}')
            k(f'v_rsq_f32 v{q_}, v{q_}')
            k(f'v_fma_f32 v{KVA+i}, -v{s_}, v{KVC+i}, v{KVA+i}')
            k(f'v_mul_f32 v{KVA+i}, v{KVA+i}, v{q_}')
        k('s_lshl_b32 s28, s5, 4'); k(f'v_add_u32 v{T+6}, s28, v{V_F}')
        k(f'v_cmp_eq_u32 vcc, 20, v{T+6}')
        for i in range(4): k(f'v_cndmask_b32 v{KVA+i}, v{KVA+i}, 1.0, vcc')
        k(f'v_cmp_lt_u32 vcc, 20, v{T+6}')
        for i in range(4): k(f'v_cndmask_b32 v{KVA+i}, v{KVA+i}, 0, vcc')
        k(f'v_cvt_pk_bf16_f32 v{KVA}, v{KVA}, v{KVA+1}'); k(f'v_cvt_pk_bf16_f32 v{KVA+1}, v{KVA+2}, v{KVA+3}')
        k('s_lshl_b32 s28, s32, 10'); k('s_add_u32 s28, s28, 1024')
        k(f'v_and_b32 v{T+7}, 1, v{V_G}'); k(f'v_lshlrev_b32 v{T+7}, 9, v{T+7}')
        k(f'v_lshl_add_u32 v{T+7}, v{T+6}, 4, v{T+7}')
        k(f'v_lshrrev_b32 v{T+8}, 1, v{V_G}'); k(f'v_lshl_add_u32 v{T+7}, v{T+8}, 3, v{T+7}')
        k(f'v_add_u32 v{T+7}, s28, v{T+7}')
        k(f'buffer_store_dwordx2 v[{KVA}:{KVA+1}], v{T+7}, s[{WS}:{WS+3}], s31 offen sc1')
        k(nokv2+':')
        k(f'v_mul_f32 v{T+16}, {hex(f2u(QSCALE))}, v{RSTD}'); k(f'v_mul_f32 v{T+17}, {hex(f2u(QSCALE))}, v{MEAN}')
        k('s_lshl_b32 s28, s4, 4'); k(f'v_add_u32 v{T+18}, s28, v{V_F}'); k(f'v_mul_u32_u24 v{T+18}, 160, v{T+18}')
        k(f'v_lshl_add_u32 v{T+18}, v{V_G}, 3, v{T+18}')
        k('s_mul_i32 s28, s5, 96'); k(f's_add_u32 s28, s28, {L_QL}'); k(f'v_add_u32 v{T+18}, s28, v{T+18}')
        for j in range(3):
            if j==2:
                q3=k.lab('q3'); k('s_cmp_eq_u32 s5, 1'); k(f's_cbranch_scc1 {q3}')
            for i in range(4):
                r=ACC+4*j+i
                k(f'v_add_f32 v{CS0+8*j+i}, v{CS0+8*j+i}, v{CS0+8*j+4+i}')
                k(f'v_mul_f32 v{r}, v{r}, v{T+16}'); k(f'v_fma_f32 v{r}, -v{T+17}, v{CS0+8*j+i}, v{r}')
            k(f'v_cvt_pk_bf16_f32 v{ACC+4*j}, v{ACC+4*j}, v{ACC+4*j+1}'); k(f'v_cvt_pk_bf16_f32 v{ACC+4*j+1}, v{ACC+4*j+2}, v{ACC+4*j+3}')
            k(f'ds_write_b64 v{T+18}, v[{ACC+4*j}:{ACC+4*j+1}] offset:{j*32}')
            if j==2: k(q3+':')
        k('s_waitcnt lgkmcnt(0)')
        self.mark("q.epi")
        self.publish(1)
        self.mark("q.pub")

    def phase_attn(self):
        k=self.k
        D=4; SL=14
        Q1=[24,30]; Q2=[28,34]
        S=[36,52]; O=[68,84]; P=100
        KB=108
        K1=lambda s: KB+s*SL
        V=lambda s: KB+s*SL+4
        K2=lambda s: KB+s*SL+12
        T=KB+D*SL
        VL8=T; NEG=[176,192]
        k(f'v_mul_u32_u24 v{T+1}, 160, v{V_L31}')
        k('s_mul_i32 s28, s4, 40'); k(f's_add_u32 s28, s28, {L_QL}')
        k(f'v_add_u32 v{T+1}, s28, v{T+1}')
        k(f'v_lshl_add_u32 v{T+2}, v{V_H}, 4, v{T+1}')
        for q in range(2):
            k(f'ds_read_b64 v[{Q1[q]}:{Q1[q]+1}], v{T+2} offset:{q*5120}')
            k(f'ds_read_b64 v[{Q1[q]+2}:{Q1[q]+3}], v{T+2} offset:{q*5120+8}')
            k(f'ds_read_b64 v[{Q2[q]}:{Q2[q]+1}], v{T+1} offset:{q*5120+32}')
        k(f'v_lshlrev_b32 v{VL8}, 3, v{V_LANE}')
        ncv=k.lab('ncv')
        k('s_cmp_lg_u32 s12, 0'); k(f's_cbranch_scc1 {ncv}')
        self.conv_issue()
        k(ncv+':')
        self.dma_w160(P_WO,skip_poller=True)
        k('s_waitcnt lgkmcnt(0)')
        k(f'v_cmp_eq_u32 vcc, 0, v{V_H}')
        for q in range(2):
            for i in range(2): k(f'v_cndmask_b32 v{Q2[q]+i}, 0, v{Q2[q]+i}, vcc')
        self.mark("a.dma")
        self.wait(1,allwg=True)
        self.mark("a.wait")
        ncf=k.lab('ncf')
        k('s_cmp_lg_u32 s12, 0'); k(f's_cbranch_scc1 {ncf}')
        k('s_waitcnt vmcnt(0)')
        self.conv_finish(T+12)
        k(ncf+':')
        def ld(slot):
            k(f'buffer_load_dwordx4 v[{K1(slot)}:{K1(slot)+3}], v{V_L16}, s[{WS}:{WS+3}], s32 offen sc1')
            k(f'buffer_load_dwordx2 v[{K2(slot)}:{K2(slot)+1}], v{VL8}, s[{WS}:{WS+3}], s32 offen offset:3072 sc1')
            k(f'buffer_load_dwordx4 v[{V(slot)}:{V(slot)+3}], v{V_L16}, s[{WS}:{WS+3}], s32 offen offset:1024 sc1')
            k(f'buffer_load_dwordx4 v[{V(slot)+4}:{V(slot)+7}], v{V_L16}, s[{WS}:{WS+3}], s32 offen offset:2048 sc1')
            k('s_add_u32 s32, s32, 7168')
        def run_loop(exact,prefetch):
            def qk1(q,s):
                c = f'v[{NEG[q]}:{NEG[q]+15}]' if exact else '0'
                k(f'v_mfma_f32_32x32x16_bf16 v[{S[q]}:{S[q]+15}], v[{K1(s)}:{K1(s)+3}], v[{Q1[q]}:{Q1[q]+3}], {c}')
            def qk2(q,s): k(f'v_mfma_f32_32x32x8_bf16 v[{S[q]}:{S[q]+15}], v[{K2(s)}:{K2(s)+1}], v[{Q2[q]}:{Q2[q]+1}], v[{S[q]}:{S[q]+15}]')
            def pv(q,s,hf): k(f'v_mfma_f32_32x32x16_bf16 v[{O[q]}:{O[q]+15}], v[{V(s)+4*hf}:{V(s)+4*hf+3}], v[{P+4*hf}:{P+4*hf+3}], v[{O[q]}:{O[q]+15}]')
            def ex(q,a):
                for i in range(a,a+4): k(f'v_exp_f32 v{S[q]+i}, v{S[q]+i}')
            def cv(q,a):
                k(f'v_cvt_pk_bf16_f32 v{P+a//2}, v{S[q]+a}, v{S[q]+a+1}')
                k(f'v_cvt_pk_bf16_f32 v{P+a//2+1}, v{S[q]+a+2}, v{S[q]+a+3}')
            k(f's_mul_i32 s32, s12, {KV_D}'); k(f's_add_u32 s32, s32, {KVB[0]}')
            k('s_mul_i32 s28, s5, 3584'); k('s_add_u32 s32, s32, s28')
            for t in range(D-1): ld(t)
            for q in range(2):
                for i in range(16): k(f'v_mov_b32 v{O[q]+i}, 0')
            for i in range(4,8): k(f'v_mov_b32 v{P+i}, 0')
            for i in range(4,8): k(f'v_mov_b32 v{V(D-1)+i}, 0')
            k(f's_waitcnt vmcnt({4*(D-2)})')
            qk1(0,0); qk2(0,0)
            if prefetch and 'pf1' in os.environ.get('XP',''):
                npf=k.lab('npf')
                k('s_cmp_eq_u32 s5, 0'); k(f's_cbranch_scc1 {npf}')
                srd(k,SB,86,WF_SZ,W1F)
                self.l2_prefetch(SB,WF_SZ,4,4,T+10)
                k(npf+':')
            k('s_nop 7')
            k('s_mov_b32 s34, 0')
            L2=k.lab('bl'); k(L2+':')
            for t in range(D):
                s=t; sn=(t+1)%D; sp=(t-1)%D
                qk1(1,s); ex(0,0); pv(1,sp,1)
                ld(sp)
                ex(0,4); cv(0,0); qk2(1,s); cv(0,4); ex(0,8); pv(0,s,0); ex(0,12); cv(0,8); cv(0,12)
                k(f's_waitcnt vmcnt({4*(D-2)})')
                qk1(0,sn); ex(1,0); pv(0,s,1); ex(1,4); cv(1,0); qk2(0,sn); cv(1,4); ex(1,8); pv(1,s,0); ex(1,12); cv(1,8); cv(1,12)
            k('s_add_u32 s34, s34, 1'); k('s_cmp_lt_u32 s34, 8'); k(f's_cbranch_scc1 {L2}')
            pv(1,D-1,1)
            k('s_waitcnt vmcnt(0)')
        run_loop(False,True)
        self.mark("a.loop")
        k('s_nop 7'); k('s_nop 7')
        c1=k.lab('c1'); c2=k.lab('c2')
        k('s_mul_i32 s28, s3, 3072'); k(f's_add_u32 s28, s28, {L_COMB}')
        k(f'v_add_u32 v{T+1}, s28, v{V_L16}')
        k('s_xor_b32 s29, s3, 4'); k('s_mul_i32 s29, s29, 3072'); k(f's_add_u32 s29, s29, {L_COMB}')
        k(f'v_add_u32 v{T+2}, s29, v{V_L16}')
        k('s_cmp_eq_u32 s5, 1'); k(f's_cbranch_scc1 {c1}')
        for r in range(3): k(f'ds_write_b128 v{T+1}, v[{O[1]+4*r}:{O[1]+4*r+3}] offset:{r*1024}')
        k(f's_branch {c2}')
        k(c1+':')
        for r in range(3): k(f'ds_write_b128 v{T+1}, v[{O[0]+4*r}:{O[0]+4*r+3}] offset:{r*1024}')
        for i in range(12): k(f'v_mov_b32 v{O[0]+i}, v{O[1]+i}')
        k(c2+':')
        k('s_waitcnt lgkmcnt(0)')
        k('s_barrier')
        for r in range(3): k(f'ds_read_b128 v[{S[1]+4*r}:{S[1]+4*r+3}], v{T+2} offset:{r*1024}')
        k('s_waitcnt lgkmcnt(0)')
        self.mark("a.comb")
        Oq=O[0]
        for i in range(12): k(f'v_add_f32 v{Oq+i}, v{Oq+i}, v{S[1]+i}')
        k(f'v_mov_b32 v{T+3}, v{Oq+8}'); k(f'v_mov_b32 v{T+4}, v{Oq+8}')
        k(f'v_permlane32_swap_b32 v{T+3}, v{T+4}')
        k(f'v_rcp_f32 v{T+4}, v{T+4}')
        for i in range(12): k(f'v_mul_f32 v{Oq+i}, v{Oq+i}, v{T+4}')
        PK=S[0]
        for p in range(6): k(f'v_cvt_pk_bf16_f32 v{PK+p}, v{Oq+2*p}, v{Oq+2*p+1}')
        k('s_mul_i32 s28, s4, 5')
        k(f'v_add_u32 v{T+5}, s28, v{V_H}')
        k(f'v_lshrrev_b32 v{T+6}, 4, v{V_L31}'); k('s_lshl_b32 s29, s5, 1'); k(f'v_add_u32 v{T+6}, s29, v{T+6}')
        k(f'v_mul_u32_u24 v{T+6}, 2560, v{T+6}'); k(f'v_lshl_add_u32 v{T+6}, v{V_F}, 4, v{T+6}'); k(f'v_add_u32 v{T+6}, {L_OIMG}, v{T+6}')
        for pc in range(3):
            g_=T+7
            if pc==0: k(f'v_mov_b32 v{g_}, v{T+5}')
            elif pc==1: k(f'v_add_u32 v{g_}, 2, v{T+5}')
            else:
                k(f'v_mov_b32 v{g_}, s28'); k(f'v_add_u32 v{g_}, 4, v{g_}')
            k(f'v_lshrrev_b32 v{T+8}, 1, v{g_}'); k(f'v_lshlrev_b32 v{T+8}, 8, v{T+8}')
            k(f'v_and_b32 v{T+9}, 1, v{g_}'); k(f'v_lshl_add_u32 v{T+8}, v{T+9}, 3, v{T+8}')
            k(f'v_add_u32 v{T+8}, v{T+8}, v{T+6}')
            if pc==2:
                k('s_mov_b32 exec_hi, 0')
            k(f'ds_write_b64 v{T+8}, v[{PK+2*pc}:{PK+2*pc+1}]')
            if pc==2: k('s_mov_b64 exec, -1')
        k('s_waitcnt lgkmcnt(0)')
        k('s_barrier')
        k(f's_mul_i32 s31, s12, {OF_D}'); k(f's_add_u32 s31, s31, {OFB[0]}')
        k('s_mul_i32 s28, s6, 81920'); k('s_add_u32 s31, s31, s28'); k('s_mul_i32 s28, s7, 2560'); k('s_add_u32 s31, s31, s28')
        for rnd in range(2):
            lab=k.lab('oc')
            if rnd==1:
                k('s_cmp_ge_u32 s3, 2'); k(f's_cbranch_scc1 {lab}')
            k('s_lshl_b32 s28, s3, 6'); k(f's_add_u32 s28, s28, {512*rnd}')
            k(f'v_add_u32 v{T+5}, s28, v{V_LANE}')
            k(f'v_lshlrev_b32 v{T+6}, 4, v{T+5}'); k(f'v_add_u32 v{T+6}, {L_OIMG}, v{T+6}')
            k(f'ds_read_b128 v[{PK}:{PK+3}], v{T+6}')
            k(f'v_mul_u32_u24 v{T+7}, 410, v{T+5}'); k(f'v_lshrrev_b32 v{T+7}, 16, v{T+7}')
            k(f'v_mul_u32_u24 v{T+8}, 160, v{T+7}'); k(f'v_sub_u32 v{T+8}, v{T+5}, v{T+8}')
            k(f'v_mul_u32_u24 v{T+7}, 20480, v{T+7}'); k(f'v_lshl_add_u32 v{T+7}, v{T+8}, 4, v{T+7}')
            k('s_waitcnt lgkmcnt(0)')
            k(f'buffer_store_dwordx4 v[{PK}:{PK+3}], v{T+7}, s[{WS}:{WS+3}], s31 offen sc1')
            k(lab+':')
        self.mark("a.epi")
        self.publish(2)
        self.mark("a.pub")

    def phase_oproj(self):
        k=self.k
        XF,WR,ACC,T=24,64,96,144
        self.wait(2)
        self.mark("o.wait")
        self.x_loads(XF,10,OFB[0],OF_D,20,10)
        vA=T
        k('s_mul_i32 s28, s5, 51200'); k(f'v_add_u32 v{vA}, s28, v{V_TR}')
        fr=[]
        for i in range(10):
            for ft in range(5):
                def rd(r,i=i,ft=ft):
                    k(f'ds_read_b64_tr_b16 v[{r}:{r+1}], v{vA} offset:{i*5120+ft*32}')
                    k(f'ds_read_b64_tr_b16 v[{r+2}:{r+3}], v{vA} offset:{i*5120+1280+ft*32}')
                def mf(r,i=i,ft=ft):
                    c=ACC+4*ft; cs='0' if i==0 else f'v[{c}:{c+3}]'
                    k(f'v_mfma_f32_16x16x32_bf16 v[{c}:{c+3}], v[{r}:{r+3}], v[{XF+4*i}:{XF+4*i+3}], {cs}')
                fr.append(dict(read=rd,mfma=mf,vm=(9-i) if ft==0 else None))
        self.frag_gemm(fr,WR,7,2)
        self.mark("o.mm")
        self.reduce_pairs(ACC,T+9,L_ORED)
        k('s_waitcnt lgkmcnt(0)')
        k('s_barrier')
        self.reduce_pairs_finish(ACC,T+9,XF)
        self.mark("o.red")
        self.epilogue_res(ACC,T,X1B[0],X1_D,stats=False,bias=None,final=False)
        self.mark("o.epi")
        self.publish(3)
        self.mark("o.pub")

    def epilogue_res(self,ACC,T,dst,dst_d,stats,bias,final):
        k=self.k
        self.tile_offsets(44)
        if dst_d:
            k(f's_mul_i32 s28, s12, {dst_d}'); k(f's_add_u32 s28, s28, {dst}')
        else: k(f's_mov_b32 s28, {dst}')
        for j in range(3): k(f's_add_u32 s{44+j}, s{44+j}, s28')
        k('s_mov_b32 s47, 0xffff0000')
        VD=T+15
        k(f'v_lshrrev_b32 v{VD}, 1, v{V_G}'); k(f'v_lshlrev_b32 v{VD}, 8, v{VD}'); k(f'v_lshl_add_u32 v{VD}, v{V_F}, 4, v{VD}')
        k(f'v_and_b32 v{T+14}, 1, v{V_G}'); k(f'v_lshl_add_u32 v{VD}, v{T+14}, 3, v{VD}')
        S0,S1=T+10,T+11
        if stats:
            k(f'v_mov_b32 v{S0}, 0'); k(f'v_mov_b32 v{S1}, 0'); k(f'v_mov_b32 v{T+12}, 0x3f803f80')
        skip=k.lab('e3')
        for j in range(3):
            if j==2:
                k('s_cmp_eq_u32 s5, 1'); k(f's_cbranch_scc1 {skip}')
            r=ACC+4*j
            k(f'v_lshlrev_b32 v{T}, 16, v{V_RES+2*j}'); k(f'v_and_b32 v{T+1}, s47, v{V_RES+2*j}')
            k(f'v_lshlrev_b32 v{T+2}, 16, v{V_RES+2*j+1}'); k(f'v_and_b32 v{T+3}, s47, v{V_RES+2*j+1}')
            for i in range(4): k(f'v_add_f32 v{r+i}, v{r+i}, v{T+i}')
            if bias is not None:
                k(f'v_lshlrev_b32 v{T}, 16, v{bias+2*j}'); k(f'v_and_b32 v{T+1}, s47, v{bias+2*j}')
                k(f'v_lshlrev_b32 v{T+2}, 16, v{bias+2*j+1}'); k(f'v_and_b32 v{T+3}, s47, v{bias+2*j+1}')
                for i in range(4): k(f'v_add_f32 v{r+i}, v{r+i}, v{T+i}')
            k(f'v_cvt_pk_bf16_f32 v{V_RES+2*j}, v{r}, v{r+1}'); k(f'v_cvt_pk_bf16_f32 v{V_RES+2*j+1}, v{r+2}, v{r+3}')
            if final:
                fl=k.lab('fin'); fd=k.lab('fd')
                k('s_cmp_eq_u32 s12, 1'); k(f's_cbranch_scc1 {fl}')
                k(f'buffer_store_dwordx2 v[{V_RES+2*j}:{V_RES+2*j+1}], v{VD}, s[{WS}:{WS+3}], s{44+j} offen sc1')
                k(f's_branch {fd}')
                k(fl+':')
                k(f'buffer_store_dwordx2 v[{V_RES+2*j}:{V_RES+2*j+1}], v{T+20}, s[{SC}:{SC+3}], 0 offen offset:{j*32}')
                k(fd+':')
            else:
                k(f'buffer_store_dwordx2 v[{V_RES+2*j}:{V_RES+2*j+1}], v{VD}, s[{WS}:{WS+3}], s{44+j} offen sc1')
            if stats:
                k(f'v_dot2c_f32_bf16 v{S0}, v{V_RES+2*j}, v{T+12}'); k(f'v_dot2c_f32_bf16 v{S1}, v{V_RES+2*j}, v{V_RES+2*j}')
                k(f'v_dot2c_f32_bf16 v{S0}, v{V_RES+2*j+1}, v{T+12}'); k(f'v_dot2c_f32_bf16 v{S1}, v{V_RES+2*j+1}, v{V_RES+2*j+1}')
        k(skip+':')
        if stats:
            sum_g(k,S0,T+13); sum_g(k,S1,T+13)
            k(f'v_lshlrev_b32 v{T+13}, 7, v{V_TOK}')
            k('s_lshl_b32 s28, s7, 1'); k('s_add_u32 s28, s28, s5'); k('s_lshl_b32 s28, s28, 3')
            k(f's_mul_i32 s29, s12, {ST_D}'); k('s_add_u32 s28, s28, s29'); k(f's_add_u32 s28, s28, {STB[0]}')
            k(f'v_cmp_eq_u32 vcc, 0, v{V_G}'); k(f'v_mov_b32 v{T+14}, {OOB}'); k(f'v_cndmask_b32 v{T+13}, v{T+14}, v{T+13}, vcc')
            k(f'buffer_store_dwordx2 v[{S0}:{S1}], v{T+13}, s[{WS}:{WS+3}], s28 offen sc1')

    def phase_fc1(self):
        k=self.k
        XP=os.environ.get('XP','')
        A0,A1,XF,CS,WB=24,40,56,88,96
        self.wait(3,others=2)
        self.mark("f1.wait")
        k('s_mul_i32 s28, s6, 81920'); k(f's_mul_i32 s29, s12, {X1_D}'); k('s_add_u32 s28, s28, s29'); k(f's_add_u32 s28, s28, {X1B[0]}')
        k('s_mul_i32 s29, s3, 10240'); k('s_add_u32 s28, s28, s29')
        for i in range(10):
            k(f's_add_u32 m0, s29, {i*1024}')
            k(f'buffer_load_dwordx4 v{V_L16}, s[{WS}:{WS+3}], s28 offen sc1 lds')
            k('s_add_u32 s28, s28, 1024')
        act=k.lab('act'); join=k.lab('join')
        k('s_cmp_lt_u32 s3, s41'); k(f's_cbranch_scc1 {act}')
        k('s_waitcnt vmcnt(0)')
        k('s_barrier')
        n7=k.lab('n7')
        k('s_cmp_lg_u32 s3, 7'); k(f's_cbranch_scc1 {n7}')
        ON,SX,SQ,RG,U=96,100,104,112,176
        for i in range(4): k(f'v_mov_b32 v{ON+i}, 0x3f803f80')
        k(f'v_add_u32 v{U}, 40960, v{V_L16}')
        for tl in range(4):
            fr=[]
            va=V_L16 if tl<2 else U
            for ks in range(20):
                def rd(r,tl=tl,ks=ks,va=va): k(f'ds_read_b128 v[{r}:{r+3}], v{va} offset:{(tl%2)*20480+ks*1024}')
                def mf(r,ks=ks):
                    X=f'v[{r}:{r+3}]'
                    cs='0' if ks==0 else f'v[{SX}:{SX+3}]'; cq='0' if ks==0 else f'v[{SQ}:{SQ+3}]'
                    k(f'v_mfma_f32_16x16x32_bf16 v[{SX}:{SX+3}], v[{ON}:{ON+3}], {X}, {cs}')
                    k(f'v_mfma_f32_16x16x32_bf16 v[{SQ}:{SQ+3}], {X}, {X}, {cq}')
                fr.append(dict(read=rd,mfma=mf))
            self.frag_gemm(fr,RG,8,1)
            S0,S1=U+2,U+3
            self.diag_stats(SX,SQ,S0,S1,U+4)
            m_,r_,v_=U+6,U+7,S1
            k(f'v_mul_f32 v{m_}, {hex(f2u(1/640))}, v{S0}'); k(f'v_mul_f32 v{v_}, {hex(f2u(1/640))}, v{v_}')
            k(f'v_fma_f32 v{v_}, -v{m_}, v{m_}, v{v_}'); k(f'v_max_f32 v{v_}, 0, v{v_}')
            k(f'v_add_f32 v{U+4}, {hex(f2u(1e-5))}, v{v_}'); k(f'v_rsq_f32 v{r_}, v{U+4}')
            k(f'v_mul_f32 v{U+4}, v{r_}, v{r_}'); k(f'v_mul_f32 v{U+4}, v{U+4}, v{v_}')
            k(f'v_add_f32 v{U+4}, {hex(f2u(1e-5))}, v{U+4}'); k(f'v_rsq_f32 v{U+4}, v{U+4}')
            k(f'v_mul_f32 v{r_}, v{r_}, v{U+4}'); k(f'v_mul_f32 v{m_}, v{m_}, v{r_}')
            k(f'v_lshlrev_b32 v{U+4}, 3, v{V_F}'); k(f'v_add_u32 v{U+4}, {L_TOKST+tl*128}, v{U+4}')
            self.diag_mask_on()
            k(f'ds_write_b64 v{U+4}, v[{m_}:{r_}]')
            k('s_mov_b64 exec, -1')
        k(n7+':')
        k(f's_branch {join}')
        k(act+':')
        srd(k,SA,P_B1,1728*2)
        PRE=10
        k('s_mul_i32 s42, s40, 40960'); k(f's_add_u32 s42, s42, {W1F}')
        def wload(s):
            k(f'buffer_load_dwordx4 v[{WB+4*s}:{WB+4*s+3}], v{V_L16}, s[{WS}:{WS+3}], s42 offen offset:{(s%4)*1024} sc1')
            if s%4==3: k('s_add_u32 s42, s42, 4096')
        for s in range(PRE): wload(s)
        k(f's_waitcnt vmcnt({PRE})')
        k('s_barrier')
        self.mark("f1.x")
        vX=90; ONE=89
        k(f'v_lshrrev_b32 v{vX}, 4, v{V_L31}'); k(f'v_mul_u32_u24 v{vX}, 20480, v{vX}')
        k(f'v_lshl_add_u32 v{vX}, v{V_H}, 8, v{vX}'); k(f'v_lshl_add_u32 v{vX}, v{V_F}, 4, v{vX}')
        k(f'v_mov_b32 v{ONE}, 0x3f803f80'); k(f'v_mov_b32 v{CS}, 0')
        k('s_cmp_lg_u32 s12, 0'); k('s_cselect_b64 vcc, -1, 0')
        def rd(s):
            ks,u=s//2,s%2
            x=XF+(s%4)*8
            k(f'ds_read_b128 v[{x}:{x+3}], v{vX} offset:{ks*1024+u*512}')
            k(f'ds_read_b128 v[{x+4}:{x+7}], v{vX} offset:{40960+ks*1024+u*512}')
        rd(0); rd(1); rd(2)
        for s in range(40):
            if s+PRE<40: wload(s+PRE)
            if s+3<40: rd(s+3)
            nl=min(3,39-s)*2
            nv=min(PRE,39-s)
            k(f's_waitcnt vmcnt({nv}) lgkmcnt({nl})')
            w=WB+4*s; x=XF+(s%4)*8
            c0='0' if s==0 else f'v[{A0}:{A0+15}]'; c1='0' if s==0 else f'v[{A1}:{A1+15}]'
            k(f'v_mfma_f32_32x32x16_bf16 v[{A0}:{A0+15}], v[{w}:{w+3}], v[{x}:{x+3}], {c0}')
            k(f'v_mfma_f32_32x32x16_bf16 v[{A1}:{A1+15}], v[{w}:{w+3}], v[{x+4}:{x+7}], {c1}')
            sk=k.lab('sd')
            k(f's_cbranch_vccnz {sk}')
            for r in range(4): k(f'v_dot2c_f32_bf16 v{CS}, v{w+r}, v{ONE}')
            k(sk+':')
        B1=96
        k('s_lshl_b32 s28, s40, 6')
        k(f'v_lshl_add_u32 v{vX}, v{V_H}, 3, s28')
        for a in range(4): k(f'buffer_load_dwordx2 v[{B1+2*a}:{B1+2*a+1}], v{vX}, s[{SA}:{SA+3}], 0 offen offset:{a*16}')
        ncs=k.lab('ncs')
        k(f's_cbranch_vccnz {ncs}')
        k(f'v_mov_b32 v{vX}, v{CS}'); k(f'v_permlane32_swap_b32 v{CS}, v{vX}'); k(f'v_add_f32 v{CS}, v{CS}, v{vX}')
        k('s_lshl_b32 s28, s3, 7'); k(f's_add_u32 s28, s28, {L_CS1}')
        k(f'v_lshl_add_u32 v{vX}, v{V_L31}, 2, s28')
        k(f'ds_write_b32 v{vX}, v{CS}')
        k(ncs+':')
        k(join+':')
        k('s_waitcnt lgkmcnt(0)')
        k('s_barrier')
        self.mark("f1.mm")
        dm=[(t,j) for t in range(4) for j in range(5)]
        def w2dma(item):
            t,j=item
            lab=None
            if t==3:
                lab=k.lab('d3'); k('s_cmp_ge_u32 s3, 6'); k(f's_cbranch_scc1 {lab}')
            if j==0:
                k(f's_add_u32 s52, s3, {8*t}'); k('s_lshr_b32 s53, s52, 1'); k('s_and_b32 s54, s52, 1')
                k('s_mul_i32 s54, s54, 27'); k('s_add_u32 s54, s54, s53')
                k('s_mul_i32 s55, s7, 270'); k('s_add_u32 s54, s54, s55'); k('s_lshl_b32 s54, s54, 10'); k(f's_add_u32 s54, s54, {W2F}')
                k('s_mul_i32 s55, s52, 5120')
            k('s_mov_b32 m0, s55')
            k(f'buffer_load_dwordx4 v{V_L16}, s[{WS}:{WS+3}], s54 offen sc1 lds')
            k(f's_add_u32 s54, s54, {54*1024}'); k('s_add_u32 s55, s55, 1024')
            if lab: k(lab+':')
        idle2=k.lab('idle2'); j2=k.lab('j2')
        k('s_cmp_ge_u32 s3, s41'); k(f's_cbranch_scc1 {idle2}')
        CSV,B1F,T=112,128,144
        k('s_lshl_b32 s28, s3, 7'); k(f's_add_u32 s28, s28, {L_CS1}')
        k(f'v_lshl_add_u32 v{T+5}, v{V_H}, 4, s28')
        for a in range(4): k(f'ds_read_b128 v[{CSV+4*a}:{CSV+4*a+3}], v{T+5} offset:{a*32}')
        k(f'v_lshlrev_b32 v{T+5}, 3, v{V_L31}'); k(f'v_add_u32 v{T+5}, {L_TOKST}, v{T+5}')
        k(f'ds_read_b64 v[{T+6}:{T+7}], v{T+5}'); k(f'ds_read_b64 v[{T+8}:{T+9}], v{T+5} offset:256')
        k('s_mov_b32 s47, 0xffff0000')
        k('s_waitcnt vmcnt(0) lgkmcnt(0)')
        for a in range(4):
            k(f'v_lshlrev_b32 v{B1F+4*a}, 16, v{B1+2*a}'); k(f'v_and_b32 v{B1F+4*a+1}, s47, v{B1+2*a}')
            k(f'v_lshlrev_b32 v{B1F+4*a+2}, 16, v{B1+2*a+1}'); k(f'v_and_b32 v{B1F+4*a+3}, s47, v{B1+2*a+1}')
        c0=-2*0.7978845608028654*1.4426950408889634; c1=c0*0.044715
        KC0,KC1,KONE=T+24,T+26,T+28
        for i in range(2):
            k(f'v_mov_b32 v{KC0+i}, {hex(f2u(c0))}'); k(f'v_mov_b32 v{KC1+i}, {hex(f2u(c1))}'); k(f'v_mov_b32 v{KONE+i}, 1.0')
        k(f'v_lshrrev_b32 v{T+10}, 4, v{V_L31}'); k(f's_mov_b32 s28, {54*1024}'); k(f'v_mul_lo_u32 v{T+10}, v{T+10}, s28')
        k(f'v_lshl_add_u32 v{T+10}, v{V_H}, 3, v{T+10}'); k(f'v_lshl_add_u32 v{T+10}, v{V_F}, 4, v{T+10}')
        di=0
        P=lambda r: f'v[{r}:{r+1}]'
        for tt in range(2):
            A=A0 if tt==0 else A1
            MR=T+6+2*tt
            k('s_lshl_b32 s28, s6, 2'); k(f's_add_u32 s28, s28, {2*tt}'); k('s_mul_i32 s28, s28, 54'); k('s_add_u32 s28, s28, s40')
            k('s_lshl_b32 s28, s28, 10'); k(f's_mul_i32 s29, s12, {HF_D}'); k('s_add_u32 s28, s28, s29'); k(f's_add_u32 s56, s28, {HFB[0]}')
            for a in range(4):
                r0,r1=A+4*a,A+4*a+2
                t=[T+12,T+14]; u=[T+16,T+18]
                for e,r in enumerate((r0,r1)):
                    o=4*a+2*e
                    k(f'v_pk_fma_f32 {P(t[e])}, {P(MR)}, {P(CSV+o)}, {P(B1F+o)} op_sel_hi:[0,1,1] neg_lo:[1,0,0] neg_hi:[1,0,0]')
                for e,r in enumerate((r0,r1)):
                    k(f'v_pk_fma_f32 {P(r)}, {P(r)}, {P(MR)}, {P(t[e])} op_sel:[0,1,0] op_sel_hi:[1,1,1]')
                for e,r in enumerate((r0,r1)): k(f'v_pk_mul_f32 {P(t[e])}, {P(r)}, {P(r)}')
                for e,r in enumerate((r0,r1)): k(f'v_pk_fma_f32 {P(t[e])}, {P(t[e])}, {P(KC1)}, {P(KC0)}')
                for e,r in enumerate((r0,r1)): k(f'v_pk_mul_f32 {P(t[e])}, {P(t[e])}, {P(r)}')
                for e in range(2):
                    k(f'v_exp_f32 v{t[e]}, v{t[e]}'); k(f'v_exp_f32 v{t[e]+1}, v{t[e]+1}')
                for e in range(2): k(f'v_pk_add_f32 {P(t[e])}, {P(t[e])}, {P(KONE)}')
                for e in range(2):
                    k(f'v_rcp_f32 v{t[e]}, v{t[e]}'); k(f'v_rcp_f32 v{t[e]+1}, v{t[e]+1}')
                for e,r in enumerate((r0,r1)): k(f'v_pk_mul_f32 {P(r)}, {P(r)}, {P(t[e])}')
                PK=T+20+2*(a%2)
                k(f'v_cvt_pk_bf16_f32 v{PK}, v{r0}, v{r0+1}'); k(f'v_cvt_pk_bf16_f32 v{PK+1}, v{r1}, v{r1+1}')
                k(f'buffer_store_dwordx2 v[{PK}:{PK+1}], v{T+10}, s[{WS}:{WS+3}], s56 offen offset:{a*256} sc1')
                for _ in range(3):
                    if di<len(dm): w2dma(dm[di]); di+=1
        while di<len(dm): w2dma(dm[di]); di+=1
        k(f's_branch {j2}')
        k(idle2+':')
        for it in dm: w2dma(it)
        k(j2+':')
        self.mark("f1.epi")
        self.publish(4)
        self.mark("f1.pub")

    def phase_fc2(self):
        k=self.k
        XP=os.environ.get('XP','')
        HX,WR,ACC,T=24,132,192,212
        BI=T+22
        srd(k,SB,P_B2,1280)
        srd(k,SC,P_OUT,2048*1280)
        k('s_mul_i32 s28, s7, 160'); k('s_mul_i32 s29, s5, 96'); k('s_add_u32 s28, s28, s29')
        k(f'v_lshl_add_u32 v{T}, v{V_G}, 3, s28')
        for j in range(3): k(f'buffer_load_dwordx2 v[{BI+2*j}:{BI+2*j+1}], v{T}, s[{SB}:{SB+3}], 0 offen offset:{j*32}')
        k('s_movk_i32 s29, 1280'); k(f'v_mul_lo_u32 v{T+20}, v{V_TOK}, s29'); k(f'v_add_u32 v{T+20}, v{T+20}, v{T}')
        self.wait(4)
        self.mark("f2.wait")
        self.x_loads(HX,27,HFB[0],HF_D,54,27)
        log=[('h',i) for i in range(27)]
        vA,vB,vC=T+1,T+2,T+3
        k('s_mul_i32 s28, s5, 5120')
        k(f'v_add_u32 v{vA}, s28, v{V_L16}'); k(f'v_add_u32 v{vB}, 61440, v{vA}'); k(f'v_add_u32 v{vC}, 122880, v{vA}')
        NS=15
        slot=lambda i: i if i<NS else i-NS
        def refill(first):
            k('s_lshr_b32 s28, s3, 1'); k('s_and_b32 s29, s3, 1')
            k(f's_add_u32 s30, s28, {first}')
            k('s_mul_i32 s32, s29, 27'); k('s_add_u32 s32, s32, s30')
            k('s_mul_i32 s33, s7, 270'); k('s_add_u32 s32, s32, s33'); k('s_lshl_b32 s32, s32, 10'); k(f's_add_u32 s32, s32, {W2F}')
            k(f's_add_u32 s30, s28, {slot(first)}')
            k('s_mul_i32 s33, s30, 10240'); k('s_mul_i32 s29, s29, 5120'); k('s_add_u32 s33, s33, s29')
            for j in range(5):
                k('s_mov_b32 m0, s33')
                k(f'buffer_load_dwordx4 v{V_L16}, s[{WS}:{WS+3}], s32 offen sc1 lds')
                if j<4:
                    k(f's_add_u32 s32, s32, {54*1024}'); k('s_add_u32 s33, s33, 1024')
                log.append(('rf',first))
        def younger(idx): return len(log)-1-idx
        DEPTH=12
        bar={7:(None,15),11:(None,19),15:(15,23),19:(19,None),23:(23,None)}
        fr=[]
        for i in range(27):
            for ft in range(5):
                j=slot(i); va,imm=((vA,vB,vC)[j//6],(j%6)*10240)
                def rd(r,va=va,imm=imm,ft=ft): k(f'ds_read_b128 v[{r}:{r+3}], v{va} offset:{imm+ft*1024}')
                def mf(r,i=i,ft=ft):
                    c=ACC+4*ft; cs='0' if i==0 else f'v[{c}:{c+3}]'
                    k(f'v_mfma_f32_16x16x32_bf16 v[{c}:{c+3}], v[{r}:{r+3}], v[{HX+4*i}:{HX+4*i+3}], {cs}')
                d=dict(read=rd,mfma=mf)
                if ft==0:
                    d['vm']=(lambda i=i: younger(log.index(('h',i))))
                    if i in bar:
                        def pre(i=i):
                            need,fill=bar[i]
                            if need is not None:
                                tags=[n for n,x in enumerate(log) if x==('rf',need)]
                                k(f's_waitcnt vmcnt({younger(tags[-1])})')
                            k('s_barrier')
                            if fill is not None: refill(fill)
                        d['pre']=pre
                fr.append(d)
        self.frag_gemm(fr,WR,DEPTH,1)
        self.mark("f2.mm")
        k('s_barrier')
        nl=k.lab('nl')
        k('s_cmp_eq_u32 s12, 1'); k(f's_cbranch_scc1 {nl}')
        self.dma_w160(P_WQ); self.dma_wkv()
        k(nl+':')
        self.reduce_pairs(ACC,T+9,L_RED)
        k('s_waitcnt lgkmcnt(0)')
        k('s_barrier')
        self.reduce_pairs_finish(ACC,T+9,HX)
        self.epilogue_res(ACC,T,X2B,0,stats=False,bias=BI,final=True)
        self.mark("f2.epi")

    def build(self):
        k=self.k
        self.prologue()
        self.x0_loads(24,144)
        self.dma_w160(P_WQ); self.dma_wkv()
        LOOP='mega_layer'
        k(LOOP+':')
        self.phase_qkv(); self.stopat('qkv')
        self.phase_attn(); self.stopat('attn')
        self.phase_oproj(); self.stopat('oproj')
        self.phase_fc1(); self.stopat('fc1')
        self.phase_fc2(); self.stopat('fc2')
        k('s_cmp_eq_u32 s12, 1'); k(f's_cbranch_scc1 {self.END}')
        self.publish(5)
        self.wait(5)
        k('s_mov_b32 s12, 1'); k('s_mov_b32 s13, 5')
        k(f's_branch {LOOP}')
        k(self.END+':')
        if self.stamps:
            k('s_waitcnt vmcnt(0) lgkmcnt(0)')
            k('s_memtime s[100:101]'); k('s_waitcnt lgkmcnt(0)')
            k('s_lshl_b32 s28, s2, 3'); k('s_add_u32 s28, s28, s3'); k('s_lshl_b32 s28, s28, 6'); k(f's_add_u32 s28, s28, {STAMP_OFF}')
            k('s_add_u32 s30, s86, s28'); k('s_addc_u32 s31, s87, 0')
            k('v_mov_b32 v24, 0')
            for i in range(13):
                k(f'v_mov_b32 v25, s{88+i}')
                k(f'global_store_dword v24, v25, s[30:31] offset:{4*i}')
        k('mega_kernel_exit:')
        k('s_endpgm')
        return k

def gen_init():
    k=Kern('init_kernel',vgpr=8,sgpr=24)
    k('s_cmp_ge_u32 s2, 1'); k('s_cbranch_scc1 init_kernel_end')
    k('s_load_dwordx2 s[4:5], s[0:1], 96')
    k('s_waitcnt lgkmcnt(0)')
    srd(k,8,4,4096,FLG)
    k('v_lshlrev_b32 v1, 4, v0')
    for i in range(4): k(f'v_mov_b32 v{2+i}, 0')
    k('buffer_store_dwordx4 v[2:5], v1, s[8:11], 0 offen')
    k('init_kernel_end:')
    k('s_endpgm')
    return k
```

```python
def al(x,a=4096): return (x+a-1)//a*a
_o=0
def alloc(n):
    global _o
    r=_o; _o=al(_o+n); return r
FLG=alloc(32768)
KVFLG=FLG+16384
KV_SZ=64*3584
X_SZ=128*20*1024
HF_SZ=128*54*1024
ST_SZ=2048*128
WF_SZ=2160*1024
KVB=[alloc(KV_SZ),alloc(KV_SZ)]
OFB=[alloc(X_SZ),alloc(X_SZ)]
X1B=[alloc(X_SZ),alloc(X_SZ)]
STB=[alloc(ST_SZ),alloc(ST_SZ)]
HFB=[alloc(HF_SZ),alloc(HF_SZ)]
X2B=alloc(X_SZ)
W1F=alloc(WF_SZ)
W2F=alloc(WF_SZ)
WOF=alloc(800*1024)
WQF=alloc(800*1024)
WS_USED=_o
QSCALE=(20**-0.5)*1.4426950408889634
KV_D=KVB[1]-KVB[0]; OF_D=OFB[1]-OFB[0]; X1_D=X1B[1]-X1B[0]; ST_D=STB[1]-STB[0]; HF_D=HFB[1]-HFB[0]
```

```python
import sys, os
from k_mega import *
NAME='interleave_layers__grouped_kv_mqa__mixer_channel_mlp__prompt'
HEADER=open(f'cdna_kernels/{NAME}.s.ref').read().split('; Override launch geometry')[0]
def build(stamps=False, stop=None):
    m=Mega(stamps,stop); k=m.build(); ki=gen_init()
    out=[HEADER.rstrip('\n')]
    out.append('; @launch kernel=init_kernel grid=(1,1,1) block=(256,1,1) lds=0')
    out.append(f'; @launch kernel=mega_kernel grid=(256,1,1) block=(512,1,1) lds={LDS_TOTAL}')
    out.append('.amdgcn_target "amdgcn-amd-amdhsa--gfx950"')
    for kk in (ki,k):
        t,n=kk.text(bool(os.environ.get('VERB')))
        print(f'{kk.name}: {len(t.splitlines())} lines, {n} nop states',file=sys.stderr)
        out.append(t)
    return '\n'.join(out)
if __name__=='__main__':
    dst=sys.argv[1]
    open(dst,'w').write(build(bool(os.environ.get('STAMPS')),os.environ.get('STOP')))
```

```python
import os, struct
from asmlib import *
from mlayout import *

def f2u(x): return struct.unpack('<I',struct.pack('<f',x))[0]
P_X,P_WQ,P_WK,P_WV,P_WO,P_W1,P_B1,P_W2,P_B2,P_OUT=64,66,68,70,72,76,78,80,82,84
WS=8
SA,SB,SC=16,20,24
OOB='0x40000000'
V_LANE,V_F,V_G,V_L16,V_L31,V_H,V_TR,V_RES,V_TOK,V_D=1,2,3,4,5,6,7,8,14,16
L_WKV=102400
L_RED=128000
L_KVR=148480
L_STAT=152576
L_CS=163136
L_NONCE=163776
NONCE=FLG+2048+64
L_QL=102400
L_COMB=112640
L_OIMG=137216
L_ORED=102400
L_TOKST=153600
L_CS1=154112
LDS_TOTAL=160*1024
STAMP_OFF=100<<20
POLLW=7

def srd(k,d,p,size,off=0):
    k(f's_add_u32 s{d}, s{p}, {off}' if off else f's_mov_b32 s{d}, s{p}')
    k(f's_addc_u32 s{d+1}, s{p+1}, 0' if off else f's_mov_b32 s{d+1}, s{p+1}')
    k(f's_and_b32 s{d+1}, s{d+1}, 0xffff')
    k(f's_mov_b32 s{d+2}, {size}')
    k(f's_mov_b32 s{d+3}, 0x20000')

def sum_g(k,x,tmp):
    k(f'v_mov_b32 v{tmp}, v{x}')
    k(f'v_permlane16_swap_b32 v{x}, v{tmp}')
    k(f'v_add_f32 v{x}, v{x}, v{tmp}')
    k(f'v_mov_b32 v{tmp}, v{x}')
    k(f'v_permlane32_swap_b32 v{x}, v{tmp}')
    k(f'v_add_f32 v{x}, v{x}, v{tmp}')

KNAME='interleave_layers__grouped_kv_mqa__mixer_channel_mlp__prompt_kernel'
class Mega:
    def __init__(self, stamps=False, stop=None):
        self.k=Kern(KNAME,vgpr=256,sgpr=102)
        self.stamps=stamps; self.stop=stop; self.END='mega_kernel_end'
        self.mark_layer=int(os.environ.get('MARKL','1'))
        self.clk='s_memrealtime' if os.environ.get('RT') else 's_memtime'
    def mark(self,name):
        if not self.stamps: return
        ms=os.environ.get('MARKS','').split(',')
        if name not in ms: return
        i=ms.index(name)
        k=self.k
        k(f'{self.clk} s[100:101]')
        k('s_waitcnt lgkmcnt(0)')
        k(f's_cmp_eq_u32 s12, {self.mark_layer}')
        k(f's_cselect_b32 s{88+i}, s100, s{88+i}')
    def mark0(self,name):
        if not self.stamps: return
        ms=os.environ.get('MARKS','').split(',')
        if name not in ms: return
        i=ms.index(name); k=self.k
        k(f'{self.clk} s[100:101]'); k('s_waitcnt lgkmcnt(0)'); k(f's_mov_b32 s{88+i}, s100')
    def stopat(self,name):
        if self.stop==name:
            k=self.k
            k(f's_cmp_eq_u32 s12, {int(os.environ.get("STOPL","0"))}')
            k(f's_cbranch_scc1 {self.END}')

    def publish(self,j):
        k=self.k
        k('s_waitcnt vmcnt(0)')
        k('s_barrier')
        lab=k.lab('pub')
        k('s_cmp_lg_u32 s3, 0')
        k(f's_cbranch_scc1 {lab}')
        k(f's_add_u32 s28, s13, {j}')
        k('v_mov_b32 v250, s28')
        k('s_lshl_b32 s29, s6, 6'); k('s_lshl_b32 s30, s7, 2'); k('s_add_u32 s29, s29, s30')
        k('v_mov_b32 v251, s29')
        k('s_mov_b64 exec, 1')
        k(f'buffer_store_dword v250, v251, s[{WS}:{WS+3}], 0 offen offset:{FLG} sc1')
        k('s_mov_b64 exec, -1')
        k(lab+':')
    def wait(self,j,allwg=False,others=None):
        k=self.k
        lab=k.lab('w'); loop=k.lab('poll'); done=k.lab('pd')
        wide = allwg or others is not None
        k(f's_cmp_lg_u32 s3, {POLLW}')
        k(f's_cbranch_scc1 {lab}')
        k(f's_add_u32 s28, s13, {j}')
        if wide:
            k(f'v_lshrrev_b32 v250, 1, v{V_LANE}'); k('v_lshlrev_b32 v251, 6, v250')
            k(f'v_and_b32 v252, 1, v{V_LANE}'); k('v_lshl_add_u32 v251, v252, 4, v251')
            if others is not None:
                k(f's_add_u32 s29, s13, {others}')
                k('v_cmp_eq_u32 vcc, s6, v250')
                k('v_mov_b32 v249, s29'); k('v_mov_b32 v250, s28')
                k('v_cndmask_b32 v250, v249, v250, vcc')
            else: k('v_mov_b32 v250, s28')
        else:
            k(f'v_and_b32 v251, 7, v{V_LANE}'); k('v_lshlrev_b32 v251, 2, v251')
            k('s_lshl_b32 s29, s6, 6'); k('v_add_u32 v251, s29, v251')
            k('v_mov_b32 v250, s28')
        k('s_mov_b32 s30, 0')
        k(loop+':')
        if wide:
            k(f'buffer_load_dwordx4 v[252:255], v251, s[{WS}:{WS+3}], 0 offen offset:{FLG} sc1')
            k('s_waitcnt vmcnt(0)')
            for r in (252,253,254,255): k(f'v_sub_u32 v{r}, v{r}, v250')
            k('v_max_u32 v252, v252, v253'); k('v_max_u32 v254, v254, v255'); k('v_max_u32 v252, v252, v254')
        else:
            k(f'buffer_load_dword v252, v251, s[{WS}:{WS+3}], 0 offen offset:{FLG} sc1')
            k('s_waitcnt vmcnt(0)')
            k('v_sub_u32 v252, v252, v250')
        k('v_cmp_le_u32 vcc, 32, v252')
        k(f's_cbranch_vccz {done}')
        k('s_add_u32 s30, s30, 1')
        k(f's_cmp_lt_u32 s30, 0x40000')
        k(f's_cbranch_scc1 {loop}')
        k(done+':')
        k(lab+':')
        k('s_barrier')

    def dma_chunk160(self, s_srd, s_soff, s_m0):
        k=self.k
        for j in range(5):
            k(f's_mov_b32 m0, s{s_m0}')
            k(f'buffer_load_dwordx4 v{V_D+j}, s[{s_srd}:{s_srd+3}], s{s_soff} offen lds')
            if j<4: k(f's_add_u32 s{s_m0}, s{s_m0}, 1024')
    def dma_w160(self,ptr,skip_poller=False):
        k=self.k
        srd(k,SA,ptr,640*1280)
        nw=7 if skip_poller else 8
        end=k.lab('dw')
        if skip_poller:
            k(f's_cmp_eq_u32 s3, {POLLW}'); k(f's_cbranch_scc1 {end}')
        for t in range(3):
            lab=k.lab('wq')
            k(f's_add_u32 s28, s3, {nw*t}')
            if nw*t+nw>20:
                k('s_cmp_ge_u32 s28, 20'); k(f's_cbranch_scc1 {lab}')
            k('s_mul_i32 s29, s28, 40960'); k('s_mul_i32 s30, s28, 5120')
            self.dma_chunk160(SA,29,30)
            k(lab+':')
        k(end+':')
    def dma_wkv(self):
        k=self.k
        k('s_and_b32 s28, s7, 1'); k('s_cmp_eq_u32 s28, 0')
        k(f's_cselect_b32 s30, s{P_WK}, s{P_WV}'); k(f's_cselect_b32 s31, s{P_WK+1}, s{P_WV+1}')
        srd(k,SB,30,25600)
        for t in range(4):
            lab=k.lab('wk')
            k(f's_add_u32 s28, s3, {8*t}')
            if t==3:
                k('s_cmp_ge_u32 s28, 25'); k(f's_cbranch_scc1 {lab}')
            k('s_lshl_b32 s29, s28, 10'); k(f's_add_u32 s30, s29, {L_WKV}')
            k('s_mov_b32 m0, s30')
            k(f'buffer_load_dwordx4 v{V_L16}, s[{SB}:{SB+3}], s29 offen lds')
            k(lab+':')
    def l2_prefetch(self, s_srd, total, nwaves, wave0, vtmp, base_off=0):
        k=self.k
        per=(total//32+127)//128*128
        ninst=(per+8191)//8192
        pw=(ninst+nwaves-1)//nwaves
        k('s_and_b32 s28, s6, 3'); k('s_lshl_b32 s28, s28, 3'); k('s_add_u32 s28, s28, s7')
        k(f's_mul_i32 s28, s28, {per}')
        k(f's_sub_u32 s29, s3, {wave0}'); k(f's_mul_i32 s29, s29, {pw*8192}'); k('s_add_u32 s28, s28, s29')
        if base_off: k(f's_add_u32 s28, s28, {base_off}')
        k(f'v_lshlrev_b32 v{vtmp}, 7, v{V_LANE}')
        for n in range(pw):
            k(f'buffer_load_dword v{vtmp+1}, v{vtmp}, s[{s_srd}:{s_srd+3}], s28 offen')
            k('s_add_u32 s28, s28, 8192')
        return pw

    def prologue(self):
        k=self.k
        k('s_cmp_ge_u32 s2, 256')
        k(f's_cbranch_scc1 mega_kernel_exit')
        k('s_load_dwordx16 s[64:79], s[0:1], 0')
        k('s_load_dwordx4 s[80:83], s[0:1], 64')
        k('s_load_dwordx2 s[84:85], s[0:1], 80')
        k('s_load_dwordx2 s[86:87], s[0:1], 96')
        k('s_load_dwordx2 s[58:59], s[0:1], 88')
        if self.stamps: k(f'{self.clk} s[100:101]')
        k('v_lshrrev_b32 v24, 6, v0')
        k(f'v_and_b32 v{V_LANE}, 63, v0')
        k('v_readfirstlane_b32 s3, v24')
        k('s_and_b32 s4, s3, 3'); k('s_lshr_b32 s5, s3, 2')
        k('s_and_b32 s6, s2, 7'); k('s_lshl_b32 s6, s6, 2'); k('s_lshr_b32 s7, s2, 3'); k('s_and_b32 s7, s7, 3'); k('s_add_u32 s6, s6, s7'); k('s_lshr_b32 s7, s2, 5')
        k(f'v_and_b32 v{V_F}, 15, v{V_LANE}')
        k(f'v_lshrrev_b32 v{V_G}, 4, v{V_LANE}')
        k(f'v_lshlrev_b32 v{V_L16}, 4, v{V_LANE}')
        k(f'v_and_b32 v{V_L31}, 31, v{V_LANE}')
        k(f'v_lshrrev_b32 v{V_H}, 5, v{V_LANE}')
        k(f'v_lshrrev_b32 v24, 2, v{V_F}')
        k(f'v_and_b32 v25, 1, v{V_G}'); k('v_lshl_add_u32 v24, v25, 2, v24')
        k(f'v_lshrrev_b32 v25, 1, v{V_G}'); k('v_lshl_add_u32 v24, v25, 4, v24')
        k('v_mul_u32_u24 v24, 160, v24')
        k(f'v_and_b32 v25, 3, v{V_LANE}')
        k(f'v_lshl_add_u32 v{V_TR}, v25, 3, v24')
        k('s_lshl_b32 s28, s6, 6'); k('s_lshl_b32 s29, s4, 4'); k('s_add_u32 s28, s28, s29')
        k(f'v_add_u32 v{V_TOK}, s28, v{V_F}')
        k('s_mul_i32 s29, s7, 160')
        for j in range(5):
            k(f'v_add_u32 v24, {64*j}, v{V_LANE}')
            k('v_mul_u32_u24 v25, 6554, v24'); k('v_lshrrev_b32 v25, 16, v25')
            k('v_mul_u32_u24 v26, 10, v25'); k('v_sub_u32 v26, v24, v26')
            k('v_and_b32 v27, 0x13, v25')
            k('v_bfe_u32 v28, v25, 3, 1'); k('v_lshl_add_u32 v27, v28, 2, v27')
            k('v_bfe_u32 v28, v25, 2, 1'); k('v_lshl_add_u32 v27, v28, 3, v27')
            k('v_mul_u32_u24 v27, 1280, v27')
            k('v_lshl_add_u32 v27, v26, 4, v27')
            k(f'v_add_u32 v{V_D+j}, s29, v27')
        k('s_waitcnt lgkmcnt(0)')
        if self.stamps:
            k('s_mov_b32 s99, s100')
            for i in range(11): k(f's_mov_b32 s{88+i}, 0')
        srd(k,WS,86,WS_USED)
        k('s_mov_b32 s12, 0'); k('s_mov_b32 s13, 0')
        srd(k,60,58,256)
        nn=k.lab('nn')
        k('s_cmp_lg_u32 s2, 0'); k(f's_cbranch_scc1 {nn}')
        k('s_cmp_lg_u32 s3, 5'); k(f's_cbranch_scc1 {nn}')
        k(f'v_mov_b32 v200, {NONCE}')
        k(f'buffer_load_dword v201, v200, s[{WS}:{WS+3}], 0 offen sc1')
        k(nn+':')
        k('s_mul_i32 s40, s7, 7'); k('s_sub_u32 s28, s7, 6'); k('s_max_i32 s28, s28, 0'); k('s_sub_u32 s40, s40, s28')
        k('s_cmp_ge_u32 s7, 6'); k('s_cselect_b32 s41, 6, 7')
        k('s_add_u32 s40, s40, s3')

    def x0_loads(self,XF,T):
        k=self.k
        srd(k,SC,P_X,2048*1280)
        k('s_movk_i32 s28, 1280')
        k(f'v_mul_lo_u32 v{T}, v{V_TOK}, s28')
        k(f'v_lshl_add_u32 v{T+1}, v{V_G}, 4, v{T}')
        k('s_mul_i32 s29, s5, 640')
        k(f'v_add_u32 v{T+1}, s29, v{T+1}')
        if 'xlin' in os.environ.get('XP',''):
            k('s_lshl_b32 s28, s6, 2'); k('s_add_u32 s28, s28, s4'); k('s_mul_i32 s28, s28, 20'); k('s_mul_i32 s29, s5, 10'); k('s_add_u32 s28, s28, s29'); k('s_lshl_b32 s28, s28, 10')
            for i in range(10):
                k(f'buffer_load_dwordx4 v[{XF+4*i}:{XF+4*i+3}], v{V_L16}, s[{SC}:{SC+3}], s28 offen offset:{(i%4)*1024}')
                if i%4==3: k('s_add_u32 s28, s28, 4096')
        else:
          for i in range(10):
            k(f'buffer_load_dwordx4 v[{XF+4*i}:{XF+4*i+3}], v{T+1}, s[{SC}:{SC+3}], 0 offen offset:{i*64}')
        k(f'v_lshl_add_u32 v{T+1}, v{V_G}, 3, v{T}')
        k('s_mul_i32 s29, s7, 160'); k('s_mul_i32 s30, s5, 96'); k('s_add_u32 s29, s29, s30')
        k(f'v_add_u32 v{T+1}, s29, v{T+1}')
        for j in range(3):
            k(f'buffer_load_dwordx2 v[{V_RES+2*j}:{V_RES+2*j+1}], v{T+1}, s[{SC}:{SC+3}], 0 offen offset:{j*32}')

    def conv_issue(self, stage, kinds):
        k=self.k
        done=k.lab('cvd'); go=k.lab('cvg')
        total=sum(x[5] for x in kinds)
        k('s_mov_b32 s50, 0')
        k('s_lshl_b32 s28, s3, 8'); k('s_add_u32 s28, s28, s2')
        k(f's_cmp_ge_u32 s28, {total}'); k(f's_cbranch_scc1 {done}')
        labs=[k.lab('cvk') for _ in kinds]
        acc=0
        for idx,x in enumerate(kinds[:-1]):
            acc+=x[5]
            k(f's_cmp_lt_u32 s28, {acc}'); k(f's_cbranch_scc1 {labs[idx]}')
        k(f's_branch {labs[-1]}')
        acc=0
        for idx,(name,ptr,rows,stride,ncg,njobs,dst,layout) in enumerate(kinds):
            k(labs[idx]+':')
            if acc: k(f's_sub_u32 s28, s28, {acc}')
            magic=-(-65536//ncg)
            assert all((j*magic)>>16==j//ncg for j in range(njobs))
            k(f's_mul_i32 s29, s28, {magic}'); k('s_lshr_b32 s29, s29, 16')
            k(f's_mul_i32 s30, s29, {ncg}'); k('s_sub_u32 s30, s28, s30')
            srd(k,SA,ptr,rows*stride)
            k(f's_movk_i32 s31, {stride}')
            k(f's_mov_b32 s50, {1 if layout=="w1" else 2}')
            if layout=='w1':
                k('s_mul_i32 s51, s30, 80'); k('s_lshl_b32 s32, s29, 1'); k('s_add_u32 s51, s51, s32')
                k('s_mov_b32 s57, 0')
            else:
                KS=rows//32
                k(f's_mul_i32 s51, s30, {4*KS}'); k('s_add_u32 s51, s51, s29')
                k(f's_mov_b32 s57, {KS*1024}')
            k('s_lshl_b32 s51, s51, 10'); k(f's_add_u32 s51, s51, {dst}')
            k(f's_branch {go}')
            acc+=njobs
        k(go+':')
        k(f'v_lshrrev_b32 v200, 3, v{V_LANE}'); k('v_mul_lo_u32 v200, v200, s31')
        k(f'v_and_b32 v201, 7, v{V_LANE}'); k('v_lshl_add_u32 v200, v201, 4, v200')
        k('s_lshl_b32 s32, s29, 5'); k('s_mul_i32 s32, s32, s31'); k('s_lshl_b32 s33, s30, 7'); k('s_add_u32 s32, s32, s33')
        k('s_lshl_b32 s33, s31, 3')
        k('s_lshl_b32 s34, s3, 12'); k(f's_add_u32 s34, s34, {stage}')
        for i in range(4):
            k('s_mov_b32 m0, s34')
            k(f'buffer_load_dwordx4 v200, s[{SA}:{SA+3}], s32 offen lds')
            if i<3:
                k('s_add_u32 s32, s32, s33'); k('s_add_u32 s34, s34, 1024')
        k(done+':')
    def conv_finish(self,T,stage):
        k=self.k
        done=k.lab('cfd'); w2=k.lab('cf2')
        k('s_cmp_eq_u32 s50, 0'); k(f's_cbranch_scc1 {done}')
        k('s_lshl_b32 s34, s3, 12'); k(f's_add_u32 s34, s34, {stage}')
        k(f'v_lshrrev_b32 v{T}, 2, v{V_F}')
        k(f'v_and_b32 v{T+1}, 3, v{V_LANE}')
        k('s_cmp_eq_u32 s50, 2'); k(f's_cbranch_scc1 {w2}')
        k(f'v_lshl_add_u32 v{T}, v{V_H}, 3, v{T}'); k(f'v_lshlrev_b32 v{T}, 7, v{T}')
        k(f'v_and_b32 v{T+2}, 1, v{V_G}'); k(f'v_lshl_add_u32 v{T}, v{T+2}, 5, v{T}')
        k(f'v_lshl_add_u32 v{T}, v{T+1}, 3, v{T}'); k(f'v_add_u32 v{T}, s34, v{T}')
        fr=[(p,u) for p in range(2) for u in range(2)]
        for n,(p,u) in enumerate(fr):
            b=T+4+4*n
            k(f'ds_read_b64_tr_b16 v[{b}:{b+1}], v{T} offset:{u*2048+p*64}')
            k(f'ds_read_b64_tr_b16 v[{b+2}:{b+3}], v{T} offset:{u*2048+p*64+512}')
        k('s_waitcnt lgkmcnt(0)')
        for n,(p,u) in enumerate(fr):
            b=T+4+4*n
            k(f's_add_u32 s32, s51, {(p*40+u)*1024}')
            k(f'buffer_store_dwordx4 v[{b}:{b+3}], v{V_L16}, s[{WS}:{WS+3}], s32 offen sc1')
        k(f's_branch {done}')
        k(w2+':')
        k(f'v_lshl_add_u32 v{T}, v{V_G}, 3, v{T}'); k(f'v_lshlrev_b32 v{T}, 7, v{T}')
        k(f'v_lshl_add_u32 v{T}, v{T+1}, 3, v{T}'); k(f'v_add_u32 v{T}, s34, v{T}')
        for n in range(4):
            b=T+4+4*n
            k(f'ds_read_b64_tr_b16 v[{b}:{b+1}], v{T} offset:{n*32}')
            k(f'ds_read_b64_tr_b16 v[{b+2}:{b+3}], v{T} offset:{n*32+512}')
        k('s_waitcnt lgkmcnt(0)')
        k('s_mov_b32 s32, s51')
        for n in range(4):
            b=T+4+4*n
            k(f'buffer_store_dwordx4 v[{b}:{b+3}], v{V_L16}, s[{WS}:{WS+3}], s32 offen sc1')
            if n<3: k('s_add_u32 s32, s32, s57')
        k(done+':')
    CONV_A=[('wo',P_WO,640,1280,10,200,WOF,'a16'),('wq',P_WQ,640,1280,10,200,WQF,'a16')]
    CONV_B=[('w1',P_W1,640,3456,27,540,W1F,'w1'),('w2',P_W2,1728,1280,10,540,W2F,'a16')]

    def dma_lin_slice(self, src_const, waves=8):
        k=self.k
        k(f's_mul_i32 s28, s7, 102400'); k(f's_add_u32 s28, s28, {src_const}')
        k('s_lshl_b32 s29, s3, 10'); k('s_add_u32 s28, s28, s29')
        for n in range(13):
            lab=None
            if n==12:
                lab=k.lab('dl'); k('s_cmp_ge_u32 s3, 4'); k(f's_cbranch_scc1 {lab}')
            k('s_mov_b32 m0, s29')
            k(f'buffer_load_dwordx4 v{V_L16}, s[{WS}:{WS+3}], s28 offen sc1 lds')
            if n<12:
                k('s_add_u32 s28, s28, 8192'); k('s_add_u32 s29, s29, 8192')
            if lab: k(lab+':')

    def tlb_warm(self):
        k=self.k
        lab=k.lab('tw')
        k('s_cmp_lg_u32 s3, 6'); k(f's_cbranch_scc1 {lab}')
        k(f'v_lshlrev_b32 v200, 19, v{V_LANE}')
        k(f'buffer_load_dword v201, v200, s[{WS}:{WS+3}], 0 offen')
        for ptr,size in ((P_W1,640*3456),(P_W2,1728*1280),(P_OUT,2048*1280),(P_WO,640*1280),(P_B1,3456),(P_B2,1280)):
            srd(k,SA,ptr,size)
            k(f'buffer_load_dword v201, v200, s[{SA}:{SA+3}], 0 offen')
        k(lab+':')

    def frag_gemm(self, frags, WR, depth, nread):
        k=self.k
        n=len(frags); slots=depth+1
        reg=lambda i: WR+(i%slots)*4
        def issue(i):
            if frags[i].get('pre'): frags[i]['pre']()
            frags[i]['read'](reg(i))
        for i in range(min(depth,n)): issue(i)
        for i in range(n):
            if i+depth<n: issue(i+depth)
            rem=min(depth,n-1-i)
            w=f's_waitcnt lgkmcnt({rem*nread})'
            vm=frags[i].get('vm')
            if vm is not None:
                v=vm() if callable(vm) else vm
                if v is not None: w+=f' vmcnt({v})'
            k(w)
            frags[i]['mfma'](reg(i))

    def diag_stats(self,SX,SQ,S0,S1,tmp):
        k=self.k
        k(f'v_and_b32 v{tmp}, 3, v{V_LANE}')
        k(f'v_mov_b32 v{S1}, v{SQ}')
        for r in (1,2,3):
            k(f'v_cmp_eq_u32 vcc, {r}, v{tmp}'); k(f'v_cndmask_b32 v{S1}, v{S1}, v{SQ+r}, vcc')
        k(f'v_mov_b32 v{S0}, v{SX}')
    def diag_mask_on(self):
        k=self.k
        k('s_mov_b32 exec_lo, 0x00f0000f'); k('s_mov_b32 exec_hi, 0xf0000f00')
    def reduce_pairs(self, ACC, tmp, base):
        k=self.k
        k('s_mul_i32 s28, s4, 5120'); k(f's_add_u32 s28, s28, {base}')
        k(f'v_add_u32 v{tmp}, s28, v{V_L16}')
        l1=k.lab('r1'); l2=k.lab('r2')
        k('s_cmp_eq_u32 s5, 1'); k(f's_cbranch_scc1 {l1}')
        for ft in (3,4): k(f'ds_write_b128 v{tmp}, v[{ACC+4*ft}:{ACC+4*ft+3}] offset:{ft*1024}')
        k(f's_branch {l2}')
        k(l1+':')
        for ft in (0,1,2): k(f'ds_write_b128 v{tmp}, v[{ACC+4*ft}:{ACC+4*ft+3}] offset:{ft*1024}')
        for i in range(8): k(f'v_mov_b32 v{ACC+i}, v{ACC+12+i}')
        k(l2+':')
    def reduce_pairs_finish(self, ACC, tmp, T):
        k=self.k
        k('s_mul_i32 s29, s5, 3072')
        k(f'v_add_u32 v{tmp}, s29, v{tmp}')
        for j in range(3): k(f'ds_read_b128 v[{T+4*j}:{T+4*j+3}], v{tmp} offset:{j*1024}')
        k('s_waitcnt lgkmcnt(0)')
        for i in range(12): k(f'v_add_f32 v{ACC+i}, v{ACC+i}, v{T+i}')

    def tile_offsets(self, sbase):
        k=self.k
        k('s_lshl_b32 s28, s6, 2'); k('s_add_u32 s28, s28, s4'); k('s_mul_i32 s28, s28, 20480')
        k('s_mul_i32 s29, s7, 5'); k('s_mul_i32 s30, s5, 3'); k('s_add_u32 s29, s29, s30')
        for j in range(3):
            k(f's_add_u32 s30, s29, {j}'); k('s_lshl_b32 s30, s30, 9')
            k(f's_add_u32 s{sbase+j}, s30, s28')

    def x_loads(self,XF,n,base_const,layer_stride,KS,per_half):
        k=self.k
        k('s_lshl_b32 s28, s6, 2'); k('s_add_u32 s28, s28, s4'); k(f's_mul_i32 s28, s28, {KS}'); k(f's_mul_i32 s29, s5, {per_half}'); k('s_add_u32 s28, s28, s29')
        k('s_lshl_b32 s28, s28, 10')
        if layer_stride:
            k(f's_mul_i32 s29, s12, {layer_stride}'); k('s_add_u32 s28, s28, s29')
        k(f's_add_u32 s28, s28, {base_const}')
        for i in range(n):
            k(f'buffer_load_dwordx4 v[{XF+4*i}:{XF+4*i+3}], v{V_L16}, s[{WS}:{WS+3}], s28 offen offset:{(i%4)*1024} sc1')
            if i%4==3: k('s_add_u32 s28, s28, 4096')

    def phase_qkv(self):
        k=self.k
        XF,WR,ACC,CSA,KVA,KVC,ONES,T=24,64,96,116,124,132,140,144
        SX,SQ=176,180
        l0=k.lab('x0'); l1=k.lab('x1')
        for i in range(4): k(f'v_mov_b32 v{ONES+i}, 0x3f803f80')
        k('s_cmp_eq_u32 s12, 0'); k(f's_cbranch_scc1 {l0}')
        self.x_loads(XF,10,X2B,0,20,10)
        k(f's_branch {l1}')
        k(l0+':')
        k('s_waitcnt vmcnt(0)')
        self.conv_finish(T,L_RED)
        np_=k.lab('np'); pl=k.lab('npl'); pd=k.lab('npd')
        k(f's_cmp_lg_u32 s3, {POLLW}'); k(f's_cbranch_scc1 {np_}')
        k('v_mov_b32 v200, 0'); k('s_mov_b32 s30, 0')
        k(pl+':')
        k('buffer_load_dword v201, v200, s[60:63], 0 offen sc1')
        k('s_waitcnt vmcnt(0)')
        k('v_cmp_eq_u32 vcc, 0, v201')
        k(f's_cbranch_vccz {pd}')
        k('s_add_u32 s30, s30, 1'); k('s_cmp_lt_u32 s30, 0x40000'); k(f's_cbranch_scc1 {pl}')
        k(pd+':')
        k(f'v_mov_b32 v200, {L_NONCE}')
        k('ds_write_b32 v200, v201')
        k('s_waitcnt lgkmcnt(0)')
        k(np_+':')
        k('s_barrier')
        k(f'v_mov_b32 v200, {L_NONCE}')
        k('ds_read_b32 v201, v200')
        k('s_waitcnt lgkmcnt(0)')
        k('v_readfirstlane_b32 s13, v201')
        k(l1+':')
        self.mark("q.start")
        vA,vC=T,T+1
        S0,S1=T+2,T+3
        k('s_mul_i32 s28, s5, 51200')
        k(f'v_add_u32 v{vA}, s28, v{V_TR}')
        k('s_lshl_b32 s29, s4, 5')
        k(f'v_add_u32 v{vC}, s29, v{vA}')
        def stat_mfma(i,ft):
            X=f'v[{XF+4*i}:{XF+4*i+3}]'
            if ft==0:
                cs='0' if i==0 else f'v[{SX}:{SX+3}]'
                k(f'v_mfma_f32_16x16x32_bf16 v[{SX}:{SX+3}], v[{ONES}:{ONES+3}], {X}, {cs}')
            if ft==2:
                cs='0' if i==0 else f'v[{SQ}:{SQ+3}]'
                k(f'v_mfma_f32_16x16x32_bf16 v[{SQ}:{SQ+3}], {X}, {X}, {cs}')
        def mk(with_cs):
            fr=[]
            if not with_cs:
                k('s_mul_i32 s28, s5, 10240'); k(f'v_add_u32 v{vA}, s28, v{V_L16}'); k(f'v_add_u32 v{vC}, 61440, v{vA}')
                for i in range(10):
                    for ft in range(5):
                        va,imm=(vA,ft*20480+i*1024) if ft<3 else (vC,(ft-3)*20480+i*1024)
                        def rd(r,va=va,imm=imm): k(f'ds_read_b128 v[{r}:{r+3}], v{va} offset:{imm}')
                        def mf(r,i=i,ft=ft):
                            c=ACC+4*ft; cs='0' if i==0 else f'v[{c}:{c+3}]'
                            k(f'v_mfma_f32_16x16x32_bf16 v[{c}:{c+3}], v[{r}:{r+3}], v[{XF+4*i}:{XF+4*i+3}], {cs}')
                            stat_mfma(i,ft)
                        fr.append(dict(read=rd,mfma=mf,vm=(9-i) if ft==0 else None))
                self.frag_gemm(fr,WR,7,1)
                return
            for i in range(10):
                for ft in range(5):
                    def rd(r,i=i,ft=ft):
                        k(f'ds_read_b64_tr_b16 v[{r}:{r+1}], v{vA} offset:{i*5120+ft*32}')
                        k(f'ds_read_b64_tr_b16 v[{r+2}:{r+3}], v{vA} offset:{i*5120+1280+ft*32}')
                    def mf(r,i=i,ft=ft):
                        c=ACC+4*ft; cs='0' if i==0 else f'v[{c}:{c+3}]'
                        k(f'v_mfma_f32_16x16x32_bf16 v[{c}:{c+3}], v[{r}:{r+3}], v[{XF+4*i}:{XF+4*i+3}], {cs}')
                        if ft==4:
                            cs='0' if i==0 else f'v[{CSA+4}:{CSA+7}]'
                            k(f'v_mfma_f32_16x16x32_bf16 v[{CSA+4}:{CSA+7}], v[{r}:{r+3}], v[{ONES}:{ONES+3}], {cs}')
                        stat_mfma(i,ft)
                    fr.append(dict(read=rd,mfma=mf))
                def rd(r,i=i):
                    k(f'ds_read_b64_tr_b16 v[{r}:{r+1}], v{vC} offset:{i*5120}')
                    k(f'ds_read_b64_tr_b16 v[{r+2}:{r+3}], v{vC} offset:{i*5120+1280}')
                def mf(r,i=i):
                    cs='0' if i==0 else f'v[{CSA}:{CSA+3}]'
                    k(f'v_mfma_f32_16x16x32_bf16 v[{CSA}:{CSA+3}], v[{r}:{r+3}], v[{ONES}:{ONES+3}], {cs}')
                fr.append(dict(read=rd,mfma=mf))
            self.frag_gemm(fr,WR,7,2)
        m1=k.lab('m1'); m2=k.lab('m2')
        k('s_cmp_eq_u32 s12, 0'); k(f's_cbranch_scc0 {m1}')
        mk(True)
        k('s_mul_i32 s28, s5, 320'); k(f's_add_u32 s28, s28, {L_CS}')
        k(f'v_lshl_add_u32 v{T+7}, v{V_G}, 4, s28')
        k('s_lshl_b32 s29, s4, 6'); k(f'v_add_u32 v{T+8}, s29, v{T+7}')
        k(f'ds_write_b128 v{T+8}, v[{CSA}:{CSA+3}]')
        k(f'ds_write_b128 v{T+7}, v[{CSA+4}:{CSA+7}] offset:256')
        k(f's_branch {m2}')
        k(m1+':')
        mk(False)
        k(m2+':')
        self.mark("q.main")
        nokv=k.lab('nokv')
        k('s_lshr_b32 s28, s7, 1'); k('s_cmp_lg_u32 s28, s4'); k(f's_cbranch_scc1 {nokv}')
        k(f'v_lshrrev_b32 v{T+4}, 2, v{V_F}'); k(f'v_lshl_add_u32 v{T+4}, v{V_G}, 3, v{T+4}'); k(f'v_mul_u32_u24 v{T+4}, 40, v{T+4}')
        k(f'v_and_b32 v{T+5}, 3, v{V_LANE}'); k(f'v_lshl_add_u32 v{T+4}, v{T+5}, 3, v{T+4}')
        k('s_mul_i32 s28, s5, 12800'); k(f's_add_u32 s28, s28, {L_WKV}'); k(f'v_add_u32 v{T+4}, s28, v{T+4}')
        isv=k.lab('isv'); kvd=k.lab('kvd')
        k('s_and_b32 s28, s7, 1'); k('s_cmp_eq_u32 s28, 1'); k(f's_cbranch_scc1 {isv}')
        for variant in (0,1):
            if variant==1: k(isv+':')
            fr=[]
            for i in range(10):
                for u in range(2):
                    def rd(r,i=i,u=u):
                        k(f'ds_read_b64_tr_b16 v[{r}:{r+1}], v{T+4} offset:{i*1280+u*32}')
                        k(f'ds_read_b64_tr_b16 v[{r+2}:{r+3}], v{T+4} offset:{i*1280+160+u*32}')
                    def mf(r,i=i,u=u,variant=variant):
                        c=KVA+4*u; cc=KVC+4*u
                        cs='0' if i==0 else f'v[{c}:{c+3}]'; cs2='0' if i==0 else f'v[{cc}:{cc+3}]'
                        X=f'v[{XF+4*i}:{XF+4*i+3}]'; W=f'v[{r}:{r+3}]'; O_=f'v[{ONES}:{ONES+3}]'
                        if variant==0:
                            k(f'v_mfma_f32_16x16x32_bf16 v[{c}:{c+3}], {W}, {X}, {cs}'); k(f'v_mfma_f32_16x16x32_bf16 v[{cc}:{cc+3}], {W}, {O_}, {cs2}')
                        else:
                            k(f'v_mfma_f32_16x16x32_bf16 v[{c}:{c+3}], {X}, {W}, {cs}'); k(f'v_mfma_f32_16x16x32_bf16 v[{cc}:{cc+3}], {O_}, {W}, {cs2}')
                    fr.append(dict(read=rd,mfma=mf))
            self.frag_gemm(fr,WR,7,2)
            if variant==0: k(f's_branch {kvd}')
        k(kvd+':')
        k(f'v_add_u32 v{T+5}, {L_KVR}, v{V_L16}')
        a=k.lab('ka'); b_=k.lab('kb')
        k('s_cmp_eq_u32 s5, 1'); k(f's_cbranch_scc1 {a}')
        k(f'ds_write_b128 v{T+5}, v[{KVA+4}:{KVA+7}] offset:2048'); k(f'ds_write_b128 v{T+5}, v[{KVC+4}:{KVC+7}] offset:3072')
        k(f's_branch {b_}')
        k(a+':')
        k(f'ds_write_b128 v{T+5}, v[{KVA}:{KVA+3}]'); k(f'ds_write_b128 v{T+5}, v[{KVC}:{KVC+3}] offset:1024')
        for i in range(4):
            k(f'v_mov_b32 v{KVA+i}, v{KVA+4+i}'); k(f'v_mov_b32 v{KVC+i}, v{KVC+4+i}')
        k(b_+':')
        k(nokv+':')
        self.mark("q.mm")
        self.diag_stats(SX,SQ,S0,S1,T+6)
        k('s_lshl_b32 s28, s4, 8'); k('s_lshl_b32 s29, s5, 7'); k('s_add_u32 s28, s28, s29'); k(f's_add_u32 s28, s28, {L_STAT}')
        k(f'v_lshl_add_u32 v{T+6}, v{V_F}, 3, s28')
        self.diag_mask_on()
        k(f'ds_write_b64 v{T+6}, v[{S0}:{S1}]')
        k('s_mov_b64 exec, -1')
        self.reduce_pairs(ACC,T+9,L_RED)
        k('s_waitcnt lgkmcnt(0)')
        k('s_barrier')
        Z=XF
        k('s_lshl_b32 s28, s4, 8'); k(f's_add_u32 s28, s28, {L_STAT}')
        k(f'v_lshl_add_u32 v{T+6}, v{V_F}, 3, s28')
        k(f'ds_read_b64 v[{T+10}:{T+11}], v{T+6}'); k(f'ds_read_b64 v[{T+12}:{T+13}], v{T+6} offset:128')
        k('s_mul_i32 s28, s5, 192'); k(f's_add_u32 s28, s28, {L_CS}')
        k(f'v_lshl_add_u32 v{T+7}, v{V_G}, 4, s28')
        CS0=Z+12
        for j in range(3):
            k(f'ds_read_b128 v[{CS0+8*j}:{CS0+8*j+3}], v{T+7} offset:{j*64}')
            k(f'ds_read_b128 v[{CS0+8*j+4}:{CS0+8*j+7}], v{T+7} offset:{320+j*64}')
        self.reduce_pairs_finish(ACC,T+9,Z)
        MEAN,RSTD=T+14,T+15
        k(f'v_add_f32 v{T+10}, v{T+10}, v{T+12}'); k(f'v_add_f32 v{T+11}, v{T+11}, v{T+13}')
        k(f'v_mul_f32 v{MEAN}, {hex(f2u(1/640))}, v{T+10}'); k(f'v_mul_f32 v{T+11}, {hex(f2u(1/640))}, v{T+11}')
        k(f'v_fma_f32 v{T+11}, -v{MEAN}, v{MEAN}, v{T+11}'); k(f'v_max_f32 v{T+11}, 0, v{T+11}')
        k(f'v_add_f32 v{T+11}, {hex(f2u(1e-5))}, v{T+11}'); k(f'v_rsq_f32 v{RSTD}, v{T+11}')
        k(f'v_mul_f32 v{MEAN}, v{MEAN}, v{RSTD}')
        nokv2=k.lab('nokv2')
        k('s_lshr_b32 s28, s7, 1'); k('s_cmp_lg_u32 s28, s4'); k(f's_cbranch_scc1 {nokv2}')
        KW=WR
        k('s_lshl_b32 s28, s5, 11'); k(f's_add_u32 s28, s28, {L_KVR}')
        k(f'v_add_u32 v{T+5}, s28, v{V_L16}')
        k(f'ds_read_b128 v[{KW}:{KW+3}], v{T+5}'); k(f'ds_read_b128 v[{KW+4}:{KW+7}], v{T+5} offset:1024')
        k('s_waitcnt lgkmcnt(0)')
        for i in range(4):
            k(f'v_add_f32 v{KVA+i}, v{KVA+i}, v{KW+i}'); k(f'v_add_f32 v{KVC+i}, v{KVC+i}, v{KW+4+i}')
        k('s_lshl_b32 s30, s6, 6'); k('s_lshl_b32 s31, s4, 4'); k('s_add_u32 s30, s30, s31')
        k('s_lshr_b32 s31, s30, 5'); k('s_mul_i32 s31, s31, 3584')
        k(f's_mul_i32 s32, s12, {KV_D}'); k('s_add_u32 s31, s31, s32'); k(f's_add_u32 s31, s31, {KVB[0]}')
        k('s_lshr_b32 s32, s30, 4'); k('s_and_b32 s32, s32, 1')
        isv2=k.lab('isv2')
        k('s_and_b32 s28, s7, 1'); k('s_cmp_eq_u32 s28, 1'); k(f's_cbranch_scc1 {isv2}')
        for i in range(4):
            k(f'v_mul_f32 v{KVA+i}, v{KVA+i}, v{RSTD}'); k(f'v_fma_f32 v{KVA+i}, -v{MEAN}, v{KVC+i}, v{KVA+i}')
        k('s_lshl_b32 s28, s5, 2'); k(f'v_add_u32 v{T+6}, s28, v{V_G}')
        k(f'v_cmp_eq_u32 vcc, 5, v{T+6}')
        for i in range(4): k(f'v_cndmask_b32 v{KVA+i}, v{KVA+i}, 0, vcc')
        k(f'v_cvt_pk_bf16_f32 v{KVA}, v{KVA}, v{KVA+1}'); k(f'v_cvt_pk_bf16_f32 v{KVA+1}, v{KVA+2}, v{KVA+3}')
        k('s_lshl_b32 s28, s32, 4'); k(f'v_add_u32 v{T+7}, s28, v{V_F}')
        k(f'v_lshrrev_b32 v{T+8}, 1, v{T+6}'); k(f'v_lshlrev_b32 v{T+8}, 9, v{T+8}')
        k(f'v_lshl_add_u32 v{T+8}, v{T+7}, 4, v{T+8}')
        k(f'v_and_b32 v{T+9}, 1, v{T+6}'); k(f'v_lshl_add_u32 v{T+8}, v{T+9}, 3, v{T+8}')
        k(f'v_subrev_u32 v{T+9}, 4, v{T+6}'); k(f'v_lshlrev_b32 v{T+9}, 8, v{T+9}')
        k(f'v_lshl_add_u32 v{T+9}, v{T+7}, 3, v{T+9}'); k(f'v_add_u32 v{T+9}, 3072, v{T+9}')
        k(f'v_cmp_gt_u32 vcc, 4, v{T+6}'); k(f'v_cndmask_b32 v{T+8}, v{T+9}, v{T+8}, vcc')
        k(f'v_cmp_gt_u32 vcc, 6, v{T+6}'); k(f'v_mov_b32 v{T+9}, {OOB}'); k(f'v_cndmask_b32 v{T+8}, v{T+9}, v{T+8}, vcc')
        k(f'buffer_store_dwordx2 v[{KVA}:{KVA+1}], v{T+8}, s[{WS}:{WS+3}], s31 offen sc1')
        k(f's_branch {nokv2}')
        k(isv2+':')
        k('s_lshl_b32 s28, s4, 8'); k(f's_add_u32 s28, s28, {L_STAT}')
        k(f'v_lshl_add_u32 v{T+6}, v{V_G}, 5, s28')
        Y=WR+8
        k(f'ds_read_b128 v[{Y}:{Y+3}], v{T+6}'); k(f'ds_read_b128 v[{Y+4}:{Y+7}], v{T+6} offset:16')
        k(f'ds_read_b128 v[{Y+8}:{Y+11}], v{T+6} offset:128'); k(f'ds_read_b128 v[{Y+12}:{Y+15}], v{T+6} offset:144')
        k('s_waitcnt lgkmcnt(0)')
        for i in range(4):
            s_,q_=Y+2*i,Y+2*i+1
            k(f'v_add_f32 v{s_}, v{s_}, v{s_+8}'); k(f'v_add_f32 v{q_}, v{q_}, v{q_+8}')
            k(f'v_mul_f32 v{s_}, {hex(f2u(1/640))}, v{s_}'); k(f'v_mul_f32 v{q_}, {hex(f2u(1/640))}, v{q_}')
            k(f'v_fma_f32 v{q_}, -v{s_}, v{s_}, v{q_}'); k(f'v_max_f32 v{q_}, 0, v{q_}'); k(f'v_add_f32 v{q_}, {hex(f2u(1e-5))}, v{q_}')
            k(f'v_rsq_f32 v{q_}, v{q_}')
            k(f'v_fma_f32 v{KVA+i}, -v{s_}, v{KVC+i}, v{KVA+i}')
            k(f'v_mul_f32 v{KVA+i}, v{KVA+i}, v{q_}')
        k('s_lshl_b32 s28, s5, 4'); k(f'v_add_u32 v{T+6}, s28, v{V_F}')
        k(f'v_cmp_eq_u32 vcc, 20, v{T+6}')
        for i in range(4): k(f'v_cndmask_b32 v{KVA+i}, v{KVA+i}, 1.0, vcc')
        k(f'v_cmp_lt_u32 vcc, 20, v{T+6}')
        for i in range(4): k(f'v_cndmask_b32 v{KVA+i}, v{KVA+i}, 0, vcc')
        k(f'v_cvt_pk_bf16_f32 v{KVA}, v{KVA}, v{KVA+1}'); k(f'v_cvt_pk_bf16_f32 v{KVA+1}, v{KVA+2}, v{KVA+3}')
        k('s_lshl_b32 s28, s32, 10'); k('s_add_u32 s28, s28, 1024')
        k(f'v_and_b32 v{T+7}, 1, v{V_G}'); k(f'v_lshlrev_b32 v{T+7}, 9, v{T+7}')
        k(f'v_lshl_add_u32 v{T+7}, v{T+6}, 4, v{T+7}')
        k(f'v_lshrrev_b32 v{T+8}, 1, v{V_G}'); k(f'v_lshl_add_u32 v{T+7}, v{T+8}, 3, v{T+7}')
        k(f'v_add_u32 v{T+7}, s28, v{T+7}')
        k(f'buffer_store_dwordx2 v[{KVA}:{KVA+1}], v{T+7}, s[{WS}:{WS+3}], s31 offen sc1')
        k(nokv2+':')
        k(f'v_mul_f32 v{T+16}, {hex(f2u(QSCALE))}, v{RSTD}'); k(f'v_mul_f32 v{T+17}, {hex(f2u(QSCALE))}, v{MEAN}')
        k('s_lshl_b32 s28, s4, 4'); k(f'v_add_u32 v{T+18}, s28, v{V_F}'); k(f'v_mul_u32_u24 v{T+18}, 160, v{T+18}')
        k(f'v_lshl_add_u32 v{T+18}, v{V_G}, 3, v{T+18}')
        k('s_mul_i32 s28, s5, 96'); k(f's_add_u32 s28, s28, {L_QL}'); k(f'v_add_u32 v{T+18}, s28, v{T+18}')
        for j in range(3):
            if j==2:
                q3=k.lab('q3'); k('s_cmp_eq_u32 s5, 1'); k(f's_cbranch_scc1 {q3}')
            for i in range(4):
                r=ACC+4*j+i
                k(f'v_add_f32 v{CS0+8*j+i}, v{CS0+8*j+i}, v{CS0+8*j+4+i}')
                k(f'v_mul_f32 v{r}, v{r}, v{T+16}'); k(f'v_fma_f32 v{r}, -v{T+17}, v{CS0+8*j+i}, v{r}')
            k(f'v_cvt_pk_bf16_f32 v{ACC+4*j}, v{ACC+4*j}, v{ACC+4*j+1}'); k(f'v_cvt_pk_bf16_f32 v{ACC+4*j+1}, v{ACC+4*j+2}, v{ACC+4*j+3}')
            k(f'ds_write_b64 v{T+18}, v[{ACC+4*j}:{ACC+4*j+1}] offset:{j*32}')
            if j==2: k(q3+':')
        k('s_waitcnt lgkmcnt(0)')
        self.mark("q.epi")
        self.publish(1)
        self.mark("q.pub")

    def phase_attn(self):
        k=self.k
        D=4; SL=14
        Q1=[24,30]; Q2=[28,34]
        S=[36,52]; O=[68,84]; P=100
        KB=108
        K1=lambda s: KB+s*SL
        V=lambda s: KB+s*SL+4
        K2=lambda s: KB+s*SL+12
        T=KB+D*SL
        VL8=T; NEG=[176,192]
        k(f'v_mul_u32_u24 v{T+1}, 160, v{V_L31}')
        k('s_mul_i32 s28, s4, 40'); k(f's_add_u32 s28, s28, {L_QL}')
        k(f'v_add_u32 v{T+1}, s28, v{T+1}')
        k(f'v_lshl_add_u32 v{T+2}, v{V_H}, 4, v{T+1}')
        for q in range(2):
            k(f'ds_read_b64 v[{Q1[q]}:{Q1[q]+1}], v{T+2} offset:{q*5120}')
            k(f'ds_read_b64 v[{Q1[q]+2}:{Q1[q]+3}], v{T+2} offset:{q*5120+8}')
            k(f'ds_read_b64 v[{Q2[q]}:{Q2[q]+1}], v{T+1} offset:{q*5120+32}')
        k(f'v_lshlrev_b32 v{VL8}, 3, v{V_LANE}')
        ncv=k.lab('ncv')
        k('s_cmp_lg_u32 s12, 0'); k(f's_cbranch_scc1 {ncv}')
        self.conv_issue(L_COMB,self.CONV_B)
        k(ncv+':')
        k('s_waitcnt lgkmcnt(0)')
        k(f'v_cmp_eq_u32 vcc, 0, v{V_H}')
        for q in range(2):
            for i in range(2): k(f'v_cndmask_b32 v{Q2[q]+i}, 0, v{Q2[q]+i}, vcc')
        self.mark("a.dma")
        self.wait(1,allwg=True)
        self.mark("a.wait")
        ncf=k.lab('ncf')
        k('s_cmp_lg_u32 s12, 0'); k(f's_cbranch_scc1 {ncf}')
        k('s_waitcnt vmcnt(0)')
        self.conv_finish(T+12,L_COMB)
        k(ncf+':')
        def ld(slot):
            k(f'buffer_load_dwordx4 v[{K1(slot)}:{K1(slot)+3}], v{V_L16}, s[{WS}:{WS+3}], s32 offen sc1')
            k(f'buffer_load_dwordx2 v[{K2(slot)}:{K2(slot)+1}], v{VL8}, s[{WS}:{WS+3}], s32 offen offset:3072 sc1')
            k(f'buffer_load_dwordx4 v[{V(slot)}:{V(slot)+3}], v{V_L16}, s[{WS}:{WS+3}], s32 offen offset:1024 sc1')
            k(f'buffer_load_dwordx4 v[{V(slot)+4}:{V(slot)+7}], v{V_L16}, s[{WS}:{WS+3}], s32 offen offset:2048 sc1')
            k('s_add_u32 s32, s32, 7168')
        def run_loop(exact,prefetch):
            def qk1(q,s):
                c = f'v[{NEG[q]}:{NEG[q]+15}]' if exact else '0'
                k(f'v_mfma_f32_32x32x16_bf16 v[{S[q]}:{S[q]+15}], v[{K1(s)}:{K1(s)+3}], v[{Q1[q]}:{Q1[q]+3}], {c}')
            def qk2(q,s): k(f'v_mfma_f32_32x32x8_bf16 v[{S[q]}:{S[q]+15}], v[{K2(s)}:{K2(s)+1}], v[{Q2[q]}:{Q2[q]+1}], v[{S[q]}:{S[q]+15}]')
            def pv(q,s,hf): k(f'v_mfma_f32_32x32x16_bf16 v[{O[q]}:{O[q]+15}], v[{V(s)+4*hf}:{V(s)+4*hf+3}], v[{P+4*hf}:{P+4*hf+3}], v[{O[q]}:{O[q]+15}]')
            def ex(q,a):
                for i in range(a,a+4): k(f'v_exp_f32 v{S[q]+i}, v{S[q]+i}')
            def cv(q,a):
                k(f'v_cvt_pk_bf16_f32 v{P+a//2}, v{S[q]+a}, v{S[q]+a+1}')
                k(f'v_cvt_pk_bf16_f32 v{P+a//2+1}, v{S[q]+a+2}, v{S[q]+a+3}')
            k(f's_mul_i32 s32, s12, {KV_D}'); k(f's_add_u32 s32, s32, {KVB[0]}')
            k('s_mul_i32 s28, s5, 3584'); k('s_add_u32 s32, s32, s28')
            for t in range(D-1): ld(t)
            for q in range(2):
                for i in range(16): k(f'v_mov_b32 v{O[q]+i}, 0')
            for i in range(4,8): k(f'v_mov_b32 v{P+i}, 0')
            for i in range(4,8): k(f'v_mov_b32 v{V(D-1)+i}, 0')
            k(f's_waitcnt vmcnt({4*(D-2)})')
            qk1(0,0); qk2(0,0)
            k('s_nop 7')
            def body(dma):
                for t in range(D):
                    s=t; sn=(t+1)%D; sp=(t-1)%D
                    qk1(1,s); ex(0,0); pv(1,sp,1)
                    if dma:
                        k('s_min_u32 m0, s35, 101376')
                        k('s_add_u32 s37, s36, m0')
                        k(f'buffer_load_dwordx4 v{V_L16}, s[{WS}:{WS+3}], s37 offen sc1 lds')
                        k('s_add_u32 s35, s35, 8192')
                    ld(sp)
                    ex(0,4); cv(0,0); qk2(1,s); cv(0,4); ex(0,8); pv(0,s,0); ex(0,12); cv(0,8); cv(0,12)
                    nv=4*(D-2)+((2 if t>0 else 1) if dma else 0)
                    k(f's_waitcnt vmcnt({nv})')
                    qk1(0,sn); ex(1,0); pv(0,s,1); ex(1,4); cv(1,0); qk2(0,sn); cv(1,4); ex(1,8); pv(1,s,0); ex(1,12); cv(1,8); cv(1,12)
            k('s_mov_b32 s34, 0')
            NT=4 if prefetch else 0
            if NT:
                k('s_lshl_b32 s35, s3, 10')
                k(f's_mul_i32 s36, s7, 102400'); k(f's_add_u32 s36, s36, {WOF}')
                L1=k.lab('al'); k(L1+':')
                body(True)
                k('s_add_u32 s34, s34, 1'); k(f's_cmp_lt_u32 s34, {NT}'); k(f's_cbranch_scc1 {L1}')
            L2=k.lab('bl'); k(L2+':')
            body(False)
            k('s_add_u32 s34, s34, 1'); k('s_cmp_lt_u32 s34, 8'); k(f's_cbranch_scc1 {L2}')
            pv(1,D-1,1)
            k('s_waitcnt vmcnt(0)')
        run_loop(False,True)
        self.mark("a.loop")
        k('s_nop 7'); k('s_nop 7')
        c1=k.lab('c1'); c2=k.lab('c2')
        k('s_mul_i32 s28, s3, 3072'); k(f's_add_u32 s28, s28, {L_COMB}')
        k(f'v_add_u32 v{T+1}, s28, v{V_L16}')
        k('s_xor_b32 s29, s3, 4'); k('s_mul_i32 s29, s29, 3072'); k(f's_add_u32 s29, s29, {L_COMB}')
        k(f'v_add_u32 v{T+2}, s29, v{V_L16}')
        k('s_cmp_eq_u32 s5, 1'); k(f's_cbranch_scc1 {c1}')
        for r in range(3): k(f'ds_write_b128 v{T+1}, v[{O[1]+4*r}:{O[1]+4*r+3}] offset:{r*1024}')
        k(f's_branch {c2}')
        k(c1+':')
        for r in range(3): k(f'ds_write_b128 v{T+1}, v[{O[0]+4*r}:{O[0]+4*r+3}] offset:{r*1024}')
        for i in range(12): k(f'v_mov_b32 v{O[0]+i}, v{O[1]+i}')
        k(c2+':')
        k('s_waitcnt lgkmcnt(0)')
        k('s_barrier')
        for r in range(3): k(f'ds_read_b128 v[{S[1]+4*r}:{S[1]+4*r+3}], v{T+2} offset:{r*1024}')
        k('s_waitcnt lgkmcnt(0)')
        self.mark("a.comb")
        Oq=O[0]
        for i in range(12): k(f'v_add_f32 v{Oq+i}, v{Oq+i}, v{S[1]+i}')
        k(f'v_mov_b32 v{T+3}, v{Oq+8}'); k(f'v_mov_b32 v{T+4}, v{Oq+8}')
        k(f'v_permlane32_swap_b32 v{T+3}, v{T+4}')
        k(f'v_rcp_f32 v{T+4}, v{T+4}')
        for i in range(12): k(f'v_mul_f32 v{Oq+i}, v{Oq+i}, v{T+4}')
        PK=S[0]
        for p in range(6): k(f'v_cvt_pk_bf16_f32 v{PK+p}, v{Oq+2*p}, v{Oq+2*p+1}')
        k('s_mul_i32 s28, s4, 5')
        k(f'v_add_u32 v{T+5}, s28, v{V_H}')
        k(f'v_lshrrev_b32 v{T+6}, 4, v{V_L31}'); k('s_lshl_b32 s29, s5, 1'); k(f'v_add_u32 v{T+6}, s29, v{T+6}')
        k(f'v_mul_u32_u24 v{T+6}, 2560, v{T+6}'); k(f'v_lshl_add_u32 v{T+6}, v{V_F}, 4, v{T+6}'); k(f'v_add_u32 v{T+6}, {L_OIMG}, v{T+6}')
        for pc in range(3):
            g_=T+7
            if pc==0: k(f'v_mov_b32 v{g_}, v{T+5}')
            elif pc==1: k(f'v_add_u32 v{g_}, 2, v{T+5}')
            else:
                k(f'v_mov_b32 v{g_}, s28'); k(f'v_add_u32 v{g_}, 4, v{g_}')
            k(f'v_lshrrev_b32 v{T+8}, 1, v{g_}'); k(f'v_lshlrev_b32 v{T+8}, 8, v{T+8}')
            k(f'v_and_b32 v{T+9}, 1, v{g_}'); k(f'v_lshl_add_u32 v{T+8}, v{T+9}, 3, v{T+8}')
            k(f'v_add_u32 v{T+8}, v{T+8}, v{T+6}')
            if pc==2:
                k('s_mov_b32 exec_hi, 0')
            k(f'ds_write_b64 v{T+8}, v[{PK+2*pc}:{PK+2*pc+1}]')
            if pc==2: k('s_mov_b64 exec, -1')
        k('s_waitcnt lgkmcnt(0)')
        k('s_barrier')
        k(f's_mul_i32 s31, s12, {OF_D}'); k(f's_add_u32 s31, s31, {OFB[0]}')
        k('s_mul_i32 s28, s6, 81920'); k('s_add_u32 s31, s31, s28'); k('s_mul_i32 s28, s7, 2560'); k('s_add_u32 s31, s31, s28')
        for rnd in range(2):
            lab=k.lab('oc')
            if rnd==1:
                k('s_cmp_ge_u32 s3, 2'); k(f's_cbranch_scc1 {lab}')
            k('s_lshl_b32 s28, s3, 6'); k(f's_add_u32 s28, s28, {512*rnd}')
            k(f'v_add_u32 v{T+5}, s28, v{V_LANE}')
            k(f'v_lshlrev_b32 v{T+6}, 4, v{T+5}'); k(f'v_add_u32 v{T+6}, {L_OIMG}, v{T+6}')
            k(f'ds_read_b128 v[{PK}:{PK+3}], v{T+6}')
            k(f'v_mul_u32_u24 v{T+7}, 410, v{T+5}'); k(f'v_lshrrev_b32 v{T+7}, 16, v{T+7}')
            k(f'v_mul_u32_u24 v{T+8}, 160, v{T+7}'); k(f'v_sub_u32 v{T+8}, v{T+5}, v{T+8}')
            k(f'v_mul_u32_u24 v{T+7}, 20480, v{T+7}'); k(f'v_lshl_add_u32 v{T+7}, v{T+8}, 4, v{T+7}')
            k('s_waitcnt lgkmcnt(0)')
            k(f'buffer_store_dwordx4 v[{PK}:{PK+3}], v{T+7}, s[{WS}:{WS+3}], s31 offen sc1')
            k(lab+':')
        self.mark("a.epi")
        self.publish(2)
        self.mark("a.pub")

    def phase_oproj(self):
        k=self.k
        XF,WR,ACC,T=24,64,96,144
        self.wait(2)
        self.mark("o.wait")
        self.x_loads(XF,10,OFB[0],OF_D,20,10)
        vA,vC=T,T+1
        k('s_mul_i32 s28, s5, 10240'); k(f'v_add_u32 v{vA}, s28, v{V_L16}'); k(f'v_add_u32 v{vC}, 61440, v{vA}')
        fr=[]
        for i in range(10):
            for ft in range(5):
                va,imm=(vA,ft*20480+i*1024) if ft<3 else (vC,(ft-3)*20480+i*1024)
                def rd(r,va=va,imm=imm): k(f'ds_read_b128 v[{r}:{r+3}], v{va} offset:{imm}')
                def mf(r,i=i,ft=ft):
                    c=ACC+4*ft; cs='0' if i==0 else f'v[{c}:{c+3}]'
                    k(f'v_mfma_f32_16x16x32_bf16 v[{c}:{c+3}], v[{r}:{r+3}], v[{XF+4*i}:{XF+4*i+3}], {cs}')
                fr.append(dict(read=rd,mfma=mf,vm=(9-i) if ft==0 else None))
        self.frag_gemm(fr,WR,7,1)
        self.mark("o.mm")
        self.reduce_pairs(ACC,T+9,L_ORED)
        k('s_waitcnt lgkmcnt(0)')
        k('s_barrier')
        self.reduce_pairs_finish(ACC,T+9,XF)
        self.mark("o.red")
        self.epilogue_res(ACC,T,X1B[0],X1_D,stats=False,bias=None,final=False)
        self.mark("o.epi")
        self.publish(3)
        self.mark("o.pub")

    def epilogue_res(self,ACC,T,dst,dst_d,stats,bias,final):
        k=self.k
        self.tile_offsets(44)
        if dst_d:
            k(f's_mul_i32 s28, s12, {dst_d}'); k(f's_add_u32 s28, s28, {dst}')
        else: k(f's_mov_b32 s28, {dst}')
        for j in range(3): k(f's_add_u32 s{44+j}, s{44+j}, s28')
        k('s_mov_b32 s47, 0xffff0000')
        VD=T+15
        k(f'v_lshrrev_b32 v{VD}, 1, v{V_G}'); k(f'v_lshlrev_b32 v{VD}, 8, v{VD}'); k(f'v_lshl_add_u32 v{VD}, v{V_F}, 4, v{VD}')
        k(f'v_and_b32 v{T+14}, 1, v{V_G}'); k(f'v_lshl_add_u32 v{VD}, v{T+14}, 3, v{VD}')
        S0,S1=T+10,T+11
        if stats:
            k(f'v_mov_b32 v{S0}, 0'); k(f'v_mov_b32 v{S1}, 0'); k(f'v_mov_b32 v{T+12}, 0x3f803f80')
        skip=k.lab('e3')
        for j in range(3):
            if j==2:
                k('s_cmp_eq_u32 s5, 1'); k(f's_cbranch_scc1 {skip}')
            r=ACC+4*j
            k(f'v_lshlrev_b32 v{T}, 16, v{V_RES+2*j}'); k(f'v_and_b32 v{T+1}, s47, v{V_RES+2*j}')
            k(f'v_lshlrev_b32 v{T+2}, 16, v{V_RES+2*j+1}'); k(f'v_and_b32 v{T+3}, s47, v{V_RES+2*j+1}')
            for i in range(4): k(f'v_add_f32 v{r+i}, v{r+i}, v{T+i}')
            if bias is not None:
                k(f'v_lshlrev_b32 v{T}, 16, v{bias+2*j}'); k(f'v_and_b32 v{T+1}, s47, v{bias+2*j}')
                k(f'v_lshlrev_b32 v{T+2}, 16, v{bias+2*j+1}'); k(f'v_and_b32 v{T+3}, s47, v{bias+2*j+1}')
                for i in range(4): k(f'v_add_f32 v{r+i}, v{r+i}, v{T+i}')
            k(f'v_cvt_pk_bf16_f32 v{V_RES+2*j}, v{r}, v{r+1}'); k(f'v_cvt_pk_bf16_f32 v{V_RES+2*j+1}, v{r+2}, v{r+3}')
            if final:
                fl=k.lab('fin'); fd=k.lab('fd')
                k('s_cmp_eq_u32 s12, 1'); k(f's_cbranch_scc1 {fl}')
                k(f'buffer_store_dwordx2 v[{V_RES+2*j}:{V_RES+2*j+1}], v{VD}, s[{WS}:{WS+3}], s{44+j} offen sc1')
                k(f's_branch {fd}')
                k(fl+':')
                k(f'buffer_store_dwordx2 v[{V_RES+2*j}:{V_RES+2*j+1}], v{T+20}, s[{SC}:{SC+3}], 0 offen offset:{j*32}')
                k(fd+':')
            else:
                k(f'buffer_store_dwordx2 v[{V_RES+2*j}:{V_RES+2*j+1}], v{VD}, s[{WS}:{WS+3}], s{44+j} offen sc1')
            if stats:
                k(f'v_dot2c_f32_bf16 v{S0}, v{V_RES+2*j}, v{T+12}'); k(f'v_dot2c_f32_bf16 v{S1}, v{V_RES+2*j}, v{V_RES+2*j}')
                k(f'v_dot2c_f32_bf16 v{S0}, v{V_RES+2*j+1}, v{T+12}'); k(f'v_dot2c_f32_bf16 v{S1}, v{V_RES+2*j+1}, v{V_RES+2*j+1}')
        k(skip+':')
        if stats:
            sum_g(k,S0,T+13); sum_g(k,S1,T+13)
            k(f'v_lshlrev_b32 v{T+13}, 7, v{V_TOK}')
            k('s_lshl_b32 s28, s7, 1'); k('s_add_u32 s28, s28, s5'); k('s_lshl_b32 s28, s28, 3')
            k(f's_mul_i32 s29, s12, {ST_D}'); k('s_add_u32 s28, s28, s29'); k(f's_add_u32 s28, s28, {STB[0]}')
            k(f'v_cmp_eq_u32 vcc, 0, v{V_G}'); k(f'v_mov_b32 v{T+14}, {OOB}'); k(f'v_cndmask_b32 v{T+13}, v{T+14}, v{T+13}, vcc')
            k(f'buffer_store_dwordx2 v[{S0}:{S1}], v{T+13}, s[{WS}:{WS+3}], s28 offen sc1')

    def phase_fc1(self):
        k=self.k
        XP=os.environ.get('XP','')
        A0,A1,XF,CS,WB=24,40,56,88,96
        wa=k.lab('wa'); wb=k.lab('wb')
        k('s_cmp_eq_u32 s12, 0'); k(f's_cbranch_scc0 {wa}')
        self.wait(3,others=2)
        k(f's_branch {wb}')
        k(wa+':')
        self.wait(3)
        k(wb+':')
        self.mark("f1.wait")
        k('s_mul_i32 s28, s6, 81920'); k(f's_mul_i32 s29, s12, {X1_D}'); k('s_add_u32 s28, s28, s29'); k(f's_add_u32 s28, s28, {X1B[0]}')
        k('s_mul_i32 s29, s3, 10240'); k('s_add_u32 s28, s28, s29')
        for i in range(10):
            k(f's_add_u32 m0, s29, {i*1024}')
            k(f'buffer_load_dwordx4 v{V_L16}, s[{WS}:{WS+3}], s28 offen sc1 lds')
            k('s_add_u32 s28, s28, 1024')
        act=k.lab('act'); join=k.lab('join')
        k('s_cmp_lt_u32 s3, s41'); k(f's_cbranch_scc1 {act}')
        k('s_waitcnt vmcnt(0)')
        k('s_barrier')
        n7=k.lab('n7')
        k('s_cmp_lg_u32 s3, 7'); k(f's_cbranch_scc1 {n7}')
        ON,SX,SQ,RG,U=96,100,104,112,176
        for i in range(4): k(f'v_mov_b32 v{ON+i}, 0x3f803f80')
        k(f'v_add_u32 v{U}, 40960, v{V_L16}')
        for tl in range(4):
            fr=[]
            va=V_L16 if tl<2 else U
            for ks in range(20):
                def rd(r,tl=tl,ks=ks,va=va): k(f'ds_read_b128 v[{r}:{r+3}], v{va} offset:{(tl%2)*20480+ks*1024}')
                def mf(r,ks=ks):
                    X=f'v[{r}:{r+3}]'
                    cs='0' if ks==0 else f'v[{SX}:{SX+3}]'; cq='0' if ks==0 else f'v[{SQ}:{SQ+3}]'
                    k(f'v_mfma_f32_16x16x32_bf16 v[{SX}:{SX+3}], v[{ON}:{ON+3}], {X}, {cs}')
                    k(f'v_mfma_f32_16x16x32_bf16 v[{SQ}:{SQ+3}], {X}, {X}, {cq}')
                fr.append(dict(read=rd,mfma=mf))
            self.frag_gemm(fr,RG,8,1)
            S0,S1=U+2,U+3
            self.diag_stats(SX,SQ,S0,S1,U+4)
            m_,r_,v_=U+6,U+7,S1
            k(f'v_mul_f32 v{m_}, {hex(f2u(1/640))}, v{S0}'); k(f'v_mul_f32 v{v_}, {hex(f2u(1/640))}, v{v_}')
            k(f'v_fma_f32 v{v_}, -v{m_}, v{m_}, v{v_}'); k(f'v_max_f32 v{v_}, 0, v{v_}')
            k(f'v_add_f32 v{U+4}, {hex(f2u(1e-5))}, v{v_}'); k(f'v_rsq_f32 v{r_}, v{U+4}')
            k(f'v_mul_f32 v{U+4}, v{r_}, v{r_}'); k(f'v_mul_f32 v{U+4}, v{U+4}, v{v_}')
            k(f'v_add_f32 v{U+4}, {hex(f2u(1e-5))}, v{U+4}'); k(f'v_rsq_f32 v{U+4}, v{U+4}')
            k(f'v_mul_f32 v{r_}, v{r_}, v{U+4}'); k(f'v_mul_f32 v{m_}, v{m_}, v{r_}')
            k(f'v_lshlrev_b32 v{U+4}, 3, v{V_F}'); k(f'v_add_u32 v{U+4}, {L_TOKST+tl*128}, v{U+4}')
            self.diag_mask_on()
            k(f'ds_write_b64 v{U+4}, v[{m_}:{r_}]')
            k('s_mov_b64 exec, -1')
        k(n7+':')
        k(f's_branch {join}')
        k(act+':')
        srd(k,SA,P_B1,1728*2)
        PRE=10
        k('s_mul_i32 s42, s40, 40960'); k(f's_add_u32 s42, s42, {W1F}')
        def wload(s):
            k(f'buffer_load_dwordx4 v[{WB+4*s}:{WB+4*s+3}], v{V_L16}, s[{WS}:{WS+3}], s42 offen offset:{(s%4)*1024} sc1')
            if s%4==3: k('s_add_u32 s42, s42, 4096')
        for s in range(PRE): wload(s)
        k(f's_waitcnt vmcnt({PRE})')
        k('s_barrier')
        self.mark("f1.x")
        vX=90; ONE=89
        k(f'v_lshrrev_b32 v{vX}, 4, v{V_L31}'); k(f'v_mul_u32_u24 v{vX}, 20480, v{vX}')
        k(f'v_lshl_add_u32 v{vX}, v{V_H}, 8, v{vX}'); k(f'v_lshl_add_u32 v{vX}, v{V_F}, 4, v{vX}')
        k(f'v_mov_b32 v{ONE}, 0x3f803f80'); k(f'v_mov_b32 v{CS}, 0')
        k('s_cmp_lg_u32 s12, 0'); k('s_cselect_b64 vcc, -1, 0')
        def rd(s):
            ks,u=s//2,s%2
            x=XF+(s%4)*8
            k(f'ds_read_b128 v[{x}:{x+3}], v{vX} offset:{ks*1024+u*512}')
            k(f'ds_read_b128 v[{x+4}:{x+7}], v{vX} offset:{40960+ks*1024+u*512}')
        rd(0); rd(1); rd(2)
        for s in range(40):
            if s+PRE<40: wload(s+PRE)
            if s+3<40: rd(s+3)
            nl=min(3,39-s)*2
            nv=min(PRE,39-s)
            k(f's_waitcnt vmcnt({nv}) lgkmcnt({nl})')
            w=WB+4*s; x=XF+(s%4)*8
            c0='0' if s==0 else f'v[{A0}:{A0+15}]'; c1='0' if s==0 else f'v[{A1}:{A1+15}]'
            k(f'v_mfma_f32_32x32x16_bf16 v[{A0}:{A0+15}], v[{w}:{w+3}], v[{x}:{x+3}], {c0}')
            k(f'v_mfma_f32_32x32x16_bf16 v[{A1}:{A1+15}], v[{w}:{w+3}], v[{x+4}:{x+7}], {c1}')
            sk=k.lab('sd')
            k(f's_cbranch_vccnz {sk}')
            for r in range(4): k(f'v_dot2c_f32_bf16 v{CS}, v{w+r}, v{ONE}')
            k(sk+':')
        B1=96
        k('s_lshl_b32 s28, s40, 6')
        k(f'v_lshl_add_u32 v{vX}, v{V_H}, 3, s28')
        for a in range(4): k(f'buffer_load_dwordx2 v[{B1+2*a}:{B1+2*a+1}], v{vX}, s[{SA}:{SA+3}], 0 offen offset:{a*16}')
        ncs=k.lab('ncs')
        k(f's_cbranch_vccnz {ncs}')
        k(f'v_mov_b32 v{vX}, v{CS}'); k(f'v_permlane32_swap_b32 v{CS}, v{vX}'); k(f'v_add_f32 v{CS}, v{CS}, v{vX}')
        k('s_lshl_b32 s28, s3, 7'); k(f's_add_u32 s28, s28, {L_CS1}')
        k(f'v_lshl_add_u32 v{vX}, v{V_L31}, 2, s28')
        k(f'ds_write_b32 v{vX}, v{CS}')
        k(ncs+':')
        k(join+':')
        k('s_waitcnt lgkmcnt(0)')
        k('s_barrier')
        self.mark("f1.mm")
        dm=[(t,j) for t in range(4) for j in range(5)]
        def w2dma(item):
            t,j=item
            lab=None
            if t==3:
                lab=k.lab('d3'); k('s_cmp_ge_u32 s3, 6'); k(f's_cbranch_scc1 {lab}')
            if j==0:
                k(f's_add_u32 s52, s3, {8*t}'); k('s_lshr_b32 s53, s52, 1'); k('s_and_b32 s54, s52, 1')
                k('s_mul_i32 s54, s54, 27'); k('s_add_u32 s54, s54, s53')
                k('s_mul_i32 s55, s7, 270'); k('s_add_u32 s54, s54, s55'); k('s_lshl_b32 s54, s54, 10'); k(f's_add_u32 s54, s54, {W2F}')
                k('s_mul_i32 s55, s52, 5120')
            k('s_mov_b32 m0, s55')
            k(f'buffer_load_dwordx4 v{V_L16}, s[{WS}:{WS+3}], s54 offen sc1 lds')
            k(f's_add_u32 s54, s54, {54*1024}'); k('s_add_u32 s55, s55, 1024')
            if lab: k(lab+':')
        idle2=k.lab('idle2'); j2=k.lab('j2')
        k('s_cmp_ge_u32 s3, s41'); k(f's_cbranch_scc1 {idle2}')
        CSV,B1F,T=112,128,144
        k('s_lshl_b32 s28, s3, 7'); k(f's_add_u32 s28, s28, {L_CS1}')
        k(f'v_lshl_add_u32 v{T+5}, v{V_H}, 4, s28')
        for a in range(4): k(f'ds_read_b128 v[{CSV+4*a}:{CSV+4*a+3}], v{T+5} offset:{a*32}')
        k(f'v_lshlrev_b32 v{T+5}, 3, v{V_L31}'); k(f'v_add_u32 v{T+5}, {L_TOKST}, v{T+5}')
        k(f'ds_read_b64 v[{T+6}:{T+7}], v{T+5}'); k(f'ds_read_b64 v[{T+8}:{T+9}], v{T+5} offset:256')
        k('s_mov_b32 s47, 0xffff0000')
        k('s_waitcnt vmcnt(0) lgkmcnt(0)')
        for a in range(4):
            k(f'v_lshlrev_b32 v{B1F+4*a}, 16, v{B1+2*a}'); k(f'v_and_b32 v{B1F+4*a+1}, s47, v{B1+2*a}')
            k(f'v_lshlrev_b32 v{B1F+4*a+2}, 16, v{B1+2*a+1}'); k(f'v_and_b32 v{B1F+4*a+3}, s47, v{B1+2*a+1}')
        c0=-2*0.7978845608028654*1.4426950408889634; c1=c0*0.044715
        KC0,KC1,KONE=T+24,T+26,T+28
        for i in range(2):
            k(f'v_mov_b32 v{KC0+i}, {hex(f2u(c0))}'); k(f'v_mov_b32 v{KC1+i}, {hex(f2u(c1))}'); k(f'v_mov_b32 v{KONE+i}, 1.0')
        k(f'v_lshrrev_b32 v{T+10}, 4, v{V_L31}'); k(f's_mov_b32 s28, {54*1024}'); k(f'v_mul_lo_u32 v{T+10}, v{T+10}, s28')
        k(f'v_lshl_add_u32 v{T+10}, v{V_H}, 3, v{T+10}'); k(f'v_lshl_add_u32 v{T+10}, v{V_F}, 4, v{T+10}')
        di=0
        P=lambda r: f'v[{r}:{r+1}]'
        for tt in range(2):
            A=A0 if tt==0 else A1
            MR=T+6+2*tt
            k('s_lshl_b32 s28, s6, 2'); k(f's_add_u32 s28, s28, {2*tt}'); k('s_mul_i32 s28, s28, 54'); k('s_add_u32 s28, s28, s40')
            k('s_lshl_b32 s28, s28, 10'); k(f's_mul_i32 s29, s12, {HF_D}'); k('s_add_u32 s28, s28, s29'); k(f's_add_u32 s56, s28, {HFB[0]}')
            for a in range(4):
                r0,r1=A+4*a,A+4*a+2
                t=[T+12,T+14]; u=[T+16,T+18]
                for e,r in enumerate((r0,r1)):
                    o=4*a+2*e
                    k(f'v_pk_fma_f32 {P(t[e])}, {P(MR)}, {P(CSV+o)}, {P(B1F+o)} op_sel_hi:[0,1,1] neg_lo:[1,0,0] neg_hi:[1,0,0]')
                for e,r in enumerate((r0,r1)):
                    k(f'v_pk_fma_f32 {P(r)}, {P(r)}, {P(MR)}, {P(t[e])} op_sel:[0,1,0] op_sel_hi:[1,1,1]')
                for e,r in enumerate((r0,r1)): k(f'v_pk_mul_f32 {P(t[e])}, {P(r)}, {P(r)}')
                for e,r in enumerate((r0,r1)): k(f'v_pk_fma_f32 {P(t[e])}, {P(t[e])}, {P(KC1)}, {P(KC0)}')
                for e,r in enumerate((r0,r1)): k(f'v_pk_mul_f32 {P(t[e])}, {P(t[e])}, {P(r)}')
                for e in range(2):
                    k(f'v_exp_f32 v{t[e]}, v{t[e]}'); k(f'v_exp_f32 v{t[e]+1}, v{t[e]+1}')
                for e in range(2): k(f'v_pk_add_f32 {P(t[e])}, {P(t[e])}, {P(KONE)}')
                for e in range(2):
                    k(f'v_rcp_f32 v{t[e]}, v{t[e]}'); k(f'v_rcp_f32 v{t[e]+1}, v{t[e]+1}')
                for e,r in enumerate((r0,r1)): k(f'v_pk_mul_f32 {P(r)}, {P(r)}, {P(t[e])}')
                PK=T+20+2*(a%2)
                k(f'v_cvt_pk_bf16_f32 v{PK}, v{r0}, v{r0+1}'); k(f'v_cvt_pk_bf16_f32 v{PK+1}, v{r1}, v{r1+1}')
                k(f'buffer_store_dwordx2 v[{PK}:{PK+1}], v{T+10}, s[{WS}:{WS+3}], s56 offen offset:{a*256} sc1')
                for _ in range(3):
                    if di<len(dm): w2dma(dm[di]); di+=1
        while di<len(dm): w2dma(dm[di]); di+=1
        k(f's_branch {j2}')
        k(idle2+':')
        for it in dm: w2dma(it)
        k(j2+':')
        self.mark("f1.epi")
        self.publish(4)
        self.mark("f1.pub")

    def phase_fc2(self):
        k=self.k
        XP=os.environ.get('XP','')
        HX,WR,ACC,T=24,132,192,212
        BI=T+22
        srd(k,SB,P_B2,1280)
        srd(k,SC,P_OUT,2048*1280)
        k('s_mul_i32 s28, s7, 160'); k('s_mul_i32 s29, s5, 96'); k('s_add_u32 s28, s28, s29')
        k(f'v_lshl_add_u32 v{T}, v{V_G}, 3, s28')
        for j in range(3): k(f'buffer_load_dwordx2 v[{BI+2*j}:{BI+2*j+1}], v{T}, s[{SB}:{SB+3}], 0 offen offset:{j*32}')
        k('s_movk_i32 s29, 1280'); k(f'v_mul_lo_u32 v{T+20}, v{V_TOK}, s29'); k(f'v_add_u32 v{T+20}, v{T+20}, v{T}')
        self.wait(4)
        self.mark("f2.wait")
        self.x_loads(HX,27,HFB[0],HF_D,54,27)
        log=[('h',i) for i in range(27)]
        vA,vB,vC=T+1,T+2,T+3
        k('s_mul_i32 s28, s5, 5120')
        k(f'v_add_u32 v{vA}, s28, v{V_L16}'); k(f'v_add_u32 v{vB}, 61440, v{vA}'); k(f'v_add_u32 v{vC}, 122880, v{vA}')
        NS=15
        slot=lambda i: i if i<NS else i-NS
        def refill(first):
            k('s_lshr_b32 s28, s3, 1'); k('s_and_b32 s29, s3, 1')
            k(f's_add_u32 s30, s28, {first}')
            k('s_mul_i32 s32, s29, 27'); k('s_add_u32 s32, s32, s30')
            k('s_mul_i32 s33, s7, 270'); k('s_add_u32 s32, s32, s33'); k('s_lshl_b32 s32, s32, 10'); k(f's_add_u32 s32, s32, {W2F}')
            k(f's_add_u32 s30, s28, {slot(first)}')
            k('s_mul_i32 s33, s30, 10240'); k('s_mul_i32 s29, s29, 5120'); k('s_add_u32 s33, s33, s29')
            for j in range(5):
                k('s_mov_b32 m0, s33')
                k(f'buffer_load_dwordx4 v{V_L16}, s[{WS}:{WS+3}], s32 offen sc1 lds')
                if j<4:
                    k(f's_add_u32 s32, s32, {54*1024}'); k('s_add_u32 s33, s33, 1024')
                log.append(('rf',first))
        def younger(idx): return len(log)-1-idx
        DEPTH=12
        bar={7:(None,15),11:(None,19),15:(15,23),19:(19,None),23:(23,None)}
        fr=[]
        for i in range(27):
            for ft in range(5):
                j=slot(i); va,imm=((vA,vB,vC)[j//6],(j%6)*10240)
                def rd(r,va=va,imm=imm,ft=ft): k(f'ds_read_b128 v[{r}:{r+3}], v{va} offset:{imm+ft*1024}')
                def mf(r,i=i,ft=ft):
                    c=ACC+4*ft; cs='0' if i==0 else f'v[{c}:{c+3}]'
                    k(f'v_mfma_f32_16x16x32_bf16 v[{c}:{c+3}], v[{r}:{r+3}], v[{HX+4*i}:{HX+4*i+3}], {cs}')
                d=dict(read=rd,mfma=mf)
                if ft==0:
                    d['vm']=(lambda i=i: younger(log.index(('h',i))))
                    if i in bar:
                        def pre(i=i):
                            need,fill=bar[i]
                            if need is not None:
                                tags=[n for n,x in enumerate(log) if x==('rf',need)]
                                k(f's_waitcnt vmcnt({younger(tags[-1])})')
                            k('s_barrier')
                            if fill is not None: refill(fill)
                        d['pre']=pre
                fr.append(d)
        self.frag_gemm(fr,WR,DEPTH,1)
        self.mark("f2.mm")
        k('s_barrier')
        nl=k.lab('nl')
        k('s_cmp_eq_u32 s12, 1'); k(f's_cbranch_scc1 {nl}')
        self.dma_lin_slice(WQF); self.dma_wkv()
        k(nl+':')
        self.reduce_pairs(ACC,T+9,L_RED)
        k('s_waitcnt lgkmcnt(0)')
        k('s_barrier')
        self.reduce_pairs_finish(ACC,T+9,HX)
        self.epilogue_res(ACC,T,X2B,0,stats=False,bias=BI,final=True)
        self.mark("f2.epi")

    def build(self):
        k=self.k
        self.prologue()
        self.mark0("p.start")
        self.x0_loads(24,144)
        nn=k.lab('nn2')
        k('s_cmp_lg_u32 s2, 0'); k(f's_cbranch_scc1 {nn}')
        k('s_cmp_lg_u32 s3, 5'); k(f's_cbranch_scc1 {nn}')
        k('s_waitcnt vmcnt(13)')
        k('v_add_u32 v201, 4096, v201'); k('v_or_b32 v201, 1, v201')
        k('s_mov_b64 exec, 1')
        k(f'buffer_store_dword v201, v200, s[{WS}:{WS+3}], 0 offen sc1')
        k('v_mov_b32 v200, 0')
        k('buffer_store_dword v201, v200, s[60:63], 0 offen sc1')
        k('s_mov_b64 exec, -1')
        k(nn+':')
        if 'cs.x' in os.environ.get('MARKS',''):
            k('s_waitcnt vmcnt(0)'); self.mark0("cs.x")
        self.dma_w160(P_WQ); self.dma_wkv()
        self.conv_issue(L_RED,self.CONV_A)
        self.tlb_warm()
        self.mark0("p.issued")
        LOOP='mega_layer'
        k(LOOP+':')
        self.phase_qkv(); self.stopat('qkv')
        self.phase_attn(); self.stopat('attn')
        self.phase_oproj(); self.stopat('oproj')
        self.phase_fc1(); self.stopat('fc1')
        self.phase_fc2(); self.stopat('fc2')
        k('s_cmp_eq_u32 s12, 1'); k(f's_cbranch_scc1 {self.END}')
        self.publish(5)
        self.wait(5)
        k('s_mov_b32 s12, 1'); k('s_add_u32 s13, s13, 5')
        k(f's_branch {LOOP}')
        k(self.END+':')
        if self.stamps:
            k('s_waitcnt vmcnt(0) lgkmcnt(0)')
            k(f'{self.clk} s[100:101]'); k('s_waitcnt lgkmcnt(0)')
            k('s_lshl_b32 s28, s2, 3'); k('s_add_u32 s28, s28, s3'); k('s_lshl_b32 s28, s28, 6'); k(f's_add_u32 s28, s28, {STAMP_OFF}')
            k('s_add_u32 s30, s86, s28'); k('s_addc_u32 s31, s87, 0')
            k('v_mov_b32 v24, 0')
            for i in range(13):
                k(f'v_mov_b32 v25, s{88+i}')
                k(f'global_store_dword v24, v25, s[30:31] offset:{4*i}')
        k('mega_kernel_exit:')
        k('s_endpgm')
        return k

def gen_init():
    k=Kern('init_kernel',vgpr=8,sgpr=24)
    k('s_cmp_ge_u32 s2, 1'); k('s_cbranch_scc1 init_kernel_end')
    k('s_load_dwordx2 s[4:5], s[0:1], 96')
    k('s_waitcnt lgkmcnt(0)')
    srd(k,8,4,4096,FLG)
    k('v_lshlrev_b32 v1, 4, v0')
    for i in range(4): k(f'v_mov_b32 v{2+i}, 0')
    k('buffer_store_dwordx4 v[2:5], v1, s[8:11], 0 offen')
    k('init_kernel_end:')
    k('s_endpgm')
    return k
```

```python
import sys, os
from k_mega import *
NAME='interleave_layers__grouped_kv_mqa__mixer_channel_mlp__prompt'
HEADER=open(f'cdna_kernels/{NAME}.s.ref').read().split('; Override launch geometry')[0]
DOC='''; ---------------------------------------------------------------------------------------------------------------
; ---------------------------------------------------------------------------------------------------------------'''
def build(stamps=False, stop=None):
    m=Mega(stamps,stop); k=m.build()
    out=[HEADER.rstrip('\n')]
    out.append(f'; @launch grid=(256,1,1) block=(512,1,1) lds={LDS_TOTAL}')
    out.append(DOC)
    out.append('.amdgcn_target "amdgcn-amd-amdhsa--gfx950"')
    for kk in (k,):
        t,n=kk.text(bool(os.environ.get('VERB')))
        print(f'{kk.name}: {len(t.splitlines())} lines, {n} nop states',file=sys.stderr)
        out.append(t)
    return '\n'.join(out)
if __name__=='__main__':
    dst=sys.argv[1]
    open(dst,'w').write(build(bool(os.environ.get('STAMPS')),os.environ.get('STOP')))
```

```python
import os, struct
from asmlib import *
from mlayout import *

def f2u(x): return struct.unpack('<I',struct.pack('<f',x))[0]
P_X,P_WQ,P_WK,P_WV,P_WO,P_W1,P_B1,P_W2,P_B2,P_OUT=64,66,68,70,72,76,78,80,82,84
WS=8
SA,SB,SC=16,20,24
OOB='0x40000000'
V_LANE,V_F,V_G,V_L16,V_L31,V_H,V_TR,V_RES,V_TOK,V_D=1,2,3,4,5,6,7,8,14,16
L_WKV=102400
L_RED=128000
L_KVR=148480
L_STAT=152576
L_CS=163136
L_NONCE=163776
L_BADF=163780
NONCE=FLG+2048+64
L_QL=102400
L_COMB=112640
L_OIMG=137216
L_ORED=102400
L_TOKST=153600
L_CS1=154112
LDS_TOTAL=160*1024
STAMP_OFF=100<<20
POLLW=7

def srd(k,d,p,size,off=0):
    k(f's_add_u32 s{d}, s{p}, {off}' if off else f's_mov_b32 s{d}, s{p}')
    k(f's_addc_u32 s{d+1}, s{p+1}, 0' if off else f's_mov_b32 s{d+1}, s{p+1}')
    k(f's_and_b32 s{d+1}, s{d+1}, 0xffff')
    k(f's_mov_b32 s{d+2}, {size}')
    k(f's_mov_b32 s{d+3}, 0x20000')

def sum_g(k,x,tmp):
    k(f'v_mov_b32 v{tmp}, v{x}')
    k(f'v_permlane16_swap_b32 v{x}, v{tmp}')
    k(f'v_add_f32 v{x}, v{x}, v{tmp}')
    k(f'v_mov_b32 v{tmp}, v{x}')
    k(f'v_permlane32_swap_b32 v{x}, v{tmp}')
    k(f'v_add_f32 v{x}, v{x}, v{tmp}')

KNAME='interleave_layers__grouped_kv_mqa__mixer_channel_mlp__prompt_kernel'
class Mega:
    def __init__(self, stamps=False, stop=None):
        self.k=Kern(KNAME,vgpr=256,sgpr=102)
        self.stamps=stamps; self.stop=stop; self.END='mega_kernel_end'
        self.mark_layer=int(os.environ.get('MARKL','1'))
        self.clk='s_memrealtime' if os.environ.get('RT') else 's_memtime'
    def mark(self,name):
        if not self.stamps: return
        ms=os.environ.get('MARKS','').split(',')
        if name not in ms: return
        i=ms.index(name)
        k=self.k
        k(f'{self.clk} s[100:101]')
        k('s_waitcnt lgkmcnt(0)')
        k(f's_cmp_eq_u32 s12, {self.mark_layer}')
        k(f's_cselect_b32 s{88+i}, s100, s{88+i}')
    def mark0(self,name):
        if not self.stamps: return
        ms=os.environ.get('MARKS','').split(',')
        if name not in ms: return
        i=ms.index(name); k=self.k
        k(f'{self.clk} s[100:101]'); k('s_waitcnt lgkmcnt(0)'); k(f's_mov_b32 s{88+i}, s100')
    def stopat(self,name):
        if self.stop==name:
            k=self.k
            k(f's_cmp_eq_u32 s12, {int(os.environ.get("STOPL","0"))}')
            k(f's_cbranch_scc1 {self.END}')

    def publish(self,j):
        k=self.k
        k('s_waitcnt vmcnt(0)')
        k('s_barrier')
        lab=k.lab('pub')
        k('s_cmp_lg_u32 s3, 0')
        k(f's_cbranch_scc1 {lab}')
        k(f's_add_u32 s28, s13, {j}')
        k('v_mov_b32 v22, s28')
        k('s_lshl_b32 s29, s6, 6'); k('s_lshl_b32 s30, s7, 2'); k('s_add_u32 s29, s29, s30')
        k('v_mov_b32 v21, s29')
        k('s_mov_b64 exec, 1')
        k(f'buffer_store_dword v22, v21, s[{WS}:{WS+3}], 0 offen offset:{FLG} sc1')
        k('s_mov_b64 exec, -1')
        k(lab+':')
    def wait(self,j,allwg=False,others=None):
        k=self.k
        lab=k.lab('w'); loop=k.lab('poll'); done=k.lab('pd')
        wide = allwg or others is not None
        k(f's_cmp_lg_u32 s3, {POLLW}')
        k(f's_cbranch_scc1 {lab}')
        k(f's_add_u32 s28, s13, {j}')
        if wide:
            k(f'v_lshrrev_b32 v22, 1, v{V_LANE}'); k('v_lshlrev_b32 v21, 6, v22')
            k(f'v_and_b32 v16, 1, v{V_LANE}'); k('v_lshl_add_u32 v21, v16, 4, v21')
            if others is not None:
                k(f's_add_u32 s29, s13, {others}')
                k('v_cmp_eq_u32 vcc, s6, v22')
                k('v_mov_b32 v23, s29'); k('v_mov_b32 v22, s28')
                k('v_cndmask_b32 v22, v23, v22, vcc')
            else: k('v_mov_b32 v22, s28')
        else:
            k(f'v_and_b32 v21, 7, v{V_LANE}'); k('v_lshlrev_b32 v21, 2, v21')
            k('s_lshl_b32 s29, s6, 6'); k('v_add_u32 v21, s29, v21')
            k('v_mov_b32 v22, s28')
        k('s_mov_b32 s30, 0')
        k(loop+':')
        if wide:
            k(f'buffer_load_dwordx4 v[16:19], v21, s[{WS}:{WS+3}], 0 offen offset:{FLG} sc1')
            k('s_waitcnt vmcnt(0)')
            for r in (16,17,18,19): k(f'v_sub_u32 v{r}, v{r}, v22')
            k('v_max_u32 v16, v16, v17'); k('v_max_u32 v18, v18, v19'); k('v_max_u32 v16, v16, v18')
        else:
            k(f'buffer_load_dword v16, v21, s[{WS}:{WS+3}], 0 offen offset:{FLG} sc1')
            k('s_waitcnt vmcnt(0)')
            k('v_sub_u32 v16, v16, v22')
        k('v_cmp_le_u32 vcc, 32, v16')
        k(f's_cbranch_vccz {done}')
        k('s_add_u32 s30, s30, 1')
        k(f's_cmp_lt_u32 s30, 0x40000')
        k(f's_cbranch_scc1 {loop}')
        k(done+':')
        k(lab+':')
        k('s_barrier')

    def dma_chunk160(self, s_srd, s_soff, s_m0):
        k=self.k
        for j in range(5):
            k(f's_mov_b32 m0, s{s_m0}')
            k(f'buffer_load_dwordx4 v{V_D+j}, s[{s_srd}:{s_srd+3}], s{s_soff} offen lds')
            if j<4: k(f's_add_u32 s{s_m0}, s{s_m0}, 1024')
    def dma_w160(self,ptr,skip_poller=False):
        k=self.k
        srd(k,SA,ptr,640*1280)
        nw=7 if skip_poller else 8
        end=k.lab('dw')
        if skip_poller:
            k(f's_cmp_eq_u32 s3, {POLLW}'); k(f's_cbranch_scc1 {end}')
        for t in range(3):
            lab=k.lab('wq')
            k(f's_add_u32 s28, s3, {nw*t}')
            if nw*t+nw>20:
                k('s_cmp_ge_u32 s28, 20'); k(f's_cbranch_scc1 {lab}')
            k('s_mul_i32 s29, s28, 40960'); k('s_mul_i32 s30, s28, 5120')
            self.dma_chunk160(SA,29,30)
            k(lab+':')
        k(end+':')
    def dma_wkv(self):
        k=self.k
        k('s_and_b32 s28, s7, 1'); k('s_cmp_eq_u32 s28, 0')
        k(f's_cselect_b32 s30, s{P_WK}, s{P_WV}'); k(f's_cselect_b32 s31, s{P_WK+1}, s{P_WV+1}')
        srd(k,SB,30,25600)
        for t in range(4):
            lab=k.lab('wk')
            k(f's_add_u32 s28, s3, {8*t}')
            if t==3:
                k('s_cmp_ge_u32 s28, 25'); k(f's_cbranch_scc1 {lab}')
            k('s_lshl_b32 s29, s28, 10'); k(f's_add_u32 s30, s29, {L_WKV}')
            k('s_mov_b32 m0, s30')
            k(f'buffer_load_dwordx4 v{V_L16}, s[{SB}:{SB+3}], s29 offen lds')
            k(lab+':')
    def l2_prefetch(self, s_srd, total, nwaves, wave0, vtmp, base_off=0):
        k=self.k
        per=(total//32+127)//128*128
        ninst=(per+8191)//8192
        pw=(ninst+nwaves-1)//nwaves
        k('s_and_b32 s28, s6, 3'); k('s_lshl_b32 s28, s28, 3'); k('s_add_u32 s28, s28, s7')
        k(f's_mul_i32 s28, s28, {per}')
        k(f's_sub_u32 s29, s3, {wave0}'); k(f's_mul_i32 s29, s29, {pw*8192}'); k('s_add_u32 s28, s28, s29')
        if base_off: k(f's_add_u32 s28, s28, {base_off}')
        k(f'v_lshlrev_b32 v{vtmp}, 7, v{V_LANE}')
        for n in range(pw):
            k(f'buffer_load_dword v{vtmp+1}, v{vtmp}, s[{s_srd}:{s_srd+3}], s28 offen')
            k('s_add_u32 s28, s28, 8192')
        return pw

    def prologue(self):
        k=self.k
        k('s_cmp_ge_u32 s2, 256')
        k(f's_cbranch_scc1 mega_kernel_exit')
        k('s_load_dwordx16 s[64:79], s[0:1], 0')
        k('s_load_dwordx4 s[80:83], s[0:1], 64')
        k('s_load_dwordx2 s[84:85], s[0:1], 80')
        k('s_load_dwordx2 s[86:87], s[0:1], 96')
        k('s_load_dwordx2 s[58:59], s[0:1], 88')
        if self.stamps: k(f'{self.clk} s[100:101]')
        k('v_lshrrev_b32 v24, 6, v0')
        k(f'v_and_b32 v{V_LANE}, 63, v0')
        k('v_readfirstlane_b32 s3, v24')
        k('s_and_b32 s4, s3, 3'); k('s_lshr_b32 s5, s3, 2')
        k('s_and_b32 s6, s2, 7'); k('s_lshl_b32 s6, s6, 2'); k('s_lshr_b32 s7, s2, 3'); k('s_and_b32 s7, s7, 3'); k('s_add_u32 s6, s6, s7'); k('s_lshr_b32 s7, s2, 5')
        k(f'v_and_b32 v{V_F}, 15, v{V_LANE}')
        k(f'v_lshrrev_b32 v{V_G}, 4, v{V_LANE}')
        k(f'v_lshlrev_b32 v{V_L16}, 4, v{V_LANE}')
        k(f'v_and_b32 v{V_L31}, 31, v{V_LANE}')
        k(f'v_lshrrev_b32 v{V_H}, 5, v{V_LANE}')
        k(f'v_lshrrev_b32 v24, 2, v{V_F}')
        k(f'v_and_b32 v25, 1, v{V_G}'); k('v_lshl_add_u32 v24, v25, 2, v24')
        k(f'v_lshrrev_b32 v25, 1, v{V_G}'); k('v_lshl_add_u32 v24, v25, 4, v24')
        k('v_mul_u32_u24 v24, 160, v24')
        k(f'v_and_b32 v25, 3, v{V_LANE}')
        k(f'v_lshl_add_u32 v{V_TR}, v25, 3, v24')
        k('s_lshl_b32 s28, s6, 6'); k('s_lshl_b32 s29, s4, 4'); k('s_add_u32 s28, s28, s29')
        k(f'v_add_u32 v{V_TOK}, s28, v{V_F}')
        k('s_mul_i32 s29, s7, 160')
        for j in range(5):
            k(f'v_add_u32 v24, {64*j}, v{V_LANE}')
            k('v_mul_u32_u24 v25, 6554, v24'); k('v_lshrrev_b32 v25, 16, v25')
            k('v_mul_u32_u24 v26, 10, v25'); k('v_sub_u32 v26, v24, v26')
            k('v_and_b32 v27, 0x13, v25')
            k('v_bfe_u32 v28, v25, 3, 1'); k('v_lshl_add_u32 v27, v28, 2, v27')
            k('v_bfe_u32 v28, v25, 2, 1'); k('v_lshl_add_u32 v27, v28, 3, v27')
            k('v_mul_u32_u24 v27, 1280, v27')
            k('v_lshl_add_u32 v27, v26, 4, v27')
            k(f'v_add_u32 v{V_D+j}, s29, v27')
        k('s_waitcnt lgkmcnt(0)')
        if self.stamps:
            k('s_mov_b32 s99, s100')
            for i in range(11): k(f's_mov_b32 s{88+i}, 0')
        srd(k,WS,86,WS_USED)
        k('s_mov_b32 s12, 0'); k('s_mov_b32 s13, 0')
        srd(k,60,58,256)
        nn=k.lab('nn')
        k('s_cmp_lg_u32 s2, 0'); k(f's_cbranch_scc1 {nn}')
        k('s_cmp_lg_u32 s3, 5'); k(f's_cbranch_scc1 {nn}')
        k(f'v_mov_b32 v200, {NONCE}')
        k(f'buffer_load_dword v201, v200, s[{WS}:{WS+3}], 0 offen sc1')
        k(nn+':')
        k('s_mul_i32 s40, s7, 7'); k('s_sub_u32 s28, s7, 6'); k('s_max_i32 s28, s28, 0'); k('s_sub_u32 s40, s40, s28')
        k('s_cmp_ge_u32 s7, 6'); k('s_cselect_b32 s41, 6, 7')
        k('s_add_u32 s40, s40, s3')

    def x0_loads(self,XF,T):
        k=self.k
        srd(k,SC,P_X,2048*1280)
        k('s_movk_i32 s28, 1280')
        k(f'v_mul_lo_u32 v{T}, v{V_TOK}, s28')
        k(f'v_lshl_add_u32 v{T+1}, v{V_G}, 4, v{T}')
        k('s_mul_i32 s29, s5, 640')
        k(f'v_add_u32 v{T+1}, s29, v{T+1}')
        if 'xlin' in os.environ.get('XP',''):
            k('s_lshl_b32 s28, s6, 2'); k('s_add_u32 s28, s28, s4'); k('s_mul_i32 s28, s28, 20'); k('s_mul_i32 s29, s5, 10'); k('s_add_u32 s28, s28, s29'); k('s_lshl_b32 s28, s28, 10')
            for i in range(10):
                k(f'buffer_load_dwordx4 v[{XF+4*i}:{XF+4*i+3}], v{V_L16}, s[{SC}:{SC+3}], s28 offen offset:{(i%4)*1024}')
                if i%4==3: k('s_add_u32 s28, s28, 4096')
        else:
          for i in range(10):
            k(f'buffer_load_dwordx4 v[{XF+4*i}:{XF+4*i+3}], v{T+1}, s[{SC}:{SC+3}], 0 offen offset:{i*64}')
        k(f'v_lshl_add_u32 v{T+1}, v{V_G}, 3, v{T}')
        k('s_mul_i32 s29, s7, 160'); k('s_mul_i32 s30, s5, 96'); k('s_add_u32 s29, s29, s30')
        k(f'v_add_u32 v{T+1}, s29, v{T+1}')
        for j in range(3):
            k(f'buffer_load_dwordx2 v[{V_RES+2*j}:{V_RES+2*j+1}], v{T+1}, s[{SC}:{SC+3}], 0 offen offset:{j*32}')

    def conv_issue(self, stage, kinds):
        k=self.k
        done=k.lab('cvd'); go=k.lab('cvg')
        total=sum(x[5] for x in kinds)
        k('s_mov_b32 s50, 0')
        k('s_lshl_b32 s28, s3, 8'); k('s_add_u32 s28, s28, s2')
        k(f's_cmp_ge_u32 s28, {total}'); k(f's_cbranch_scc1 {done}')
        labs=[k.lab('cvk') for _ in kinds]
        acc=0
        for idx,x in enumerate(kinds[:-1]):
            acc+=x[5]
            k(f's_cmp_lt_u32 s28, {acc}'); k(f's_cbranch_scc1 {labs[idx]}')
        k(f's_branch {labs[-1]}')
        acc=0
        for idx,(name,ptr,rows,stride,ncg,njobs,dst,layout) in enumerate(kinds):
            k(labs[idx]+':')
            if acc: k(f's_sub_u32 s28, s28, {acc}')
            magic=-(-65536//ncg)
            assert all((j*magic)>>16==j//ncg for j in range(njobs))
            k(f's_mul_i32 s29, s28, {magic}'); k('s_lshr_b32 s29, s29, 16')
            k(f's_mul_i32 s30, s29, {ncg}'); k('s_sub_u32 s30, s28, s30')
            srd(k,SA,ptr,rows*stride)
            k(f's_movk_i32 s31, {stride}')
            k(f's_mov_b32 s50, {1 if layout=="w1" else 2}')
            if layout=='w1':
                k('s_mul_i32 s51, s30, 80'); k('s_lshl_b32 s32, s29, 1'); k('s_add_u32 s51, s51, s32')
                k('s_mov_b32 s57, 0')
            else:
                KS=rows//32
                k(f's_mul_i32 s51, s30, {4*KS}'); k('s_add_u32 s51, s51, s29')
                k(f's_mov_b32 s57, {KS*1024}')
            k('s_lshl_b32 s51, s51, 10'); k(f's_add_u32 s51, s51, {dst}')
            k(f's_branch {go}')
            acc+=njobs
        k(go+':')
        k(f'v_lshrrev_b32 v200, 3, v{V_LANE}'); k('v_mul_lo_u32 v200, v200, s31')
        k(f'v_and_b32 v201, 7, v{V_LANE}'); k('v_lshl_add_u32 v200, v201, 4, v200')
        k('s_lshl_b32 s32, s29, 5'); k('s_mul_i32 s32, s32, s31'); k('s_lshl_b32 s33, s30, 7'); k('s_add_u32 s32, s32, s33')
        k('s_lshl_b32 s33, s31, 3')
        k('s_lshl_b32 s34, s3, 12'); k(f's_add_u32 s34, s34, {stage}')
        for i in range(4):
            k('s_mov_b32 m0, s34')
            k(f'buffer_load_dwordx4 v200, s[{SA}:{SA+3}], s32 offen lds')
            if i<3:
                k('s_add_u32 s32, s32, s33'); k('s_add_u32 s34, s34, 1024')
        k(done+':')
    def conv_finish(self,T,stage):
        k=self.k
        done=k.lab('cfd'); w2=k.lab('cf2')
        k('s_cmp_eq_u32 s50, 0'); k(f's_cbranch_scc1 {done}')
        k('s_lshl_b32 s34, s3, 12'); k(f's_add_u32 s34, s34, {stage}')
        k(f'v_lshrrev_b32 v{T}, 2, v{V_F}')
        k(f'v_and_b32 v{T+1}, 3, v{V_LANE}')
        k('s_cmp_eq_u32 s50, 2'); k(f's_cbranch_scc1 {w2}')
        k(f'v_lshl_add_u32 v{T}, v{V_H}, 3, v{T}'); k(f'v_lshlrev_b32 v{T}, 7, v{T}')
        k(f'v_and_b32 v{T+2}, 1, v{V_G}'); k(f'v_lshl_add_u32 v{T}, v{T+2}, 5, v{T}')
        k(f'v_lshl_add_u32 v{T}, v{T+1}, 3, v{T}'); k(f'v_add_u32 v{T}, s34, v{T}')
        fr=[(p,u) for p in range(2) for u in range(2)]
        for n,(p,u) in enumerate(fr):
            b=T+4+4*n
            k(f'ds_read_b64_tr_b16 v[{b}:{b+1}], v{T} offset:{u*2048+p*64}')
            k(f'ds_read_b64_tr_b16 v[{b+2}:{b+3}], v{T} offset:{u*2048+p*64+512}')
        k('s_waitcnt lgkmcnt(0)')
        for n,(p,u) in enumerate(fr):
            b=T+4+4*n
            k(f's_add_u32 s32, s51, {(p*40+u)*1024}')
            k(f'buffer_store_dwordx4 v[{b}:{b+3}], v{V_L16}, s[{WS}:{WS+3}], s32 offen sc1')
        k(f's_branch {done}')
        k(w2+':')
        k(f'v_lshl_add_u32 v{T}, v{V_G}, 3, v{T}'); k(f'v_lshlrev_b32 v{T}, 7, v{T}')
        k(f'v_lshl_add_u32 v{T}, v{T+1}, 3, v{T}'); k(f'v_add_u32 v{T}, s34, v{T}')
        for n in range(4):
            b=T+4+4*n
            k(f'ds_read_b64_tr_b16 v[{b}:{b+1}], v{T} offset:{n*32}')
            k(f'ds_read_b64_tr_b16 v[{b+2}:{b+3}], v{T} offset:{n*32+512}')
        k('s_waitcnt lgkmcnt(0)')
        k('s_mov_b32 s32, s51')
        for n in range(4):
            b=T+4+4*n
            k(f'buffer_store_dwordx4 v[{b}:{b+3}], v{V_L16}, s[{WS}:{WS+3}], s32 offen sc1')
            if n<3: k('s_add_u32 s32, s32, s57')
        k(done+':')
    CONV_A=[('wo',P_WO,640,1280,10,200,WOF,'a16'),('wq',P_WQ,640,1280,10,200,WQF,'a16')]
    CONV_B=[('w1',P_W1,640,3456,27,540,W1F,'w1'),('w2',P_W2,1728,1280,10,540,W2F,'a16')]

    def dma_lin_slice(self, src_const, waves=8):
        k=self.k
        k(f's_mul_i32 s28, s7, 102400'); k(f's_add_u32 s28, s28, {src_const}')
        k('s_lshl_b32 s29, s3, 10'); k('s_add_u32 s28, s28, s29')
        for n in range(13):
            lab=None
            if n==12:
                lab=k.lab('dl'); k('s_cmp_ge_u32 s3, 4'); k(f's_cbranch_scc1 {lab}')
            k('s_mov_b32 m0, s29')
            k(f'buffer_load_dwordx4 v{V_L16}, s[{WS}:{WS+3}], s28 offen sc1 lds')
            if n<12:
                k('s_add_u32 s28, s28, 8192'); k('s_add_u32 s29, s29, 8192')
            if lab: k(lab+':')

    def tlb_warm(self):
        k=self.k
        lab=k.lab('tw')
        k('s_cmp_lg_u32 s3, 6'); k(f's_cbranch_scc1 {lab}')
        k(f'v_lshlrev_b32 v200, 19, v{V_LANE}')
        k(f'buffer_load_dword v201, v200, s[{WS}:{WS+3}], 0 offen')
        for ptr,size in ((P_W1,640*3456),(P_W2,1728*1280),(P_OUT,2048*1280),(P_WO,640*1280),(P_B1,3456),(P_B2,1280)):
            srd(k,SA,ptr,size)
            k(f'buffer_load_dword v201, v200, s[{SA}:{SA+3}], 0 offen')
        k(lab+':')

    def frag_gemm(self, frags, WR, depth, nread, after=None):
        k=self.k
        n=len(frags); slots=depth+1
        reg=lambda i: WR+(i%slots)*4
        def issue(i):
            if frags[i].get('pre'): frags[i]['pre']()
            frags[i]['read'](reg(i))
        for i in range(min(depth,n)): issue(i)
        for i in range(n):
            if i+depth<n: issue(i+depth)
            rem=min(depth,n-1-i)
            w=f's_waitcnt lgkmcnt({rem*nread})'
            vm=frags[i].get('vm')
            if vm is not None:
                v=vm() if callable(vm) else vm
                if v is not None: w+=f' vmcnt({v})'
            k(w)
            frags[i]['mfma'](reg(i))
            if after and i in after: after[i]()

    def diag_stats(self,SX,SQ,S0,S1,tmp):
        k=self.k
        k(f'v_and_b32 v{tmp}, 3, v{V_LANE}')
        k(f'v_mov_b32 v{S1}, v{SQ}')
        for r in (1,2,3):
            k(f'v_cmp_eq_u32 vcc, {r}, v{tmp}'); k(f'v_cndmask_b32 v{S1}, v{S1}, v{SQ+r}, vcc')
        k(f'v_mov_b32 v{S0}, v{SX}')
    def diag_mask_on(self):
        k=self.k
        k('s_mov_b32 exec_lo, 0x00f0000f'); k('s_mov_b32 exec_hi, 0xf0000f00')
    def reduce_pairs(self, ACC, tmp, base):
        k=self.k
        k('s_mul_i32 s28, s4, 5120'); k(f's_add_u32 s28, s28, {base}')
        k(f'v_add_u32 v{tmp}, s28, v{V_L16}')
        l1=k.lab('r1'); l2=k.lab('r2')
        k('s_cmp_eq_u32 s5, 1'); k(f's_cbranch_scc1 {l1}')
        for ft in (3,4): k(f'ds_write_b128 v{tmp}, v[{ACC+4*ft}:{ACC+4*ft+3}] offset:{ft*1024}')
        k(f's_branch {l2}')
        k(l1+':')
        for ft in (0,1,2): k(f'ds_write_b128 v{tmp}, v[{ACC+4*ft}:{ACC+4*ft+3}] offset:{ft*1024}')
        for i in range(8): k(f'v_mov_b32 v{ACC+i}, v{ACC+12+i}')
        k(l2+':')
    def reduce_pairs_finish(self, ACC, tmp, T):
        k=self.k
        k('s_mul_i32 s29, s5, 3072')
        k(f'v_add_u32 v{tmp}, s29, v{tmp}')
        for j in range(3): k(f'ds_read_b128 v[{T+4*j}:{T+4*j+3}], v{tmp} offset:{j*1024}')
        k('s_waitcnt lgkmcnt(0)')
        for i in range(12): k(f'v_add_f32 v{ACC+i}, v{ACC+i}, v{T+i}')

    def tile_offsets(self, sbase):
        k=self.k
        k('s_lshl_b32 s28, s6, 2'); k('s_add_u32 s28, s28, s4'); k('s_mul_i32 s28, s28, 20480')
        k('s_mul_i32 s29, s7, 5'); k('s_mul_i32 s30, s5, 3'); k('s_add_u32 s29, s29, s30')
        for j in range(3):
            k(f's_add_u32 s30, s29, {j}'); k('s_lshl_b32 s30, s30, 9')
            k(f's_add_u32 s{sbase+j}, s30, s28')

    def x_loads(self,XF,n,base_const,layer_stride,KS,per_half):
        k=self.k
        k('s_lshl_b32 s28, s6, 2'); k('s_add_u32 s28, s28, s4'); k(f's_mul_i32 s28, s28, {KS}'); k(f's_mul_i32 s29, s5, {per_half}'); k('s_add_u32 s28, s28, s29')
        k('s_lshl_b32 s28, s28, 10')
        if layer_stride:
            k(f's_mul_i32 s29, s12, {layer_stride}'); k('s_add_u32 s28, s28, s29')
        k(f's_add_u32 s28, s28, {base_const}')
        for i in range(n):
            k(f'buffer_load_dwordx4 v[{XF+4*i}:{XF+4*i+3}], v{V_L16}, s[{WS}:{WS+3}], s28 offen offset:{(i%4)*1024} sc1')
            if i%4==3: k('s_add_u32 s28, s28, 4096')

    def phase_qkv(self):
        k=self.k
        XF,WR,ACC,CSA,KVA,KVC,ONES,T=24,64,96,116,124,132,140,144
        SX,SQ=176,180
        l0=k.lab('x0'); l1=k.lab('x1')
        for i in range(4): k(f'v_mov_b32 v{ONES+i}, 0x3f803f80')
        k('s_cmp_eq_u32 s12, 0'); k(f's_cbranch_scc1 {l0}')
        self.x_loads(XF,10,X2B,0,20,10)
        k(f's_branch {l1}')
        k(l0+':')
        k('s_waitcnt vmcnt(0)')
        self.conv_finish(T,L_RED)
        np_=k.lab('np'); pl=k.lab('npl'); pd=k.lab('npd')
        k(f's_cmp_lg_u32 s3, {POLLW}'); k(f's_cbranch_scc1 {np_}')
        k('v_mov_b32 v200, 0'); k('s_mov_b32 s30, 0')
        k(pl+':')
        k('buffer_load_dword v201, v200, s[60:63], 0 offen sc1')
        k('s_waitcnt vmcnt(0)')
        k('v_cmp_eq_u32 vcc, 0, v201')
        k(f's_cbranch_vccz {pd}')
        k('s_add_u32 s30, s30, 1'); k('s_cmp_lt_u32 s30, 0x40000'); k(f's_cbranch_scc1 {pl}')
        k(pd+':')
        k(f'v_mov_b32 v200, {L_NONCE}')
        k('ds_write_b32 v200, v201')
        k('s_waitcnt lgkmcnt(0)')
        k(np_+':')
        k('s_barrier')
        k(f'v_mov_b32 v200, {L_NONCE}')
        k('ds_read_b32 v201, v200')
        k('s_waitcnt lgkmcnt(0)')
        k('v_readfirstlane_b32 s13, v201')
        k(l1+':')
        self.mark("q.start")
        vA,vC=T,T+1
        S0,S1=T+2,T+3
        k('s_mul_i32 s28, s5, 51200')
        k(f'v_add_u32 v{vA}, s28, v{V_TR}')
        k('s_lshl_b32 s29, s4, 5')
        k(f'v_add_u32 v{vC}, s29, v{vA}')
        def stat_mfma(i,ft):
            X=f'v[{XF+4*i}:{XF+4*i+3}]'
            if ft==0:
                cs='0' if i==0 else f'v[{SX}:{SX+3}]'
                k(f'v_mfma_f32_16x16x32_bf16 v[{SX}:{SX+3}], v[{ONES}:{ONES+3}], {X}, {cs}')
            if ft==2:
                cs='0' if i==0 else f'v[{SQ}:{SQ+3}]'
                k(f'v_mfma_f32_16x16x32_bf16 v[{SQ}:{SQ+3}], {X}, {X}, {cs}')
        def mk(with_cs):
            fr=[]
            if not with_cs:
                k('s_mul_i32 s28, s5, 10240'); k(f'v_add_u32 v{vA}, s28, v{V_L16}'); k(f'v_add_u32 v{vC}, 61440, v{vA}')
                for i in range(10):
                    for ft in range(5):
                        va,imm=(vA,ft*20480+i*1024) if ft<3 else (vC,(ft-3)*20480+i*1024)
                        def rd(r,va=va,imm=imm): k(f'ds_read_b128 v[{r}:{r+3}], v{va} offset:{imm}')
                        def mf(r,i=i,ft=ft):
                            c=ACC+4*ft; cs='0' if i==0 else f'v[{c}:{c+3}]'
                            k(f'v_mfma_f32_16x16x32_bf16 v[{c}:{c+3}], v[{r}:{r+3}], v[{XF+4*i}:{XF+4*i+3}], {cs}')
                            stat_mfma(i,ft)
                        fr.append(dict(read=rd,mfma=mf,vm=(9-i) if ft==0 else None))
                self.frag_gemm(fr,WR,7,1)
                return
            for i in range(10):
                for ft in range(5):
                    def rd(r,i=i,ft=ft):
                        k(f'ds_read_b64_tr_b16 v[{r}:{r+1}], v{vA} offset:{i*5120+ft*32}')
                        k(f'ds_read_b64_tr_b16 v[{r+2}:{r+3}], v{vA} offset:{i*5120+1280+ft*32}')
                    def mf(r,i=i,ft=ft):
                        c=ACC+4*ft; cs='0' if i==0 else f'v[{c}:{c+3}]'
                        k(f'v_mfma_f32_16x16x32_bf16 v[{c}:{c+3}], v[{r}:{r+3}], v[{XF+4*i}:{XF+4*i+3}], {cs}')
                        if ft==4:
                            cs='0' if i==0 else f'v[{CSA+4}:{CSA+7}]'
                            k(f'v_mfma_f32_16x16x32_bf16 v[{CSA+4}:{CSA+7}], v[{r}:{r+3}], v[{ONES}:{ONES+3}], {cs}')
                        stat_mfma(i,ft)
                    fr.append(dict(read=rd,mfma=mf))
                def rd(r,i=i):
                    k(f'ds_read_b64_tr_b16 v[{r}:{r+1}], v{vC} offset:{i*5120}')
                    k(f'ds_read_b64_tr_b16 v[{r+2}:{r+3}], v{vC} offset:{i*5120+1280}')
                def mf(r,i=i):
                    cs='0' if i==0 else f'v[{CSA}:{CSA+3}]'
                    k(f'v_mfma_f32_16x16x32_bf16 v[{CSA}:{CSA+3}], v[{r}:{r+3}], v[{ONES}:{ONES+3}], {cs}')
                fr.append(dict(read=rd,mfma=mf))
            self.frag_gemm(fr,WR,7,2)
        m1=k.lab('m1'); m2=k.lab('m2')
        k('s_cmp_eq_u32 s12, 0'); k(f's_cbranch_scc0 {m1}')
        mk(True)
        k('s_mul_i32 s28, s5, 320'); k(f's_add_u32 s28, s28, {L_CS}')
        k(f'v_lshl_add_u32 v{T+7}, v{V_G}, 4, s28')
        k('s_lshl_b32 s29, s4, 6'); k(f'v_add_u32 v{T+8}, s29, v{T+7}')
        k(f'ds_write_b128 v{T+8}, v[{CSA}:{CSA+3}]')
        k(f'ds_write_b128 v{T+7}, v[{CSA+4}:{CSA+7}] offset:256')
        k(f's_branch {m2}')
        k(m1+':')
        mk(False)
        k(m2+':')
        self.mark("q.main")
        nokv=k.lab('nokv')
        k('s_lshr_b32 s28, s7, 1'); k('s_cmp_lg_u32 s28, s4'); k(f's_cbranch_scc1 {nokv}')
        k(f'v_lshrrev_b32 v{T+4}, 2, v{V_F}'); k(f'v_lshl_add_u32 v{T+4}, v{V_G}, 3, v{T+4}'); k(f'v_mul_u32_u24 v{T+4}, 40, v{T+4}')
        k(f'v_and_b32 v{T+5}, 3, v{V_LANE}'); k(f'v_lshl_add_u32 v{T+4}, v{T+5}, 3, v{T+4}')
        k('s_mul_i32 s28, s5, 12800'); k(f's_add_u32 s28, s28, {L_WKV}'); k(f'v_add_u32 v{T+4}, s28, v{T+4}')
        isv=k.lab('isv'); kvd=k.lab('kvd')
        k('s_and_b32 s28, s7, 1'); k('s_cmp_eq_u32 s28, 1'); k(f's_cbranch_scc1 {isv}')
        for variant in (0,1):
            if variant==1: k(isv+':')
            fr=[]
            for i in range(10):
                for u in range(2):
                    def rd(r,i=i,u=u):
                        k(f'ds_read_b64_tr_b16 v[{r}:{r+1}], v{T+4} offset:{i*1280+u*32}')
                        k(f'ds_read_b64_tr_b16 v[{r+2}:{r+3}], v{T+4} offset:{i*1280+160+u*32}')
                    def mf(r,i=i,u=u,variant=variant):
                        c=KVA+4*u; cc=KVC+4*u
                        cs='0' if i==0 else f'v[{c}:{c+3}]'; cs2='0' if i==0 else f'v[{cc}:{cc+3}]'
                        X=f'v[{XF+4*i}:{XF+4*i+3}]'; W=f'v[{r}:{r+3}]'; O_=f'v[{ONES}:{ONES+3}]'
                        if variant==0:
                            k(f'v_mfma_f32_16x16x32_bf16 v[{c}:{c+3}], {W}, {X}, {cs}'); k(f'v_mfma_f32_16x16x32_bf16 v[{cc}:{cc+3}], {W}, {O_}, {cs2}')
                        else:
                            k(f'v_mfma_f32_16x16x32_bf16 v[{c}:{c+3}], {X}, {W}, {cs}'); k(f'v_mfma_f32_16x16x32_bf16 v[{cc}:{cc+3}], {O_}, {W}, {cs2}')
                    fr.append(dict(read=rd,mfma=mf))
            self.frag_gemm(fr,WR,7,2)
            if variant==0: k(f's_branch {kvd}')
        k(kvd+':')
        k(f'v_add_u32 v{T+5}, {L_KVR}, v{V_L16}')
        a=k.lab('ka'); b_=k.lab('kb')
        k('s_cmp_eq_u32 s5, 1'); k(f's_cbranch_scc1 {a}')
        k(f'ds_write_b128 v{T+5}, v[{KVA+4}:{KVA+7}] offset:2048'); k(f'ds_write_b128 v{T+5}, v[{KVC+4}:{KVC+7}] offset:3072')
        k(f's_branch {b_}')
        k(a+':')
        k(f'ds_write_b128 v{T+5}, v[{KVA}:{KVA+3}]'); k(f'ds_write_b128 v{T+5}, v[{KVC}:{KVC+3}] offset:1024')
        for i in range(4):
            k(f'v_mov_b32 v{KVA+i}, v{KVA+4+i}'); k(f'v_mov_b32 v{KVC+i}, v{KVC+4+i}')
        k(b_+':')
        k(nokv+':')
        self.mark("q.mm")
        self.diag_stats(SX,SQ,S0,S1,T+6)
        k('s_lshl_b32 s28, s4, 8'); k('s_lshl_b32 s29, s5, 7'); k('s_add_u32 s28, s28, s29'); k(f's_add_u32 s28, s28, {L_STAT}')
        k(f'v_lshl_add_u32 v{T+6}, v{V_F}, 3, s28')
        self.diag_mask_on()
        k(f'ds_write_b64 v{T+6}, v[{S0}:{S1}]')
        k('s_mov_b64 exec, -1')
        self.reduce_pairs(ACC,T+9,L_RED)
        k('s_waitcnt lgkmcnt(0)')
        k('s_barrier')
        Z=XF
        k('s_lshl_b32 s28, s4, 8'); k(f's_add_u32 s28, s28, {L_STAT}')
        k(f'v_lshl_add_u32 v{T+6}, v{V_F}, 3, s28')
        k(f'ds_read_b64 v[{T+10}:{T+11}], v{T+6}'); k(f'ds_read_b64 v[{T+12}:{T+13}], v{T+6} offset:128')
        k('s_mul_i32 s28, s5, 192'); k(f's_add_u32 s28, s28, {L_CS}')
        k(f'v_lshl_add_u32 v{T+7}, v{V_G}, 4, s28')
        CS0=Z+12
        for j in range(3):
            k(f'ds_read_b128 v[{CS0+8*j}:{CS0+8*j+3}], v{T+7} offset:{j*64}')
            k(f'ds_read_b128 v[{CS0+8*j+4}:{CS0+8*j+7}], v{T+7} offset:{320+j*64}')
        self.reduce_pairs_finish(ACC,T+9,Z)
        MEAN,RSTD=T+14,T+15
        k(f'v_add_f32 v{T+10}, v{T+10}, v{T+12}'); k(f'v_add_f32 v{T+11}, v{T+11}, v{T+13}')
        k(f'v_mul_f32 v{MEAN}, {hex(f2u(1/640))}, v{T+10}'); k(f'v_mul_f32 v{T+11}, {hex(f2u(1/640))}, v{T+11}')
        k(f'v_fma_f32 v{T+11}, -v{MEAN}, v{MEAN}, v{T+11}'); k(f'v_max_f32 v{T+11}, 0, v{T+11}')
        k(f'v_add_f32 v{T+11}, {hex(f2u(1e-5))}, v{T+11}'); k(f'v_rsq_f32 v{RSTD}, v{T+11}')
        k(f'v_mul_f32 v{MEAN}, v{MEAN}, v{RSTD}')
        nokv2=k.lab('nokv2')
        k('s_lshr_b32 s28, s7, 1'); k('s_cmp_lg_u32 s28, s4'); k(f's_cbranch_scc1 {nokv2}')
        KW=WR
        k('s_lshl_b32 s28, s5, 11'); k(f's_add_u32 s28, s28, {L_KVR}')
        k(f'v_add_u32 v{T+5}, s28, v{V_L16}')
        k(f'ds_read_b128 v[{KW}:{KW+3}], v{T+5}'); k(f'ds_read_b128 v[{KW+4}:{KW+7}], v{T+5} offset:1024')
        k('s_waitcnt lgkmcnt(0)')
        for i in range(4):
            k(f'v_add_f32 v{KVA+i}, v{KVA+i}, v{KW+i}'); k(f'v_add_f32 v{KVC+i}, v{KVC+i}, v{KW+4+i}')
        k('s_lshl_b32 s30, s6, 6'); k('s_lshl_b32 s31, s4, 4'); k('s_add_u32 s30, s30, s31')
        k('s_lshr_b32 s31, s30, 5'); k('s_mul_i32 s31, s31, 3584')
        k(f's_mul_i32 s32, s12, {KV_D}'); k('s_add_u32 s31, s31, s32'); k(f's_add_u32 s31, s31, {KVB[0]}')
        k('s_lshr_b32 s32, s30, 4'); k('s_and_b32 s32, s32, 1')
        isv2=k.lab('isv2')
        k('s_and_b32 s28, s7, 1'); k('s_cmp_eq_u32 s28, 1'); k(f's_cbranch_scc1 {isv2}')
        for i in range(4):
            k(f'v_mul_f32 v{KVA+i}, v{KVA+i}, v{RSTD}'); k(f'v_fma_f32 v{KVA+i}, -v{MEAN}, v{KVC+i}, v{KVA+i}')
        k('s_lshl_b32 s28, s5, 2'); k(f'v_add_u32 v{T+6}, s28, v{V_G}')
        k(f'v_cmp_eq_u32 vcc, 5, v{T+6}')
        for i in range(4): k(f'v_cndmask_b32 v{KVA+i}, v{KVA+i}, 0, vcc')
        k(f'v_cvt_pk_bf16_f32 v{KVA}, v{KVA}, v{KVA+1}'); k(f'v_cvt_pk_bf16_f32 v{KVA+1}, v{KVA+2}, v{KVA+3}')
        k('s_lshl_b32 s28, s32, 4'); k(f'v_add_u32 v{T+7}, s28, v{V_F}')
        k(f'v_lshrrev_b32 v{T+8}, 1, v{T+6}'); k(f'v_lshlrev_b32 v{T+8}, 9, v{T+8}')
        k(f'v_lshl_add_u32 v{T+8}, v{T+7}, 4, v{T+8}')
        k(f'v_and_b32 v{T+9}, 1, v{T+6}'); k(f'v_lshl_add_u32 v{T+8}, v{T+9}, 3, v{T+8}')
        k(f'v_subrev_u32 v{T+9}, 4, v{T+6}'); k(f'v_lshlrev_b32 v{T+9}, 8, v{T+9}')
        k(f'v_lshl_add_u32 v{T+9}, v{T+7}, 3, v{T+9}'); k(f'v_add_u32 v{T+9}, 3072, v{T+9}')
        k(f'v_cmp_gt_u32 vcc, 4, v{T+6}'); k(f'v_cndmask_b32 v{T+8}, v{T+9}, v{T+8}, vcc')
        k(f'v_cmp_gt_u32 vcc, 6, v{T+6}'); k(f'v_mov_b32 v{T+9}, {OOB}'); k(f'v_cndmask_b32 v{T+8}, v{T+9}, v{T+8}, vcc')
        k(f'buffer_store_dwordx2 v[{KVA}:{KVA+1}], v{T+8}, s[{WS}:{WS+3}], s31 offen sc1')
        k(f's_branch {nokv2}')
        k(isv2+':')
        k('s_lshl_b32 s28, s4, 8'); k(f's_add_u32 s28, s28, {L_STAT}')
        k(f'v_lshl_add_u32 v{T+6}, v{V_G}, 5, s28')
        Y=WR+8
        k(f'ds_read_b128 v[{Y}:{Y+3}], v{T+6}'); k(f'ds_read_b128 v[{Y+4}:{Y+7}], v{T+6} offset:16')
        k(f'ds_read_b128 v[{Y+8}:{Y+11}], v{T+6} offset:128'); k(f'ds_read_b128 v[{Y+12}:{Y+15}], v{T+6} offset:144')
        k('s_waitcnt lgkmcnt(0)')
        for i in range(4):
            s_,q_=Y+2*i,Y+2*i+1
            k(f'v_add_f32 v{s_}, v{s_}, v{s_+8}'); k(f'v_add_f32 v{q_}, v{q_}, v{q_+8}')
            k(f'v_mul_f32 v{s_}, {hex(f2u(1/640))}, v{s_}'); k(f'v_mul_f32 v{q_}, {hex(f2u(1/640))}, v{q_}')
            k(f'v_fma_f32 v{q_}, -v{s_}, v{s_}, v{q_}'); k(f'v_max_f32 v{q_}, 0, v{q_}'); k(f'v_add_f32 v{q_}, {hex(f2u(1e-5))}, v{q_}')
            k(f'v_rsq_f32 v{q_}, v{q_}')
            k(f'v_fma_f32 v{KVA+i}, -v{s_}, v{KVC+i}, v{KVA+i}')
            k(f'v_mul_f32 v{KVA+i}, v{KVA+i}, v{q_}')
        k('s_lshl_b32 s28, s5, 4'); k(f'v_add_u32 v{T+6}, s28, v{V_F}')
        k(f'v_cmp_eq_u32 vcc, 20, v{T+6}')
        for i in range(4): k(f'v_cndmask_b32 v{KVA+i}, v{KVA+i}, 1.0, vcc')
        k(f'v_cmp_lt_u32 vcc, 20, v{T+6}')
        for i in range(4): k(f'v_cndmask_b32 v{KVA+i}, v{KVA+i}, 0, vcc')
        k(f'v_cvt_pk_bf16_f32 v{KVA}, v{KVA}, v{KVA+1}'); k(f'v_cvt_pk_bf16_f32 v{KVA+1}, v{KVA+2}, v{KVA+3}')
        k('s_lshl_b32 s28, s32, 10'); k('s_add_u32 s28, s28, 1024')
        k(f'v_and_b32 v{T+7}, 1, v{V_G}'); k(f'v_lshlrev_b32 v{T+7}, 9, v{T+7}')
        k(f'v_lshl_add_u32 v{T+7}, v{T+6}, 4, v{T+7}')
        k(f'v_lshrrev_b32 v{T+8}, 1, v{V_G}'); k(f'v_lshl_add_u32 v{T+7}, v{T+8}, 3, v{T+7}')
        k(f'v_add_u32 v{T+7}, s28, v{T+7}')
        k(f'buffer_store_dwordx2 v[{KVA}:{KVA+1}], v{T+7}, s[{WS}:{WS+3}], s31 offen sc1')
        k(nokv2+':')
        k(f'v_mul_f32 v{T+16}, {hex(f2u(QSCALE))}, v{RSTD}'); k(f'v_mul_f32 v{T+17}, {hex(f2u(QSCALE))}, v{MEAN}')
        k('s_lshl_b32 s28, s4, 4'); k(f'v_add_u32 v{T+18}, s28, v{V_F}'); k(f'v_mul_u32_u24 v{T+18}, 160, v{T+18}')
        k(f'v_lshl_add_u32 v{T+18}, v{V_G}, 3, v{T+18}')
        k('s_mul_i32 s28, s5, 96'); k(f's_add_u32 s28, s28, {L_QL}'); k(f'v_add_u32 v{T+18}, s28, v{T+18}')
        for j in range(3):
            if j==2:
                q3=k.lab('q3'); k('s_cmp_eq_u32 s5, 1'); k(f's_cbranch_scc1 {q3}')
            for i in range(4):
                r=ACC+4*j+i
                k(f'v_add_f32 v{CS0+8*j+i}, v{CS0+8*j+i}, v{CS0+8*j+4+i}')
                k(f'v_mul_f32 v{r}, v{r}, v{T+16}'); k(f'v_fma_f32 v{r}, -v{T+17}, v{CS0+8*j+i}, v{r}')
            k(f'v_cvt_pk_bf16_f32 v{ACC+4*j}, v{ACC+4*j}, v{ACC+4*j+1}'); k(f'v_cvt_pk_bf16_f32 v{ACC+4*j+1}, v{ACC+4*j+2}, v{ACC+4*j+3}')
            k(f'ds_write_b64 v{T+18}, v[{ACC+4*j}:{ACC+4*j+1}] offset:{j*32}')
            if j==2: k(q3+':')
        k('s_waitcnt lgkmcnt(0)')
        self.mark("q.epi")
        self.publish(1)
        self.mark("q.pub")

    def phase_attn(self):
        k=self.k
        D=4; SL=14
        Q1=[24,30]; Q2=[28,34]
        S=[36,52]; O=[68,84]; P=100
        KB=108
        K1=lambda s: KB+s*SL
        V=lambda s: KB+s*SL+4
        K2=lambda s: KB+s*SL+12
        T=KB+D*SL
        VL8=T; NEG=[176,192]
        k(f'v_mul_u32_u24 v{T+1}, 160, v{V_L31}')
        k('s_mul_i32 s28, s4, 40'); k(f's_add_u32 s28, s28, {L_QL}')
        k(f'v_add_u32 v{T+1}, s28, v{T+1}')
        k(f'v_lshl_add_u32 v{T+2}, v{V_H}, 4, v{T+1}')
        for q in range(2):
            k(f'ds_read_b64 v[{Q1[q]}:{Q1[q]+1}], v{T+2} offset:{q*5120}')
            k(f'ds_read_b64 v[{Q1[q]+2}:{Q1[q]+3}], v{T+2} offset:{q*5120+8}')
            k(f'ds_read_b64 v[{Q2[q]}:{Q2[q]+1}], v{T+1} offset:{q*5120+32}')
        k(f'v_lshlrev_b32 v{VL8}, 3, v{V_LANE}')
        k('s_waitcnt lgkmcnt(0)')
        k(f'v_cmp_eq_u32 vcc, 0, v{V_H}')
        for q in range(2):
            for i in range(2): k(f'v_cndmask_b32 v{Q2[q]+i}, 0, v{Q2[q]+i}, vcc')
        self.mark("a.dma")
        VFA,VF=T+6,T+7
        k(f'v_bfe_u32 v{VFA}, v{V_LANE}, 3, 2'); k(f'v_lshlrev_b32 v{VFA}, 6, v{VFA}')
        k(f'v_and_b32 v{VF}, 7, v{V_LANE}'); k(f'v_lshl_add_u32 v{VFA}, v{VF}, 2, v{VFA}')
        k('s_add_u32 s38, s13, 1')
        k('s_lshr_b32 s39, s6, 2')
        def spin_group(sg):
            lp=k.lab('sg'); dn=k.lab('sgd')
            k(f's_lshl_b32 s28, s{sg}, 8'); k('s_mov_b32 s30, 0')
            k(lp+':')
            k(f'buffer_load_dword v{VF}, v{VFA}, s[{WS}:{WS+3}], s28 offen offset:{FLG} sc1')
            k('s_waitcnt vmcnt(0)')
            k(f'v_subrev_u32 v{VF}, s38, v{VF}')
            k(f'v_cmp_le_u32 vcc, 32, v{VF}')
            k(f's_cbranch_vccz {dn}')
            k('s_sleep 2')
            k('s_add_u32 s30, s30, 1'); k('s_cmp_lt_u32 s30, 0x40000'); k(f's_cbranch_scc1 {lp}')
            k(dn+':')
        k(f'v_mov_b32 v{T+8}, {L_BADF}'); k(f'v_mov_b32 v{T+9}, 0'); k(f'ds_write_b32 v{T+8}, v{T+9}')
        k('s_mov_b32 s49, 0')
        k('s_waitcnt lgkmcnt(0)')
        pw=k.lab('pw')
        k(f's_cmp_lg_u32 s3, {POLLW}'); k(f's_cbranch_scc1 {pw}')
        spin_group(39)
        k(pw+':')
        k('s_barrier')
        self.mark("a.wait")
        def ld(slot):
            k(f'buffer_load_dwordx4 v[{K1(slot)}:{K1(slot)+3}], v{V_L16}, s[{WS}:{WS+3}], s32 offen sc1')
            k(f'buffer_load_dwordx2 v[{K2(slot)}:{K2(slot)+1}], v{VL8}, s[{WS}:{WS+3}], s32 offen offset:3072 sc1')
            k(f'buffer_load_dwordx4 v[{V(slot)}:{V(slot)+3}], v{V_L16}, s[{WS}:{WS+3}], s32 offen offset:1024 sc1')
            k(f'buffer_load_dwordx4 v[{V(slot)+4}:{V(slot)+7}], v{V_L16}, s[{WS}:{WS+3}], s32 offen offset:2048 sc1')
            k('s_add_u32 s32, s32, 7168')
        def run_loop(exact,prefetch):
            def qk1(q,s):
                c = f'v[{NEG[q]}:{NEG[q]+15}]' if exact else '0'
                k(f'v_mfma_f32_32x32x16_bf16 v[{S[q]}:{S[q]+15}], v[{K1(s)}:{K1(s)+3}], v[{Q1[q]}:{Q1[q]+3}], {c}')
            def qk2(q,s): k(f'v_mfma_f32_32x32x8_bf16 v[{S[q]}:{S[q]+15}], v[{K2(s)}:{K2(s)+1}], v[{Q2[q]}:{Q2[q]+1}], v[{S[q]}:{S[q]+15}]')
            def pv(q,s,hf): k(f'v_mfma_f32_32x32x16_bf16 v[{O[q]}:{O[q]+15}], v[{V(s)+4*hf}:{V(s)+4*hf+3}], v[{P+4*hf}:{P+4*hf+3}], v[{O[q]}:{O[q]+15}]')
            def ex(q,a):
                for i in range(a,a+4): k(f'v_exp_f32 v{S[q]+i}, v{S[q]+i}')
            def cv(q,a):
                k(f'v_cvt_pk_bf16_f32 v{P+a//2}, v{S[q]+a}, v{S[q]+a+1}')
                k(f'v_cvt_pk_bf16_f32 v{P+a//2+1}, v{S[q]+a+2}, v{S[q]+a+3}')
            k(f's_mul_i32 s33, s12, {KV_D}'); k(f's_add_u32 s33, s33, {KVB[0]}')
            k('s_mul_i32 s28, s5, 3584'); k('s_add_u32 s33, s33, s28')
            k(f's_mul_i32 s28, s39, {8*3584}'); k('s_add_u32 s32, s33, s28')
            k(f's_add_u32 s33, s33, {64*3584}')
            def fload():
                k('s_add_u32 s45, s45, 1'); k('s_and_b32 s45, s45, 7'); k('s_lshl_b32 s46, s45, 8')
                k(f'buffer_load_dword v{VF}, v{VFA}, s[{WS}:{WS+3}], s46 offen offset:{FLG} sc1')
            def fcheck():
                ok=k.lab('fok')
                k(f'v_subrev_u32 v{VF}, s38, v{VF}')
                k(f'v_cmp_le_u32 vcc, 32, v{VF}')
                k(f's_cbranch_vccz {ok}')
                spin_group(44)
                k(ok+':')
                k('s_cmp_ge_u32 s32, s33'); k(f's_cselect_b32 s28, {64*3584}, 0'); k('s_sub_u32 s32, s32, s28')
            k('s_mov_b32 s45, s39')
            fload(); k('s_mov_b32 s44, s45')
            for t in range(D-1): ld(t)
            for q in range(2):
                for i in range(16): k(f'v_mov_b32 v{O[q]+i}, 0')
            for i in range(4,8): k(f'v_mov_b32 v{P+i}, 0')
            for i in range(4,8): k(f'v_mov_b32 v{V(D-1)+i}, 0')
            k(f's_waitcnt vmcnt({4*(D-2)})')
            qk1(0,0); qk2(0,0)
            k('s_nop 7')
            spf = prefetch and 'spf' in os.environ.get('XP','')
            def body(dma):
                for t in range(D):
                    s=t; sn=(t+1)%D; sp=(t-1)%D
                    qk1(1,s); ex(0,0); pv(1,sp,1)
                    if t==1: fcheck()
                    if t==2:
                        fload_pending=True
                        fload()
                    if dma:
                        k('s_min_u32 m0, s35, 101376')
                        k('s_add_u32 s37, s36, m0')
                        k(f'buffer_load_dwordx4 v{V_L16}, s[{WS}:{WS+3}], s37 offen sc1 lds')
                        k('s_add_u32 s35, s35, 8192')
                    ld(sp)
                    if spf and dma:
                        for n in range(4): k(f's_load_dword s57, s[62:63], {(4*t+n)*128}')
                    if t==2: k('s_mov_b32 s44, s45')
                    ex(0,4); cv(0,0); qk2(1,s); cv(0,4); ex(0,8); pv(0,s,0); ex(0,12); cv(0,8); cv(0,12)
                    nv=4*(D-2)+(2 if dma else 0)+(1 if t in (2,3) else 0)
                    if dma and t==0: nv-=1
                    k(f's_waitcnt vmcnt({nv})')
                    qk1(0,sn); ex(1,0); pv(0,s,1); ex(1,4); cv(1,0); qk2(0,sn); cv(1,4); ex(1,8); pv(1,s,0); ex(1,12); cv(1,8); cv(1,12)
            if spf:
                k('s_and_b32 s28, s6, 3'); k('s_lshl_b32 s28, s28, 3'); k('s_add_u32 s28, s28, s7'); k('s_lshl_b32 s28, s28, 3'); k('s_add_u32 s28, s28, s3')
                k('s_lshl_b32 s28, s28, 13'); k(f's_add_u32 s28, s28, {W1F}')
                k('s_add_u32 s62, s86, s28'); k('s_addc_u32 s63, s87, 0')
            k('s_mov_b32 s34, 0')
            L1=k.lab('al'); k(L1+':')
            body(False)
            k('s_add_u32 s34, s34, 1'); k('s_cmp_lt_u32 s34, 4'); k(f's_cbranch_scc1 {L1}')
            if prefetch:
                nw=k.lab('nw')
                k('s_cmp_lg_u32 s12, 0'); k(f's_cbranch_scc1 {nw}')
                lw=k.lab('lw'); lwd=k.lab('lwd')
                k(f'v_lshrrev_b32 v208, 1, v{V_LANE}'); k('v_lshlrev_b32 v208, 6, v208')
                k(f'v_and_b32 v209, 1, v{V_LANE}'); k('v_lshl_add_u32 v208, v209, 4, v208')
                k('s_mov_b32 s30, 0')
                k(lw+':')
                k(f'buffer_load_dwordx4 v[212:215], v208, s[{WS}:{WS+3}], 0 offen offset:{FLG} sc1')
                k('s_waitcnt vmcnt(0)')
                for r in (212,213,214,215): k(f'v_subrev_u32 v{r}, s38, v{r}')
                k('v_max_u32 v212, v212, v213'); k('v_max_u32 v214, v214, v215'); k('v_max_u32 v212, v212, v214')
                k('v_cmp_le_u32 vcc, 32, v212')
                k(f's_cbranch_vccz {lwd}')
                k('s_add_u32 s30, s30, 1'); k('s_cmp_lt_u32 s30, 0x40000'); k(f's_cbranch_scc1 {lw}')
                k(lwd+':')
                k(nw+':')
                k('s_lshl_b32 s35, s3, 10')
                k(f's_mul_i32 s36, s7, 102400'); k(f's_add_u32 s36, s36, {WOF}')
            L2=k.lab('bl'); k(L2+':')
            body(prefetch)
            if spf: k('s_add_u32 s62, s62, 2048'); k('s_addc_u32 s63, s63, 0')
            k('s_add_u32 s34, s34, 1'); k('s_cmp_lt_u32 s34, 8'); k(f's_cbranch_scc1 {L2}')
            if spf: k('s_waitcnt lgkmcnt(0)')
            pv(1,D-1,1)
            k('s_waitcnt vmcnt(0)')
        run_loop(False,True)
        self.mark("a.loop")
        COMBINE=k.lab('combine'); FALLBACK=k.lab('fallback')
        k(COMBINE+':')
        k('s_nop 7'); k('s_nop 7')
        c1=k.lab('c1'); c2=k.lab('c2')
        k('s_mul_i32 s28, s3, 3072'); k(f's_add_u32 s28, s28, {L_COMB}')
        k(f'v_add_u32 v{T+1}, s28, v{V_L16}')
        k('s_xor_b32 s29, s3, 4'); k('s_mul_i32 s29, s29, 3072'); k(f's_add_u32 s29, s29, {L_COMB}')
        k(f'v_add_u32 v{T+2}, s29, v{V_L16}')
        k('s_cmp_eq_u32 s5, 1'); k(f's_cbranch_scc1 {c1}')
        for r in range(3): k(f'ds_write_b128 v{T+1}, v[{O[1]+4*r}:{O[1]+4*r+3}] offset:{r*1024}')
        k(f's_branch {c2}')
        k(c1+':')
        for r in range(3): k(f'ds_write_b128 v{T+1}, v[{O[0]+4*r}:{O[0]+4*r+3}] offset:{r*1024}')
        for i in range(12): k(f'v_mov_b32 v{O[0]+i}, v{O[1]+i}')
        k(c2+':')
        k('s_waitcnt lgkmcnt(0)')
        k('s_barrier')
        for r in range(3): k(f'ds_read_b128 v[{S[1]+4*r}:{S[1]+4*r+3}], v{T+2} offset:{r*1024}')
        k('s_waitcnt lgkmcnt(0)')
        self.mark("a.comb")
        Oq=O[0]
        for i in range(12): k(f'v_add_f32 v{Oq+i}, v{Oq+i}, v{S[1]+i}')
        k(f'v_mov_b32 v{T+3}, v{Oq+8}'); k(f'v_mov_b32 v{T+4}, v{Oq+8}')
        k(f'v_permlane32_swap_b32 v{T+3}, v{T+4}')
        k(f'v_add_f32 v{T+3}, abs(v{Oq}), abs(v{Oq+1})')
        for i in range(2,12): k(f'v_add_f32 v{T+3}, abs(v{Oq+i}), v{T+3}')
        k(f's_mov_b32 s28, {hex(f2u(2.0**-30))}'); k(f's_mov_b32 s29, {hex(f2u(2.0**60))}'); k(f's_mov_b32 s30, {hex(f2u(2.0**120))}')
        k(f'v_cmp_nle_f32 s[44:45], s28, v{T+4}')
        k(f'v_cmp_nge_f32 s[46:47], s29, v{T+4}')
        k(f'v_cmp_ngt_f32 vcc, s30, v{T+3}')
        k('s_or_b64 s[44:45], s[44:45], s[46:47]'); k('s_or_b64 vcc, vcc, s[44:45]')
        okl=k.lab('okl')
        k(f's_cbranch_vccz {okl}')
        k(f'v_mov_b32 v{T+8}, {L_BADF}'); k(f'v_mov_b32 v{T+9}, 1'); k(f'ds_write_b32 v{T+8}, v{T+9}')
        k(okl+':')
        k(f'v_rcp_f32 v{T+4}, v{T+4}')
        for i in range(12): k(f'v_mul_f32 v{Oq+i}, v{Oq+i}, v{T+4}')
        PK=S[0]
        for p in range(6): k(f'v_cvt_pk_bf16_f32 v{PK+p}, v{Oq+2*p}, v{Oq+2*p+1}')
        k('s_mul_i32 s28, s4, 5')
        k(f'v_add_u32 v{T+5}, s28, v{V_H}')
        k(f'v_lshrrev_b32 v{T+6}, 4, v{V_L31}'); k('s_lshl_b32 s29, s5, 1'); k(f'v_add_u32 v{T+6}, s29, v{T+6}')
        k(f'v_mul_u32_u24 v{T+6}, 2560, v{T+6}'); k(f'v_lshl_add_u32 v{T+6}, v{V_F}, 4, v{T+6}'); k(f'v_add_u32 v{T+6}, {L_OIMG}, v{T+6}')
        for pc in range(3):
            g_=T+7
            if pc==0: k(f'v_mov_b32 v{g_}, v{T+5}')
            elif pc==1: k(f'v_add_u32 v{g_}, 2, v{T+5}')
            else:
                k(f'v_mov_b32 v{g_}, s28'); k(f'v_add_u32 v{g_}, 4, v{g_}')
            k(f'v_lshrrev_b32 v{T+8}, 1, v{g_}'); k(f'v_lshlrev_b32 v{T+8}, 8, v{T+8}')
            k(f'v_and_b32 v{T+9}, 1, v{g_}'); k(f'v_lshl_add_u32 v{T+8}, v{T+9}, 3, v{T+8}')
            k(f'v_add_u32 v{T+8}, v{T+8}, v{T+6}')
            if pc==2:
                k('s_mov_b32 exec_hi, 0')
            k(f'ds_write_b64 v{T+8}, v[{PK+2*pc}:{PK+2*pc+1}]')
            if pc==2: k('s_mov_b64 exec, -1')
        k('s_waitcnt lgkmcnt(0)')
        k('s_barrier')
        k(f'v_mov_b32 v{T+8}, {L_BADF}'); k(f'ds_read_b32 v{T+9}, v{T+8}')
        k('s_waitcnt lgkmcnt(0)')
        k(f'v_readfirstlane_b32 s28, v{T+9}')
        k('s_lshl_b32 s29, s49, 1'); k('s_cmp_gt_u32 s28, s29')
        k(f's_cbranch_scc1 {FALLBACK}')
        k(f's_mul_i32 s31, s12, {OF_D}'); k(f's_add_u32 s31, s31, {OFB[0]}')
        k('s_mul_i32 s28, s6, 81920'); k('s_add_u32 s31, s31, s28'); k('s_mul_i32 s28, s7, 2560'); k('s_add_u32 s31, s31, s28')
        for rnd in range(2):
            lab=k.lab('oc')
            if rnd==1:
                k('s_cmp_ge_u32 s3, 2'); k(f's_cbranch_scc1 {lab}')
            k('s_lshl_b32 s28, s3, 6'); k(f's_add_u32 s28, s28, {512*rnd}')
            k(f'v_add_u32 v{T+5}, s28, v{V_LANE}')
            k(f'v_lshlrev_b32 v{T+6}, 4, v{T+5}'); k(f'v_add_u32 v{T+6}, {L_OIMG}, v{T+6}')
            k(f'ds_read_b128 v[{PK}:{PK+3}], v{T+6}')
            k(f'v_mul_u32_u24 v{T+7}, 410, v{T+5}'); k(f'v_lshrrev_b32 v{T+7}, 16, v{T+7}')
            k(f'v_mul_u32_u24 v{T+8}, 160, v{T+7}'); k(f'v_sub_u32 v{T+8}, v{T+5}, v{T+8}')
            k(f'v_mul_u32_u24 v{T+7}, 20480, v{T+7}'); k(f'v_lshl_add_u32 v{T+7}, v{T+8}, 4, v{T+7}')
            k('s_waitcnt lgkmcnt(0)')
            k(f'buffer_store_dwordx4 v[{PK}:{PK+3}], v{T+7}, s[{WS}:{WS+3}], s31 offen sc1')
            k(lab+':')
        self.mark("a.epi")
        self.publish(2)
        self.mark("a.pub")
        AFTER=k.lab('after'); k(f's_branch {AFTER}')
        k(FALLBACK+':')
        k('s_barrier')
        def kvptr():
            k(f's_mul_i32 s32, s12, {KV_D}'); k(f's_add_u32 s32, s32, {KVB[0]}')
            k('s_mul_i32 s28, s5, 3584'); k('s_add_u32 s32, s32, s28')
        def mq1(q,c): k(f'v_mfma_f32_32x32x16_bf16 v[{S[q]}:{S[q]+15}], v[{K1(0)}:{K1(0)+3}], v[{Q1[q]}:{Q1[q]+3}], {c}')
        def mq2(q): k(f'v_mfma_f32_32x32x8_bf16 v[{S[q]}:{S[q]+15}], v[{K2(0)}:{K2(0)+1}], v[{Q2[q]}:{Q2[q]+1}], v[{S[q]}:{S[q]+15}]')
        MX=[T+10,T+11]
        for q in range(2): k(f'v_mov_b32 v{MX[q]}, 0xff800000')
        kvptr(); k('s_mov_b32 s34, 0')
        l1=k.lab('fb1'); k(l1+':')
        ld(0); k('s_waitcnt vmcnt(0)')
        for q in range(2):
            mq1(q,'0'); mq2(q)
        for q in range(2):
            for i in range(0,16,2): k(f'v_max3_f32 v{MX[q]}, v{S[q]+i}, v{S[q]+i+1}, v{MX[q]}')
        k('s_add_u32 s34, s34, 1'); k('s_cmp_lt_u32 s34, 32'); k(f's_cbranch_scc1 {l1}')
        for q in range(2):
            k(f'v_mov_b32 v{T+12}, v{MX[q]}'); k(f'v_permlane32_swap_b32 v{MX[q]}, v{T+12}'); k(f'v_max_f32 v{MX[q]}, v{MX[q]}, v{T+12}')
        k('s_lshl_b32 s28, s3, 9'); k(f's_add_u32 s28, s28, {L_COMB}')
        k(f'v_lshl_add_u32 v{T+12}, v{V_LANE}, 3, s28')
        k(f'ds_write_b64 v{T+12}, v[{MX[0]}:{MX[1]}]')
        k('s_waitcnt lgkmcnt(0)'); k('s_barrier')
        k('s_xor_b32 s28, s3, 4'); k('s_lshl_b32 s28, s28, 9'); k(f's_add_u32 s28, s28, {L_COMB}')
        k(f'v_lshl_add_u32 v{T+12}, v{V_LANE}, 3, s28')
        k(f'ds_read_b64 v[{T+14}:{T+15}], v{T+12}')
        k('s_waitcnt lgkmcnt(0)'); k('s_barrier')
        for q in range(2): k(f'v_max_f32 v{MX[q]}, v{MX[q]}, v{T+14+q}')
        for q in range(2):
            for i in range(16): k(f'v_sub_f32 v{NEG[q]+i}, 0, v{MX[q]}')
            for i in range(16): k(f'v_mov_b32 v{O[q]+i}, 0')
        kvptr(); k('s_mov_b32 s34, 0')
        l2=k.lab('fb2'); k(l2+':')
        ld(0); k('s_waitcnt vmcnt(0)')
        for q in range(2):
            mq1(q,f'v[{NEG[q]}:{NEG[q]+15}]'); mq2(q)
            for i in range(16): k(f'v_exp_f32 v{S[q]+i}, v{S[q]+i}')
            for p in range(8): k(f'v_cvt_pk_bf16_f32 v{P+p}, v{S[q]+2*p}, v{S[q]+2*p+1}')
            for hf in range(2):
                k(f'v_mfma_f32_32x32x16_bf16 v[{O[q]}:{O[q]+15}], v[{V(0)+4*hf}:{V(0)+4*hf+3}], v[{P+4*hf}:{P+4*hf+3}], v[{O[q]}:{O[q]+15}]')
        k('s_add_u32 s34, s34, 1'); k('s_cmp_lt_u32 s34, 32'); k(f's_cbranch_scc1 {l2}')
        k('s_mov_b32 s49, 1')
        k(f's_branch {COMBINE}')
        k(AFTER+':')

    def phase_oproj(self):
        k=self.k
        XF,WR,ACC,T=24,64,96,144
        self.wait(2)
        self.mark("o.wait")
        self.x_loads(XF,10,OFB[0],OF_D,20,10)
        vA,vC=T,T+1
        k('s_mul_i32 s28, s5, 10240'); k(f'v_add_u32 v{vA}, s28, v{V_L16}'); k(f'v_add_u32 v{vC}, 61440, v{vA}')
        fr=[]
        for i in range(10):
            for ft in range(5):
                va,imm=(vA,ft*20480+i*1024) if ft<3 else (vC,(ft-3)*20480+i*1024)
                def rd(r,va=va,imm=imm): k(f'ds_read_b128 v[{r}:{r+3}], v{va} offset:{imm}')
                def mf(r,i=i,ft=ft):
                    c=ACC+4*ft; cs='0' if i==0 else f'v[{c}:{c+3}]'
                    k(f'v_mfma_f32_16x16x32_bf16 v[{c}:{c+3}], v[{r}:{r+3}], v[{XF+4*i}:{XF+4*i+3}], {cs}')
                fr.append(dict(read=rd,mfma=mf,vm=(9-i) if ft==0 else None))
        self.frag_gemm(fr,WR,7,1)
        self.mark("o.mm")
        self.reduce_pairs(ACC,T+9,L_ORED)
        k('s_waitcnt lgkmcnt(0)')
        k('s_barrier')
        self.reduce_pairs_finish(ACC,T+9,XF)
        self.mark("o.red")
        self.epilogue_res(ACC,T,X1B[0],X1_D,stats=True,bias=None,final=False)
        self.mark("o.epi")
        self.publish(3)
        self.mark("o.pub")
        self.fc1_early_w()

    def epilogue_res(self,ACC,T,dst,dst_d,stats,bias,final):
        k=self.k
        self.tile_offsets(44)
        if dst_d:
            k(f's_mul_i32 s28, s12, {dst_d}'); k(f's_add_u32 s28, s28, {dst}')
        else: k(f's_mov_b32 s28, {dst}')
        for j in range(3): k(f's_add_u32 s{44+j}, s{44+j}, s28')
        k('s_mov_b32 s47, 0xffff0000')
        VD=T+15
        k(f'v_lshrrev_b32 v{VD}, 1, v{V_G}'); k(f'v_lshlrev_b32 v{VD}, 8, v{VD}'); k(f'v_lshl_add_u32 v{VD}, v{V_F}, 4, v{VD}')
        k(f'v_and_b32 v{T+14}, 1, v{V_G}'); k(f'v_lshl_add_u32 v{VD}, v{T+14}, 3, v{VD}')
        S0,S1=T+10,T+11
        if stats:
            k(f'v_mov_b32 v{S0}, 0'); k(f'v_mov_b32 v{S1}, 0'); k(f'v_mov_b32 v{T+12}, 0x3f803f80')
        skip=k.lab('e3')
        for j in range(3):
            if j==2:
                k('s_cmp_eq_u32 s5, 1'); k(f's_cbranch_scc1 {skip}')
            r=ACC+4*j
            k(f'v_lshlrev_b32 v{T}, 16, v{V_RES+2*j}'); k(f'v_and_b32 v{T+1}, s47, v{V_RES+2*j}')
            k(f'v_lshlrev_b32 v{T+2}, 16, v{V_RES+2*j+1}'); k(f'v_and_b32 v{T+3}, s47, v{V_RES+2*j+1}')
            for i in range(4): k(f'v_add_f32 v{r+i}, v{r+i}, v{T+i}')
            if bias is not None:
                k(f'v_lshlrev_b32 v{T}, 16, v{bias+2*j}'); k(f'v_and_b32 v{T+1}, s47, v{bias+2*j}')
                k(f'v_lshlrev_b32 v{T+2}, 16, v{bias+2*j+1}'); k(f'v_and_b32 v{T+3}, s47, v{bias+2*j+1}')
                for i in range(4): k(f'v_add_f32 v{r+i}, v{r+i}, v{T+i}')
            k(f'v_cvt_pk_bf16_f32 v{V_RES+2*j}, v{r}, v{r+1}'); k(f'v_cvt_pk_bf16_f32 v{V_RES+2*j+1}, v{r+2}, v{r+3}')
            if final:
                fl=k.lab('fin'); fd=k.lab('fd')
                k('s_cmp_eq_u32 s12, 1'); k(f's_cbranch_scc1 {fl}')
                k(f'buffer_store_dwordx2 v[{V_RES+2*j}:{V_RES+2*j+1}], v{VD}, s[{WS}:{WS+3}], s{44+j} offen sc1')
                k(f's_branch {fd}')
                k(fl+':')
                k(f'buffer_store_dwordx2 v[{V_RES+2*j}:{V_RES+2*j+1}], v{T+20}, s[{SC}:{SC+3}], 0 offen offset:{j*32}')
                k(fd+':')
            else:
                k(f'buffer_store_dwordx2 v[{V_RES+2*j}:{V_RES+2*j+1}], v{VD}, s[{WS}:{WS+3}], s{44+j} offen sc1')
            if stats:
                k(f'v_dot2c_f32_bf16 v{S0}, v{V_RES+2*j}, v{T+12}'); k(f'v_dot2c_f32_bf16 v{S1}, v{V_RES+2*j}, v{V_RES+2*j}')
                k(f'v_dot2c_f32_bf16 v{S0}, v{V_RES+2*j+1}, v{T+12}'); k(f'v_dot2c_f32_bf16 v{S1}, v{V_RES+2*j+1}, v{V_RES+2*j+1}')
        k(skip+':')
        if stats:
            sum_g(k,S0,T+13); sum_g(k,S1,T+13)
            k(f'v_lshlrev_b32 v{T+13}, 3, v{V_F}')
            k('s_lshl_b32 s28, s6, 4'); k('s_lshl_b32 s29, s7, 1'); k('s_add_u32 s28, s28, s29'); k('s_add_u32 s28, s28, s5')
            k('s_lshl_b32 s28, s28, 9'); k('s_lshl_b32 s29, s4, 7'); k('s_add_u32 s28, s28, s29')
            k(f's_mul_i32 s29, s12, {ST_D}'); k('s_add_u32 s28, s28, s29'); k(f's_add_u32 s28, s28, {STB[0]}')
            k(f'v_cmp_eq_u32 vcc, 0, v{V_G}'); k(f'v_mov_b32 v{T+14}, {OOB}'); k(f'v_cndmask_b32 v{T+13}, v{T+14}, v{T+13}, vcc')
            k(f'buffer_store_dwordx2 v[{S0}:{S1}], v{T+13}, s[{WS}:{WS+3}], s28 offen sc1')

    def w2_chunk_dma(self, e_expr_sgpr):
        k=self.k; e=e_expr_sgpr
        def head():
            k(f's_lshr_b32 s53, s{e}, 1'); k(f's_and_b32 s54, s{e}, 1')
            k('s_mul_i32 s54, s54, 27'); k('s_add_u32 s54, s54, s53')
            k('s_mul_i32 s55, s7, 270'); k('s_add_u32 s54, s54, s55'); k('s_lshl_b32 s54, s54, 10'); k(f's_add_u32 s54, s54, {W2F}')
            k(f's_mul_i32 s55, s{e}, 5120')
        def one(j):
            if j==0: head()
            k('s_mov_b32 m0, s55')
            k(f'buffer_load_dwordx4 v{V_L16}, s[{WS}:{WS+3}], s54 offen sc1 lds')
            k(f's_add_u32 s54, s54, {54*1024}'); k('s_add_u32 s55, s55, 1024')
        return [lambda j=j: one(j) for j in range(5)]

    def fc1_early_w(self):
        k=self.k
        lab=k.lab('ew')
        k('s_cmp_ge_u32 s3, s41'); k(f's_cbranch_scc1 {lab}')
        k('s_mul_i32 s42, s40, 40960'); k(f's_add_u32 s42, s42, {W1F}')
        for s in range(self.F1A): self.f1_wload(s)
        k(lab+':')
    F1A=int(os.environ.get('F1A','12'))
    def f1_wreg(self,s): return 96+4*s
    def f1_wload(self,s):
        k=self.k; r=self.f1_wreg(s)
        k(f'buffer_load_dwordx4 v[{r}:{r+3}], v{V_L16}, s[{WS}:{WS+3}], s42 offen offset:{(s%4)*1024} sc1')
        if s%4==3: k('s_add_u32 s42, s42, 4096')

    def gelu_group_scalar(self,A,a,MR,CSV,B1F,TT,KC,vaddr,s_h):
        o=[]; PK=TT+4
        R=[A+4*a+i for i in range(4)]; t=[TT+i for i in range(4)]
        for i in range(4): o.append(f'v_fma_f32 v{t[i]}, -v{MR}, v{CSV+4*a+i}, v{B1F+4*a+i}')
        for i in range(4): o.append(f'v_fma_f32 v{R[i]}, v{R[i]}, v{MR+1}, v{t[i]}')
        for i in range(4): o.append(f'v_mul_f32 v{t[i]}, v{R[i]}, v{R[i]}')
        for i in range(4): o.append(f'v_fma_f32 v{t[i]}, v{t[i]}, v{KC+2}, v{KC}')
        for i in range(4): o.append(f'v_mul_f32 v{t[i]}, v{t[i]}, v{R[i]}')
        for i in range(4): o.append(f'v_exp_f32 v{t[i]}, v{t[i]}')
        for i in range(4): o.append(f'v_add_f32 v{t[i]}, 1.0, v{t[i]}')
        for i in range(4): o.append(f'v_rcp_f32 v{t[i]}, v{t[i]}')
        for i in range(4): o.append(f'v_mul_f32 v{R[i]}, v{R[i]}, v{t[i]}')
        o+= [f'v_cvt_pk_bf16_f32 v{PK}, v{R[0]}, v{R[1]}', f'v_cvt_pk_bf16_f32 v{PK+1}, v{R[2]}, v{R[3]}']
        o.append(f'buffer_store_dwordx2 v[{PK}:{PK+1}], v{vaddr}, s[{WS}:{WS+3}], s{s_h} offen offset:{a*256} sc1')
        return o
    def gelu_group(self,A,a,MR,CSV,B1F,TT,KC,vaddr,s_h):
        P=lambda r: f'v[{r}:{r+1}]'
        KC0,KC1,KONE=KC,KC+2,KC+4
        r0,r1=A+4*a,A+4*a+2
        t=[TT,TT+2]; PK=TT+4
        o=[]
        for e in range(2): o.append(f'v_pk_fma_f32 {P(t[e])}, {P(MR)}, {P(CSV+4*a+2*e)}, {P(B1F+4*a+2*e)} op_sel_hi:[0,1,1] neg_lo:[1,0,0] neg_hi:[1,0,0]')
        for e,r in enumerate((r0,r1)): o.append(f'v_pk_fma_f32 {P(r)}, {P(r)}, {P(MR)}, {P(t[e])} op_sel:[0,1,0] op_sel_hi:[1,1,1]')
        for e,r in enumerate((r0,r1)): o.append(f'v_pk_mul_f32 {P(t[e])}, {P(r)}, {P(r)}')
        for e,r in enumerate((r0,r1)): o.append(f'v_pk_fma_f32 {P(t[e])}, {P(t[e])}, {P(KC1)}, {P(KC0)}')
        for e,r in enumerate((r0,r1)): o.append(f'v_pk_mul_f32 {P(t[e])}, {P(t[e])}, {P(r)}')
        for e in range(2): o+= [f'v_exp_f32 v{t[e]}, v{t[e]}', f'v_exp_f32 v{t[e]+1}, v{t[e]+1}']
        for e in range(2): o.append(f'v_pk_add_f32 {P(t[e])}, {P(t[e])}, {P(KONE)}')
        for e in range(2): o+= [f'v_rcp_f32 v{t[e]}, v{t[e]}', f'v_rcp_f32 v{t[e]+1}, v{t[e]+1}']
        for e,r in enumerate((r0,r1)): o.append(f'v_pk_mul_f32 {P(r)}, {P(r)}, {P(t[e])}')
        o+= [f'v_cvt_pk_bf16_f32 v{PK}, v{r0}, v{r0+1}', f'v_cvt_pk_bf16_f32 v{PK+1}, v{r1}, v{r1+1}']
        o.append(f'buffer_store_dwordx2 v[{PK}:{PK+1}], v{vaddr}, s[{WS}:{WS+3}], s{s_h} offen offset:{a*256} sc1')
        return o

    def phase_fc1(self):
        k=self.k
        A0,A1,XF,CS,ONE,vX,WB=24,40,56,88,89,90,96
        self.wait(3)
        self.mark("f1.wait")
        k('s_mul_i32 s28, s6, 81920'); k(f's_mul_i32 s29, s12, {X1_D}'); k('s_add_u32 s28, s28, s29'); k(f's_add_u32 s28, s28, {X1B[0]}')
        k('s_mul_i32 s29, s3, 10240'); k('s_add_u32 s28, s28, s29')
        for i in range(10):
            k(f's_add_u32 m0, s29, {i*1024}')
            k(f'buffer_load_dwordx4 v{V_L16}, s[{WS}:{WS+3}], s28 offen sc1 lds')
            k('s_add_u32 s28, s28, 1024')
        act=k.lab('act'); fin=k.lab('fin')
        k('s_cmp_lt_u32 s3, s41'); k(f's_cbranch_scc1 {act}')
        n7=k.lab('n7'); n7w=k.lab('n7w')
        U=96
        k('s_cmp_lg_u32 s3, 7'); k(f's_cbranch_scc1 {n7w}')
        k(f'v_lshlrev_b32 v{U}, 3, v{V_LANE}')
        k('s_lshl_b32 s28, s6, 13'); k(f's_mul_i32 s29, s12, {ST_D}'); k('s_add_u32 s28, s28, s29'); k(f's_add_u32 s28, s28, {STB[0]}')
        for q in range(16):
            k(f'buffer_load_dwordx2 v[{A0+2*q}:{A0+2*q+1}], v{U}, s[{WS}:{WS+3}], s28 offen offset:{(q%8)*512} sc1')
            if q==7: k('s_add_u32 s28, s28, 4096')
        k('s_waitcnt vmcnt(0)')
        for q in range(1,16):
            k(f'v_add_f32 v{A0}, v{A0}, v{A0+2*q}'); k(f'v_add_f32 v{A0+1}, v{A0+1}, v{A0+2*q+1}')
        m_,r_,v_=U+2,U+3,A0+1
        k(f'v_mul_f32 v{m_}, {hex(f2u(1/640))}, v{A0}'); k(f'v_mul_f32 v{v_}, {hex(f2u(1/640))}, v{v_}')
        k(f'v_fma_f32 v{v_}, -v{m_}, v{m_}, v{v_}'); k(f'v_max_f32 v{v_}, 0, v{v_}')
        k(f'v_add_f32 v{A0+2}, {hex(f2u(1e-5))}, v{v_}'); k(f'v_rsq_f32 v{r_}, v{A0+2}')
        k(f'v_mul_f32 v{A0+3}, v{r_}, v{r_}'); k(f'v_mul_f32 v{A0+3}, v{A0+3}, v{v_}')
        k(f'v_add_f32 v{A0+3}, {hex(f2u(1e-5))}, v{A0+3}'); k(f'v_rsq_f32 v{A0+3}, v{A0+3}')
        k(f'v_mul_f32 v{r_}, v{r_}, v{A0+3}'); k(f'v_mul_f32 v{m_}, v{m_}, v{r_}')
        k(f'v_add_u32 v{U}, {L_TOKST}, v{U}')
        k(f'ds_write_b64 v{U}, v[{m_}:{r_}]')
        k(n7w+':')
        k('s_waitcnt vmcnt(0) lgkmcnt(0)')
        k('s_barrier')
        k('s_cmp_lg_u32 s3, 7'); k(f's_cbranch_scc1 {n7}')
        W2E=os.environ.get('W2E','1')=='1'
        if W2E:
            for e in range(16,30):
                k(f's_mov_b32 s52, {e}')
                for f in self.w2_chunk_dma(52): f()
        k(n7+':')
        k('s_barrier')
        k('s_cmp_lg_u32 s3, 7'); k(f's_cbranch_scc1 {fin}')
        for e in list(range(0,8))+[15]+([] if W2E else list(range(16,30))):
            k(f's_mov_b32 s52, {e}')
            for f in self.w2_chunk_dma(52): f()
        k('s_cmp_eq_u32 s41, 7'); k(f's_cbranch_scc1 {fin}')
        k('s_mov_b32 s52, 14')
        for f in self.w2_chunk_dma(52): f()
        k(f's_branch {fin}')
        k(act+':')
        srd(k,SA,P_B1,1728*2)
        B1R=72
        k('s_lshl_b32 s28, s40, 6')
        k(f'v_lshl_add_u32 v{vX}, v{V_H}, 3, s28')
        for a in range(4): k(f'buffer_load_dwordx2 v[{B1R+2*a}:{B1R+2*a+1}], v{vX}, s[{SA}:{SA+3}], 0 offen offset:{a*16}')
        k('s_waitcnt vmcnt(0)')
        k('s_barrier')
        self.mark("f1.x")
        k(f'v_lshrrev_b32 v{vX}, 4, v{V_L31}'); k(f'v_mul_u32_u24 v{vX}, 20480, v{vX}')
        k(f'v_lshl_add_u32 v{vX}, v{V_H}, 8, v{vX}'); k(f'v_lshl_add_u32 v{vX}, v{V_F}, 4, v{vX}')
        k(f'v_mov_b32 v{ONE}, 0x3f803f80'); k(f'v_mov_b32 v{CS}, 0')
        k('s_cmp_lg_u32 s12, 0'); k('s_cselect_b64 vcc, -1, 0')
        def rd(tt,s):
            ks,u=s//2,s%2
            x=XF+(s%4)*4
            k(f'ds_read_b128 v[{x}:{x+3}], v{vX} offset:{tt*40960+ks*1024+u*512}')
        F1A=self.F1A
        def pass1(with_cs):
            rd(0,0); rd(0,1); rd(0,2)
            for s in range(40):
                if s+F1A<40: self.f1_wload(s+F1A)
                if s+3<40: rd(0,s+3)
                w=f's_waitcnt lgkmcnt({min(3,39-s)})'
                if s>=F1A: w+=f' vmcnt({min(F1A,39-s)})'
                k(w)
                wr=self.f1_wreg(s); x=XF+(s%4)*4
                c0='0' if s==0 else f'v[{A0}:{A0+15}]'
                k(f'v_mfma_f32_32x32x16_bf16 v[{A0}:{A0+15}], v[{wr}:{wr+3}], v[{x}:{x+3}], {c0}')
                if with_cs:
                    for r in range(4): k(f'v_dot2c_f32_bf16 v{CS}, v{wr+r}, v{ONE}')
        p1=k.lab('p1'); p1d=k.lab('p1d')
        k(f's_cbranch_vccnz {p1}')
        pass1(True)
        k(f's_branch {p1d}')
        k(p1+':')
        pass1(False)
        k(p1d+':')
        ncs=k.lab('ncs')
        k(f's_cbranch_vccnz {ncs}')
        k(f'v_mov_b32 v91, v{CS}'); k(f'v_permlane32_swap_b32 v{CS}, v91'); k(f'v_add_f32 v{CS}, v{CS}, v91')
        k('s_lshl_b32 s28, s3, 7'); k(f's_add_u32 s28, s28, {L_CS1}')
        k(f'v_lshl_add_u32 v91, v{V_L31}, 2, s28')
        k(f'ds_write_b32 v91, v{CS}')
        k(ncs+':')
        k('s_waitcnt lgkmcnt(0)')
        self.mark("f1.p1")
        CSV,B1F,MR0,MR1,TT,KC,VA=96,112,80,82,16,84,91
        side=[]
        def S(x): side.append(x)
        S(f's_lshl_b32 s28, s3, 7'); S(f's_add_u32 s28, s28, {L_CS1}'); S(f'v_lshl_add_u32 v{VA}, v{V_H}, 4, s28')
        pre_reads=[f'ds_read_b128 v[{CSV+4*a}:{CSV+4*a+3}], v{VA} offset:{a*32}' for a in range(4)]
        c0=-2*0.7978845608028654*1.4426950408889634; c1=c0*0.044715
        for i in range(2):
            k(f'v_mov_b32 v{KC+i}, {hex(f2u(c0))}'); k(f'v_mov_b32 v{KC+2+i}, {hex(f2u(c1))}')
        KONE_=92
        k(f'v_mov_b32 v{KONE_}, 1.0'); k(f'v_mov_b32 v{KONE_+1}, 1.0')
        k(f'v_lshlrev_b32 v94, 3, v{V_L31}'); k(f'v_add_u32 v94, {L_TOKST}, v94')
        k(f'ds_read_b64 v[{MR0}:{MR0+1}], v94'); k(f'ds_read_b64 v[{MR1}:{MR1+1}], v94 offset:256')
        k(f'v_lshrrev_b32 v95, 4, v{V_L31}'); k(f's_mov_b32 s28, {54*1024}'); k('v_mul_lo_u32 v95, v95, s28')
        k(f'v_lshl_add_u32 v95, v{V_H}, 3, v95'); k(f'v_lshl_add_u32 v95, v{V_F}, 4, v95')
        for tt in range(2):
            k('s_lshl_b32 s28, s6, 2'); k(f's_add_u32 s28, s28, {2*tt}'); k('s_mul_i32 s28, s28, 54'); k('s_add_u32 s28, s28, s40')
            k('s_lshl_b32 s28, s28, 10'); k(f's_mul_i32 s29, s12, {HF_D}'); k('s_add_u32 s28, s28, s29'); k(f's_add_u32 s{56+tt}, s28, {HFB[0]}')
        k('s_mov_b32 s47, 0xffff0000')
        k('s_waitcnt lgkmcnt(0)')
        rd(1,0); rd(1,1); rd(1,2)
        def gg(A,a,MR,sh):
            o=self.gelu_group(A,a,MR,CSV,B1F,TT,KC,95,sh)
            return [x.replace(f'v[{KC+4}:{KC+5}]',f'v[{KONE_}:{KONE_+1}]') for x in o]
        work=[]
        for a in range(4): work+=self.gelu_group_scalar(A0,a,MR0,CSV,B1F,TT,KC,95,56)
        nper=-(-len(work)//27)
        wi=0; lds_extra=0
        for s in range(40):
            if s+3<40: rd(1,s+3)
            extra=0
            if s==8:
                k(f's_lshl_b32 s28, s3, 7'); k(f's_add_u32 s28, s28, {L_CS1}'); k(f'v_lshl_add_u32 v{VA}, v{V_H}, 4, s28')
                for x in pre_reads: k(x)
                extra=4
            k(f's_waitcnt lgkmcnt({min(3,39-s)+extra})')
            wr=self.f1_wreg(s); x=XF+(s%4)*4
            c1s='0' if s==0 else f'v[{A1}:{A1+15}]'
            k(f'v_mfma_f32_32x32x16_bf16 v[{A1}:{A1+15}], v[{wr}:{wr+3}], v[{x}:{x+3}], {c1s}')
            if s in (9,10):
                for a in ((0,1) if s==9 else (2,3)):
                    k(f'v_lshlrev_b32 v{B1F+4*a}, 16, v{B1R+2*a}'); k(f'v_and_b32 v{B1F+4*a+1}, s47, v{B1R+2*a}')
                    k(f'v_lshlrev_b32 v{B1F+4*a+2}, 16, v{B1R+2*a+1}'); k(f'v_and_b32 v{B1F+4*a+3}, s47, v{B1R+2*a+1}')
            if s>=12:
                for _ in range(nper):
                    if wi<len(work): k(work[wi]); wi+=1
        while wi<len(work): k(work[wi]); wi+=1
        k('s_barrier')
        self.mark("f1.mm")
        k('s_add_u32 s52, s3, 8')
        dm=self.w2_chunk_dma(52)
        for a in range(4):
            for x in gg(A1,a,MR1,57): k(x)
            if dm: dm.pop(0)()
            if a==3:
                while dm: dm.pop(0)()
        k(fin+':')
        self.mark("f1.epi")
        self.publish(4)
        self.mark("f1.pub")

    def phase_fc2(self):
        k=self.k
        XP=os.environ.get('XP','')
        HX,WR,ACC,T=24,132,192,212
        BI=T+22
        srd(k,SB,P_B2,1280)
        srd(k,SC,P_OUT,2048*1280)
        k('s_mul_i32 s28, s7, 160'); k('s_mul_i32 s29, s5, 96'); k('s_add_u32 s28, s28, s29')
        k(f'v_lshl_add_u32 v{T}, v{V_G}, 3, s28')
        for j in range(3): k(f'buffer_load_dwordx2 v[{BI+2*j}:{BI+2*j+1}], v{T}, s[{SB}:{SB+3}], 0 offen offset:{j*32}')
        k('s_movk_i32 s29, 1280'); k(f'v_mul_lo_u32 v{T+20}, v{V_TOK}, s29'); k(f'v_add_u32 v{T+20}, v{T+20}, v{T}')
        self.wait(4)
        self.mark("f2.wait")
        self.x_loads(HX,27,HFB[0],HF_D,54,27)
        log=[('h',i) for i in range(27)]
        vA,vB,vC=T+1,T+2,T+3
        k('s_mul_i32 s28, s5, 5120')
        k(f'v_add_u32 v{vA}, s28, v{V_L16}'); k(f'v_add_u32 v{vB}, 61440, v{vA}'); k(f'v_add_u32 v{vC}, 122880, v{vA}')
        NS=15
        slot=lambda i: i if i<NS else i-NS
        def refill(first):
            k('s_lshr_b32 s28, s3, 1'); k('s_and_b32 s29, s3, 1')
            k(f's_add_u32 s30, s28, {first}')
            k('s_mul_i32 s32, s29, 27'); k('s_add_u32 s32, s32, s30')
            k('s_mul_i32 s33, s7, 270'); k('s_add_u32 s32, s32, s33'); k('s_lshl_b32 s32, s32, 10'); k(f's_add_u32 s32, s32, {W2F}')
            k(f's_add_u32 s30, s28, {slot(first)}')
            k('s_mul_i32 s33, s30, 10240'); k('s_mul_i32 s29, s29, 5120'); k('s_add_u32 s33, s33, s29')
            for j in range(5):
                k('s_mov_b32 m0, s33')
                k(f'buffer_load_dwordx4 v{V_L16}, s[{WS}:{WS+3}], s32 offen sc1 lds')
                if j<4:
                    k(f's_add_u32 s32, s32, {54*1024}'); k('s_add_u32 s33, s33, 1024')
                log.append(('rf',first))
        def younger(idx): return len(log)-1-idx
        DEPTH=12
        bar={7:(None,15),11:(None,19),15:(15,23),19:(19,None),23:(23,None)}
        fr=[]
        for i in range(27):
            for ft in range(5):
                j=slot(i); va,imm=((vA,vB,vC)[j//6],(j%6)*10240)
                def rd(r,va=va,imm=imm,ft=ft): k(f'ds_read_b128 v[{r}:{r+3}], v{va} offset:{imm+ft*1024}')
                def mf(r,i=i,ft=ft):
                    c=ACC+4*ft; cs='0' if i==0 else f'v[{c}:{c+3}]'
                    k(f'v_mfma_f32_16x16x32_bf16 v[{c}:{c+3}], v[{r}:{r+3}], v[{HX+4*i}:{HX+4*i+3}], {cs}')
                d=dict(read=rd,mfma=mf)
                if ft==0:
                    d['vm']=(lambda i=i: younger(log.index(('h',i))))
                    if i in bar:
                        def pre(i=i):
                            need,fill=bar[i]
                            if need is not None:
                                tags=[n for n,x in enumerate(log) if x==('rf',need)]
                                k(f's_waitcnt vmcnt({younger(tags[-1])})')
                            k('s_barrier')
                            if fill is not None: refill(fill)
                        d['pre']=pre
                fr.append(d)
        self.frag_gemm(fr,WR,DEPTH,1)
        self.mark("f2.mm")
        k('s_barrier')
        nl=k.lab('nl')
        k('s_cmp_eq_u32 s12, 1'); k(f's_cbranch_scc1 {nl}')
        self.dma_lin_slice(WQF); self.dma_wkv()
        k(nl+':')
        self.reduce_pairs(ACC,T+9,L_RED)
        k('s_waitcnt lgkmcnt(0)')
        k('s_barrier')
        self.reduce_pairs_finish(ACC,T+9,HX)
        self.epilogue_res(ACC,T,X2B,0,stats=False,bias=BI,final=True)
        self.mark("f2.epi")

    def build(self):
        k=self.k
        self.prologue()
        self.mark0("p.start")
        self.x0_loads(24,144)
        nn=k.lab('nn2')
        k('s_cmp_lg_u32 s2, 0'); k(f's_cbranch_scc1 {nn}')
        k('s_cmp_lg_u32 s3, 5'); k(f's_cbranch_scc1 {nn}')
        k('s_waitcnt vmcnt(13)')
        k(f'v_mov_b32 v200, {NONCE}')
        k('v_add_u32 v201, 4096, v201'); k('v_or_b32 v201, 1, v201')
        k('s_mov_b64 exec, 1')
        k(f'buffer_store_dword v201, v200, s[{WS}:{WS+3}], 0 offen sc1')
        k('v_mov_b32 v200, 0')
        k('buffer_store_dword v201, v200, s[60:63], 0 offen sc1')
        k('s_mov_b64 exec, -1')
        k(nn+':')
        if 'cs.x' in os.environ.get('MARKS',''):
            k('s_waitcnt vmcnt(0)'); self.mark0("cs.x")
        self.dma_w160(P_WQ); self.dma_wkv()
        self.conv_issue(L_RED,self.CONV_A+self.CONV_B)
        self.tlb_warm()
        self.mark0("p.issued")
        LOOP='mega_layer'
        k(LOOP+':')
        self.phase_qkv(); self.stopat('qkv')
        self.phase_attn(); self.stopat('attn')
        self.phase_oproj(); self.stopat('oproj')
        self.phase_fc1(); self.stopat('fc1')
        self.phase_fc2(); self.stopat('fc2')
        k('s_cmp_eq_u32 s12, 1'); k(f's_cbranch_scc1 {self.END}')
        self.publish(5)
        self.wait(5)
        k('s_mov_b32 s12, 1'); k('s_add_u32 s13, s13, 5')
        k(f's_branch {LOOP}')
        k(self.END+':')
        if self.stamps:
            k('s_waitcnt vmcnt(0) lgkmcnt(0)')
            k(f'{self.clk} s[100:101]'); k('s_waitcnt lgkmcnt(0)')
            k('s_lshl_b32 s28, s2, 3'); k('s_add_u32 s28, s28, s3'); k('s_lshl_b32 s28, s28, 6'); k(f's_add_u32 s28, s28, {STAMP_OFF}')
            k('s_add_u32 s30, s86, s28'); k('s_addc_u32 s31, s87, 0')
            k('v_mov_b32 v24, 0')
            for i in range(13):
                k(f'v_mov_b32 v25, s{88+i}')
                k(f'global_store_dword v24, v25, s[30:31] offset:{4*i}')
        k('mega_kernel_exit:')
        k('s_endpgm')
        return k

def gen_init():
    k=Kern('init_kernel',vgpr=8,sgpr=24)
    k('s_cmp_ge_u32 s2, 1'); k('s_cbranch_scc1 init_kernel_end')
    k('s_load_dwordx2 s[4:5], s[0:1], 96')
    k('s_waitcnt lgkmcnt(0)')
    srd(k,8,4,4096,FLG)
    k('v_lshlrev_b32 v1, 4, v0')
    for i in range(4): k(f'v_mov_b32 v{2+i}, 0')
    k('buffer_store_dwordx4 v[2:5], v1, s[8:11], 0 offen')
    k('init_kernel_end:')
    k('s_endpgm')
    return k
```

```python
import os, struct
from asmlib import *
from mlayout import *

def f2u(x): return struct.unpack('<I',struct.pack('<f',x))[0]
P_X,P_WQ,P_WK,P_WV,P_WO,P_W1,P_B1,P_W2,P_B2,P_OUT=64,66,68,70,72,76,78,80,82,84
WS=8
SA,SB,SC=16,20,24
OOB='0x40000000'
V_LANE,V_F,V_G,V_L16,V_L31,V_H,V_TR,V_RES,V_TOK,V_D=1,2,3,4,5,6,7,8,14,16
L_WKV=102400
L_RED=128000
L_KVR=148480
L_STAT=152576
L_CS=163136
L_NONCE=163776
L_BADF=163780
L_PAIRF=163784
L_KVCS=155008
NONCE=FLG+2048+64
L_QL=102400
L_COMB=112640
L_OIMG=137216
L_ORED=102400
L_TOKST=153600
L_CS1=154112
LDS_TOTAL=160*1024
STAMP_OFF=100<<20
POLLW=7

def srd(k,d,p,size,off=0):
    k(f's_add_u32 s{d}, s{p}, {off}' if off else f's_mov_b32 s{d}, s{p}')
    k(f's_addc_u32 s{d+1}, s{p+1}, 0' if off else f's_mov_b32 s{d+1}, s{p+1}')
    k(f's_and_b32 s{d+1}, s{d+1}, 0xffff')
    k(f's_mov_b32 s{d+2}, {size}')
    k(f's_mov_b32 s{d+3}, 0x20000')

def sum_g(k,x,tmp):
    k(f'v_mov_b32 v{tmp}, v{x}')
    k(f'v_permlane16_swap_b32 v{x}, v{tmp}')
    k(f'v_add_f32 v{x}, v{x}, v{tmp}')
    k(f'v_mov_b32 v{tmp}, v{x}')
    k(f'v_permlane32_swap_b32 v{x}, v{tmp}')
    k(f'v_add_f32 v{x}, v{x}, v{tmp}')

KNAME='interleave_layers__grouped_kv_mqa__mixer_channel_mlp__prompt_kernel'
class Mega:
    def __init__(self, stamps=False, stop=None):
        self.k=Kern(KNAME,vgpr=256,sgpr=102)
        self.stamps=stamps; self.stop=stop; self.END='mega_kernel_end'
        self.mark_layer=int(os.environ.get('MARKL','1'))
        self.clk='s_memrealtime' if os.environ.get('RT') else 's_memtime'
    def mark(self,name):
        if not self.stamps: return
        ms=os.environ.get('MARKS','').split(',')
        if name not in ms: return
        i=ms.index(name)
        k=self.k
        k(f'{self.clk} s[100:101]')
        k('s_waitcnt lgkmcnt(0)')
        k(f's_cmp_eq_u32 s12, {self.mark_layer}')
        k(f's_cselect_b32 s{88+i}, s100, s{88+i}')
    def mark0(self,name):
        if not self.stamps: return
        ms=os.environ.get('MARKS','').split(',')
        if name not in ms: return
        i=ms.index(name); k=self.k
        k(f'{self.clk} s[100:101]'); k('s_waitcnt lgkmcnt(0)'); k(f's_mov_b32 s{88+i}, s100')
    def stopat(self,name):
        if self.stop==name:
            k=self.k
            k(f's_cmp_eq_u32 s12, {int(os.environ.get("STOPL","0"))}')
            k(f's_cbranch_scc1 {self.END}')

    def publish(self,j):
        k=self.k
        k('s_waitcnt vmcnt(0)')
        k('s_barrier')
        lab=k.lab('pub')
        k('s_cmp_lg_u32 s3, 0')
        k(f's_cbranch_scc1 {lab}')
        k(f's_add_u32 s28, s13, {j}')
        k('v_mov_b32 v22, s28')
        k('s_lshl_b32 s29, s6, 6'); k('s_lshl_b32 s30, s7, 2'); k('s_add_u32 s29, s29, s30')
        k('v_mov_b32 v21, s29')
        k('s_mov_b64 exec, 1')
        k(f'buffer_store_dword v22, v21, s[{WS}:{WS+3}], 0 offen offset:{FLG} sc1')
        k('s_mov_b64 exec, -1')
        k(lab+':')
    def wait(self,j,allwg=False,others=None):
        k=self.k
        lab=k.lab('w'); loop=k.lab('poll'); done=k.lab('pd')
        wide = allwg or others is not None
        k(f's_cmp_lg_u32 s3, {POLLW}')
        k(f's_cbranch_scc1 {lab}')
        k(f's_add_u32 s28, s13, {j}')
        if wide:
            k(f'v_lshrrev_b32 v22, 1, v{V_LANE}'); k('v_lshlrev_b32 v21, 6, v22')
            k(f'v_and_b32 v16, 1, v{V_LANE}'); k('v_lshl_add_u32 v21, v16, 4, v21')
            if others is not None:
                k(f's_add_u32 s29, s13, {others}')
                k('v_cmp_eq_u32 vcc, s6, v22')
                k('v_mov_b32 v23, s29'); k('v_mov_b32 v22, s28')
                k('v_cndmask_b32 v22, v23, v22, vcc')
            else: k('v_mov_b32 v22, s28')
        else:
            k(f'v_and_b32 v21, 7, v{V_LANE}'); k('v_lshlrev_b32 v21, 2, v21')
            k('s_lshl_b32 s29, s6, 6'); k('v_add_u32 v21, s29, v21')
            k('v_mov_b32 v22, s28')
        k('s_mov_b32 s30, 0')
        k(loop+':')
        if wide:
            k(f'buffer_load_dwordx4 v[16:19], v21, s[{WS}:{WS+3}], 0 offen offset:{FLG} sc1')
            k('s_waitcnt vmcnt(0)')
            for r in (16,17,18,19): k(f'v_sub_u32 v{r}, v{r}, v22')
            k('v_max_u32 v16, v16, v17'); k('v_max_u32 v18, v18, v19'); k('v_max_u32 v16, v16, v18')
        else:
            k(f'buffer_load_dword v16, v21, s[{WS}:{WS+3}], 0 offen offset:{FLG} sc1')
            k('s_waitcnt vmcnt(0)')
            k('v_sub_u32 v16, v16, v22')
        k('v_cmp_le_u32 vcc, 32, v16')
        k(f's_cbranch_vccz {done}')
        k('s_add_u32 s30, s30, 1')
        k(f's_cmp_lt_u32 s30, 0x40000')
        k(f's_cbranch_scc1 {loop}')
        k(done+':')
        k(lab+':')
        k('s_barrier')

    def dma_chunk160(self, s_srd, s_soff, s_m0):
        k=self.k
        for j in range(5):
            k(f's_mov_b32 m0, s{s_m0}')
            k(f'buffer_load_dwordx4 v{V_D+j}, s[{s_srd}:{s_srd+3}], s{s_soff} offen lds')
            if j<4: k(f's_add_u32 s{s_m0}, s{s_m0}, 1024')
    def dma_w160(self,ptr,skip_poller=False):
        k=self.k
        srd(k,SA,ptr,640*1280)
        nw=7 if skip_poller else 8
        end=k.lab('dw')
        if skip_poller:
            k(f's_cmp_eq_u32 s3, {POLLW}'); k(f's_cbranch_scc1 {end}')
        for t in range(3):
            lab=k.lab('wq')
            k(f's_add_u32 s28, s3, {nw*t}')
            if nw*t+nw>20:
                k('s_cmp_ge_u32 s28, 20'); k(f's_cbranch_scc1 {lab}')
            k('s_mul_i32 s29, s28, 40960'); k('s_mul_i32 s30, s28, 5120')
            self.dma_chunk160(SA,29,30)
            k(lab+':')
        k(end+':')
    def dma_wkv(self):
        k=self.k
        k('s_and_b32 s28, s7, 1'); k('s_cmp_eq_u32 s28, 0')
        k(f's_cselect_b32 s30, s{P_WK}, s{P_WV}'); k(f's_cselect_b32 s31, s{P_WK+1}, s{P_WV+1}')
        srd(k,SB,30,25600)
        for t in range(4):
            lab=k.lab('wk')
            k(f's_add_u32 s28, s3, {8*t}')
            if t==3:
                k('s_cmp_ge_u32 s28, 25'); k(f's_cbranch_scc1 {lab}')
            k('s_lshl_b32 s29, s28, 10'); k(f's_add_u32 s30, s29, {L_WKV}')
            k('s_mov_b32 m0, s30')
            k(f'buffer_load_dwordx4 v{V_L16}, s[{SB}:{SB+3}], s29 offen lds')
            k(lab+':')
    def l2_prefetch(self, s_srd, total, nwaves, wave0, vtmp, base_off=0):
        k=self.k
        per=(total//32+127)//128*128
        ninst=(per+8191)//8192
        pw=(ninst+nwaves-1)//nwaves
        k('s_and_b32 s28, s6, 3'); k('s_lshl_b32 s28, s28, 3'); k('s_add_u32 s28, s28, s7')
        k(f's_mul_i32 s28, s28, {per}')
        k(f's_sub_u32 s29, s3, {wave0}'); k(f's_mul_i32 s29, s29, {pw*8192}'); k('s_add_u32 s28, s28, s29')
        if base_off: k(f's_add_u32 s28, s28, {base_off}')
        k(f'v_lshlrev_b32 v{vtmp}, 7, v{V_LANE}')
        for n in range(pw):
            k(f'buffer_load_dword v{vtmp+1}, v{vtmp}, s[{s_srd}:{s_srd+3}], s28 offen')
            k('s_add_u32 s28, s28, 8192')
        return pw

    def prologue(self):
        k=self.k
        k('s_cmp_ge_u32 s2, 256')
        k(f's_cbranch_scc1 mega_kernel_exit')
        k('s_load_dwordx16 s[64:79], s[0:1], 0')
        k('s_load_dwordx4 s[80:83], s[0:1], 64')
        k('s_load_dwordx2 s[84:85], s[0:1], 80')
        k('s_load_dwordx2 s[86:87], s[0:1], 96')
        k('s_load_dwordx2 s[58:59], s[0:1], 88')
        if self.stamps: k(f'{self.clk} s[100:101]')
        k('v_lshrrev_b32 v24, 6, v0')
        k(f'v_and_b32 v{V_LANE}, 63, v0')
        k('v_readfirstlane_b32 s3, v24')
        k('s_and_b32 s4, s3, 3'); k('s_lshr_b32 s5, s3, 2')
        k('s_and_b32 s6, s2, 7'); k('s_lshl_b32 s6, s6, 2'); k('s_lshr_b32 s7, s2, 3'); k('s_and_b32 s7, s7, 3'); k('s_add_u32 s6, s6, s7'); k('s_lshr_b32 s7, s2, 5')
        k(f'v_and_b32 v{V_F}, 15, v{V_LANE}')
        k(f'v_lshrrev_b32 v{V_G}, 4, v{V_LANE}')
        k(f'v_lshlrev_b32 v{V_L16}, 4, v{V_LANE}')
        k(f'v_and_b32 v{V_L31}, 31, v{V_LANE}')
        k(f'v_lshrrev_b32 v{V_H}, 5, v{V_LANE}')
        k(f'v_lshrrev_b32 v24, 2, v{V_F}')
        k(f'v_and_b32 v25, 1, v{V_G}'); k('v_lshl_add_u32 v24, v25, 2, v24')
        k(f'v_lshrrev_b32 v25, 1, v{V_G}'); k('v_lshl_add_u32 v24, v25, 4, v24')
        k('v_mul_u32_u24 v24, 160, v24')
        k(f'v_and_b32 v25, 3, v{V_LANE}')
        k(f'v_lshl_add_u32 v{V_TR}, v25, 3, v24')
        k('s_lshl_b32 s28, s6, 6'); k('s_lshl_b32 s29, s4, 4'); k('s_add_u32 s28, s28, s29')
        k(f'v_add_u32 v{V_TOK}, s28, v{V_F}')
        k('s_mul_i32 s29, s7, 160')
        for j in range(5):
            k(f'v_add_u32 v24, {64*j}, v{V_LANE}')
            k('v_mul_u32_u24 v25, 6554, v24'); k('v_lshrrev_b32 v25, 16, v25')
            k('v_mul_u32_u24 v26, 10, v25'); k('v_sub_u32 v26, v24, v26')
            k('v_and_b32 v27, 0x13, v25')
            k('v_bfe_u32 v28, v25, 3, 1'); k('v_lshl_add_u32 v27, v28, 2, v27')
            k('v_bfe_u32 v28, v25, 2, 1'); k('v_lshl_add_u32 v27, v28, 3, v27')
            k('v_mul_u32_u24 v27, 1280, v27')
            k('v_lshl_add_u32 v27, v26, 4, v27')
            k(f'v_add_u32 v{V_D+j}, s29, v27')
        k('s_waitcnt lgkmcnt(0)')
        if self.stamps:
            k('s_mov_b32 s99, s100')
            for i in range(11): k(f's_mov_b32 s{88+i}, 0')
        srd(k,WS,86,WS_USED)
        k('s_mov_b32 s12, 0'); k('s_mov_b32 s13, 0')
        srd(k,60,58,256)
        nn=k.lab('nn')
        k('s_cmp_lg_u32 s2, 0'); k(f's_cbranch_scc1 {nn}')
        k('s_cmp_lg_u32 s3, 5'); k(f's_cbranch_scc1 {nn}')
        k(f'v_mov_b32 v200, {NONCE}')
        k(f'buffer_load_dword v201, v200, s[{WS}:{WS+3}], 0 offen sc1')
        k(nn+':')
        k('s_mul_i32 s40, s7, 7'); k('s_sub_u32 s28, s7, 6'); k('s_max_i32 s28, s28, 0'); k('s_sub_u32 s40, s40, s28')
        k('s_cmp_ge_u32 s7, 6'); k('s_cselect_b32 s41, 6, 7')
        k('s_add_u32 s40, s40, s3')

    def x0_loads(self,XF,T):
        k=self.k
        srd(k,SC,P_X,2048*1280)
        k('s_movk_i32 s28, 1280')
        k(f'v_mul_lo_u32 v{T}, v{V_TOK}, s28')
        k(f'v_lshl_add_u32 v{T+1}, v{V_G}, 4, v{T}')
        k('s_mul_i32 s29, s5, 640')
        k(f'v_add_u32 v{T+1}, s29, v{T+1}')
        if 'xlin' in os.environ.get('XP',''):
            k('s_lshl_b32 s28, s6, 2'); k('s_add_u32 s28, s28, s4'); k('s_mul_i32 s28, s28, 20'); k('s_mul_i32 s29, s5, 10'); k('s_add_u32 s28, s28, s29'); k('s_lshl_b32 s28, s28, 10')
            for i in range(10):
                k(f'buffer_load_dwordx4 v[{XF+4*i}:{XF+4*i+3}], v{V_L16}, s[{SC}:{SC+3}], s28 offen offset:{(i%4)*1024}')
                if i%4==3: k('s_add_u32 s28, s28, 4096')
        else:
          for i in range(10):
            k(f'buffer_load_dwordx4 v[{XF+4*i}:{XF+4*i+3}], v{T+1}, s[{SC}:{SC+3}], 0 offen offset:{i*64}')
        k(f'v_lshl_add_u32 v{T+1}, v{V_G}, 3, v{T}')
        k('s_mul_i32 s29, s7, 160'); k('s_mul_i32 s30, s5, 96'); k('s_add_u32 s29, s29, s30')
        k(f'v_add_u32 v{T+1}, s29, v{T+1}')
        for j in range(3):
            k(f'buffer_load_dwordx2 v[{V_RES+2*j}:{V_RES+2*j+1}], v{T+1}, s[{SC}:{SC+3}], 0 offen offset:{j*32}')

    def conv_issue(self, stage, kinds):
        k=self.k
        done=k.lab('cvd'); go=k.lab('cvg')
        total=sum(x[5] for x in kinds)
        k('s_mov_b32 s50, 0')
        k('s_lshl_b32 s28, s3, 8'); k('s_add_u32 s28, s28, s2')
        k(f's_cmp_ge_u32 s28, {total}'); k(f's_cbranch_scc1 {done}')
        labs=[k.lab('cvk') for _ in kinds]
        acc=0
        for idx,x in enumerate(kinds[:-1]):
            acc+=x[5]
            k(f's_cmp_lt_u32 s28, {acc}'); k(f's_cbranch_scc1 {labs[idx]}')
        k(f's_branch {labs[-1]}')
        acc=0
        for idx,(name,ptr,rows,stride,ncg,njobs,dst,layout) in enumerate(kinds):
            k(labs[idx]+':')
            if acc: k(f's_sub_u32 s28, s28, {acc}')
            magic=-(-65536//ncg)
            assert all((j*magic)>>16==j//ncg for j in range(njobs))
            k(f's_mul_i32 s29, s28, {magic}'); k('s_lshr_b32 s29, s29, 16')
            k(f's_mul_i32 s30, s29, {ncg}'); k('s_sub_u32 s30, s28, s30')
            srd(k,SA,ptr,rows*stride)
            k(f's_movk_i32 s31, {stride}')
            k(f's_mov_b32 s50, {1 if layout=="w1" else 2}')
            if layout=='w1':
                k('s_mul_i32 s51, s30, 80'); k('s_lshl_b32 s32, s29, 1'); k('s_add_u32 s51, s51, s32')
                k('s_mov_b32 s57, 0')
            else:
                KS=rows//32
                k(f's_mul_i32 s51, s30, {4*KS}'); k('s_add_u32 s51, s51, s29')
                k(f's_mov_b32 s57, {KS*1024}')
            k('s_lshl_b32 s51, s51, 10'); k(f's_add_u32 s51, s51, {dst}')
            k(f's_branch {go}')
            acc+=njobs
        k(go+':')
        k(f'v_lshrrev_b32 v200, 3, v{V_LANE}'); k('v_mul_lo_u32 v200, v200, s31')
        k(f'v_and_b32 v201, 7, v{V_LANE}'); k('v_lshl_add_u32 v200, v201, 4, v200')
        k('s_lshl_b32 s32, s29, 5'); k('s_mul_i32 s32, s32, s31'); k('s_lshl_b32 s33, s30, 7'); k('s_add_u32 s32, s32, s33')
        k('s_lshl_b32 s33, s31, 3')
        k('s_lshl_b32 s34, s3, 12'); k(f's_add_u32 s34, s34, {stage}')
        for i in range(4):
            k('s_mov_b32 m0, s34')
            k(f'buffer_load_dwordx4 v200, s[{SA}:{SA+3}], s32 offen lds')
            if i<3:
                k('s_add_u32 s32, s32, s33'); k('s_add_u32 s34, s34, 1024')
        k(done+':')
    def conv_finish(self,T,stage):
        k=self.k
        done=k.lab('cfd'); w2=k.lab('cf2')
        k('s_cmp_eq_u32 s50, 0'); k(f's_cbranch_scc1 {done}')
        k('s_lshl_b32 s34, s3, 12'); k(f's_add_u32 s34, s34, {stage}')
        k(f'v_lshrrev_b32 v{T}, 2, v{V_F}')
        k(f'v_and_b32 v{T+1}, 3, v{V_LANE}')
        k('s_cmp_eq_u32 s50, 2'); k(f's_cbranch_scc1 {w2}')
        k(f'v_lshl_add_u32 v{T}, v{V_H}, 3, v{T}'); k(f'v_lshlrev_b32 v{T}, 7, v{T}')
        k(f'v_and_b32 v{T+2}, 1, v{V_G}'); k(f'v_lshl_add_u32 v{T}, v{T+2}, 5, v{T}')
        k(f'v_lshl_add_u32 v{T}, v{T+1}, 3, v{T}'); k(f'v_add_u32 v{T}, s34, v{T}')
        fr=[(p,u) for p in range(2) for u in range(2)]
        for n,(p,u) in enumerate(fr):
            b=T+4+4*n
            k(f'ds_read_b64_tr_b16 v[{b}:{b+1}], v{T} offset:{u*2048+p*64}')
            k(f'ds_read_b64_tr_b16 v[{b+2}:{b+3}], v{T} offset:{u*2048+p*64+512}')
        k('s_waitcnt lgkmcnt(0)')
        for n,(p,u) in enumerate(fr):
            b=T+4+4*n
            k(f's_add_u32 s32, s51, {(p*40+u)*1024}')
            k(f'buffer_store_dwordx4 v[{b}:{b+3}], v{V_L16}, s[{WS}:{WS+3}], s32 offen sc1')
        k(f's_branch {done}')
        k(w2+':')
        k(f'v_lshl_add_u32 v{T}, v{V_G}, 3, v{T}'); k(f'v_lshlrev_b32 v{T}, 7, v{T}')
        k(f'v_lshl_add_u32 v{T}, v{T+1}, 3, v{T}'); k(f'v_add_u32 v{T}, s34, v{T}')
        for n in range(4):
            b=T+4+4*n
            k(f'ds_read_b64_tr_b16 v[{b}:{b+1}], v{T} offset:{n*32}')
            k(f'ds_read_b64_tr_b16 v[{b+2}:{b+3}], v{T} offset:{n*32+512}')
        k('s_waitcnt lgkmcnt(0)')
        k('s_mov_b32 s32, s51')
        for n in range(4):
            b=T+4+4*n
            k(f'buffer_store_dwordx4 v[{b}:{b+3}], v{V_L16}, s[{WS}:{WS+3}], s32 offen sc1')
            if n<3: k('s_add_u32 s32, s32, s57')
        k(done+':')
    CONV_A=[('wo',P_WO,640,1280,10,200,WOF,'a16'),('wq',P_WQ,640,1280,10,200,WQF,'a16')]
    CONV_B=[('w1',P_W1,640,3456,27,540,W1F,'w1'),('w2',P_W2,1728,1280,10,540,W2F,'a16')]

    def dma_lin_slice(self, src_const, waves=8):
        k=self.k
        k(f's_mul_i32 s28, s7, 102400'); k(f's_add_u32 s28, s28, {src_const}')
        k('s_lshl_b32 s29, s3, 10'); k('s_add_u32 s28, s28, s29')
        for n in range(13):
            lab=None
            if n==12:
                lab=k.lab('dl'); k('s_cmp_ge_u32 s3, 4'); k(f's_cbranch_scc1 {lab}')
            k('s_mov_b32 m0, s29')
            k(f'buffer_load_dwordx4 v{V_L16}, s[{WS}:{WS+3}], s28 offen sc1 lds')
            if n<12:
                k('s_add_u32 s28, s28, 8192'); k('s_add_u32 s29, s29, 8192')
            if lab: k(lab+':')

    def tlb_warm(self):
        k=self.k
        lab=k.lab('tw')
        k('s_cmp_lg_u32 s3, 6'); k(f's_cbranch_scc1 {lab}')
        k(f'v_lshlrev_b32 v200, 19, v{V_LANE}')
        k(f'buffer_load_dword v201, v200, s[{WS}:{WS+3}], 0 offen')
        for ptr,size in ((P_W1,640*3456),(P_W2,1728*1280),(P_OUT,2048*1280),(P_WO,640*1280),(P_B1,3456),(P_B2,1280)):
            srd(k,SA,ptr,size)
            k(f'buffer_load_dword v201, v200, s[{SA}:{SA+3}], 0 offen')
        k(lab+':')

    def frag_gemm(self, frags, WR, depth, nread, after=None):
        k=self.k
        n=len(frags); slots=depth+1
        reg=lambda i: WR+(i%slots)*4
        def issue(i):
            if frags[i].get('pre'): frags[i]['pre']()
            frags[i]['read'](reg(i))
        for i in range(min(depth,n)): issue(i)
        for i in range(n):
            if i+depth<n: issue(i+depth)
            rem=min(depth,n-1-i)
            w=f's_waitcnt lgkmcnt({rem*nread})'
            vm=frags[i].get('vm')
            if vm is not None:
                v=vm() if callable(vm) else vm
                if v is not None: w+=f' vmcnt({v})'
            k(w)
            frags[i]['mfma'](reg(i))
            if after and i in after: after[i]()

    def diag_stats(self,SX,SQ,S0,S1,tmp):
        k=self.k
        k(f'v_and_b32 v{tmp}, 3, v{V_LANE}')
        k(f'v_mov_b32 v{S1}, v{SQ}')
        for r in (1,2,3):
            k(f'v_cmp_eq_u32 vcc, {r}, v{tmp}'); k(f'v_cndmask_b32 v{S1}, v{S1}, v{SQ+r}, vcc')
        k(f'v_mov_b32 v{S0}, v{SX}')
    def diag_mask_on(self):
        k=self.k
        k('s_mov_b32 exec_lo, 0x00f0000f'); k('s_mov_b32 exec_hi, 0xf0000f00')
    def reduce_pairs(self, ACC, tmp, base):
        k=self.k
        k('s_mul_i32 s28, s4, 5120'); k(f's_add_u32 s28, s28, {base}')
        k(f'v_add_u32 v{tmp}, s28, v{V_L16}')
        l1=k.lab('r1'); l2=k.lab('r2')
        k('s_cmp_eq_u32 s5, 1'); k(f's_cbranch_scc1 {l1}')
        for ft in (3,4): k(f'ds_write_b128 v{tmp}, v[{ACC+4*ft}:{ACC+4*ft+3}] offset:{ft*1024}')
        k(f's_branch {l2}')
        k(l1+':')
        for ft in (0,1,2): k(f'ds_write_b128 v{tmp}, v[{ACC+4*ft}:{ACC+4*ft+3}] offset:{ft*1024}')
        for i in range(8): k(f'v_mov_b32 v{ACC+i}, v{ACC+12+i}')
        k(l2+':')
    def reduce_pairs_finish(self, ACC, tmp, T):
        k=self.k
        k('s_mul_i32 s29, s5, 3072')
        k(f'v_add_u32 v{tmp}, s29, v{tmp}')
        for j in range(3): k(f'ds_read_b128 v[{T+4*j}:{T+4*j+3}], v{tmp} offset:{j*1024}')
        k('s_waitcnt lgkmcnt(0)')
        for i in range(12): k(f'v_add_f32 v{ACC+i}, v{ACC+i}, v{T+i}')

    def tile_offsets(self, sbase):
        k=self.k
        k('s_lshl_b32 s28, s6, 2'); k('s_add_u32 s28, s28, s4'); k('s_mul_i32 s28, s28, 20480')
        k('s_mul_i32 s29, s7, 5'); k('s_mul_i32 s30, s5, 3'); k('s_add_u32 s29, s29, s30')
        for j in range(3):
            k(f's_add_u32 s30, s29, {j}'); k('s_lshl_b32 s30, s30, 9')
            k(f's_add_u32 s{sbase+j}, s30, s28')

    def x_loads(self,XF,n,base_const,layer_stride,KS,per_half):
        k=self.k
        k('s_lshl_b32 s28, s6, 2'); k('s_add_u32 s28, s28, s4'); k(f's_mul_i32 s28, s28, {KS}'); k(f's_mul_i32 s29, s5, {per_half}'); k('s_add_u32 s28, s28, s29')
        k('s_lshl_b32 s28, s28, 10')
        if layer_stride:
            k(f's_mul_i32 s29, s12, {layer_stride}'); k('s_add_u32 s28, s28, s29')
        k(f's_add_u32 s28, s28, {base_const}')
        for i in range(n):
            k(f'buffer_load_dwordx4 v[{XF+4*i}:{XF+4*i+3}], v{V_L16}, s[{WS}:{WS+3}], s28 offen offset:{(i%4)*1024} sc1')
            if i%4==3: k('s_add_u32 s28, s28, 4096')

    def kv_first(self,XF,WR,KVA,KVC,ONES,SX,SQ,T):
        k=self.k
        nokv=k.lab('nokv')
        S0,S1=T+2,T+3
        k('s_lshr_b32 s28, s7, 1'); k('s_cmp_lg_u32 s28, s4'); k(f's_cbranch_scc1 {nokv}')
        k(f'v_lshrrev_b32 v{T+4}, 2, v{V_F}'); k(f'v_lshl_add_u32 v{T+4}, v{V_G}, 3, v{T+4}'); k(f'v_mul_u32_u24 v{T+4}, 40, v{T+4}')
        k(f'v_and_b32 v{T+5}, 3, v{V_LANE}'); k(f'v_lshl_add_u32 v{T+4}, v{T+5}, 3, v{T+4}')
        k('s_mul_i32 s28, s5, 12800'); k(f's_add_u32 s28, s28, {L_WKV}'); k(f'v_add_u32 v{T+4}, s28, v{T+4}')
        kvd=k.lab('kvd')
        vl={(v,c):k.lab('kvv') for v in (0,1) for c in (0,1)}
        k('s_and_b32 s28, s7, 1'); k('s_lshl_b32 s28, s28, 1'); k('s_add_u32 s28, s28, s12')
        for idx,(v,c) in enumerate(((0,1),(0,0),(1,1))):
            k(f's_cmp_eq_u32 s28, {idx}'); k(f's_cbranch_scc1 {vl[(v,c)]}')
        k(f's_branch {vl[(1,0)]}')
        for (variant,with_cs),lab in vl.items():
            k(lab+':')
            fr=[]
            for i in range(10):
                for u in range(2):
                    def rd(r,i=i,u=u):
                        k(f'ds_read_b64_tr_b16 v[{r}:{r+1}], v{T+4} offset:{i*1280+u*32}')
                        k(f'ds_read_b64_tr_b16 v[{r+2}:{r+3}], v{T+4} offset:{i*1280+160+u*32}')
                    def mf(r,i=i,u=u,variant=variant,with_cs=with_cs):
                        c=KVA+4*u; cc=KVC+4*u
                        cs='0' if i==0 else f'v[{c}:{c+3}]'; cs2='0' if i==0 else f'v[{cc}:{cc+3}]'
                        X=f'v[{XF+4*i}:{XF+4*i+3}]'; W=f'v[{r}:{r+3}]'; O_=f'v[{ONES}:{ONES+3}]'
                        if variant==0:
                            k(f'v_mfma_f32_16x16x32_bf16 v[{c}:{c+3}], {W}, {X}, {cs}')
                            if with_cs: k(f'v_mfma_f32_16x16x32_bf16 v[{cc}:{cc+3}], {W}, {O_}, {cs2}')
                        else:
                            k(f'v_mfma_f32_16x16x32_bf16 v[{c}:{c+3}], {X}, {W}, {cs}')
                            if with_cs: k(f'v_mfma_f32_16x16x32_bf16 v[{cc}:{cc+3}], {O_}, {W}, {cs2}')
                        if u==0:
                            a0='0' if i==0 else f'v[{SX}:{SX+3}]'
                            k(f'v_mfma_f32_16x16x32_bf16 v[{SX}:{SX+3}], {O_}, {X}, {a0}')
                        else:
                            a0='0' if i==0 else f'v[{SQ}:{SQ+3}]'
                            k(f'v_mfma_f32_16x16x32_bf16 v[{SQ}:{SQ+3}], {X}, {X}, {a0}')
                    fr.append(dict(read=rd,mfma=mf,vm=((9-i) if (u==0 and not with_cs) else None)))
            self.frag_gemm(fr,WR,7,2)
            k(f's_branch {kvd}')
        k(kvd+':')
        self.diag_stats(SX,SQ,S0,S1,T+6)
        k('s_lshl_b32 s28, s4, 8'); k('s_lshl_b32 s29, s5, 7'); k('s_add_u32 s28, s28, s29'); k(f's_add_u32 s28, s28, {L_STAT}')
        k(f'v_lshl_add_u32 v{T+6}, v{V_F}, 3, s28')
        self.diag_mask_on()
        k(f'ds_write_b64 v{T+6}, v[{S0}:{S1}]')
        k('s_mov_b64 exec, -1')
        k(f'v_add_u32 v{T+5}, {L_KVR}, v{V_L16}')
        a=k.lab('ka'); b_=k.lab('kb')
        k('s_cmp_eq_u32 s5, 1'); k(f's_cbranch_scc1 {a}')
        k(f'ds_write_b128 v{T+5}, v[{KVA+4}:{KVA+7}] offset:2048'); k(f'ds_write_b128 v{T+5}, v[{KVC+4}:{KVC+7}] offset:3072')
        k(f's_branch {b_}')
        k(a+':')
        k(f'ds_write_b128 v{T+5}, v[{KVA}:{KVA+3}]'); k(f'ds_write_b128 v{T+5}, v[{KVC}:{KVC+3}] offset:1024')
        for i in range(4):
            k(f'v_mov_b32 v{KVA+i}, v{KVA+4+i}'); k(f'v_mov_b32 v{KVC+i}, v{KVC+4+i}')
        k(b_+':')
        k('s_add_u32 s28, s13, 1'); k(f'v_mov_b32 v{T+6}, s28')
        k('s_lshl_b32 s29, s5, 2'); k(f's_add_u32 s29, s29, {L_PAIRF}'); k(f'v_mov_b32 v{T+7}, s29')
        k('s_waitcnt lgkmcnt(0)')
        k(f'ds_write_b32 v{T+7}, v{T+6}')
        k(f'v_xor_b32 v{T+7}, 4, v{T+7}')
        sp=k.lab('pr'); spd=k.lab('prd')
        k('s_mov_b32 s30, 0')
        k(sp+':')
        k(f'ds_read_b32 v{T+8}, v{T+7}')
        k('s_waitcnt lgkmcnt(0)')
        k(f'v_cmp_eq_u32 vcc, s28, v{T+8}')
        k(f's_cbranch_vccnz {spd}')
        k('s_add_u32 s30, s30, 1'); k('s_cmp_lt_u32 s30, 0x100000'); k(f's_cbranch_scc1 {sp}')
        k(spd+':')
        KW=WR
        k('s_lshl_b32 s28, s5, 11'); k(f's_add_u32 s28, s28, {L_KVR}')
        k(f'v_add_u32 v{T+5}, s28, v{V_L16}')
        k(f'ds_read_b128 v[{KW}:{KW+3}], v{T+5}'); k(f'ds_read_b128 v[{KW+4}:{KW+7}], v{T+5} offset:1024')
        k('s_lshl_b32 s28, s4, 8'); k(f's_add_u32 s28, s28, {L_STAT}')
        k(f'v_lshl_add_u32 v{T+6}, v{V_F}, 3, s28')
        k(f'ds_read_b64 v[{T+10}:{T+11}], v{T+6}'); k(f'ds_read_b64 v[{T+12}:{T+13}], v{T+6} offset:128')
        k('s_lshl_b32 s28, s5, 10'); k(f's_add_u32 s28, s28, {L_KVCS}'); k(f'v_add_u32 v{T+7}, s28, v{V_L16}')
        c0=k.lab('c0'); c1=k.lab('c1')
        k('s_cmp_eq_u32 s12, 0'); k(f's_cbranch_scc1 {c0}')
        k(f'ds_read_b128 v[{KVC}:{KVC+3}], v{T+7}')
        k('s_waitcnt lgkmcnt(0)')
        k(f's_branch {c1}')
        k(c0+':')
        k('s_waitcnt lgkmcnt(0)')
        for i in range(4): k(f'v_add_f32 v{KVC+i}, v{KVC+i}, v{KW+4+i}')
        k(f'ds_write_b128 v{T+7}, v[{KVC}:{KVC+3}]')
        k(c1+':')
        for i in range(4): k(f'v_add_f32 v{KVA+i}, v{KVA+i}, v{KW+i}')
        MEAN,RSTD=T+14,T+15
        k(f'v_add_f32 v{T+10}, v{T+10}, v{T+12}'); k(f'v_add_f32 v{T+11}, v{T+11}, v{T+13}')
        k(f'v_mul_f32 v{MEAN}, {hex(f2u(1/640))}, v{T+10}'); k(f'v_mul_f32 v{T+11}, {hex(f2u(1/640))}, v{T+11}')
        k(f'v_fma_f32 v{T+11}, -v{MEAN}, v{MEAN}, v{T+11}'); k(f'v_max_f32 v{T+11}, 0, v{T+11}')
        k(f'v_add_f32 v{T+11}, {hex(f2u(1e-5))}, v{T+11}'); k(f'v_rsq_f32 v{RSTD}, v{T+11}')
        k(f'v_mul_f32 v{MEAN}, v{MEAN}, v{RSTD}')
        k('s_lshl_b32 s30, s6, 6'); k('s_lshl_b32 s31, s4, 4'); k('s_add_u32 s30, s30, s31')
        k('s_lshr_b32 s31, s30, 5'); k('s_mul_i32 s31, s31, 3584')
        k(f's_mul_i32 s32, s12, {KV_D}'); k('s_add_u32 s31, s31, s32'); k(f's_add_u32 s31, s31, {KVB[0]}')
        k('s_lshr_b32 s32, s30, 4'); k('s_and_b32 s32, s32, 1')
        isv2=k.lab('isv2')
        k('s_and_b32 s28, s7, 1'); k('s_cmp_eq_u32 s28, 1'); k(f's_cbranch_scc1 {isv2}')
        for i in range(4):
            k(f'v_mul_f32 v{KVA+i}, v{KVA+i}, v{RSTD}'); k(f'v_fma_f32 v{KVA+i}, -v{MEAN}, v{KVC+i}, v{KVA+i}')
        k('s_lshl_b32 s28, s5, 2'); k(f'v_add_u32 v{T+6}, s28, v{V_G}')
        k(f'v_cmp_eq_u32 vcc, 5, v{T+6}')
        for i in range(4): k(f'v_cndmask_b32 v{KVA+i}, v{KVA+i}, 0, vcc')
        k(f'v_cvt_pk_bf16_f32 v{KVA}, v{KVA}, v{KVA+1}'); k(f'v_cvt_pk_bf16_f32 v{KVA+1}, v{KVA+2}, v{KVA+3}')
        k('s_lshl_b32 s28, s32, 4'); k(f'v_add_u32 v{T+7}, s28, v{V_F}')
        k(f'v_lshrrev_b32 v{T+8}, 1, v{T+6}'); k(f'v_lshlrev_b32 v{T+8}, 9, v{T+8}')
        k(f'v_lshl_add_u32 v{T+8}, v{T+7}, 4, v{T+8}')
        k(f'v_and_b32 v{T+9}, 1, v{T+6}'); k(f'v_lshl_add_u32 v{T+8}, v{T+9}, 3, v{T+8}')
        k(f'v_subrev_u32 v{T+9}, 4, v{T+6}'); k(f'v_lshlrev_b32 v{T+9}, 8, v{T+9}')
        k(f'v_lshl_add_u32 v{T+9}, v{T+7}, 3, v{T+9}'); k(f'v_add_u32 v{T+9}, 3072, v{T+9}')
        k(f'v_cmp_gt_u32 vcc, 4, v{T+6}'); k(f'v_cndmask_b32 v{T+8}, v{T+9}, v{T+8}, vcc')
        k(f'v_cmp_gt_u32 vcc, 6, v{T+6}'); k(f'v_mov_b32 v{T+9}, {OOB}'); k(f'v_cndmask_b32 v{T+8}, v{T+9}, v{T+8}, vcc')
        k(f'buffer_store_dwordx2 v[{KVA}:{KVA+1}], v{T+8}, s[{WS}:{WS+3}], s31 offen sc1')
        k(f's_branch {nokv}')
        k(isv2+':')
        k('s_lshl_b32 s28, s4, 8'); k(f's_add_u32 s28, s28, {L_STAT}')
        k(f'v_lshl_add_u32 v{T+6}, v{V_G}, 5, s28')
        Y=WR+8
        k(f'ds_read_b128 v[{Y}:{Y+3}], v{T+6}'); k(f'ds_read_b128 v[{Y+4}:{Y+7}], v{T+6} offset:16')
        k(f'ds_read_b128 v[{Y+8}:{Y+11}], v{T+6} offset:128'); k(f'ds_read_b128 v[{Y+12}:{Y+15}], v{T+6} offset:144')
        k('s_waitcnt lgkmcnt(0)')
        for i in range(4):
            s_,q_=Y+2*i,Y+2*i+1
            k(f'v_add_f32 v{s_}, v{s_}, v{s_+8}'); k(f'v_add_f32 v{q_}, v{q_}, v{q_+8}')
            k(f'v_mul_f32 v{s_}, {hex(f2u(1/640))}, v{s_}'); k(f'v_mul_f32 v{q_}, {hex(f2u(1/640))}, v{q_}')
            k(f'v_fma_f32 v{q_}, -v{s_}, v{s_}, v{q_}'); k(f'v_max_f32 v{q_}, 0, v{q_}'); k(f'v_add_f32 v{q_}, {hex(f2u(1e-5))}, v{q_}')
            k(f'v_rsq_f32 v{q_}, v{q_}')
            k(f'v_fma_f32 v{KVA+i}, -v{s_}, v{KVC+i}, v{KVA+i}')
            k(f'v_mul_f32 v{KVA+i}, v{KVA+i}, v{q_}')
        k('s_lshl_b32 s28, s5, 4'); k(f'v_add_u32 v{T+6}, s28, v{V_F}')
        k(f'v_cmp_eq_u32 vcc, 20, v{T+6}')
        for i in range(4): k(f'v_cndmask_b32 v{KVA+i}, v{KVA+i}, 1.0, vcc')
        k(f'v_cmp_lt_u32 vcc, 20, v{T+6}')
        for i in range(4): k(f'v_cndmask_b32 v{KVA+i}, v{KVA+i}, 0, vcc')
        k(f'v_cvt_pk_bf16_f32 v{KVA}, v{KVA}, v{KVA+1}'); k(f'v_cvt_pk_bf16_f32 v{KVA+1}, v{KVA+2}, v{KVA+3}')
        k('s_lshl_b32 s28, s32, 10'); k('s_add_u32 s28, s28, 1024')
        k(f'v_and_b32 v{T+7}, 1, v{V_G}'); k(f'v_lshlrev_b32 v{T+7}, 9, v{T+7}')
        k(f'v_lshl_add_u32 v{T+7}, v{T+6}, 4, v{T+7}')
        k(f'v_lshrrev_b32 v{T+8}, 1, v{V_G}'); k(f'v_lshl_add_u32 v{T+7}, v{T+8}, 3, v{T+7}')
        k(f'v_add_u32 v{T+7}, s28, v{T+7}')
        k(f'buffer_store_dwordx2 v[{KVA}:{KVA+1}], v{T+7}, s[{WS}:{WS+3}], s31 offen sc1')
        k(nokv+':')

    def phase_qkv(self):
        k=self.k
        XF,WR,ACC,CSA,KVA,KVC,ONES,T=24,64,96,116,124,132,140,144
        SX,SQ=176,180
        l0=k.lab('x0'); l1=k.lab('x1')
        for i in range(4): k(f'v_mov_b32 v{ONES+i}, 0x3f803f80')
        k('s_cmp_eq_u32 s12, 0'); k(f's_cbranch_scc1 {l0}')
        self.x_loads(XF,10,X2B,0,20,10)
        k(f's_branch {l1}')
        k(l0+':')
        k('s_waitcnt vmcnt(0)')
        self.conv_finish(T,L_RED)
        np_=k.lab('np'); pl=k.lab('npl'); pd=k.lab('npd')
        k(f's_cmp_lg_u32 s3, {POLLW}'); k(f's_cbranch_scc1 {np_}')
        k('v_mov_b32 v200, 0'); k('s_mov_b32 s30, 0')
        k(pl+':')
        k('buffer_load_dword v201, v200, s[60:63], 0 offen sc1')
        k('s_waitcnt vmcnt(0)')
        k('v_cmp_eq_u32 vcc, 0, v201')
        k(f's_cbranch_vccz {pd}')
        k('s_add_u32 s30, s30, 1'); k('s_cmp_lt_u32 s30, 0x40000'); k(f's_cbranch_scc1 {pl}')
        k(pd+':')
        k(f'v_mov_b32 v200, {L_NONCE}')
        k('ds_write_b32 v200, v201')
        k('s_waitcnt lgkmcnt(0)')
        k(np_+':')
        k('s_barrier')
        k(f'v_mov_b32 v200, {L_NONCE}')
        k('ds_read_b32 v201, v200')
        k('s_waitcnt lgkmcnt(0)')
        k('v_readfirstlane_b32 s13, v201')
        k(l1+':')
        self.mark("q.start")
        self.kv_first(XF,WR,KVA,KVC,ONES,SX,SQ,T)
        self.mark("q.kv")
        vA,vC=T,T+1
        S0,S1=T+2,T+3
        k('s_mul_i32 s28, s5, 51200')
        k(f'v_add_u32 v{vA}, s28, v{V_TR}')
        k('s_lshl_b32 s29, s4, 5')
        k(f'v_add_u32 v{vC}, s29, v{vA}')
        def stat_mfma(i,ft):
            X=f'v[{XF+4*i}:{XF+4*i+3}]'
            if ft==0:
                cs='0' if i==0 else f'v[{SX}:{SX+3}]'
                k(f'v_mfma_f32_16x16x32_bf16 v[{SX}:{SX+3}], v[{ONES}:{ONES+3}], {X}, {cs}')
            if ft==2:
                cs='0' if i==0 else f'v[{SQ}:{SQ+3}]'
                k(f'v_mfma_f32_16x16x32_bf16 v[{SQ}:{SQ+3}], {X}, {X}, {cs}')
        def mk(with_cs):
            fr=[]
            if not with_cs:
                k('s_mul_i32 s28, s5, 10240'); k(f'v_add_u32 v{vA}, s28, v{V_L16}'); k(f'v_add_u32 v{vC}, 61440, v{vA}')
                for i in range(10):
                    for ft in range(5):
                        va,imm=(vA,ft*20480+i*1024) if ft<3 else (vC,(ft-3)*20480+i*1024)
                        def rd(r,va=va,imm=imm): k(f'ds_read_b128 v[{r}:{r+3}], v{va} offset:{imm}')
                        def mf(r,i=i,ft=ft):
                            c=ACC+4*ft; cs='0' if i==0 else f'v[{c}:{c+3}]'
                            k(f'v_mfma_f32_16x16x32_bf16 v[{c}:{c+3}], v[{r}:{r+3}], v[{XF+4*i}:{XF+4*i+3}], {cs}')
                            stat_mfma(i,ft)
                        fr.append(dict(read=rd,mfma=mf,vm=(9-i) if ft==0 else None))
                self.frag_gemm(fr,WR,7,1)
                return
            for i in range(10):
                for ft in range(5):
                    def rd(r,i=i,ft=ft):
                        k(f'ds_read_b64_tr_b16 v[{r}:{r+1}], v{vA} offset:{i*5120+ft*32}')
                        k(f'ds_read_b64_tr_b16 v[{r+2}:{r+3}], v{vA} offset:{i*5120+1280+ft*32}')
                    def mf(r,i=i,ft=ft):
                        c=ACC+4*ft; cs='0' if i==0 else f'v[{c}:{c+3}]'
                        k(f'v_mfma_f32_16x16x32_bf16 v[{c}:{c+3}], v[{r}:{r+3}], v[{XF+4*i}:{XF+4*i+3}], {cs}')
                        if ft==4:
                            cs='0' if i==0 else f'v[{CSA+4}:{CSA+7}]'
                            k(f'v_mfma_f32_16x16x32_bf16 v[{CSA+4}:{CSA+7}], v[{r}:{r+3}], v[{ONES}:{ONES+3}], {cs}')
                        stat_mfma(i,ft)
                    fr.append(dict(read=rd,mfma=mf))
                def rd(r,i=i):
                    k(f'ds_read_b64_tr_b16 v[{r}:{r+1}], v{vC} offset:{i*5120}')
                    k(f'ds_read_b64_tr_b16 v[{r+2}:{r+3}], v{vC} offset:{i*5120+1280}')
                def mf(r,i=i):
                    cs='0' if i==0 else f'v[{CSA}:{CSA+3}]'
                    k(f'v_mfma_f32_16x16x32_bf16 v[{CSA}:{CSA+3}], v[{r}:{r+3}], v[{ONES}:{ONES+3}], {cs}')
                fr.append(dict(read=rd,mfma=mf))
            self.frag_gemm(fr,WR,7,2)
        m1=k.lab('m1'); m2=k.lab('m2')
        k('s_cmp_eq_u32 s12, 0'); k(f's_cbranch_scc0 {m1}')
        mk(True)
        k('s_mul_i32 s28, s5, 320'); k(f's_add_u32 s28, s28, {L_CS}')
        k(f'v_lshl_add_u32 v{T+7}, v{V_G}, 4, s28')
        k('s_lshl_b32 s29, s4, 6'); k(f'v_add_u32 v{T+8}, s29, v{T+7}')
        k(f'ds_write_b128 v{T+8}, v[{CSA}:{CSA+3}]')
        k(f'ds_write_b128 v{T+7}, v[{CSA+4}:{CSA+7}] offset:256')
        k(f's_branch {m2}')
        k(m1+':')
        mk(False)
        k(m2+':')
        self.mark("q.main")
        nkf=k.lab('nkf')
        k('s_lshr_b32 s28, s7, 1'); k('s_cmp_lg_u32 s28, s4'); k(f's_cbranch_scc1 {nkf}')
        k('s_waitcnt vmcnt(0)')
        k('s_add_u32 s28, s13, 1'); k(f'v_mov_b32 v{T+5}, s28')
        k('s_lshl_b32 s29, s6, 6'); k('s_lshl_b32 s30, s7, 3'); k('s_add_u32 s29, s29, s30'); k('s_lshl_b32 s30, s5, 2'); k('s_add_u32 s29, s29, s30')
        k(f's_add_u32 s29, s29, {KVFLG}')
        k(f'v_mov_b32 v{T+6}, s29')
        k('s_mov_b64 exec, 1')
        k(f'buffer_store_dword v{T+5}, v{T+6}, s[{WS}:{WS+3}], 0 offen sc1')
        k('s_mov_b64 exec, -1')
        k(nkf+':')
        self.mark("q.mm")
        self.diag_stats(SX,SQ,S0,S1,T+6)
        k('s_lshl_b32 s28, s4, 8'); k('s_lshl_b32 s29, s5, 7'); k('s_add_u32 s28, s28, s29'); k(f's_add_u32 s28, s28, {L_STAT}')
        k(f'v_lshl_add_u32 v{T+6}, v{V_F}, 3, s28')
        self.diag_mask_on()
        k(f'ds_write_b64 v{T+6}, v[{S0}:{S1}]')
        k('s_mov_b64 exec, -1')
        self.reduce_pairs(ACC,T+9,L_RED)
        k('s_waitcnt lgkmcnt(0)')
        k('s_barrier')
        Z=XF
        k('s_lshl_b32 s28, s4, 8'); k(f's_add_u32 s28, s28, {L_STAT}')
        k(f'v_lshl_add_u32 v{T+6}, v{V_F}, 3, s28')
        k(f'ds_read_b64 v[{T+10}:{T+11}], v{T+6}'); k(f'ds_read_b64 v[{T+12}:{T+13}], v{T+6} offset:128')
        k('s_mul_i32 s28, s5, 192'); k(f's_add_u32 s28, s28, {L_CS}')
        k(f'v_lshl_add_u32 v{T+7}, v{V_G}, 4, s28')
        CS0=Z+12
        for j in range(3):
            k(f'ds_read_b128 v[{CS0+8*j}:{CS0+8*j+3}], v{T+7} offset:{j*64}')
            k(f'ds_read_b128 v[{CS0+8*j+4}:{CS0+8*j+7}], v{T+7} offset:{320+j*64}')
        self.reduce_pairs_finish(ACC,T+9,Z)
        MEAN,RSTD=T+14,T+15
        k(f'v_add_f32 v{T+10}, v{T+10}, v{T+12}'); k(f'v_add_f32 v{T+11}, v{T+11}, v{T+13}')
        k(f'v_mul_f32 v{MEAN}, {hex(f2u(1/640))}, v{T+10}'); k(f'v_mul_f32 v{T+11}, {hex(f2u(1/640))}, v{T+11}')
        k(f'v_fma_f32 v{T+11}, -v{MEAN}, v{MEAN}, v{T+11}'); k(f'v_max_f32 v{T+11}, 0, v{T+11}')
        k(f'v_add_f32 v{T+11}, {hex(f2u(1e-5))}, v{T+11}'); k(f'v_rsq_f32 v{RSTD}, v{T+11}')
        k(f'v_mul_f32 v{MEAN}, v{MEAN}, v{RSTD}')
        k(f'v_mul_f32 v{T+16}, {hex(f2u(QSCALE))}, v{RSTD}'); k(f'v_mul_f32 v{T+17}, {hex(f2u(QSCALE))}, v{MEAN}')
        k('s_lshl_b32 s28, s4, 4'); k(f'v_add_u32 v{T+18}, s28, v{V_F}'); k(f'v_mul_u32_u24 v{T+18}, 160, v{T+18}')
        k(f'v_lshl_add_u32 v{T+18}, v{V_G}, 3, v{T+18}')
        k('s_mul_i32 s28, s5, 96'); k(f's_add_u32 s28, s28, {L_QL}'); k(f'v_add_u32 v{T+18}, s28, v{T+18}')
        for j in range(3):
            if j==2:
                q3=k.lab('q3'); k('s_cmp_eq_u32 s5, 1'); k(f's_cbranch_scc1 {q3}')
            for i in range(4):
                r=ACC+4*j+i
                k(f'v_add_f32 v{CS0+8*j+i}, v{CS0+8*j+i}, v{CS0+8*j+4+i}')
                k(f'v_mul_f32 v{r}, v{r}, v{T+16}'); k(f'v_fma_f32 v{r}, -v{T+17}, v{CS0+8*j+i}, v{r}')
            k(f'v_cvt_pk_bf16_f32 v{ACC+4*j}, v{ACC+4*j}, v{ACC+4*j+1}'); k(f'v_cvt_pk_bf16_f32 v{ACC+4*j+1}, v{ACC+4*j+2}, v{ACC+4*j+3}')
            k(f'ds_write_b64 v{T+18}, v[{ACC+4*j}:{ACC+4*j+1}] offset:{j*32}')
            if j==2: k(q3+':')
        k('s_waitcnt lgkmcnt(0)')
        self.mark("q.epi")
        self.publish(1)
        self.mark("q.pub")

    def phase_attn(self):
        k=self.k
        D=4; SL=14
        Q1=[24,30]; Q2=[28,34]
        S=[36,52]; O=[68,84]; P=100
        KB=108
        K1=lambda s: KB+s*SL
        V=lambda s: KB+s*SL+4
        K2=lambda s: KB+s*SL+12
        T=KB+D*SL
        VL8=T; NEG=[176,192]
        k(f'v_mul_u32_u24 v{T+1}, 160, v{V_L31}')
        k('s_mul_i32 s28, s4, 40'); k(f's_add_u32 s28, s28, {L_QL}')
        k(f'v_add_u32 v{T+1}, s28, v{T+1}')
        k(f'v_lshl_add_u32 v{T+2}, v{V_H}, 4, v{T+1}')
        for q in range(2):
            k(f'ds_read_b64 v[{Q1[q]}:{Q1[q]+1}], v{T+2} offset:{q*5120}')
            k(f'ds_read_b64 v[{Q1[q]+2}:{Q1[q]+3}], v{T+2} offset:{q*5120+8}')
            k(f'ds_read_b64 v[{Q2[q]}:{Q2[q]+1}], v{T+1} offset:{q*5120+32}')
        k(f'v_lshlrev_b32 v{VL8}, 3, v{V_LANE}')
        k('s_waitcnt lgkmcnt(0)')
        k(f'v_cmp_eq_u32 vcc, 0, v{V_H}')
        for q in range(2):
            for i in range(2): k(f'v_cndmask_b32 v{Q2[q]+i}, 0, v{Q2[q]+i}, vcc')
        self.mark("a.dma")
        VFA,VF=T+6,T+7
        k(f'v_lshlrev_b32 v{VFA}, 2, v{V_LANE}'); k(f'v_add_u32 v{VFA}, {KVFLG}, v{VFA}')
        k('s_add_u32 s38, s13, 1')
        k('s_lshr_b32 s39, s6, 2')
        def spin_group(sg):
            lp=k.lab('sg'); dn=k.lab('sgd')
            k(f's_lshl_b32 s28, s{sg}, 8'); k('s_mov_b32 s30, 0')
            k(lp+':')
            k(f'buffer_load_dword v{VF}, v{VFA}, s[{WS}:{WS+3}], s28 offen sc1')
            k('s_waitcnt vmcnt(0)')
            k(f'v_subrev_u32 v{VF}, s38, v{VF}')
            k(f'v_cmp_le_u32 vcc, 32, v{VF}')
            k(f's_cbranch_vccz {dn}')
            k('s_sleep 2')
            k('s_add_u32 s30, s30, 1'); k('s_cmp_lt_u32 s30, 0x40000'); k(f's_cbranch_scc1 {lp}')
            k(dn+':')
        k(f'v_mov_b32 v{T+8}, {L_BADF}'); k(f'v_mov_b32 v{T+9}, 0'); k(f'ds_write_b32 v{T+8}, v{T+9}')
        k('s_mov_b32 s49, 0')
        k('s_waitcnt lgkmcnt(0)')
        pw=k.lab('pw')
        k(f's_cmp_lg_u32 s3, {POLLW}'); k(f's_cbranch_scc1 {pw}')
        spin_group(39)
        k(pw+':')
        k('s_barrier')
        self.mark("a.wait")
        def ld(slot):
            k(f'buffer_load_dwordx4 v[{K1(slot)}:{K1(slot)+3}], v{V_L16}, s[{WS}:{WS+3}], s32 offen sc1')
            k(f'buffer_load_dwordx2 v[{K2(slot)}:{K2(slot)+1}], v{VL8}, s[{WS}:{WS+3}], s32 offen offset:3072 sc1')
            k(f'buffer_load_dwordx4 v[{V(slot)}:{V(slot)+3}], v{V_L16}, s[{WS}:{WS+3}], s32 offen offset:1024 sc1')
            k(f'buffer_load_dwordx4 v[{V(slot)+4}:{V(slot)+7}], v{V_L16}, s[{WS}:{WS+3}], s32 offen offset:2048 sc1')
            k('s_add_u32 s32, s32, 7168')
        def run_loop(exact,prefetch):
            def qk1(q,s):
                c = f'v[{NEG[q]}:{NEG[q]+15}]' if exact else '0'
                k(f'v_mfma_f32_32x32x16_bf16 v[{S[q]}:{S[q]+15}], v[{K1(s)}:{K1(s)+3}], v[{Q1[q]}:{Q1[q]+3}], {c}')
            def qk2(q,s): k(f'v_mfma_f32_32x32x8_bf16 v[{S[q]}:{S[q]+15}], v[{K2(s)}:{K2(s)+1}], v[{Q2[q]}:{Q2[q]+1}], v[{S[q]}:{S[q]+15}]')
            def pv(q,s,hf): k(f'v_mfma_f32_32x32x16_bf16 v[{O[q]}:{O[q]+15}], v[{V(s)+4*hf}:{V(s)+4*hf+3}], v[{P+4*hf}:{P+4*hf+3}], v[{O[q]}:{O[q]+15}]')
            def ex(q,a):
                for i in range(a,a+4): k(f'v_exp_f32 v{S[q]+i}, v{S[q]+i}')
            def cv(q,a):
                k(f'v_cvt_pk_bf16_f32 v{P+a//2}, v{S[q]+a}, v{S[q]+a+1}')
                k(f'v_cvt_pk_bf16_f32 v{P+a//2+1}, v{S[q]+a+2}, v{S[q]+a+3}')
            k(f's_mul_i32 s33, s12, {KV_D}'); k(f's_add_u32 s33, s33, {KVB[0]}')
            k('s_mul_i32 s28, s5, 3584'); k('s_add_u32 s33, s33, s28')
            k(f's_mul_i32 s28, s39, {8*3584}'); k('s_add_u32 s32, s33, s28')
            k(f's_add_u32 s33, s33, {64*3584}')
            def fload():
                k('s_add_u32 s45, s45, 1'); k('s_and_b32 s45, s45, 7'); k('s_lshl_b32 s46, s45, 8')
                k(f'buffer_load_dword v{VF}, v{VFA}, s[{WS}:{WS+3}], s46 offen sc1')
            def fcheck():
                ok=k.lab('fok')
                k(f'v_subrev_u32 v{VF}, s38, v{VF}')
                k(f'v_cmp_le_u32 vcc, 32, v{VF}')
                k(f's_cbranch_vccz {ok}')
                spin_group(44)
                k(ok+':')
                k('s_cmp_ge_u32 s32, s33'); k(f's_cselect_b32 s28, {64*3584}, 0'); k('s_sub_u32 s32, s32, s28')
            k('s_mov_b32 s45, s39')
            fload(); k('s_mov_b32 s44, s45')
            for t in range(D-1): ld(t)
            for q in range(2):
                for i in range(16): k(f'v_mov_b32 v{O[q]+i}, 0')
            for i in range(4,8): k(f'v_mov_b32 v{P+i}, 0')
            for i in range(4,8): k(f'v_mov_b32 v{V(D-1)+i}, 0')
            k(f's_waitcnt vmcnt({4*(D-2)})')
            qk1(0,0); qk2(0,0)
            k('s_nop 7')
            spf = prefetch and 'spf' in os.environ.get('XP','')
            def body(dma):
                for t in range(D):
                    s=t; sn=(t+1)%D; sp=(t-1)%D
                    qk1(1,s); ex(0,0); pv(1,sp,1)
                    if t==1: fcheck()
                    if t==2:
                        fload_pending=True
                        fload()
                    if dma:
                        k('s_min_u32 m0, s35, 101376')
                        k('s_add_u32 s37, s36, m0')
                        k(f'buffer_load_dwordx4 v{V_L16}, s[{WS}:{WS+3}], s37 offen sc1 lds')
                        k('s_add_u32 s35, s35, 8192')
                    ld(sp)
                    if spf and dma:
                        for n in range(4): k(f's_load_dword s57, s[62:63], {(4*t+n)*128}')
                    if t==2: k('s_mov_b32 s44, s45')
                    ex(0,4); cv(0,0); qk2(1,s); cv(0,4); ex(0,8); pv(0,s,0); ex(0,12); cv(0,8); cv(0,12)
                    nv=4*(D-2)+(2 if dma else 0)+(1 if t in (2,3) else 0)
                    if dma and t==0: nv-=1
                    k(f's_waitcnt vmcnt({nv})')
                    qk1(0,sn); ex(1,0); pv(0,s,1); ex(1,4); cv(1,0); qk2(0,sn); cv(1,4); ex(1,8); pv(1,s,0); ex(1,12); cv(1,8); cv(1,12)
            if spf:
                k('s_and_b32 s28, s6, 3'); k('s_lshl_b32 s28, s28, 3'); k('s_add_u32 s28, s28, s7'); k('s_lshl_b32 s28, s28, 3'); k('s_add_u32 s28, s28, s3')
                k('s_lshl_b32 s28, s28, 13'); k(f's_add_u32 s28, s28, {W1F}')
                k('s_add_u32 s62, s86, s28'); k('s_addc_u32 s63, s87, 0')
            k('s_mov_b32 s34, 0')
            L1=k.lab('al'); k(L1+':')
            body(False)
            k('s_add_u32 s34, s34, 1'); k('s_cmp_lt_u32 s34, 4'); k(f's_cbranch_scc1 {L1}')
            if prefetch:
                nw=k.lab('nw')
                k('s_cmp_lg_u32 s12, 0'); k(f's_cbranch_scc1 {nw}')
                lw=k.lab('lw'); lwd=k.lab('lwd')
                k(f'v_lshrrev_b32 v208, 1, v{V_LANE}'); k('v_lshlrev_b32 v208, 6, v208')
                k(f'v_and_b32 v209, 1, v{V_LANE}'); k('v_lshl_add_u32 v208, v209, 4, v208')
                k('s_mov_b32 s30, 0')
                k(lw+':')
                k(f'buffer_load_dwordx4 v[212:215], v208, s[{WS}:{WS+3}], 0 offen offset:{FLG} sc1')
                k('s_waitcnt vmcnt(0)')
                for r in (212,213,214,215): k(f'v_subrev_u32 v{r}, s38, v{r}')
                k('v_max_u32 v212, v212, v213'); k('v_max_u32 v214, v214, v215'); k('v_max_u32 v212, v212, v214')
                k('v_cmp_le_u32 vcc, 32, v212')
                k(f's_cbranch_vccz {lwd}')
                k('s_add_u32 s30, s30, 1'); k('s_cmp_lt_u32 s30, 0x40000'); k(f's_cbranch_scc1 {lw}')
                k(lwd+':')
                k(nw+':')
                k('s_lshl_b32 s35, s3, 10')
                k(f's_mul_i32 s36, s7, 102400'); k(f's_add_u32 s36, s36, {WOF}')
            L2=k.lab('bl'); k(L2+':')
            body(prefetch)
            if spf: k('s_add_u32 s62, s62, 2048'); k('s_addc_u32 s63, s63, 0')
            k('s_add_u32 s34, s34, 1'); k('s_cmp_lt_u32 s34, 8'); k(f's_cbranch_scc1 {L2}')
            if spf: k('s_waitcnt lgkmcnt(0)')
            pv(1,D-1,1)
            k('s_waitcnt vmcnt(0)')
        run_loop(False,True)
        self.mark("a.loop")
        COMBINE=k.lab('combine'); FALLBACK=k.lab('fallback')
        k(COMBINE+':')
        k('s_nop 7'); k('s_nop 7')
        c1=k.lab('c1'); c2=k.lab('c2')
        k('s_mul_i32 s28, s3, 3072'); k(f's_add_u32 s28, s28, {L_COMB}')
        k(f'v_add_u32 v{T+1}, s28, v{V_L16}')
        k('s_xor_b32 s29, s3, 4'); k('s_mul_i32 s29, s29, 3072'); k(f's_add_u32 s29, s29, {L_COMB}')
        k(f'v_add_u32 v{T+2}, s29, v{V_L16}')
        k('s_cmp_eq_u32 s5, 1'); k(f's_cbranch_scc1 {c1}')
        for r in range(3): k(f'ds_write_b128 v{T+1}, v[{O[1]+4*r}:{O[1]+4*r+3}] offset:{r*1024}')
        k(f's_branch {c2}')
        k(c1+':')
        for r in range(3): k(f'ds_write_b128 v{T+1}, v[{O[0]+4*r}:{O[0]+4*r+3}] offset:{r*1024}')
        for i in range(12): k(f'v_mov_b32 v{O[0]+i}, v{O[1]+i}')
        k(c2+':')
        k('s_waitcnt lgkmcnt(0)')
        k('s_barrier')
        for r in range(3): k(f'ds_read_b128 v[{S[1]+4*r}:{S[1]+4*r+3}], v{T+2} offset:{r*1024}')
        k('s_waitcnt lgkmcnt(0)')
        self.mark("a.comb")
        Oq=O[0]
        for i in range(12): k(f'v_add_f32 v{Oq+i}, v{Oq+i}, v{S[1]+i}')
        k(f'v_mov_b32 v{T+3}, v{Oq+8}'); k(f'v_mov_b32 v{T+4}, v{Oq+8}')
        k(f'v_permlane32_swap_b32 v{T+3}, v{T+4}')
        k(f'v_add_f32 v{T+3}, abs(v{Oq}), abs(v{Oq+1})')
        for i in range(2,12): k(f'v_add_f32 v{T+3}, abs(v{Oq+i}), v{T+3}')
        k(f's_mov_b32 s28, {hex(f2u(2.0**-30))}'); k(f's_mov_b32 s29, {hex(f2u(2.0**60))}'); k(f's_mov_b32 s30, {hex(f2u(2.0**120))}')
        k(f'v_cmp_nle_f32 s[44:45], s28, v{T+4}')
        k(f'v_cmp_nge_f32 s[46:47], s29, v{T+4}')
        k(f'v_cmp_ngt_f32 vcc, s30, v{T+3}')
        k('s_or_b64 s[44:45], s[44:45], s[46:47]'); k('s_or_b64 vcc, vcc, s[44:45]')
        okl=k.lab('okl')
        k(f's_cbranch_vccz {okl}')
        k(f'v_mov_b32 v{T+8}, {L_BADF}'); k(f'v_mov_b32 v{T+9}, 1'); k(f'ds_write_b32 v{T+8}, v{T+9}')
        k(okl+':')
        k(f'v_rcp_f32 v{T+4}, v{T+4}')
        for i in range(12): k(f'v_mul_f32 v{Oq+i}, v{Oq+i}, v{T+4}')
        PK=S[0]
        for p in range(6): k(f'v_cvt_pk_bf16_f32 v{PK+p}, v{Oq+2*p}, v{Oq+2*p+1}')
        k('s_mul_i32 s28, s4, 5')
        k(f'v_add_u32 v{T+5}, s28, v{V_H}')
        k(f'v_lshrrev_b32 v{T+6}, 4, v{V_L31}'); k('s_lshl_b32 s29, s5, 1'); k(f'v_add_u32 v{T+6}, s29, v{T+6}')
        k(f'v_mul_u32_u24 v{T+6}, 2560, v{T+6}'); k(f'v_lshl_add_u32 v{T+6}, v{V_F}, 4, v{T+6}'); k(f'v_add_u32 v{T+6}, {L_OIMG}, v{T+6}')
        for pc in range(3):
            g_=T+7
            if pc==0: k(f'v_mov_b32 v{g_}, v{T+5}')
            elif pc==1: k(f'v_add_u32 v{g_}, 2, v{T+5}')
            else:
                k(f'v_mov_b32 v{g_}, s28'); k(f'v_add_u32 v{g_}, 4, v{g_}')
            k(f'v_lshrrev_b32 v{T+8}, 1, v{g_}'); k(f'v_lshlrev_b32 v{T+8}, 8, v{T+8}')
            k(f'v_and_b32 v{T+9}, 1, v{g_}'); k(f'v_lshl_add_u32 v{T+8}, v{T+9}, 3, v{T+8}')
            k(f'v_add_u32 v{T+8}, v{T+8}, v{T+6}')
            if pc==2:
                k('s_mov_b32 exec_hi, 0')
            k(f'ds_write_b64 v{T+8}, v[{PK+2*pc}:{PK+2*pc+1}]')
            if pc==2: k('s_mov_b64 exec, -1')
        k('s_waitcnt lgkmcnt(0)')
        k('s_barrier')
        k(f'v_mov_b32 v{T+8}, {L_BADF}'); k(f'ds_read_b32 v{T+9}, v{T+8}')
        k('s_waitcnt lgkmcnt(0)')
        k(f'v_readfirstlane_b32 s28, v{T+9}')
        k('s_lshl_b32 s29, s49, 1'); k('s_cmp_gt_u32 s28, s29')
        k(f's_cbranch_scc1 {FALLBACK}')
        k(f's_mul_i32 s31, s12, {OF_D}'); k(f's_add_u32 s31, s31, {OFB[0]}')
        k('s_mul_i32 s28, s6, 81920'); k('s_add_u32 s31, s31, s28'); k('s_mul_i32 s28, s7, 2560'); k('s_add_u32 s31, s31, s28')
        for rnd in range(2):
            lab=k.lab('oc')
            if rnd==1:
                k('s_cmp_ge_u32 s3, 2'); k(f's_cbranch_scc1 {lab}')
            k('s_lshl_b32 s28, s3, 6'); k(f's_add_u32 s28, s28, {512*rnd}')
            k(f'v_add_u32 v{T+5}, s28, v{V_LANE}')
            k(f'v_lshlrev_b32 v{T+6}, 4, v{T+5}'); k(f'v_add_u32 v{T+6}, {L_OIMG}, v{T+6}')
            k(f'ds_read_b128 v[{PK}:{PK+3}], v{T+6}')
            k(f'v_mul_u32_u24 v{T+7}, 410, v{T+5}'); k(f'v_lshrrev_b32 v{T+7}, 16, v{T+7}')
            k(f'v_mul_u32_u24 v{T+8}, 160, v{T+7}'); k(f'v_sub_u32 v{T+8}, v{T+5}, v{T+8}')
            k(f'v_mul_u32_u24 v{T+7}, 20480, v{T+7}'); k(f'v_lshl_add_u32 v{T+7}, v{T+8}, 4, v{T+7}')
            k('s_waitcnt lgkmcnt(0)')
            k(f'buffer_store_dwordx4 v[{PK}:{PK+3}], v{T+7}, s[{WS}:{WS+3}], s31 offen sc1')
            k(lab+':')
        self.mark("a.epi")
        self.publish(2)
        self.mark("a.pub")
        AFTER=k.lab('after'); k(f's_branch {AFTER}')
        k(FALLBACK+':')
        k('s_barrier')
        def kvptr():
            k(f's_mul_i32 s32, s12, {KV_D}'); k(f's_add_u32 s32, s32, {KVB[0]}')
            k('s_mul_i32 s28, s5, 3584'); k('s_add_u32 s32, s32, s28')
        def mq1(q,c): k(f'v_mfma_f32_32x32x16_bf16 v[{S[q]}:{S[q]+15}], v[{K1(0)}:{K1(0)+3}], v[{Q1[q]}:{Q1[q]+3}], {c}')
        def mq2(q): k(f'v_mfma_f32_32x32x8_bf16 v[{S[q]}:{S[q]+15}], v[{K2(0)}:{K2(0)+1}], v[{Q2[q]}:{Q2[q]+1}], v[{S[q]}:{S[q]+15}]')
        MX=[T+10,T+11]
        for q in range(2): k(f'v_mov_b32 v{MX[q]}, 0xff800000')
        kvptr(); k('s_mov_b32 s34, 0')
        l1=k.lab('fb1'); k(l1+':')
        ld(0); k('s_waitcnt vmcnt(0)')
        for q in range(2):
            mq1(q,'0'); mq2(q)
        for q in range(2):
            for i in range(0,16,2): k(f'v_max3_f32 v{MX[q]}, v{S[q]+i}, v{S[q]+i+1}, v{MX[q]}')
        k('s_add_u32 s34, s34, 1'); k('s_cmp_lt_u32 s34, 32'); k(f's_cbranch_scc1 {l1}')
        for q in range(2):
            k(f'v_mov_b32 v{T+12}, v{MX[q]}'); k(f'v_permlane32_swap_b32 v{MX[q]}, v{T+12}'); k(f'v_max_f32 v{MX[q]}, v{MX[q]}, v{T+12}')
        k('s_lshl_b32 s28, s3, 9'); k(f's_add_u32 s28, s28, {L_COMB}')
        k(f'v_lshl_add_u32 v{T+12}, v{V_LANE}, 3, s28')
        k(f'ds_write_b64 v{T+12}, v[{MX[0]}:{MX[1]}]')
        k('s_waitcnt lgkmcnt(0)'); k('s_barrier')
        k('s_xor_b32 s28, s3, 4'); k('s_lshl_b32 s28, s28, 9'); k(f's_add_u32 s28, s28, {L_COMB}')
        k(f'v_lshl_add_u32 v{T+12}, v{V_LANE}, 3, s28')
        k(f'ds_read_b64 v[{T+14}:{T+15}], v{T+12}')
        k('s_waitcnt lgkmcnt(0)'); k('s_barrier')
        for q in range(2): k(f'v_max_f32 v{MX[q]}, v{MX[q]}, v{T+14+q}')
        for q in range(2):
            for i in range(16): k(f'v_sub_f32 v{NEG[q]+i}, 0, v{MX[q]}')
            for i in range(16): k(f'v_mov_b32 v{O[q]+i}, 0')
        kvptr(); k('s_mov_b32 s34, 0')
        l2=k.lab('fb2'); k(l2+':')
        ld(0); k('s_waitcnt vmcnt(0)')
        for q in range(2):
            mq1(q,f'v[{NEG[q]}:{NEG[q]+15}]'); mq2(q)
            for i in range(16): k(f'v_exp_f32 v{S[q]+i}, v{S[q]+i}')
            for p in range(8): k(f'v_cvt_pk_bf16_f32 v{P+p}, v{S[q]+2*p}, v{S[q]+2*p+1}')
            for hf in range(2):
                k(f'v_mfma_f32_32x32x16_bf16 v[{O[q]}:{O[q]+15}], v[{V(0)+4*hf}:{V(0)+4*hf+3}], v[{P+4*hf}:{P+4*hf+3}], v[{O[q]}:{O[q]+15}]')
        k('s_add_u32 s34, s34, 1'); k('s_cmp_lt_u32 s34, 32'); k(f's_cbranch_scc1 {l2}')
        k('s_mov_b32 s49, 1')
        k(f's_branch {COMBINE}')
        k(AFTER+':')

    def phase_oproj(self):
        k=self.k
        XF,WR,ACC,T=24,64,96,144
        self.wait(2)
        self.mark("o.wait")
        self.x_loads(XF,10,OFB[0],OF_D,20,10)
        vA,vC=T,T+1
        k('s_mul_i32 s28, s5, 10240'); k(f'v_add_u32 v{vA}, s28, v{V_L16}'); k(f'v_add_u32 v{vC}, 61440, v{vA}')
        fr=[]
        for i in range(10):
            for ft in range(5):
                va,imm=(vA,ft*20480+i*1024) if ft<3 else (vC,(ft-3)*20480+i*1024)
                def rd(r,va=va,imm=imm): k(f'ds_read_b128 v[{r}:{r+3}], v{va} offset:{imm}')
                def mf(r,i=i,ft=ft):
                    c=ACC+4*ft; cs='0' if i==0 else f'v[{c}:{c+3}]'
                    k(f'v_mfma_f32_16x16x32_bf16 v[{c}:{c+3}], v[{r}:{r+3}], v[{XF+4*i}:{XF+4*i+3}], {cs}')
                fr.append(dict(read=rd,mfma=mf,vm=(9-i) if ft==0 else None))
        self.frag_gemm(fr,WR,7,1)
        self.mark("o.mm")
        self.reduce_pairs(ACC,T+9,L_ORED)
        k('s_waitcnt lgkmcnt(0)')
        k('s_barrier')
        self.reduce_pairs_finish(ACC,T+9,XF)
        self.mark("o.red")
        self.epilogue_res(ACC,T,X1B[0],X1_D,stats=True,bias=None,final=False)
        self.mark("o.epi")
        self.publish(3)
        self.mark("o.pub")
        self.fc1_early_w()

    def epilogue_res(self,ACC,T,dst,dst_d,stats,bias,final,vout=None):
        k=self.k
        self.tile_offsets(44)
        if dst_d:
            k(f's_mul_i32 s28, s12, {dst_d}'); k(f's_add_u32 s28, s28, {dst}')
        else: k(f's_mov_b32 s28, {dst}')
        for j in range(3): k(f's_add_u32 s{44+j}, s{44+j}, s28')
        k('s_mov_b32 s47, 0xffff0000')
        VD=T+15
        k(f'v_lshrrev_b32 v{VD}, 1, v{V_G}'); k(f'v_lshlrev_b32 v{VD}, 8, v{VD}'); k(f'v_lshl_add_u32 v{VD}, v{V_F}, 4, v{VD}')
        k(f'v_and_b32 v{T+14}, 1, v{V_G}'); k(f'v_lshl_add_u32 v{VD}, v{T+14}, 3, v{VD}')
        S0,S1=T+10,T+11
        if stats:
            k(f'v_mov_b32 v{S0}, 0'); k(f'v_mov_b32 v{S1}, 0'); k(f'v_mov_b32 v{T+12}, 0x3f803f80')
        skip=k.lab('e3')
        for j in range(3):
            if j==2:
                k('s_cmp_eq_u32 s5, 1'); k(f's_cbranch_scc1 {skip}')
            r=ACC+4*j
            k(f'v_lshlrev_b32 v{T}, 16, v{V_RES+2*j}'); k(f'v_and_b32 v{T+1}, s47, v{V_RES+2*j}')
            k(f'v_lshlrev_b32 v{T+2}, 16, v{V_RES+2*j+1}'); k(f'v_and_b32 v{T+3}, s47, v{V_RES+2*j+1}')
            for i in range(4): k(f'v_add_f32 v{r+i}, v{r+i}, v{T+i}')
            if bias is not None:
                k(f'v_lshlrev_b32 v{T}, 16, v{bias+2*j}'); k(f'v_and_b32 v{T+1}, s47, v{bias+2*j}')
                k(f'v_lshlrev_b32 v{T+2}, 16, v{bias+2*j+1}'); k(f'v_and_b32 v{T+3}, s47, v{bias+2*j+1}')
                for i in range(4): k(f'v_add_f32 v{r+i}, v{r+i}, v{T+i}')
            k(f'v_cvt_pk_bf16_f32 v{V_RES+2*j}, v{r}, v{r+1}'); k(f'v_cvt_pk_bf16_f32 v{V_RES+2*j+1}, v{r+2}, v{r+3}')
            if final:
                fl=k.lab('fin'); fd=k.lab('fd')
                k('s_cmp_eq_u32 s12, 1'); k(f's_cbranch_scc1 {fl}')
                k(f'buffer_store_dwordx2 v[{V_RES+2*j}:{V_RES+2*j+1}], v{VD}, s[{WS}:{WS+3}], s{44+j} offen sc1')
                k(f's_branch {fd}')
                k(fl+':')
                k(f'buffer_store_dwordx2 v[{V_RES+2*j}:{V_RES+2*j+1}], v{vout}, s[{SC}:{SC+3}], 0 offen offset:{j*32}')
                k(fd+':')
            else:
                k(f'buffer_store_dwordx2 v[{V_RES+2*j}:{V_RES+2*j+1}], v{VD}, s[{WS}:{WS+3}], s{44+j} offen sc1')
            if stats:
                k(f'v_dot2c_f32_bf16 v{S0}, v{V_RES+2*j}, v{T+12}'); k(f'v_dot2c_f32_bf16 v{S1}, v{V_RES+2*j}, v{V_RES+2*j}')
                k(f'v_dot2c_f32_bf16 v{S0}, v{V_RES+2*j+1}, v{T+12}'); k(f'v_dot2c_f32_bf16 v{S1}, v{V_RES+2*j+1}, v{V_RES+2*j+1}')
        k(skip+':')
        if stats:
            sum_g(k,S0,T+13); sum_g(k,S1,T+13)
            k(f'v_lshlrev_b32 v{T+13}, 3, v{V_F}')
            k('s_lshl_b32 s28, s6, 4'); k('s_lshl_b32 s29, s7, 1'); k('s_add_u32 s28, s28, s29'); k('s_add_u32 s28, s28, s5')
            k('s_lshl_b32 s28, s28, 9'); k('s_lshl_b32 s29, s4, 7'); k('s_add_u32 s28, s28, s29')
            k(f's_mul_i32 s29, s12, {ST_D}'); k('s_add_u32 s28, s28, s29'); k(f's_add_u32 s28, s28, {STB[0]}')
            k(f'v_cmp_eq_u32 vcc, 0, v{V_G}'); k(f'v_mov_b32 v{T+14}, {OOB}'); k(f'v_cndmask_b32 v{T+13}, v{T+14}, v{T+13}, vcc')
            k(f'buffer_store_dwordx2 v[{S0}:{S1}], v{T+13}, s[{WS}:{WS+3}], s28 offen sc1')

    def w2_chunk_dma(self, e_expr_sgpr):
        k=self.k; e=e_expr_sgpr
        def head():
            k(f's_lshr_b32 s53, s{e}, 1'); k(f's_and_b32 s54, s{e}, 1')
            k('s_mul_i32 s54, s54, 27'); k('s_add_u32 s54, s54, s53')
            k('s_mul_i32 s55, s7, 270'); k('s_add_u32 s54, s54, s55'); k('s_lshl_b32 s54, s54, 10'); k(f's_add_u32 s54, s54, {W2F}')
            k(f's_mul_i32 s55, s{e}, 5120')
        def one(j):
            if j==0: head()
            k('s_mov_b32 m0, s55')
            k(f'buffer_load_dwordx4 v{V_L16}, s[{WS}:{WS+3}], s54 offen sc1 lds')
            k(f's_add_u32 s54, s54, {54*1024}'); k('s_add_u32 s55, s55, 1024')
        return [lambda j=j: one(j) for j in range(5)]

    W2R=128
    def w2r_setup(self):
        k=self.k
        k('s_lshr_b32 s28, s3, 1'); k('s_and_b32 s29, s3, 1')
        k('s_mul_i32 s29, s29, 27'); k('s_add_u32 s29, s29, s28')
        k('s_mul_i32 s28, s7, 270'); k('s_add_u32 s29, s29, s28')
        for g,first in enumerate((15,19,23)):
            k(f's_add_u32 s{58+g}, s29, {first}'); k(f's_lshl_b32 s{58+g}, s{58+g}, 10'); k(f's_add_u32 s{58+g}, s{58+g}, {W2F}')
    def w2r_load(self,n):
        k=self.k; g,ft=n//5,n%5; r=self.W2R+4*n
        k(f's_add_u32 s61, s{58+g}, {ft*54*1024}')
        k(f'buffer_load_dwordx4 v[{r}:{r+3}], v{V_L16}, s[{WS}:{WS+3}], s61 offen sc1')
    def fc1_early_w(self):
        k=self.k
        lab=k.lab('ew')
        k('s_cmp_ge_u32 s3, s41'); k(f's_cbranch_scc1 {lab}')
        k('s_mul_i32 s42, s40, 40960'); k(f's_add_u32 s42, s42, {W1F}')
        for s in range(self.F1A): self.f1_wload(s)
        k(lab+':')
    F1A=int(os.environ.get('F1A','12'))
    def f1_wreg(self,s): return 96+4*s
    def f1_wload(self,s):
        k=self.k; r=self.f1_wreg(s)
        k(f'buffer_load_dwordx4 v[{r}:{r+3}], v{V_L16}, s[{WS}:{WS+3}], s42 offen offset:{(s%4)*1024} sc1')
        if s%4==3: k('s_add_u32 s42, s42, 4096')

    def gelu_group_scalar(self,A,a,MR,CSV,B1F,TT,KC,vaddr,s_h):
        o=[]; PK=TT+4
        R=[A+4*a+i for i in range(4)]; t=[TT+i for i in range(4)]
        for i in range(4): o.append(f'v_fma_f32 v{t[i]}, -v{MR}, v{CSV+4*a+i}, v{B1F+4*a+i}')
        for i in range(4): o.append(f'v_fma_f32 v{R[i]}, v{R[i]}, v{MR+1}, v{t[i]}')
        for i in range(4): o.append(f'v_mul_f32 v{t[i]}, v{R[i]}, v{R[i]}')
        for i in range(4): o.append(f'v_fma_f32 v{t[i]}, v{t[i]}, v{KC+2}, v{KC}')
        for i in range(4): o.append(f'v_mul_f32 v{t[i]}, v{t[i]}, v{R[i]}')
        for i in range(4): o.append(f'v_exp_f32 v{t[i]}, v{t[i]}')
        for i in range(4): o.append(f'v_add_f32 v{t[i]}, 1.0, v{t[i]}')
        for i in range(4): o.append(f'v_rcp_f32 v{t[i]}, v{t[i]}')
        for i in range(4): o.append(f'v_mul_f32 v{R[i]}, v{R[i]}, v{t[i]}')
        o+= [f'v_cvt_pk_bf16_f32 v{PK}, v{R[0]}, v{R[1]}', f'v_cvt_pk_bf16_f32 v{PK+1}, v{R[2]}, v{R[3]}']
        o.append(f'buffer_store_dwordx2 v[{PK}:{PK+1}], v{vaddr}, s[{WS}:{WS+3}], s{s_h} offen offset:{a*256} sc1')
        return o
    def gelu_group(self,A,a,MR,CSV,B1F,TT,KC,vaddr,s_h):
        P=lambda r: f'v[{r}:{r+1}]'
        KC0,KC1,KONE=KC,KC+2,KC+4
        r0,r1=A+4*a,A+4*a+2
        t=[TT,TT+2]; PK=TT+4
        o=[]
        for e in range(2): o.append(f'v_pk_fma_f32 {P(t[e])}, {P(MR)}, {P(CSV+4*a+2*e)}, {P(B1F+4*a+2*e)} op_sel_hi:[0,1,1] neg_lo:[1,0,0] neg_hi:[1,0,0]')
        for e,r in enumerate((r0,r1)): o.append(f'v_pk_fma_f32 {P(r)}, {P(r)}, {P(MR)}, {P(t[e])} op_sel:[0,1,0] op_sel_hi:[1,1,1]')
        for e,r in enumerate((r0,r1)): o.append(f'v_pk_mul_f32 {P(t[e])}, {P(r)}, {P(r)}')
        for e,r in enumerate((r0,r1)): o.append(f'v_pk_fma_f32 {P(t[e])}, {P(t[e])}, {P(KC1)}, {P(KC0)}')
        for e,r in enumerate((r0,r1)): o.append(f'v_pk_mul_f32 {P(t[e])}, {P(t[e])}, {P(r)}')
        for e in range(2): o+= [f'v_exp_f32 v{t[e]}, v{t[e]}', f'v_exp_f32 v{t[e]+1}, v{t[e]+1}']
        for e in range(2): o.append(f'v_pk_add_f32 {P(t[e])}, {P(t[e])}, {P(KONE)}')
        for e in range(2): o+= [f'v_rcp_f32 v{t[e]}, v{t[e]}', f'v_rcp_f32 v{t[e]+1}, v{t[e]+1}']
        for e,r in enumerate((r0,r1)): o.append(f'v_pk_mul_f32 {P(r)}, {P(r)}, {P(t[e])}')
        o+= [f'v_cvt_pk_bf16_f32 v{PK}, v{r0}, v{r0+1}', f'v_cvt_pk_bf16_f32 v{PK+1}, v{r1}, v{r1+1}']
        o.append(f'buffer_store_dwordx2 v[{PK}:{PK+1}], v{vaddr}, s[{WS}:{WS+3}], s{s_h} offen offset:{a*256} sc1')
        return o

    def phase_fc1(self):
        k=self.k
        A0,A1,XF,CS,ONE,vX,WB=24,40,56,88,89,90,96
        self.wait(3)
        self.mark("f1.wait")
        k('s_mul_i32 s28, s6, 81920'); k(f's_mul_i32 s29, s12, {X1_D}'); k('s_add_u32 s28, s28, s29'); k(f's_add_u32 s28, s28, {X1B[0]}')
        k('s_mul_i32 s29, s3, 10240'); k('s_add_u32 s28, s28, s29')
        for i in range(10):
            k(f's_add_u32 m0, s29, {i*1024}')
            k(f'buffer_load_dwordx4 v{V_L16}, s[{WS}:{WS+3}], s28 offen sc1 lds')
            k('s_add_u32 s28, s28, 1024')
        act=k.lab('act'); fin=k.lab('fin')
        k('s_cmp_lt_u32 s3, s41'); k(f's_cbranch_scc1 {act}')
        n7=k.lab('n7'); n7w=k.lab('n7w')
        U=96
        k('s_cmp_lg_u32 s3, 7'); k(f's_cbranch_scc1 {n7w}')
        k(f'v_lshlrev_b32 v{U}, 3, v{V_LANE}')
        k('s_lshl_b32 s28, s6, 13'); k(f's_mul_i32 s29, s12, {ST_D}'); k('s_add_u32 s28, s28, s29'); k(f's_add_u32 s28, s28, {STB[0]}')
        for q in range(16):
            k(f'buffer_load_dwordx2 v[{A0+2*q}:{A0+2*q+1}], v{U}, s[{WS}:{WS+3}], s28 offen offset:{(q%8)*512} sc1')
            if q==7: k('s_add_u32 s28, s28, 4096')
        k('s_waitcnt vmcnt(0)')
        for q in range(1,16):
            k(f'v_add_f32 v{A0}, v{A0}, v{A0+2*q}'); k(f'v_add_f32 v{A0+1}, v{A0+1}, v{A0+2*q+1}')
        m_,r_,v_=U+2,U+3,A0+1
        k(f'v_mul_f32 v{m_}, {hex(f2u(1/640))}, v{A0}'); k(f'v_mul_f32 v{v_}, {hex(f2u(1/640))}, v{v_}')
        k(f'v_fma_f32 v{v_}, -v{m_}, v{m_}, v{v_}'); k(f'v_max_f32 v{v_}, 0, v{v_}')
        k(f'v_add_f32 v{A0+2}, {hex(f2u(1e-5))}, v{v_}'); k(f'v_rsq_f32 v{r_}, v{A0+2}')
        k(f'v_mul_f32 v{A0+3}, v{r_}, v{r_}'); k(f'v_mul_f32 v{A0+3}, v{A0+3}, v{v_}')
        k(f'v_add_f32 v{A0+3}, {hex(f2u(1e-5))}, v{A0+3}'); k(f'v_rsq_f32 v{A0+3}, v{A0+3}')
        k(f'v_mul_f32 v{r_}, v{r_}, v{A0+3}'); k(f'v_mul_f32 v{m_}, v{m_}, v{r_}')
        k(f'v_add_u32 v{U}, {L_TOKST}, v{U}')
        k(f'ds_write_b64 v{U}, v[{m_}:{r_}]')
        k(n7w+':')
        k('s_waitcnt vmcnt(0) lgkmcnt(0)')
        k('s_barrier')
        k('s_cmp_lg_u32 s3, 7'); k(f's_cbranch_scc1 {n7}')
        W2E=os.environ.get('W2E','1')=='1'
        if W2E:
            for e in range(16,30):
                k(f's_mov_b32 s52, {e}')
                for f in self.w2_chunk_dma(52): f()
        k(n7+':')
        self.w2r_setup()
        for n in range(15): self.w2r_load(n)
        k('s_barrier')
        k('s_cmp_lg_u32 s3, 7'); k(f's_cbranch_scc1 {fin}')
        for e in list(range(0,8))+[15]+([] if W2E else list(range(16,30))):
            k(f's_mov_b32 s52, {e}')
            for f in self.w2_chunk_dma(52): f()
        k('s_cmp_eq_u32 s41, 7'); k(f's_cbranch_scc1 {fin}')
        k('s_mov_b32 s52, 14')
        for f in self.w2_chunk_dma(52): f()
        k(f's_branch {fin}')
        k(act+':')
        srd(k,SA,P_B1,1728*2)
        B1R=72
        k('s_lshl_b32 s28, s40, 6')
        k(f'v_lshl_add_u32 v{vX}, v{V_H}, 3, s28')
        for a in range(4): k(f'buffer_load_dwordx2 v[{B1R+2*a}:{B1R+2*a+1}], v{vX}, s[{SA}:{SA+3}], 0 offen offset:{a*16}')
        k('s_waitcnt vmcnt(0)')
        k('s_barrier')
        self.mark("f1.x")
        k(f'v_lshrrev_b32 v{vX}, 4, v{V_L31}'); k(f'v_mul_u32_u24 v{vX}, 20480, v{vX}')
        k(f'v_lshl_add_u32 v{vX}, v{V_H}, 8, v{vX}'); k(f'v_lshl_add_u32 v{vX}, v{V_F}, 4, v{vX}')
        k(f'v_mov_b32 v{ONE}, 0x3f803f80'); k(f'v_mov_b32 v{CS}, 0')
        k('s_cmp_lg_u32 s12, 0'); k('s_cselect_b64 vcc, -1, 0')
        def rd(tt,s):
            ks,u=s//2,s%2
            x=XF+(s%4)*4
            k(f'ds_read_b128 v[{x}:{x+3}], v{vX} offset:{tt*40960+ks*1024+u*512}')
        F1A=self.F1A
        def pass1(with_cs):
            rd(0,0); rd(0,1); rd(0,2)
            for s in range(40):
                if s+F1A<40: self.f1_wload(s+F1A)
                if s+3<40: rd(0,s+3)
                w=f's_waitcnt lgkmcnt({min(3,39-s)})'
                if s>=F1A: w+=f' vmcnt({min(F1A,39-s)})'
                k(w)
                wr=self.f1_wreg(s); x=XF+(s%4)*4
                c0='0' if s==0 else f'v[{A0}:{A0+15}]'
                k(f'v_mfma_f32_32x32x16_bf16 v[{A0}:{A0+15}], v[{wr}:{wr+3}], v[{x}:{x+3}], {c0}')
                if with_cs:
                    for r in range(4): k(f'v_dot2c_f32_bf16 v{CS}, v{wr+r}, v{ONE}')
        p1=k.lab('p1'); p1d=k.lab('p1d')
        k(f's_cbranch_vccnz {p1}')
        pass1(True)
        k(f's_branch {p1d}')
        k(p1+':')
        pass1(False)
        k(p1d+':')
        ncs=k.lab('ncs')
        k(f's_cbranch_vccnz {ncs}')
        k(f'v_mov_b32 v91, v{CS}'); k(f'v_permlane32_swap_b32 v{CS}, v91'); k(f'v_add_f32 v{CS}, v{CS}, v91')
        k('s_lshl_b32 s28, s3, 7'); k(f's_add_u32 s28, s28, {L_CS1}')
        k(f'v_lshl_add_u32 v91, v{V_L31}, 2, s28')
        k(f'ds_write_b32 v91, v{CS}')
        k(ncs+':')
        k('s_waitcnt lgkmcnt(0)')
        self.mark("f1.p1")
        CSV,B1F,MR0,MR1,TT,KC,VA=96,112,80,82,16,84,91
        side=[]
        def S(x): side.append(x)
        S(f's_lshl_b32 s28, s3, 7'); S(f's_add_u32 s28, s28, {L_CS1}'); S(f'v_lshl_add_u32 v{VA}, v{V_H}, 4, s28')
        pre_reads=[f'ds_read_b128 v[{CSV+4*a}:{CSV+4*a+3}], v{VA} offset:{a*32}' for a in range(4)]
        c0=-2*0.7978845608028654*1.4426950408889634; c1=c0*0.044715
        for i in range(2):
            k(f'v_mov_b32 v{KC+i}, {hex(f2u(c0))}'); k(f'v_mov_b32 v{KC+2+i}, {hex(f2u(c1))}')
        KONE_=92
        k(f'v_mov_b32 v{KONE_}, 1.0'); k(f'v_mov_b32 v{KONE_+1}, 1.0')
        k(f'v_lshlrev_b32 v94, 3, v{V_L31}'); k(f'v_add_u32 v94, {L_TOKST}, v94')
        k(f'ds_read_b64 v[{MR0}:{MR0+1}], v94'); k(f'ds_read_b64 v[{MR1}:{MR1+1}], v94 offset:256')
        k(f'v_lshrrev_b32 v95, 4, v{V_L31}'); k(f's_mov_b32 s28, {54*1024}'); k('v_mul_lo_u32 v95, v95, s28')
        k(f'v_lshl_add_u32 v95, v{V_H}, 3, v95'); k(f'v_lshl_add_u32 v95, v{V_F}, 4, v95')
        for tt in range(2):
            k('s_lshl_b32 s28, s6, 2'); k(f's_add_u32 s28, s28, {2*tt}'); k('s_mul_i32 s28, s28, 54'); k('s_add_u32 s28, s28, s40')
            k('s_lshl_b32 s28, s28, 10'); k(f's_mul_i32 s29, s12, {HF_D}'); k('s_add_u32 s28, s28, s29'); k(f's_add_u32 s{56+tt}, s28, {HFB[0]}')
        k('s_mov_b32 s47, 0xffff0000')
        self.w2r_setup()
        k('s_waitcnt lgkmcnt(0)')
        rd(1,0); rd(1,1); rd(1,2)
        def gg(A,a,MR,sh):
            o=self.gelu_group(A,a,MR,CSV,B1F,TT,KC,95,sh)
            return [x.replace(f'v[{KC+4}:{KC+5}]',f'v[{KONE_}:{KONE_+1}]') for x in o]
        work=[]
        for a in range(4): work+=self.gelu_group_scalar(A0,a,MR0,CSV,B1F,TT,KC,95,56)
        nper=-(-len(work)//27)
        wi=0; lds_extra=0
        for s in range(40):
            if s+3<40: rd(1,s+3)
            extra=0
            if s==8:
                k(f's_lshl_b32 s28, s3, 7'); k(f's_add_u32 s28, s28, {L_CS1}'); k(f'v_lshl_add_u32 v{VA}, v{V_H}, 4, s28')
                for x in pre_reads: k(x)
                extra=4
            k(f's_waitcnt lgkmcnt({min(3,39-s)+extra})')
            wr=self.f1_wreg(s); x=XF+(s%4)*4
            c1s='0' if s==0 else f'v[{A1}:{A1+15}]'
            k(f'v_mfma_f32_32x32x16_bf16 v[{A1}:{A1+15}], v[{wr}:{wr+3}], v[{x}:{x+3}], {c1s}')
            if s in (9,10):
                for a in ((0,1) if s==9 else (2,3)):
                    k(f'v_lshlrev_b32 v{B1F+4*a}, 16, v{B1R+2*a}'); k(f'v_and_b32 v{B1F+4*a+1}, s47, v{B1R+2*a}')
                    k(f'v_lshlrev_b32 v{B1F+4*a+2}, 16, v{B1R+2*a+1}'); k(f'v_and_b32 v{B1F+4*a+3}, s47, v{B1R+2*a+1}')
            if 24<=s<39: self.w2r_load(s-24)
            if s>=12:
                for _ in range(nper):
                    if wi<len(work): k(work[wi]); wi+=1
        while wi<len(work): k(work[wi]); wi+=1
        k('s_barrier')
        self.mark("f1.mm")
        k('s_add_u32 s52, s3, 8')
        dm=self.w2_chunk_dma(52)
        for a in range(4):
            for x in gg(A1,a,MR1,57): k(x)
            if dm: dm.pop(0)()
            if a==3:
                while dm: dm.pop(0)()
        k(fin+':')
        self.mark("f1.epi")
        self.publish(4)
        self.mark("f1.pub")

    def phase_fc2(self):
        k=self.k
        HX,WR,ACC=20,188,216
        vA,vB,vC,BI,VO,vW=236,237,238,240,246,247
        W2R=self.W2R
        srd(k,SB,P_B2,1280)
        srd(k,SC,P_OUT,2048*1280)
        k('s_mul_i32 s28, s7, 160'); k('s_mul_i32 s29, s5, 96'); k('s_add_u32 s28, s28, s29')
        k(f'v_lshl_add_u32 v{vA}, v{V_G}, 3, s28')
        for j in range(3): k(f'buffer_load_dwordx2 v[{BI+2*j}:{BI+2*j+1}], v{vA}, s[{SB}:{SB+3}], 0 offen offset:{j*32}')
        k('s_movk_i32 s29, 1280'); k(f'v_mul_lo_u32 v{VO}, v{V_TOK}, s29'); k(f'v_add_u32 v{VO}, v{VO}, v{vA}')
        self.wait(4)
        self.mark("f2.wait")
        XP=os.environ.get('XP','')
        if 'noh' not in XP: self.x_loads(HX,27,HFB[0],HF_D,54,27)
        if 'hwait' in XP:
            k('s_waitcnt vmcnt(0)'); self.mark("f2.h")
        k('s_mul_i32 s28, s5, 5120')
        k(f'v_add_u32 v{vA}, s28, v{V_L16}'); k(f'v_add_u32 v{vB}, 61440, v{vA}'); k(f'v_add_u32 v{vC}, 122880, v{vA}')
        k('s_lshr_b32 s28, s3, 1'); k('s_mul_i32 s28, s28, 10240'); k('s_and_b32 s29, s3, 1'); k('s_mul_i32 s29, s29, 5120'); k('s_add_u32 s28, s28, s29')
        k(f'v_add_u32 v{vW}, s28, v{V_L16}')
        k(f'v_add_u32 v{vW+1}, 81920, v{vW}')
        NS=15
        slot=lambda i: i if i<NS else i-NS
        def refill(g):
            for ft in range(5):
                r=W2R+4*(5*g+ft)
                va,imm=(vW,g*40960+ft*1024) if g<2 else (vW+1,ft*1024)
                k(f'ds_write_b128 v{va}, v[{r}:{r+3}] offset:{imm}')
        DEPTH=int(os.environ.get('F2D','6'))
        bar={10:[0,1],15:[2],23:[]} if os.environ.get('F2B','3')=='3' else {7:[0],11:[1],15:[2],19:[],23:[]}
        fr=[]
        for i in range(27):
            for ft in range(5):
                j=slot(i); va,imm=((vA,vB,vC)[j//6],(j%6)*10240)
                def rd(r,va=va,imm=imm,ft=ft): k(f'ds_read_b128 v[{r}:{r+3}], v{va} offset:{imm+ft*1024}')
                def mf(r,i=i,ft=ft):
                    c=ACC+4*ft; cs='0' if i==0 else f'v[{c}:{c+3}]'
                    k(f'v_mfma_f32_16x16x32_bf16 v[{c}:{c+3}], v[{r}:{r+3}], v[{HX+4*i}:{HX+4*i+3}], {cs}')
                d=dict(read=rd,mfma=mf)
                if ft==0:
                    d['vm']=26-i
                    if i in bar:
                        def pre(i=i):
                            if 'nobar' not in XP: k('s_barrier')
                            if 'norf' not in XP:
                                for g in bar[i]: refill(g)
                        d['pre']=pre
                fr.append(d)
        self.frag_gemm(fr,WR,DEPTH,1)
        self.mark("f2.mm")
        k('s_barrier')
        nl=k.lab('nl')
        k('s_cmp_eq_u32 s12, 1'); k(f's_cbranch_scc1 {nl}')
        self.dma_lin_slice(WQF); self.dma_wkv()
        k(nl+':')
        T=48
        self.reduce_pairs(ACC,T+9,L_RED)
        k('s_waitcnt lgkmcnt(0)')
        k('s_barrier')
        self.reduce_pairs_finish(ACC,T+9,24)
        self.epilogue_res(ACC,T,X2B,0,stats=False,bias=BI,final=True,vout=VO)
        self.mark("f2.epi")

    def build(self):
        k=self.k
        self.prologue()
        self.mark0("p.start")
        self.x0_loads(24,144)
        nn=k.lab('nn2')
        k('s_cmp_lg_u32 s2, 0'); k(f's_cbranch_scc1 {nn}')
        k('s_cmp_lg_u32 s3, 5'); k(f's_cbranch_scc1 {nn}')
        k('s_waitcnt vmcnt(13)')
        k(f'v_mov_b32 v200, {NONCE}')
        k('v_add_u32 v201, 4096, v201'); k('v_or_b32 v201, 1, v201')
        k('s_mov_b64 exec, 1')
        k(f'buffer_store_dword v201, v200, s[{WS}:{WS+3}], 0 offen sc1')
        k('v_mov_b32 v200, 0')
        k('buffer_store_dword v201, v200, s[60:63], 0 offen sc1')
        k('s_mov_b64 exec, -1')
        k(nn+':')
        if 'cs.x' in os.environ.get('MARKS',''):
            k('s_waitcnt vmcnt(0)'); self.mark0("cs.x")
        self.dma_w160(P_WQ); self.dma_wkv()
        self.conv_issue(L_RED,self.CONV_A+self.CONV_B)
        self.tlb_warm()
        self.mark0("p.issued")
        LOOP='mega_layer'
        k(LOOP+':')
        self.phase_qkv(); self.stopat('qkv')
        self.phase_attn(); self.stopat('attn')
        self.phase_oproj(); self.stopat('oproj')
        self.phase_fc1(); self.stopat('fc1')
        self.phase_fc2(); self.stopat('fc2')
        k('s_cmp_eq_u32 s12, 1'); k(f's_cbranch_scc1 {self.END}')
        self.publish(5)
        self.wait(5)
        k('s_mov_b32 s12, 1'); k('s_add_u32 s13, s13, 5')
        k(f's_branch {LOOP}')
        k(self.END+':')
        if self.stamps:
            k('s_waitcnt vmcnt(0) lgkmcnt(0)')
            k(f'{self.clk} s[100:101]'); k('s_waitcnt lgkmcnt(0)')
            k('s_lshl_b32 s28, s2, 3'); k('s_add_u32 s28, s28, s3'); k('s_lshl_b32 s28, s28, 6'); k(f's_add_u32 s28, s28, {STAMP_OFF}')
            k('s_add_u32 s30, s86, s28'); k('s_addc_u32 s31, s87, 0')
            k('v_mov_b32 v24, 0')
            for i in range(13):
                k(f'v_mov_b32 v25, s{88+i}')
                k(f'global_store_dword v24, v25, s[30:31] offset:{4*i}')
        k('mega_kernel_exit:')
        k('s_endpgm')
        return k

def gen_init():
    k=Kern('init_kernel',vgpr=8,sgpr=24)
    k('s_cmp_ge_u32 s2, 1'); k('s_cbranch_scc1 init_kernel_end')
    k('s_load_dwordx2 s[4:5], s[0:1], 96')
    k('s_waitcnt lgkmcnt(0)')
    srd(k,8,4,4096,FLG)
    k('v_lshlrev_b32 v1, 4, v0')
    for i in range(4): k(f'v_mov_b32 v{2+i}, 0')
    k('buffer_store_dwordx4 v[2:5], v1, s[8:11], 0 offen')
    k('init_kernel_end:')
    k('s_endpgm')
    return k
```

```python
import os, struct
from asmlib import *
from mlayout import *

def f2u(x): return struct.unpack('<I',struct.pack('<f',x))[0]
P_X,P_WQ,P_WK,P_WV,P_WO,P_W1,P_B1,P_W2,P_B2,P_OUT=64,66,68,70,72,76,78,80,82,84
WS=8
SA,SB,SC=16,20,24
OOB='0x40000000'
V_LANE,V_F,V_G,V_L16,V_L31,V_H,V_TR,V_RES,V_TOK,V_D=1,2,3,4,5,6,7,8,14,16
L_WKV=102400
L_RED=128000
L_KVR=148480
L_STAT=152576
L_CS=163136
L_NONCE=163776
L_BADF=163780
L_PAIRF=163784
L_KVCS=155008
NONCE=FLG+2048+64
L_QL=102400
L_COMB=112640
L_OIMG=137216
L_ORED=102400
L_TOKST=153600
L_CS1=154112
LDS_TOTAL=160*1024
STAMP_OFF=100<<20
POLLW=7

def srd(k,d,p,size,off=0):
    k(f's_add_u32 s{d}, s{p}, {off}' if off else f's_mov_b32 s{d}, s{p}')
    k(f's_addc_u32 s{d+1}, s{p+1}, 0' if off else f's_mov_b32 s{d+1}, s{p+1}')
    k(f's_and_b32 s{d+1}, s{d+1}, 0xffff')
    k(f's_mov_b32 s{d+2}, {size}')
    k(f's_mov_b32 s{d+3}, 0x20000')

def sum_g(k,x,tmp):
    k(f'v_mov_b32 v{tmp}, v{x}')
    k(f'v_permlane16_swap_b32 v{x}, v{tmp}')
    k(f'v_add_f32 v{x}, v{x}, v{tmp}')
    k(f'v_mov_b32 v{tmp}, v{x}')
    k(f'v_permlane32_swap_b32 v{x}, v{tmp}')
    k(f'v_add_f32 v{x}, v{x}, v{tmp}')

KNAME='interleave_layers__grouped_kv_mqa__mixer_channel_mlp__prompt_kernel'
class Mega:
    def __init__(self, stamps=False, stop=None):
        self.k=Kern(KNAME,vgpr=256,sgpr=102)
        self.stamps=stamps; self.stop=stop; self.END='mega_kernel_end'
        self.mark_layer=int(os.environ.get('MARKL','1'))
        self.clk='s_memrealtime' if os.environ.get('RT') else 's_memtime'
    def mark(self,name):
        if not self.stamps: return
        ms=os.environ.get('MARKS','').split(',')
        if name not in ms: return
        i=ms.index(name)
        k=self.k
        k(f'{self.clk} s[100:101]')
        k('s_waitcnt lgkmcnt(0)')
        k(f's_cmp_eq_u32 s12, {self.mark_layer}')
        k(f's_cselect_b32 s{88+i}, s100, s{88+i}')
    def mark0(self,name):
        if not self.stamps: return
        ms=os.environ.get('MARKS','').split(',')
        if name not in ms: return
        i=ms.index(name); k=self.k
        k(f'{self.clk} s[100:101]'); k('s_waitcnt lgkmcnt(0)'); k(f's_mov_b32 s{88+i}, s100')
    def stopat(self,name):
        if self.stop==name:
            k=self.k
            k(f's_cmp_eq_u32 s12, {int(os.environ.get("STOPL","0"))}')
            k(f's_cbranch_scc1 {self.END}')

    def publish(self,j):
        k=self.k
        k('s_waitcnt vmcnt(0)')
        k('s_barrier')
        lab=k.lab('pub')
        k('s_cmp_lg_u32 s3, 0')
        k(f's_cbranch_scc1 {lab}')
        k(f's_add_u32 s28, s13, {j}')
        k('v_mov_b32 v22, s28')
        k('s_lshl_b32 s29, s6, 6'); k('s_lshl_b32 s30, s7, 2'); k('s_add_u32 s29, s29, s30')
        k('v_mov_b32 v21, s29')
        k('s_mov_b64 exec, 1')
        k(f'buffer_store_dword v22, v21, s[{WS}:{WS+3}], 0 offen offset:{FLG} sc1')
        k('s_mov_b64 exec, -1')
        k(lab+':')
    def wait(self,j,allwg=False,others=None):
        k=self.k
        lab=k.lab('w'); loop=k.lab('poll'); done=k.lab('pd')
        wide = allwg or others is not None
        k(f's_cmp_lg_u32 s3, {POLLW}')
        k(f's_cbranch_scc1 {lab}')
        k(f's_add_u32 s28, s13, {j}')
        if wide:
            k(f'v_lshrrev_b32 v22, 1, v{V_LANE}'); k('v_lshlrev_b32 v21, 6, v22')
            k(f'v_and_b32 v16, 1, v{V_LANE}'); k('v_lshl_add_u32 v21, v16, 4, v21')
            if others is not None:
                k(f's_add_u32 s29, s13, {others}')
                k('v_cmp_eq_u32 vcc, s6, v22')
                k('v_mov_b32 v23, s29'); k('v_mov_b32 v22, s28')
                k('v_cndmask_b32 v22, v23, v22, vcc')
            else: k('v_mov_b32 v22, s28')
        else:
            k(f'v_and_b32 v21, 7, v{V_LANE}'); k('v_lshlrev_b32 v21, 2, v21')
            k('s_lshl_b32 s29, s6, 6'); k('v_add_u32 v21, s29, v21')
            k('v_mov_b32 v22, s28')
        k('s_mov_b32 s30, 0')
        k(loop+':')
        if wide:
            k(f'buffer_load_dwordx4 v[16:19], v21, s[{WS}:{WS+3}], 0 offen offset:{FLG} sc1')
            k('s_waitcnt vmcnt(0)')
            for r in (16,17,18,19): k(f'v_sub_u32 v{r}, v{r}, v22')
            k('v_max_u32 v16, v16, v17'); k('v_max_u32 v18, v18, v19'); k('v_max_u32 v16, v16, v18')
        else:
            k(f'buffer_load_dword v16, v21, s[{WS}:{WS+3}], 0 offen offset:{FLG} sc1')
            k('s_waitcnt vmcnt(0)')
            k('v_sub_u32 v16, v16, v22')
        k('v_cmp_le_u32 vcc, 32, v16')
        k(f's_cbranch_vccz {done}')
        k('s_add_u32 s30, s30, 1')
        k(f's_cmp_lt_u32 s30, 0x40000')
        k(f's_cbranch_scc1 {loop}')
        k(done+':')
        k(lab+':')
        k('s_barrier')

    def dma_chunk160(self, s_srd, s_soff, s_m0):
        k=self.k
        for j in range(5):
            k(f's_mov_b32 m0, s{s_m0}')
            k(f'buffer_load_dwordx4 v{V_D+j}, s[{s_srd}:{s_srd+3}], s{s_soff} offen lds')
            if j<4: k(f's_add_u32 s{s_m0}, s{s_m0}, 1024')
    def dma_w160(self,ptr,skip_poller=False):
        k=self.k
        srd(k,SA,ptr,640*1280)
        nw=7 if skip_poller else 8
        end=k.lab('dw')
        if skip_poller:
            k(f's_cmp_eq_u32 s3, {POLLW}'); k(f's_cbranch_scc1 {end}')
        for t in range(3):
            lab=k.lab('wq')
            k(f's_add_u32 s28, s3, {nw*t}')
            if nw*t+nw>20:
                k('s_cmp_ge_u32 s28, 20'); k(f's_cbranch_scc1 {lab}')
            k('s_mul_i32 s29, s28, 40960'); k('s_mul_i32 s30, s28, 5120')
            self.dma_chunk160(SA,29,30)
            k(lab+':')
        k(end+':')
    def dma_wkv(self):
        k=self.k
        k('s_and_b32 s28, s7, 1'); k('s_cmp_eq_u32 s28, 0')
        k(f's_cselect_b32 s30, s{P_WK}, s{P_WV}'); k(f's_cselect_b32 s31, s{P_WK+1}, s{P_WV+1}')
        srd(k,SB,30,25600)
        for t in range(4):
            lab=k.lab('wk')
            k(f's_add_u32 s28, s3, {8*t}')
            if t==3:
                k('s_cmp_ge_u32 s28, 25'); k(f's_cbranch_scc1 {lab}')
            k('s_lshl_b32 s29, s28, 10'); k(f's_add_u32 s30, s29, {L_WKV}')
            k('s_mov_b32 m0, s30')
            k(f'buffer_load_dwordx4 v{V_L16}, s[{SB}:{SB+3}], s29 offen lds')
            k(lab+':')
    def l2_prefetch(self, s_srd, total, nwaves, wave0, vtmp, base_off=0):
        k=self.k
        per=(total//32+127)//128*128
        ninst=(per+8191)//8192
        pw=(ninst+nwaves-1)//nwaves
        k('s_and_b32 s28, s6, 3'); k('s_lshl_b32 s28, s28, 3'); k('s_add_u32 s28, s28, s7')
        k(f's_mul_i32 s28, s28, {per}')
        k(f's_sub_u32 s29, s3, {wave0}'); k(f's_mul_i32 s29, s29, {pw*8192}'); k('s_add_u32 s28, s28, s29')
        if base_off: k(f's_add_u32 s28, s28, {base_off}')
        k(f'v_lshlrev_b32 v{vtmp}, 7, v{V_LANE}')
        for n in range(pw):
            k(f'buffer_load_dword v{vtmp+1}, v{vtmp}, s[{s_srd}:{s_srd+3}], s28 offen')
            k('s_add_u32 s28, s28, 8192')
        return pw

    def prologue(self):
        k=self.k
        k('s_cmp_ge_u32 s2, 256')
        k(f's_cbranch_scc1 mega_kernel_exit')
        k('s_load_dwordx16 s[64:79], s[0:1], 0')
        k('s_load_dwordx4 s[80:83], s[0:1], 64')
        k('s_load_dwordx2 s[84:85], s[0:1], 80')
        k('s_load_dwordx2 s[86:87], s[0:1], 96')
        k('s_load_dwordx2 s[58:59], s[0:1], 88')
        if self.stamps: k(f'{self.clk} s[100:101]')
        k('v_lshrrev_b32 v24, 6, v0')
        k(f'v_and_b32 v{V_LANE}, 63, v0')
        k('v_readfirstlane_b32 s3, v24')
        k('s_and_b32 s4, s3, 3'); k('s_lshr_b32 s5, s3, 2')
        k('s_and_b32 s6, s2, 7'); k('s_lshl_b32 s6, s6, 2'); k('s_lshr_b32 s7, s2, 3'); k('s_and_b32 s7, s7, 3'); k('s_add_u32 s6, s6, s7'); k('s_lshr_b32 s7, s2, 5')
        k(f'v_and_b32 v{V_F}, 15, v{V_LANE}')
        k(f'v_lshrrev_b32 v{V_G}, 4, v{V_LANE}')
        k(f'v_lshlrev_b32 v{V_L16}, 4, v{V_LANE}')
        k(f'v_and_b32 v{V_L31}, 31, v{V_LANE}')
        k(f'v_lshrrev_b32 v{V_H}, 5, v{V_LANE}')
        k(f'v_lshrrev_b32 v24, 2, v{V_F}')
        k(f'v_and_b32 v25, 1, v{V_G}'); k('v_lshl_add_u32 v24, v25, 2, v24')
        k(f'v_lshrrev_b32 v25, 1, v{V_G}'); k('v_lshl_add_u32 v24, v25, 4, v24')
        k('v_mul_u32_u24 v24, 160, v24')
        k(f'v_and_b32 v25, 3, v{V_LANE}')
        k(f'v_lshl_add_u32 v{V_TR}, v25, 3, v24')
        k('s_lshl_b32 s28, s6, 6'); k('s_lshl_b32 s29, s4, 4'); k('s_add_u32 s28, s28, s29')
        k(f'v_add_u32 v{V_TOK}, s28, v{V_F}')
        k('s_mul_i32 s29, s7, 160')
        for j in range(5):
            k(f'v_add_u32 v24, {64*j}, v{V_LANE}')
            k('v_mul_u32_u24 v25, 6554, v24'); k('v_lshrrev_b32 v25, 16, v25')
            k('v_mul_u32_u24 v26, 10, v25'); k('v_sub_u32 v26, v24, v26')
            k('v_and_b32 v27, 0x13, v25')
            k('v_bfe_u32 v28, v25, 3, 1'); k('v_lshl_add_u32 v27, v28, 2, v27')
            k('v_bfe_u32 v28, v25, 2, 1'); k('v_lshl_add_u32 v27, v28, 3, v27')
            k('v_mul_u32_u24 v27, 1280, v27')
            k('v_lshl_add_u32 v27, v26, 4, v27')
            k(f'v_add_u32 v{V_D+j}, s29, v27')
        k('s_waitcnt lgkmcnt(0)')
        if self.stamps:
            k('s_mov_b32 s99, s100')
            for i in range(11): k(f's_mov_b32 s{88+i}, 0')
        srd(k,WS,86,WS_USED)
        k('s_mov_b32 s12, 0'); k('s_mov_b32 s13, 0')
        srd(k,60,58,256)
        nn=k.lab('nn')
        k('s_cmp_lg_u32 s2, 0'); k(f's_cbranch_scc1 {nn}')
        k('s_cmp_lg_u32 s3, 5'); k(f's_cbranch_scc1 {nn}')
        k(f'v_mov_b32 v200, {NONCE}')
        k(f'buffer_load_dword v201, v200, s[{WS}:{WS+3}], 0 offen sc1')
        k(nn+':')
        k('s_mul_i32 s40, s7, 7'); k('s_sub_u32 s28, s7, 6'); k('s_max_i32 s28, s28, 0'); k('s_sub_u32 s40, s40, s28')
        k('s_cmp_ge_u32 s7, 6'); k('s_cselect_b32 s41, 6, 7')
        k('s_add_u32 s40, s40, s3')

    def x0_loads(self,XF,T):
        k=self.k
        srd(k,SC,P_X,2048*1280)
        k('s_movk_i32 s28, 1280')
        k(f'v_mul_lo_u32 v{T}, v{V_TOK}, s28')
        k(f'v_lshl_add_u32 v{T+1}, v{V_G}, 4, v{T}')
        k('s_mul_i32 s29, s5, 640')
        k(f'v_add_u32 v{T+1}, s29, v{T+1}')
        if 'xlin' in os.environ.get('XP',''):
            k('s_lshl_b32 s28, s6, 2'); k('s_add_u32 s28, s28, s4'); k('s_mul_i32 s28, s28, 20'); k('s_mul_i32 s29, s5, 10'); k('s_add_u32 s28, s28, s29'); k('s_lshl_b32 s28, s28, 10')
            for i in range(10):
                k(f'buffer_load_dwordx4 v[{XF+4*i}:{XF+4*i+3}], v{V_L16}, s[{SC}:{SC+3}], s28 offen offset:{(i%4)*1024}')
                if i%4==3: k('s_add_u32 s28, s28, 4096')
        else:
          for i in range(10):
            k(f'buffer_load_dwordx4 v[{XF+4*i}:{XF+4*i+3}], v{T+1}, s[{SC}:{SC+3}], 0 offen offset:{i*64}')
        k(f'v_lshl_add_u32 v{T+1}, v{V_G}, 3, v{T}')
        k('s_mul_i32 s29, s7, 160'); k('s_mul_i32 s30, s5, 96'); k('s_add_u32 s29, s29, s30')
        k(f'v_add_u32 v{T+1}, s29, v{T+1}')
        for j in range(3):
            k(f'buffer_load_dwordx2 v[{V_RES+2*j}:{V_RES+2*j+1}], v{T+1}, s[{SC}:{SC+3}], 0 offen offset:{j*32}')

    def conv_issue(self, stage, kinds):
        k=self.k
        done=k.lab('cvd'); go=k.lab('cvg')
        total=sum(x[5] for x in kinds)
        k('s_mov_b32 s50, 0')
        k('s_lshl_b32 s28, s3, 8'); k('s_add_u32 s28, s28, s2')
        k(f's_cmp_ge_u32 s28, {total}'); k(f's_cbranch_scc1 {done}')
        labs=[k.lab('cvk') for _ in kinds]
        acc=0
        for idx,x in enumerate(kinds[:-1]):
            acc+=x[5]
            k(f's_cmp_lt_u32 s28, {acc}'); k(f's_cbranch_scc1 {labs[idx]}')
        k(f's_branch {labs[-1]}')
        acc=0
        for idx,(name,ptr,rows,stride,ncg,njobs,dst,layout) in enumerate(kinds):
            k(labs[idx]+':')
            if acc: k(f's_sub_u32 s28, s28, {acc}')
            magic=-(-65536//ncg)
            assert all((j*magic)>>16==j//ncg for j in range(njobs))
            k(f's_mul_i32 s29, s28, {magic}'); k('s_lshr_b32 s29, s29, 16')
            k(f's_mul_i32 s30, s29, {ncg}'); k('s_sub_u32 s30, s28, s30')
            srd(k,SA,ptr,rows*stride)
            k(f's_movk_i32 s31, {stride}')
            k(f's_mov_b32 s50, {1 if layout=="w1" else 2}')
            if layout=='w1':
                k('s_mul_i32 s51, s30, 80'); k('s_lshl_b32 s32, s29, 1'); k('s_add_u32 s51, s51, s32')
                k('s_mov_b32 s57, 0')
            else:
                KS=rows//32
                k(f's_mul_i32 s51, s30, {4*KS}'); k('s_add_u32 s51, s51, s29')
                k(f's_mov_b32 s57, {KS*1024}')
            k('s_lshl_b32 s51, s51, 10'); k(f's_add_u32 s51, s51, {dst}')
            k(f's_branch {go}')
            acc+=njobs
        k(go+':')
        k(f'v_lshrrev_b32 v200, 3, v{V_LANE}'); k('v_mul_lo_u32 v200, v200, s31')
        k(f'v_and_b32 v201, 7, v{V_LANE}'); k('v_lshl_add_u32 v200, v201, 4, v200')
        k('s_lshl_b32 s32, s29, 5'); k('s_mul_i32 s32, s32, s31'); k('s_lshl_b32 s33, s30, 7'); k('s_add_u32 s32, s32, s33')
        k('s_lshl_b32 s33, s31, 3')
        k('s_lshl_b32 s34, s3, 12'); k(f's_add_u32 s34, s34, {stage}')
        for i in range(4):
            k('s_mov_b32 m0, s34')
            k(f'buffer_load_dwordx4 v200, s[{SA}:{SA+3}], s32 offen lds')
            if i<3:
                k('s_add_u32 s32, s32, s33'); k('s_add_u32 s34, s34, 1024')
        k(done+':')
    def conv_finish(self,T,stage):
        k=self.k
        done=k.lab('cfd'); w2=k.lab('cf2')
        k('s_cmp_eq_u32 s50, 0'); k(f's_cbranch_scc1 {done}')
        k('s_lshl_b32 s34, s3, 12'); k(f's_add_u32 s34, s34, {stage}')
        k(f'v_lshrrev_b32 v{T}, 2, v{V_F}')
        k(f'v_and_b32 v{T+1}, 3, v{V_LANE}')
        k('s_cmp_eq_u32 s50, 2'); k(f's_cbranch_scc1 {w2}')
        k(f'v_lshl_add_u32 v{T}, v{V_H}, 3, v{T}'); k(f'v_lshlrev_b32 v{T}, 7, v{T}')
        k(f'v_and_b32 v{T+2}, 1, v{V_G}'); k(f'v_lshl_add_u32 v{T}, v{T+2}, 5, v{T}')
        k(f'v_lshl_add_u32 v{T}, v{T+1}, 3, v{T}'); k(f'v_add_u32 v{T}, s34, v{T}')
        fr=[(p,u) for p in range(2) for u in range(2)]
        for n,(p,u) in enumerate(fr):
            b=T+4+4*n
            k(f'ds_read_b64_tr_b16 v[{b}:{b+1}], v{T} offset:{u*2048+p*64}')
            k(f'ds_read_b64_tr_b16 v[{b+2}:{b+3}], v{T} offset:{u*2048+p*64+512}')
        k('s_waitcnt lgkmcnt(0)')
        for n,(p,u) in enumerate(fr):
            b=T+4+4*n
            k(f's_add_u32 s32, s51, {(p*40+u)*1024}')
            k(f'buffer_store_dwordx4 v[{b}:{b+3}], v{V_L16}, s[{WS}:{WS+3}], s32 offen sc1')
        k(f's_branch {done}')
        k(w2+':')
        k(f'v_lshl_add_u32 v{T}, v{V_G}, 3, v{T}'); k(f'v_lshlrev_b32 v{T}, 7, v{T}')
        k(f'v_lshl_add_u32 v{T}, v{T+1}, 3, v{T}'); k(f'v_add_u32 v{T}, s34, v{T}')
        for n in range(4):
            b=T+4+4*n
            k(f'ds_read_b64_tr_b16 v[{b}:{b+1}], v{T} offset:{n*32}')
            k(f'ds_read_b64_tr_b16 v[{b+2}:{b+3}], v{T} offset:{n*32+512}')
        k('s_waitcnt lgkmcnt(0)')
        k('s_mov_b32 s32, s51')
        for n in range(4):
            b=T+4+4*n
            k(f'buffer_store_dwordx4 v[{b}:{b+3}], v{V_L16}, s[{WS}:{WS+3}], s32 offen sc1')
            if n<3: k('s_add_u32 s32, s32, s57')
        k(done+':')
    CONV_A=[('wo',P_WO,640,1280,10,200,WOF,'a16'),('wq',P_WQ,640,1280,10,200,WQF,'a16')]
    CONV_B=[('w1',P_W1,640,3456,27,540,W1F,'w1'),('w2',P_W2,1728,1280,10,540,W2F,'a16')]

    def dma_lin_slice(self, src_const, waves=8):
        k=self.k
        k(f's_mul_i32 s28, s7, 102400'); k(f's_add_u32 s28, s28, {src_const}')
        k('s_lshl_b32 s29, s3, 10'); k('s_add_u32 s28, s28, s29')
        for n in range(13):
            lab=None
            if n==12:
                lab=k.lab('dl'); k('s_cmp_ge_u32 s3, 4'); k(f's_cbranch_scc1 {lab}')
            k('s_mov_b32 m0, s29')
            k(f'buffer_load_dwordx4 v{V_L16}, s[{WS}:{WS+3}], s28 offen sc1 lds')
            if n<12:
                k('s_add_u32 s28, s28, 8192'); k('s_add_u32 s29, s29, 8192')
            if lab: k(lab+':')

    def tlb_warm(self):
        k=self.k
        lab=k.lab('tw')
        k('s_cmp_lg_u32 s3, 6'); k(f's_cbranch_scc1 {lab}')
        k(f'v_lshlrev_b32 v200, 19, v{V_LANE}')
        k(f'buffer_load_dword v201, v200, s[{WS}:{WS+3}], 0 offen')
        for ptr,size in ((P_W1,640*3456),(P_W2,1728*1280),(P_OUT,2048*1280),(P_WO,640*1280),(P_B1,3456),(P_B2,1280)):
            srd(k,SA,ptr,size)
            k(f'buffer_load_dword v201, v200, s[{SA}:{SA+3}], 0 offen')
        if 'cpf' in os.environ.get('XP',''):
            k('s_getpc_b64 s[56:57]')
            k('mega_code_here:')
            k('s_mov_b32 s28, mega_code_end-mega_code_here-4')
            k(f'v_lshlrev_b32 v200, 7, v{V_LANE}')
            for n in range(8):
                k('v_min_u32 v202, s28, v200')
                k('global_load_dword v201, v202, s[56:57]')
                k('v_add_u32 v200, 8192, v200')
        k(lab+':')

    def frag_gemm(self, frags, WR, depth, nread, after=None):
        k=self.k
        n=len(frags); slots=depth+1
        reg=lambda i: WR+(i%slots)*4
        def issue(i):
            if frags[i].get('pre'): frags[i]['pre']()
            frags[i]['read'](reg(i))
        for i in range(min(depth,n)): issue(i)
        for i in range(n):
            if i+depth<n: issue(i+depth)
            rem=min(depth,n-1-i)
            w=f's_waitcnt lgkmcnt({rem*nread})'
            vm=frags[i].get('vm')
            if vm is not None:
                v=vm() if callable(vm) else vm
                if v is not None: w+=f' vmcnt({v})'
            k(w)
            frags[i]['mfma'](reg(i))
            if after and i in after: after[i]()

    def diag_stats(self,SX,SQ,S0,S1,tmp):
        k=self.k
        k(f'v_and_b32 v{tmp}, 3, v{V_LANE}')
        k(f'v_mov_b32 v{S1}, v{SQ}')
        for r in (1,2,3):
            k(f'v_cmp_eq_u32 vcc, {r}, v{tmp}'); k(f'v_cndmask_b32 v{S1}, v{S1}, v{SQ+r}, vcc')
        k(f'v_mov_b32 v{S0}, v{SX}')
    def diag_mask_on(self):
        k=self.k
        k('s_mov_b32 exec_lo, 0x00f0000f'); k('s_mov_b32 exec_hi, 0xf0000f00')
    def reduce_pairs(self, ACC, tmp, base):
        k=self.k
        k('s_mul_i32 s28, s4, 5120'); k(f's_add_u32 s28, s28, {base}')
        k(f'v_add_u32 v{tmp}, s28, v{V_L16}')
        l1=k.lab('r1'); l2=k.lab('r2')
        k('s_cmp_eq_u32 s5, 1'); k(f's_cbranch_scc1 {l1}')
        for ft in (3,4): k(f'ds_write_b128 v{tmp}, v[{ACC+4*ft}:{ACC+4*ft+3}] offset:{ft*1024}')
        k(f's_branch {l2}')
        k(l1+':')
        for ft in (0,1,2): k(f'ds_write_b128 v{tmp}, v[{ACC+4*ft}:{ACC+4*ft+3}] offset:{ft*1024}')
        for i in range(8): k(f'v_mov_b32 v{ACC+i}, v{ACC+12+i}')
        k(l2+':')
    def reduce_pairs_finish(self, ACC, tmp, T):
        k=self.k
        k('s_mul_i32 s29, s5, 3072')
        k(f'v_add_u32 v{tmp}, s29, v{tmp}')
        for j in range(3): k(f'ds_read_b128 v[{T+4*j}:{T+4*j+3}], v{tmp} offset:{j*1024}')
        k('s_waitcnt lgkmcnt(0)')
        for i in range(12): k(f'v_add_f32 v{ACC+i}, v{ACC+i}, v{T+i}')

    def tile_offsets(self, sbase):
        k=self.k
        k('s_lshl_b32 s28, s6, 2'); k('s_add_u32 s28, s28, s4'); k('s_mul_i32 s28, s28, 20480')
        k('s_mul_i32 s29, s7, 5'); k('s_mul_i32 s30, s5, 3'); k('s_add_u32 s29, s29, s30')
        for j in range(3):
            k(f's_add_u32 s30, s29, {j}'); k('s_lshl_b32 s30, s30, 9')
            k(f's_add_u32 s{sbase+j}, s30, s28')

    def x_loads(self,XF,n,base_const,layer_stride,KS,per_half):
        k=self.k
        k('s_lshl_b32 s28, s6, 2'); k('s_add_u32 s28, s28, s4'); k(f's_mul_i32 s28, s28, {KS}'); k(f's_mul_i32 s29, s5, {per_half}'); k('s_add_u32 s28, s28, s29')
        k('s_lshl_b32 s28, s28, 10')
        if layer_stride:
            k(f's_mul_i32 s29, s12, {layer_stride}'); k('s_add_u32 s28, s28, s29')
        k(f's_add_u32 s28, s28, {base_const}')
        for i in range(n):
            k(f'buffer_load_dwordx4 v[{XF+4*i}:{XF+4*i+3}], v{V_L16}, s[{WS}:{WS+3}], s28 offen offset:{(i%4)*1024} sc1')
            if i%4==3: k('s_add_u32 s28, s28, 4096')

    def kv_first(self,XF,WR,KVA,KVC,ONES,SX,SQ,T):
        k=self.k
        nokv=k.lab('nokv')
        S0,S1=T+2,T+3
        k('s_lshr_b32 s28, s7, 1'); k('s_cmp_lg_u32 s28, s4'); k(f's_cbranch_scc1 {nokv}')
        k(f'v_lshrrev_b32 v{T+4}, 2, v{V_F}'); k(f'v_lshl_add_u32 v{T+4}, v{V_G}, 3, v{T+4}'); k(f'v_mul_u32_u24 v{T+4}, 40, v{T+4}')
        k(f'v_and_b32 v{T+5}, 3, v{V_LANE}'); k(f'v_lshl_add_u32 v{T+4}, v{T+5}, 3, v{T+4}')
        k('s_mul_i32 s28, s5, 12800'); k(f's_add_u32 s28, s28, {L_WKV}'); k(f'v_add_u32 v{T+4}, s28, v{T+4}')
        kvd=k.lab('kvd')
        vl={(v,c):k.lab('kvv') for v in (0,1) for c in (0,1)}
        k('s_and_b32 s28, s7, 1'); k('s_lshl_b32 s28, s28, 1'); k('s_add_u32 s28, s28, s12')
        for idx,(v,c) in enumerate(((0,1),(0,0),(1,1))):
            k(f's_cmp_eq_u32 s28, {idx}'); k(f's_cbranch_scc1 {vl[(v,c)]}')
        k(f's_branch {vl[(1,0)]}')
        for (variant,with_cs),lab in vl.items():
            k(lab+':')
            fr=[]
            for i in range(10):
                for u in range(2):
                    def rd(r,i=i,u=u):
                        k(f'ds_read_b64_tr_b16 v[{r}:{r+1}], v{T+4} offset:{i*1280+u*32}')
                        k(f'ds_read_b64_tr_b16 v[{r+2}:{r+3}], v{T+4} offset:{i*1280+160+u*32}')
                    def mf(r,i=i,u=u,variant=variant,with_cs=with_cs):
                        c=KVA+4*u; cc=KVC+4*u
                        cs='0' if i==0 else f'v[{c}:{c+3}]'; cs2='0' if i==0 else f'v[{cc}:{cc+3}]'
                        X=f'v[{XF+4*i}:{XF+4*i+3}]'; W=f'v[{r}:{r+3}]'; O_=f'v[{ONES}:{ONES+3}]'
                        if variant==0:
                            k(f'v_mfma_f32_16x16x32_bf16 v[{c}:{c+3}], {W}, {X}, {cs}')
                            if with_cs: k(f'v_mfma_f32_16x16x32_bf16 v[{cc}:{cc+3}], {W}, {O_}, {cs2}')
                        else:
                            k(f'v_mfma_f32_16x16x32_bf16 v[{c}:{c+3}], {X}, {W}, {cs}')
                            if with_cs: k(f'v_mfma_f32_16x16x32_bf16 v[{cc}:{cc+3}], {O_}, {W}, {cs2}')
                        if u==0:
                            a0='0' if i==0 else f'v[{SX}:{SX+3}]'
                            k(f'v_mfma_f32_16x16x32_bf16 v[{SX}:{SX+3}], {O_}, {X}, {a0}')
                        else:
                            a0='0' if i==0 else f'v[{SQ}:{SQ+3}]'
                            k(f'v_mfma_f32_16x16x32_bf16 v[{SQ}:{SQ+3}], {X}, {X}, {a0}')
                    fr.append(dict(read=rd,mfma=mf,vm=((9-i) if (u==0 and not with_cs) else None)))
            self.frag_gemm(fr,WR,7,2)
            k(f's_branch {kvd}')
        k(kvd+':')
        self.diag_stats(SX,SQ,S0,S1,T+6)
        k('s_lshl_b32 s28, s4, 8'); k('s_lshl_b32 s29, s5, 7'); k('s_add_u32 s28, s28, s29'); k(f's_add_u32 s28, s28, {L_STAT}')
        k(f'v_lshl_add_u32 v{T+6}, v{V_F}, 3, s28')
        self.diag_mask_on()
        k(f'ds_write_b64 v{T+6}, v[{S0}:{S1}]')
        k('s_mov_b64 exec, -1')
        k(f'v_add_u32 v{T+5}, {L_KVR}, v{V_L16}')
        a=k.lab('ka'); b_=k.lab('kb')
        k('s_cmp_eq_u32 s5, 1'); k(f's_cbranch_scc1 {a}')
        k(f'ds_write_b128 v{T+5}, v[{KVA+4}:{KVA+7}] offset:2048'); k(f'ds_write_b128 v{T+5}, v[{KVC+4}:{KVC+7}] offset:3072')
        k(f's_branch {b_}')
        k(a+':')
        k(f'ds_write_b128 v{T+5}, v[{KVA}:{KVA+3}]'); k(f'ds_write_b128 v{T+5}, v[{KVC}:{KVC+3}] offset:1024')
        for i in range(4):
            k(f'v_mov_b32 v{KVA+i}, v{KVA+4+i}'); k(f'v_mov_b32 v{KVC+i}, v{KVC+4+i}')
        k(b_+':')
        k('s_add_u32 s28, s13, 1'); k(f'v_mov_b32 v{T+6}, s28')
        k('s_lshl_b32 s29, s5, 2'); k(f's_add_u32 s29, s29, {L_PAIRF}'); k(f'v_mov_b32 v{T+7}, s29')
        k('s_waitcnt lgkmcnt(0)')
        k(f'ds_write_b32 v{T+7}, v{T+6}')
        k(f'v_xor_b32 v{T+7}, 4, v{T+7}')
        sp=k.lab('pr'); spd=k.lab('prd')
        k('s_mov_b32 s30, 0')
        k(sp+':')
        k(f'ds_read_b32 v{T+8}, v{T+7}')
        k('s_waitcnt lgkmcnt(0)')
        k(f'v_cmp_eq_u32 vcc, s28, v{T+8}')
        k(f's_cbranch_vccnz {spd}')
        k('s_add_u32 s30, s30, 1'); k('s_cmp_lt_u32 s30, 0x100000'); k(f's_cbranch_scc1 {sp}')
        k(spd+':')
        KW=WR
        k('s_lshl_b32 s28, s5, 11'); k(f's_add_u32 s28, s28, {L_KVR}')
        k(f'v_add_u32 v{T+5}, s28, v{V_L16}')
        k(f'ds_read_b128 v[{KW}:{KW+3}], v{T+5}'); k(f'ds_read_b128 v[{KW+4}:{KW+7}], v{T+5} offset:1024')
        k('s_lshl_b32 s28, s4, 8'); k(f's_add_u32 s28, s28, {L_STAT}')
        k(f'v_lshl_add_u32 v{T+6}, v{V_F}, 3, s28')
        k(f'ds_read_b64 v[{T+10}:{T+11}], v{T+6}'); k(f'ds_read_b64 v[{T+12}:{T+13}], v{T+6} offset:128')
        k('s_lshl_b32 s28, s5, 10'); k(f's_add_u32 s28, s28, {L_KVCS}'); k(f'v_add_u32 v{T+7}, s28, v{V_L16}')
        c0=k.lab('c0'); c1=k.lab('c1')
        k('s_cmp_eq_u32 s12, 0'); k(f's_cbranch_scc1 {c0}')
        k(f'ds_read_b128 v[{KVC}:{KVC+3}], v{T+7}')
        k('s_waitcnt lgkmcnt(0)')
        k(f's_branch {c1}')
        k(c0+':')
        k('s_waitcnt lgkmcnt(0)')
        for i in range(4): k(f'v_add_f32 v{KVC+i}, v{KVC+i}, v{KW+4+i}')
        k(f'ds_write_b128 v{T+7}, v[{KVC}:{KVC+3}]')
        k(c1+':')
        for i in range(4): k(f'v_add_f32 v{KVA+i}, v{KVA+i}, v{KW+i}')
        MEAN,RSTD=T+14,T+15
        k(f'v_add_f32 v{T+10}, v{T+10}, v{T+12}'); k(f'v_add_f32 v{T+11}, v{T+11}, v{T+13}')
        k(f'v_mul_f32 v{MEAN}, {hex(f2u(1/640))}, v{T+10}'); k(f'v_mul_f32 v{T+11}, {hex(f2u(1/640))}, v{T+11}')
        k(f'v_fma_f32 v{T+11}, -v{MEAN}, v{MEAN}, v{T+11}'); k(f'v_max_f32 v{T+11}, 0, v{T+11}')
        k(f'v_add_f32 v{T+11}, {hex(f2u(1e-5))}, v{T+11}'); k(f'v_rsq_f32 v{RSTD}, v{T+11}')
        k(f'v_mul_f32 v{MEAN}, v{MEAN}, v{RSTD}')
        k('s_lshl_b32 s30, s6, 6'); k('s_lshl_b32 s31, s4, 4'); k('s_add_u32 s30, s30, s31')
        k('s_lshr_b32 s31, s30, 5'); k('s_mul_i32 s31, s31, 3584')
        k(f's_mul_i32 s32, s12, {KV_D}'); k('s_add_u32 s31, s31, s32'); k(f's_add_u32 s31, s31, {KVB[0]}')
        k('s_lshr_b32 s32, s30, 4'); k('s_and_b32 s32, s32, 1')
        isv2=k.lab('isv2')
        k('s_and_b32 s28, s7, 1'); k('s_cmp_eq_u32 s28, 1'); k(f's_cbranch_scc1 {isv2}')
        for i in range(4):
            k(f'v_mul_f32 v{KVA+i}, v{KVA+i}, v{RSTD}'); k(f'v_fma_f32 v{KVA+i}, -v{MEAN}, v{KVC+i}, v{KVA+i}')
        k('s_lshl_b32 s28, s5, 2'); k(f'v_add_u32 v{T+6}, s28, v{V_G}')
        k(f'v_cmp_eq_u32 vcc, 5, v{T+6}')
        for i in range(4): k(f'v_cndmask_b32 v{KVA+i}, v{KVA+i}, 0, vcc')
        k(f'v_cvt_pk_bf16_f32 v{KVA}, v{KVA}, v{KVA+1}'); k(f'v_cvt_pk_bf16_f32 v{KVA+1}, v{KVA+2}, v{KVA+3}')
        k('s_lshl_b32 s28, s32, 4'); k(f'v_add_u32 v{T+7}, s28, v{V_F}')
        k(f'v_lshrrev_b32 v{T+8}, 1, v{T+6}'); k(f'v_lshlrev_b32 v{T+8}, 9, v{T+8}')
        k(f'v_lshl_add_u32 v{T+8}, v{T+7}, 4, v{T+8}')
        k(f'v_and_b32 v{T+9}, 1, v{T+6}'); k(f'v_lshl_add_u32 v{T+8}, v{T+9}, 3, v{T+8}')
        k(f'v_subrev_u32 v{T+9}, 4, v{T+6}'); k(f'v_lshlrev_b32 v{T+9}, 8, v{T+9}')
        k(f'v_lshl_add_u32 v{T+9}, v{T+7}, 3, v{T+9}'); k(f'v_add_u32 v{T+9}, 3072, v{T+9}')
        k(f'v_cmp_gt_u32 vcc, 4, v{T+6}'); k(f'v_cndmask_b32 v{T+8}, v{T+9}, v{T+8}, vcc')
        k(f'v_cmp_gt_u32 vcc, 6, v{T+6}'); k(f'v_mov_b32 v{T+9}, {OOB}'); k(f'v_cndmask_b32 v{T+8}, v{T+9}, v{T+8}, vcc')
        k(f'buffer_store_dwordx2 v[{KVA}:{KVA+1}], v{T+8}, s[{WS}:{WS+3}], s31 offen sc1')
        k(f's_branch {nokv}')
        k(isv2+':')
        k('s_lshl_b32 s28, s4, 8'); k(f's_add_u32 s28, s28, {L_STAT}')
        k(f'v_lshl_add_u32 v{T+6}, v{V_G}, 5, s28')
        Y=WR+8
        k(f'ds_read_b128 v[{Y}:{Y+3}], v{T+6}'); k(f'ds_read_b128 v[{Y+4}:{Y+7}], v{T+6} offset:16')
        k(f'ds_read_b128 v[{Y+8}:{Y+11}], v{T+6} offset:128'); k(f'ds_read_b128 v[{Y+12}:{Y+15}], v{T+6} offset:144')
        k('s_waitcnt lgkmcnt(0)')
        for i in range(4):
            s_,q_=Y+2*i,Y+2*i+1
            k(f'v_add_f32 v{s_}, v{s_}, v{s_+8}'); k(f'v_add_f32 v{q_}, v{q_}, v{q_+8}')
            k(f'v_mul_f32 v{s_}, {hex(f2u(1/640))}, v{s_}'); k(f'v_mul_f32 v{q_}, {hex(f2u(1/640))}, v{q_}')
            k(f'v_fma_f32 v{q_}, -v{s_}, v{s_}, v{q_}'); k(f'v_max_f32 v{q_}, 0, v{q_}'); k(f'v_add_f32 v{q_}, {hex(f2u(1e-5))}, v{q_}')
            k(f'v_rsq_f32 v{q_}, v{q_}')
            k(f'v_fma_f32 v{KVA+i}, -v{s_}, v{KVC+i}, v{KVA+i}')
            k(f'v_mul_f32 v{KVA+i}, v{KVA+i}, v{q_}')
        k('s_lshl_b32 s28, s5, 4'); k(f'v_add_u32 v{T+6}, s28, v{V_F}')
        k(f'v_cmp_eq_u32 vcc, 20, v{T+6}')
        for i in range(4): k(f'v_cndmask_b32 v{KVA+i}, v{KVA+i}, 1.0, vcc')
        k(f'v_cmp_lt_u32 vcc, 20, v{T+6}')
        for i in range(4): k(f'v_cndmask_b32 v{KVA+i}, v{KVA+i}, 0, vcc')
        k(f'v_cvt_pk_bf16_f32 v{KVA}, v{KVA}, v{KVA+1}'); k(f'v_cvt_pk_bf16_f32 v{KVA+1}, v{KVA+2}, v{KVA+3}')
        k('s_lshl_b32 s28, s32, 10'); k('s_add_u32 s28, s28, 1024')
        k(f'v_and_b32 v{T+7}, 1, v{V_G}'); k(f'v_lshlrev_b32 v{T+7}, 9, v{T+7}')
        k(f'v_lshl_add_u32 v{T+7}, v{T+6}, 4, v{T+7}')
        k(f'v_lshrrev_b32 v{T+8}, 1, v{V_G}'); k(f'v_lshl_add_u32 v{T+7}, v{T+8}, 3, v{T+7}')
        k(f'v_add_u32 v{T+7}, s28, v{T+7}')
        k(f'buffer_store_dwordx2 v[{KVA}:{KVA+1}], v{T+7}, s[{WS}:{WS+3}], s31 offen sc1')
        k(nokv+':')

    def phase_qkv(self):
        k=self.k
        XF,WR,ACC,CSA,KVA,KVC,ONES,T=24,64,96,116,124,132,140,144
        SX,SQ=176,180
        l0=k.lab('x0'); l1=k.lab('x1')
        for i in range(4): k(f'v_mov_b32 v{ONES+i}, 0x3f803f80')
        k('s_cmp_eq_u32 s12, 0'); k(f's_cbranch_scc1 {l0}')
        self.x_loads(XF,10,X2B,0,20,10)
        k(f's_branch {l1}')
        k(l0+':')
        k('s_waitcnt vmcnt(0)')
        self.conv_finish(T,L_RED)
        np_=k.lab('np'); pl=k.lab('npl'); pd=k.lab('npd')
        k(f's_cmp_lg_u32 s3, {POLLW}'); k(f's_cbranch_scc1 {np_}')
        k('v_mov_b32 v200, 0'); k('s_mov_b32 s30, 0')
        k(pl+':')
        k('buffer_load_dword v201, v200, s[60:63], 0 offen sc1')
        k('s_waitcnt vmcnt(0)')
        k('v_cmp_eq_u32 vcc, 0, v201')
        k(f's_cbranch_vccz {pd}')
        k('s_add_u32 s30, s30, 1'); k('s_cmp_lt_u32 s30, 0x40000'); k(f's_cbranch_scc1 {pl}')
        k(pd+':')
        k(f'v_mov_b32 v200, {L_NONCE}')
        k('ds_write_b32 v200, v201')
        k('s_waitcnt lgkmcnt(0)')
        k(np_+':')
        k('s_barrier')
        k(f'v_mov_b32 v200, {L_NONCE}')
        k('ds_read_b32 v201, v200')
        k('s_waitcnt lgkmcnt(0)')
        k('v_readfirstlane_b32 s13, v201')
        k(l1+':')
        self.mark("q.start")
        self.kv_first(XF,WR,KVA,KVC,ONES,SX,SQ,T)
        self.mark("q.kv")
        vA,vC=T,T+1
        S0,S1=T+2,T+3
        k('s_mul_i32 s28, s5, 51200')
        k(f'v_add_u32 v{vA}, s28, v{V_TR}')
        k('s_lshl_b32 s29, s4, 5')
        k(f'v_add_u32 v{vC}, s29, v{vA}')
        def stat_mfma(i,ft):
            X=f'v[{XF+4*i}:{XF+4*i+3}]'
            if ft==0:
                cs='0' if i==0 else f'v[{SX}:{SX+3}]'
                k(f'v_mfma_f32_16x16x32_bf16 v[{SX}:{SX+3}], v[{ONES}:{ONES+3}], {X}, {cs}')
            if ft==2:
                cs='0' if i==0 else f'v[{SQ}:{SQ+3}]'
                k(f'v_mfma_f32_16x16x32_bf16 v[{SQ}:{SQ+3}], {X}, {X}, {cs}')
        def mk(with_cs):
            fr=[]
            if not with_cs:
                k('s_mul_i32 s28, s5, 10240'); k(f'v_add_u32 v{vA}, s28, v{V_L16}'); k(f'v_add_u32 v{vC}, 61440, v{vA}')
                for i in range(10):
                    for ft in range(5):
                        va,imm=(vA,ft*20480+i*1024) if ft<3 else (vC,(ft-3)*20480+i*1024)
                        def rd(r,va=va,imm=imm): k(f'ds_read_b128 v[{r}:{r+3}], v{va} offset:{imm}')
                        def mf(r,i=i,ft=ft):
                            c=ACC+4*ft; cs='0' if i==0 else f'v[{c}:{c+3}]'
                            k(f'v_mfma_f32_16x16x32_bf16 v[{c}:{c+3}], v[{r}:{r+3}], v[{XF+4*i}:{XF+4*i+3}], {cs}')
                            stat_mfma(i,ft)
                        fr.append(dict(read=rd,mfma=mf,vm=(9-i) if ft==0 else None))
                self.frag_gemm(fr,WR,7,1)
                return
            for i in range(10):
                for ft in range(5):
                    def rd(r,i=i,ft=ft):
                        k(f'ds_read_b64_tr_b16 v[{r}:{r+1}], v{vA} offset:{i*5120+ft*32}')
                        k(f'ds_read_b64_tr_b16 v[{r+2}:{r+3}], v{vA} offset:{i*5120+1280+ft*32}')
                    def mf(r,i=i,ft=ft):
                        c=ACC+4*ft; cs='0' if i==0 else f'v[{c}:{c+3}]'
                        k(f'v_mfma_f32_16x16x32_bf16 v[{c}:{c+3}], v[{r}:{r+3}], v[{XF+4*i}:{XF+4*i+3}], {cs}')
                        if ft==4:
                            cs='0' if i==0 else f'v[{CSA+4}:{CSA+7}]'
                            k(f'v_mfma_f32_16x16x32_bf16 v[{CSA+4}:{CSA+7}], v[{r}:{r+3}], v[{ONES}:{ONES+3}], {cs}')
                        stat_mfma(i,ft)
                    fr.append(dict(read=rd,mfma=mf))
                def rd(r,i=i):
                    k(f'ds_read_b64_tr_b16 v[{r}:{r+1}], v{vC} offset:{i*5120}')
                    k(f'ds_read_b64_tr_b16 v[{r+2}:{r+3}], v{vC} offset:{i*5120+1280}')
                def mf(r,i=i):
                    cs='0' if i==0 else f'v[{CSA}:{CSA+3}]'
                    k(f'v_mfma_f32_16x16x32_bf16 v[{CSA}:{CSA+3}], v[{r}:{r+3}], v[{ONES}:{ONES+3}], {cs}')
                fr.append(dict(read=rd,mfma=mf))
            self.frag_gemm(fr,WR,7,2)
        m1=k.lab('m1'); m2=k.lab('m2')
        k('s_cmp_eq_u32 s12, 0'); k(f's_cbranch_scc0 {m1}')
        mk(True)
        k('s_mul_i32 s28, s5, 320'); k(f's_add_u32 s28, s28, {L_CS}')
        k(f'v_lshl_add_u32 v{T+7}, v{V_G}, 4, s28')
        k('s_lshl_b32 s29, s4, 6'); k(f'v_add_u32 v{T+8}, s29, v{T+7}')
        k(f'ds_write_b128 v{T+8}, v[{CSA}:{CSA+3}]')
        k(f'ds_write_b128 v{T+7}, v[{CSA+4}:{CSA+7}] offset:256')
        k(f's_branch {m2}')
        k(m1+':')
        mk(False)
        k(m2+':')
        self.mark("q.main")
        nkf=k.lab('nkf')
        k('s_lshr_b32 s28, s7, 1'); k('s_cmp_lg_u32 s28, s4'); k(f's_cbranch_scc1 {nkf}')
        k('s_waitcnt vmcnt(0)')
        k('s_add_u32 s28, s13, 1'); k(f'v_mov_b32 v{T+5}, s28')
        k('s_lshl_b32 s29, s6, 6'); k('s_lshl_b32 s30, s7, 3'); k('s_add_u32 s29, s29, s30'); k('s_lshl_b32 s30, s5, 2'); k('s_add_u32 s29, s29, s30')
        k(f's_add_u32 s29, s29, {KVFLG}')
        k(f'v_mov_b32 v{T+6}, s29')
        k('s_mov_b64 exec, 1')
        k(f'buffer_store_dword v{T+5}, v{T+6}, s[{WS}:{WS+3}], 0 offen sc1')
        k('s_mov_b64 exec, -1')
        k(nkf+':')
        self.mark("q.mm")
        self.diag_stats(SX,SQ,S0,S1,T+6)
        k('s_lshl_b32 s28, s4, 8'); k('s_lshl_b32 s29, s5, 7'); k('s_add_u32 s28, s28, s29'); k(f's_add_u32 s28, s28, {L_STAT}')
        k(f'v_lshl_add_u32 v{T+6}, v{V_F}, 3, s28')
        self.diag_mask_on()
        k(f'ds_write_b64 v{T+6}, v[{S0}:{S1}]')
        k('s_mov_b64 exec, -1')
        self.reduce_pairs(ACC,T+9,L_RED)
        k('s_waitcnt lgkmcnt(0)')
        k('s_barrier')
        Z=XF
        k('s_lshl_b32 s28, s4, 8'); k(f's_add_u32 s28, s28, {L_STAT}')
        k(f'v_lshl_add_u32 v{T+6}, v{V_F}, 3, s28')
        k(f'ds_read_b64 v[{T+10}:{T+11}], v{T+6}'); k(f'ds_read_b64 v[{T+12}:{T+13}], v{T+6} offset:128')
        k('s_mul_i32 s28, s5, 192'); k(f's_add_u32 s28, s28, {L_CS}')
        k(f'v_lshl_add_u32 v{T+7}, v{V_G}, 4, s28')
        CS0=Z+12
        for j in range(3):
            k(f'ds_read_b128 v[{CS0+8*j}:{CS0+8*j+3}], v{T+7} offset:{j*64}')
            k(f'ds_read_b128 v[{CS0+8*j+4}:{CS0+8*j+7}], v{T+7} offset:{320+j*64}')
        self.reduce_pairs_finish(ACC,T+9,Z)
        MEAN,RSTD=T+14,T+15
        k(f'v_add_f32 v{T+10}, v{T+10}, v{T+12}'); k(f'v_add_f32 v{T+11}, v{T+11}, v{T+13}')
        k(f'v_mul_f32 v{MEAN}, {hex(f2u(1/640))}, v{T+10}'); k(f'v_mul_f32 v{T+11}, {hex(f2u(1/640))}, v{T+11}')
        k(f'v_fma_f32 v{T+11}, -v{MEAN}, v{MEAN}, v{T+11}'); k(f'v_max_f32 v{T+11}, 0, v{T+11}')
        k(f'v_add_f32 v{T+11}, {hex(f2u(1e-5))}, v{T+11}'); k(f'v_rsq_f32 v{RSTD}, v{T+11}')
        k(f'v_mul_f32 v{MEAN}, v{MEAN}, v{RSTD}')
        k(f'v_mul_f32 v{T+16}, {hex(f2u(QSCALE))}, v{RSTD}'); k(f'v_mul_f32 v{T+17}, {hex(f2u(QSCALE))}, v{MEAN}')
        k('s_lshl_b32 s28, s4, 4'); k(f'v_add_u32 v{T+18}, s28, v{V_F}'); k(f'v_mul_u32_u24 v{T+18}, 160, v{T+18}')
        k(f'v_lshl_add_u32 v{T+18}, v{V_G}, 3, v{T+18}')
        k('s_mul_i32 s28, s5, 96'); k(f's_add_u32 s28, s28, {L_QL}'); k(f'v_add_u32 v{T+18}, s28, v{T+18}')
        for j in range(3):
            if j==2:
                q3=k.lab('q3'); k('s_cmp_eq_u32 s5, 1'); k(f's_cbranch_scc1 {q3}')
            for i in range(4):
                r=ACC+4*j+i
                k(f'v_add_f32 v{CS0+8*j+i}, v{CS0+8*j+i}, v{CS0+8*j+4+i}')
                k(f'v_mul_f32 v{r}, v{r}, v{T+16}'); k(f'v_fma_f32 v{r}, -v{T+17}, v{CS0+8*j+i}, v{r}')
            k(f'v_cvt_pk_bf16_f32 v{ACC+4*j}, v{ACC+4*j}, v{ACC+4*j+1}'); k(f'v_cvt_pk_bf16_f32 v{ACC+4*j+1}, v{ACC+4*j+2}, v{ACC+4*j+3}')
            k(f'ds_write_b64 v{T+18}, v[{ACC+4*j}:{ACC+4*j+1}] offset:{j*32}')
            if j==2: k(q3+':')
        k('s_waitcnt lgkmcnt(0)')
        self.mark("q.epi")
        self.publish(1)
        self.mark("q.pub")

    def phase_attn(self):
        k=self.k
        D=4; SL=14
        Q1=[24,30]; Q2=[28,34]
        S=[36,52]; O=[68,84]; P=100
        KB=108
        K1=lambda s: KB+s*SL
        V=lambda s: KB+s*SL+4
        K2=lambda s: KB+s*SL+12
        T=KB+D*SL
        VL8=T; NEG=[176,192]
        k(f'v_mul_u32_u24 v{T+1}, 160, v{V_L31}')
        k('s_mul_i32 s28, s4, 40'); k(f's_add_u32 s28, s28, {L_QL}')
        k(f'v_add_u32 v{T+1}, s28, v{T+1}')
        k(f'v_lshl_add_u32 v{T+2}, v{V_H}, 4, v{T+1}')
        for q in range(2):
            k(f'ds_read_b64 v[{Q1[q]}:{Q1[q]+1}], v{T+2} offset:{q*5120}')
            k(f'ds_read_b64 v[{Q1[q]+2}:{Q1[q]+3}], v{T+2} offset:{q*5120+8}')
            k(f'ds_read_b64 v[{Q2[q]}:{Q2[q]+1}], v{T+1} offset:{q*5120+32}')
        k(f'v_lshlrev_b32 v{VL8}, 3, v{V_LANE}')
        k('s_waitcnt lgkmcnt(0)')
        k(f'v_cmp_eq_u32 vcc, 0, v{V_H}')
        for q in range(2):
            for i in range(2): k(f'v_cndmask_b32 v{Q2[q]+i}, 0, v{Q2[q]+i}, vcc')
        self.mark("a.dma")
        VFA,VF=T+6,T+7
        k(f'v_lshlrev_b32 v{VFA}, 2, v{V_LANE}'); k(f'v_add_u32 v{VFA}, {KVFLG}, v{VFA}')
        k('s_add_u32 s38, s13, 1')
        k('s_lshr_b32 s39, s6, 2')
        def spin_group(sg):
            lp=k.lab('sg'); dn=k.lab('sgd')
            k(f's_lshl_b32 s28, s{sg}, 8'); k('s_mov_b32 s30, 0')
            k(lp+':')
            k(f'buffer_load_dword v{VF}, v{VFA}, s[{WS}:{WS+3}], s28 offen sc1')
            k('s_waitcnt vmcnt(0)')
            k(f'v_subrev_u32 v{VF}, s38, v{VF}')
            k(f'v_cmp_le_u32 vcc, 32, v{VF}')
            k(f's_cbranch_vccz {dn}')
            k('s_sleep 2')
            k('s_add_u32 s30, s30, 1'); k('s_cmp_lt_u32 s30, 0x40000'); k(f's_cbranch_scc1 {lp}')
            k(dn+':')
        k(f'v_mov_b32 v{T+8}, {L_BADF}'); k(f'v_mov_b32 v{T+9}, 0'); k(f'ds_write_b32 v{T+8}, v{T+9}')
        k('s_mov_b32 s49, 0')
        k('s_waitcnt lgkmcnt(0)')
        pw=k.lab('pw')
        k(f's_cmp_lg_u32 s3, {POLLW}'); k(f's_cbranch_scc1 {pw}')
        spin_group(39)
        k(pw+':')
        k('s_barrier')
        self.mark("a.wait")
        def ld(slot):
            k(f'buffer_load_dwordx4 v[{K1(slot)}:{K1(slot)+3}], v{V_L16}, s[{WS}:{WS+3}], s32 offen sc1')
            k(f'buffer_load_dwordx2 v[{K2(slot)}:{K2(slot)+1}], v{VL8}, s[{WS}:{WS+3}], s32 offen offset:3072 sc1')
            k(f'buffer_load_dwordx4 v[{V(slot)}:{V(slot)+3}], v{V_L16}, s[{WS}:{WS+3}], s32 offen offset:1024 sc1')
            k(f'buffer_load_dwordx4 v[{V(slot)+4}:{V(slot)+7}], v{V_L16}, s[{WS}:{WS+3}], s32 offen offset:2048 sc1')
            k('s_add_u32 s32, s32, 7168')
        def run_loop(exact,prefetch):
            def qk1(q,s):
                c = f'v[{NEG[q]}:{NEG[q]+15}]' if exact else '0'
                k(f'v_mfma_f32_32x32x16_bf16 v[{S[q]}:{S[q]+15}], v[{K1(s)}:{K1(s)+3}], v[{Q1[q]}:{Q1[q]+3}], {c}')
            def qk2(q,s): k(f'v_mfma_f32_32x32x8_bf16 v[{S[q]}:{S[q]+15}], v[{K2(s)}:{K2(s)+1}], v[{Q2[q]}:{Q2[q]+1}], v[{S[q]}:{S[q]+15}]')
            def pv(q,s,hf): k(f'v_mfma_f32_32x32x16_bf16 v[{O[q]}:{O[q]+15}], v[{V(s)+4*hf}:{V(s)+4*hf+3}], v[{P+4*hf}:{P+4*hf+3}], v[{O[q]}:{O[q]+15}]')
            def ex(q,a):
                for i in range(a,a+4): k(f'v_exp_f32 v{S[q]+i}, v{S[q]+i}')
            def cv(q,a):
                k(f'v_cvt_pk_bf16_f32 v{P+a//2}, v{S[q]+a}, v{S[q]+a+1}')
                k(f'v_cvt_pk_bf16_f32 v{P+a//2+1}, v{S[q]+a+2}, v{S[q]+a+3}')
            k(f's_mul_i32 s33, s12, {KV_D}'); k(f's_add_u32 s33, s33, {KVB[0]}')
            k('s_mul_i32 s28, s5, 3584'); k('s_add_u32 s33, s33, s28')
            k(f's_mul_i32 s28, s39, {8*3584}'); k('s_add_u32 s32, s33, s28')
            k(f's_add_u32 s33, s33, {64*3584}')
            def fload():
                k('s_add_u32 s45, s45, 1'); k('s_and_b32 s45, s45, 7'); k('s_lshl_b32 s46, s45, 8')
                k(f'buffer_load_dword v{VF}, v{VFA}, s[{WS}:{WS+3}], s46 offen sc1')
            def fcheck():
                ok=k.lab('fok')
                k(f'v_subrev_u32 v{VF}, s38, v{VF}')
                k(f'v_cmp_le_u32 vcc, 32, v{VF}')
                k(f's_cbranch_vccz {ok}')
                spin_group(44)
                k(ok+':')
                k('s_cmp_ge_u32 s32, s33'); k(f's_cselect_b32 s28, {64*3584}, 0'); k('s_sub_u32 s32, s32, s28')
            k('s_mov_b32 s45, s39')
            fload(); k('s_mov_b32 s44, s45')
            for t in range(D-1): ld(t)
            for q in range(2):
                for i in range(16): k(f'v_mov_b32 v{O[q]+i}, 0')
            for i in range(4,8): k(f'v_mov_b32 v{P+i}, 0')
            for i in range(4,8): k(f'v_mov_b32 v{V(D-1)+i}, 0')
            k(f's_waitcnt vmcnt({4*(D-2)})')
            qk1(0,0); qk2(0,0)
            k('s_nop 7')
            spf = prefetch and 'spf' in os.environ.get('XP','')
            def body(dma):
                for t in range(D):
                    s=t; sn=(t+1)%D; sp=(t-1)%D
                    qk1(1,s); ex(0,0); pv(1,sp,1)
                    if t==1: fcheck()
                    if t==2:
                        fload_pending=True
                        fload()
                    if dma:
                        k('s_min_u32 m0, s35, 101376')
                        k('s_add_u32 s37, s36, m0')
                        k(f'buffer_load_dwordx4 v{V_L16}, s[{WS}:{WS+3}], s37 offen sc1 lds')
                        k('s_add_u32 s35, s35, 8192')
                    ld(sp)
                    if spf and dma:
                        for n in range(4): k(f's_load_dword s57, s[62:63], {(4*t+n)*128}')
                    if t==2: k('s_mov_b32 s44, s45')
                    ex(0,4); cv(0,0); qk2(1,s); cv(0,4); ex(0,8); pv(0,s,0); ex(0,12); cv(0,8); cv(0,12)
                    nv=4*(D-2)+(2 if dma else 0)+(1 if t in (2,3) else 0)
                    if dma and t==0: nv-=1
                    k(f's_waitcnt vmcnt({nv})')
                    qk1(0,sn); ex(1,0); pv(0,s,1); ex(1,4); cv(1,0); qk2(0,sn); cv(1,4); ex(1,8); pv(1,s,0); ex(1,12); cv(1,8); cv(1,12)
            if spf:
                k('s_and_b32 s28, s6, 3'); k('s_lshl_b32 s28, s28, 3'); k('s_add_u32 s28, s28, s7'); k('s_lshl_b32 s28, s28, 3'); k('s_add_u32 s28, s28, s3')
                k('s_lshl_b32 s28, s28, 13'); k(f's_add_u32 s28, s28, {W1F}')
                k('s_add_u32 s62, s86, s28'); k('s_addc_u32 s63, s87, 0')
            k('s_mov_b32 s34, 0')
            L1=k.lab('al'); k(L1+':')
            body(False)
            k('s_add_u32 s34, s34, 1'); k('s_cmp_lt_u32 s34, 4'); k(f's_cbranch_scc1 {L1}')
            if prefetch:
                nw=k.lab('nw')
                k('s_cmp_lg_u32 s12, 0'); k(f's_cbranch_scc1 {nw}')
                lw=k.lab('lw'); lwd=k.lab('lwd')
                k(f'v_lshrrev_b32 v208, 1, v{V_LANE}'); k('v_lshlrev_b32 v208, 6, v208')
                k(f'v_and_b32 v209, 1, v{V_LANE}'); k('v_lshl_add_u32 v208, v209, 4, v208')
                k('s_mov_b32 s30, 0')
                k(lw+':')
                k(f'buffer_load_dwordx4 v[212:215], v208, s[{WS}:{WS+3}], 0 offen offset:{FLG} sc1')
                k('s_waitcnt vmcnt(0)')
                for r in (212,213,214,215): k(f'v_subrev_u32 v{r}, s38, v{r}')
                k('v_max_u32 v212, v212, v213'); k('v_max_u32 v214, v214, v215'); k('v_max_u32 v212, v212, v214')
                k('v_cmp_le_u32 vcc, 32, v212')
                k(f's_cbranch_vccz {lwd}')
                k('s_add_u32 s30, s30, 1'); k('s_cmp_lt_u32 s30, 0x40000'); k(f's_cbranch_scc1 {lw}')
                k(lwd+':')
                k(nw+':')
                k('s_lshl_b32 s35, s3, 10')
                k(f's_mul_i32 s36, s7, 102400'); k(f's_add_u32 s36, s36, {WOF}')
            L2=k.lab('bl'); k(L2+':')
            body(prefetch)
            if spf: k('s_add_u32 s62, s62, 2048'); k('s_addc_u32 s63, s63, 0')
            k('s_add_u32 s34, s34, 1'); k('s_cmp_lt_u32 s34, 8'); k(f's_cbranch_scc1 {L2}')
            if spf: k('s_waitcnt lgkmcnt(0)')
            pv(1,D-1,1)
            k('s_waitcnt vmcnt(0)')
        run_loop(False,True)
        self.mark("a.loop")
        COMBINE=k.lab('combine'); FALLBACK=k.lab('fallback')
        k(COMBINE+':')
        k('s_nop 7'); k('s_nop 7')
        c1=k.lab('c1'); c2=k.lab('c2')
        k('s_mul_i32 s28, s3, 3072'); k(f's_add_u32 s28, s28, {L_COMB}')
        k(f'v_add_u32 v{T+1}, s28, v{V_L16}')
        k('s_xor_b32 s29, s3, 4'); k('s_mul_i32 s29, s29, 3072'); k(f's_add_u32 s29, s29, {L_COMB}')
        k(f'v_add_u32 v{T+2}, s29, v{V_L16}')
        k('s_cmp_eq_u32 s5, 1'); k(f's_cbranch_scc1 {c1}')
        for r in range(3): k(f'ds_write_b128 v{T+1}, v[{O[1]+4*r}:{O[1]+4*r+3}] offset:{r*1024}')
        k(f's_branch {c2}')
        k(c1+':')
        for r in range(3): k(f'ds_write_b128 v{T+1}, v[{O[0]+4*r}:{O[0]+4*r+3}] offset:{r*1024}')
        for i in range(12): k(f'v_mov_b32 v{O[0]+i}, v{O[1]+i}')
        k(c2+':')
        k('s_waitcnt lgkmcnt(0)')
        k('s_barrier')
        for r in range(3): k(f'ds_read_b128 v[{S[1]+4*r}:{S[1]+4*r+3}], v{T+2} offset:{r*1024}')
        k('s_waitcnt lgkmcnt(0)')
        self.mark("a.comb")
        Oq=O[0]
        for i in range(12): k(f'v_add_f32 v{Oq+i}, v{Oq+i}, v{S[1]+i}')
        k(f'v_mov_b32 v{T+3}, v{Oq+8}'); k(f'v_mov_b32 v{T+4}, v{Oq+8}')
        k(f'v_permlane32_swap_b32 v{T+3}, v{T+4}')
        k(f'v_add_f32 v{T+3}, abs(v{Oq}), abs(v{Oq+1})')
        for i in range(2,12): k(f'v_add_f32 v{T+3}, abs(v{Oq+i}), v{T+3}')
        k(f's_mov_b32 s28, {hex(f2u(2.0**-30))}'); k(f's_mov_b32 s29, {hex(f2u(2.0**60))}'); k(f's_mov_b32 s30, {hex(f2u(2.0**120))}')
        k(f'v_cmp_nle_f32 s[44:45], s28, v{T+4}')
        k(f'v_cmp_nge_f32 s[46:47], s29, v{T+4}')
        k(f'v_cmp_ngt_f32 vcc, s30, v{T+3}')
        k('s_or_b64 s[44:45], s[44:45], s[46:47]'); k('s_or_b64 vcc, vcc, s[44:45]')
        okl=k.lab('okl')
        k(f's_cbranch_vccz {okl}')
        k(f'v_mov_b32 v{T+8}, {L_BADF}'); k(f'v_mov_b32 v{T+9}, 1'); k(f'ds_write_b32 v{T+8}, v{T+9}')
        k(okl+':')
        k(f'v_rcp_f32 v{T+4}, v{T+4}')
        for i in range(12): k(f'v_mul_f32 v{Oq+i}, v{Oq+i}, v{T+4}')
        PK=S[0]
        for p in range(6): k(f'v_cvt_pk_bf16_f32 v{PK+p}, v{Oq+2*p}, v{Oq+2*p+1}')
        k('s_mul_i32 s28, s4, 5')
        k(f'v_add_u32 v{T+5}, s28, v{V_H}')
        k(f'v_lshrrev_b32 v{T+6}, 4, v{V_L31}'); k('s_lshl_b32 s29, s5, 1'); k(f'v_add_u32 v{T+6}, s29, v{T+6}')
        k(f'v_mul_u32_u24 v{T+6}, 2560, v{T+6}'); k(f'v_lshl_add_u32 v{T+6}, v{V_F}, 4, v{T+6}'); k(f'v_add_u32 v{T+6}, {L_OIMG}, v{T+6}')
        for pc in range(3):
            g_=T+7
            if pc==0: k(f'v_mov_b32 v{g_}, v{T+5}')
            elif pc==1: k(f'v_add_u32 v{g_}, 2, v{T+5}')
            else:
                k(f'v_mov_b32 v{g_}, s28'); k(f'v_add_u32 v{g_}, 4, v{g_}')
            k(f'v_lshrrev_b32 v{T+8}, 1, v{g_}'); k(f'v_lshlrev_b32 v{T+8}, 8, v{T+8}')
            k(f'v_and_b32 v{T+9}, 1, v{g_}'); k(f'v_lshl_add_u32 v{T+8}, v{T+9}, 3, v{T+8}')
            k(f'v_add_u32 v{T+8}, v{T+8}, v{T+6}')
            if pc==2:
                k('s_mov_b32 exec_hi, 0')
            k(f'ds_write_b64 v{T+8}, v[{PK+2*pc}:{PK+2*pc+1}]')
            if pc==2: k('s_mov_b64 exec, -1')
        k('s_waitcnt lgkmcnt(0)')
        k('s_barrier')
        k(f'v_mov_b32 v{T+8}, {L_BADF}'); k(f'ds_read_b32 v{T+9}, v{T+8}')
        k('s_waitcnt lgkmcnt(0)')
        k(f'v_readfirstlane_b32 s28, v{T+9}')
        k('s_lshl_b32 s29, s49, 1'); k('s_cmp_gt_u32 s28, s29')
        k(f's_cbranch_scc1 {FALLBACK}')
        k(f's_mul_i32 s31, s12, {OF_D}'); k(f's_add_u32 s31, s31, {OFB[0]}')
        k('s_mul_i32 s28, s6, 81920'); k('s_add_u32 s31, s31, s28'); k('s_mul_i32 s28, s7, 2560'); k('s_add_u32 s31, s31, s28')
        for rnd in range(2):
            lab=k.lab('oc')
            if rnd==1:
                k('s_cmp_ge_u32 s3, 2'); k(f's_cbranch_scc1 {lab}')
            k('s_lshl_b32 s28, s3, 6'); k(f's_add_u32 s28, s28, {512*rnd}')
            k(f'v_add_u32 v{T+5}, s28, v{V_LANE}')
            k(f'v_lshlrev_b32 v{T+6}, 4, v{T+5}'); k(f'v_add_u32 v{T+6}, {L_OIMG}, v{T+6}')
            k(f'ds_read_b128 v[{PK}:{PK+3}], v{T+6}')
            k(f'v_mul_u32_u24 v{T+7}, 410, v{T+5}'); k(f'v_lshrrev_b32 v{T+7}, 16, v{T+7}')
            k(f'v_mul_u32_u24 v{T+8}, 160, v{T+7}'); k(f'v_sub_u32 v{T+8}, v{T+5}, v{T+8}')
            k(f'v_mul_u32_u24 v{T+7}, 20480, v{T+7}'); k(f'v_lshl_add_u32 v{T+7}, v{T+8}, 4, v{T+7}')
            k('s_waitcnt lgkmcnt(0)')
            k(f'buffer_store_dwordx4 v[{PK}:{PK+3}], v{T+7}, s[{WS}:{WS+3}], s31 offen sc1')
            k(lab+':')
        self.mark("a.epi")
        self.publish(2)
        self.mark("a.pub")
        AFTER=k.lab('after'); k(f's_branch {AFTER}')
        k(FALLBACK+':')
        k('s_barrier')
        def kvptr():
            k(f's_mul_i32 s32, s12, {KV_D}'); k(f's_add_u32 s32, s32, {KVB[0]}')
            k('s_mul_i32 s28, s5, 3584'); k('s_add_u32 s32, s32, s28')
        def mq1(q,c): k(f'v_mfma_f32_32x32x16_bf16 v[{S[q]}:{S[q]+15}], v[{K1(0)}:{K1(0)+3}], v[{Q1[q]}:{Q1[q]+3}], {c}')
        def mq2(q): k(f'v_mfma_f32_32x32x8_bf16 v[{S[q]}:{S[q]+15}], v[{K2(0)}:{K2(0)+1}], v[{Q2[q]}:{Q2[q]+1}], v[{S[q]}:{S[q]+15}]')
        MX=[T+10,T+11]
        for q in range(2): k(f'v_mov_b32 v{MX[q]}, 0xff800000')
        kvptr(); k('s_mov_b32 s34, 0')
        l1=k.lab('fb1'); k(l1+':')
        ld(0); k('s_waitcnt vmcnt(0)')
        for q in range(2):
            mq1(q,'0'); mq2(q)
        for q in range(2):
            for i in range(0,16,2): k(f'v_max3_f32 v{MX[q]}, v{S[q]+i}, v{S[q]+i+1}, v{MX[q]}')
        k('s_add_u32 s34, s34, 1'); k('s_cmp_lt_u32 s34, 32'); k(f's_cbranch_scc1 {l1}')
        for q in range(2):
            k(f'v_mov_b32 v{T+12}, v{MX[q]}'); k(f'v_permlane32_swap_b32 v{MX[q]}, v{T+12}'); k(f'v_max_f32 v{MX[q]}, v{MX[q]}, v{T+12}')
        k('s_lshl_b32 s28, s3, 9'); k(f's_add_u32 s28, s28, {L_COMB}')
        k(f'v_lshl_add_u32 v{T+12}, v{V_LANE}, 3, s28')
        k(f'ds_write_b64 v{T+12}, v[{MX[0]}:{MX[1]}]')
        k('s_waitcnt lgkmcnt(0)'); k('s_barrier')
        k('s_xor_b32 s28, s3, 4'); k('s_lshl_b32 s28, s28, 9'); k(f's_add_u32 s28, s28, {L_COMB}')
        k(f'v_lshl_add_u32 v{T+12}, v{V_LANE}, 3, s28')
        k(f'ds_read_b64 v[{T+14}:{T+15}], v{T+12}')
        k('s_waitcnt lgkmcnt(0)'); k('s_barrier')
        for q in range(2): k(f'v_max_f32 v{MX[q]}, v{MX[q]}, v{T+14+q}')
        for q in range(2):
            for i in range(16): k(f'v_sub_f32 v{NEG[q]+i}, 0, v{MX[q]}')
            for i in range(16): k(f'v_mov_b32 v{O[q]+i}, 0')
        kvptr(); k('s_mov_b32 s34, 0')
        l2=k.lab('fb2'); k(l2+':')
        ld(0); k('s_waitcnt vmcnt(0)')
        for q in range(2):
            mq1(q,f'v[{NEG[q]}:{NEG[q]+15}]'); mq2(q)
            for i in range(16): k(f'v_exp_f32 v{S[q]+i}, v{S[q]+i}')
            for p in range(8): k(f'v_cvt_pk_bf16_f32 v{P+p}, v{S[q]+2*p}, v{S[q]+2*p+1}')
            for hf in range(2):
                k(f'v_mfma_f32_32x32x16_bf16 v[{O[q]}:{O[q]+15}], v[{V(0)+4*hf}:{V(0)+4*hf+3}], v[{P+4*hf}:{P+4*hf+3}], v[{O[q]}:{O[q]+15}]')
        k('s_add_u32 s34, s34, 1'); k('s_cmp_lt_u32 s34, 32'); k(f's_cbranch_scc1 {l2}')
        k('s_mov_b32 s49, 1')
        k(f's_branch {COMBINE}')
        k(AFTER+':')

    def phase_oproj(self):
        k=self.k
        XF,WR,ACC,T=24,64,96,144
        self.wait(2)
        self.mark("o.wait")
        self.x_loads(XF,10,OFB[0],OF_D,20,10)
        vA,vC=T,T+1
        k('s_mul_i32 s28, s5, 10240'); k(f'v_add_u32 v{vA}, s28, v{V_L16}'); k(f'v_add_u32 v{vC}, 61440, v{vA}')
        fr=[]
        for i in range(10):
            for ft in range(5):
                va,imm=(vA,ft*20480+i*1024) if ft<3 else (vC,(ft-3)*20480+i*1024)
                def rd(r,va=va,imm=imm): k(f'ds_read_b128 v[{r}:{r+3}], v{va} offset:{imm}')
                def mf(r,i=i,ft=ft):
                    c=ACC+4*ft; cs='0' if i==0 else f'v[{c}:{c+3}]'
                    k(f'v_mfma_f32_16x16x32_bf16 v[{c}:{c+3}], v[{r}:{r+3}], v[{XF+4*i}:{XF+4*i+3}], {cs}')
                fr.append(dict(read=rd,mfma=mf,vm=(9-i) if ft==0 else None))
        self.frag_gemm(fr,WR,7,1)
        self.mark("o.mm")
        self.reduce_pairs(ACC,T+9,L_ORED)
        k('s_waitcnt lgkmcnt(0)')
        k('s_barrier')
        self.reduce_pairs_finish(ACC,T+9,XF)
        self.mark("o.red")
        self.epilogue_res(ACC,T,X1B[0],X1_D,stats=True,bias=None,final=False)
        self.mark("o.epi")
        self.publish(3)
        self.mark("o.pub")
        self.fc1_early_w()

    def epilogue_res(self,ACC,T,dst,dst_d,stats,bias,final,vout=None):
        k=self.k
        self.tile_offsets(44)
        if dst_d:
            k(f's_mul_i32 s28, s12, {dst_d}'); k(f's_add_u32 s28, s28, {dst}')
        else: k(f's_mov_b32 s28, {dst}')
        for j in range(3): k(f's_add_u32 s{44+j}, s{44+j}, s28')
        k('s_mov_b32 s47, 0xffff0000')
        VD=T+15
        k(f'v_lshrrev_b32 v{VD}, 1, v{V_G}'); k(f'v_lshlrev_b32 v{VD}, 8, v{VD}'); k(f'v_lshl_add_u32 v{VD}, v{V_F}, 4, v{VD}')
        k(f'v_and_b32 v{T+14}, 1, v{V_G}'); k(f'v_lshl_add_u32 v{VD}, v{T+14}, 3, v{VD}')
        S0,S1=T+10,T+11
        if stats:
            k(f'v_mov_b32 v{S0}, 0'); k(f'v_mov_b32 v{S1}, 0'); k(f'v_mov_b32 v{T+12}, 0x3f803f80')
        skip=k.lab('e3')
        for j in range(3):
            if j==2:
                k('s_cmp_eq_u32 s5, 1'); k(f's_cbranch_scc1 {skip}')
            r=ACC+4*j
            k(f'v_lshlrev_b32 v{T}, 16, v{V_RES+2*j}'); k(f'v_and_b32 v{T+1}, s47, v{V_RES+2*j}')
            k(f'v_lshlrev_b32 v{T+2}, 16, v{V_RES+2*j+1}'); k(f'v_and_b32 v{T+3}, s47, v{V_RES+2*j+1}')
            for i in range(4): k(f'v_add_f32 v{r+i}, v{r+i}, v{T+i}')
            if bias is not None:
                k(f'v_lshlrev_b32 v{T}, 16, v{bias+2*j}'); k(f'v_and_b32 v{T+1}, s47, v{bias+2*j}')
                k(f'v_lshlrev_b32 v{T+2}, 16, v{bias+2*j+1}'); k(f'v_and_b32 v{T+3}, s47, v{bias+2*j+1}')
                for i in range(4): k(f'v_add_f32 v{r+i}, v{r+i}, v{T+i}')
            k(f'v_cvt_pk_bf16_f32 v{V_RES+2*j}, v{r}, v{r+1}'); k(f'v_cvt_pk_bf16_f32 v{V_RES+2*j+1}, v{r+2}, v{r+3}')
            if final:
                fl=k.lab('fin'); fd=k.lab('fd')
                k('s_cmp_eq_u32 s12, 1'); k(f's_cbranch_scc1 {fl}')
                k(f'buffer_store_dwordx2 v[{V_RES+2*j}:{V_RES+2*j+1}], v{VD}, s[{WS}:{WS+3}], s{44+j} offen sc1')
                k(f's_branch {fd}')
                k(fl+':')
                k(f'buffer_store_dwordx2 v[{V_RES+2*j}:{V_RES+2*j+1}], v{vout}, s[{SC}:{SC+3}], 0 offen offset:{j*32}')
                k(fd+':')
            else:
                k(f'buffer_store_dwordx2 v[{V_RES+2*j}:{V_RES+2*j+1}], v{VD}, s[{WS}:{WS+3}], s{44+j} offen sc1')
            if stats:
                k(f'v_dot2c_f32_bf16 v{S0}, v{V_RES+2*j}, v{T+12}'); k(f'v_dot2c_f32_bf16 v{S1}, v{V_RES+2*j}, v{V_RES+2*j}')
                k(f'v_dot2c_f32_bf16 v{S0}, v{V_RES+2*j+1}, v{T+12}'); k(f'v_dot2c_f32_bf16 v{S1}, v{V_RES+2*j+1}, v{V_RES+2*j+1}')
        k(skip+':')
        if stats:
            sum_g(k,S0,T+13); sum_g(k,S1,T+13)
            k(f'v_lshlrev_b32 v{T+13}, 3, v{V_F}')
            k('s_lshl_b32 s28, s6, 4'); k('s_lshl_b32 s29, s7, 1'); k('s_add_u32 s28, s28, s29'); k('s_add_u32 s28, s28, s5')
            k('s_lshl_b32 s28, s28, 9'); k('s_lshl_b32 s29, s4, 7'); k('s_add_u32 s28, s28, s29')
            k(f's_mul_i32 s29, s12, {ST_D}'); k('s_add_u32 s28, s28, s29'); k(f's_add_u32 s28, s28, {STB[0]}')
            k(f'v_cmp_eq_u32 vcc, 0, v{V_G}'); k(f'v_mov_b32 v{T+14}, {OOB}'); k(f'v_cndmask_b32 v{T+13}, v{T+14}, v{T+13}, vcc')
            k(f'buffer_store_dwordx2 v[{S0}:{S1}], v{T+13}, s[{WS}:{WS+3}], s28 offen sc1')

    def w2_chunk_dma(self, e_expr_sgpr):
        k=self.k; e=e_expr_sgpr
        def head():
            k(f's_lshr_b32 s53, s{e}, 1'); k(f's_and_b32 s54, s{e}, 1')
            k('s_mul_i32 s54, s54, 27'); k('s_add_u32 s54, s54, s53')
            k('s_mul_i32 s55, s7, 270'); k('s_add_u32 s54, s54, s55'); k('s_lshl_b32 s54, s54, 10'); k(f's_add_u32 s54, s54, {W2F}')
            k(f's_mul_i32 s55, s{e}, 5120')
        def one(j):
            if j==0: head()
            k('s_mov_b32 m0, s55')
            k(f'buffer_load_dwordx4 v{V_L16}, s[{WS}:{WS+3}], s54 offen sc1 lds')
            k(f's_add_u32 s54, s54, {54*1024}'); k('s_add_u32 s55, s55, 1024')
        return [lambda j=j: one(j) for j in range(5)]

    W2R=128
    def w2r_setup(self):
        k=self.k
        k('s_lshr_b32 s28, s3, 1'); k('s_and_b32 s29, s3, 1')
        k('s_mul_i32 s29, s29, 27'); k('s_add_u32 s29, s29, s28')
        k('s_mul_i32 s28, s7, 270'); k('s_add_u32 s29, s29, s28')
        for g,first in enumerate((15,19,23)):
            k(f's_add_u32 s{58+g}, s29, {first}'); k(f's_lshl_b32 s{58+g}, s{58+g}, 10'); k(f's_add_u32 s{58+g}, s{58+g}, {W2F}')
    def w2r_load(self,n):
        k=self.k; g,ft=n//5,n%5; r=self.W2R+4*n
        k(f's_add_u32 s61, s{58+g}, {ft*54*1024}')
        k(f'buffer_load_dwordx4 v[{r}:{r+3}], v{V_L16}, s[{WS}:{WS+3}], s61 offen sc1')
    def fc1_early_w(self):
        k=self.k
        lab=k.lab('ew')
        k('s_cmp_ge_u32 s3, s41'); k(f's_cbranch_scc1 {lab}')
        k('s_mul_i32 s42, s40, 40960'); k(f's_add_u32 s42, s42, {W1F}')
        for s in range(self.F1A): self.f1_wload(s)
        k(lab+':')
    F1A=int(os.environ.get('F1A','12'))
    def f1_wreg(self,s): return 96+4*s
    def f1_wload(self,s):
        k=self.k; r=self.f1_wreg(s)
        k(f'buffer_load_dwordx4 v[{r}:{r+3}], v{V_L16}, s[{WS}:{WS+3}], s42 offen offset:{(s%4)*1024} sc1')
        if s%4==3: k('s_add_u32 s42, s42, 4096')

    def gelu_group_scalar(self,A,a,MR,CSV,B1F,TT,KC,vaddr,s_h):
        o=[]; PK=TT+4
        R=[A+4*a+i for i in range(4)]; t=[TT+i for i in range(4)]
        for i in range(4): o.append(f'v_fma_f32 v{t[i]}, -v{MR}, v{CSV+4*a+i}, v{B1F+4*a+i}')
        for i in range(4): o.append(f'v_fma_f32 v{R[i]}, v{R[i]}, v{MR+1}, v{t[i]}')
        for i in range(4): o.append(f'v_mul_f32 v{t[i]}, v{R[i]}, v{R[i]}')
        for i in range(4): o.append(f'v_fma_f32 v{t[i]}, v{t[i]}, v{KC+2}, v{KC}')
        for i in range(4): o.append(f'v_mul_f32 v{t[i]}, v{t[i]}, v{R[i]}')
        for i in range(4): o.append(f'v_exp_f32 v{t[i]}, v{t[i]}')
        for i in range(4): o.append(f'v_add_f32 v{t[i]}, 1.0, v{t[i]}')
        for i in range(4): o.append(f'v_rcp_f32 v{t[i]}, v{t[i]}')
        for i in range(4): o.append(f'v_mul_f32 v{R[i]}, v{R[i]}, v{t[i]}')
        o+= [f'v_cvt_pk_bf16_f32 v{PK}, v{R[0]}, v{R[1]}', f'v_cvt_pk_bf16_f32 v{PK+1}, v{R[2]}, v{R[3]}']
        o.append(f'buffer_store_dwordx2 v[{PK}:{PK+1}], v{vaddr}, s[{WS}:{WS+3}], s{s_h} offen offset:{a*256} sc1')
        return o
    def gelu_group(self,A,a,MR,CSV,B1F,TT,KC,vaddr,s_h):
        P=lambda r: f'v[{r}:{r+1}]'
        KC0,KC1,KONE=KC,KC+2,KC+4
        r0,r1=A+4*a,A+4*a+2
        t=[TT,TT+2]; PK=TT+4
        o=[]
        for e in range(2): o.append(f'v_pk_fma_f32 {P(t[e])}, {P(MR)}, {P(CSV+4*a+2*e)}, {P(B1F+4*a+2*e)} op_sel_hi:[0,1,1] neg_lo:[1,0,0] neg_hi:[1,0,0]')
        for e,r in enumerate((r0,r1)): o.append(f'v_pk_fma_f32 {P(r)}, {P(r)}, {P(MR)}, {P(t[e])} op_sel:[0,1,0] op_sel_hi:[1,1,1]')
        for e,r in enumerate((r0,r1)): o.append(f'v_pk_mul_f32 {P(t[e])}, {P(r)}, {P(r)}')
        for e,r in enumerate((r0,r1)): o.append(f'v_pk_fma_f32 {P(t[e])}, {P(t[e])}, {P(KC1)}, {P(KC0)}')
        for e,r in enumerate((r0,r1)): o.append(f'v_pk_mul_f32 {P(t[e])}, {P(t[e])}, {P(r)}')
        for e in range(2): o+= [f'v_exp_f32 v{t[e]}, v{t[e]}', f'v_exp_f32 v{t[e]+1}, v{t[e]+1}']
        for e in range(2): o.append(f'v_pk_add_f32 {P(t[e])}, {P(t[e])}, {P(KONE)}')
        for e in range(2): o+= [f'v_rcp_f32 v{t[e]}, v{t[e]}', f'v_rcp_f32 v{t[e]+1}, v{t[e]+1}']
        for e,r in enumerate((r0,r1)): o.append(f'v_pk_mul_f32 {P(r)}, {P(r)}, {P(t[e])}')
        o+= [f'v_cvt_pk_bf16_f32 v{PK}, v{r0}, v{r0+1}', f'v_cvt_pk_bf16_f32 v{PK+1}, v{r1}, v{r1+1}']
        o.append(f'buffer_store_dwordx2 v[{PK}:{PK+1}], v{vaddr}, s[{WS}:{WS+3}], s{s_h} offen offset:{a*256} sc1')
        return o

    def phase_fc1(self):
        k=self.k
        A0,A1,XF,CS,ONE,vX,WB=24,40,56,88,89,90,96
        self.wait(3)
        self.mark("f1.wait")
        k('s_mul_i32 s28, s6, 81920'); k(f's_mul_i32 s29, s12, {X1_D}'); k('s_add_u32 s28, s28, s29'); k(f's_add_u32 s28, s28, {X1B[0]}')
        k('s_mul_i32 s29, s3, 10240'); k('s_add_u32 s28, s28, s29')
        for i in range(10):
            k(f's_add_u32 m0, s29, {i*1024}')
            k(f'buffer_load_dwordx4 v{V_L16}, s[{WS}:{WS+3}], s28 offen sc1 lds')
            k('s_add_u32 s28, s28, 1024')
        act=k.lab('act'); fin=k.lab('fin')
        k('s_cmp_lt_u32 s3, s41'); k(f's_cbranch_scc1 {act}')
        n7=k.lab('n7'); n7w=k.lab('n7w')
        U=96
        k('s_cmp_lg_u32 s3, 7'); k(f's_cbranch_scc1 {n7w}')
        k(f'v_lshlrev_b32 v{U}, 3, v{V_LANE}')
        k('s_lshl_b32 s28, s6, 13'); k(f's_mul_i32 s29, s12, {ST_D}'); k('s_add_u32 s28, s28, s29'); k(f's_add_u32 s28, s28, {STB[0]}')
        for q in range(16):
            k(f'buffer_load_dwordx2 v[{A0+2*q}:{A0+2*q+1}], v{U}, s[{WS}:{WS+3}], s28 offen offset:{(q%8)*512} sc1')
            if q==7: k('s_add_u32 s28, s28, 4096')
        k('s_waitcnt vmcnt(0)')
        for q in range(1,16):
            k(f'v_add_f32 v{A0}, v{A0}, v{A0+2*q}'); k(f'v_add_f32 v{A0+1}, v{A0+1}, v{A0+2*q+1}')
        m_,r_,v_=U+2,U+3,A0+1
        k(f'v_mul_f32 v{m_}, {hex(f2u(1/640))}, v{A0}'); k(f'v_mul_f32 v{v_}, {hex(f2u(1/640))}, v{v_}')
        k(f'v_fma_f32 v{v_}, -v{m_}, v{m_}, v{v_}'); k(f'v_max_f32 v{v_}, 0, v{v_}')
        k(f'v_add_f32 v{A0+2}, {hex(f2u(1e-5))}, v{v_}'); k(f'v_rsq_f32 v{r_}, v{A0+2}')
        k(f'v_mul_f32 v{A0+3}, v{r_}, v{r_}'); k(f'v_mul_f32 v{A0+3}, v{A0+3}, v{v_}')
        k(f'v_add_f32 v{A0+3}, {hex(f2u(1e-5))}, v{A0+3}'); k(f'v_rsq_f32 v{A0+3}, v{A0+3}')
        k(f'v_mul_f32 v{r_}, v{r_}, v{A0+3}'); k(f'v_mul_f32 v{m_}, v{m_}, v{r_}')
        k(f'v_add_u32 v{U}, {L_TOKST}, v{U}')
        k(f'ds_write_b64 v{U}, v[{m_}:{r_}]')
        k(n7w+':')
        k('s_waitcnt vmcnt(0) lgkmcnt(0)')
        k('s_barrier')
        k('s_cmp_lg_u32 s3, 7'); k(f's_cbranch_scc1 {n7}')
        W2E=os.environ.get('W2E','1')=='1'
        if W2E:
            for e in range(16,30):
                k(f's_mov_b32 s52, {e}')
                for f in self.w2_chunk_dma(52): f()
        k(n7+':')
        self.w2r_setup()
        for n in range(15): self.w2r_load(n)
        k('s_barrier')
        k('s_cmp_lg_u32 s3, 7'); k(f's_cbranch_scc1 {fin}')
        for e in list(range(0,8))+[15]+([] if W2E else list(range(16,30))):
            k(f's_mov_b32 s52, {e}')
            for f in self.w2_chunk_dma(52): f()
        k('s_cmp_eq_u32 s41, 7'); k(f's_cbranch_scc1 {fin}')
        k('s_mov_b32 s52, 14')
        for f in self.w2_chunk_dma(52): f()
        k(f's_branch {fin}')
        k(act+':')
        srd(k,SA,P_B1,1728*2)
        B1R=72
        k('s_lshl_b32 s28, s40, 6')
        k(f'v_lshl_add_u32 v{vX}, v{V_H}, 3, s28')
        for a in range(4): k(f'buffer_load_dwordx2 v[{B1R+2*a}:{B1R+2*a+1}], v{vX}, s[{SA}:{SA+3}], 0 offen offset:{a*16}')
        k('s_waitcnt vmcnt(0)')
        k('s_barrier')
        self.mark("f1.x")
        k(f'v_lshrrev_b32 v{vX}, 4, v{V_L31}'); k(f'v_mul_u32_u24 v{vX}, 20480, v{vX}')
        k(f'v_lshl_add_u32 v{vX}, v{V_H}, 8, v{vX}'); k(f'v_lshl_add_u32 v{vX}, v{V_F}, 4, v{vX}')
        k(f'v_mov_b32 v{ONE}, 0x3f803f80'); k(f'v_mov_b32 v{CS}, 0')
        k('s_cmp_lg_u32 s12, 0'); k('s_cselect_b64 vcc, -1, 0')
        def rd(tt,s):
            ks,u=s//2,s%2
            x=XF+(s%4)*4
            k(f'ds_read_b128 v[{x}:{x+3}], v{vX} offset:{tt*40960+ks*1024+u*512}')
        F1A=self.F1A
        def pass1(with_cs):
            rd(0,0); rd(0,1); rd(0,2)
            for s in range(40):
                if s+F1A<40: self.f1_wload(s+F1A)
                if s+3<40: rd(0,s+3)
                w=f's_waitcnt lgkmcnt({min(3,39-s)})'
                if s>=F1A: w+=f' vmcnt({min(F1A,39-s)})'
                k(w)
                wr=self.f1_wreg(s); x=XF+(s%4)*4
                c0='0' if s==0 else f'v[{A0}:{A0+15}]'
                k(f'v_mfma_f32_32x32x16_bf16 v[{A0}:{A0+15}], v[{wr}:{wr+3}], v[{x}:{x+3}], {c0}')
                if with_cs:
                    for r in range(4): k(f'v_dot2c_f32_bf16 v{CS}, v{wr+r}, v{ONE}')
        p1=k.lab('p1'); p1d=k.lab('p1d')
        k(f's_cbranch_vccnz {p1}')
        pass1(True)
        k(f's_branch {p1d}')
        k(p1+':')
        pass1(False)
        k(p1d+':')
        ncs=k.lab('ncs')
        k(f's_cbranch_vccnz {ncs}')
        k(f'v_mov_b32 v91, v{CS}'); k(f'v_permlane32_swap_b32 v{CS}, v91'); k(f'v_add_f32 v{CS}, v{CS}, v91')
        k('s_lshl_b32 s28, s3, 7'); k(f's_add_u32 s28, s28, {L_CS1}')
        k(f'v_lshl_add_u32 v91, v{V_L31}, 2, s28')
        k(f'ds_write_b32 v91, v{CS}')
        k(ncs+':')
        k('s_waitcnt lgkmcnt(0)')
        self.mark("f1.p1")
        CSV,B1F,MR0,MR1,TT,KC,VA=96,112,80,82,16,84,91
        side=[]
        def S(x): side.append(x)
        S(f's_lshl_b32 s28, s3, 7'); S(f's_add_u32 s28, s28, {L_CS1}'); S(f'v_lshl_add_u32 v{VA}, v{V_H}, 4, s28')
        pre_reads=[f'ds_read_b128 v[{CSV+4*a}:{CSV+4*a+3}], v{VA} offset:{a*32}' for a in range(4)]
        c0=-2*0.7978845608028654*1.4426950408889634; c1=c0*0.044715
        for i in range(2):
            k(f'v_mov_b32 v{KC+i}, {hex(f2u(c0))}'); k(f'v_mov_b32 v{KC+2+i}, {hex(f2u(c1))}')
        KONE_=92
        k(f'v_mov_b32 v{KONE_}, 1.0'); k(f'v_mov_b32 v{KONE_+1}, 1.0')
        k(f'v_lshlrev_b32 v94, 3, v{V_L31}'); k(f'v_add_u32 v94, {L_TOKST}, v94')
        k(f'ds_read_b64 v[{MR0}:{MR0+1}], v94'); k(f'ds_read_b64 v[{MR1}:{MR1+1}], v94 offset:256')
        k(f'v_lshrrev_b32 v95, 4, v{V_L31}'); k(f's_mov_b32 s28, {54*1024}'); k('v_mul_lo_u32 v95, v95, s28')
        k(f'v_lshl_add_u32 v95, v{V_H}, 3, v95'); k(f'v_lshl_add_u32 v95, v{V_F}, 4, v95')
        for tt in range(2):
            k('s_lshl_b32 s28, s6, 2'); k(f's_add_u32 s28, s28, {2*tt}'); k('s_mul_i32 s28, s28, 54'); k('s_add_u32 s28, s28, s40')
            k('s_lshl_b32 s28, s28, 10'); k(f's_mul_i32 s29, s12, {HF_D}'); k('s_add_u32 s28, s28, s29'); k(f's_add_u32 s{56+tt}, s28, {HFB[0]}')
        k('s_mov_b32 s47, 0xffff0000')
        self.w2r_setup()
        k('s_waitcnt lgkmcnt(0)')
        rd(1,0); rd(1,1); rd(1,2)
        def gg(A,a,MR,sh):
            o=self.gelu_group(A,a,MR,CSV,B1F,TT,KC,95,sh)
            return [x.replace(f'v[{KC+4}:{KC+5}]',f'v[{KONE_}:{KONE_+1}]') for x in o]
        work=[]
        for a in range(4): work+=self.gelu_group_scalar(A0,a,MR0,CSV,B1F,TT,KC,95,56)
        nper=-(-len(work)//27)
        wi=0; lds_extra=0
        for s in range(40):
            if s+3<40: rd(1,s+3)
            extra=0
            if s==8:
                k(f's_lshl_b32 s28, s3, 7'); k(f's_add_u32 s28, s28, {L_CS1}'); k(f'v_lshl_add_u32 v{VA}, v{V_H}, 4, s28')
                for x in pre_reads: k(x)
                extra=4
            k(f's_waitcnt lgkmcnt({min(3,39-s)+extra})')
            wr=self.f1_wreg(s); x=XF+(s%4)*4
            c1s='0' if s==0 else f'v[{A1}:{A1+15}]'
            k(f'v_mfma_f32_32x32x16_bf16 v[{A1}:{A1+15}], v[{wr}:{wr+3}], v[{x}:{x+3}], {c1s}')
            if s in (9,10):
                for a in ((0,1) if s==9 else (2,3)):
                    k(f'v_lshlrev_b32 v{B1F+4*a}, 16, v{B1R+2*a}'); k(f'v_and_b32 v{B1F+4*a+1}, s47, v{B1R+2*a}')
                    k(f'v_lshlrev_b32 v{B1F+4*a+2}, 16, v{B1R+2*a+1}'); k(f'v_and_b32 v{B1F+4*a+3}, s47, v{B1R+2*a+1}')
            if 24<=s<39: self.w2r_load(s-24)
            if s>=12:
                for _ in range(nper):
                    if wi<len(work): k(work[wi]); wi+=1
        while wi<len(work): k(work[wi]); wi+=1
        k('s_barrier')
        self.mark("f1.mm")
        k('s_add_u32 s52, s3, 8')
        dm=self.w2_chunk_dma(52)
        for a in range(4):
            for x in gg(A1,a,MR1,57): k(x)
            if dm: dm.pop(0)()
            if a==3:
                while dm: dm.pop(0)()
        k(fin+':')
        self.mark("f1.epi")
        self.publish(4)
        self.mark("f1.pub")

    def phase_fc2(self):
        k=self.k
        HX,WR,ACC=20,188,216
        vA,vB,vC,BI,VO,vW=236,237,238,240,246,247
        W2R=self.W2R
        srd(k,SB,P_B2,1280)
        srd(k,SC,P_OUT,2048*1280)
        k('s_mul_i32 s28, s7, 160'); k('s_mul_i32 s29, s5, 96'); k('s_add_u32 s28, s28, s29')
        k(f'v_lshl_add_u32 v{vA}, v{V_G}, 3, s28')
        for j in range(3): k(f'buffer_load_dwordx2 v[{BI+2*j}:{BI+2*j+1}], v{vA}, s[{SB}:{SB+3}], 0 offen offset:{j*32}')
        k('s_movk_i32 s29, 1280'); k(f'v_mul_lo_u32 v{VO}, v{V_TOK}, s29'); k(f'v_add_u32 v{VO}, v{VO}, v{vA}')
        self.wait(4)
        self.mark("f2.wait")
        XP=os.environ.get('XP','')
        if 'noh' not in XP: self.x_loads(HX,27,HFB[0],HF_D,54,27)
        if 'hwait' in XP:
            k('s_waitcnt vmcnt(0)'); self.mark("f2.h")
        k('s_mul_i32 s28, s5, 5120')
        k(f'v_add_u32 v{vA}, s28, v{V_L16}'); k(f'v_add_u32 v{vB}, 61440, v{vA}'); k(f'v_add_u32 v{vC}, 122880, v{vA}')
        k('s_lshr_b32 s28, s3, 1'); k('s_mul_i32 s28, s28, 10240'); k('s_and_b32 s29, s3, 1'); k('s_mul_i32 s29, s29, 5120'); k('s_add_u32 s28, s28, s29')
        k(f'v_add_u32 v{vW}, s28, v{V_L16}')
        k(f'v_add_u32 v{vW+1}, 81920, v{vW}')
        NS=15
        slot=lambda i: i if i<NS else i-NS
        def refill(g):
            for ft in range(5):
                r=W2R+4*(5*g+ft)
                va,imm=(vW,g*40960+ft*1024) if g<2 else (vW+1,ft*1024)
                k(f'ds_write_b128 v{va}, v[{r}:{r+3}] offset:{imm}')
        DEPTH=int(os.environ.get('F2D','6'))
        bar={10:[0,1],15:[2],23:[]} if os.environ.get('F2B','3')=='3' else {7:[0],11:[1],15:[2],19:[],23:[]}
        fr=[]
        for i in range(27):
            for ft in range(5):
                j=slot(i); va,imm=((vA,vB,vC)[j//6],(j%6)*10240)
                def rd(r,va=va,imm=imm,ft=ft): k(f'ds_read_b128 v[{r}:{r+3}], v{va} offset:{imm+ft*1024}')
                def mf(r,i=i,ft=ft):
                    c=ACC+4*ft; cs='0' if i==0 else f'v[{c}:{c+3}]'
                    k(f'v_mfma_f32_16x16x32_bf16 v[{c}:{c+3}], v[{r}:{r+3}], v[{HX+4*i}:{HX+4*i+3}], {cs}')
                d=dict(read=rd,mfma=mf)
                if ft==0:
                    d['vm']=26-i
                    if i in bar:
                        def pre(i=i):
                            if 'nobar' not in XP: k('s_barrier')
                            if 'norf' not in XP:
                                for g in bar[i]: refill(g)
                        d['pre']=pre
                fr.append(d)
        self.frag_gemm(fr,WR,DEPTH,1)
        self.mark("f2.mm")
        k('s_barrier')
        nl=k.lab('nl')
        k('s_cmp_eq_u32 s12, 1'); k(f's_cbranch_scc1 {nl}')
        self.dma_lin_slice(WQF); self.dma_wkv()
        k(nl+':')
        T=48
        self.reduce_pairs(ACC,T+9,L_RED)
        k('s_waitcnt lgkmcnt(0)')
        k('s_barrier')
        self.reduce_pairs_finish(ACC,T+9,24)
        self.epilogue_res(ACC,T,X2B,0,stats=False,bias=BI,final=True,vout=VO)
        self.mark("f2.epi")

    def build(self):
        k=self.k
        self.prologue()
        self.mark0("p.start")
        self.x0_loads(24,144)
        nn=k.lab('nn2')
        k('s_cmp_lg_u32 s2, 0'); k(f's_cbranch_scc1 {nn}')
        k('s_cmp_lg_u32 s3, 5'); k(f's_cbranch_scc1 {nn}')
        k('s_waitcnt vmcnt(13)')
        k(f'v_mov_b32 v200, {NONCE}')
        k('v_add_u32 v201, 4096, v201'); k('v_or_b32 v201, 1, v201')
        k('s_mov_b64 exec, 1')
        k(f'buffer_store_dword v201, v200, s[{WS}:{WS+3}], 0 offen sc1')
        k('v_mov_b32 v200, 0')
        k('buffer_store_dword v201, v200, s[60:63], 0 offen sc1')
        k('s_mov_b64 exec, -1')
        k(nn+':')
        if 'cs.x' in os.environ.get('MARKS',''):
            k('s_waitcnt vmcnt(0)'); self.mark0("cs.x")
        self.dma_w160(P_WQ); self.dma_wkv()
        self.conv_issue(L_RED,self.CONV_A+self.CONV_B)
        if 'notlb' not in os.environ.get('XP',''): self.tlb_warm()
        self.mark0("p.issued")
        LOOP='mega_layer'
        k(LOOP+':')
        self.phase_qkv(); self.stopat('qkv')
        self.phase_attn(); self.stopat('attn')
        self.phase_oproj(); self.stopat('oproj')
        self.phase_fc1(); self.stopat('fc1')
        self.phase_fc2(); self.stopat('fc2')
        k('s_cmp_eq_u32 s12, 1'); k(f's_cbranch_scc1 {self.END}')
        self.publish(5)
        self.wait(5)
        k('s_mov_b32 s12, 1'); k('s_add_u32 s13, s13, 5')
        k(f's_branch {LOOP}')
        k(self.END+':')
        if self.stamps:
            k('s_waitcnt vmcnt(0) lgkmcnt(0)')
            k(f'{self.clk} s[100:101]'); k('s_waitcnt lgkmcnt(0)')
            k('s_lshl_b32 s28, s2, 3'); k('s_add_u32 s28, s28, s3'); k('s_lshl_b32 s28, s28, 6'); k(f's_add_u32 s28, s28, {STAMP_OFF}')
            k('s_add_u32 s30, s86, s28'); k('s_addc_u32 s31, s87, 0')
            k('v_mov_b32 v24, 0')
            for i in range(13):
                k(f'v_mov_b32 v25, s{88+i}')
                k(f'global_store_dword v24, v25, s[30:31] offset:{4*i}')
        k('mega_kernel_exit:')
        k('mega_code_end:')
        k('s_endpgm')
        return k

def gen_init():
    k=Kern('init_kernel',vgpr=8,sgpr=24)
    k('s_cmp_ge_u32 s2, 1'); k('s_cbranch_scc1 init_kernel_end')
    k('s_load_dwordx2 s[4:5], s[0:1], 96')
    k('s_waitcnt lgkmcnt(0)')
    srd(k,8,4,4096,FLG)
    k('v_lshlrev_b32 v1, 4, v0')
    for i in range(4): k(f'v_mov_b32 v{2+i}, 0')
    k('buffer_store_dwordx4 v[2:5], v1, s[8:11], 0 offen')
    k('init_kernel_end:')
    k('s_endpgm')
    return k
```

```python
import os, struct
from asmlib import *
from mlayout import *

def f2u(x): return struct.unpack('<I',struct.pack('<f',x))[0]
P_X,P_WQ,P_WK,P_WV,P_WO,P_W1,P_B1,P_W2,P_B2,P_OUT=64,66,68,70,72,76,78,80,82,84
WS=8
SA,SB,SC=16,20,24
OOB='0x40000000'
V_LANE,V_F,V_G,V_L16,V_L31,V_H,V_TR,V_RES,V_TOK,V_D=1,2,3,4,5,6,7,8,14,16
L_WKV=102400
L_RED=128000
L_KVR=157056
L_STAT=152576
L_CS=163136
L_NONCE=163776
L_BADF=163780
L_PAIRF=163784
L_KVCS=155008
NONCE=FLG+2048+64
L_QL=0
L_COMB=112640
L_OIMG=137216
L_ORED=102400
L_TOKST=153600
L_CS1=154112
LDS_TOTAL=160*1024
STAMP_OFF=100<<20
POLLW=7

def srd(k,d,p,size,off=0):
    k(f's_add_u32 s{d}, s{p}, {off}' if off else f's_mov_b32 s{d}, s{p}')
    k(f's_addc_u32 s{d+1}, s{p+1}, 0' if off else f's_mov_b32 s{d+1}, s{p+1}')
    k(f's_and_b32 s{d+1}, s{d+1}, 0xffff')
    k(f's_mov_b32 s{d+2}, {size}')
    k(f's_mov_b32 s{d+3}, 0x20000')

def sum_g(k,x,tmp):
    k(f'v_mov_b32 v{tmp}, v{x}')
    k(f'v_permlane16_swap_b32 v{x}, v{tmp}')
    k(f'v_add_f32 v{x}, v{x}, v{tmp}')
    k(f'v_mov_b32 v{tmp}, v{x}')
    k(f'v_permlane32_swap_b32 v{x}, v{tmp}')
    k(f'v_add_f32 v{x}, v{x}, v{tmp}')

KNAME='interleave_layers__grouped_kv_mqa__mixer_channel_mlp__prompt_kernel'
class Mega:
    def __init__(self, stamps=False, stop=None):
        self.k=Kern(KNAME,vgpr=256,sgpr=102)
        self.stamps=stamps; self.stop=stop; self.END='mega_kernel_end'
        self.mark_layer=int(os.environ.get('MARKL','1'))
        self.clk='s_memrealtime' if os.environ.get('RT') else 's_memtime'
    def mark(self,name):
        if not self.stamps: return
        ms=os.environ.get('MARKS','').split(',')
        if name not in ms: return
        i=ms.index(name)
        k=self.k
        k(f'{self.clk} s[100:101]')
        k('s_waitcnt lgkmcnt(0)')
        k(f's_cmp_eq_u32 s12, {self.mark_layer}')
        k(f's_cselect_b32 s{88+i}, s100, s{88+i}')
    def mark0(self,name):
        if not self.stamps: return
        ms=os.environ.get('MARKS','').split(',')
        if name not in ms: return
        i=ms.index(name); k=self.k
        k(f'{self.clk} s[100:101]'); k('s_waitcnt lgkmcnt(0)'); k(f's_mov_b32 s{88+i}, s100')
    def stopat(self,name):
        if self.stop==name:
            k=self.k
            k(f's_cmp_eq_u32 s12, {int(os.environ.get("STOPL","0"))}')
            k(f's_cbranch_scc1 {self.END}')

    def publish(self,j):
        k=self.k
        k('s_waitcnt vmcnt(0)')
        k('s_barrier')
        lab=k.lab('pub')
        k('s_cmp_lg_u32 s3, 0')
        k(f's_cbranch_scc1 {lab}')
        k(f's_add_u32 s28, s13, {j}')
        k('v_mov_b32 v22, s28')
        k('s_lshl_b32 s29, s6, 6'); k('s_lshl_b32 s30, s7, 2'); k('s_add_u32 s29, s29, s30')
        k('v_mov_b32 v21, s29')
        k('s_mov_b64 exec, 1')
        k(f'buffer_store_dword v22, v21, s[{WS}:{WS+3}], 0 offen offset:{FLG} sc1')
        k('s_mov_b64 exec, -1')
        k(lab+':')
    def wait(self,j,allwg=False,others=None):
        k=self.k
        lab=k.lab('w'); loop=k.lab('poll'); done=k.lab('pd')
        wide = allwg or others is not None
        k(f's_cmp_lg_u32 s3, {POLLW}')
        k(f's_cbranch_scc1 {lab}')
        k(f's_add_u32 s28, s13, {j}')
        if wide:
            k(f'v_lshrrev_b32 v22, 1, v{V_LANE}'); k('v_lshlrev_b32 v21, 6, v22')
            k(f'v_and_b32 v16, 1, v{V_LANE}'); k('v_lshl_add_u32 v21, v16, 4, v21')
            if others is not None:
                k(f's_add_u32 s29, s13, {others}')
                k('v_cmp_eq_u32 vcc, s6, v22')
                k('v_mov_b32 v23, s29'); k('v_mov_b32 v22, s28')
                k('v_cndmask_b32 v22, v23, v22, vcc')
            else: k('v_mov_b32 v22, s28')
        else:
            k(f'v_and_b32 v21, 7, v{V_LANE}'); k('v_lshlrev_b32 v21, 2, v21')
            k('s_lshl_b32 s29, s6, 6'); k('v_add_u32 v21, s29, v21')
            k('v_mov_b32 v22, s28')
        k('s_mov_b32 s30, 0')
        k(loop+':')
        if wide:
            k(f'buffer_load_dwordx4 v[16:19], v21, s[{WS}:{WS+3}], 0 offen offset:{FLG} sc1')
            k('s_waitcnt vmcnt(0)')
            for r in (16,17,18,19): k(f'v_sub_u32 v{r}, v{r}, v22')
            k('v_max_u32 v16, v16, v17'); k('v_max_u32 v18, v18, v19'); k('v_max_u32 v16, v16, v18')
        else:
            k(f'buffer_load_dword v16, v21, s[{WS}:{WS+3}], 0 offen offset:{FLG} sc1')
            k('s_waitcnt vmcnt(0)')
            k('v_sub_u32 v16, v16, v22')
        k('v_cmp_le_u32 vcc, 32, v16')
        k(f's_cbranch_vccz {done}')
        k('s_add_u32 s30, s30, 1')
        k(f's_cmp_lt_u32 s30, 0x40000')
        k(f's_cbranch_scc1 {loop}')
        k(done+':')
        k(lab+':')
        k('s_barrier')

    def dma_chunk160(self, s_srd, s_soff, s_m0):
        k=self.k
        for j in range(5):
            k(f's_mov_b32 m0, s{s_m0}')
            k(f'buffer_load_dwordx4 v{V_D+j}, s[{s_srd}:{s_srd+3}], s{s_soff} offen lds')
            if j<4: k(f's_add_u32 s{s_m0}, s{s_m0}, 1024')
    def dma_w160(self,ptr,skip_poller=False):
        k=self.k
        srd(k,SA,ptr,640*1280)
        nw=7 if skip_poller else 8
        end=k.lab('dw')
        if skip_poller:
            k(f's_cmp_eq_u32 s3, {POLLW}'); k(f's_cbranch_scc1 {end}')
        for t in range(3):
            lab=k.lab('wq')
            k(f's_add_u32 s28, s3, {nw*t}')
            if nw*t+nw>20:
                k('s_cmp_ge_u32 s28, 20'); k(f's_cbranch_scc1 {lab}')
            k('s_mul_i32 s29, s28, 40960'); k('s_mul_i32 s30, s28, 5120')
            self.dma_chunk160(SA,29,30)
            k(lab+':')
        k(end+':')
    def dma_wkv(self):
        k=self.k
        k('s_and_b32 s28, s7, 1'); k('s_cmp_eq_u32 s28, 0')
        k(f's_cselect_b32 s30, s{P_WK}, s{P_WV}'); k(f's_cselect_b32 s31, s{P_WK+1}, s{P_WV+1}')
        srd(k,SB,30,25600)
        for t in range(4):
            lab=k.lab('wk')
            k(f's_add_u32 s28, s3, {8*t}')
            if t==3:
                k('s_cmp_ge_u32 s28, 25'); k(f's_cbranch_scc1 {lab}')
            k('s_lshl_b32 s29, s28, 10'); k(f's_add_u32 s30, s29, {L_WKV}')
            k('s_mov_b32 m0, s30')
            k(f'buffer_load_dwordx4 v{V_L16}, s[{SB}:{SB+3}], s29 offen lds')
            k(lab+':')
    def l2_prefetch(self, s_srd, total, nwaves, wave0, vtmp, base_off=0):
        k=self.k
        per=(total//32+127)//128*128
        ninst=(per+8191)//8192
        pw=(ninst+nwaves-1)//nwaves
        k('s_and_b32 s28, s6, 3'); k('s_lshl_b32 s28, s28, 3'); k('s_add_u32 s28, s28, s7')
        k(f's_mul_i32 s28, s28, {per}')
        k(f's_sub_u32 s29, s3, {wave0}'); k(f's_mul_i32 s29, s29, {pw*8192}'); k('s_add_u32 s28, s28, s29')
        if base_off: k(f's_add_u32 s28, s28, {base_off}')
        k(f'v_lshlrev_b32 v{vtmp}, 7, v{V_LANE}')
        for n in range(pw):
            k(f'buffer_load_dword v{vtmp+1}, v{vtmp}, s[{s_srd}:{s_srd+3}], s28 offen')
            k('s_add_u32 s28, s28, 8192')
        return pw

    def prologue(self):
        k=self.k
        k('s_cmp_ge_u32 s2, 256')
        k(f's_cbranch_scc1 mega_kernel_exit')
        k('s_load_dwordx16 s[64:79], s[0:1], 0')
        k('s_load_dwordx4 s[80:83], s[0:1], 64')
        k('s_load_dwordx2 s[84:85], s[0:1], 80')
        k('s_load_dwordx2 s[86:87], s[0:1], 96')
        k('s_load_dwordx2 s[58:59], s[0:1], 88')
        if self.stamps: k(f'{self.clk} s[100:101]')
        k('v_lshrrev_b32 v24, 6, v0')
        k(f'v_and_b32 v{V_LANE}, 63, v0')
        k('v_readfirstlane_b32 s3, v24')
        k('s_and_b32 s4, s3, 3'); k('s_lshr_b32 s5, s3, 2')
        k('s_and_b32 s6, s2, 7'); k('s_lshl_b32 s6, s6, 2'); k('s_lshr_b32 s7, s2, 3'); k('s_and_b32 s7, s7, 3'); k('s_add_u32 s6, s6, s7'); k('s_lshr_b32 s7, s2, 5')
        k(f'v_and_b32 v{V_F}, 15, v{V_LANE}')
        k(f'v_lshrrev_b32 v{V_G}, 4, v{V_LANE}')
        k(f'v_lshlrev_b32 v{V_L16}, 4, v{V_LANE}')
        k(f'v_and_b32 v{V_L31}, 31, v{V_LANE}')
        k(f'v_lshrrev_b32 v{V_H}, 5, v{V_LANE}')
        k(f'v_lshrrev_b32 v24, 2, v{V_F}')
        k(f'v_and_b32 v25, 1, v{V_G}'); k('v_lshl_add_u32 v24, v25, 2, v24')
        k(f'v_lshrrev_b32 v25, 1, v{V_G}'); k('v_lshl_add_u32 v24, v25, 4, v24')
        k('v_mul_u32_u24 v24, 160, v24')
        k(f'v_and_b32 v25, 3, v{V_LANE}')
        k(f'v_lshl_add_u32 v{V_TR}, v25, 3, v24')
        k('s_lshl_b32 s28, s6, 6'); k('s_lshl_b32 s29, s4, 4'); k('s_add_u32 s28, s28, s29')
        k(f'v_add_u32 v{V_TOK}, s28, v{V_F}')
        k('s_mul_i32 s29, s7, 160')
        for j in range(5):
            k(f'v_add_u32 v24, {64*j}, v{V_LANE}')
            k('v_mul_u32_u24 v25, 6554, v24'); k('v_lshrrev_b32 v25, 16, v25')
            k('v_mul_u32_u24 v26, 10, v25'); k('v_sub_u32 v26, v24, v26')
            k('v_and_b32 v27, 0x13, v25')
            k('v_bfe_u32 v28, v25, 3, 1'); k('v_lshl_add_u32 v27, v28, 2, v27')
            k('v_bfe_u32 v28, v25, 2, 1'); k('v_lshl_add_u32 v27, v28, 3, v27')
            k('v_mul_u32_u24 v27, 1280, v27')
            k('v_lshl_add_u32 v27, v26, 4, v27')
            k(f'v_add_u32 v{V_D+j}, s29, v27')
        k('s_waitcnt lgkmcnt(0)')
        if self.stamps:
            k('s_mov_b32 s99, s100')
            for i in range(11): k(f's_mov_b32 s{88+i}, 0')
        srd(k,WS,86,WS_USED)
        k('s_mov_b32 s12, 0'); k('s_mov_b32 s13, 0')
        srd(k,60,58,256)
        nn=k.lab('nn')
        k('s_cmp_lg_u32 s2, 0'); k(f's_cbranch_scc1 {nn}')
        k('s_cmp_lg_u32 s3, 5'); k(f's_cbranch_scc1 {nn}')
        k('s_memrealtime s[28:29]')
        k('s_waitcnt lgkmcnt(0)')
        k('s_lshl_b32 s28, s28, 6'); k('s_or_b32 s28, s28, 1')
        k('v_mov_b32 v201, s28'); k('v_mov_b32 v200, 0')
        k('s_mov_b64 exec, 1')
        k('buffer_store_dword v201, v200, s[60:63], 0 offen sc1')
        k('s_mov_b64 exec, -1')
        k(nn+':')
        k('s_mul_i32 s40, s7, 7'); k('s_sub_u32 s28, s7, 6'); k('s_max_i32 s28, s28, 0'); k('s_sub_u32 s40, s40, s28')
        k('s_cmp_ge_u32 s7, 6'); k('s_cselect_b32 s41, 6, 7')
        k('s_add_u32 s40, s40, s3')

    def x0_loads(self,XF,T):
        k=self.k
        srd(k,SC,P_X,2048*1280)
        k('s_movk_i32 s28, 1280')
        k(f'v_mul_lo_u32 v{T}, v{V_TOK}, s28')
        k(f'v_lshl_add_u32 v{T+1}, v{V_G}, 4, v{T}')
        k('s_mul_i32 s29, s5, 640')
        k(f'v_add_u32 v{T+1}, s29, v{T+1}')
        if 'xlin' in os.environ.get('XP',''):
            k('s_lshl_b32 s28, s6, 2'); k('s_add_u32 s28, s28, s4'); k('s_mul_i32 s28, s28, 20'); k('s_mul_i32 s29, s5, 10'); k('s_add_u32 s28, s28, s29'); k('s_lshl_b32 s28, s28, 10')
            for i in range(10):
                k(f'buffer_load_dwordx4 v[{XF+4*i}:{XF+4*i+3}], v{V_L16}, s[{SC}:{SC+3}], s28 offen offset:{(i%4)*1024}')
                if i%4==3: k('s_add_u32 s28, s28, 4096')
        else:
          for i in range(10):
            k(f'buffer_load_dwordx4 v[{XF+4*i}:{XF+4*i+3}], v{T+1}, s[{SC}:{SC+3}], 0 offen offset:{i*64}')
        k(f'v_lshl_add_u32 v{T+1}, v{V_G}, 3, v{T}')
        k('s_mul_i32 s29, s7, 160'); k('s_mul_i32 s30, s5, 96'); k('s_add_u32 s29, s29, s30')
        k(f'v_add_u32 v{T+1}, s29, v{T+1}')
        for j in range(3):
            k(f'buffer_load_dwordx2 v[{V_RES+2*j}:{V_RES+2*j+1}], v{T+1}, s[{SC}:{SC+3}], 0 offen offset:{j*32}')

    def conv_issue(self, stage, kinds):
        k=self.k
        done=k.lab('cvd'); go=k.lab('cvg')
        total=sum(x[5] for x in kinds)
        k('s_mov_b32 s50, 0')
        k('s_lshl_b32 s28, s43, 8'); k('s_add_u32 s28, s28, s2')
        k(f's_cmp_ge_u32 s28, {total}'); k(f's_cbranch_scc1 {done}')
        labs=[k.lab('cvk') for _ in kinds]
        acc=0
        for idx,x in enumerate(kinds[:-1]):
            acc+=x[5]
            k(f's_cmp_lt_u32 s28, {acc}'); k(f's_cbranch_scc1 {labs[idx]}')
        k(f's_branch {labs[-1]}')
        acc=0
        for idx,(name,ptr,rows,stride,ncg,njobs,dst,layout) in enumerate(kinds):
            k(labs[idx]+':')
            if acc: k(f's_sub_u32 s28, s28, {acc}')
            magic=-(-65536//ncg)
            assert all((j*magic)>>16==j//ncg for j in range(njobs))
            k(f's_mul_i32 s29, s28, {magic}'); k('s_lshr_b32 s29, s29, 16')
            k(f's_mul_i32 s30, s29, {ncg}'); k('s_sub_u32 s30, s28, s30')
            srd(k,SA,ptr,rows*stride)
            k(f's_movk_i32 s31, {stride}')
            k(f's_mov_b32 s50, {1 if layout=="w1" else 2}')
            if layout=='w1':
                k('s_mul_i32 s51, s30, 80'); k('s_lshl_b32 s32, s29, 1'); k('s_add_u32 s51, s51, s32')
                k('s_mov_b32 s57, 0')
            else:
                KS=rows//32
                k(f's_mul_i32 s51, s30, {4*KS}'); k('s_add_u32 s51, s51, s29')
                k(f's_mov_b32 s57, {KS*1024}')
            k('s_lshl_b32 s51, s51, 10'); k(f's_add_u32 s51, s51, {dst}')
            k(f's_branch {go}')
            acc+=njobs
        k(go+':')
        k(f'v_lshrrev_b32 v200, 3, v{V_LANE}'); k('v_mul_lo_u32 v200, v200, s31')
        k(f'v_and_b32 v201, 7, v{V_LANE}'); k('v_lshl_add_u32 v200, v201, 4, v200')
        k('s_lshl_b32 s32, s29, 5'); k('s_mul_i32 s32, s32, s31'); k('s_lshl_b32 s33, s30, 7'); k('s_add_u32 s32, s32, s33')
        k('s_lshl_b32 s33, s31, 3')
        k('s_lshl_b32 s34, s43, 12'); k(f's_add_u32 s34, s34, {stage}')
        for i in range(4):
            k('s_mov_b32 m0, s34')
            k(f'buffer_load_dwordx4 v200, s[{SA}:{SA+3}], s32 offen lds')
            if i<3:
                k('s_add_u32 s32, s32, s33'); k('s_add_u32 s34, s34, 1024')
        k(done+':')
    def conv_finish(self,T,stage):
        k=self.k
        done=k.lab('cfd'); w2=k.lab('cf2')
        k('s_cmp_eq_u32 s50, 0'); k(f's_cbranch_scc1 {done}')
        k('s_lshl_b32 s34, s43, 12'); k(f's_add_u32 s34, s34, {stage}')
        k(f'v_lshrrev_b32 v{T}, 2, v{V_F}')
        k(f'v_and_b32 v{T+1}, 3, v{V_LANE}')
        k('s_cmp_eq_u32 s50, 2'); k(f's_cbranch_scc1 {w2}')
        k(f'v_lshl_add_u32 v{T}, v{V_H}, 3, v{T}'); k(f'v_lshlrev_b32 v{T}, 7, v{T}')
        k(f'v_and_b32 v{T+2}, 1, v{V_G}'); k(f'v_lshl_add_u32 v{T}, v{T+2}, 5, v{T}')
        k(f'v_lshl_add_u32 v{T}, v{T+1}, 3, v{T}'); k(f'v_add_u32 v{T}, s34, v{T}')
        fr=[(p,u) for p in range(2) for u in range(2)]
        for n,(p,u) in enumerate(fr):
            b=T+4+4*n
            k(f'ds_read_b64_tr_b16 v[{b}:{b+1}], v{T} offset:{u*2048+p*64}')
            k(f'ds_read_b64_tr_b16 v[{b+2}:{b+3}], v{T} offset:{u*2048+p*64+512}')
        k('s_waitcnt lgkmcnt(0)')
        for n,(p,u) in enumerate(fr):
            b=T+4+4*n
            k(f's_add_u32 s32, s51, {(p*40+u)*1024}')
            k(f'buffer_store_dwordx4 v[{b}:{b+3}], v{V_L16}, s[{WS}:{WS+3}], s32 offen sc1')
        k(f's_branch {done}')
        k(w2+':')
        k(f'v_lshl_add_u32 v{T}, v{V_G}, 3, v{T}'); k(f'v_lshlrev_b32 v{T}, 7, v{T}')
        k(f'v_lshl_add_u32 v{T}, v{T+1}, 3, v{T}'); k(f'v_add_u32 v{T}, s34, v{T}')
        for n in range(4):
            b=T+4+4*n
            k(f'ds_read_b64_tr_b16 v[{b}:{b+1}], v{T} offset:{n*32}')
            k(f'ds_read_b64_tr_b16 v[{b+2}:{b+3}], v{T} offset:{n*32+512}')
        k('s_waitcnt lgkmcnt(0)')
        k('s_mov_b32 s32, s51')
        for n in range(4):
            b=T+4+4*n
            k(f'buffer_store_dwordx4 v[{b}:{b+3}], v{V_L16}, s[{WS}:{WS+3}], s32 offen sc1')
            if n<3: k('s_add_u32 s32, s32, s57')
        k(done+':')
    CONV_A=[('wo',P_WO,640,1280,10,200,WOF,'a16'),('wq',P_WQ,640,1280,10,200,WQF,'a16')]
    CONV_B=[('w1',P_W1,640,3456,27,540,W1F,'w1'),('w2',P_W2,1728,1280,10,540,W2F,'a16')]

    def dma_lin_slice(self, src_const, waves=8):
        k=self.k
        k(f's_mul_i32 s28, s7, 102400'); k(f's_add_u32 s28, s28, {src_const}')
        k('s_lshl_b32 s29, s3, 10'); k('s_add_u32 s28, s28, s29')
        for n in range(13):
            lab=None
            if n==12:
                lab=k.lab('dl'); k('s_cmp_ge_u32 s3, 4'); k(f's_cbranch_scc1 {lab}')
            k('s_mov_b32 m0, s29')
            k(f'buffer_load_dwordx4 v{V_L16}, s[{WS}:{WS+3}], s28 offen sc1 lds')
            if n<12:
                k('s_add_u32 s28, s28, 8192'); k('s_add_u32 s29, s29, 8192')
            if lab: k(lab+':')

    def dma_next_qkv(self):
        k=self.k
        end=k.lab('dn')
        k(f's_cmp_eq_u32 s3, {POLLW}'); k(f's_cbranch_scc1 {end}')
        k('s_and_b32 s28, s7, 1'); k('s_cmp_eq_u32 s28, 0')
        k(f's_cselect_b32 s30, s{P_WK}, s{P_WV}'); k(f's_cselect_b32 s31, s{P_WK+1}, s{P_WV+1}')
        srd(k,SB,30,25600)
        for t in range(4):
            lab=k.lab('wk')
            k(f's_add_u32 s28, s3, {7*t}')
            if t==3:
                k('s_cmp_ge_u32 s28, 25'); k(f's_cbranch_scc1 {lab}')
            k('s_lshl_b32 s29, s28, 10'); k(f's_add_u32 s30, s29, {L_WKV}')
            k('s_mov_b32 m0, s30')
            k(f'buffer_load_dwordx4 v{V_L16}, s[{SB}:{SB+3}], s29 offen lds')
            k(lab+':')
        k(f's_mul_i32 s28, s7, 102400'); k(f's_add_u32 s28, s28, {WQF}')
        k('s_lshl_b32 s29, s3, 10'); k('s_add_u32 s28, s28, s29')
        for n in range(15):
            lab=None
            if n==14:
                lab=k.lab('dl'); k('s_cmp_ge_u32 s3, 2'); k(f's_cbranch_scc1 {lab}')
            k('s_mov_b32 m0, s29')
            k(f'buffer_load_dwordx4 v{V_L16}, s[{WS}:{WS+3}], s28 offen sc1 lds')
            if n<14:
                k('s_add_u32 s28, s28, 7168'); k('s_add_u32 s29, s29, 7168')
            if lab: k(lab+':')
        k(end+':')
    def tlb_warm(self):
        k=self.k
        lab=k.lab('tw')
        k('s_cmp_lg_u32 s3, 6'); k(f's_cbranch_scc1 {lab}')
        k(f'v_lshlrev_b32 v200, 19, v{V_LANE}')
        k(f'buffer_load_dword v201, v200, s[{WS}:{WS+3}], 0 offen')
        for ptr,size in ((P_W1,640*3456),(P_W2,1728*1280),(P_OUT,2048*1280),(P_WO,640*1280),(P_B1,3456),(P_B2,1280)):
            srd(k,SA,ptr,size)
            k(f'buffer_load_dword v201, v200, s[{SA}:{SA+3}], 0 offen')
        if 'cpf' in os.environ.get('XP',''):
            k('s_getpc_b64 s[56:57]')
            k('mega_code_here:')
            k('s_mov_b32 s28, mega_code_end-mega_code_here-4')
            k(f'v_lshlrev_b32 v200, 7, v{V_LANE}')
            for n in range(8):
                k('v_min_u32 v202, s28, v200')
                k('global_load_dword v201, v202, s[56:57]')
                k('v_add_u32 v200, 8192, v200')
        k(lab+':')

    def frag_gemm(self, frags, WR, depth, nread, after=None):
        k=self.k
        n=len(frags); slots=depth+1
        reg=lambda i: WR+(i%slots)*4
        def issue(i):
            if frags[i].get('pre'): frags[i]['pre']()
            frags[i]['read'](reg(i))
        for i in range(min(depth,n)): issue(i)
        for i in range(n):
            if i+depth<n: issue(i+depth)
            rem=min(depth,n-1-i)
            w=f's_waitcnt lgkmcnt({rem*nread})'
            vm=frags[i].get('vm')
            if vm is not None:
                v=vm() if callable(vm) else vm
                if v is not None: w+=f' vmcnt({v})'
            k(w)
            frags[i]['mfma'](reg(i))
            if after and i in after: after[i]()

    def diag_stats(self,SX,SQ,S0,S1,tmp):
        k=self.k
        k(f'v_and_b32 v{tmp}, 3, v{V_LANE}')
        k(f'v_mov_b32 v{S1}, v{SQ}')
        for r in (1,2,3):
            k(f'v_cmp_eq_u32 vcc, {r}, v{tmp}'); k(f'v_cndmask_b32 v{S1}, v{S1}, v{SQ+r}, vcc')
        k(f'v_mov_b32 v{S0}, v{SX}')
    def diag_mask_on(self):
        k=self.k
        k('s_mov_b32 exec_lo, 0x00f0000f'); k('s_mov_b32 exec_hi, 0xf0000f00')
    def reduce_pairs(self, ACC, tmp, base):
        k=self.k
        k('s_mul_i32 s28, s4, 5120')
        k(f's_add_u32 s28, s28, {base}')
        k(f'v_add_u32 v{tmp}, s28, v{V_L16}')
        l1=k.lab('r1'); l2=k.lab('r2')
        k('s_cmp_eq_u32 s5, 1'); k(f's_cbranch_scc1 {l1}')
        for ft in (3,4): k(f'ds_write_b128 v{tmp}, v[{ACC+4*ft}:{ACC+4*ft+3}] offset:{ft*1024}')
        k(f's_branch {l2}')
        k(l1+':')
        for ft in (0,1,2): k(f'ds_write_b128 v{tmp}, v[{ACC+4*ft}:{ACC+4*ft+3}] offset:{ft*1024}')
        for i in range(8): k(f'v_mov_b32 v{ACC+i}, v{ACC+12+i}')
        k(l2+':')
    def reduce_pairs_finish(self, ACC, tmp, T):
        k=self.k
        k('s_mul_i32 s29, s5, 3072')
        k(f'v_add_u32 v{tmp}, s29, v{tmp}')
        for j in range(3): k(f'ds_read_b128 v[{T+4*j}:{T+4*j+3}], v{tmp} offset:{j*1024}')
        k('s_waitcnt lgkmcnt(0)')
        for i in range(12): k(f'v_add_f32 v{ACC+i}, v{ACC+i}, v{T+i}')

    def tile_offsets(self, sbase):
        k=self.k
        k('s_lshl_b32 s28, s6, 2'); k('s_add_u32 s28, s28, s4'); k('s_mul_i32 s28, s28, 20480')
        k('s_mul_i32 s29, s7, 5'); k('s_mul_i32 s30, s5, 3'); k('s_add_u32 s29, s29, s30')
        for j in range(3):
            k(f's_add_u32 s30, s29, {j}'); k('s_lshl_b32 s30, s30, 9')
            k(f's_add_u32 s{sbase+j}, s30, s28')

    def x_loads(self,XF,n,base_const,layer_stride,KS,per_half):
        k=self.k
        k('s_lshl_b32 s28, s6, 2'); k('s_add_u32 s28, s28, s4'); k(f's_mul_i32 s28, s28, {KS}'); k(f's_mul_i32 s29, s5, {per_half}'); k('s_add_u32 s28, s28, s29')
        k('s_lshl_b32 s28, s28, 10')
        if layer_stride:
            k(f's_mul_i32 s29, s12, {layer_stride}'); k('s_add_u32 s28, s28, s29')
        k(f's_add_u32 s28, s28, {base_const}')
        for i in range(n):
            k(f'buffer_load_dwordx4 v[{XF+4*i}:{XF+4*i+3}], v{V_L16}, s[{WS}:{WS+3}], s28 offen offset:{(i%4)*1024} sc1')
            if i%4==3: k('s_add_u32 s28, s28, 4096')

    def kv_flag(self,T):
        k=self.k
        nkf=k.lab('nkf')
        k('s_lshr_b32 s28, s7, 1'); k('s_cmp_lg_u32 s28, s4'); k(f's_cbranch_scc1 {nkf}')
        k('s_waitcnt vmcnt(0)')
        k('s_add_u32 s28, s13, 1'); k(f'v_mov_b32 v{T+5}, s28')
        k('s_lshl_b32 s29, s6, 6'); k('s_lshl_b32 s30, s7, 3'); k('s_add_u32 s29, s29, s30'); k('s_lshl_b32 s30, s5, 2'); k('s_add_u32 s29, s29, s30')
        k(f's_add_u32 s29, s29, {KVFLG}')
        k(f'v_mov_b32 v{T+6}, s29')
        k('s_mov_b64 exec, 1')
        k(f'buffer_store_dword v{T+5}, v{T+6}, s[{WS}:{WS+3}], 0 offen sc1')
        k('s_mov_b64 exec, -1')
        k(nkf+':')
    def kv_first(self,XF,WR,KVA,KVC,ONES,SX,SQ,T):
        k=self.k
        nokv=k.lab('nokv')
        S0,S1=T+2,T+3
        k('s_lshr_b32 s28, s7, 1'); k('s_cmp_lg_u32 s28, s4'); k(f's_cbranch_scc1 {nokv}')
        k(f'v_lshrrev_b32 v{T+4}, 2, v{V_F}'); k(f'v_lshl_add_u32 v{T+4}, v{V_G}, 3, v{T+4}'); k(f'v_mul_u32_u24 v{T+4}, 40, v{T+4}')
        k(f'v_and_b32 v{T+5}, 3, v{V_LANE}'); k(f'v_lshl_add_u32 v{T+4}, v{T+5}, 3, v{T+4}')
        k('s_mul_i32 s28, s5, 12800'); k(f's_add_u32 s28, s28, {L_WKV}'); k(f'v_add_u32 v{T+4}, s28, v{T+4}')
        kvd=k.lab('kvd')
        vl={(v,c):k.lab('kvv') for v in (0,1) for c in (0,1)}
        k('s_and_b32 s28, s7, 1'); k('s_lshl_b32 s28, s28, 1'); k('s_add_u32 s28, s28, s12')
        for idx,(v,c) in enumerate(((0,1),(0,0),(1,1))):
            k(f's_cmp_eq_u32 s28, {idx}'); k(f's_cbranch_scc1 {vl[(v,c)]}')
        k(f's_branch {vl[(1,0)]}')
        for (variant,with_cs),lab in vl.items():
            k(lab+':')
            fr=[]
            for i in range(10):
                for u in range(2):
                    def rd(r,i=i,u=u):
                        k(f'ds_read_b64_tr_b16 v[{r}:{r+1}], v{T+4} offset:{i*1280+u*32}')
                        k(f'ds_read_b64_tr_b16 v[{r+2}:{r+3}], v{T+4} offset:{i*1280+160+u*32}')
                    def mf(r,i=i,u=u,variant=variant,with_cs=with_cs):
                        c=KVA+4*u; cc=KVC+4*u
                        cs='0' if i==0 else f'v[{c}:{c+3}]'; cs2='0' if i==0 else f'v[{cc}:{cc+3}]'
                        X=f'v[{XF+4*i}:{XF+4*i+3}]'; W=f'v[{r}:{r+3}]'; O_=f'v[{ONES}:{ONES+3}]'
                        if variant==0:
                            k(f'v_mfma_f32_16x16x32_bf16 v[{c}:{c+3}], {W}, {X}, {cs}')
                            if with_cs: k(f'v_mfma_f32_16x16x32_bf16 v[{cc}:{cc+3}], {W}, {O_}, {cs2}')
                        else:
                            k(f'v_mfma_f32_16x16x32_bf16 v[{c}:{c+3}], {X}, {W}, {cs}')
                            if with_cs: k(f'v_mfma_f32_16x16x32_bf16 v[{cc}:{cc+3}], {O_}, {W}, {cs2}')
                        if u==0:
                            a0='0' if i==0 else f'v[{SX}:{SX+3}]'
                            k(f'v_mfma_f32_16x16x32_bf16 v[{SX}:{SX+3}], {O_}, {X}, {a0}')
                        else:
                            a0='0' if i==0 else f'v[{SQ}:{SQ+3}]'
                            k(f'v_mfma_f32_16x16x32_bf16 v[{SQ}:{SQ+3}], {X}, {X}, {a0}')
                    fr.append(dict(read=rd,mfma=mf,vm=((9-i) if (u==0 and not with_cs) else None)))
            self.frag_gemm(fr,WR,7,2)
            k(f's_branch {kvd}')
        k(kvd+':')
        self.diag_stats(SX,SQ,S0,S1,T+6)
        k('s_lshl_b32 s28, s4, 8'); k('s_lshl_b32 s29, s5, 7'); k('s_add_u32 s28, s28, s29'); k(f's_add_u32 s28, s28, {L_STAT}')
        k(f'v_lshl_add_u32 v{T+6}, v{V_F}, 3, s28')
        self.diag_mask_on()
        k(f'ds_write_b64 v{T+6}, v[{S0}:{S1}]')
        k('s_mov_b64 exec, -1')
        k(f'v_add_u32 v{T+5}, {L_KVR}, v{V_L16}')
        a=k.lab('ka'); b_=k.lab('kb')
        k('s_cmp_eq_u32 s5, 1'); k(f's_cbranch_scc1 {a}')
        k(f'ds_write_b128 v{T+5}, v[{KVA+4}:{KVA+7}] offset:2048'); k(f'ds_write_b128 v{T+5}, v[{KVC+4}:{KVC+7}] offset:3072')
        k(f's_branch {b_}')
        k(a+':')
        k(f'ds_write_b128 v{T+5}, v[{KVA}:{KVA+3}]'); k(f'ds_write_b128 v{T+5}, v[{KVC}:{KVC+3}] offset:1024')
        for i in range(4):
            k(f'v_mov_b32 v{KVA+i}, v{KVA+4+i}'); k(f'v_mov_b32 v{KVC+i}, v{KVC+4+i}')
        k(b_+':')
        k('s_add_u32 s28, s13, 1'); k(f'v_mov_b32 v{T+6}, s28')
        k('s_lshl_b32 s29, s5, 2'); k(f's_add_u32 s29, s29, {L_PAIRF}'); k(f'v_mov_b32 v{T+7}, s29')
        k('s_waitcnt lgkmcnt(0)')
        k(f'ds_write_b32 v{T+7}, v{T+6}')
        k(f'v_xor_b32 v{T+7}, 4, v{T+7}')
        sp=k.lab('pr'); spd=k.lab('prd')
        k('s_mov_b32 s30, 0')
        k(sp+':')
        k(f'ds_read_b32 v{T+8}, v{T+7}')
        k('s_waitcnt lgkmcnt(0)')
        k(f'v_cmp_eq_u32 vcc, s28, v{T+8}')
        k(f's_cbranch_vccnz {spd}')
        k('s_add_u32 s30, s30, 1'); k('s_cmp_lt_u32 s30, 0x100000'); k(f's_cbranch_scc1 {sp}')
        k(spd+':')
        KW=WR
        k('s_lshl_b32 s28, s5, 11'); k(f's_add_u32 s28, s28, {L_KVR}')
        k(f'v_add_u32 v{T+5}, s28, v{V_L16}')
        k(f'ds_read_b128 v[{KW}:{KW+3}], v{T+5}'); k(f'ds_read_b128 v[{KW+4}:{KW+7}], v{T+5} offset:1024')
        k('s_lshl_b32 s28, s4, 8'); k(f's_add_u32 s28, s28, {L_STAT}')
        k(f'v_lshl_add_u32 v{T+6}, v{V_F}, 3, s28')
        k(f'ds_read_b64 v[{T+10}:{T+11}], v{T+6}'); k(f'ds_read_b64 v[{T+12}:{T+13}], v{T+6} offset:128')
        k('s_lshl_b32 s28, s5, 10'); k(f's_add_u32 s28, s28, {L_KVCS}'); k(f'v_add_u32 v{T+7}, s28, v{V_L16}')
        c0=k.lab('c0'); c1=k.lab('c1')
        k('s_cmp_eq_u32 s12, 0'); k(f's_cbranch_scc1 {c0}')
        k(f'ds_read_b128 v[{KVC}:{KVC+3}], v{T+7}')
        k('s_waitcnt lgkmcnt(0)')
        k(f's_branch {c1}')
        k(c0+':')
        k('s_waitcnt lgkmcnt(0)')
        for i in range(4): k(f'v_add_f32 v{KVC+i}, v{KVC+i}, v{KW+4+i}')
        k(f'ds_write_b128 v{T+7}, v[{KVC}:{KVC+3}]')
        k(c1+':')
        for i in range(4): k(f'v_add_f32 v{KVA+i}, v{KVA+i}, v{KW+i}')
        MEAN,RSTD=T+14,T+15
        k(f'v_add_f32 v{T+10}, v{T+10}, v{T+12}'); k(f'v_add_f32 v{T+11}, v{T+11}, v{T+13}')
        k(f'v_mul_f32 v{MEAN}, {hex(f2u(1/640))}, v{T+10}'); k(f'v_mul_f32 v{T+11}, {hex(f2u(1/640))}, v{T+11}')
        k(f'v_fma_f32 v{T+11}, -v{MEAN}, v{MEAN}, v{T+11}'); k(f'v_max_f32 v{T+11}, 0, v{T+11}')
        k(f'v_add_f32 v{T+11}, {hex(f2u(1e-5))}, v{T+11}'); k(f'v_rsq_f32 v{RSTD}, v{T+11}')
        k(f'v_mul_f32 v{MEAN}, v{MEAN}, v{RSTD}')
        k('s_lshl_b32 s30, s6, 6'); k('s_lshl_b32 s31, s4, 4'); k('s_add_u32 s30, s30, s31')
        k('s_lshr_b32 s31, s30, 5'); k('s_mul_i32 s31, s31, 3584')
        k(f's_mul_i32 s32, s12, {KV_D}'); k('s_add_u32 s31, s31, s32'); k(f's_add_u32 s31, s31, {KVB[0]}')
        k('s_lshr_b32 s32, s30, 4'); k('s_and_b32 s32, s32, 1')
        isv2=k.lab('isv2')
        k('s_and_b32 s28, s7, 1'); k('s_cmp_eq_u32 s28, 1'); k(f's_cbranch_scc1 {isv2}')
        for i in range(4):
            k(f'v_mul_f32 v{KVA+i}, v{KVA+i}, v{RSTD}'); k(f'v_fma_f32 v{KVA+i}, -v{MEAN}, v{KVC+i}, v{KVA+i}')
        k('s_lshl_b32 s28, s5, 2'); k(f'v_add_u32 v{T+6}, s28, v{V_G}')
        k(f'v_cmp_eq_u32 vcc, 5, v{T+6}')
        for i in range(4): k(f'v_cndmask_b32 v{KVA+i}, v{KVA+i}, 0, vcc')
        k(f'v_cvt_pk_bf16_f32 v{KVA}, v{KVA}, v{KVA+1}'); k(f'v_cvt_pk_bf16_f32 v{KVA+1}, v{KVA+2}, v{KVA+3}')
        k('s_lshl_b32 s28, s32, 4'); k(f'v_add_u32 v{T+7}, s28, v{V_F}')
        k(f'v_lshrrev_b32 v{T+8}, 1, v{T+6}'); k(f'v_lshlrev_b32 v{T+8}, 9, v{T+8}')
        k(f'v_lshl_add_u32 v{T+8}, v{T+7}, 4, v{T+8}')
        k(f'v_and_b32 v{T+9}, 1, v{T+6}'); k(f'v_lshl_add_u32 v{T+8}, v{T+9}, 3, v{T+8}')
        k(f'v_subrev_u32 v{T+9}, 4, v{T+6}'); k(f'v_lshlrev_b32 v{T+9}, 8, v{T+9}')
        k(f'v_lshl_add_u32 v{T+9}, v{T+7}, 3, v{T+9}'); k(f'v_add_u32 v{T+9}, 3072, v{T+9}')
        k(f'v_cmp_gt_u32 vcc, 4, v{T+6}'); k(f'v_cndmask_b32 v{T+8}, v{T+9}, v{T+8}, vcc')
        k(f'v_cmp_gt_u32 vcc, 6, v{T+6}'); k(f'v_mov_b32 v{T+9}, {OOB}'); k(f'v_cndmask_b32 v{T+8}, v{T+9}, v{T+8}, vcc')
        k(f'buffer_store_dwordx2 v[{KVA}:{KVA+1}], v{T+8}, s[{WS}:{WS+3}], s31 offen sc1')
        k(f's_branch {nokv}')
        k(isv2+':')
        k('s_lshl_b32 s28, s4, 8'); k(f's_add_u32 s28, s28, {L_STAT}')
        k(f'v_lshl_add_u32 v{T+6}, v{V_G}, 5, s28')
        Y=WR+8
        k(f'ds_read_b128 v[{Y}:{Y+3}], v{T+6}'); k(f'ds_read_b128 v[{Y+4}:{Y+7}], v{T+6} offset:16')
        k(f'ds_read_b128 v[{Y+8}:{Y+11}], v{T+6} offset:128'); k(f'ds_read_b128 v[{Y+12}:{Y+15}], v{T+6} offset:144')
        k('s_waitcnt lgkmcnt(0)')
        for i in range(4):
            s_,q_=Y+2*i,Y+2*i+1
            k(f'v_add_f32 v{s_}, v{s_}, v{s_+8}'); k(f'v_add_f32 v{q_}, v{q_}, v{q_+8}')
            k(f'v_mul_f32 v{s_}, {hex(f2u(1/640))}, v{s_}'); k(f'v_mul_f32 v{q_}, {hex(f2u(1/640))}, v{q_}')
            k(f'v_fma_f32 v{q_}, -v{s_}, v{s_}, v{q_}'); k(f'v_max_f32 v{q_}, 0, v{q_}'); k(f'v_add_f32 v{q_}, {hex(f2u(1e-5))}, v{q_}')
            k(f'v_rsq_f32 v{q_}, v{q_}')
            k(f'v_fma_f32 v{KVA+i}, -v{s_}, v{KVC+i}, v{KVA+i}')
            k(f'v_mul_f32 v{KVA+i}, v{KVA+i}, v{q_}')
        k('s_lshl_b32 s28, s5, 4'); k(f'v_add_u32 v{T+6}, s28, v{V_F}')
        k(f'v_cmp_eq_u32 vcc, 20, v{T+6}')
        for i in range(4): k(f'v_cndmask_b32 v{KVA+i}, v{KVA+i}, 1.0, vcc')
        k(f'v_cmp_lt_u32 vcc, 20, v{T+6}')
        for i in range(4): k(f'v_cndmask_b32 v{KVA+i}, v{KVA+i}, 0, vcc')
        k(f'v_cvt_pk_bf16_f32 v{KVA}, v{KVA}, v{KVA+1}'); k(f'v_cvt_pk_bf16_f32 v{KVA+1}, v{KVA+2}, v{KVA+3}')
        k('s_lshl_b32 s28, s32, 10'); k('s_add_u32 s28, s28, 1024')
        k(f'v_and_b32 v{T+7}, 1, v{V_G}'); k(f'v_lshlrev_b32 v{T+7}, 9, v{T+7}')
        k(f'v_lshl_add_u32 v{T+7}, v{T+6}, 4, v{T+7}')
        k(f'v_lshrrev_b32 v{T+8}, 1, v{V_G}'); k(f'v_lshl_add_u32 v{T+7}, v{T+8}, 3, v{T+7}')
        k(f'v_add_u32 v{T+7}, s28, v{T+7}')
        k(f'buffer_store_dwordx2 v[{KVA}:{KVA+1}], v{T+7}, s[{WS}:{WS+3}], s31 offen sc1')
        k(nokv+':')

    def phase_qkv(self):
        k=self.k
        XF,WR,ACC,CSA,KVA,KVC,ONES,T=24,64,96,116,124,132,140,144
        SX,SQ=176,180
        l0=k.lab('x0'); l1=k.lab('x1')
        for i in range(4): k(f'v_mov_b32 v{ONES+i}, 0x3f803f80')
        k('s_cmp_eq_u32 s12, 0'); k(f's_cbranch_scc1 {l0}')
        self.x_loads(XF,10,X2B,0,20,10)
        k('s_waitcnt vmcnt(9)')
        k('s_barrier')
        k(f's_branch {l1}')
        k(l0+':')
        nk=k.lab('nk'); pl=k.lab('npl'); pd=k.lab('npd')
        k('s_lshr_b32 s28, s7, 1'); k('s_cmp_lg_u32 s28, s4'); k(f's_cbranch_scc1 {nk}')
        k('v_mov_b32 v200, 0'); k('s_mov_b32 s30, 0')
        k(pl+':')
        k('buffer_load_dword v201, v200, s[60:63], 0 offen sc1')
        k('s_waitcnt vmcnt(0)')
        k('v_cmp_eq_u32 vcc, 0, v201')
        k(f's_cbranch_vccz {pd}')
        k('s_add_u32 s30, s30, 1'); k('s_cmp_lt_u32 s30, 0x40000'); k(f's_cbranch_scc1 {pl}')
        k(pd+':')
        k('v_readfirstlane_b32 s13, v201')
        k(f'v_mov_b32 v200, {L_NONCE}')
        k('ds_write_b32 v200, v201')
        k(nk+':')
        k(l1+':')
        self.mark("q.start")
        self.kv_first(XF,WR,KVA,KVC,ONES,SX,SQ,T)
        self.mark("q.kv")
        l2=k.lab('l2')
        k('s_cmp_lg_u32 s12, 0'); k(f's_cbranch_scc1 {l2}')
        k('s_waitcnt vmcnt(0)')
        self.kv_flag(T)
        k('s_waitcnt lgkmcnt(0)')
        k('s_barrier')
        k(f'v_mov_b32 v200, {L_NONCE}')
        k('ds_read_b32 v201, v200')
        k('s_waitcnt lgkmcnt(0)')
        k('v_readfirstlane_b32 s13, v201')
        self.conv_issue(L_RED,self.CONV_A+self.CONV_B)
        k(l2+':')
        vA,vC=T,T+1
        S0,S1=T+2,T+3
        k('s_mul_i32 s28, s5, 51200')
        k(f'v_add_u32 v{vA}, s28, v{V_TR}')
        k('s_lshl_b32 s29, s4, 5')
        k(f'v_add_u32 v{vC}, s29, v{vA}')
        def stat_mfma(i,ft):
            X=f'v[{XF+4*i}:{XF+4*i+3}]'
            if ft==0:
                cs='0' if i==0 else f'v[{SX}:{SX+3}]'
                k(f'v_mfma_f32_16x16x32_bf16 v[{SX}:{SX+3}], v[{ONES}:{ONES+3}], {X}, {cs}')
            if ft==2:
                cs='0' if i==0 else f'v[{SQ}:{SQ+3}]'
                k(f'v_mfma_f32_16x16x32_bf16 v[{SQ}:{SQ+3}], {X}, {X}, {cs}')
        def mk(with_cs):
            fr=[]
            if not with_cs:
                k('s_mul_i32 s28, s5, 10240'); k(f'v_add_u32 v{vA}, s28, v{V_L16}'); k(f'v_add_u32 v{vC}, 61440, v{vA}')
                for i in range(10):
                    for ft in range(5):
                        va,imm=(vA,ft*20480+i*1024) if ft<3 else (vC,(ft-3)*20480+i*1024)
                        def rd(r,va=va,imm=imm): k(f'ds_read_b128 v[{r}:{r+3}], v{va} offset:{imm}')
                        def mf(r,i=i,ft=ft):
                            c=ACC+4*ft; cs='0' if i==0 else f'v[{c}:{c+3}]'
                            k(f'v_mfma_f32_16x16x32_bf16 v[{c}:{c+3}], v[{r}:{r+3}], v[{XF+4*i}:{XF+4*i+3}], {cs}')
                            stat_mfma(i,ft)
                        fr.append(dict(read=rd,mfma=mf,vm=(9-i) if ft==0 else None))
                self.frag_gemm(fr,WR,7,1)
                return
            for i in range(10):
                for ft in range(5):
                    def rd(r,i=i,ft=ft):
                        k(f'ds_read_b64_tr_b16 v[{r}:{r+1}], v{vA} offset:{i*5120+ft*32}')
                        k(f'ds_read_b64_tr_b16 v[{r+2}:{r+3}], v{vA} offset:{i*5120+1280+ft*32}')
                    def mf(r,i=i,ft=ft):
                        c=ACC+4*ft; cs='0' if i==0 else f'v[{c}:{c+3}]'
                        k(f'v_mfma_f32_16x16x32_bf16 v[{c}:{c+3}], v[{r}:{r+3}], v[{XF+4*i}:{XF+4*i+3}], {cs}')
                        if ft==4:
                            cs='0' if i==0 else f'v[{CSA+4}:{CSA+7}]'
                            k(f'v_mfma_f32_16x16x32_bf16 v[{CSA+4}:{CSA+7}], v[{r}:{r+3}], v[{ONES}:{ONES+3}], {cs}')
                        stat_mfma(i,ft)
                    fr.append(dict(read=rd,mfma=mf))
                def rd(r,i=i):
                    k(f'ds_read_b64_tr_b16 v[{r}:{r+1}], v{vC} offset:{i*5120}')
                    k(f'ds_read_b64_tr_b16 v[{r+2}:{r+3}], v{vC} offset:{i*5120+1280}')
                def mf(r,i=i):
                    cs='0' if i==0 else f'v[{CSA}:{CSA+3}]'
                    k(f'v_mfma_f32_16x16x32_bf16 v[{CSA}:{CSA+3}], v[{r}:{r+3}], v[{ONES}:{ONES+3}], {cs}')
                fr.append(dict(read=rd,mfma=mf))
            self.frag_gemm(fr,WR,7,2)
        m1=k.lab('m1'); m2=k.lab('m2')
        k('s_cmp_eq_u32 s12, 0'); k(f's_cbranch_scc0 {m1}')
        mk(True)
        k('s_mul_i32 s28, s5, 320'); k(f's_add_u32 s28, s28, {L_CS}')
        k(f'v_lshl_add_u32 v{T+7}, v{V_G}, 4, s28')
        k('s_lshl_b32 s29, s4, 6'); k(f'v_add_u32 v{T+8}, s29, v{T+7}')
        k(f'ds_write_b128 v{T+8}, v[{CSA}:{CSA+3}]')
        k(f'ds_write_b128 v{T+7}, v[{CSA+4}:{CSA+7}] offset:256')
        k(f's_branch {m2}')
        k(m1+':')
        mk(False)
        k(m2+':')
        self.mark("q.main")
        l3=k.lab('l3'); l4=k.lab('l4')
        k('s_cmp_eq_u32 s12, 0'); k(f's_cbranch_scc1 {l3}')
        self.kv_flag(T)
        k(f's_mov_b32 s43, {L_RED}')
        k(f's_branch {l4}')
        k(l3+':')
        k('s_waitcnt vmcnt(0)')
        self.conv_finish(200,L_RED)
        k(f's_mov_b32 s43, {L_WKV}')
        k(l4+':')
        self.mark("q.mm")
        self.diag_stats(SX,SQ,S0,S1,T+6)
        k('s_lshl_b32 s28, s4, 8'); k('s_lshl_b32 s29, s5, 7'); k('s_add_u32 s28, s28, s29'); k(f's_add_u32 s28, s28, {L_STAT}')
        k(f'v_lshl_add_u32 v{T+6}, v{V_F}, 3, s28')
        self.diag_mask_on()
        k(f'ds_write_b64 v{T+6}, v[{S0}:{S1}]')
        k('s_mov_b64 exec, -1')
        self.reduce_pairs(ACC,T+9,'s43')
        k('s_waitcnt lgkmcnt(0)')
        k('s_barrier')
        Z=XF
        k('s_lshl_b32 s28, s4, 8'); k(f's_add_u32 s28, s28, {L_STAT}')
        k(f'v_lshl_add_u32 v{T+6}, v{V_F}, 3, s28')
        k(f'ds_read_b64 v[{T+10}:{T+11}], v{T+6}'); k(f'ds_read_b64 v[{T+12}:{T+13}], v{T+6} offset:128')
        k('s_mul_i32 s28, s5, 192'); k(f's_add_u32 s28, s28, {L_CS}')
        k(f'v_lshl_add_u32 v{T+7}, v{V_G}, 4, s28')
        CS0=Z+12
        for j in range(3):
            k(f'ds_read_b128 v[{CS0+8*j}:{CS0+8*j+3}], v{T+7} offset:{j*64}')
            k(f'ds_read_b128 v[{CS0+8*j+4}:{CS0+8*j+7}], v{T+7} offset:{320+j*64}')
        self.reduce_pairs_finish(ACC,T+9,Z)
        MEAN,RSTD=T+14,T+15
        k(f'v_add_f32 v{T+10}, v{T+10}, v{T+12}'); k(f'v_add_f32 v{T+11}, v{T+11}, v{T+13}')
        k(f'v_mul_f32 v{MEAN}, {hex(f2u(1/640))}, v{T+10}'); k(f'v_mul_f32 v{T+11}, {hex(f2u(1/640))}, v{T+11}')
        k(f'v_fma_f32 v{T+11}, -v{MEAN}, v{MEAN}, v{T+11}'); k(f'v_max_f32 v{T+11}, 0, v{T+11}')
        k(f'v_add_f32 v{T+11}, {hex(f2u(1e-5))}, v{T+11}'); k(f'v_rsq_f32 v{RSTD}, v{T+11}')
        k(f'v_mul_f32 v{MEAN}, v{MEAN}, v{RSTD}')
        k(f'v_mul_f32 v{T+16}, {hex(f2u(QSCALE))}, v{RSTD}'); k(f'v_mul_f32 v{T+17}, {hex(f2u(QSCALE))}, v{MEAN}')
        k('s_lshl_b32 s28, s4, 4'); k(f'v_add_u32 v{T+18}, s28, v{V_F}'); k(f'v_mul_u32_u24 v{T+18}, 160, v{T+18}')
        k(f'v_lshl_add_u32 v{T+18}, v{V_G}, 3, v{T+18}')
        k('s_mul_i32 s28, s5, 96'); k(f's_add_u32 s28, s28, {L_QL}'); k(f'v_add_u32 v{T+18}, s28, v{T+18}')
        for j in range(3):
            if j==2:
                q3=k.lab('q3'); k('s_cmp_eq_u32 s5, 1'); k(f's_cbranch_scc1 {q3}')
            for i in range(4):
                r=ACC+4*j+i
                k(f'v_add_f32 v{CS0+8*j+i}, v{CS0+8*j+i}, v{CS0+8*j+4+i}')
                k(f'v_mul_f32 v{r}, v{r}, v{T+16}'); k(f'v_fma_f32 v{r}, -v{T+17}, v{CS0+8*j+i}, v{r}')
            k(f'v_cvt_pk_bf16_f32 v{ACC+4*j}, v{ACC+4*j}, v{ACC+4*j+1}'); k(f'v_cvt_pk_bf16_f32 v{ACC+4*j+1}, v{ACC+4*j+2}, v{ACC+4*j+3}')
            k(f'ds_write_b64 v{T+18}, v[{ACC+4*j}:{ACC+4*j+1}] offset:{j*32}')
            if j==2: k(q3+':')
        k('s_waitcnt lgkmcnt(0)')
        self.mark("q.epi")
        self.publish(1)
        self.mark("q.pub")

    def phase_attn(self):
        k=self.k
        D=4; SL=14
        Q1=[24,30]; Q2=[28,34]
        S=[36,52]; O=[68,84]; P=100
        KB=108
        K1=lambda s: KB+s*SL
        V=lambda s: KB+s*SL+4
        K2=lambda s: KB+s*SL+12
        T=KB+D*SL
        VL8=T; NEG=[176,192]
        k(f'v_mul_u32_u24 v{T+1}, 160, v{V_L31}')
        k('s_mul_i32 s28, s4, 40'); k(f's_add_u32 s28, s28, {L_QL}')
        k(f'v_add_u32 v{T+1}, s28, v{T+1}')
        k(f'v_lshl_add_u32 v{T+2}, v{V_H}, 4, v{T+1}')
        for q in range(2):
            k(f'ds_read_b64 v[{Q1[q]}:{Q1[q]+1}], v{T+2} offset:{q*5120}')
            k(f'ds_read_b64 v[{Q1[q]+2}:{Q1[q]+3}], v{T+2} offset:{q*5120+8}')
            k(f'ds_read_b64 v[{Q2[q]}:{Q2[q]+1}], v{T+1} offset:{q*5120+32}')
        k(f'v_lshlrev_b32 v{VL8}, 3, v{V_LANE}')
        k('s_waitcnt lgkmcnt(0)')
        k(f'v_cmp_eq_u32 vcc, 0, v{V_H}')
        for q in range(2):
            for i in range(2): k(f'v_cndmask_b32 v{Q2[q]+i}, 0, v{Q2[q]+i}, vcc')
        self.mark("a.dma")
        VFA,VF=T+6,T+7
        k(f'v_lshlrev_b32 v{VFA}, 2, v{V_LANE}'); k(f'v_add_u32 v{VFA}, {KVFLG}, v{VFA}')
        k('s_add_u32 s38, s13, 1')
        k('s_lshr_b32 s39, s6, 2')
        def spin_group(sg):
            lp=k.lab('sg'); dn=k.lab('sgd')
            k(f's_lshl_b32 s28, s{sg}, 8'); k('s_mov_b32 s30, 0')
            k(lp+':')
            k(f'buffer_load_dword v{VF}, v{VFA}, s[{WS}:{WS+3}], s28 offen sc1')
            k('s_waitcnt vmcnt(0)')
            k(f'v_subrev_u32 v{VF}, s38, v{VF}')
            k(f'v_cmp_le_u32 vcc, 32, v{VF}')
            k(f's_cbranch_vccz {dn}')
            k('s_sleep 2')
            k('s_add_u32 s30, s30, 1'); k('s_cmp_lt_u32 s30, 0x40000'); k(f's_cbranch_scc1 {lp}')
            k(dn+':')
        k(f'v_mov_b32 v{T+8}, {L_BADF}'); k(f'v_mov_b32 v{T+9}, 0'); k(f'ds_write_b32 v{T+8}, v{T+9}')
        k('s_mov_b32 s49, 0')
        k('s_waitcnt lgkmcnt(0)')
        pw=k.lab('pw')
        k(f's_cmp_lg_u32 s3, {POLLW}'); k(f's_cbranch_scc1 {pw}')
        spin_group(39)
        k(pw+':')
        k('s_barrier')
        self.mark("a.wait")
        def ld(slot):
            k(f'buffer_load_dwordx4 v[{K1(slot)}:{K1(slot)+3}], v{V_L16}, s[{WS}:{WS+3}], s32 offen sc1')
            k(f'buffer_load_dwordx2 v[{K2(slot)}:{K2(slot)+1}], v{VL8}, s[{WS}:{WS+3}], s32 offen offset:3072 sc1')
            k(f'buffer_load_dwordx4 v[{V(slot)}:{V(slot)+3}], v{V_L16}, s[{WS}:{WS+3}], s32 offen offset:1024 sc1')
            k(f'buffer_load_dwordx4 v[{V(slot)+4}:{V(slot)+7}], v{V_L16}, s[{WS}:{WS+3}], s32 offen offset:2048 sc1')
            k('s_add_u32 s32, s32, 7168')
        def run_loop(exact,prefetch):
            def qk1(q,s):
                c = f'v[{NEG[q]}:{NEG[q]+15}]' if exact else '0'
                k(f'v_mfma_f32_32x32x16_bf16 v[{S[q]}:{S[q]+15}], v[{K1(s)}:{K1(s)+3}], v[{Q1[q]}:{Q1[q]+3}], {c}')
            def qk2(q,s): k(f'v_mfma_f32_32x32x8_bf16 v[{S[q]}:{S[q]+15}], v[{K2(s)}:{K2(s)+1}], v[{Q2[q]}:{Q2[q]+1}], v[{S[q]}:{S[q]+15}]')
            def pv(q,s,hf): k(f'v_mfma_f32_32x32x16_bf16 v[{O[q]}:{O[q]+15}], v[{V(s)+4*hf}:{V(s)+4*hf+3}], v[{P+4*hf}:{P+4*hf+3}], v[{O[q]}:{O[q]+15}]')
            def ex(q,a):
                for i in range(a,a+4): k(f'v_exp_f32 v{S[q]+i}, v{S[q]+i}')
            def cv(q,a):
                k(f'v_cvt_pk_bf16_f32 v{P+a//2}, v{S[q]+a}, v{S[q]+a+1}')
                k(f'v_cvt_pk_bf16_f32 v{P+a//2+1}, v{S[q]+a+2}, v{S[q]+a+3}')
            k(f's_mul_i32 s33, s12, {KV_D}'); k(f's_add_u32 s33, s33, {KVB[0]}')
            k('s_mul_i32 s28, s5, 3584'); k('s_add_u32 s33, s33, s28')
            k(f's_mul_i32 s28, s39, {8*3584}'); k('s_add_u32 s32, s33, s28')
            k(f's_add_u32 s33, s33, {64*3584}')
            def fload():
                k('s_add_u32 s45, s45, 1'); k('s_and_b32 s45, s45, 7'); k('s_lshl_b32 s46, s45, 8')
                k(f'buffer_load_dword v{VF}, v{VFA}, s[{WS}:{WS+3}], s46 offen sc1')
            def fcheck():
                ok=k.lab('fok')
                k(f'v_subrev_u32 v{VF}, s38, v{VF}')
                k(f'v_cmp_le_u32 vcc, 32, v{VF}')
                k(f's_cbranch_vccz {ok}')
                spin_group(44)
                k(ok+':')
                k('s_cmp_ge_u32 s32, s33'); k(f's_cselect_b32 s28, {64*3584}, 0'); k('s_sub_u32 s32, s32, s28')
            k('s_mov_b32 s45, s39')
            fload(); k('s_mov_b32 s44, s45')
            for t in range(D-1): ld(t)
            for q in range(2):
                for i in range(16): k(f'v_mov_b32 v{O[q]+i}, 0')
            for i in range(4,8): k(f'v_mov_b32 v{P+i}, 0')
            for i in range(4,8): k(f'v_mov_b32 v{V(D-1)+i}, 0')
            k(f's_waitcnt vmcnt({4*(D-2)})')
            qk1(0,0); qk2(0,0)
            k('s_nop 7')
            spf = prefetch and 'spf' in os.environ.get('XP','')
            def body(dma):
                for t in range(D):
                    s=t; sn=(t+1)%D; sp=(t-1)%D
                    qk1(1,s); ex(0,0); pv(1,sp,1)
                    if t==1: fcheck()
                    if t==2:
                        fload_pending=True
                        fload()
                    if dma:
                        k('s_min_u32 m0, s35, 101376')
                        k('s_add_u32 s37, s36, m0')
                        k(f'buffer_load_dwordx4 v{V_L16}, s[{WS}:{WS+3}], s37 offen sc1 lds')
                        k('s_add_u32 s35, s35, 8192')
                    ld(sp)
                    if spf and dma:
                        for n in range(4): k(f's_load_dword s57, s[62:63], {(4*t+n)*128}')
                    if t==2: k('s_mov_b32 s44, s45')
                    ex(0,4); cv(0,0); qk2(1,s); cv(0,4); ex(0,8); pv(0,s,0); ex(0,12); cv(0,8); cv(0,12)
                    nv=4*(D-2)+(2 if dma else 0)+(1 if t in (2,3) else 0)
                    if dma and t==0: nv-=1
                    k(f's_waitcnt vmcnt({nv})')
                    qk1(0,sn); ex(1,0); pv(0,s,1); ex(1,4); cv(1,0); qk2(0,sn); cv(1,4); ex(1,8); pv(1,s,0); ex(1,12); cv(1,8); cv(1,12)
            if spf:
                k('s_and_b32 s28, s6, 3'); k('s_lshl_b32 s28, s28, 3'); k('s_add_u32 s28, s28, s7'); k('s_lshl_b32 s28, s28, 3'); k('s_add_u32 s28, s28, s3')
                k('s_lshl_b32 s28, s28, 13'); k(f's_add_u32 s28, s28, {W1F}')
                k('s_add_u32 s62, s86, s28'); k('s_addc_u32 s63, s87, 0')
            k('s_mov_b32 s34, 0')
            L1=k.lab('al'); k(L1+':')
            body(False)
            k('s_add_u32 s34, s34, 1'); k('s_cmp_lt_u32 s34, 4'); k(f's_cbranch_scc1 {L1}')
            if prefetch:
                nw=k.lab('nw')
                k('s_cmp_lg_u32 s12, 0'); k(f's_cbranch_scc1 {nw}')
                lw=k.lab('lw'); lwd=k.lab('lwd')
                k(f'v_lshrrev_b32 v208, 1, v{V_LANE}'); k('v_lshlrev_b32 v208, 6, v208')
                k(f'v_and_b32 v209, 1, v{V_LANE}'); k('v_lshl_add_u32 v208, v209, 4, v208')
                k('s_mov_b32 s30, 0')
                k(lw+':')
                k(f'buffer_load_dwordx4 v[212:215], v208, s[{WS}:{WS+3}], 0 offen offset:{FLG} sc1')
                k('s_waitcnt vmcnt(0)')
                for r in (212,213,214,215): k(f'v_subrev_u32 v{r}, s38, v{r}')
                k('v_max_u32 v212, v212, v213'); k('v_max_u32 v214, v214, v215'); k('v_max_u32 v212, v212, v214')
                k('v_cmp_le_u32 vcc, 32, v212')
                k(f's_cbranch_vccz {lwd}')
                k('s_add_u32 s30, s30, 1'); k('s_cmp_lt_u32 s30, 0x40000'); k(f's_cbranch_scc1 {lw}')
                k(lwd+':')
                k(nw+':')
                k('s_lshl_b32 s35, s3, 10')
                k(f's_mul_i32 s36, s7, 102400'); k(f's_add_u32 s36, s36, {WOF}')
            L2=k.lab('bl'); k(L2+':')
            body(prefetch)
            if spf: k('s_add_u32 s62, s62, 2048'); k('s_addc_u32 s63, s63, 0')
            k('s_add_u32 s34, s34, 1'); k('s_cmp_lt_u32 s34, 8'); k(f's_cbranch_scc1 {L2}')
            if spf: k('s_waitcnt lgkmcnt(0)')
            pv(1,D-1,1)
            k('s_waitcnt vmcnt(0)')
        run_loop(False,True)
        self.mark("a.loop")
        COMBINE=k.lab('combine'); FALLBACK=k.lab('fallback')
        k(COMBINE+':')
        k('s_nop 7'); k('s_nop 7')
        c1=k.lab('c1'); c2=k.lab('c2')
        k('s_mul_i32 s28, s3, 3072'); k(f's_add_u32 s28, s28, {L_COMB}')
        k(f'v_add_u32 v{T+1}, s28, v{V_L16}')
        k('s_xor_b32 s29, s3, 4'); k('s_mul_i32 s29, s29, 3072'); k(f's_add_u32 s29, s29, {L_COMB}')
        k(f'v_add_u32 v{T+2}, s29, v{V_L16}')
        k('s_cmp_eq_u32 s5, 1'); k(f's_cbranch_scc1 {c1}')
        for r in range(3): k(f'ds_write_b128 v{T+1}, v[{O[1]+4*r}:{O[1]+4*r+3}] offset:{r*1024}')
        k(f's_branch {c2}')
        k(c1+':')
        for r in range(3): k(f'ds_write_b128 v{T+1}, v[{O[0]+4*r}:{O[0]+4*r+3}] offset:{r*1024}')
        for i in range(12): k(f'v_mov_b32 v{O[0]+i}, v{O[1]+i}')
        k(c2+':')
        k('s_waitcnt lgkmcnt(0)')
        k('s_barrier')
        for r in range(3): k(f'ds_read_b128 v[{S[1]+4*r}:{S[1]+4*r+3}], v{T+2} offset:{r*1024}')
        k('s_waitcnt lgkmcnt(0)')
        self.mark("a.comb")
        Oq=O[0]
        for i in range(12): k(f'v_add_f32 v{Oq+i}, v{Oq+i}, v{S[1]+i}')
        k(f'v_mov_b32 v{T+3}, v{Oq+8}'); k(f'v_mov_b32 v{T+4}, v{Oq+8}')
        k(f'v_permlane32_swap_b32 v{T+3}, v{T+4}')
        k(f'v_add_f32 v{T+3}, abs(v{Oq}), abs(v{Oq+1})')
        for i in range(2,12): k(f'v_add_f32 v{T+3}, abs(v{Oq+i}), v{T+3}')
        k(f's_mov_b32 s28, {hex(f2u(2.0**-30))}'); k(f's_mov_b32 s29, {hex(f2u(2.0**60))}'); k(f's_mov_b32 s30, {hex(f2u(2.0**120))}')
        k(f'v_cmp_nle_f32 s[44:45], s28, v{T+4}')
        k(f'v_cmp_nge_f32 s[46:47], s29, v{T+4}')
        k(f'v_cmp_ngt_f32 vcc, s30, v{T+3}')
        k('s_or_b64 s[44:45], s[44:45], s[46:47]'); k('s_or_b64 vcc, vcc, s[44:45]')
        okl=k.lab('okl')
        k(f's_cbranch_vccz {okl}')
        k(f'v_mov_b32 v{T+8}, {L_BADF}'); k(f'v_mov_b32 v{T+9}, 1'); k(f'ds_write_b32 v{T+8}, v{T+9}')
        k(okl+':')
        k(f'v_rcp_f32 v{T+4}, v{T+4}')
        for i in range(12): k(f'v_mul_f32 v{Oq+i}, v{Oq+i}, v{T+4}')
        PK=S[0]
        for p in range(6): k(f'v_cvt_pk_bf16_f32 v{PK+p}, v{Oq+2*p}, v{Oq+2*p+1}')
        k('s_mul_i32 s28, s4, 5')
        k(f'v_add_u32 v{T+5}, s28, v{V_H}')
        k(f'v_lshrrev_b32 v{T+6}, 4, v{V_L31}'); k('s_lshl_b32 s29, s5, 1'); k(f'v_add_u32 v{T+6}, s29, v{T+6}')
        k(f'v_mul_u32_u24 v{T+6}, 2560, v{T+6}'); k(f'v_lshl_add_u32 v{T+6}, v{V_F}, 4, v{T+6}'); k(f'v_add_u32 v{T+6}, {L_OIMG}, v{T+6}')
        for pc in range(3):
            g_=T+7
            if pc==0: k(f'v_mov_b32 v{g_}, v{T+5}')
            elif pc==1: k(f'v_add_u32 v{g_}, 2, v{T+5}')
            else:
                k(f'v_mov_b32 v{g_}, s28'); k(f'v_add_u32 v{g_}, 4, v{g_}')
            k(f'v_lshrrev_b32 v{T+8}, 1, v{g_}'); k(f'v_lshlrev_b32 v{T+8}, 8, v{T+8}')
            k(f'v_and_b32 v{T+9}, 1, v{g_}'); k(f'v_lshl_add_u32 v{T+8}, v{T+9}, 3, v{T+8}')
            k(f'v_add_u32 v{T+8}, v{T+8}, v{T+6}')
            if pc==2:
                k('s_mov_b32 exec_hi, 0')
            k(f'ds_write_b64 v{T+8}, v[{PK+2*pc}:{PK+2*pc+1}]')
            if pc==2: k('s_mov_b64 exec, -1')
        k('s_waitcnt lgkmcnt(0)')
        k('s_barrier')
        k(f'v_mov_b32 v{T+8}, {L_BADF}'); k(f'ds_read_b32 v{T+9}, v{T+8}')
        k('s_waitcnt lgkmcnt(0)')
        k(f'v_readfirstlane_b32 s28, v{T+9}')
        k('s_lshl_b32 s29, s49, 1'); k('s_cmp_gt_u32 s28, s29')
        k(f's_cbranch_scc1 {FALLBACK}')
        k(f's_mul_i32 s31, s12, {OF_D}'); k(f's_add_u32 s31, s31, {OFB[0]}')
        k('s_mul_i32 s28, s6, 81920'); k('s_add_u32 s31, s31, s28'); k('s_mul_i32 s28, s7, 2560'); k('s_add_u32 s31, s31, s28')
        for rnd in range(2):
            lab=k.lab('oc')
            if rnd==1:
                k('s_cmp_ge_u32 s3, 2'); k(f's_cbranch_scc1 {lab}')
            k('s_lshl_b32 s28, s3, 6'); k(f's_add_u32 s28, s28, {512*rnd}')
            k(f'v_add_u32 v{T+5}, s28, v{V_LANE}')
            k(f'v_lshlrev_b32 v{T+6}, 4, v{T+5}'); k(f'v_add_u32 v{T+6}, {L_OIMG}, v{T+6}')
            k(f'ds_read_b128 v[{PK}:{PK+3}], v{T+6}')
            k(f'v_mul_u32_u24 v{T+7}, 410, v{T+5}'); k(f'v_lshrrev_b32 v{T+7}, 16, v{T+7}')
            k(f'v_mul_u32_u24 v{T+8}, 160, v{T+7}'); k(f'v_sub_u32 v{T+8}, v{T+5}, v{T+8}')
            k(f'v_mul_u32_u24 v{T+7}, 20480, v{T+7}'); k(f'v_lshl_add_u32 v{T+7}, v{T+8}, 4, v{T+7}')
            k('s_waitcnt lgkmcnt(0)')
            k(f'buffer_store_dwordx4 v[{PK}:{PK+3}], v{T+7}, s[{WS}:{WS+3}], s31 offen sc1')
            k(lab+':')
        self.mark("a.epi")
        self.publish(2)
        self.mark("a.pub")
        AFTER=k.lab('after'); k(f's_branch {AFTER}')
        k(FALLBACK+':')
        k('s_barrier')
        def kvptr():
            k(f's_mul_i32 s32, s12, {KV_D}'); k(f's_add_u32 s32, s32, {KVB[0]}')
            k('s_mul_i32 s28, s5, 3584'); k('s_add_u32 s32, s32, s28')
        def mq1(q,c): k(f'v_mfma_f32_32x32x16_bf16 v[{S[q]}:{S[q]+15}], v[{K1(0)}:{K1(0)+3}], v[{Q1[q]}:{Q1[q]+3}], {c}')
        def mq2(q): k(f'v_mfma_f32_32x32x8_bf16 v[{S[q]}:{S[q]+15}], v[{K2(0)}:{K2(0)+1}], v[{Q2[q]}:{Q2[q]+1}], v[{S[q]}:{S[q]+15}]')
        MX=[T+10,T+11]
        for q in range(2): k(f'v_mov_b32 v{MX[q]}, 0xff800000')
        kvptr(); k('s_mov_b32 s34, 0')
        l1=k.lab('fb1'); k(l1+':')
        ld(0); k('s_waitcnt vmcnt(0)')
        for q in range(2):
            mq1(q,'0'); mq2(q)
        for q in range(2):
            for i in range(0,16,2): k(f'v_max3_f32 v{MX[q]}, v{S[q]+i}, v{S[q]+i+1}, v{MX[q]}')
        k('s_add_u32 s34, s34, 1'); k('s_cmp_lt_u32 s34, 32'); k(f's_cbranch_scc1 {l1}')
        for q in range(2):
            k(f'v_mov_b32 v{T+12}, v{MX[q]}'); k(f'v_permlane32_swap_b32 v{MX[q]}, v{T+12}'); k(f'v_max_f32 v{MX[q]}, v{MX[q]}, v{T+12}')
        k('s_lshl_b32 s28, s3, 9'); k(f's_add_u32 s28, s28, {L_COMB}')
        k(f'v_lshl_add_u32 v{T+12}, v{V_LANE}, 3, s28')
        k(f'ds_write_b64 v{T+12}, v[{MX[0]}:{MX[1]}]')
        k('s_waitcnt lgkmcnt(0)'); k('s_barrier')
        k('s_xor_b32 s28, s3, 4'); k('s_lshl_b32 s28, s28, 9'); k(f's_add_u32 s28, s28, {L_COMB}')
        k(f'v_lshl_add_u32 v{T+12}, v{V_LANE}, 3, s28')
        k(f'ds_read_b64 v[{T+14}:{T+15}], v{T+12}')
        k('s_waitcnt lgkmcnt(0)'); k('s_barrier')
        for q in range(2): k(f'v_max_f32 v{MX[q]}, v{MX[q]}, v{T+14+q}')
        for q in range(2):
            for i in range(16): k(f'v_sub_f32 v{NEG[q]+i}, 0, v{MX[q]}')
            for i in range(16): k(f'v_mov_b32 v{O[q]+i}, 0')
        kvptr(); k('s_mov_b32 s34, 0')
        l2=k.lab('fb2'); k(l2+':')
        ld(0); k('s_waitcnt vmcnt(0)')
        for q in range(2):
            mq1(q,f'v[{NEG[q]}:{NEG[q]+15}]'); mq2(q)
            for i in range(16): k(f'v_exp_f32 v{S[q]+i}, v{S[q]+i}')
            for p in range(8): k(f'v_cvt_pk_bf16_f32 v{P+p}, v{S[q]+2*p}, v{S[q]+2*p+1}')
            for hf in range(2):
                k(f'v_mfma_f32_32x32x16_bf16 v[{O[q]}:{O[q]+15}], v[{V(0)+4*hf}:{V(0)+4*hf+3}], v[{P+4*hf}:{P+4*hf+3}], v[{O[q]}:{O[q]+15}]')
        k('s_add_u32 s34, s34, 1'); k('s_cmp_lt_u32 s34, 32'); k(f's_cbranch_scc1 {l2}')
        k('s_mov_b32 s49, 1')
        k(f's_branch {COMBINE}')
        k(AFTER+':')

    def phase_oproj(self):
        k=self.k
        XF,WR,ACC,T=24,64,96,144
        self.wait(2)
        self.mark("o.wait")
        self.x_loads(XF,10,OFB[0],OF_D,20,10)
        vA,vC=T,T+1
        k('s_mul_i32 s28, s5, 10240'); k(f'v_add_u32 v{vA}, s28, v{V_L16}'); k(f'v_add_u32 v{vC}, 61440, v{vA}')
        fr=[]
        for i in range(10):
            for ft in range(5):
                va,imm=(vA,ft*20480+i*1024) if ft<3 else (vC,(ft-3)*20480+i*1024)
                def rd(r,va=va,imm=imm): k(f'ds_read_b128 v[{r}:{r+3}], v{va} offset:{imm}')
                def mf(r,i=i,ft=ft):
                    c=ACC+4*ft; cs='0' if i==0 else f'v[{c}:{c+3}]'
                    k(f'v_mfma_f32_16x16x32_bf16 v[{c}:{c+3}], v[{r}:{r+3}], v[{XF+4*i}:{XF+4*i+3}], {cs}')
                fr.append(dict(read=rd,mfma=mf,vm=(9-i) if ft==0 else None))
        self.frag_gemm(fr,WR,7,1)
        self.mark("o.mm")
        self.reduce_pairs(ACC,T+9,L_ORED)
        k('s_waitcnt lgkmcnt(0)')
        k('s_barrier')
        self.reduce_pairs_finish(ACC,T+9,XF)
        self.mark("o.red")
        self.epilogue_res(ACC,T,X1B[0],X1_D,stats=True,bias=None,final=False)
        self.mark("o.epi")
        self.publish(3)
        self.mark("o.pub")
        self.fc1_early_w()

    def epilogue_res(self,ACC,T,dst,dst_d,stats,bias,final,vout=None):
        k=self.k
        self.tile_offsets(44)
        if dst_d:
            k(f's_mul_i32 s28, s12, {dst_d}'); k(f's_add_u32 s28, s28, {dst}')
        else: k(f's_mov_b32 s28, {dst}')
        for j in range(3): k(f's_add_u32 s{44+j}, s{44+j}, s28')
        k('s_mov_b32 s47, 0xffff0000')
        VD=T+15
        k(f'v_lshrrev_b32 v{VD}, 1, v{V_G}'); k(f'v_lshlrev_b32 v{VD}, 8, v{VD}'); k(f'v_lshl_add_u32 v{VD}, v{V_F}, 4, v{VD}')
        k(f'v_and_b32 v{T+14}, 1, v{V_G}'); k(f'v_lshl_add_u32 v{VD}, v{T+14}, 3, v{VD}')
        S0,S1=T+10,T+11
        if stats:
            k(f'v_mov_b32 v{S0}, 0'); k(f'v_mov_b32 v{S1}, 0'); k(f'v_mov_b32 v{T+12}, 0x3f803f80')
        skip=k.lab('e3')
        for j in range(3):
            if j==2:
                k('s_cmp_eq_u32 s5, 1'); k(f's_cbranch_scc1 {skip}')
            r=ACC+4*j
            k(f'v_lshlrev_b32 v{T}, 16, v{V_RES+2*j}'); k(f'v_and_b32 v{T+1}, s47, v{V_RES+2*j}')
            k(f'v_lshlrev_b32 v{T+2}, 16, v{V_RES+2*j+1}'); k(f'v_and_b32 v{T+3}, s47, v{V_RES+2*j+1}')
            for i in range(4): k(f'v_add_f32 v{r+i}, v{r+i}, v{T+i}')
            if bias is not None:
                k(f'v_lshlrev_b32 v{T}, 16, v{bias+2*j}'); k(f'v_and_b32 v{T+1}, s47, v{bias+2*j}')
                k(f'v_lshlrev_b32 v{T+2}, 16, v{bias+2*j+1}'); k(f'v_and_b32 v{T+3}, s47, v{bias+2*j+1}')
                for i in range(4): k(f'v_add_f32 v{r+i}, v{r+i}, v{T+i}')
            k(f'v_cvt_pk_bf16_f32 v{V_RES+2*j}, v{r}, v{r+1}'); k(f'v_cvt_pk_bf16_f32 v{V_RES+2*j+1}, v{r+2}, v{r+3}')
            if final:
                fl=k.lab('fin'); fd=k.lab('fd')
                k('s_cmp_eq_u32 s12, 1'); k(f's_cbranch_scc1 {fl}')
                k(f'buffer_store_dwordx2 v[{V_RES+2*j}:{V_RES+2*j+1}], v{VD}, s[{WS}:{WS+3}], s{44+j} offen sc1')
                k(f's_branch {fd}')
                k(fl+':')
                k(f'buffer_store_dwordx2 v[{V_RES+2*j}:{V_RES+2*j+1}], v{vout}, s[{SC}:{SC+3}], 0 offen offset:{j*32}')
                k(fd+':')
            else:
                k(f'buffer_store_dwordx2 v[{V_RES+2*j}:{V_RES+2*j+1}], v{VD}, s[{WS}:{WS+3}], s{44+j} offen sc1')
            if stats:
                k(f'v_dot2c_f32_bf16 v{S0}, v{V_RES+2*j}, v{T+12}'); k(f'v_dot2c_f32_bf16 v{S1}, v{V_RES+2*j}, v{V_RES+2*j}')
                k(f'v_dot2c_f32_bf16 v{S0}, v{V_RES+2*j+1}, v{T+12}'); k(f'v_dot2c_f32_bf16 v{S1}, v{V_RES+2*j+1}, v{V_RES+2*j+1}')
        k(skip+':')
        if stats:
            sum_g(k,S0,T+13); sum_g(k,S1,T+13)
            k(f'v_lshlrev_b32 v{T+13}, 3, v{V_F}')
            k('s_lshl_b32 s28, s6, 4'); k('s_lshl_b32 s29, s7, 1'); k('s_add_u32 s28, s28, s29'); k('s_add_u32 s28, s28, s5')
            k('s_lshl_b32 s28, s28, 9'); k('s_lshl_b32 s29, s4, 7'); k('s_add_u32 s28, s28, s29')
            k(f's_mul_i32 s29, s12, {ST_D}'); k('s_add_u32 s28, s28, s29'); k(f's_add_u32 s28, s28, {STB[0]}')
            k(f'v_cmp_eq_u32 vcc, 0, v{V_G}'); k(f'v_mov_b32 v{T+14}, {OOB}'); k(f'v_cndmask_b32 v{T+13}, v{T+14}, v{T+13}, vcc')
            k(f'buffer_store_dwordx2 v[{S0}:{S1}], v{T+13}, s[{WS}:{WS+3}], s28 offen sc1')

    def w2_chunk_dma(self, e_expr_sgpr):
        k=self.k; e=e_expr_sgpr
        def head():
            k(f's_lshr_b32 s53, s{e}, 1'); k(f's_and_b32 s54, s{e}, 1')
            k('s_mul_i32 s54, s54, 27'); k('s_add_u32 s54, s54, s53')
            k('s_mul_i32 s55, s7, 270'); k('s_add_u32 s54, s54, s55'); k('s_lshl_b32 s54, s54, 10'); k(f's_add_u32 s54, s54, {W2F}')
            k(f's_mul_i32 s55, s{e}, 5120')
        def one(j):
            if j==0: head()
            k('s_mov_b32 m0, s55')
            k(f'buffer_load_dwordx4 v{V_L16}, s[{WS}:{WS+3}], s54 offen sc1 lds')
            k(f's_add_u32 s54, s54, {54*1024}'); k('s_add_u32 s55, s55, 1024')
        return [lambda j=j: one(j) for j in range(5)]

    W2R=128
    def w2r_setup(self):
        k=self.k
        k('s_lshr_b32 s28, s3, 1'); k('s_and_b32 s29, s3, 1')
        k('s_mul_i32 s29, s29, 27'); k('s_add_u32 s29, s29, s28')
        k('s_mul_i32 s28, s7, 270'); k('s_add_u32 s29, s29, s28')
        for g,first in enumerate((15,19,23)):
            k(f's_add_u32 s{58+g}, s29, {first}'); k(f's_lshl_b32 s{58+g}, s{58+g}, 10'); k(f's_add_u32 s{58+g}, s{58+g}, {W2F}')
    def w2r_load(self,n):
        k=self.k; g,ft=n//5,n%5; r=self.W2R+4*n
        k(f's_add_u32 s61, s{58+g}, {ft*54*1024}')
        k(f'buffer_load_dwordx4 v[{r}:{r+3}], v{V_L16}, s[{WS}:{WS+3}], s61 offen sc1')
    def fc1_early_w(self):
        k=self.k
        lab=k.lab('ew')
        k('s_cmp_ge_u32 s3, s41'); k(f's_cbranch_scc1 {lab}')
        k('s_mul_i32 s42, s40, 40960'); k(f's_add_u32 s42, s42, {W1F}')
        for s in range(self.F1A): self.f1_wload(s)
        k(lab+':')
    F1A=int(os.environ.get('F1A','12'))
    def f1_wreg(self,s): return 96+4*s
    def f1_wload(self,s):
        k=self.k; r=self.f1_wreg(s)
        k(f'buffer_load_dwordx4 v[{r}:{r+3}], v{V_L16}, s[{WS}:{WS+3}], s42 offen offset:{(s%4)*1024} sc1')
        if s%4==3: k('s_add_u32 s42, s42, 4096')

    def gelu_group_scalar(self,A,a,MR,CSV,B1F,TT,KC,vaddr,s_h):
        o=[]; PK=TT+4
        R=[A+4*a+i for i in range(4)]; t=[TT+i for i in range(4)]
        for i in range(4): o.append(f'v_fma_f32 v{t[i]}, -v{MR}, v{CSV+4*a+i}, v{B1F+4*a+i}')
        for i in range(4): o.append(f'v_fma_f32 v{R[i]}, v{R[i]}, v{MR+1}, v{t[i]}')
        for i in range(4): o.append(f'v_mul_f32 v{t[i]}, v{R[i]}, v{R[i]}')
        for i in range(4): o.append(f'v_fma_f32 v{t[i]}, v{t[i]}, v{KC+2}, v{KC}')
        for i in range(4): o.append(f'v_mul_f32 v{t[i]}, v{t[i]}, v{R[i]}')
        for i in range(4): o.append(f'v_exp_f32 v{t[i]}, v{t[i]}')
        for i in range(4): o.append(f'v_add_f32 v{t[i]}, 1.0, v{t[i]}')
        for i in range(4): o.append(f'v_rcp_f32 v{t[i]}, v{t[i]}')
        for i in range(4): o.append(f'v_mul_f32 v{R[i]}, v{R[i]}, v{t[i]}')
        o+= [f'v_cvt_pk_bf16_f32 v{PK}, v{R[0]}, v{R[1]}', f'v_cvt_pk_bf16_f32 v{PK+1}, v{R[2]}, v{R[3]}']
        o.append(f'buffer_store_dwordx2 v[{PK}:{PK+1}], v{vaddr}, s[{WS}:{WS+3}], s{s_h} offen offset:{a*256} sc1')
        return o
    def gelu_group(self,A,a,MR,CSV,B1F,TT,KC,vaddr,s_h):
        P=lambda r: f'v[{r}:{r+1}]'
        KC0,KC1,KONE=KC,KC+2,KC+4
        r0,r1=A+4*a,A+4*a+2
        t=[TT,TT+2]; PK=TT+4
        o=[]
        for e in range(2): o.append(f'v_pk_fma_f32 {P(t[e])}, {P(MR)}, {P(CSV+4*a+2*e)}, {P(B1F+4*a+2*e)} op_sel_hi:[0,1,1] neg_lo:[1,0,0] neg_hi:[1,0,0]')
        for e,r in enumerate((r0,r1)): o.append(f'v_pk_fma_f32 {P(r)}, {P(r)}, {P(MR)}, {P(t[e])} op_sel:[0,1,0] op_sel_hi:[1,1,1]')
        for e,r in enumerate((r0,r1)): o.append(f'v_pk_mul_f32 {P(t[e])}, {P(r)}, {P(r)}')
        for e,r in enumerate((r0,r1)): o.append(f'v_pk_fma_f32 {P(t[e])}, {P(t[e])}, {P(KC1)}, {P(KC0)}')
        for e,r in enumerate((r0,r1)): o.append(f'v_pk_mul_f32 {P(t[e])}, {P(t[e])}, {P(r)}')
        for e in range(2): o+= [f'v_exp_f32 v{t[e]}, v{t[e]}', f'v_exp_f32 v{t[e]+1}, v{t[e]+1}']
        for e in range(2): o.append(f'v_pk_add_f32 {P(t[e])}, {P(t[e])}, {P(KONE)}')
        for e in range(2): o+= [f'v_rcp_f32 v{t[e]}, v{t[e]}', f'v_rcp_f32 v{t[e]+1}, v{t[e]+1}']
        for e,r in enumerate((r0,r1)): o.append(f'v_pk_mul_f32 {P(r)}, {P(r)}, {P(t[e])}')
        o+= [f'v_cvt_pk_bf16_f32 v{PK}, v{r0}, v{r0+1}', f'v_cvt_pk_bf16_f32 v{PK+1}, v{r1}, v{r1+1}']
        o.append(f'buffer_store_dwordx2 v[{PK}:{PK+1}], v{vaddr}, s[{WS}:{WS+3}], s{s_h} offen offset:{a*256} sc1')
        return o

    def phase_fc1(self):
        k=self.k
        A0,A1,XF,CS,ONE,vX,WB=24,40,56,88,89,90,96
        self.wait(3)
        self.mark("f1.wait")
        k('s_mul_i32 s28, s6, 81920'); k(f's_mul_i32 s29, s12, {X1_D}'); k('s_add_u32 s28, s28, s29'); k(f's_add_u32 s28, s28, {X1B[0]}')
        k('s_mul_i32 s29, s3, 10240'); k('s_add_u32 s28, s28, s29')
        for i in range(10):
            k(f's_add_u32 m0, s29, {i*1024}')
            k(f'buffer_load_dwordx4 v{V_L16}, s[{WS}:{WS+3}], s28 offen sc1 lds')
            k('s_add_u32 s28, s28, 1024')
        act=k.lab('act'); fin=k.lab('fin')
        k('s_cmp_lt_u32 s3, s41'); k(f's_cbranch_scc1 {act}')
        n7=k.lab('n7'); n7w=k.lab('n7w')
        U=96
        k('s_cmp_lg_u32 s3, 7'); k(f's_cbranch_scc1 {n7w}')
        k(f'v_lshlrev_b32 v{U}, 3, v{V_LANE}')
        k('s_lshl_b32 s28, s6, 13'); k(f's_mul_i32 s29, s12, {ST_D}'); k('s_add_u32 s28, s28, s29'); k(f's_add_u32 s28, s28, {STB[0]}')
        for q in range(16):
            k(f'buffer_load_dwordx2 v[{A0+2*q}:{A0+2*q+1}], v{U}, s[{WS}:{WS+3}], s28 offen offset:{(q%8)*512} sc1')
            if q==7: k('s_add_u32 s28, s28, 4096')
        k('s_waitcnt vmcnt(0)')
        for q in range(1,16):
            k(f'v_add_f32 v{A0}, v{A0}, v{A0+2*q}'); k(f'v_add_f32 v{A0+1}, v{A0+1}, v{A0+2*q+1}')
        m_,r_,v_=U+2,U+3,A0+1
        k(f'v_mul_f32 v{m_}, {hex(f2u(1/640))}, v{A0}'); k(f'v_mul_f32 v{v_}, {hex(f2u(1/640))}, v{v_}')
        k(f'v_fma_f32 v{v_}, -v{m_}, v{m_}, v{v_}'); k(f'v_max_f32 v{v_}, 0, v{v_}')
        k(f'v_add_f32 v{A0+2}, {hex(f2u(1e-5))}, v{v_}'); k(f'v_rsq_f32 v{r_}, v{A0+2}')
        k(f'v_mul_f32 v{A0+3}, v{r_}, v{r_}'); k(f'v_mul_f32 v{A0+3}, v{A0+3}, v{v_}')
        k(f'v_add_f32 v{A0+3}, {hex(f2u(1e-5))}, v{A0+3}'); k(f'v_rsq_f32 v{A0+3}, v{A0+3}')
        k(f'v_mul_f32 v{r_}, v{r_}, v{A0+3}'); k(f'v_mul_f32 v{m_}, v{m_}, v{r_}')
        k(f'v_add_u32 v{U}, {L_TOKST}, v{U}')
        k(f'ds_write_b64 v{U}, v[{m_}:{r_}]')
        k(n7w+':')
        k('s_waitcnt vmcnt(0) lgkmcnt(0)')
        k('s_barrier')
        k('s_cmp_lg_u32 s3, 7'); k(f's_cbranch_scc1 {n7}')
        W2E=os.environ.get('W2E','1')=='1'
        if W2E:
            for e in range(16,30):
                k(f's_mov_b32 s52, {e}')
                for f in self.w2_chunk_dma(52): f()
        k(n7+':')
        self.w2r_setup()
        for n in range(15): self.w2r_load(n)
        k('s_barrier')
        k('s_cmp_lg_u32 s3, 7'); k(f's_cbranch_scc1 {fin}')
        for e in list(range(0,8))+[15]+([] if W2E else list(range(16,30))):
            k(f's_mov_b32 s52, {e}')
            for f in self.w2_chunk_dma(52): f()
        k('s_cmp_eq_u32 s41, 7'); k(f's_cbranch_scc1 {fin}')
        k('s_mov_b32 s52, 14')
        for f in self.w2_chunk_dma(52): f()
        k(f's_branch {fin}')
        k(act+':')
        srd(k,SA,P_B1,1728*2)
        B1R=72
        k('s_lshl_b32 s28, s40, 6')
        k(f'v_lshl_add_u32 v{vX}, v{V_H}, 3, s28')
        for a in range(4): k(f'buffer_load_dwordx2 v[{B1R+2*a}:{B1R+2*a+1}], v{vX}, s[{SA}:{SA+3}], 0 offen offset:{a*16}')
        k('s_waitcnt vmcnt(0)')
        k('s_barrier')
        self.mark("f1.x")
        k(f'v_lshrrev_b32 v{vX}, 4, v{V_L31}'); k(f'v_mul_u32_u24 v{vX}, 20480, v{vX}')
        k(f'v_lshl_add_u32 v{vX}, v{V_H}, 8, v{vX}'); k(f'v_lshl_add_u32 v{vX}, v{V_F}, 4, v{vX}')
        k(f'v_mov_b32 v{ONE}, 0x3f803f80'); k(f'v_mov_b32 v{CS}, 0')
        k('s_cmp_lg_u32 s12, 0'); k('s_cselect_b64 vcc, -1, 0')
        def rd(tt,s):
            ks,u=s//2,s%2
            x=XF+(s%4)*4
            k(f'ds_read_b128 v[{x}:{x+3}], v{vX} offset:{tt*40960+ks*1024+u*512}')
        F1A=self.F1A
        def pass1(with_cs):
            rd(0,0); rd(0,1); rd(0,2)
            for s in range(40):
                if s+F1A<40: self.f1_wload(s+F1A)
                if s+3<40: rd(0,s+3)
                w=f's_waitcnt lgkmcnt({min(3,39-s)})'
                if s>=F1A: w+=f' vmcnt({min(F1A,39-s)})'
                k(w)
                wr=self.f1_wreg(s); x=XF+(s%4)*4
                c0='0' if s==0 else f'v[{A0}:{A0+15}]'
                k(f'v_mfma_f32_32x32x16_bf16 v[{A0}:{A0+15}], v[{wr}:{wr+3}], v[{x}:{x+3}], {c0}')
                if with_cs:
                    for r in range(4): k(f'v_dot2c_f32_bf16 v{CS}, v{wr+r}, v{ONE}')
        p1=k.lab('p1'); p1d=k.lab('p1d')
        k(f's_cbranch_vccnz {p1}')
        pass1(True)
        k(f's_branch {p1d}')
        k(p1+':')
        pass1(False)
        k(p1d+':')
        ncs=k.lab('ncs')
        k(f's_cbranch_vccnz {ncs}')
        k(f'v_mov_b32 v91, v{CS}'); k(f'v_permlane32_swap_b32 v{CS}, v91'); k(f'v_add_f32 v{CS}, v{CS}, v91')
        k('s_lshl_b32 s28, s3, 7'); k(f's_add_u32 s28, s28, {L_CS1}')
        k(f'v_lshl_add_u32 v91, v{V_L31}, 2, s28')
        k(f'ds_write_b32 v91, v{CS}')
        k(ncs+':')
        k('s_waitcnt lgkmcnt(0)')
        self.mark("f1.p1")
        CSV,B1F,MR0,MR1,TT,KC,VA=96,112,80,82,16,84,91
        side=[]
        def S(x): side.append(x)
        S(f's_lshl_b32 s28, s3, 7'); S(f's_add_u32 s28, s28, {L_CS1}'); S(f'v_lshl_add_u32 v{VA}, v{V_H}, 4, s28')
        pre_reads=[f'ds_read_b128 v[{CSV+4*a}:{CSV+4*a+3}], v{VA} offset:{a*32}' for a in range(4)]
        c0=-2*0.7978845608028654*1.4426950408889634; c1=c0*0.044715
        for i in range(2):
            k(f'v_mov_b32 v{KC+i}, {hex(f2u(c0))}'); k(f'v_mov_b32 v{KC+2+i}, {hex(f2u(c1))}')
        KONE_=92
        k(f'v_mov_b32 v{KONE_}, 1.0'); k(f'v_mov_b32 v{KONE_+1}, 1.0')
        k(f'v_lshlrev_b32 v94, 3, v{V_L31}'); k(f'v_add_u32 v94, {L_TOKST}, v94')
        k(f'ds_read_b64 v[{MR0}:{MR0+1}], v94'); k(f'ds_read_b64 v[{MR1}:{MR1+1}], v94 offset:256')
        k(f'v_lshrrev_b32 v95, 4, v{V_L31}'); k(f's_mov_b32 s28, {54*1024}'); k('v_mul_lo_u32 v95, v95, s28')
        k(f'v_lshl_add_u32 v95, v{V_H}, 3, v95'); k(f'v_lshl_add_u32 v95, v{V_F}, 4, v95')
        for tt in range(2):
            k('s_lshl_b32 s28, s6, 2'); k(f's_add_u32 s28, s28, {2*tt}'); k('s_mul_i32 s28, s28, 54'); k('s_add_u32 s28, s28, s40')
            k('s_lshl_b32 s28, s28, 10'); k(f's_mul_i32 s29, s12, {HF_D}'); k('s_add_u32 s28, s28, s29'); k(f's_add_u32 s{56+tt}, s28, {HFB[0]}')
        k('s_mov_b32 s47, 0xffff0000')
        self.w2r_setup()
        k('s_waitcnt lgkmcnt(0)')
        rd(1,0); rd(1,1); rd(1,2)
        def gg(A,a,MR,sh):
            o=self.gelu_group(A,a,MR,CSV,B1F,TT,KC,95,sh)
            return [x.replace(f'v[{KC+4}:{KC+5}]',f'v[{KONE_}:{KONE_+1}]') for x in o]
        work=[]
        for a in range(4): work+=self.gelu_group_scalar(A0,a,MR0,CSV,B1F,TT,KC,95,56)
        nper=-(-len(work)//27)
        wi=0; lds_extra=0
        for s in range(40):
            if s+3<40: rd(1,s+3)
            extra=0
            if s==8:
                k(f's_lshl_b32 s28, s3, 7'); k(f's_add_u32 s28, s28, {L_CS1}'); k(f'v_lshl_add_u32 v{VA}, v{V_H}, 4, s28')
                for x in pre_reads: k(x)
                extra=4
            k(f's_waitcnt lgkmcnt({min(3,39-s)+extra})')
            wr=self.f1_wreg(s); x=XF+(s%4)*4
            c1s='0' if s==0 else f'v[{A1}:{A1+15}]'
            k(f'v_mfma_f32_32x32x16_bf16 v[{A1}:{A1+15}], v[{wr}:{wr+3}], v[{x}:{x+3}], {c1s}')
            if s in (9,10):
                for a in ((0,1) if s==9 else (2,3)):
                    k(f'v_lshlrev_b32 v{B1F+4*a}, 16, v{B1R+2*a}'); k(f'v_and_b32 v{B1F+4*a+1}, s47, v{B1R+2*a}')
                    k(f'v_lshlrev_b32 v{B1F+4*a+2}, 16, v{B1R+2*a+1}'); k(f'v_and_b32 v{B1F+4*a+3}, s47, v{B1R+2*a+1}')
            if 24<=s<39: self.w2r_load(s-24)
            if s>=12:
                for _ in range(nper):
                    if wi<len(work): k(work[wi]); wi+=1
        while wi<len(work): k(work[wi]); wi+=1
        k('s_barrier')
        self.mark("f1.mm")
        k('s_add_u32 s52, s3, 8')
        dm=self.w2_chunk_dma(52)
        for a in range(4):
            for x in gg(A1,a,MR1,57): k(x)
            if dm: dm.pop(0)()
            if a==3:
                while dm: dm.pop(0)()
        k(fin+':')
        self.mark("f1.epi")
        self.publish(4)
        self.mark("f1.pub")

    def phase_fc2(self):
        k=self.k
        HX,WR,ACC=20,188,216
        vA,vB,vC,BI,VO,vW=236,237,238,240,246,247
        W2R=self.W2R
        srd(k,SB,P_B2,1280)
        srd(k,SC,P_OUT,2048*1280)
        k('s_mul_i32 s28, s7, 160'); k('s_mul_i32 s29, s5, 96'); k('s_add_u32 s28, s28, s29')
        k(f'v_lshl_add_u32 v{vA}, v{V_G}, 3, s28')
        for j in range(3): k(f'buffer_load_dwordx2 v[{BI+2*j}:{BI+2*j+1}], v{vA}, s[{SB}:{SB+3}], 0 offen offset:{j*32}')
        k('s_movk_i32 s29, 1280'); k(f'v_mul_lo_u32 v{VO}, v{V_TOK}, s29'); k(f'v_add_u32 v{VO}, v{VO}, v{vA}')
        self.wait(4)
        self.mark("f2.wait")
        XP=os.environ.get('XP','')
        if 'noh' not in XP: self.x_loads(HX,27,HFB[0],HF_D,54,27)
        if 'hwait' in XP:
            k('s_waitcnt vmcnt(0)'); self.mark("f2.h")
        k('s_mul_i32 s28, s5, 5120')
        k(f'v_add_u32 v{vA}, s28, v{V_L16}'); k(f'v_add_u32 v{vB}, 61440, v{vA}'); k(f'v_add_u32 v{vC}, 122880, v{vA}')
        k('s_lshr_b32 s28, s3, 1'); k('s_mul_i32 s28, s28, 10240'); k('s_and_b32 s29, s3, 1'); k('s_mul_i32 s29, s29, 5120'); k('s_add_u32 s28, s28, s29')
        k(f'v_add_u32 v{vW}, s28, v{V_L16}')
        k(f'v_add_u32 v{vW+1}, 81920, v{vW}')
        NS=15
        slot=lambda i: i if i<NS else i-NS
        def refill(g):
            for ft in range(5):
                r=W2R+4*(5*g+ft)
                va,imm=(vW,g*40960+ft*1024) if g<2 else (vW+1,ft*1024)
                k(f'ds_write_b128 v{va}, v[{r}:{r+3}] offset:{imm}')
        DEPTH=int(os.environ.get('F2D','6'))
        bar={10:[0,1],15:[2],23:[]} if os.environ.get('F2B','3')=='3' else {7:[0],11:[1],15:[2],19:[],23:[]}
        fr=[]
        for i in range(27):
            for ft in range(5):
                j=slot(i); va,imm=((vA,vB,vC)[j//6],(j%6)*10240)
                def rd(r,va=va,imm=imm,ft=ft): k(f'ds_read_b128 v[{r}:{r+3}], v{va} offset:{imm+ft*1024}')
                def mf(r,i=i,ft=ft):
                    c=ACC+4*ft; cs='0' if i==0 else f'v[{c}:{c+3}]'
                    k(f'v_mfma_f32_16x16x32_bf16 v[{c}:{c+3}], v[{r}:{r+3}], v[{HX+4*i}:{HX+4*i+3}], {cs}')
                d=dict(read=rd,mfma=mf)
                if ft==0:
                    d['vm']=26-i
                    if i in bar:
                        def pre(i=i):
                            if 'nobar' not in XP: k('s_barrier')
                            if 'norf' not in XP:
                                for g in bar[i]: refill(g)
                        d['pre']=pre
                fr.append(d)
        self.frag_gemm(fr,WR,DEPTH,1)
        self.mark("f2.mm")
        k('s_barrier')
        T=48
        self.reduce_pairs(ACC,T+9,L_RED)
        k('s_waitcnt lgkmcnt(0)')
        k('s_barrier')
        self.reduce_pairs_finish(ACC,T+9,24)
        self.epilogue_res(ACC,T,X2B,0,stats=False,bias=BI,final=True,vout=VO)
        self.mark("f2.epi")

    def build(self):
        k=self.k
        self.prologue()
        self.mark0("p.start")
        if 'nox0' not in os.environ.get('XP',''): self.x0_loads(24,144)
        if 'cs.x' in os.environ.get('MARKS',''):
            k('s_waitcnt vmcnt(0)'); self.mark0("cs.x")
        kvw=k.lab('kvw'); pj=k.lab('pj')
        k('s_lshr_b32 s28, s7, 1')
        k('s_cmp_eq_u32 s28, s4'); k(f's_cbranch_scc1 {kvw}')
        k('s_mov_b32 s43, s3')
        k('s_cmp_gt_u32 s3, s28'); k('s_cselect_b32 s29, 1, 0'); k('s_sub_u32 s43, s43, s29')
        k('s_add_u32 s28, s28, 4'); k('s_cmp_gt_u32 s3, s28'); k('s_cselect_b32 s29, 1, 0'); k('s_sub_u32 s43, s43, s29')
        srd(k,SA,P_WQ,640*1280)
        for t in range(4):
            lab=k.lab('wq')
            k(f's_add_u32 s28, s43, {6*t}')
            if t==3:
                k('s_cmp_ge_u32 s28, 20'); k(f's_cbranch_scc1 {lab}')
            k('s_mul_i32 s29, s28, 40960'); k('s_mul_i32 s30, s28, 5120')
            self.dma_chunk160(SA,29,30)
            k(lab+':')
        k(f's_branch {pj}')
        k(kvw+':')
        k('s_mov_b32 s43, 7')
        k('s_and_b32 s28, s7, 1'); k('s_cmp_eq_u32 s28, 0')
        k(f's_cselect_b32 s30, s{P_WK}, s{P_WV}'); k(f's_cselect_b32 s31, s{P_WK+1}, s{P_WV+1}')
        srd(k,SB,30,25600)
        k('s_mul_i32 s29, s5, 12288')
        for t in range(13):
            k(f's_add_u32 m0, s29, {L_WKV}')
            k(f'buffer_load_dwordx4 v{V_L16}, s[{SB}:{SB+3}], s29 offen lds')
            k('s_add_u32 s29, s29, 1024')
        k(pj+':')
        if 'tlb' in os.environ.get('XP',''): self.tlb_warm()
        self.mark0("p.issued")
        LOOP='mega_layer'
        k(LOOP+':')
        self.phase_qkv(); self.stopat('qkv')
        self.phase_attn(); self.stopat('attn')
        self.phase_oproj(); self.stopat('oproj')
        self.phase_fc1(); self.stopat('fc1')
        self.phase_fc2(); self.stopat('fc2')
        k('s_cmp_eq_u32 s12, 1'); k(f's_cbranch_scc1 {self.END}')
        self.publish(5)
        self.dma_next_qkv()
        self.wait(5)
        k('s_mov_b32 s12, 1'); k('s_add_u32 s13, s13, 5')
        k(f's_branch {LOOP}')
        k(self.END+':')
        if self.stamps:
            k('s_waitcnt vmcnt(0) lgkmcnt(0)')
            k(f'{self.clk} s[100:101]'); k('s_waitcnt lgkmcnt(0)')
            k('s_lshl_b32 s28, s2, 3'); k('s_add_u32 s28, s28, s3'); k('s_lshl_b32 s28, s28, 6'); k(f's_add_u32 s28, s28, {STAMP_OFF}')
            k('s_add_u32 s30, s86, s28'); k('s_addc_u32 s31, s87, 0')
            k('v_mov_b32 v24, 0')
            for i in range(13):
                k(f'v_mov_b32 v25, s{88+i}')
                k(f'global_store_dword v24, v25, s[30:31] offset:{4*i}')
        k('mega_kernel_exit:')
        k('mega_code_end:')
        k('s_endpgm')
        return k

def gen_init():
    k=Kern('init_kernel',vgpr=8,sgpr=24)
    k('s_cmp_ge_u32 s2, 1'); k('s_cbranch_scc1 init_kernel_end')
    k('s_load_dwordx2 s[4:5], s[0:1], 96')
    k('s_waitcnt lgkmcnt(0)')
    srd(k,8,4,4096,FLG)
    k('v_lshlrev_b32 v1, 4, v0')
    for i in range(4): k(f'v_mov_b32 v{2+i}, 0')
    k('buffer_store_dwordx4 v[2:5], v1, s[8:11], 0 offen')
    k('init_kernel_end:')
    k('s_endpgm')
    return k
```

```python
import os, struct
from asmlib import *
from mlayout import *

def f2u(x): return struct.unpack('<I',struct.pack('<f',x))[0]
P_X,P_WQ,P_WK,P_WV,P_WO,P_W1,P_B1,P_W2,P_B2,P_OUT=64,66,68,70,72,76,78,80,82,84
WS=8
SA,SB,SC=16,20,24
OOB='0x40000000'
V_LANE,V_F,V_G,V_L16,V_L31,V_H,V_TR,V_RES,V_TOK,V_D=1,2,3,4,5,6,7,8,14,16
L_WKV=102400
L_RED=128000
L_KVR=157056
L_STAT=152576
L_CS=163136
L_NONCE=163776
L_BADF=163780
L_PAIRF=163784
L_KVCS=155008
NONCE=FLG+2048+64
L_QL=0
L_COMB=112640
L_OIMG=137216
L_ORED=102400
L_TOKST=153600
L_CS1=154112
LDS_TOTAL=160*1024
STAMP_OFF=100<<20
POLLW=7

def srd(k,d,p,size,off=0):
    k(f's_add_u32 s{d}, s{p}, {off}' if off else f's_mov_b32 s{d}, s{p}')
    k(f's_addc_u32 s{d+1}, s{p+1}, 0' if off else f's_mov_b32 s{d+1}, s{p+1}')
    k(f's_and_b32 s{d+1}, s{d+1}, 0xffff')
    k(f's_mov_b32 s{d+2}, {size}')
    k(f's_mov_b32 s{d+3}, 0x20000')

def sum_g(k,x,tmp):
    k(f'v_mov_b32 v{tmp}, v{x}')
    k(f'v_permlane16_swap_b32 v{x}, v{tmp}')
    k(f'v_add_f32 v{x}, v{x}, v{tmp}')
    k(f'v_mov_b32 v{tmp}, v{x}')
    k(f'v_permlane32_swap_b32 v{x}, v{tmp}')
    k(f'v_add_f32 v{x}, v{x}, v{tmp}')

KNAME='interleave_layers__grouped_kv_mqa__mixer_channel_mlp__prompt_kernel'
class Mega:
    def __init__(self, stamps=False, stop=None):
        self.k=Kern(KNAME,vgpr=256,sgpr=102)
        self.stamps=stamps; self.stop=stop; self.END='mega_kernel_end'
        self.mark_layer=int(os.environ.get('MARKL','1'))
        self.clk='s_memrealtime' if os.environ.get('RT') else 's_memtime'
    def mark(self,name):
        if not self.stamps: return
        ms=os.environ.get('MARKS','').split(',')
        if name not in ms: return
        i=ms.index(name)
        k=self.k
        k(f'{self.clk} s[100:101]')
        k('s_waitcnt lgkmcnt(0)')
        k(f's_cmp_eq_u32 s12, {self.mark_layer}')
        k(f's_cselect_b32 s{88+i}, s100, s{88+i}')
    def mark0(self,name):
        if not self.stamps: return
        ms=os.environ.get('MARKS','').split(',')
        if name not in ms: return
        i=ms.index(name); k=self.k
        k(f'{self.clk} s[100:101]'); k('s_waitcnt lgkmcnt(0)'); k(f's_mov_b32 s{88+i}, s100')
    def stopat(self,name):
        if self.stop==name:
            k=self.k
            k(f's_cmp_eq_u32 s12, {int(os.environ.get("STOPL","0"))}')
            k(f's_cbranch_scc1 {self.END}')

    def publish(self,j):
        k=self.k
        k('s_waitcnt vmcnt(0)')
        k('s_barrier')
        lab=k.lab('pub')
        k('s_cmp_lg_u32 s3, 0')
        k(f's_cbranch_scc1 {lab}')
        k(f's_add_u32 s28, s13, {j}')
        k('v_mov_b32 v22, s28')
        k('s_lshl_b32 s29, s6, 6'); k('s_lshl_b32 s30, s7, 2'); k('s_add_u32 s29, s29, s30')
        k('v_mov_b32 v21, s29')
        k('s_mov_b64 exec, 1')
        k(f'buffer_store_dword v22, v21, s[{WS}:{WS+3}], 0 offen offset:{FLG} sc1')
        k('s_mov_b64 exec, -1')
        k(lab+':')
    def wait(self,j,allwg=False,others=None):
        k=self.k
        lab=k.lab('w'); loop=k.lab('poll'); done=k.lab('pd')
        wide = allwg or others is not None
        k(f's_cmp_lg_u32 s3, {POLLW}')
        k(f's_cbranch_scc1 {lab}')
        k(f's_add_u32 s28, s13, {j}')
        if wide:
            k(f'v_lshrrev_b32 v22, 1, v{V_LANE}'); k('v_lshlrev_b32 v21, 6, v22')
            k(f'v_and_b32 v16, 1, v{V_LANE}'); k('v_lshl_add_u32 v21, v16, 4, v21')
            if others is not None:
                k(f's_add_u32 s29, s13, {others}')
                k('v_cmp_eq_u32 vcc, s6, v22')
                k('v_mov_b32 v23, s29'); k('v_mov_b32 v22, s28')
                k('v_cndmask_b32 v22, v23, v22, vcc')
            else: k('v_mov_b32 v22, s28')
        else:
            k(f'v_and_b32 v21, 7, v{V_LANE}'); k('v_lshlrev_b32 v21, 2, v21')
            k('s_lshl_b32 s29, s6, 6'); k('v_add_u32 v21, s29, v21')
            k('v_mov_b32 v22, s28')
        k('s_mov_b32 s30, 0')
        k(loop+':')
        if wide:
            k(f'buffer_load_dwordx4 v[16:19], v21, s[{WS}:{WS+3}], 0 offen offset:{FLG} sc1')
            k('s_waitcnt vmcnt(0)')
            for r in (16,17,18,19): k(f'v_sub_u32 v{r}, v{r}, v22')
            k('v_max_u32 v16, v16, v17'); k('v_max_u32 v18, v18, v19'); k('v_max_u32 v16, v16, v18')
        else:
            k(f'buffer_load_dword v16, v21, s[{WS}:{WS+3}], 0 offen offset:{FLG} sc1')
            k('s_waitcnt vmcnt(0)')
            k('v_sub_u32 v16, v16, v22')
        k('v_cmp_le_u32 vcc, 32, v16')
        k(f's_cbranch_vccz {done}')
        if os.environ.get('SLP'): k(f"s_sleep {os.environ['SLP']}")
        k('s_add_u32 s30, s30, 1')
        k(f's_cmp_lt_u32 s30, 0x40000')
        k(f's_cbranch_scc1 {loop}')
        k(done+':')
        k(lab+':')
        k('s_barrier')

    def dma_chunk160(self, s_srd, s_soff, s_m0):
        k=self.k
        for j in range(5):
            k(f's_mov_b32 m0, s{s_m0}')
            k(f'buffer_load_dwordx4 v{V_D+j}, s[{s_srd}:{s_srd+3}], s{s_soff} offen lds')
            if j<4: k(f's_add_u32 s{s_m0}, s{s_m0}, 1024')
    def dma_w160(self,ptr,skip_poller=False):
        k=self.k
        srd(k,SA,ptr,640*1280)
        nw=7 if skip_poller else 8
        end=k.lab('dw')
        if skip_poller:
            k(f's_cmp_eq_u32 s3, {POLLW}'); k(f's_cbranch_scc1 {end}')
        for t in range(3):
            lab=k.lab('wq')
            k(f's_add_u32 s28, s3, {nw*t}')
            if nw*t+nw>20:
                k('s_cmp_ge_u32 s28, 20'); k(f's_cbranch_scc1 {lab}')
            k('s_mul_i32 s29, s28, 40960'); k('s_mul_i32 s30, s28, 5120')
            self.dma_chunk160(SA,29,30)
            k(lab+':')
        k(end+':')
    def dma_wkv(self):
        k=self.k
        k('s_and_b32 s28, s7, 1'); k('s_cmp_eq_u32 s28, 0')
        k(f's_cselect_b32 s30, s{P_WK}, s{P_WV}'); k(f's_cselect_b32 s31, s{P_WK+1}, s{P_WV+1}')
        srd(k,SB,30,25600)
        for t in range(4):
            lab=k.lab('wk')
            k(f's_add_u32 s28, s3, {8*t}')
            if t==3:
                k('s_cmp_ge_u32 s28, 25'); k(f's_cbranch_scc1 {lab}')
            k('s_lshl_b32 s29, s28, 10'); k(f's_add_u32 s30, s29, {L_WKV}')
            k('s_mov_b32 m0, s30')
            k(f'buffer_load_dwordx4 v{V_L16}, s[{SB}:{SB+3}], s29 offen lds')
            k(lab+':')
    def l2_prefetch(self, s_srd, total, nwaves, wave0, vtmp, base_off=0):
        k=self.k
        per=(total//32+127)//128*128
        ninst=(per+8191)//8192
        pw=(ninst+nwaves-1)//nwaves
        k('s_and_b32 s28, s6, 3'); k('s_lshl_b32 s28, s28, 3'); k('s_add_u32 s28, s28, s7')
        k(f's_mul_i32 s28, s28, {per}')
        k(f's_sub_u32 s29, s3, {wave0}'); k(f's_mul_i32 s29, s29, {pw*8192}'); k('s_add_u32 s28, s28, s29')
        if base_off: k(f's_add_u32 s28, s28, {base_off}')
        k(f'v_lshlrev_b32 v{vtmp}, 7, v{V_LANE}')
        for n in range(pw):
            k(f'buffer_load_dword v{vtmp+1}, v{vtmp}, s[{s_srd}:{s_srd+3}], s28 offen')
            k('s_add_u32 s28, s28, 8192')
        return pw

    def prologue(self):
        k=self.k
        k('s_cmp_ge_u32 s2, 256')
        k(f's_cbranch_scc1 mega_kernel_exit')
        k('s_load_dwordx16 s[64:79], s[0:1], 0')
        k('s_load_dwordx4 s[80:83], s[0:1], 64')
        k('s_load_dwordx2 s[84:85], s[0:1], 80')
        k('s_load_dwordx2 s[86:87], s[0:1], 96')
        k('s_load_dwordx2 s[58:59], s[0:1], 88')
        if self.stamps: k(f'{self.clk} s[100:101]')
        k('v_lshrrev_b32 v24, 6, v0')
        k(f'v_and_b32 v{V_LANE}, 63, v0')
        k('v_readfirstlane_b32 s3, v24')
        k('s_and_b32 s4, s3, 3'); k('s_lshr_b32 s5, s3, 2')
        k('s_and_b32 s6, s2, 7'); k('s_lshl_b32 s6, s6, 2'); k('s_lshr_b32 s7, s2, 3'); k('s_and_b32 s7, s7, 3'); k('s_add_u32 s6, s6, s7'); k('s_lshr_b32 s7, s2, 5')
        k(f'v_and_b32 v{V_F}, 15, v{V_LANE}')
        k(f'v_lshrrev_b32 v{V_G}, 4, v{V_LANE}')
        k(f'v_lshlrev_b32 v{V_L16}, 4, v{V_LANE}')
        k(f'v_and_b32 v{V_L31}, 31, v{V_LANE}')
        k(f'v_lshrrev_b32 v{V_H}, 5, v{V_LANE}')
        k(f'v_lshrrev_b32 v24, 2, v{V_F}')
        k(f'v_and_b32 v25, 1, v{V_G}'); k('v_lshl_add_u32 v24, v25, 2, v24')
        k(f'v_lshrrev_b32 v25, 1, v{V_G}'); k('v_lshl_add_u32 v24, v25, 4, v24')
        k('v_mul_u32_u24 v24, 160, v24')
        k(f'v_and_b32 v25, 3, v{V_LANE}')
        k(f'v_lshl_add_u32 v{V_TR}, v25, 3, v24')
        k('s_lshl_b32 s28, s6, 6'); k('s_lshl_b32 s29, s4, 4'); k('s_add_u32 s28, s28, s29')
        k(f'v_add_u32 v{V_TOK}, s28, v{V_F}')
        k('s_mul_i32 s29, s7, 160')
        for j in range(5):
            k(f'v_add_u32 v24, {64*j}, v{V_LANE}')
            k('v_mul_u32_u24 v25, 6554, v24'); k('v_lshrrev_b32 v25, 16, v25')
            k('v_mul_u32_u24 v26, 10, v25'); k('v_sub_u32 v26, v24, v26')
            k('v_and_b32 v27, 0x13, v25')
            k('v_bfe_u32 v28, v25, 3, 1'); k('v_lshl_add_u32 v27, v28, 2, v27')
            k('v_bfe_u32 v28, v25, 2, 1'); k('v_lshl_add_u32 v27, v28, 3, v27')
            k('v_mul_u32_u24 v27, 1280, v27')
            k('v_lshl_add_u32 v27, v26, 4, v27')
            k(f'v_add_u32 v{V_D+j}, s29, v27')
        k('s_waitcnt lgkmcnt(0)')
        if self.stamps:
            k('s_mov_b32 s99, s100')
            for i in range(11): k(f's_mov_b32 s{88+i}, 0')
        srd(k,WS,86,WS_USED)
        k('s_mov_b32 s12, 0'); k('s_mov_b32 s13, 0')
        srd(k,60,58,256)
        nn=k.lab('nn')
        k('s_cmp_lg_u32 s2, 0'); k(f's_cbranch_scc1 {nn}')
        k('s_cmp_lg_u32 s3, 5'); k(f's_cbranch_scc1 {nn}')
        k('s_memrealtime s[28:29]')
        k('s_waitcnt lgkmcnt(0)')
        k('s_lshl_b32 s28, s28, 6'); k('s_or_b32 s28, s28, 1')
        k('v_mov_b32 v201, s28'); k('v_mov_b32 v200, 0')
        k('s_mov_b64 exec, 1')
        k('buffer_store_dword v201, v200, s[60:63], 0 offen sc1')
        k('s_mov_b64 exec, -1')
        k(nn+':')
        k('s_mul_i32 s40, s7, 7'); k('s_sub_u32 s28, s7, 6'); k('s_max_i32 s28, s28, 0'); k('s_sub_u32 s40, s40, s28')
        k('s_cmp_ge_u32 s7, 6'); k('s_cselect_b32 s41, 6, 7')
        k('s_add_u32 s40, s40, s3')

    def x0_loads(self,XF,T):
        k=self.k
        srd(k,SC,P_X,2048*1280)
        k('s_movk_i32 s28, 1280')
        k(f'v_mul_lo_u32 v{T}, v{V_TOK}, s28')
        k(f'v_lshl_add_u32 v{T+1}, v{V_G}, 4, v{T}')
        k('s_mul_i32 s29, s5, 640')
        k(f'v_add_u32 v{T+1}, s29, v{T+1}')
        if 'xlin' in os.environ.get('XP',''):
            k('s_lshl_b32 s28, s6, 2'); k('s_add_u32 s28, s28, s4'); k('s_mul_i32 s28, s28, 20'); k('s_mul_i32 s29, s5, 10'); k('s_add_u32 s28, s28, s29'); k('s_lshl_b32 s28, s28, 10')
            for i in range(10):
                k(f'buffer_load_dwordx4 v[{XF+4*i}:{XF+4*i+3}], v{V_L16}, s[{SC}:{SC+3}], s28 offen offset:{(i%4)*1024}')
                if i%4==3: k('s_add_u32 s28, s28, 4096')
        else:
          for i in range(10):
            k(f'buffer_load_dwordx4 v[{XF+4*i}:{XF+4*i+3}], v{T+1}, s[{SC}:{SC+3}], 0 offen offset:{i*64}')
        k(f'v_lshl_add_u32 v{T+1}, v{V_G}, 3, v{T}')
        k('s_mul_i32 s29, s7, 160'); k('s_mul_i32 s30, s5, 96'); k('s_add_u32 s29, s29, s30')
        k(f'v_add_u32 v{T+1}, s29, v{T+1}')
        for j in range(3):
            k(f'buffer_load_dwordx2 v[{V_RES+2*j}:{V_RES+2*j+1}], v{T+1}, s[{SC}:{SC+3}], 0 offen offset:{j*32}')

    def conv_issue(self, stage, kinds):
        k=self.k
        done=k.lab('cvd'); go=k.lab('cvg')
        total=sum(x[5] for x in kinds)
        k('s_mov_b32 s50, 0')
        k('s_lshl_b32 s28, s43, 8'); k('s_add_u32 s28, s28, s2')
        k(f's_cmp_ge_u32 s28, {total}'); k(f's_cbranch_scc1 {done}')
        labs=[k.lab('cvk') for _ in kinds]
        acc=0
        for idx,x in enumerate(kinds[:-1]):
            acc+=x[5]
            k(f's_cmp_lt_u32 s28, {acc}'); k(f's_cbranch_scc1 {labs[idx]}')
        k(f's_branch {labs[-1]}')
        acc=0
        for idx,(name,ptr,rows,stride,ncg,njobs,dst,layout) in enumerate(kinds):
            k(labs[idx]+':')
            if acc: k(f's_sub_u32 s28, s28, {acc}')
            magic=-(-65536//ncg)
            assert all((j*magic)>>16==j//ncg for j in range(njobs))
            k(f's_mul_i32 s29, s28, {magic}'); k('s_lshr_b32 s29, s29, 16')
            k(f's_mul_i32 s30, s29, {ncg}'); k('s_sub_u32 s30, s28, s30')
            srd(k,SA,ptr,rows*stride)
            k(f's_movk_i32 s31, {stride}')
            k(f's_mov_b32 s50, {1 if layout=="w1" else 2}')
            if layout=='w1':
                k('s_mul_i32 s51, s30, 80'); k('s_lshl_b32 s32, s29, 1'); k('s_add_u32 s51, s51, s32')
                k('s_mov_b32 s57, 0')
            else:
                KS=rows//32
                k(f's_mul_i32 s51, s30, {4*KS}'); k('s_add_u32 s51, s51, s29')
                k(f's_mov_b32 s57, {KS*1024}')
            k('s_lshl_b32 s51, s51, 10'); k(f's_add_u32 s51, s51, {dst}')
            k(f's_branch {go}')
            acc+=njobs
        k(go+':')
        k(f'v_lshrrev_b32 v200, 3, v{V_LANE}'); k('v_mul_lo_u32 v200, v200, s31')
        k(f'v_and_b32 v201, 7, v{V_LANE}'); k('v_lshl_add_u32 v200, v201, 4, v200')
        k('s_lshl_b32 s32, s29, 5'); k('s_mul_i32 s32, s32, s31'); k('s_lshl_b32 s33, s30, 7'); k('s_add_u32 s32, s32, s33')
        k('s_lshl_b32 s33, s31, 3')
        k('s_lshl_b32 s34, s43, 12'); k(f's_add_u32 s34, s34, {stage}')
        for i in range(4):
            k('s_mov_b32 m0, s34')
            k(f'buffer_load_dwordx4 v200, s[{SA}:{SA+3}], s32 offen lds')
            if i<3:
                k('s_add_u32 s32, s32, s33'); k('s_add_u32 s34, s34, 1024')
        k(done+':')
    def conv_finish(self,T,stage):
        k=self.k
        done=k.lab('cfd'); w2=k.lab('cf2')
        k('s_cmp_eq_u32 s50, 0'); k(f's_cbranch_scc1 {done}')
        k('s_lshl_b32 s34, s43, 12'); k(f's_add_u32 s34, s34, {stage}')
        k(f'v_lshrrev_b32 v{T}, 2, v{V_F}')
        k(f'v_and_b32 v{T+1}, 3, v{V_LANE}')
        k('s_cmp_eq_u32 s50, 2'); k(f's_cbranch_scc1 {w2}')
        k(f'v_lshl_add_u32 v{T}, v{V_H}, 3, v{T}'); k(f'v_lshlrev_b32 v{T}, 7, v{T}')
        k(f'v_and_b32 v{T+2}, 1, v{V_G}'); k(f'v_lshl_add_u32 v{T}, v{T+2}, 5, v{T}')
        k(f'v_lshl_add_u32 v{T}, v{T+1}, 3, v{T}'); k(f'v_add_u32 v{T}, s34, v{T}')
        fr=[(p,u) for p in range(2) for u in range(2)]
        for n,(p,u) in enumerate(fr):
            b=T+4+4*n
            k(f'ds_read_b64_tr_b16 v[{b}:{b+1}], v{T} offset:{u*2048+p*64}')
            k(f'ds_read_b64_tr_b16 v[{b+2}:{b+3}], v{T} offset:{u*2048+p*64+512}')
        k('s_waitcnt lgkmcnt(0)')
        for n,(p,u) in enumerate(fr):
            b=T+4+4*n
            k(f's_add_u32 s32, s51, {(p*40+u)*1024}')
            k(f'buffer_store_dwordx4 v[{b}:{b+3}], v{V_L16}, s[{WS}:{WS+3}], s32 offen sc1')
        k(f's_branch {done}')
        k(w2+':')
        k(f'v_lshl_add_u32 v{T}, v{V_G}, 3, v{T}'); k(f'v_lshlrev_b32 v{T}, 7, v{T}')
        k(f'v_lshl_add_u32 v{T}, v{T+1}, 3, v{T}'); k(f'v_add_u32 v{T}, s34, v{T}')
        for n in range(4):
            b=T+4+4*n
            k(f'ds_read_b64_tr_b16 v[{b}:{b+1}], v{T} offset:{n*32}')
            k(f'ds_read_b64_tr_b16 v[{b+2}:{b+3}], v{T} offset:{n*32+512}')
        k('s_waitcnt lgkmcnt(0)')
        k('s_mov_b32 s32, s51')
        for n in range(4):
            b=T+4+4*n
            k(f'buffer_store_dwordx4 v[{b}:{b+3}], v{V_L16}, s[{WS}:{WS+3}], s32 offen sc1')
            if n<3: k('s_add_u32 s32, s32, s57')
        k(done+':')
    CONV_A=[('wo',P_WO,640,1280,10,200,WOF,'a16'),('wq',P_WQ,640,1280,10,200,WQF,'a16')]
    CONV_B=[('w1',P_W1,640,3456,27,540,W1F,'w1'),('w2',P_W2,1728,1280,10,540,W2F,'a16')]

    def dma_lin_slice(self, src_const, waves=8):
        k=self.k
        k(f's_mul_i32 s28, s7, 102400'); k(f's_add_u32 s28, s28, {src_const}')
        k('s_lshl_b32 s29, s3, 10'); k('s_add_u32 s28, s28, s29')
        for n in range(13):
            lab=None
            if n==12:
                lab=k.lab('dl'); k('s_cmp_ge_u32 s3, 4'); k(f's_cbranch_scc1 {lab}')
            k('s_mov_b32 m0, s29')
            k(f'buffer_load_dwordx4 v{V_L16}, s[{WS}:{WS+3}], s28 offen sc1 lds')
            if n<12:
                k('s_add_u32 s28, s28, 8192'); k('s_add_u32 s29, s29, 8192')
            if lab: k(lab+':')

    def dma_next_qkv(self):
        k=self.k
        end=k.lab('dn')
        k(f's_cmp_eq_u32 s3, {POLLW}'); k(f's_cbranch_scc1 {end}')
        k('s_and_b32 s28, s7, 1'); k('s_cmp_eq_u32 s28, 0')
        k(f's_cselect_b32 s30, s{P_WK}, s{P_WV}'); k(f's_cselect_b32 s31, s{P_WK+1}, s{P_WV+1}')
        srd(k,SB,30,25600)
        for t in range(4):
            lab=k.lab('wk')
            k(f's_add_u32 s28, s3, {7*t}')
            if t==3:
                k('s_cmp_ge_u32 s28, 25'); k(f's_cbranch_scc1 {lab}')
            k('s_lshl_b32 s29, s28, 10'); k(f's_add_u32 s30, s29, {L_WKV}')
            k('s_mov_b32 m0, s30')
            k(f'buffer_load_dwordx4 v{V_L16}, s[{SB}:{SB+3}], s29 offen lds')
            k(lab+':')
        k(f's_mul_i32 s28, s7, 102400'); k(f's_add_u32 s28, s28, {WQF}')
        k('s_lshl_b32 s29, s3, 10'); k('s_add_u32 s28, s28, s29')
        for n in range(15):
            lab=None
            if n==14:
                lab=k.lab('dl'); k('s_cmp_ge_u32 s3, 2'); k(f's_cbranch_scc1 {lab}')
            k('s_mov_b32 m0, s29')
            k(f'buffer_load_dwordx4 v{V_L16}, s[{WS}:{WS+3}], s28 offen sc1 lds')
            if n<14:
                k('s_add_u32 s28, s28, 7168'); k('s_add_u32 s29, s29, 7168')
            if lab: k(lab+':')
        k(end+':')
    def tlb_warm(self):
        k=self.k
        lab=k.lab('tw')
        k('s_cmp_lg_u32 s3, 6'); k(f's_cbranch_scc1 {lab}')
        k(f'v_lshlrev_b32 v200, 19, v{V_LANE}')
        k(f'buffer_load_dword v201, v200, s[{WS}:{WS+3}], 0 offen')
        for ptr,size in ((P_W1,640*3456),(P_W2,1728*1280),(P_OUT,2048*1280),(P_WO,640*1280),(P_B1,3456),(P_B2,1280)):
            srd(k,SA,ptr,size)
            k(f'buffer_load_dword v201, v200, s[{SA}:{SA+3}], 0 offen')
        if 'cpf' in os.environ.get('XP',''):
            k('s_getpc_b64 s[56:57]')
            k('mega_code_here:')
            k('s_mov_b32 s28, mega_code_end-mega_code_here-4')
            k(f'v_lshlrev_b32 v200, 7, v{V_LANE}')
            for n in range(8):
                k('v_min_u32 v202, s28, v200')
                k('global_load_dword v201, v202, s[56:57]')
                k('v_add_u32 v200, 8192, v200')
        k(lab+':')

    def frag_gemm(self, frags, WR, depth, nread, after=None):
        k=self.k
        n=len(frags); slots=depth+1
        reg=lambda i: WR+(i%slots)*4
        def issue(i):
            if frags[i].get('pre'): frags[i]['pre']()
            frags[i]['read'](reg(i))
        for i in range(min(depth,n)): issue(i)
        for i in range(n):
            if i+depth<n: issue(i+depth)
            rem=min(depth,n-1-i)
            w=f's_waitcnt lgkmcnt({rem*nread})'
            vm=frags[i].get('vm')
            if vm is not None:
                v=vm() if callable(vm) else vm
                if v is not None: w+=f' vmcnt({v})'
            k(w)
            frags[i]['mfma'](reg(i))
            if after and i in after: after[i]()

    def diag_stats(self,SX,SQ,S0,S1,tmp):
        k=self.k
        k(f'v_and_b32 v{tmp}, 3, v{V_LANE}')
        k(f'v_mov_b32 v{S1}, v{SQ}')
        for r in (1,2,3):
            k(f'v_cmp_eq_u32 vcc, {r}, v{tmp}'); k(f'v_cndmask_b32 v{S1}, v{S1}, v{SQ+r}, vcc')
        k(f'v_mov_b32 v{S0}, v{SX}')
    def diag_mask_on(self):
        k=self.k
        k('s_mov_b32 exec_lo, 0x00f0000f'); k('s_mov_b32 exec_hi, 0xf0000f00')
    def reduce_pairs(self, ACC, tmp, base):
        k=self.k
        k('s_mul_i32 s28, s4, 5120')
        k(f's_add_u32 s28, s28, {base}')
        k(f'v_add_u32 v{tmp}, s28, v{V_L16}')
        l1=k.lab('r1'); l2=k.lab('r2')
        k('s_cmp_eq_u32 s5, 1'); k(f's_cbranch_scc1 {l1}')
        for ft in (3,4): k(f'ds_write_b128 v{tmp}, v[{ACC+4*ft}:{ACC+4*ft+3}] offset:{ft*1024}')
        k(f's_branch {l2}')
        k(l1+':')
        for ft in (0,1,2): k(f'ds_write_b128 v{tmp}, v[{ACC+4*ft}:{ACC+4*ft+3}] offset:{ft*1024}')
        for i in range(8): k(f'v_mov_b32 v{ACC+i}, v{ACC+12+i}')
        k(l2+':')
    def reduce_pairs_finish(self, ACC, tmp, T):
        k=self.k
        k('s_mul_i32 s29, s5, 3072')
        k(f'v_add_u32 v{tmp}, s29, v{tmp}')
        for j in range(3): k(f'ds_read_b128 v[{T+4*j}:{T+4*j+3}], v{tmp} offset:{j*1024}')
        k('s_waitcnt lgkmcnt(0)')
        for i in range(12): k(f'v_add_f32 v{ACC+i}, v{ACC+i}, v{T+i}')

    def tile_offsets(self, sbase):
        k=self.k
        k('s_lshl_b32 s28, s6, 2'); k('s_add_u32 s28, s28, s4'); k('s_mul_i32 s28, s28, 20480')
        k('s_mul_i32 s29, s7, 5'); k('s_mul_i32 s30, s5, 3'); k('s_add_u32 s29, s29, s30')
        for j in range(3):
            k(f's_add_u32 s30, s29, {j}'); k('s_lshl_b32 s30, s30, 9')
            k(f's_add_u32 s{sbase+j}, s30, s28')

    def x_loads(self,XF,n,base_const,layer_stride,KS,per_half):
        k=self.k
        k('s_lshl_b32 s28, s6, 2'); k('s_add_u32 s28, s28, s4'); k(f's_mul_i32 s28, s28, {KS}'); k(f's_mul_i32 s29, s5, {per_half}'); k('s_add_u32 s28, s28, s29')
        k('s_lshl_b32 s28, s28, 10')
        if layer_stride:
            k(f's_mul_i32 s29, s12, {layer_stride}'); k('s_add_u32 s28, s28, s29')
        k(f's_add_u32 s28, s28, {base_const}')
        for i in range(n):
            k(f'buffer_load_dwordx4 v[{XF+4*i}:{XF+4*i+3}], v{V_L16}, s[{WS}:{WS+3}], s28 offen offset:{(i%4)*1024} sc1')
            if i%4==3: k('s_add_u32 s28, s28, 4096')

    def kv_flag(self,T):
        k=self.k
        nkf=k.lab('nkf')
        k('s_lshr_b32 s28, s7, 1'); k('s_cmp_lg_u32 s28, s4'); k(f's_cbranch_scc1 {nkf}')
        k('s_waitcnt vmcnt(0)')
        k('s_add_u32 s28, s13, 1'); k(f'v_mov_b32 v{T+5}, s28')
        k('s_lshl_b32 s29, s6, 6'); k('s_lshl_b32 s30, s7, 3'); k('s_add_u32 s29, s29, s30'); k('s_lshl_b32 s30, s5, 2'); k('s_add_u32 s29, s29, s30')
        k(f's_add_u32 s29, s29, {KVFLG}')
        k(f'v_mov_b32 v{T+6}, s29')
        k('s_mov_b64 exec, 1')
        k(f'buffer_store_dword v{T+5}, v{T+6}, s[{WS}:{WS+3}], 0 offen sc1')
        k('s_mov_b64 exec, -1')
        k(nkf+':')
    def kv_first(self,XF,WR,KVA,KVC,ONES,SX,SQ,T):
        k=self.k
        nokv=k.lab('nokv')
        S0,S1=T+2,T+3
        k('s_lshr_b32 s28, s7, 1'); k('s_cmp_lg_u32 s28, s4'); k(f's_cbranch_scc1 {nokv}')
        k(f'v_lshrrev_b32 v{T+4}, 2, v{V_F}'); k(f'v_lshl_add_u32 v{T+4}, v{V_G}, 3, v{T+4}'); k(f'v_mul_u32_u24 v{T+4}, 40, v{T+4}')
        k(f'v_and_b32 v{T+5}, 3, v{V_LANE}'); k(f'v_lshl_add_u32 v{T+4}, v{T+5}, 3, v{T+4}')
        k('s_mul_i32 s28, s5, 12800'); k(f's_add_u32 s28, s28, {L_WKV}'); k(f'v_add_u32 v{T+4}, s28, v{T+4}')
        kvd=k.lab('kvd')
        vl={(v,c):k.lab('kvv') for v in (0,1) for c in (0,1)}
        k('s_and_b32 s28, s7, 1'); k('s_lshl_b32 s28, s28, 1'); k('s_add_u32 s28, s28, s12')
        for idx,(v,c) in enumerate(((0,1),(0,0),(1,1))):
            k(f's_cmp_eq_u32 s28, {idx}'); k(f's_cbranch_scc1 {vl[(v,c)]}')
        k(f's_branch {vl[(1,0)]}')
        for (variant,with_cs),lab in vl.items():
            k(lab+':')
            fr=[]
            for i in range(10):
                for u in range(2):
                    def rd(r,i=i,u=u):
                        k(f'ds_read_b64_tr_b16 v[{r}:{r+1}], v{T+4} offset:{i*1280+u*32}')
                        k(f'ds_read_b64_tr_b16 v[{r+2}:{r+3}], v{T+4} offset:{i*1280+160+u*32}')
                    def mf(r,i=i,u=u,variant=variant,with_cs=with_cs):
                        c=KVA+4*u; cc=KVC+4*u
                        cs='0' if i==0 else f'v[{c}:{c+3}]'; cs2='0' if i==0 else f'v[{cc}:{cc+3}]'
                        X=f'v[{XF+4*i}:{XF+4*i+3}]'; W=f'v[{r}:{r+3}]'; O_=f'v[{ONES}:{ONES+3}]'
                        if variant==0:
                            k(f'v_mfma_f32_16x16x32_bf16 v[{c}:{c+3}], {W}, {X}, {cs}')
                            if with_cs: k(f'v_mfma_f32_16x16x32_bf16 v[{cc}:{cc+3}], {W}, {O_}, {cs2}')
                        else:
                            k(f'v_mfma_f32_16x16x32_bf16 v[{c}:{c+3}], {X}, {W}, {cs}')
                            if with_cs: k(f'v_mfma_f32_16x16x32_bf16 v[{cc}:{cc+3}], {O_}, {W}, {cs2}')
                        if u==0:
                            a0='0' if i==0 else f'v[{SX}:{SX+3}]'
                            k(f'v_mfma_f32_16x16x32_bf16 v[{SX}:{SX+3}], {O_}, {X}, {a0}')
                        else:
                            a0='0' if i==0 else f'v[{SQ}:{SQ+3}]'
                            k(f'v_mfma_f32_16x16x32_bf16 v[{SQ}:{SQ+3}], {X}, {X}, {a0}')
                    fr.append(dict(read=rd,mfma=mf,vm=((9-i) if (u==0 and not with_cs) else None)))
            self.frag_gemm(fr,WR,7,2)
            k(f's_branch {kvd}')
        k(kvd+':')
        self.diag_stats(SX,SQ,S0,S1,T+6)
        k('s_lshl_b32 s28, s4, 8'); k('s_lshl_b32 s29, s5, 7'); k('s_add_u32 s28, s28, s29'); k(f's_add_u32 s28, s28, {L_STAT}')
        k(f'v_lshl_add_u32 v{T+6}, v{V_F}, 3, s28')
        self.diag_mask_on()
        k(f'ds_write_b64 v{T+6}, v[{S0}:{S1}]')
        k('s_mov_b64 exec, -1')
        k(f'v_add_u32 v{T+5}, {L_KVR}, v{V_L16}')
        a=k.lab('ka'); b_=k.lab('kb')
        k('s_cmp_eq_u32 s5, 1'); k(f's_cbranch_scc1 {a}')
        k(f'ds_write_b128 v{T+5}, v[{KVA+4}:{KVA+7}] offset:2048'); k(f'ds_write_b128 v{T+5}, v[{KVC+4}:{KVC+7}] offset:3072')
        k(f's_branch {b_}')
        k(a+':')
        k(f'ds_write_b128 v{T+5}, v[{KVA}:{KVA+3}]'); k(f'ds_write_b128 v{T+5}, v[{KVC}:{KVC+3}] offset:1024')
        for i in range(4):
            k(f'v_mov_b32 v{KVA+i}, v{KVA+4+i}'); k(f'v_mov_b32 v{KVC+i}, v{KVC+4+i}')
        k(b_+':')
        k('s_add_u32 s28, s13, 1'); k(f'v_mov_b32 v{T+6}, s28')
        k('s_lshl_b32 s29, s5, 2'); k(f's_add_u32 s29, s29, {L_PAIRF}'); k(f'v_mov_b32 v{T+7}, s29')
        k('s_waitcnt lgkmcnt(0)')
        k(f'ds_write_b32 v{T+7}, v{T+6}')
        k(f'v_xor_b32 v{T+7}, 4, v{T+7}')
        sp=k.lab('pr'); spd=k.lab('prd')
        k('s_mov_b32 s30, 0')
        k(sp+':')
        k(f'ds_read_b32 v{T+8}, v{T+7}')
        k('s_waitcnt lgkmcnt(0)')
        k(f'v_cmp_eq_u32 vcc, s28, v{T+8}')
        k(f's_cbranch_vccnz {spd}')
        k('s_add_u32 s30, s30, 1'); k('s_cmp_lt_u32 s30, 0x100000'); k(f's_cbranch_scc1 {sp}')
        k(spd+':')
        KW=WR
        k('s_lshl_b32 s28, s5, 11'); k(f's_add_u32 s28, s28, {L_KVR}')
        k(f'v_add_u32 v{T+5}, s28, v{V_L16}')
        k(f'ds_read_b128 v[{KW}:{KW+3}], v{T+5}'); k(f'ds_read_b128 v[{KW+4}:{KW+7}], v{T+5} offset:1024')
        k('s_lshl_b32 s28, s4, 8'); k(f's_add_u32 s28, s28, {L_STAT}')
        k(f'v_lshl_add_u32 v{T+6}, v{V_F}, 3, s28')
        k(f'ds_read_b64 v[{T+10}:{T+11}], v{T+6}'); k(f'ds_read_b64 v[{T+12}:{T+13}], v{T+6} offset:128')
        k('s_lshl_b32 s28, s5, 10'); k(f's_add_u32 s28, s28, {L_KVCS}'); k(f'v_add_u32 v{T+7}, s28, v{V_L16}')
        c0=k.lab('c0'); c1=k.lab('c1')
        k('s_cmp_eq_u32 s12, 0'); k(f's_cbranch_scc1 {c0}')
        k(f'ds_read_b128 v[{KVC}:{KVC+3}], v{T+7}')
        k('s_waitcnt lgkmcnt(0)')
        k(f's_branch {c1}')
        k(c0+':')
        k('s_waitcnt lgkmcnt(0)')
        for i in range(4): k(f'v_add_f32 v{KVC+i}, v{KVC+i}, v{KW+4+i}')
        k(f'ds_write_b128 v{T+7}, v[{KVC}:{KVC+3}]')
        k(c1+':')
        for i in range(4): k(f'v_add_f32 v{KVA+i}, v{KVA+i}, v{KW+i}')
        MEAN,RSTD=T+14,T+15
        k(f'v_add_f32 v{T+10}, v{T+10}, v{T+12}'); k(f'v_add_f32 v{T+11}, v{T+11}, v{T+13}')
        k(f'v_mul_f32 v{MEAN}, {hex(f2u(1/640))}, v{T+10}'); k(f'v_mul_f32 v{T+11}, {hex(f2u(1/640))}, v{T+11}')
        k(f'v_fma_f32 v{T+11}, -v{MEAN}, v{MEAN}, v{T+11}'); k(f'v_max_f32 v{T+11}, 0, v{T+11}')
        k(f'v_add_f32 v{T+11}, {hex(f2u(1e-5))}, v{T+11}'); k(f'v_rsq_f32 v{RSTD}, v{T+11}')
        k(f'v_mul_f32 v{MEAN}, v{MEAN}, v{RSTD}')
        k('s_lshl_b32 s30, s6, 6'); k('s_lshl_b32 s31, s4, 4'); k('s_add_u32 s30, s30, s31')
        k('s_lshr_b32 s31, s30, 5'); k('s_mul_i32 s31, s31, 3584')
        k(f's_mul_i32 s32, s12, {KV_D}'); k('s_add_u32 s31, s31, s32'); k(f's_add_u32 s31, s31, {KVB[0]}')
        k('s_lshr_b32 s32, s30, 4'); k('s_and_b32 s32, s32, 1')
        isv2=k.lab('isv2')
        k('s_and_b32 s28, s7, 1'); k('s_cmp_eq_u32 s28, 1'); k(f's_cbranch_scc1 {isv2}')
        for i in range(4):
            k(f'v_mul_f32 v{KVA+i}, v{KVA+i}, v{RSTD}'); k(f'v_fma_f32 v{KVA+i}, -v{MEAN}, v{KVC+i}, v{KVA+i}')
        k('s_lshl_b32 s28, s5, 2'); k(f'v_add_u32 v{T+6}, s28, v{V_G}')
        k(f'v_cmp_eq_u32 vcc, 5, v{T+6}')
        for i in range(4): k(f'v_cndmask_b32 v{KVA+i}, v{KVA+i}, 0, vcc')
        k(f'v_cvt_pk_bf16_f32 v{KVA}, v{KVA}, v{KVA+1}'); k(f'v_cvt_pk_bf16_f32 v{KVA+1}, v{KVA+2}, v{KVA+3}')
        k('s_lshl_b32 s28, s32, 4'); k(f'v_add_u32 v{T+7}, s28, v{V_F}')
        k(f'v_lshrrev_b32 v{T+8}, 1, v{T+6}'); k(f'v_lshlrev_b32 v{T+8}, 9, v{T+8}')
        k(f'v_lshl_add_u32 v{T+8}, v{T+7}, 4, v{T+8}')
        k(f'v_and_b32 v{T+9}, 1, v{T+6}'); k(f'v_lshl_add_u32 v{T+8}, v{T+9}, 3, v{T+8}')
        k(f'v_subrev_u32 v{T+9}, 4, v{T+6}'); k(f'v_lshlrev_b32 v{T+9}, 8, v{T+9}')
        k(f'v_lshl_add_u32 v{T+9}, v{T+7}, 3, v{T+9}'); k(f'v_add_u32 v{T+9}, 3072, v{T+9}')
        k(f'v_cmp_gt_u32 vcc, 4, v{T+6}'); k(f'v_cndmask_b32 v{T+8}, v{T+9}, v{T+8}, vcc')
        k(f'v_cmp_gt_u32 vcc, 6, v{T+6}'); k(f'v_mov_b32 v{T+9}, {OOB}'); k(f'v_cndmask_b32 v{T+8}, v{T+9}, v{T+8}, vcc')
        k(f'buffer_store_dwordx2 v[{KVA}:{KVA+1}], v{T+8}, s[{WS}:{WS+3}], s31 offen sc1')
        k(f's_branch {nokv}')
        k(isv2+':')
        k('s_lshl_b32 s28, s4, 8'); k(f's_add_u32 s28, s28, {L_STAT}')
        k(f'v_lshl_add_u32 v{T+6}, v{V_G}, 5, s28')
        Y=WR+8
        k(f'ds_read_b128 v[{Y}:{Y+3}], v{T+6}'); k(f'ds_read_b128 v[{Y+4}:{Y+7}], v{T+6} offset:16')
        k(f'ds_read_b128 v[{Y+8}:{Y+11}], v{T+6} offset:128'); k(f'ds_read_b128 v[{Y+12}:{Y+15}], v{T+6} offset:144')
        k('s_waitcnt lgkmcnt(0)')
        for i in range(4):
            s_,q_=Y+2*i,Y+2*i+1
            k(f'v_add_f32 v{s_}, v{s_}, v{s_+8}'); k(f'v_add_f32 v{q_}, v{q_}, v{q_+8}')
            k(f'v_mul_f32 v{s_}, {hex(f2u(1/640))}, v{s_}'); k(f'v_mul_f32 v{q_}, {hex(f2u(1/640))}, v{q_}')
            k(f'v_fma_f32 v{q_}, -v{s_}, v{s_}, v{q_}'); k(f'v_max_f32 v{q_}, 0, v{q_}'); k(f'v_add_f32 v{q_}, {hex(f2u(1e-5))}, v{q_}')
            k(f'v_rsq_f32 v{q_}, v{q_}')
            k(f'v_fma_f32 v{KVA+i}, -v{s_}, v{KVC+i}, v{KVA+i}')
            k(f'v_mul_f32 v{KVA+i}, v{KVA+i}, v{q_}')
        k('s_lshl_b32 s28, s5, 4'); k(f'v_add_u32 v{T+6}, s28, v{V_F}')
        k(f'v_cmp_eq_u32 vcc, 20, v{T+6}')
        for i in range(4): k(f'v_cndmask_b32 v{KVA+i}, v{KVA+i}, 1.0, vcc')
        k(f'v_cmp_lt_u32 vcc, 20, v{T+6}')
        for i in range(4): k(f'v_cndmask_b32 v{KVA+i}, v{KVA+i}, 0, vcc')
        k(f'v_cvt_pk_bf16_f32 v{KVA}, v{KVA}, v{KVA+1}'); k(f'v_cvt_pk_bf16_f32 v{KVA+1}, v{KVA+2}, v{KVA+3}')
        k('s_lshl_b32 s28, s32, 10'); k('s_add_u32 s28, s28, 1024')
        k(f'v_and_b32 v{T+7}, 1, v{V_G}'); k(f'v_lshlrev_b32 v{T+7}, 9, v{T+7}')
        k(f'v_lshl_add_u32 v{T+7}, v{T+6}, 4, v{T+7}')
        k(f'v_lshrrev_b32 v{T+8}, 1, v{V_G}'); k(f'v_lshl_add_u32 v{T+7}, v{T+8}, 3, v{T+7}')
        k(f'v_add_u32 v{T+7}, s28, v{T+7}')
        k(f'buffer_store_dwordx2 v[{KVA}:{KVA+1}], v{T+7}, s[{WS}:{WS+3}], s31 offen sc1')
        k(nokv+':')

    def phase_qkv(self):
        k=self.k
        XF,WR,ACC,CSA,KVA,KVC,ONES,T=24,64,96,116,124,132,140,144
        SX,SQ=176,180
        l0=k.lab('x0'); l1=k.lab('x1')
        for i in range(4): k(f'v_mov_b32 v{ONES+i}, 0x3f803f80')
        k('s_cmp_eq_u32 s12, 0'); k(f's_cbranch_scc1 {l0}')
        self.x_loads(XF,10,X2B,0,20,10)
        k('s_waitcnt vmcnt(9)')
        k('s_barrier')
        k(f's_branch {l1}')
        k(l0+':')
        nk=k.lab('nk'); pl=k.lab('npl'); pd=k.lab('npd')
        k('s_lshr_b32 s28, s7, 1'); k('s_cmp_lg_u32 s28, s4'); k(f's_cbranch_scc1 {nk}')
        k('v_mov_b32 v200, 0'); k('s_mov_b32 s30, 0')
        k(pl+':')
        k('buffer_load_dword v201, v200, s[60:63], 0 offen sc1')
        k('s_waitcnt vmcnt(0)')
        k('v_cmp_eq_u32 vcc, 0, v201')
        k(f's_cbranch_vccz {pd}')
        k('s_add_u32 s30, s30, 1'); k('s_cmp_lt_u32 s30, 0x40000'); k(f's_cbranch_scc1 {pl}')
        k(pd+':')
        k('v_readfirstlane_b32 s13, v201')
        k(f'v_mov_b32 v200, {L_NONCE}')
        k('ds_write_b32 v200, v201')
        k(nk+':')
        k(l1+':')
        self.mark("q.start")
        self.kv_first(XF,WR,KVA,KVC,ONES,SX,SQ,T)
        self.mark("q.kv")
        l2=k.lab('l2')
        k('s_cmp_lg_u32 s12, 0'); k(f's_cbranch_scc1 {l2}')
        k('s_waitcnt vmcnt(0)')
        self.kv_flag(T)
        k('s_waitcnt lgkmcnt(0)')
        k('s_barrier')
        k(f'v_mov_b32 v200, {L_NONCE}')
        k('ds_read_b32 v201, v200')
        k('s_waitcnt lgkmcnt(0)')
        k('v_readfirstlane_b32 s13, v201')
        self.conv_issue(L_RED,self.CONV_A+self.CONV_B)
        k(l2+':')
        vA,vC=T,T+1
        S0,S1=T+2,T+3
        k('s_mul_i32 s28, s5, 51200')
        k(f'v_add_u32 v{vA}, s28, v{V_TR}')
        k('s_lshl_b32 s29, s4, 5')
        k(f'v_add_u32 v{vC}, s29, v{vA}')
        def stat_mfma(i,ft):
            X=f'v[{XF+4*i}:{XF+4*i+3}]'
            if ft==0:
                cs='0' if i==0 else f'v[{SX}:{SX+3}]'
                k(f'v_mfma_f32_16x16x32_bf16 v[{SX}:{SX+3}], v[{ONES}:{ONES+3}], {X}, {cs}')
            if ft==2:
                cs='0' if i==0 else f'v[{SQ}:{SQ+3}]'
                k(f'v_mfma_f32_16x16x32_bf16 v[{SQ}:{SQ+3}], {X}, {X}, {cs}')
        def mk(with_cs):
            fr=[]
            if not with_cs:
                k('s_mul_i32 s28, s5, 10240'); k(f'v_add_u32 v{vA}, s28, v{V_L16}'); k(f'v_add_u32 v{vC}, 61440, v{vA}')
                for i in range(10):
                    for ft in range(5):
                        va,imm=(vA,ft*20480+i*1024) if ft<3 else (vC,(ft-3)*20480+i*1024)
                        def rd(r,va=va,imm=imm): k(f'ds_read_b128 v[{r}:{r+3}], v{va} offset:{imm}')
                        def mf(r,i=i,ft=ft):
                            c=ACC+4*ft; cs='0' if i==0 else f'v[{c}:{c+3}]'
                            k(f'v_mfma_f32_16x16x32_bf16 v[{c}:{c+3}], v[{r}:{r+3}], v[{XF+4*i}:{XF+4*i+3}], {cs}')
                            stat_mfma(i,ft)
                        fr.append(dict(read=rd,mfma=mf,vm=(9-i) if ft==0 else None))
                self.frag_gemm(fr,WR,7,1)
                return
            for i in range(10):
                for ft in range(5):
                    def rd(r,i=i,ft=ft):
                        k(f'ds_read_b64_tr_b16 v[{r}:{r+1}], v{vA} offset:{i*5120+ft*32}')
                        k(f'ds_read_b64_tr_b16 v[{r+2}:{r+3}], v{vA} offset:{i*5120+1280+ft*32}')
                    def mf(r,i=i,ft=ft):
                        c=ACC+4*ft; cs='0' if i==0 else f'v[{c}:{c+3}]'
                        k(f'v_mfma_f32_16x16x32_bf16 v[{c}:{c+3}], v[{r}:{r+3}], v[{XF+4*i}:{XF+4*i+3}], {cs}')
                        if ft==4:
                            cs='0' if i==0 else f'v[{CSA+4}:{CSA+7}]'
                            k(f'v_mfma_f32_16x16x32_bf16 v[{CSA+4}:{CSA+7}], v[{r}:{r+3}], v[{ONES}:{ONES+3}], {cs}')
                        stat_mfma(i,ft)
                    fr.append(dict(read=rd,mfma=mf))
                def rd(r,i=i):
                    k(f'ds_read_b64_tr_b16 v[{r}:{r+1}], v{vC} offset:{i*5120}')
                    k(f'ds_read_b64_tr_b16 v[{r+2}:{r+3}], v{vC} offset:{i*5120+1280}')
                def mf(r,i=i):
                    cs='0' if i==0 else f'v[{CSA}:{CSA+3}]'
                    k(f'v_mfma_f32_16x16x32_bf16 v[{CSA}:{CSA+3}], v[{r}:{r+3}], v[{ONES}:{ONES+3}], {cs}')
                fr.append(dict(read=rd,mfma=mf))
            self.frag_gemm(fr,WR,7,2)
        m1=k.lab('m1'); m2=k.lab('m2')
        k('s_cmp_eq_u32 s12, 0'); k(f's_cbranch_scc0 {m1}')
        mk(True)
        k('s_mul_i32 s28, s5, 320'); k(f's_add_u32 s28, s28, {L_CS}')
        k(f'v_lshl_add_u32 v{T+7}, v{V_G}, 4, s28')
        k('s_lshl_b32 s29, s4, 6'); k(f'v_add_u32 v{T+8}, s29, v{T+7}')
        k(f'ds_write_b128 v{T+8}, v[{CSA}:{CSA+3}]')
        k(f'ds_write_b128 v{T+7}, v[{CSA+4}:{CSA+7}] offset:256')
        k(f's_branch {m2}')
        k(m1+':')
        mk(False)
        k(m2+':')
        self.mark("q.main")
        l3=k.lab('l3'); l4=k.lab('l4')
        k('s_cmp_eq_u32 s12, 0'); k(f's_cbranch_scc1 {l3}')
        self.kv_flag(T)
        k(f's_mov_b32 s43, {L_RED}')
        k(f's_branch {l4}')
        k(l3+':')
        k('s_waitcnt vmcnt(0)')
        self.conv_finish(200,L_RED)
        k(f's_mov_b32 s43, {L_WKV}')
        k(l4+':')
        self.mark("q.mm")
        self.diag_stats(SX,SQ,S0,S1,T+6)
        k('s_lshl_b32 s28, s4, 8'); k('s_lshl_b32 s29, s5, 7'); k('s_add_u32 s28, s28, s29'); k(f's_add_u32 s28, s28, {L_STAT}')
        k(f'v_lshl_add_u32 v{T+6}, v{V_F}, 3, s28')
        self.diag_mask_on()
        k(f'ds_write_b64 v{T+6}, v[{S0}:{S1}]')
        k('s_mov_b64 exec, -1')
        self.reduce_pairs(ACC,T+9,'s43')
        k('s_waitcnt lgkmcnt(0)')
        k('s_barrier')
        Z=XF
        k('s_lshl_b32 s28, s4, 8'); k(f's_add_u32 s28, s28, {L_STAT}')
        k(f'v_lshl_add_u32 v{T+6}, v{V_F}, 3, s28')
        k(f'ds_read_b64 v[{T+10}:{T+11}], v{T+6}'); k(f'ds_read_b64 v[{T+12}:{T+13}], v{T+6} offset:128')
        k('s_mul_i32 s28, s5, 192'); k(f's_add_u32 s28, s28, {L_CS}')
        k(f'v_lshl_add_u32 v{T+7}, v{V_G}, 4, s28')
        CS0=Z+12
        for j in range(3):
            k(f'ds_read_b128 v[{CS0+8*j}:{CS0+8*j+3}], v{T+7} offset:{j*64}')
            k(f'ds_read_b128 v[{CS0+8*j+4}:{CS0+8*j+7}], v{T+7} offset:{320+j*64}')
        self.reduce_pairs_finish(ACC,T+9,Z)
        MEAN,RSTD=T+14,T+15
        k(f'v_add_f32 v{T+10}, v{T+10}, v{T+12}'); k(f'v_add_f32 v{T+11}, v{T+11}, v{T+13}')
        k(f'v_mul_f32 v{MEAN}, {hex(f2u(1/640))}, v{T+10}'); k(f'v_mul_f32 v{T+11}, {hex(f2u(1/640))}, v{T+11}')
        k(f'v_fma_f32 v{T+11}, -v{MEAN}, v{MEAN}, v{T+11}'); k(f'v_max_f32 v{T+11}, 0, v{T+11}')
        k(f'v_add_f32 v{T+11}, {hex(f2u(1e-5))}, v{T+11}'); k(f'v_rsq_f32 v{RSTD}, v{T+11}')
        k(f'v_mul_f32 v{MEAN}, v{MEAN}, v{RSTD}')
        k(f'v_mul_f32 v{T+16}, {hex(f2u(QSCALE))}, v{RSTD}'); k(f'v_mul_f32 v{T+17}, {hex(f2u(QSCALE))}, v{MEAN}')
        k('s_lshl_b32 s28, s4, 4'); k(f'v_add_u32 v{T+18}, s28, v{V_F}'); k(f'v_mul_u32_u24 v{T+18}, 160, v{T+18}')
        k(f'v_lshl_add_u32 v{T+18}, v{V_G}, 3, v{T+18}')
        k('s_mul_i32 s28, s5, 96'); k(f's_add_u32 s28, s28, {L_QL}'); k(f'v_add_u32 v{T+18}, s28, v{T+18}')
        for j in range(3):
            if j==2:
                q3=k.lab('q3'); k('s_cmp_eq_u32 s5, 1'); k(f's_cbranch_scc1 {q3}')
            for i in range(4):
                r=ACC+4*j+i
                k(f'v_add_f32 v{CS0+8*j+i}, v{CS0+8*j+i}, v{CS0+8*j+4+i}')
                k(f'v_mul_f32 v{r}, v{r}, v{T+16}'); k(f'v_fma_f32 v{r}, -v{T+17}, v{CS0+8*j+i}, v{r}')
            k(f'v_cvt_pk_bf16_f32 v{ACC+4*j}, v{ACC+4*j}, v{ACC+4*j+1}'); k(f'v_cvt_pk_bf16_f32 v{ACC+4*j+1}, v{ACC+4*j+2}, v{ACC+4*j+3}')
            k(f'ds_write_b64 v{T+18}, v[{ACC+4*j}:{ACC+4*j+1}] offset:{j*32}')
            if j==2: k(q3+':')
        k('s_waitcnt lgkmcnt(0)')
        self.mark("q.epi")
        self.publish(1)
        self.mark("q.pub")

    def phase_attn(self):
        k=self.k
        D=4; SL=14
        Q1=[24,30]; Q2=[28,34]
        S=[36,52]; O=[68,84]; P=100
        KB=108
        K1=lambda s: KB+s*SL
        V=lambda s: KB+s*SL+4
        K2=lambda s: KB+s*SL+12
        T=KB+D*SL
        VL8=T; NEG=[176,192]
        k(f'v_mul_u32_u24 v{T+1}, 160, v{V_L31}')
        k('s_mul_i32 s28, s4, 40'); k(f's_add_u32 s28, s28, {L_QL}')
        k(f'v_add_u32 v{T+1}, s28, v{T+1}')
        k(f'v_lshl_add_u32 v{T+2}, v{V_H}, 4, v{T+1}')
        for q in range(2):
            k(f'ds_read_b64 v[{Q1[q]}:{Q1[q]+1}], v{T+2} offset:{q*5120}')
            k(f'ds_read_b64 v[{Q1[q]+2}:{Q1[q]+3}], v{T+2} offset:{q*5120+8}')
            k(f'ds_read_b64 v[{Q2[q]}:{Q2[q]+1}], v{T+1} offset:{q*5120+32}')
        k(f'v_lshlrev_b32 v{VL8}, 3, v{V_LANE}')
        k('s_waitcnt lgkmcnt(0)')
        k(f'v_cmp_eq_u32 vcc, 0, v{V_H}')
        for q in range(2):
            for i in range(2): k(f'v_cndmask_b32 v{Q2[q]+i}, 0, v{Q2[q]+i}, vcc')
        self.mark("a.dma")
        VFA,VF=T+6,T+7
        k(f'v_lshlrev_b32 v{VFA}, 2, v{V_LANE}'); k(f'v_add_u32 v{VFA}, {KVFLG}, v{VFA}')
        k('s_add_u32 s38, s13, 1')
        k('s_lshr_b32 s39, s6, 2')
        def spin_group(sg):
            lp=k.lab('sg'); dn=k.lab('sgd')
            k(f's_lshl_b32 s28, s{sg}, 8'); k('s_mov_b32 s30, 0')
            k(lp+':')
            k(f'buffer_load_dword v{VF}, v{VFA}, s[{WS}:{WS+3}], s28 offen sc1')
            k('s_waitcnt vmcnt(0)')
            k(f'v_subrev_u32 v{VF}, s38, v{VF}')
            k(f'v_cmp_le_u32 vcc, 32, v{VF}')
            k(f's_cbranch_vccz {dn}')
            k('s_sleep 2')
            k('s_add_u32 s30, s30, 1'); k('s_cmp_lt_u32 s30, 0x40000'); k(f's_cbranch_scc1 {lp}')
            k(dn+':')
        k(f'v_mov_b32 v{T+8}, {L_BADF}'); k(f'v_mov_b32 v{T+9}, 0'); k(f'ds_write_b32 v{T+8}, v{T+9}')
        k('s_mov_b32 s49, 0')
        k('s_waitcnt lgkmcnt(0)')
        pw=k.lab('pw')
        k(f's_cmp_lg_u32 s3, {POLLW}'); k(f's_cbranch_scc1 {pw}')
        spin_group(39)
        k(pw+':')
        k('s_barrier')
        self.mark("a.wait")
        def ld(slot):
            k(f'buffer_load_dwordx4 v[{K1(slot)}:{K1(slot)+3}], v{V_L16}, s[{WS}:{WS+3}], s32 offen sc1')
            k(f'buffer_load_dwordx2 v[{K2(slot)}:{K2(slot)+1}], v{VL8}, s[{WS}:{WS+3}], s32 offen offset:3072 sc1')
            k(f'buffer_load_dwordx4 v[{V(slot)}:{V(slot)+3}], v{V_L16}, s[{WS}:{WS+3}], s32 offen offset:1024 sc1')
            k(f'buffer_load_dwordx4 v[{V(slot)+4}:{V(slot)+7}], v{V_L16}, s[{WS}:{WS+3}], s32 offen offset:2048 sc1')
            k('s_add_u32 s32, s32, 7168')
        def run_loop(exact,prefetch):
            def qk1(q,s):
                c = f'v[{NEG[q]}:{NEG[q]+15}]' if exact else '0'
                k(f'v_mfma_f32_32x32x16_bf16 v[{S[q]}:{S[q]+15}], v[{K1(s)}:{K1(s)+3}], v[{Q1[q]}:{Q1[q]+3}], {c}')
            def qk2(q,s): k(f'v_mfma_f32_32x32x8_bf16 v[{S[q]}:{S[q]+15}], v[{K2(s)}:{K2(s)+1}], v[{Q2[q]}:{Q2[q]+1}], v[{S[q]}:{S[q]+15}]')
            def pv(q,s,hf): k(f'v_mfma_f32_32x32x16_bf16 v[{O[q]}:{O[q]+15}], v[{V(s)+4*hf}:{V(s)+4*hf+3}], v[{P+4*hf}:{P+4*hf+3}], v[{O[q]}:{O[q]+15}]')
            def ex(q,a):
                for i in range(a,a+4): k(f'v_exp_f32 v{S[q]+i}, v{S[q]+i}')
            def cv(q,a):
                k(f'v_cvt_pk_bf16_f32 v{P+a//2}, v{S[q]+a}, v{S[q]+a+1}')
                k(f'v_cvt_pk_bf16_f32 v{P+a//2+1}, v{S[q]+a+2}, v{S[q]+a+3}')
            k(f's_mul_i32 s33, s12, {KV_D}'); k(f's_add_u32 s33, s33, {KVB[0]}')
            k('s_mul_i32 s28, s5, 3584'); k('s_add_u32 s33, s33, s28')
            k(f's_mul_i32 s28, s39, {8*3584}'); k('s_add_u32 s32, s33, s28')
            k(f's_add_u32 s33, s33, {64*3584}')
            def fload():
                k('s_add_u32 s45, s45, 1'); k('s_and_b32 s45, s45, 7'); k('s_lshl_b32 s46, s45, 8')
                k(f'buffer_load_dword v{VF}, v{VFA}, s[{WS}:{WS+3}], s46 offen sc1')
            def fcheck():
                ok=k.lab('fok')
                k(f'v_subrev_u32 v{VF}, s38, v{VF}')
                k(f'v_cmp_le_u32 vcc, 32, v{VF}')
                k(f's_cbranch_vccz {ok}')
                spin_group(44)
                k(ok+':')
                k('s_cmp_ge_u32 s32, s33'); k(f's_cselect_b32 s28, {64*3584}, 0'); k('s_sub_u32 s32, s32, s28')
            k('s_mov_b32 s45, s39')
            fload(); k('s_mov_b32 s44, s45')
            for t in range(D-1): ld(t)
            for q in range(2):
                for i in range(16): k(f'v_mov_b32 v{O[q]+i}, 0')
            for i in range(4,8): k(f'v_mov_b32 v{P+i}, 0')
            for i in range(4,8): k(f'v_mov_b32 v{V(D-1)+i}, 0')
            k(f's_waitcnt vmcnt({4*(D-2)})')
            qk1(0,0); qk2(0,0)
            k('s_nop 7')
            spf = prefetch and 'spf' in os.environ.get('XP','')
            def body(dma, w1=None, prev_ops=None):
                ops=[]
                PR=os.environ.get('PRIO','')
                if PR=='alt':
                    pa=k.lab('pa'); pb=k.lab('pb')
                    k('s_add_u32 s47, s34, s5'); k('s_and_b32 s47, s47, 1'); k('s_cmp_eq_u32 s47, 0'); k(f's_cbranch_scc1 {pa}')
                    k('s_setprio 1'); k(f's_branch {pb}'); k(pa+':'); k('s_setprio 0'); k(pb+':')
                for t in range(D):
                    s=t; sn=(t+1)%D; sp=(t-1)%D
                    n=4
                    qk1(1,s); ex(0,0); pv(1,sp,1)
                    if t==1: fcheck()
                    if t==2:
                        fload(); n+=1
                    if dma and 'nowof' not in os.environ.get('XP',''):
                        k('s_min_u32 m0, s35, 101376')
                        k('s_add_u32 s37, s36, m0')
                        k(f'buffer_load_dwordx4 v{V_L16}, s[{WS}:{WS+3}], s37 offen sc1 lds')
                        k('s_add_u32 s35, s35, 8192'); n+=1
                    if w1 is not None:
                        for e in range(2): self.f1_wload(w1+2*t+e)
                        n+=2
                    ld(sp)
                    if t==2: k('s_mov_b32 s44, s45')
                    ex(0,4); cv(0,0); qk2(1,s); cv(0,4); ex(0,8); pv(0,s,0); ex(0,12); cv(0,8); cv(0,12)
                    ops.append(n)
                    if t>0: nv=ops[t-1]+ops[t]
                    elif prev_ops is not None: nv=prev_ops+ops[0]
                    else: nv=4+ops[0]
                    k(f's_waitcnt vmcnt({nv})')
                    qk1(0,sn); ex(1,0); pv(0,s,1); ex(1,4); cv(1,0); qk2(0,sn); cv(1,4); ex(1,8); pv(1,s,0); ex(1,12); cv(1,8); cv(1,12)
                return ops[-1]
            if spf:
                k('s_and_b32 s28, s6, 3'); k('s_lshl_b32 s28, s28, 3'); k('s_add_u32 s28, s28, s7'); k('s_lshl_b32 s28, s28, 3'); k('s_add_u32 s28, s28, s3')
                k('s_lshl_b32 s28, s28, 13'); k(f's_add_u32 s28, s28, {W1F}')
                k('s_add_u32 s62, s86, s28'); k('s_addc_u32 s63, s87, 0')
            if os.environ.get('PRIO','')=='young':
                py=k.lab('py'); k('s_cmp_eq_u32 s5, 0'); k(f's_cbranch_scc1 {py}'); k('s_setprio 1'); k(py+':')
            k('s_mov_b32 s34, 0')
            L1=k.lab('al'); k(L1+':')
            body(False)
            k('s_add_u32 s34, s34, 1'); k('s_cmp_lt_u32 s34, 4'); k(f's_cbranch_scc1 {L1}')
            if prefetch:
                nw=k.lab('nw')
                k('s_cmp_lg_u32 s12, 0'); k(f's_cbranch_scc1 {nw}')
                lw=k.lab('lw'); lwd=k.lab('lwd')
                k(f'v_lshrrev_b32 v208, 1, v{V_LANE}'); k('v_lshlrev_b32 v208, 6, v208')
                k(f'v_and_b32 v209, 1, v{V_LANE}'); k('v_lshl_add_u32 v208, v209, 4, v208')
                k('s_mov_b32 s30, 0')
                k(lw+':')
                k(f'buffer_load_dwordx4 v[212:215], v208, s[{WS}:{WS+3}], 0 offen offset:{FLG} sc1')
                k('s_waitcnt vmcnt(0)')
                for r in (212,213,214,215): k(f'v_subrev_u32 v{r}, s38, v{r}')
                k('v_max_u32 v212, v212, v213'); k('v_max_u32 v214, v214, v215'); k('v_max_u32 v212, v212, v214')
                k('v_cmp_le_u32 vcc, 32, v212')
                k(f's_cbranch_vccz {lwd}')
                k('s_add_u32 s30, s30, 1'); k('s_cmp_lt_u32 s30, 0x40000'); k(f's_cbranch_scc1 {lw}')
                k(lwd+':')
                k(nw+':')
                k('s_lshl_b32 s35, s3, 10')
                k(f's_mul_i32 s36, s7, 102400'); k(f's_add_u32 s36, s36, {WOF}')
            L2=k.lab('bl'); k(L2+':')
            last=body(prefetch)
            UNR=2 if (prefetch and self.F1R) else 0
            k('s_add_u32 s34, s34, 1'); k(f's_cmp_lt_u32 s34, {8-UNR}'); k(f's_cbranch_scc1 {L2}')
            if UNR:
                k('s_min_u32 s42, s40, 53'); k('s_mul_i32 s42, s42, 40960'); k(f's_add_u32 s42, s42, {W1F}')
                last=body(True,w1=0,prev_ops=last)
                body(True,w1=8,prev_ops=last)
            pv(1,D-1,1)
            if os.environ.get('PRIO',''): k('s_setprio 0')
            k('s_waitcnt vmcnt(0)')
        run_loop(False,True)
        self.mark("a.loop")
        COMBINE=k.lab('combine'); FALLBACK=k.lab('fallback')
        k(COMBINE+':')
        k('s_nop 7'); k('s_nop 7')
        c1=k.lab('c1'); c2=k.lab('c2')
        k('s_mul_i32 s28, s3, 3072'); k(f's_add_u32 s28, s28, {L_COMB}')
        k(f'v_add_u32 v{T+1}, s28, v{V_L16}')
        k('s_xor_b32 s29, s3, 4'); k('s_mul_i32 s29, s29, 3072'); k(f's_add_u32 s29, s29, {L_COMB}')
        k(f'v_add_u32 v{T+2}, s29, v{V_L16}')
        k('s_cmp_eq_u32 s5, 1'); k(f's_cbranch_scc1 {c1}')
        for r in range(3): k(f'ds_write_b128 v{T+1}, v[{O[1]+4*r}:{O[1]+4*r+3}] offset:{r*1024}')
        k(f's_branch {c2}')
        k(c1+':')
        for r in range(3): k(f'ds_write_b128 v{T+1}, v[{O[0]+4*r}:{O[0]+4*r+3}] offset:{r*1024}')
        for i in range(12): k(f'v_mov_b32 v{O[0]+i}, v{O[1]+i}')
        k(c2+':')
        k('s_waitcnt lgkmcnt(0)')
        k('s_barrier')
        for r in range(3): k(f'ds_read_b128 v[{S[1]+4*r}:{S[1]+4*r+3}], v{T+2} offset:{r*1024}')
        k('s_waitcnt lgkmcnt(0)')
        self.mark("a.comb")
        Oq=O[0]
        for i in range(12): k(f'v_add_f32 v{Oq+i}, v{Oq+i}, v{S[1]+i}')
        k(f'v_mov_b32 v{T+3}, v{Oq+8}'); k(f'v_mov_b32 v{T+4}, v{Oq+8}')
        k(f'v_permlane32_swap_b32 v{T+3}, v{T+4}')
        k(f'v_add_f32 v{T+3}, abs(v{Oq}), abs(v{Oq+1})')
        for i in range(2,12): k(f'v_add_f32 v{T+3}, abs(v{Oq+i}), v{T+3}')
        k(f's_mov_b32 s28, {hex(f2u(2.0**-30))}'); k(f's_mov_b32 s29, {hex(f2u(2.0**60))}'); k(f's_mov_b32 s30, {hex(f2u(2.0**120))}')
        k(f'v_cmp_nle_f32 s[44:45], s28, v{T+4}')
        k(f'v_cmp_nge_f32 s[46:47], s29, v{T+4}')
        k(f'v_cmp_ngt_f32 vcc, s30, v{T+3}')
        k('s_or_b64 s[44:45], s[44:45], s[46:47]'); k('s_or_b64 vcc, vcc, s[44:45]')
        okl=k.lab('okl')
        k(f's_cbranch_vccz {okl}')
        k(f'v_mov_b32 v{T+8}, {L_BADF}'); k(f'v_mov_b32 v{T+9}, 1'); k(f'ds_write_b32 v{T+8}, v{T+9}')
        k(okl+':')
        k(f'v_rcp_f32 v{T+4}, v{T+4}')
        for i in range(12): k(f'v_mul_f32 v{Oq+i}, v{Oq+i}, v{T+4}')
        PK=S[0]
        for p in range(6): k(f'v_cvt_pk_bf16_f32 v{PK+p}, v{Oq+2*p}, v{Oq+2*p+1}')
        k('s_mul_i32 s28, s4, 5')
        k(f'v_add_u32 v{T+5}, s28, v{V_H}')
        k(f'v_lshrrev_b32 v{T+6}, 4, v{V_L31}'); k('s_lshl_b32 s29, s5, 1'); k(f'v_add_u32 v{T+6}, s29, v{T+6}')
        k(f'v_mul_u32_u24 v{T+6}, 2560, v{T+6}'); k(f'v_lshl_add_u32 v{T+6}, v{V_F}, 4, v{T+6}'); k(f'v_add_u32 v{T+6}, {L_OIMG}, v{T+6}')
        for pc in range(3):
            g_=T+7
            if pc==0: k(f'v_mov_b32 v{g_}, v{T+5}')
            elif pc==1: k(f'v_add_u32 v{g_}, 2, v{T+5}')
            else:
                k(f'v_mov_b32 v{g_}, s28'); k(f'v_add_u32 v{g_}, 4, v{g_}')
            k(f'v_lshrrev_b32 v{T+8}, 1, v{g_}'); k(f'v_lshlrev_b32 v{T+8}, 8, v{T+8}')
            k(f'v_and_b32 v{T+9}, 1, v{g_}'); k(f'v_lshl_add_u32 v{T+8}, v{T+9}, 3, v{T+8}')
            k(f'v_add_u32 v{T+8}, v{T+8}, v{T+6}')
            if pc==2:
                k('s_mov_b32 exec_hi, 0')
            k(f'ds_write_b64 v{T+8}, v[{PK+2*pc}:{PK+2*pc+1}]')
            if pc==2: k('s_mov_b64 exec, -1')
        k('s_waitcnt lgkmcnt(0)')
        k('s_barrier')
        k(f'v_mov_b32 v{T+8}, {L_BADF}'); k(f'ds_read_b32 v{T+9}, v{T+8}')
        k('s_waitcnt lgkmcnt(0)')
        k(f'v_readfirstlane_b32 s28, v{T+9}')
        k('s_lshl_b32 s29, s49, 1'); k('s_cmp_gt_u32 s28, s29')
        k(f's_cbranch_scc1 {FALLBACK}')
        k(f's_mul_i32 s31, s12, {OF_D}'); k(f's_add_u32 s31, s31, {OFB[0]}')
        k('s_mul_i32 s28, s6, 81920'); k('s_add_u32 s31, s31, s28'); k('s_mul_i32 s28, s7, 2560'); k('s_add_u32 s31, s31, s28')
        for rnd in range(2):
            lab=k.lab('oc')
            if rnd==1:
                k('s_cmp_ge_u32 s3, 2'); k(f's_cbranch_scc1 {lab}')
            k('s_lshl_b32 s28, s3, 6'); k(f's_add_u32 s28, s28, {512*rnd}')
            k(f'v_add_u32 v{T+5}, s28, v{V_LANE}')
            k(f'v_lshlrev_b32 v{T+6}, 4, v{T+5}'); k(f'v_add_u32 v{T+6}, {L_OIMG}, v{T+6}')
            k(f'ds_read_b128 v[{PK}:{PK+3}], v{T+6}')
            k(f'v_mul_u32_u24 v{T+7}, 410, v{T+5}'); k(f'v_lshrrev_b32 v{T+7}, 16, v{T+7}')
            k(f'v_mul_u32_u24 v{T+8}, 160, v{T+7}'); k(f'v_sub_u32 v{T+8}, v{T+5}, v{T+8}')
            k(f'v_mul_u32_u24 v{T+7}, 20480, v{T+7}'); k(f'v_lshl_add_u32 v{T+7}, v{T+8}, 4, v{T+7}')
            k('s_waitcnt lgkmcnt(0)')
            k(f'buffer_store_dwordx4 v[{PK}:{PK+3}], v{T+7}, s[{WS}:{WS+3}], s31 offen sc1')
            k(lab+':')
        self.mark("a.epi")
        self.publish(2)
        self.mark("a.pub")
        AFTER=k.lab('after'); k(f's_branch {AFTER}')
        k(FALLBACK+':')
        k('s_barrier')
        def kvptr():
            k(f's_mul_i32 s32, s12, {KV_D}'); k(f's_add_u32 s32, s32, {KVB[0]}')
            k('s_mul_i32 s28, s5, 3584'); k('s_add_u32 s32, s32, s28')
        def mq1(q,c): k(f'v_mfma_f32_32x32x16_bf16 v[{S[q]}:{S[q]+15}], v[{K1(0)}:{K1(0)+3}], v[{Q1[q]}:{Q1[q]+3}], {c}')
        def mq2(q): k(f'v_mfma_f32_32x32x8_bf16 v[{S[q]}:{S[q]+15}], v[{K2(0)}:{K2(0)+1}], v[{Q2[q]}:{Q2[q]+1}], v[{S[q]}:{S[q]+15}]')
        MX=[T+10,T+11]
        for q in range(2): k(f'v_mov_b32 v{MX[q]}, 0xff800000')
        kvptr(); k('s_mov_b32 s34, 0')
        l1=k.lab('fb1'); k(l1+':')
        ld(0); k('s_waitcnt vmcnt(0)')
        for q in range(2):
            mq1(q,'0'); mq2(q)
        for q in range(2):
            for i in range(0,16,2): k(f'v_max3_f32 v{MX[q]}, v{S[q]+i}, v{S[q]+i+1}, v{MX[q]}')
        k('s_add_u32 s34, s34, 1'); k('s_cmp_lt_u32 s34, 32'); k(f's_cbranch_scc1 {l1}')
        for q in range(2):
            k(f'v_mov_b32 v{T+12}, v{MX[q]}'); k(f'v_permlane32_swap_b32 v{MX[q]}, v{T+12}'); k(f'v_max_f32 v{MX[q]}, v{MX[q]}, v{T+12}')
        k('s_lshl_b32 s28, s3, 9'); k(f's_add_u32 s28, s28, {L_COMB}')
        k(f'v_lshl_add_u32 v{T+12}, v{V_LANE}, 3, s28')
        k(f'ds_write_b64 v{T+12}, v[{MX[0]}:{MX[1]}]')
        k('s_waitcnt lgkmcnt(0)'); k('s_barrier')
        k('s_xor_b32 s28, s3, 4'); k('s_lshl_b32 s28, s28, 9'); k(f's_add_u32 s28, s28, {L_COMB}')
        k(f'v_lshl_add_u32 v{T+12}, v{V_LANE}, 3, s28')
        k(f'ds_read_b64 v[{T+14}:{T+15}], v{T+12}')
        k('s_waitcnt lgkmcnt(0)'); k('s_barrier')
        for q in range(2): k(f'v_max_f32 v{MX[q]}, v{MX[q]}, v{T+14+q}')
        for q in range(2):
            for i in range(16): k(f'v_sub_f32 v{NEG[q]+i}, 0, v{MX[q]}')
            for i in range(16): k(f'v_mov_b32 v{O[q]+i}, 0')
        kvptr(); k('s_mov_b32 s34, 0')
        l2=k.lab('fb2'); k(l2+':')
        ld(0); k('s_waitcnt vmcnt(0)')
        for q in range(2):
            mq1(q,f'v[{NEG[q]}:{NEG[q]+15}]'); mq2(q)
            for i in range(16): k(f'v_exp_f32 v{S[q]+i}, v{S[q]+i}')
            for p in range(8): k(f'v_cvt_pk_bf16_f32 v{P+p}, v{S[q]+2*p}, v{S[q]+2*p+1}')
            for hf in range(2):
                k(f'v_mfma_f32_32x32x16_bf16 v[{O[q]}:{O[q]+15}], v[{V(0)+4*hf}:{V(0)+4*hf+3}], v[{P+4*hf}:{P+4*hf+3}], v[{O[q]}:{O[q]+15}]')
        k('s_add_u32 s34, s34, 1'); k('s_cmp_lt_u32 s34, 32'); k(f's_cbranch_scc1 {l2}')
        if self.F1R:
            k('s_min_u32 s42, s40, 53'); k('s_mul_i32 s42, s42, 40960'); k(f's_add_u32 s42, s42, {W1F}')
            for e in range(16): self.f1_wload(e)
            k('s_waitcnt vmcnt(0)')
        k('s_mov_b32 s49, 1')
        k(f's_branch {COMBINE}')
        k(AFTER+':')

    def phase_oproj(self):
        k=self.k
        XF,WR,ACC,T=24,64,96,144
        self.wait(2)
        self.mark("o.wait")
        self.x_loads(XF,10,OFB[0],OF_D,20,10)
        vA,vC=T,T+1
        k('s_mul_i32 s28, s5, 10240'); k(f'v_add_u32 v{vA}, s28, v{V_L16}'); k(f'v_add_u32 v{vC}, 61440, v{vA}')
        fr=[]
        for i in range(10):
            for ft in range(5):
                va,imm=(vA,ft*20480+i*1024) if ft<3 else (vC,(ft-3)*20480+i*1024)
                def rd(r,va=va,imm=imm): k(f'ds_read_b128 v[{r}:{r+3}], v{va} offset:{imm}')
                def mf(r,i=i,ft=ft):
                    c=ACC+4*ft; cs='0' if i==0 else f'v[{c}:{c+3}]'
                    k(f'v_mfma_f32_16x16x32_bf16 v[{c}:{c+3}], v[{r}:{r+3}], v[{XF+4*i}:{XF+4*i+3}], {cs}')
                fr.append(dict(read=rd,mfma=mf,vm=(9-i) if ft==0 else None))
        self.frag_gemm(fr,WR,7,1)
        self.mark("o.mm")
        self.reduce_pairs(ACC,T+9,L_ORED)
        k('s_waitcnt lgkmcnt(0)')
        k('s_barrier')
        self.reduce_pairs_finish(ACC,T+9,XF)
        self.mark("o.red")
        self.epilogue_res(ACC,T,X1B[0],X1_D,stats=True,bias=None,final=False)
        self.mark("o.epi")
        self.publish(3)
        self.mark("o.pub")
        self.fc1_early_w()

    def epilogue_res(self,ACC,T,dst,dst_d,stats,bias,final,vout=None):
        k=self.k
        self.tile_offsets(44)
        if dst_d:
            k(f's_mul_i32 s28, s12, {dst_d}'); k(f's_add_u32 s28, s28, {dst}')
        else: k(f's_mov_b32 s28, {dst}')
        for j in range(3): k(f's_add_u32 s{44+j}, s{44+j}, s28')
        k('s_mov_b32 s47, 0xffff0000')
        VD=T+15
        k(f'v_lshrrev_b32 v{VD}, 1, v{V_G}'); k(f'v_lshlrev_b32 v{VD}, 8, v{VD}'); k(f'v_lshl_add_u32 v{VD}, v{V_F}, 4, v{VD}')
        k(f'v_and_b32 v{T+14}, 1, v{V_G}'); k(f'v_lshl_add_u32 v{VD}, v{T+14}, 3, v{VD}')
        S0,S1=T+10,T+11
        if stats:
            k(f'v_mov_b32 v{S0}, 0'); k(f'v_mov_b32 v{S1}, 0'); k(f'v_mov_b32 v{T+12}, 0x3f803f80')
        skip=k.lab('e3')
        for j in range(3):
            if j==2:
                k('s_cmp_eq_u32 s5, 1'); k(f's_cbranch_scc1 {skip}')
            r=ACC+4*j
            k(f'v_lshlrev_b32 v{T}, 16, v{V_RES+2*j}'); k(f'v_and_b32 v{T+1}, s47, v{V_RES+2*j}')
            k(f'v_lshlrev_b32 v{T+2}, 16, v{V_RES+2*j+1}'); k(f'v_and_b32 v{T+3}, s47, v{V_RES+2*j+1}')
            for i in range(4): k(f'v_add_f32 v{r+i}, v{r+i}, v{T+i}')
            if bias is not None:
                k(f'v_lshlrev_b32 v{T}, 16, v{bias+2*j}'); k(f'v_and_b32 v{T+1}, s47, v{bias+2*j}')
                k(f'v_lshlrev_b32 v{T+2}, 16, v{bias+2*j+1}'); k(f'v_and_b32 v{T+3}, s47, v{bias+2*j+1}')
                for i in range(4): k(f'v_add_f32 v{r+i}, v{r+i}, v{T+i}')
            k(f'v_cvt_pk_bf16_f32 v{V_RES+2*j}, v{r}, v{r+1}'); k(f'v_cvt_pk_bf16_f32 v{V_RES+2*j+1}, v{r+2}, v{r+3}')
            if final:
                fl=k.lab('fin'); fd=k.lab('fd')
                k('s_cmp_eq_u32 s12, 1'); k(f's_cbranch_scc1 {fl}')
                k(f'buffer_store_dwordx2 v[{V_RES+2*j}:{V_RES+2*j+1}], v{VD}, s[{WS}:{WS+3}], s{44+j} offen sc1')
                k(f's_branch {fd}')
                k(fl+':')
                k(f'buffer_store_dwordx2 v[{V_RES+2*j}:{V_RES+2*j+1}], v{vout}, s[{SC}:{SC+3}], 0 offen offset:{j*32}')
                k(fd+':')
            else:
                k(f'buffer_store_dwordx2 v[{V_RES+2*j}:{V_RES+2*j+1}], v{VD}, s[{WS}:{WS+3}], s{44+j} offen sc1')
            if stats:
                k(f'v_dot2c_f32_bf16 v{S0}, v{V_RES+2*j}, v{T+12}'); k(f'v_dot2c_f32_bf16 v{S1}, v{V_RES+2*j}, v{V_RES+2*j}')
                k(f'v_dot2c_f32_bf16 v{S0}, v{V_RES+2*j+1}, v{T+12}'); k(f'v_dot2c_f32_bf16 v{S1}, v{V_RES+2*j+1}, v{V_RES+2*j+1}')
        k(skip+':')
        if stats:
            sum_g(k,S0,T+13); sum_g(k,S1,T+13)
            k(f'v_lshlrev_b32 v{T+13}, 3, v{V_F}')
            k('s_lshl_b32 s28, s6, 4'); k('s_lshl_b32 s29, s7, 1'); k('s_add_u32 s28, s28, s29'); k('s_add_u32 s28, s28, s5')
            k('s_lshl_b32 s28, s28, 9'); k('s_lshl_b32 s29, s4, 7'); k('s_add_u32 s28, s28, s29')
            k(f's_mul_i32 s29, s12, {ST_D}'); k('s_add_u32 s28, s28, s29'); k(f's_add_u32 s28, s28, {STB[0]}')
            k(f'v_cmp_eq_u32 vcc, 0, v{V_G}'); k(f'v_mov_b32 v{T+14}, {OOB}'); k(f'v_cndmask_b32 v{T+13}, v{T+14}, v{T+13}, vcc')
            k(f'buffer_store_dwordx2 v[{S0}:{S1}], v{T+13}, s[{WS}:{WS+3}], s28 offen sc1')

    def w2_chunk_dma(self, e_expr_sgpr):
        k=self.k; e=e_expr_sgpr
        def head():
            k(f's_lshr_b32 s53, s{e}, 1'); k(f's_and_b32 s54, s{e}, 1')
            k('s_mul_i32 s54, s54, 27'); k('s_add_u32 s54, s54, s53')
            k('s_mul_i32 s55, s7, 270'); k('s_add_u32 s54, s54, s55'); k('s_lshl_b32 s54, s54, 10'); k(f's_add_u32 s54, s54, {W2F}')
            k(f's_mul_i32 s55, s{e}, 5120')
        def one(j):
            if j==0: head()
            k('s_mov_b32 m0, s55')
            k(f'buffer_load_dwordx4 v{V_L16}, s[{WS}:{WS+3}], s54 offen sc1 lds')
            k(f's_add_u32 s54, s54, {54*1024}'); k('s_add_u32 s55, s55, 1024')
        return [lambda j=j: one(j) for j in range(5)]

    W2R=128
    def w2r_setup(self):
        k=self.k
        k('s_lshr_b32 s28, s3, 1'); k('s_and_b32 s29, s3, 1')
        k('s_mul_i32 s29, s29, 27'); k('s_add_u32 s29, s29, s28')
        k('s_mul_i32 s28, s7, 270'); k('s_add_u32 s29, s29, s28')
        for g,first in enumerate((15,19,23)):
            k(f's_add_u32 s{58+g}, s29, {first}'); k(f's_lshl_b32 s{58+g}, s{58+g}, 10'); k(f's_add_u32 s{58+g}, s{58+g}, {W2F}')
    def w2r_load(self,n):
        k=self.k; g,ft=n//5,n%5; r=self.W2R+4*n
        k(f's_add_u32 s61, s{58+g}, {ft*54*1024}')
        k(f'buffer_load_dwordx4 v[{r}:{r+3}], v{V_L16}, s[{WS}:{WS+3}], s61 offen sc1')
    def fc1_early_w(self):
        k=self.k
        lab=k.lab('ew')
        k('s_cmp_ge_u32 s3, s41'); k(f's_cbranch_scc1 {lab}')
        k('s_mul_i32 s42, s40, 40960'); k(f's_add_u32 s42, s42, {W1F+self.F1R*1024}')
        for s in range(self.F1R,self.F1R+self.F1A): self.f1_wload(s)
        k(lab+':')
    F1A=int(os.environ.get('F1A','12'))
    F1R=16 if os.environ.get('F1R','0')=='1' else 0
    def f1_wreg(self,s):
        if not self.F1R: return 96+4*s
        return 192+4*s if s<16 else 96+4*(s-16)
    def f1_wload(self,s):
        k=self.k; r=self.f1_wreg(s)
        k(f'buffer_load_dwordx4 v[{r}:{r+3}], v{V_L16}, s[{WS}:{WS+3}], s42 offen offset:{(s%4)*1024} sc1')
        if s%4==3: k('s_add_u32 s42, s42, 4096')

    def gelu_group_scalar(self,A,a,MR,CSV,B1F,TT,KC,vaddr,s_h):
        o=[]; PK=TT+4
        R=[A+4*a+i for i in range(4)]; t=[TT+i for i in range(4)]
        for i in range(4): o.append(f'v_fma_f32 v{t[i]}, -v{MR}, v{CSV+4*a+i}, v{B1F+4*a+i}')
        for i in range(4): o.append(f'v_fma_f32 v{R[i]}, v{R[i]}, v{MR+1}, v{t[i]}')
        for i in range(4): o.append(f'v_mul_f32 v{t[i]}, v{R[i]}, v{R[i]}')
        for i in range(4): o.append(f'v_fma_f32 v{t[i]}, v{t[i]}, v{KC+2}, v{KC}')
        for i in range(4): o.append(f'v_mul_f32 v{t[i]}, v{t[i]}, v{R[i]}')
        for i in range(4): o.append(f'v_exp_f32 v{t[i]}, v{t[i]}')
        for i in range(4): o.append(f'v_add_f32 v{t[i]}, 1.0, v{t[i]}')
        for i in range(4): o.append(f'v_rcp_f32 v{t[i]}, v{t[i]}')
        for i in range(4): o.append(f'v_mul_f32 v{R[i]}, v{R[i]}, v{t[i]}')
        o+= [f'v_cvt_pk_bf16_f32 v{PK}, v{R[0]}, v{R[1]}', f'v_cvt_pk_bf16_f32 v{PK+1}, v{R[2]}, v{R[3]}']
        o.append(f'buffer_store_dwordx2 v[{PK}:{PK+1}], v{vaddr}, s[{WS}:{WS+3}], s{s_h} offen offset:{a*256} sc1')
        return o
    def gelu_group(self,A,a,MR,CSV,B1F,TT,KC,vaddr,s_h):
        P=lambda r: f'v[{r}:{r+1}]'
        KC0,KC1,KONE=KC,KC+2,KC+4
        r0,r1=A+4*a,A+4*a+2
        t=[TT,TT+2]; PK=TT+4
        o=[]
        for e in range(2): o.append(f'v_pk_fma_f32 {P(t[e])}, {P(MR)}, {P(CSV+4*a+2*e)}, {P(B1F+4*a+2*e)} op_sel_hi:[0,1,1] neg_lo:[1,0,0] neg_hi:[1,0,0]')
        for e,r in enumerate((r0,r1)): o.append(f'v_pk_fma_f32 {P(r)}, {P(r)}, {P(MR)}, {P(t[e])} op_sel:[0,1,0] op_sel_hi:[1,1,1]')
        for e,r in enumerate((r0,r1)): o.append(f'v_pk_mul_f32 {P(t[e])}, {P(r)}, {P(r)}')
        for e,r in enumerate((r0,r1)): o.append(f'v_pk_fma_f32 {P(t[e])}, {P(t[e])}, {P(KC1)}, {P(KC0)}')
        for e,r in enumerate((r0,r1)): o.append(f'v_pk_mul_f32 {P(t[e])}, {P(t[e])}, {P(r)}')
        for e in range(2): o+= [f'v_exp_f32 v{t[e]}, v{t[e]}', f'v_exp_f32 v{t[e]+1}, v{t[e]+1}']
        for e in range(2): o.append(f'v_pk_add_f32 {P(t[e])}, {P(t[e])}, {P(KONE)}')
        for e in range(2): o+= [f'v_rcp_f32 v{t[e]}, v{t[e]}', f'v_rcp_f32 v{t[e]+1}, v{t[e]+1}']
        for e,r in enumerate((r0,r1)): o.append(f'v_pk_mul_f32 {P(r)}, {P(r)}, {P(t[e])}')
        o+= [f'v_cvt_pk_bf16_f32 v{PK}, v{r0}, v{r0+1}', f'v_cvt_pk_bf16_f32 v{PK+1}, v{r1}, v{r1+1}']
        o.append(f'buffer_store_dwordx2 v[{PK}:{PK+1}], v{vaddr}, s[{WS}:{WS+3}], s{s_h} offen offset:{a*256} sc1')
        return o

    def phase_fc1(self):
        k=self.k
        A0,A1,XF,CS,ONE,vX,WB=24,40,56,88,89,90,96
        self.wait(3)
        self.mark("f1.wait")
        k('s_mul_i32 s28, s6, 81920'); k(f's_mul_i32 s29, s12, {X1_D}'); k('s_add_u32 s28, s28, s29'); k(f's_add_u32 s28, s28, {X1B[0]}')
        k('s_mul_i32 s29, s3, 10240'); k('s_add_u32 s28, s28, s29')
        for i in range(10):
            k(f's_add_u32 m0, s29, {i*1024}')
            k(f'buffer_load_dwordx4 v{V_L16}, s[{WS}:{WS+3}], s28 offen sc1 lds')
            k('s_add_u32 s28, s28, 1024')
        act=k.lab('act'); fin=k.lab('fin')
        k('s_cmp_lt_u32 s3, s41'); k(f's_cbranch_scc1 {act}')
        n7=k.lab('n7'); n7w=k.lab('n7w')
        U=96
        k('s_cmp_lg_u32 s3, 7'); k(f's_cbranch_scc1 {n7w}')
        k(f'v_lshlrev_b32 v{U}, 3, v{V_LANE}')
        k('s_lshl_b32 s28, s6, 13'); k(f's_mul_i32 s29, s12, {ST_D}'); k('s_add_u32 s28, s28, s29'); k(f's_add_u32 s28, s28, {STB[0]}')
        for q in range(16):
            k(f'buffer_load_dwordx2 v[{A0+2*q}:{A0+2*q+1}], v{U}, s[{WS}:{WS+3}], s28 offen offset:{(q%8)*512} sc1')
            if q==7: k('s_add_u32 s28, s28, 4096')
        k('s_waitcnt vmcnt(0)')
        for q in range(1,16):
            k(f'v_add_f32 v{A0}, v{A0}, v{A0+2*q}'); k(f'v_add_f32 v{A0+1}, v{A0+1}, v{A0+2*q+1}')
        m_,r_,v_=U+2,U+3,A0+1
        k(f'v_mul_f32 v{m_}, {hex(f2u(1/640))}, v{A0}'); k(f'v_mul_f32 v{v_}, {hex(f2u(1/640))}, v{v_}')
        k(f'v_fma_f32 v{v_}, -v{m_}, v{m_}, v{v_}'); k(f'v_max_f32 v{v_}, 0, v{v_}')
        k(f'v_add_f32 v{A0+2}, {hex(f2u(1e-5))}, v{v_}'); k(f'v_rsq_f32 v{r_}, v{A0+2}')
        k(f'v_mul_f32 v{A0+3}, v{r_}, v{r_}'); k(f'v_mul_f32 v{A0+3}, v{A0+3}, v{v_}')
        k(f'v_add_f32 v{A0+3}, {hex(f2u(1e-5))}, v{A0+3}'); k(f'v_rsq_f32 v{A0+3}, v{A0+3}')
        k(f'v_mul_f32 v{r_}, v{r_}, v{A0+3}'); k(f'v_mul_f32 v{m_}, v{m_}, v{r_}')
        k(f'v_add_u32 v{U}, {L_TOKST}, v{U}')
        k(f'ds_write_b64 v{U}, v[{m_}:{r_}]')
        k(n7w+':')
        k('s_waitcnt vmcnt(0) lgkmcnt(0)')
        k('s_barrier')
        k('s_cmp_lg_u32 s3, 7'); k(f's_cbranch_scc1 {n7}')
        W2E=os.environ.get('W2E','1')=='1'
        if W2E:
            for e in range(16,30):
                k(f's_mov_b32 s52, {e}')
                for f in self.w2_chunk_dma(52): f()
        k(n7+':')
        k('s_barrier')
        k('s_cmp_lg_u32 s3, 7'); k(f's_cbranch_scc1 {fin}')
        for e in list(range(0,8))+[15]+([] if W2E else list(range(16,30))):
            k(f's_mov_b32 s52, {e}')
            for f in self.w2_chunk_dma(52): f()
        k('s_cmp_eq_u32 s41, 7'); k(f's_cbranch_scc1 {fin}')
        k('s_mov_b32 s52, 14')
        for f in self.w2_chunk_dma(52): f()
        k(f's_branch {fin}')
        k(act+':')
        srd(k,SA,P_B1,1728*2)
        B1R=72
        k('s_lshl_b32 s28, s40, 6')
        k(f'v_lshl_add_u32 v{vX}, v{V_H}, 3, s28')
        for a in range(4): k(f'buffer_load_dwordx2 v[{B1R+2*a}:{B1R+2*a+1}], v{vX}, s[{SA}:{SA+3}], 0 offen offset:{a*16}')
        k('s_waitcnt vmcnt(0)')
        k('s_barrier')
        self.mark("f1.x")
        k(f'v_lshrrev_b32 v{vX}, 4, v{V_L31}'); k(f'v_mul_u32_u24 v{vX}, 20480, v{vX}')
        k(f'v_lshl_add_u32 v{vX}, v{V_H}, 8, v{vX}'); k(f'v_lshl_add_u32 v{vX}, v{V_F}, 4, v{vX}')
        k(f'v_mov_b32 v{ONE}, 0x3f803f80'); k(f'v_mov_b32 v{CS}, 0')
        k('s_cmp_lg_u32 s12, 0'); k('s_cselect_b64 vcc, -1, 0')
        def rd(tt,s):
            ks,u=s//2,s%2
            x=XF+(s%4)*4
            k(f'ds_read_b128 v[{x}:{x+3}], v{vX} offset:{tt*40960+ks*1024+u*512}')
        F1A=self.F1A+self.F1R
        def pass1(with_cs):
            rd(0,0); rd(0,1); rd(0,2)
            for s in range(40):
                if s+F1A<40: self.f1_wload(s+F1A)
                if s+3<40: rd(0,s+3)
                w=f's_waitcnt lgkmcnt({min(3,39-s)})'
                if s>=F1A: w+=f' vmcnt({min(F1A,39-s)})'
                k(w)
                wr=self.f1_wreg(s); x=XF+(s%4)*4
                c0='0' if s==0 else f'v[{A0}:{A0+15}]'
                k(f'v_mfma_f32_32x32x16_bf16 v[{A0}:{A0+15}], v[{wr}:{wr+3}], v[{x}:{x+3}], {c0}')
                if with_cs:
                    for r in range(4): k(f'v_dot2c_f32_bf16 v{CS}, v{wr+r}, v{ONE}')
        p1=k.lab('p1'); p1d=k.lab('p1d')
        k(f's_cbranch_vccnz {p1}')
        pass1(True)
        k(f's_branch {p1d}')
        k(p1+':')
        pass1(False)
        k(p1d+':')
        ncs=k.lab('ncs')
        k(f's_cbranch_vccnz {ncs}')
        k(f'v_mov_b32 v91, v{CS}'); k(f'v_permlane32_swap_b32 v{CS}, v91'); k(f'v_add_f32 v{CS}, v{CS}, v91')
        k('s_lshl_b32 s28, s3, 7'); k(f's_add_u32 s28, s28, {L_CS1}')
        k(f'v_lshl_add_u32 v91, v{V_L31}, 2, s28')
        k(f'ds_write_b32 v91, v{CS}')
        k(ncs+':')
        k('s_waitcnt lgkmcnt(0)')
        self.mark("f1.p1")
        CSV,B1F,MR0,MR1,TT,KC,VA=((192,208) if self.F1R else (96,112))+(80,82,16,84,91)
        side=[]
        def S(x): side.append(x)
        S(f's_lshl_b32 s28, s3, 7'); S(f's_add_u32 s28, s28, {L_CS1}'); S(f'v_lshl_add_u32 v{VA}, v{V_H}, 4, s28')
        pre_reads=[f'ds_read_b128 v[{CSV+4*a}:{CSV+4*a+3}], v{VA} offset:{a*32}' for a in range(4)]
        c0=-2*0.7978845608028654*1.4426950408889634; c1=c0*0.044715
        for i in range(2):
            k(f'v_mov_b32 v{KC+i}, {hex(f2u(c0))}'); k(f'v_mov_b32 v{KC+2+i}, {hex(f2u(c1))}')
        KONE_=92
        k(f'v_mov_b32 v{KONE_}, 1.0'); k(f'v_mov_b32 v{KONE_+1}, 1.0')
        k(f'v_lshlrev_b32 v94, 3, v{V_L31}'); k(f'v_add_u32 v94, {L_TOKST}, v94')
        k(f'ds_read_b64 v[{MR0}:{MR0+1}], v94'); k(f'ds_read_b64 v[{MR1}:{MR1+1}], v94 offset:256')
        k(f'v_lshrrev_b32 v95, 4, v{V_L31}'); k(f's_mov_b32 s28, {54*1024}'); k('v_mul_lo_u32 v95, v95, s28')
        k(f'v_lshl_add_u32 v95, v{V_H}, 3, v95'); k(f'v_lshl_add_u32 v95, v{V_F}, 4, v95')
        for tt in range(2):
            k('s_lshl_b32 s28, s6, 2'); k(f's_add_u32 s28, s28, {2*tt}'); k('s_mul_i32 s28, s28, 54'); k('s_add_u32 s28, s28, s40')
            k('s_lshl_b32 s28, s28, 10'); k(f's_mul_i32 s29, s12, {HF_D}'); k('s_add_u32 s28, s28, s29'); k(f's_add_u32 s{56+tt}, s28, {HFB[0]}')
        k('s_mov_b32 s47, 0xffff0000')
        k('s_waitcnt lgkmcnt(0)')
        rd(1,0); rd(1,1); rd(1,2)
        def gg(A,a,MR,sh):
            o=self.gelu_group(A,a,MR,CSV,B1F,TT,KC,95,sh)
            return [x.replace(f'v[{KC+4}:{KC+5}]',f'v[{KONE_}:{KONE_+1}]') for x in o]
        work=[]
        for a in range(4): work+=self.gelu_group_scalar(A0,a,MR0,CSV,B1F,TT,KC,95,56)
        nper=-(-len(work)//27)
        wi=0; lds_extra=0
        for s in range(40):
            if s+3<40: rd(1,s+3)
            extra=0
            if s==8:
                k(f's_lshl_b32 s28, s3, 7'); k(f's_add_u32 s28, s28, {L_CS1}'); k(f'v_lshl_add_u32 v{VA}, v{V_H}, 4, s28')
                for x in pre_reads: k(x)
                extra=4
            k(f's_waitcnt lgkmcnt({min(3,39-s)+extra})')
            wr=self.f1_wreg(s); x=XF+(s%4)*4
            c1s='0' if s==0 else f'v[{A1}:{A1+15}]'
            k(f'v_mfma_f32_32x32x16_bf16 v[{A1}:{A1+15}], v[{wr}:{wr+3}], v[{x}:{x+3}], {c1s}')
            if s in (9,10):
                for a in ((0,1) if s==9 else (2,3)):
                    k(f'v_lshlrev_b32 v{B1F+4*a}, 16, v{B1R+2*a}'); k(f'v_and_b32 v{B1F+4*a+1}, s47, v{B1R+2*a}')
                    k(f'v_lshlrev_b32 v{B1F+4*a+2}, 16, v{B1R+2*a+1}'); k(f'v_and_b32 v{B1F+4*a+3}, s47, v{B1R+2*a+1}')
            if s>=12:
                for _ in range(nper):
                    if wi<len(work): k(work[wi]); wi+=1
        while wi<len(work): k(work[wi]); wi+=1
        k('s_barrier')
        self.mark("f1.mm")
        k('s_add_u32 s52, s3, 8')
        dm=self.w2_chunk_dma(52)
        for a in range(4):
            for x in gg(A1,a,MR1,57): k(x)
            if dm: dm.pop(0)()
            if a==3:
                while dm: dm.pop(0)()
        k(fin+':')
        self.mark("f1.epi")
        self.publish(4)
        self.mark("f1.pub")

    def phase_fc2(self):
        k=self.k
        HX,WR,ACC=24,132,192
        vA,vB,vC,BI,VO=236,237,238,240,246
        srd(k,SB,P_B2,1280)
        srd(k,SC,P_OUT,2048*1280)
        k('s_mul_i32 s28, s7, 160'); k('s_mul_i32 s29, s5, 96'); k('s_add_u32 s28, s28, s29')
        k(f'v_lshl_add_u32 v{vA}, v{V_G}, 3, s28')
        for j in range(3): k(f'buffer_load_dwordx2 v[{BI+2*j}:{BI+2*j+1}], v{vA}, s[{SB}:{SB+3}], 0 offen offset:{j*32}')
        k('s_movk_i32 s29, 1280'); k(f'v_mul_lo_u32 v{VO}, v{V_TOK}, s29'); k(f'v_add_u32 v{VO}, v{VO}, v{vA}')
        self.wait(4)
        self.mark("f2.wait")
        XP=os.environ.get('XP','')
        if 'noh' not in XP: self.x_loads(HX,27,HFB[0],HF_D,54,27)
        if 'hwait' in XP:
            k('s_waitcnt vmcnt(0)'); self.mark("f2.h")
        k('s_mul_i32 s28, s5, 5120')
        k(f'v_add_u32 v{vA}, s28, v{V_L16}'); k(f'v_add_u32 v{vB}, 61440, v{vA}'); k(f'v_add_u32 v{vC}, 122880, v{vA}')
        NS=15
        slot=lambda i: i if i<NS else i-NS
        log=[('h',i) for i in range(27)]
        def refill(g):
            first=15+4*g
            k('s_lshr_b32 s28, s3, 1'); k('s_and_b32 s29, s3, 1')
            k(f's_add_u32 s30, s28, {first}')
            k('s_mul_i32 s32, s29, 27'); k('s_add_u32 s32, s32, s30')
            k('s_mul_i32 s33, s7, 270'); k('s_add_u32 s32, s32, s33'); k('s_lshl_b32 s32, s32, 10'); k(f's_add_u32 s32, s32, {W2F}')
            k(f's_add_u32 s30, s28, {4*g}')
            k('s_mul_i32 s33, s30, 10240'); k('s_mul_i32 s29, s29, 5120'); k('s_add_u32 s33, s33, s29')
            for j in range(5):
                k('s_mov_b32 m0, s33')
                k(f'buffer_load_dwordx4 v{V_L16}, s[{WS}:{WS+3}], s32 offen sc1 lds')
                if j<4:
                    k(f's_add_u32 s32, s32, {54*1024}'); k('s_add_u32 s33, s33, 1024')
                log.append(('rf',g))
        def younger(idx): return len(log)-1-idx
        DEPTH=int(os.environ.get('F2D','10'))
        bar={7:(None,0),11:(None,1),15:(0,2),19:(1,None),23:(2,None)}
        fr=[]
        for i in range(27):
            for ft in range(5):
                j=slot(i); va,imm=((vA,vB,vC)[j//6],(j%6)*10240)
                def rd(r,va=va,imm=imm,ft=ft): k(f'ds_read_b128 v[{r}:{r+3}], v{va} offset:{imm+ft*1024}')
                def mf(r,i=i,ft=ft):
                    c=ACC+4*ft; cs='0' if i==0 else f'v[{c}:{c+3}]'
                    k(f'v_mfma_f32_16x16x32_bf16 v[{c}:{c+3}], v[{r}:{r+3}], v[{HX+4*i}:{HX+4*i+3}], {cs}')
                d=dict(read=rd,mfma=mf)
                if ft==0:
                    d['vm']=(lambda i=i: younger(log.index(('h',i))))
                    if i in bar:
                        def pre(i=i):
                            need,fill=bar[i]
                            if need is not None:
                                tags=[n for n,x in enumerate(log) if x==('rf',need)]
                                k(f's_waitcnt vmcnt({younger(tags[-1])})')
                            k('s_barrier')
                            if fill is not None: refill(fill)
                        d['pre']=pre
                fr.append(d)
        self.frag_gemm(fr,WR,DEPTH,1)
        self.mark("f2.mm")
        k('s_barrier')
        T=48
        self.reduce_pairs(ACC,T+9,L_RED)
        k('s_waitcnt lgkmcnt(0)')
        k('s_barrier')
        self.reduce_pairs_finish(ACC,T+9,24)
        self.epilogue_res(ACC,T,X2B,0,stats=False,bias=BI,final=True,vout=VO)
        self.mark("f2.epi")

    def build(self):
        k=self.k
        self.prologue()
        self.mark0("p.start")
        if 'nox0' not in os.environ.get('XP',''): self.x0_loads(24,144)
        if 'cs.x' in os.environ.get('MARKS',''):
            k('s_waitcnt vmcnt(0)'); self.mark0("cs.x")
        kvw=k.lab('kvw'); pj=k.lab('pj')
        k('s_lshr_b32 s28, s7, 1')
        k('s_cmp_eq_u32 s28, s4'); k(f's_cbranch_scc1 {kvw}')
        k('s_mov_b32 s43, s3')
        k('s_cmp_gt_u32 s3, s28'); k('s_cselect_b32 s29, 1, 0'); k('s_sub_u32 s43, s43, s29')
        k('s_add_u32 s28, s28, 4'); k('s_cmp_gt_u32 s3, s28'); k('s_cselect_b32 s29, 1, 0'); k('s_sub_u32 s43, s43, s29')
        srd(k,SA,P_WQ,640*1280)
        for t in range(4):
            lab=k.lab('wq')
            k(f's_add_u32 s28, s43, {6*t}')
            if t==3:
                k('s_cmp_ge_u32 s28, 20'); k(f's_cbranch_scc1 {lab}')
            k('s_mul_i32 s29, s28, 40960'); k('s_mul_i32 s30, s28, 5120')
            self.dma_chunk160(SA,29,30)
            k(lab+':')
        k(f's_branch {pj}')
        k(kvw+':')
        k('s_mov_b32 s43, 7')
        k('s_and_b32 s28, s7, 1'); k('s_cmp_eq_u32 s28, 0')
        k(f's_cselect_b32 s30, s{P_WK}, s{P_WV}'); k(f's_cselect_b32 s31, s{P_WK+1}, s{P_WV+1}')
        srd(k,SB,30,25600)
        k('s_mul_i32 s29, s5, 12288')
        for t in range(13):
            k(f's_add_u32 m0, s29, {L_WKV}')
            k(f'buffer_load_dwordx4 v{V_L16}, s[{SB}:{SB+3}], s29 offen lds')
            k('s_add_u32 s29, s29, 1024')
        k(pj+':')
        if 'tlb' in os.environ.get('XP',''): self.tlb_warm()
        self.mark0("p.issued")
        LOOP='mega_layer'
        k(LOOP+':')
        self.phase_qkv(); self.stopat('qkv')
        self.phase_attn(); self.stopat('attn')
        self.phase_oproj(); self.stopat('oproj')
        self.phase_fc1(); self.stopat('fc1')
        self.phase_fc2(); self.stopat('fc2')
        k('s_cmp_eq_u32 s12, 1'); k(f's_cbranch_scc1 {self.END}')
        self.publish(5)
        self.dma_next_qkv()
        self.wait(5)
        k('s_mov_b32 s12, 1'); k('s_add_u32 s13, s13, 5')
        k(f's_branch {LOOP}')
        k(self.END+':')
        rz=self.k.lab('rz')
        k('s_cmp_lg_u32 s2, 0'); k(f's_cbranch_scc1 {rz}')
        k('s_cmp_lg_u32 s3, 5'); k(f's_cbranch_scc1 {rz}')
        k('s_load_dwordx2 s[58:59], s[0:1], 88')
        k('s_waitcnt lgkmcnt(0)')
        srd(k,60,58,256)
        k('v_mov_b32 v200, 0'); k('v_mov_b32 v201, 0')
        k('s_mov_b64 exec, 1')
        k('buffer_store_dword v201, v200, s[60:63], 0 offen sc1')
        k('s_mov_b64 exec, -1')
        k(rz+':')
        if self.stamps:
            k('s_waitcnt vmcnt(0) lgkmcnt(0)')
            k(f'{self.clk} s[100:101]'); k('s_waitcnt lgkmcnt(0)')
            k('s_lshl_b32 s28, s2, 3'); k('s_add_u32 s28, s28, s3'); k('s_lshl_b32 s28, s28, 6'); k(f's_add_u32 s28, s28, {STAMP_OFF}')
            k('s_add_u32 s30, s86, s28'); k('s_addc_u32 s31, s87, 0')
            k('v_mov_b32 v24, 0')
            for i in range(13):
                k(f'v_mov_b32 v25, s{88+i}')
                k(f'global_store_dword v24, v25, s[30:31] offset:{4*i}')
        k('mega_kernel_exit:')
        k('mega_code_end:')
        k('s_endpgm')
        return k

def gen_init():
    k=Kern('init_kernel',vgpr=8,sgpr=24)
    k('s_cmp_ge_u32 s2, 1'); k('s_cbranch_scc1 init_kernel_end')
    k('s_load_dwordx2 s[4:5], s[0:1], 96')
    k('s_waitcnt lgkmcnt(0)')
    srd(k,8,4,4096,FLG)
    k('v_lshlrev_b32 v1, 4, v0')
    for i in range(4): k(f'v_mov_b32 v{2+i}, 0')
    k('buffer_store_dwordx4 v[2:5], v1, s[8:11], 0 offen')
    k('init_kernel_end:')
    k('s_endpgm')
    return k
```

```python
import os, struct
from asmlib import *
from mlayout import *

def f2u(x): return struct.unpack('<I',struct.pack('<f',x))[0]
P_X,P_WQ,P_WK,P_WV,P_WO,P_W1,P_B1,P_W2,P_B2,P_OUT=64,66,68,70,72,76,78,80,82,84
WS=8
SA,SB,SC=16,20,24
OOB='0x40000000'
V_LANE,V_F,V_G,V_L16,V_L31,V_H,V_TR,V_RES,V_TOK,V_D=1,2,3,4,5,6,7,8,14,16
L_WKV=102400
L_RED=128000
L_KVR=157056
L_STAT=152576
L_CS=163136
L_NONCE=163776
L_BADF=163780
L_PAIRF=163784
L_KVCS=155008
NONCE=FLG+2048+64
L_QL=0
L_COMB=112640
L_OIMG=137216
L_ORED=102400
L_TOKST=153600
L_CS1=154112
LDS_TOTAL=160*1024
STAMP_OFF=100<<20
POLLW=7

def srd(k,d,p,size,off=0):
    k(f's_add_u32 s{d}, s{p}, {off}' if off else f's_mov_b32 s{d}, s{p}')
    k(f's_addc_u32 s{d+1}, s{p+1}, 0' if off else f's_mov_b32 s{d+1}, s{p+1}')
    k(f's_and_b32 s{d+1}, s{d+1}, 0xffff')
    k(f's_mov_b32 s{d+2}, {size}')
    k(f's_mov_b32 s{d+3}, 0x20000')

def sum_g(k,x,tmp):
    k(f'v_mov_b32 v{tmp}, v{x}')
    k(f'v_permlane16_swap_b32 v{x}, v{tmp}')
    k(f'v_add_f32 v{x}, v{x}, v{tmp}')
    k(f'v_mov_b32 v{tmp}, v{x}')
    k(f'v_permlane32_swap_b32 v{x}, v{tmp}')
    k(f'v_add_f32 v{x}, v{x}, v{tmp}')

KNAME='interleave_layers__grouped_kv_mqa__mixer_channel_mlp__prompt_kernel'
class Mega:
    def __init__(self, stamps=False, stop=None):
        self.k=Kern(KNAME,vgpr=256,sgpr=102)
        self.stamps=stamps; self.stop=stop; self.END='mega_kernel_end'
        self.mark_layer=int(os.environ.get('MARKL','1'))
        self.clk='s_memrealtime' if os.environ.get('RT') else 's_memtime'
    def mark(self,name):
        if not self.stamps: return
        ms=os.environ.get('MARKS','').split(',')
        if name not in ms: return
        i=ms.index(name)
        k=self.k
        k(f'{self.clk} s[100:101]')
        k('s_waitcnt lgkmcnt(0)')
        k(f's_cmp_eq_u32 s12, {self.mark_layer}')
        k(f's_cselect_b32 s{88+i}, s100, s{88+i}')
    def mark0(self,name):
        if not self.stamps: return
        ms=os.environ.get('MARKS','').split(',')
        if name not in ms: return
        i=ms.index(name); k=self.k
        k(f'{self.clk} s[100:101]'); k('s_waitcnt lgkmcnt(0)'); k(f's_mov_b32 s{88+i}, s100')
    def stopat(self,name):
        if self.stop==name:
            k=self.k
            k(f's_cmp_eq_u32 s12, {int(os.environ.get("STOPL","0"))}')
            k(f's_cbranch_scc1 {self.END}')

    def publish(self,j):
        k=self.k
        k('s_waitcnt vmcnt(0)')
        k('s_barrier')
        lab=k.lab('pub')
        k('s_cmp_lg_u32 s3, 0')
        k(f's_cbranch_scc1 {lab}')
        k(f's_add_u32 s28, s13, {j}')
        k('v_mov_b32 v22, s28')
        k('s_lshl_b32 s29, s6, 6'); k('s_lshl_b32 s30, s7, 2'); k('s_add_u32 s29, s29, s30')
        k('v_mov_b32 v21, s29')
        k('s_mov_b64 exec, 1')
        k(f'buffer_store_dword v22, v21, s[{WS}:{WS+3}], 0 offen offset:{FLG} sc1')
        k('s_mov_b64 exec, -1')
        k(lab+':')
    def wait(self,j,allwg=False,others=None):
        k=self.k
        lab=k.lab('w'); loop=k.lab('poll'); done=k.lab('pd')
        wide = allwg or others is not None
        k(f's_cmp_lg_u32 s3, {POLLW}')
        k(f's_cbranch_scc1 {lab}')
        k(f's_add_u32 s28, s13, {j}')
        if wide:
            k(f'v_lshrrev_b32 v22, 1, v{V_LANE}'); k('v_lshlrev_b32 v21, 6, v22')
            k(f'v_and_b32 v16, 1, v{V_LANE}'); k('v_lshl_add_u32 v21, v16, 4, v21')
            if others is not None:
                k(f's_add_u32 s29, s13, {others}')
                k('v_cmp_eq_u32 vcc, s6, v22')
                k('v_mov_b32 v23, s29'); k('v_mov_b32 v22, s28')
                k('v_cndmask_b32 v22, v23, v22, vcc')
            else: k('v_mov_b32 v22, s28')
        else:
            k(f'v_and_b32 v21, 7, v{V_LANE}'); k('v_lshlrev_b32 v21, 2, v21')
            k('s_lshl_b32 s29, s6, 6'); k('v_add_u32 v21, s29, v21')
            k('v_mov_b32 v22, s28')
        k('s_mov_b32 s30, 0')
        k(loop+':')
        if wide:
            k(f'buffer_load_dwordx4 v[16:19], v21, s[{WS}:{WS+3}], 0 offen offset:{FLG} sc1')
            k('s_waitcnt vmcnt(0)')
            for r in (16,17,18,19): k(f'v_sub_u32 v{r}, v{r}, v22')
            k('v_max_u32 v16, v16, v17'); k('v_max_u32 v18, v18, v19'); k('v_max_u32 v16, v16, v18')
        else:
            k(f'buffer_load_dword v16, v21, s[{WS}:{WS+3}], 0 offen offset:{FLG} sc1')
            k('s_waitcnt vmcnt(0)')
            k('v_sub_u32 v16, v16, v22')
        k('v_cmp_le_u32 vcc, 32, v16')
        k(f's_cbranch_vccz {done}')
        if os.environ.get('SLP'): k(f"s_sleep {os.environ['SLP']}")
        k('s_add_u32 s30, s30, 1')
        k(f's_cmp_lt_u32 s30, 0x40000')
        k(f's_cbranch_scc1 {loop}')
        k(done+':')
        k(lab+':')
        k('s_barrier')

    def dma_chunk160(self, s_srd, s_soff, s_m0):
        k=self.k
        for j in range(5):
            k(f's_mov_b32 m0, s{s_m0}')
            k(f'buffer_load_dwordx4 v{V_D+j}, s[{s_srd}:{s_srd+3}], s{s_soff} offen lds')
            if j<4: k(f's_add_u32 s{s_m0}, s{s_m0}, 1024')
    def dma_w160(self,ptr,skip_poller=False):
        k=self.k
        srd(k,SA,ptr,640*1280)
        nw=7 if skip_poller else 8
        end=k.lab('dw')
        if skip_poller:
            k(f's_cmp_eq_u32 s3, {POLLW}'); k(f's_cbranch_scc1 {end}')
        for t in range(3):
            lab=k.lab('wq')
            k(f's_add_u32 s28, s3, {nw*t}')
            if nw*t+nw>20:
                k('s_cmp_ge_u32 s28, 20'); k(f's_cbranch_scc1 {lab}')
            k('s_mul_i32 s29, s28, 40960'); k('s_mul_i32 s30, s28, 5120')
            self.dma_chunk160(SA,29,30)
            k(lab+':')
        k(end+':')
    def dma_wkv(self):
        k=self.k
        k('s_and_b32 s28, s7, 1'); k('s_cmp_eq_u32 s28, 0')
        k(f's_cselect_b32 s30, s{P_WK}, s{P_WV}'); k(f's_cselect_b32 s31, s{P_WK+1}, s{P_WV+1}')
        srd(k,SB,30,25600)
        for t in range(4):
            lab=k.lab('wk')
            k(f's_add_u32 s28, s3, {8*t}')
            if t==3:
                k('s_cmp_ge_u32 s28, 25'); k(f's_cbranch_scc1 {lab}')
            k('s_lshl_b32 s29, s28, 10'); k(f's_add_u32 s30, s29, {L_WKV}')
            k('s_mov_b32 m0, s30')
            k(f'buffer_load_dwordx4 v{V_L16}, s[{SB}:{SB+3}], s29 offen lds')
            k(lab+':')
    def l2_prefetch(self, s_srd, total, nwaves, wave0, vtmp, base_off=0):
        k=self.k
        per=(total//32+127)//128*128
        ninst=(per+8191)//8192
        pw=(ninst+nwaves-1)//nwaves
        k('s_and_b32 s28, s6, 3'); k('s_lshl_b32 s28, s28, 3'); k('s_add_u32 s28, s28, s7')
        k(f's_mul_i32 s28, s28, {per}')
        k(f's_sub_u32 s29, s3, {wave0}'); k(f's_mul_i32 s29, s29, {pw*8192}'); k('s_add_u32 s28, s28, s29')
        if base_off: k(f's_add_u32 s28, s28, {base_off}')
        k(f'v_lshlrev_b32 v{vtmp}, 7, v{V_LANE}')
        for n in range(pw):
            k(f'buffer_load_dword v{vtmp+1}, v{vtmp}, s[{s_srd}:{s_srd+3}], s28 offen')
            k('s_add_u32 s28, s28, 8192')
        return pw

    def prologue(self):
        k=self.k
        k('s_cmp_ge_u32 s2, 256')
        k(f's_cbranch_scc1 mega_kernel_exit')
        k('s_load_dwordx16 s[64:79], s[0:1], 0')
        k('s_load_dwordx4 s[80:83], s[0:1], 64')
        k('s_load_dwordx2 s[84:85], s[0:1], 80')
        k('s_load_dwordx2 s[86:87], s[0:1], 96')
        k('s_load_dwordx2 s[58:59], s[0:1], 88')
        if self.stamps: k(f'{self.clk} s[100:101]')
        k('v_lshrrev_b32 v24, 6, v0')
        k(f'v_and_b32 v{V_LANE}, 63, v0')
        k('v_readfirstlane_b32 s3, v24')
        k('s_and_b32 s4, s3, 3'); k('s_lshr_b32 s5, s3, 2')
        k('s_and_b32 s6, s2, 7'); k('s_lshl_b32 s6, s6, 2'); k('s_lshr_b32 s7, s2, 3'); k('s_and_b32 s7, s7, 3'); k('s_add_u32 s6, s6, s7'); k('s_lshr_b32 s7, s2, 5')
        k(f'v_and_b32 v{V_F}, 15, v{V_LANE}')
        k(f'v_lshrrev_b32 v{V_G}, 4, v{V_LANE}')
        k(f'v_lshlrev_b32 v{V_L16}, 4, v{V_LANE}')
        k(f'v_and_b32 v{V_L31}, 31, v{V_LANE}')
        k(f'v_lshrrev_b32 v{V_H}, 5, v{V_LANE}')
        k(f'v_lshrrev_b32 v24, 2, v{V_F}')
        k(f'v_and_b32 v25, 1, v{V_G}'); k('v_lshl_add_u32 v24, v25, 2, v24')
        k(f'v_lshrrev_b32 v25, 1, v{V_G}'); k('v_lshl_add_u32 v24, v25, 4, v24')
        k('v_mul_u32_u24 v24, 160, v24')
        k(f'v_and_b32 v25, 3, v{V_LANE}')
        k(f'v_lshl_add_u32 v{V_TR}, v25, 3, v24')
        k('s_lshl_b32 s28, s6, 6'); k('s_lshl_b32 s29, s4, 4'); k('s_add_u32 s28, s28, s29')
        k(f'v_add_u32 v{V_TOK}, s28, v{V_F}')
        k('s_mul_i32 s29, s7, 160')
        for j in range(5):
            k(f'v_add_u32 v24, {64*j}, v{V_LANE}')
            k('v_mul_u32_u24 v25, 6554, v24'); k('v_lshrrev_b32 v25, 16, v25')
            k('v_mul_u32_u24 v26, 10, v25'); k('v_sub_u32 v26, v24, v26')
            k('v_and_b32 v27, 0x13, v25')
            k('v_bfe_u32 v28, v25, 3, 1'); k('v_lshl_add_u32 v27, v28, 2, v27')
            k('v_bfe_u32 v28, v25, 2, 1'); k('v_lshl_add_u32 v27, v28, 3, v27')
            k('v_mul_u32_u24 v27, 1280, v27')
            k('v_lshl_add_u32 v27, v26, 4, v27')
            k(f'v_add_u32 v{V_D+j}, s29, v27')
        k('s_waitcnt lgkmcnt(0)')
        if self.stamps:
            k('s_mov_b32 s99, s100')
            for i in range(11): k(f's_mov_b32 s{88+i}, 0')
        srd(k,WS,86,WS_USED)
        k('s_mov_b32 s12, 0'); k('s_mov_b32 s13, 0')
        srd(k,60,58,256)
        nn=k.lab('nn')
        k('s_cmp_lg_u32 s2, 0'); k(f's_cbranch_scc1 {nn}')
        k('s_cmp_lg_u32 s3, 5'); k(f's_cbranch_scc1 {nn}')
        k('s_memrealtime s[28:29]')
        k('s_waitcnt lgkmcnt(0)')
        k('s_lshl_b32 s28, s28, 6'); k('s_or_b32 s28, s28, 1')
        k('v_mov_b32 v201, s28'); k('v_mov_b32 v200, 0')
        k('s_mov_b64 exec, 1')
        k('buffer_store_dword v201, v200, s[60:63], 0 offen sc1')
        k('s_mov_b64 exec, -1')
        k(nn+':')
        k('s_mul_i32 s40, s7, 7'); k('s_sub_u32 s28, s7, 6'); k('s_max_i32 s28, s28, 0'); k('s_sub_u32 s40, s40, s28')
        k('s_cmp_ge_u32 s7, 6'); k('s_cselect_b32 s41, 6, 7')
        k('s_add_u32 s40, s40, s3')

    def x0_loads(self,XF,T):
        k=self.k
        srd(k,SC,P_X,2048*1280)
        k('s_movk_i32 s28, 1280')
        k(f'v_mul_lo_u32 v{T}, v{V_TOK}, s28')
        k(f'v_lshl_add_u32 v{T+1}, v{V_G}, 4, v{T}')
        k('s_mul_i32 s29, s5, 640')
        k(f'v_add_u32 v{T+1}, s29, v{T+1}')
        if 'xlin' in os.environ.get('XP',''):
            k('s_lshl_b32 s28, s6, 2'); k('s_add_u32 s28, s28, s4'); k('s_mul_i32 s28, s28, 20'); k('s_mul_i32 s29, s5, 10'); k('s_add_u32 s28, s28, s29'); k('s_lshl_b32 s28, s28, 10')
            for i in range(10):
                k(f'buffer_load_dwordx4 v[{XF+4*i}:{XF+4*i+3}], v{V_L16}, s[{SC}:{SC+3}], s28 offen offset:{(i%4)*1024}')
                if i%4==3: k('s_add_u32 s28, s28, 4096')
        else:
          for i in range(10):
            k(f'buffer_load_dwordx4 v[{XF+4*i}:{XF+4*i+3}], v{T+1}, s[{SC}:{SC+3}], 0 offen offset:{i*64}')
        k(f'v_lshl_add_u32 v{T+1}, v{V_G}, 3, v{T}')
        k('s_mul_i32 s29, s7, 160'); k('s_mul_i32 s30, s5, 96'); k('s_add_u32 s29, s29, s30')
        k(f'v_add_u32 v{T+1}, s29, v{T+1}')
        for j in range(3):
            k(f'buffer_load_dwordx2 v[{V_RES+2*j}:{V_RES+2*j+1}], v{T+1}, s[{SC}:{SC+3}], 0 offen offset:{j*32}')

    def conv_issue(self, stage, kinds):
        k=self.k
        done=k.lab('cvd'); go=k.lab('cvg')
        total=sum(x[5] for x in kinds)
        k('s_mov_b32 s50, 0')
        k('s_lshl_b32 s28, s43, 8'); k('s_add_u32 s28, s28, s2')
        k(f's_cmp_ge_u32 s28, {total}'); k(f's_cbranch_scc1 {done}')
        labs=[k.lab('cvk') for _ in kinds]
        acc=0
        for idx,x in enumerate(kinds[:-1]):
            acc+=x[5]
            k(f's_cmp_lt_u32 s28, {acc}'); k(f's_cbranch_scc1 {labs[idx]}')
        k(f's_branch {labs[-1]}')
        acc=0
        for idx,(name,ptr,rows,stride,ncg,njobs,dst,layout) in enumerate(kinds):
            k(labs[idx]+':')
            if acc: k(f's_sub_u32 s28, s28, {acc}')
            magic=-(-65536//ncg)
            assert all((j*magic)>>16==j//ncg for j in range(njobs))
            k(f's_mul_i32 s29, s28, {magic}'); k('s_lshr_b32 s29, s29, 16')
            k(f's_mul_i32 s30, s29, {ncg}'); k('s_sub_u32 s30, s28, s30')
            srd(k,SA,ptr,rows*stride)
            k(f's_movk_i32 s31, {stride}')
            k(f's_mov_b32 s50, {1 if layout=="w1" else 2}')
            if layout=='w1':
                k('s_mul_i32 s51, s30, 80'); k('s_lshl_b32 s32, s29, 1'); k('s_add_u32 s51, s51, s32')
                k('s_mov_b32 s57, 0')
            else:
                KS=rows//32
                k(f's_mul_i32 s51, s30, {4*KS}'); k('s_add_u32 s51, s51, s29')
                k(f's_mov_b32 s57, {KS*1024}')
            k('s_lshl_b32 s51, s51, 10'); k(f's_add_u32 s51, s51, {dst}')
            k(f's_branch {go}')
            acc+=njobs
        k(go+':')
        k(f'v_lshrrev_b32 v200, 3, v{V_LANE}'); k('v_mul_lo_u32 v200, v200, s31')
        k(f'v_and_b32 v201, 7, v{V_LANE}'); k('v_lshl_add_u32 v200, v201, 4, v200')
        k('s_lshl_b32 s32, s29, 5'); k('s_mul_i32 s32, s32, s31'); k('s_lshl_b32 s33, s30, 7'); k('s_add_u32 s32, s32, s33')
        k('s_lshl_b32 s33, s31, 3')
        k('s_lshl_b32 s34, s43, 12'); k(f's_add_u32 s34, s34, {stage}')
        for i in range(4):
            k('s_mov_b32 m0, s34')
            k(f'buffer_load_dwordx4 v200, s[{SA}:{SA+3}], s32 offen lds')
            if i<3:
                k('s_add_u32 s32, s32, s33'); k('s_add_u32 s34, s34, 1024')
        k(done+':')
    def conv_finish(self,T,stage):
        k=self.k
        done=k.lab('cfd'); w2=k.lab('cf2')
        k('s_cmp_eq_u32 s50, 0'); k(f's_cbranch_scc1 {done}')
        k('s_lshl_b32 s34, s43, 12'); k(f's_add_u32 s34, s34, {stage}')
        k(f'v_lshrrev_b32 v{T}, 2, v{V_F}')
        k(f'v_and_b32 v{T+1}, 3, v{V_LANE}')
        k('s_cmp_eq_u32 s50, 2'); k(f's_cbranch_scc1 {w2}')
        k(f'v_lshl_add_u32 v{T}, v{V_H}, 3, v{T}'); k(f'v_lshlrev_b32 v{T}, 7, v{T}')
        k(f'v_and_b32 v{T+2}, 1, v{V_G}'); k(f'v_lshl_add_u32 v{T}, v{T+2}, 5, v{T}')
        k(f'v_lshl_add_u32 v{T}, v{T+1}, 3, v{T}'); k(f'v_add_u32 v{T}, s34, v{T}')
        fr=[(p,u) for p in range(2) for u in range(2)]
        for n,(p,u) in enumerate(fr):
            b=T+4+4*n
            k(f'ds_read_b64_tr_b16 v[{b}:{b+1}], v{T} offset:{u*2048+p*64}')
            k(f'ds_read_b64_tr_b16 v[{b+2}:{b+3}], v{T} offset:{u*2048+p*64+512}')
        k('s_waitcnt lgkmcnt(0)')
        for n,(p,u) in enumerate(fr):
            b=T+4+4*n
            k(f's_add_u32 s32, s51, {(p*40+u)*1024}')
            k(f'buffer_store_dwordx4 v[{b}:{b+3}], v{V_L16}, s[{WS}:{WS+3}], s32 offen sc1')
        k(f's_branch {done}')
        k(w2+':')
        k(f'v_lshl_add_u32 v{T}, v{V_G}, 3, v{T}'); k(f'v_lshlrev_b32 v{T}, 7, v{T}')
        k(f'v_lshl_add_u32 v{T}, v{T+1}, 3, v{T}'); k(f'v_add_u32 v{T}, s34, v{T}')
        for n in range(4):
            b=T+4+4*n
            k(f'ds_read_b64_tr_b16 v[{b}:{b+1}], v{T} offset:{n*32}')
            k(f'ds_read_b64_tr_b16 v[{b+2}:{b+3}], v{T} offset:{n*32+512}')
        k('s_waitcnt lgkmcnt(0)')
        k('s_mov_b32 s32, s51')
        for n in range(4):
            b=T+4+4*n
            k(f'buffer_store_dwordx4 v[{b}:{b+3}], v{V_L16}, s[{WS}:{WS+3}], s32 offen sc1')
            if n<3: k('s_add_u32 s32, s32, s57')
        k(done+':')
    CONV_A=[('wo',P_WO,640,1280,10,200,WOF,'a16'),('wq',P_WQ,640,1280,10,200,WQF,'a16')]
    CONV_B=[('w1',P_W1,640,3456,27,540,W1F,'w1'),('w2',P_W2,1728,1280,10,540,W2F,'a16')]

    def dma_lin_slice(self, src_const, waves=8):
        k=self.k
        k(f's_mul_i32 s28, s7, 102400'); k(f's_add_u32 s28, s28, {src_const}')
        k('s_lshl_b32 s29, s3, 10'); k('s_add_u32 s28, s28, s29')
        for n in range(13):
            lab=None
            if n==12:
                lab=k.lab('dl'); k('s_cmp_ge_u32 s3, 4'); k(f's_cbranch_scc1 {lab}')
            k('s_mov_b32 m0, s29')
            k(f'buffer_load_dwordx4 v{V_L16}, s[{WS}:{WS+3}], s28 offen sc1 lds')
            if n<12:
                k('s_add_u32 s28, s28, 8192'); k('s_add_u32 s29, s29, 8192')
            if lab: k(lab+':')

    def dma_next_qkv(self):
        k=self.k
        end=k.lab('dn')
        k(f's_cmp_eq_u32 s3, {POLLW}'); k(f's_cbranch_scc1 {end}')
        k('s_and_b32 s28, s7, 1'); k('s_cmp_eq_u32 s28, 0')
        k(f's_cselect_b32 s30, s{P_WK}, s{P_WV}'); k(f's_cselect_b32 s31, s{P_WK+1}, s{P_WV+1}')
        srd(k,SB,30,25600)
        for t in range(4):
            lab=k.lab('wk')
            k(f's_add_u32 s28, s3, {7*t}')
            if t==3:
                k('s_cmp_ge_u32 s28, 25'); k(f's_cbranch_scc1 {lab}')
            k('s_lshl_b32 s29, s28, 10'); k(f's_add_u32 s30, s29, {L_WKV}')
            k('s_mov_b32 m0, s30')
            k(f'buffer_load_dwordx4 v{V_L16}, s[{SB}:{SB+3}], s29 offen lds')
            k(lab+':')
        k(f's_mul_i32 s28, s7, 102400'); k(f's_add_u32 s28, s28, {WQF}')
        k('s_lshl_b32 s29, s3, 10'); k('s_add_u32 s28, s28, s29')
        for n in range(15):
            lab=None
            if n==14:
                lab=k.lab('dl'); k('s_cmp_ge_u32 s3, 2'); k(f's_cbranch_scc1 {lab}')
            k('s_mov_b32 m0, s29')
            k(f'buffer_load_dwordx4 v{V_L16}, s[{WS}:{WS+3}], s28 offen sc1 lds')
            if n<14:
                k('s_add_u32 s28, s28, 7168'); k('s_add_u32 s29, s29, 7168')
            if lab: k(lab+':')
        k(end+':')
    def tlb_warm(self):
        k=self.k
        lab=k.lab('tw')
        k('s_cmp_lg_u32 s3, 6'); k(f's_cbranch_scc1 {lab}')
        k(f'v_lshlrev_b32 v200, 19, v{V_LANE}')
        k(f'buffer_load_dword v201, v200, s[{WS}:{WS+3}], 0 offen')
        for ptr,size in ((P_W1,640*3456),(P_W2,1728*1280),(P_OUT,2048*1280),(P_WO,640*1280),(P_B1,3456),(P_B2,1280)):
            srd(k,SA,ptr,size)
            k(f'buffer_load_dword v201, v200, s[{SA}:{SA+3}], 0 offen')
        if 'cpf' in os.environ.get('XP',''):
            k('s_getpc_b64 s[56:57]')
            k('mega_code_here:')
            k('s_mov_b32 s28, mega_code_end-mega_code_here-4')
            k(f'v_lshlrev_b32 v200, 7, v{V_LANE}')
            for n in range(8):
                k('v_min_u32 v202, s28, v200')
                k('global_load_dword v201, v202, s[56:57]')
                k('v_add_u32 v200, 8192, v200')
        k(lab+':')

    def frag_gemm(self, frags, WR, depth, nread, after=None):
        k=self.k
        n=len(frags); slots=depth+1
        reg=lambda i: WR+(i%slots)*4
        def issue(i):
            if frags[i].get('pre'): frags[i]['pre']()
            frags[i]['read'](reg(i))
        for i in range(min(depth,n)): issue(i)
        for i in range(n):
            if i+depth<n: issue(i+depth)
            rem=min(depth,n-1-i)
            w=f's_waitcnt lgkmcnt({rem*nread})'
            vm=frags[i].get('vm')
            if vm is not None:
                v=vm() if callable(vm) else vm
                if v is not None: w+=f' vmcnt({v})'
            k(w)
            frags[i]['mfma'](reg(i))
            if after and i in after: after[i]()

    def diag_stats(self,SX,SQ,S0,S1,tmp):
        k=self.k
        k(f'v_and_b32 v{tmp}, 3, v{V_LANE}')
        k(f'v_mov_b32 v{S1}, v{SQ}')
        for r in (1,2,3):
            k(f'v_cmp_eq_u32 vcc, {r}, v{tmp}'); k(f'v_cndmask_b32 v{S1}, v{S1}, v{SQ+r}, vcc')
        k(f'v_mov_b32 v{S0}, v{SX}')
    def diag_mask_on(self):
        k=self.k
        k('s_mov_b32 exec_lo, 0x00f0000f'); k('s_mov_b32 exec_hi, 0xf0000f00')
    def reduce_pairs(self, ACC, tmp, base):
        k=self.k
        k('s_mul_i32 s28, s4, 5120')
        k(f's_add_u32 s28, s28, {base}')
        k(f'v_add_u32 v{tmp}, s28, v{V_L16}')
        l1=k.lab('r1'); l2=k.lab('r2')
        k('s_cmp_eq_u32 s5, 1'); k(f's_cbranch_scc1 {l1}')
        for ft in (3,4): k(f'ds_write_b128 v{tmp}, v[{ACC+4*ft}:{ACC+4*ft+3}] offset:{ft*1024}')
        k(f's_branch {l2}')
        k(l1+':')
        for ft in (0,1,2): k(f'ds_write_b128 v{tmp}, v[{ACC+4*ft}:{ACC+4*ft+3}] offset:{ft*1024}')
        for i in range(8): k(f'v_mov_b32 v{ACC+i}, v{ACC+12+i}')
        k(l2+':')
    def reduce_pairs_finish(self, ACC, tmp, T):
        k=self.k
        k('s_mul_i32 s29, s5, 3072')
        k(f'v_add_u32 v{tmp}, s29, v{tmp}')
        for j in range(3): k(f'ds_read_b128 v[{T+4*j}:{T+4*j+3}], v{tmp} offset:{j*1024}')
        k('s_waitcnt lgkmcnt(0)')
        for i in range(12): k(f'v_add_f32 v{ACC+i}, v{ACC+i}, v{T+i}')

    def tile_offsets(self, sbase):
        k=self.k
        k('s_lshl_b32 s28, s6, 2'); k('s_add_u32 s28, s28, s4'); k('s_mul_i32 s28, s28, 20480')
        k('s_mul_i32 s29, s7, 5'); k('s_mul_i32 s30, s5, 3'); k('s_add_u32 s29, s29, s30')
        for j in range(3):
            k(f's_add_u32 s30, s29, {j}'); k('s_lshl_b32 s30, s30, 9')
            k(f's_add_u32 s{sbase+j}, s30, s28')

    def x_loads(self,XF,n,base_const,layer_stride,KS,per_half):
        k=self.k
        k('s_lshl_b32 s28, s6, 2'); k('s_add_u32 s28, s28, s4'); k(f's_mul_i32 s28, s28, {KS}'); k(f's_mul_i32 s29, s5, {per_half}'); k('s_add_u32 s28, s28, s29')
        k('s_lshl_b32 s28, s28, 10')
        if layer_stride:
            k(f's_mul_i32 s29, s12, {layer_stride}'); k('s_add_u32 s28, s28, s29')
        k(f's_add_u32 s28, s28, {base_const}')
        for i in range(n):
            k(f'buffer_load_dwordx4 v[{XF+4*i}:{XF+4*i+3}], v{V_L16}, s[{WS}:{WS+3}], s28 offen offset:{(i%4)*1024} sc1')
            if i%4==3: k('s_add_u32 s28, s28, 4096')

    def kv_flag(self,T):
        k=self.k
        nkf=k.lab('nkf')
        k('s_lshr_b32 s28, s7, 1'); k('s_cmp_lg_u32 s28, s4'); k(f's_cbranch_scc1 {nkf}')
        k('s_waitcnt vmcnt(0)')
        k('s_add_u32 s28, s13, 1'); k(f'v_mov_b32 v{T+5}, s28')
        k('s_lshl_b32 s29, s6, 6'); k('s_lshl_b32 s30, s7, 3'); k('s_add_u32 s29, s29, s30'); k('s_lshl_b32 s30, s5, 2'); k('s_add_u32 s29, s29, s30')
        k(f's_add_u32 s29, s29, {KVFLG}')
        k(f'v_mov_b32 v{T+6}, s29')
        k('s_mov_b64 exec, 1')
        k(f'buffer_store_dword v{T+5}, v{T+6}, s[{WS}:{WS+3}], 0 offen sc1')
        k('s_mov_b64 exec, -1')
        k(nkf+':')
    def kv_first(self,XF,WR,KVA,KVC,ONES,SX,SQ,T):
        k=self.k
        nokv=k.lab('nokv')
        S0,S1=T+2,T+3
        k('s_lshr_b32 s28, s7, 1'); k('s_cmp_lg_u32 s28, s4'); k(f's_cbranch_scc1 {nokv}')
        k(f'v_lshrrev_b32 v{T+4}, 2, v{V_F}'); k(f'v_lshl_add_u32 v{T+4}, v{V_G}, 3, v{T+4}'); k(f'v_mul_u32_u24 v{T+4}, 40, v{T+4}')
        k(f'v_and_b32 v{T+5}, 3, v{V_LANE}'); k(f'v_lshl_add_u32 v{T+4}, v{T+5}, 3, v{T+4}')
        k('s_mul_i32 s28, s5, 12800'); k(f's_add_u32 s28, s28, {L_WKV}'); k(f'v_add_u32 v{T+4}, s28, v{T+4}')
        kvd=k.lab('kvd')
        vl={(v,c):k.lab('kvv') for v in (0,1) for c in (0,1)}
        k('s_and_b32 s28, s7, 1'); k('s_lshl_b32 s28, s28, 1'); k('s_add_u32 s28, s28, s12')
        for idx,(v,c) in enumerate(((0,1),(0,0),(1,1))):
            k(f's_cmp_eq_u32 s28, {idx}'); k(f's_cbranch_scc1 {vl[(v,c)]}')
        k(f's_branch {vl[(1,0)]}')
        for (variant,with_cs),lab in vl.items():
            k(lab+':')
            fr=[]
            for i in range(10):
                for u in range(2):
                    def rd(r,i=i,u=u):
                        k(f'ds_read_b64_tr_b16 v[{r}:{r+1}], v{T+4} offset:{i*1280+u*32}')
                        k(f'ds_read_b64_tr_b16 v[{r+2}:{r+3}], v{T+4} offset:{i*1280+160+u*32}')
                    def mf(r,i=i,u=u,variant=variant,with_cs=with_cs):
                        c=KVA+4*u; cc=KVC+4*u
                        cs='0' if i==0 else f'v[{c}:{c+3}]'; cs2='0' if i==0 else f'v[{cc}:{cc+3}]'
                        X=f'v[{XF+4*i}:{XF+4*i+3}]'; W=f'v[{r}:{r+3}]'; O_=f'v[{ONES}:{ONES+3}]'
                        if variant==0:
                            k(f'v_mfma_f32_16x16x32_bf16 v[{c}:{c+3}], {W}, {X}, {cs}')
                            if with_cs: k(f'v_mfma_f32_16x16x32_bf16 v[{cc}:{cc+3}], {W}, {O_}, {cs2}')
                        else:
                            k(f'v_mfma_f32_16x16x32_bf16 v[{c}:{c+3}], {X}, {W}, {cs}')
                            if with_cs: k(f'v_mfma_f32_16x16x32_bf16 v[{cc}:{cc+3}], {O_}, {W}, {cs2}')
                        if u==0:
                            a0='0' if i==0 else f'v[{SX}:{SX+3}]'
                            k(f'v_mfma_f32_16x16x32_bf16 v[{SX}:{SX+3}], {O_}, {X}, {a0}')
                        else:
                            a0='0' if i==0 else f'v[{SQ}:{SQ+3}]'
                            k(f'v_mfma_f32_16x16x32_bf16 v[{SQ}:{SQ+3}], {X}, {X}, {a0}')
                    fr.append(dict(read=rd,mfma=mf,vm=((9-i) if (u==0 and not with_cs) else None)))
            self.frag_gemm(fr,WR,7,2)
            k(f's_branch {kvd}')
        k(kvd+':')
        nz=k.lab('nz'); pl=k.lab('npl'); pd=k.lab('npd')
        k('s_cmp_lg_u32 s12, 0'); k(f's_cbranch_scc1 {nz}')
        k('s_mov_b32 s30, 0')
        k(pl+':')
        k('s_waitcnt vmcnt(0)')
        k('v_cmp_eq_u32 vcc, 0, v201')
        k(f's_cbranch_vccz {pd}')
        k('v_mov_b32 v200, 0')
        k('buffer_load_dword v201, v200, s[60:63], 0 offen sc1')
        k('s_add_u32 s30, s30, 1'); k('s_cmp_lt_u32 s30, 0x40000'); k(f's_cbranch_scc1 {pl}')
        k('s_waitcnt vmcnt(0)')
        k(pd+':')
        k('v_readfirstlane_b32 s13, v201')
        k(f'v_mov_b32 v200, {L_NONCE}')
        k('ds_write_b32 v200, v201')
        k(nz+':')
        self.diag_stats(SX,SQ,S0,S1,T+6)
        k('s_lshl_b32 s28, s4, 8'); k('s_lshl_b32 s29, s5, 7'); k('s_add_u32 s28, s28, s29'); k(f's_add_u32 s28, s28, {L_STAT}')
        k(f'v_lshl_add_u32 v{T+6}, v{V_F}, 3, s28')
        self.diag_mask_on()
        k(f'ds_write_b64 v{T+6}, v[{S0}:{S1}]')
        k('s_mov_b64 exec, -1')
        k(f'v_add_u32 v{T+5}, {L_KVR}, v{V_L16}')
        a=k.lab('ka'); b_=k.lab('kb')
        k('s_cmp_eq_u32 s5, 1'); k(f's_cbranch_scc1 {a}')
        k(f'ds_write_b128 v{T+5}, v[{KVA+4}:{KVA+7}] offset:2048'); k(f'ds_write_b128 v{T+5}, v[{KVC+4}:{KVC+7}] offset:3072')
        k(f's_branch {b_}')
        k(a+':')
        k(f'ds_write_b128 v{T+5}, v[{KVA}:{KVA+3}]'); k(f'ds_write_b128 v{T+5}, v[{KVC}:{KVC+3}] offset:1024')
        for i in range(4):
            k(f'v_mov_b32 v{KVA+i}, v{KVA+4+i}'); k(f'v_mov_b32 v{KVC+i}, v{KVC+4+i}')
        k(b_+':')
        k('s_add_u32 s28, s13, 1'); k(f'v_mov_b32 v{T+6}, s28')
        k('s_lshl_b32 s29, s5, 2'); k(f's_add_u32 s29, s29, {L_PAIRF}'); k(f'v_mov_b32 v{T+7}, s29')
        k('s_waitcnt lgkmcnt(0)')
        k(f'ds_write_b32 v{T+7}, v{T+6}')
        k(f'v_xor_b32 v{T+7}, 4, v{T+7}')
        sp=k.lab('pr'); spd=k.lab('prd')
        k('s_mov_b32 s30, 0')
        k(sp+':')
        k(f'ds_read_b32 v{T+8}, v{T+7}')
        k('s_waitcnt lgkmcnt(0)')
        k(f'v_cmp_eq_u32 vcc, s28, v{T+8}')
        k(f's_cbranch_vccnz {spd}')
        k('s_add_u32 s30, s30, 1'); k('s_cmp_lt_u32 s30, 0x100000'); k(f's_cbranch_scc1 {sp}')
        k(spd+':')
        KW=WR
        k('s_lshl_b32 s28, s5, 11'); k(f's_add_u32 s28, s28, {L_KVR}')
        k(f'v_add_u32 v{T+5}, s28, v{V_L16}')
        k(f'ds_read_b128 v[{KW}:{KW+3}], v{T+5}'); k(f'ds_read_b128 v[{KW+4}:{KW+7}], v{T+5} offset:1024')
        k('s_lshl_b32 s28, s4, 8'); k(f's_add_u32 s28, s28, {L_STAT}')
        k(f'v_lshl_add_u32 v{T+6}, v{V_F}, 3, s28')
        k(f'ds_read_b64 v[{T+10}:{T+11}], v{T+6}'); k(f'ds_read_b64 v[{T+12}:{T+13}], v{T+6} offset:128')
        k('s_lshl_b32 s28, s5, 10'); k(f's_add_u32 s28, s28, {L_KVCS}'); k(f'v_add_u32 v{T+7}, s28, v{V_L16}')
        c0=k.lab('c0'); c1=k.lab('c1')
        k('s_cmp_eq_u32 s12, 0'); k(f's_cbranch_scc1 {c0}')
        k(f'ds_read_b128 v[{KVC}:{KVC+3}], v{T+7}')
        k('s_waitcnt lgkmcnt(0)')
        k(f's_branch {c1}')
        k(c0+':')
        k('s_waitcnt lgkmcnt(0)')
        for i in range(4): k(f'v_add_f32 v{KVC+i}, v{KVC+i}, v{KW+4+i}')
        k(f'ds_write_b128 v{T+7}, v[{KVC}:{KVC+3}]')
        k(c1+':')
        for i in range(4): k(f'v_add_f32 v{KVA+i}, v{KVA+i}, v{KW+i}')
        MEAN,RSTD=T+14,T+15
        k(f'v_add_f32 v{T+10}, v{T+10}, v{T+12}'); k(f'v_add_f32 v{T+11}, v{T+11}, v{T+13}')
        k(f'v_mul_f32 v{MEAN}, {hex(f2u(1/640))}, v{T+10}'); k(f'v_mul_f32 v{T+11}, {hex(f2u(1/640))}, v{T+11}')
        k(f'v_fma_f32 v{T+11}, -v{MEAN}, v{MEAN}, v{T+11}'); k(f'v_max_f32 v{T+11}, 0, v{T+11}')
        k(f'v_add_f32 v{T+11}, {hex(f2u(1e-5))}, v{T+11}'); k(f'v_rsq_f32 v{RSTD}, v{T+11}')
        k(f'v_mul_f32 v{MEAN}, v{MEAN}, v{RSTD}')
        k('s_lshl_b32 s30, s6, 6'); k('s_lshl_b32 s31, s4, 4'); k('s_add_u32 s30, s30, s31')
        k('s_lshr_b32 s31, s30, 5'); k('s_mul_i32 s31, s31, 3584')
        k(f's_mul_i32 s32, s12, {KV_D}'); k('s_add_u32 s31, s31, s32'); k(f's_add_u32 s31, s31, {KVB[0]}')
        k('s_lshr_b32 s32, s30, 4'); k('s_and_b32 s32, s32, 1')
        isv2=k.lab('isv2')
        k('s_and_b32 s28, s7, 1'); k('s_cmp_eq_u32 s28, 1'); k(f's_cbranch_scc1 {isv2}')
        for i in range(4):
            k(f'v_mul_f32 v{KVA+i}, v{KVA+i}, v{RSTD}'); k(f'v_fma_f32 v{KVA+i}, -v{MEAN}, v{KVC+i}, v{KVA+i}')
        k('s_lshl_b32 s28, s5, 2'); k(f'v_add_u32 v{T+6}, s28, v{V_G}')
        k(f'v_cmp_eq_u32 vcc, 5, v{T+6}')
        for i in range(4): k(f'v_cndmask_b32 v{KVA+i}, v{KVA+i}, 0, vcc')
        k(f'v_cvt_pk_bf16_f32 v{KVA}, v{KVA}, v{KVA+1}'); k(f'v_cvt_pk_bf16_f32 v{KVA+1}, v{KVA+2}, v{KVA+3}')
        k('s_lshl_b32 s28, s32, 4'); k(f'v_add_u32 v{T+7}, s28, v{V_F}')
        k(f'v_lshrrev_b32 v{T+8}, 1, v{T+6}'); k(f'v_lshlrev_b32 v{T+8}, 9, v{T+8}')
        k(f'v_lshl_add_u32 v{T+8}, v{T+7}, 4, v{T+8}')
        k(f'v_and_b32 v{T+9}, 1, v{T+6}'); k(f'v_lshl_add_u32 v{T+8}, v{T+9}, 3, v{T+8}')
        k(f'v_subrev_u32 v{T+9}, 4, v{T+6}'); k(f'v_lshlrev_b32 v{T+9}, 8, v{T+9}')
        k(f'v_lshl_add_u32 v{T+9}, v{T+7}, 3, v{T+9}'); k(f'v_add_u32 v{T+9}, 3072, v{T+9}')
        k(f'v_cmp_gt_u32 vcc, 4, v{T+6}'); k(f'v_cndmask_b32 v{T+8}, v{T+9}, v{T+8}, vcc')
        k(f'v_cmp_gt_u32 vcc, 6, v{T+6}'); k(f'v_mov_b32 v{T+9}, {OOB}'); k(f'v_cndmask_b32 v{T+8}, v{T+9}, v{T+8}, vcc')
        k(f'buffer_store_dwordx2 v[{KVA}:{KVA+1}], v{T+8}, s[{WS}:{WS+3}], s31 offen sc1')
        k(f's_branch {nokv}')
        k(isv2+':')
        k('s_lshl_b32 s28, s4, 8'); k(f's_add_u32 s28, s28, {L_STAT}')
        k(f'v_lshl_add_u32 v{T+6}, v{V_G}, 5, s28')
        Y=WR+8
        k(f'ds_read_b128 v[{Y}:{Y+3}], v{T+6}'); k(f'ds_read_b128 v[{Y+4}:{Y+7}], v{T+6} offset:16')
        k(f'ds_read_b128 v[{Y+8}:{Y+11}], v{T+6} offset:128'); k(f'ds_read_b128 v[{Y+12}:{Y+15}], v{T+6} offset:144')
        k('s_waitcnt lgkmcnt(0)')
        for i in range(4):
            s_,q_=Y+2*i,Y+2*i+1
            k(f'v_add_f32 v{s_}, v{s_}, v{s_+8}'); k(f'v_add_f32 v{q_}, v{q_}, v{q_+8}')
            k(f'v_mul_f32 v{s_}, {hex(f2u(1/640))}, v{s_}'); k(f'v_mul_f32 v{q_}, {hex(f2u(1/640))}, v{q_}')
            k(f'v_fma_f32 v{q_}, -v{s_}, v{s_}, v{q_}'); k(f'v_max_f32 v{q_}, 0, v{q_}'); k(f'v_add_f32 v{q_}, {hex(f2u(1e-5))}, v{q_}')
            k(f'v_rsq_f32 v{q_}, v{q_}')
            k(f'v_fma_f32 v{KVA+i}, -v{s_}, v{KVC+i}, v{KVA+i}')
            k(f'v_mul_f32 v{KVA+i}, v{KVA+i}, v{q_}')
        k('s_lshl_b32 s28, s5, 4'); k(f'v_add_u32 v{T+6}, s28, v{V_F}')
        k(f'v_cmp_eq_u32 vcc, 20, v{T+6}')
        for i in range(4): k(f'v_cndmask_b32 v{KVA+i}, v{KVA+i}, 1.0, vcc')
        k(f'v_cmp_lt_u32 vcc, 20, v{T+6}')
        for i in range(4): k(f'v_cndmask_b32 v{KVA+i}, v{KVA+i}, 0, vcc')
        k(f'v_cvt_pk_bf16_f32 v{KVA}, v{KVA}, v{KVA+1}'); k(f'v_cvt_pk_bf16_f32 v{KVA+1}, v{KVA+2}, v{KVA+3}')
        k('s_lshl_b32 s28, s32, 10'); k('s_add_u32 s28, s28, 1024')
        k(f'v_and_b32 v{T+7}, 1, v{V_G}'); k(f'v_lshlrev_b32 v{T+7}, 9, v{T+7}')
        k(f'v_lshl_add_u32 v{T+7}, v{T+6}, 4, v{T+7}')
        k(f'v_lshrrev_b32 v{T+8}, 1, v{V_G}'); k(f'v_lshl_add_u32 v{T+7}, v{T+8}, 3, v{T+7}')
        k(f'v_add_u32 v{T+7}, s28, v{T+7}')
        k(f'buffer_store_dwordx2 v[{KVA}:{KVA+1}], v{T+7}, s[{WS}:{WS+3}], s31 offen sc1')
        k(nokv+':')

    def phase_qkv(self):
        k=self.k
        XF,WR,ACC,CSA,KVA,KVC,ONES,T=24,64,96,116,124,132,140,144
        SX,SQ=176,180
        l0=k.lab('x0'); l1=k.lab('x1')
        for i in range(4): k(f'v_mov_b32 v{ONES+i}, 0x3f803f80')
        k('s_cmp_eq_u32 s12, 0'); k(f's_cbranch_scc1 {l0}')
        self.x_loads(XF,10,X2B,0,20,10)
        k('s_waitcnt vmcnt(9)')
        k('s_barrier')
        k(f's_branch {l1}')
        k(l0+':')
        nk=k.lab('nk')
        k('s_lshr_b32 s28, s7, 1'); k('s_cmp_lg_u32 s28, s4'); k(f's_cbranch_scc1 {nk}')
        k('s_waitcnt vmcnt(0)')
        k('v_mov_b32 v200, 0')
        k('buffer_load_dword v201, v200, s[60:63], 0 offen sc1')
        k(nk+':')
        k(l1+':')
        self.mark("q.start")
        self.kv_first(XF,WR,KVA,KVC,ONES,SX,SQ,T)
        self.mark("q.kv")
        l2=k.lab('l2')
        k('s_cmp_lg_u32 s12, 0'); k(f's_cbranch_scc1 {l2}')
        k('s_waitcnt vmcnt(0)')
        self.kv_flag(T)
        k('s_waitcnt lgkmcnt(0)')
        k('s_barrier')
        k(f'v_mov_b32 v200, {L_NONCE}')
        k('ds_read_b32 v201, v200')
        k('s_waitcnt lgkmcnt(0)')
        k('v_readfirstlane_b32 s13, v201')
        self.mark("q.b2")
        self.conv_issue(L_RED,self.CONV_A+self.CONV_B)
        self.mark("q.ci")
        k(l2+':')
        vA,vC=T,T+1
        S0,S1=T+2,T+3
        k('s_mul_i32 s28, s5, 51200')
        k(f'v_add_u32 v{vA}, s28, v{V_TR}')
        k('s_lshl_b32 s29, s4, 5')
        k(f'v_add_u32 v{vC}, s29, v{vA}')
        def stat_mfma(i,ft):
            X=f'v[{XF+4*i}:{XF+4*i+3}]'
            if ft==0:
                cs='0' if i==0 else f'v[{SX}:{SX+3}]'
                k(f'v_mfma_f32_16x16x32_bf16 v[{SX}:{SX+3}], v[{ONES}:{ONES+3}], {X}, {cs}')
            if ft==2:
                cs='0' if i==0 else f'v[{SQ}:{SQ+3}]'
                k(f'v_mfma_f32_16x16x32_bf16 v[{SQ}:{SQ+3}], {X}, {X}, {cs}')
        def mk(with_cs):
            fr=[]
            if not with_cs:
                k('s_mul_i32 s28, s5, 10240'); k(f'v_add_u32 v{vA}, s28, v{V_L16}'); k(f'v_add_u32 v{vC}, 61440, v{vA}')
                for i in range(10):
                    for ft in range(5):
                        va,imm=(vA,ft*20480+i*1024) if ft<3 else (vC,(ft-3)*20480+i*1024)
                        def rd(r,va=va,imm=imm): k(f'ds_read_b128 v[{r}:{r+3}], v{va} offset:{imm}')
                        def mf(r,i=i,ft=ft):
                            c=ACC+4*ft; cs='0' if i==0 else f'v[{c}:{c+3}]'
                            k(f'v_mfma_f32_16x16x32_bf16 v[{c}:{c+3}], v[{r}:{r+3}], v[{XF+4*i}:{XF+4*i+3}], {cs}')
                            stat_mfma(i,ft)
                        fr.append(dict(read=rd,mfma=mf,vm=(9-i) if ft==0 else None))
                self.frag_gemm(fr,WR,7,1)
                return
            for i in range(10):
                for ft in range(5):
                    def rd(r,i=i,ft=ft):
                        k(f'ds_read_b64_tr_b16 v[{r}:{r+1}], v{vA} offset:{i*5120+ft*32}')
                        k(f'ds_read_b64_tr_b16 v[{r+2}:{r+3}], v{vA} offset:{i*5120+1280+ft*32}')
                    def mf(r,i=i,ft=ft):
                        c=ACC+4*ft; cs='0' if i==0 else f'v[{c}:{c+3}]'
                        k(f'v_mfma_f32_16x16x32_bf16 v[{c}:{c+3}], v[{r}:{r+3}], v[{XF+4*i}:{XF+4*i+3}], {cs}')
                        if ft==4:
                            cs='0' if i==0 else f'v[{CSA+4}:{CSA+7}]'
                            k(f'v_mfma_f32_16x16x32_bf16 v[{CSA+4}:{CSA+7}], v[{r}:{r+3}], v[{ONES}:{ONES+3}], {cs}')
                        stat_mfma(i,ft)
                    fr.append(dict(read=rd,mfma=mf))
                def rd(r,i=i):
                    k(f'ds_read_b64_tr_b16 v[{r}:{r+1}], v{vC} offset:{i*5120}')
                    k(f'ds_read_b64_tr_b16 v[{r+2}:{r+3}], v{vC} offset:{i*5120+1280}')
                def mf(r,i=i):
                    cs='0' if i==0 else f'v[{CSA}:{CSA+3}]'
                    k(f'v_mfma_f32_16x16x32_bf16 v[{CSA}:{CSA+3}], v[{r}:{r+3}], v[{ONES}:{ONES+3}], {cs}')
                fr.append(dict(read=rd,mfma=mf))
            self.frag_gemm(fr,WR,7,2)
        m1=k.lab('m1'); m2=k.lab('m2')
        k('s_cmp_eq_u32 s12, 0'); k(f's_cbranch_scc0 {m1}')
        mk(True)
        k('s_mul_i32 s28, s5, 320'); k(f's_add_u32 s28, s28, {L_CS}')
        k(f'v_lshl_add_u32 v{T+7}, v{V_G}, 4, s28')
        k('s_lshl_b32 s29, s4, 6'); k(f'v_add_u32 v{T+8}, s29, v{T+7}')
        k(f'ds_write_b128 v{T+8}, v[{CSA}:{CSA+3}]')
        k(f'ds_write_b128 v{T+7}, v[{CSA+4}:{CSA+7}] offset:256')
        k(f's_branch {m2}')
        k(m1+':')
        mk(False)
        k(m2+':')
        self.mark("q.main")
        l3=k.lab('l3'); l4=k.lab('l4')
        k('s_cmp_eq_u32 s12, 0'); k(f's_cbranch_scc1 {l3}')
        self.kv_flag(T)
        k(f's_mov_b32 s43, {L_RED}')
        k(f's_branch {l4}')
        k(l3+':')
        k('s_waitcnt vmcnt(0)')
        self.mark("q.cw")
        self.conv_finish(200,L_RED)
        k(f's_mov_b32 s43, {L_WKV}')
        k(l4+':')
        self.mark("q.mm")
        self.diag_stats(SX,SQ,S0,S1,T+6)
        k('s_lshl_b32 s28, s4, 8'); k('s_lshl_b32 s29, s5, 7'); k('s_add_u32 s28, s28, s29'); k(f's_add_u32 s28, s28, {L_STAT}')
        k(f'v_lshl_add_u32 v{T+6}, v{V_F}, 3, s28')
        self.diag_mask_on()
        k(f'ds_write_b64 v{T+6}, v[{S0}:{S1}]')
        k('s_mov_b64 exec, -1')
        self.reduce_pairs(ACC,T+9,'s43')
        k('s_waitcnt lgkmcnt(0)')
        k('s_barrier')
        Z=XF
        k('s_lshl_b32 s28, s4, 8'); k(f's_add_u32 s28, s28, {L_STAT}')
        k(f'v_lshl_add_u32 v{T+6}, v{V_F}, 3, s28')
        k(f'ds_read_b64 v[{T+10}:{T+11}], v{T+6}'); k(f'ds_read_b64 v[{T+12}:{T+13}], v{T+6} offset:128')
        k('s_mul_i32 s28, s5, 192'); k(f's_add_u32 s28, s28, {L_CS}')
        k(f'v_lshl_add_u32 v{T+7}, v{V_G}, 4, s28')
        CS0=Z+12
        for j in range(3):
            k(f'ds_read_b128 v[{CS0+8*j}:{CS0+8*j+3}], v{T+7} offset:{j*64}')
            k(f'ds_read_b128 v[{CS0+8*j+4}:{CS0+8*j+7}], v{T+7} offset:{320+j*64}')
        self.reduce_pairs_finish(ACC,T+9,Z)
        MEAN,RSTD=T+14,T+15
        k(f'v_add_f32 v{T+10}, v{T+10}, v{T+12}'); k(f'v_add_f32 v{T+11}, v{T+11}, v{T+13}')
        k(f'v_mul_f32 v{MEAN}, {hex(f2u(1/640))}, v{T+10}'); k(f'v_mul_f32 v{T+11}, {hex(f2u(1/640))}, v{T+11}')
        k(f'v_fma_f32 v{T+11}, -v{MEAN}, v{MEAN}, v{T+11}'); k(f'v_max_f32 v{T+11}, 0, v{T+11}')
        k(f'v_add_f32 v{T+11}, {hex(f2u(1e-5))}, v{T+11}'); k(f'v_rsq_f32 v{RSTD}, v{T+11}')
        k(f'v_mul_f32 v{MEAN}, v{MEAN}, v{RSTD}')
        k(f'v_mul_f32 v{T+16}, {hex(f2u(QSCALE))}, v{RSTD}'); k(f'v_mul_f32 v{T+17}, {hex(f2u(QSCALE))}, v{MEAN}')
        k('s_lshl_b32 s28, s4, 4'); k(f'v_add_u32 v{T+18}, s28, v{V_F}'); k(f'v_mul_u32_u24 v{T+18}, 160, v{T+18}')
        k(f'v_lshl_add_u32 v{T+18}, v{V_G}, 3, v{T+18}')
        k('s_mul_i32 s28, s5, 96'); k(f's_add_u32 s28, s28, {L_QL}'); k(f'v_add_u32 v{T+18}, s28, v{T+18}')
        for j in range(3):
            if j==2:
                q3=k.lab('q3'); k('s_cmp_eq_u32 s5, 1'); k(f's_cbranch_scc1 {q3}')
            for i in range(4):
                r=ACC+4*j+i
                k(f'v_add_f32 v{CS0+8*j+i}, v{CS0+8*j+i}, v{CS0+8*j+4+i}')
                k(f'v_mul_f32 v{r}, v{r}, v{T+16}'); k(f'v_fma_f32 v{r}, -v{T+17}, v{CS0+8*j+i}, v{r}')
            k(f'v_cvt_pk_bf16_f32 v{ACC+4*j}, v{ACC+4*j}, v{ACC+4*j+1}'); k(f'v_cvt_pk_bf16_f32 v{ACC+4*j+1}, v{ACC+4*j+2}, v{ACC+4*j+3}')
            k(f'ds_write_b64 v{T+18}, v[{ACC+4*j}:{ACC+4*j+1}] offset:{j*32}')
            if j==2: k(q3+':')
        k('s_waitcnt lgkmcnt(0)')
        self.mark("q.epi")
        self.publish(1)
        self.mark("q.pub")

    def phase_attn(self):
        k=self.k
        D=4; SL=14
        Q1=[24,30]; Q2=[28,34]
        S=[36,52]; O=[68,84]; P=100
        KB=108
        K1=lambda s: KB+s*SL
        V=lambda s: KB+s*SL+4
        K2=lambda s: KB+s*SL+12
        T=KB+D*SL
        VL8=T; NEG=[176,192]
        k(f'v_mul_u32_u24 v{T+1}, 160, v{V_L31}')
        k('s_mul_i32 s28, s4, 40'); k(f's_add_u32 s28, s28, {L_QL}')
        k(f'v_add_u32 v{T+1}, s28, v{T+1}')
        k(f'v_lshl_add_u32 v{T+2}, v{V_H}, 4, v{T+1}')
        for q in range(2):
            k(f'ds_read_b64 v[{Q1[q]}:{Q1[q]+1}], v{T+2} offset:{q*5120}')
            k(f'ds_read_b64 v[{Q1[q]+2}:{Q1[q]+3}], v{T+2} offset:{q*5120+8}')
            k(f'ds_read_b64 v[{Q2[q]}:{Q2[q]+1}], v{T+1} offset:{q*5120+32}')
        k(f'v_lshlrev_b32 v{VL8}, 3, v{V_LANE}')
        k('s_waitcnt lgkmcnt(0)')
        k(f'v_cmp_eq_u32 vcc, 0, v{V_H}')
        for q in range(2):
            for i in range(2): k(f'v_cndmask_b32 v{Q2[q]+i}, 0, v{Q2[q]+i}, vcc')
        self.mark("a.dma")
        VFA,VF=T+6,T+7
        k(f'v_lshlrev_b32 v{VFA}, 2, v{V_LANE}'); k(f'v_add_u32 v{VFA}, {KVFLG}, v{VFA}')
        k('s_add_u32 s38, s13, 1')
        k('s_lshr_b32 s39, s6, 2')
        def spin_group(sg):
            lp=k.lab('sg'); dn=k.lab('sgd')
            k(f's_lshl_b32 s28, s{sg}, 8'); k('s_mov_b32 s30, 0')
            k(lp+':')
            k(f'buffer_load_dword v{VF}, v{VFA}, s[{WS}:{WS+3}], s28 offen sc1')
            k('s_waitcnt vmcnt(0)')
            k(f'v_subrev_u32 v{VF}, s38, v{VF}')
            k(f'v_cmp_le_u32 vcc, 32, v{VF}')
            k(f's_cbranch_vccz {dn}')
            k('s_sleep 2')
            k('s_add_u32 s30, s30, 1'); k('s_cmp_lt_u32 s30, 0x40000'); k(f's_cbranch_scc1 {lp}')
            k(dn+':')
        k(f'v_mov_b32 v{T+8}, {L_BADF}'); k(f'v_mov_b32 v{T+9}, 0'); k(f'ds_write_b32 v{T+8}, v{T+9}')
        k('s_mov_b32 s49, 0')
        k('s_waitcnt lgkmcnt(0)')
        pw=k.lab('pw')
        k(f's_cmp_lg_u32 s3, {POLLW}'); k(f's_cbranch_scc1 {pw}')
        spin_group(39)
        k(pw+':')
        k('s_barrier')
        self.mark("a.wait")
        def ld(slot):
            k(f'buffer_load_dwordx4 v[{K1(slot)}:{K1(slot)+3}], v{V_L16}, s[{WS}:{WS+3}], s32 offen sc1')
            k(f'buffer_load_dwordx2 v[{K2(slot)}:{K2(slot)+1}], v{VL8}, s[{WS}:{WS+3}], s32 offen offset:3072 sc1')
            k(f'buffer_load_dwordx4 v[{V(slot)}:{V(slot)+3}], v{V_L16}, s[{WS}:{WS+3}], s32 offen offset:1024 sc1')
            k(f'buffer_load_dwordx4 v[{V(slot)+4}:{V(slot)+7}], v{V_L16}, s[{WS}:{WS+3}], s32 offen offset:2048 sc1')
            k('s_add_u32 s32, s32, 7168')
        def run_loop(exact,prefetch):
            def qk1(q,s):
                c = f'v[{NEG[q]}:{NEG[q]+15}]' if exact else '0'
                k(f'v_mfma_f32_32x32x16_bf16 v[{S[q]}:{S[q]+15}], v[{K1(s)}:{K1(s)+3}], v[{Q1[q]}:{Q1[q]+3}], {c}')
            def qk2(q,s): k(f'v_mfma_f32_32x32x8_bf16 v[{S[q]}:{S[q]+15}], v[{K2(s)}:{K2(s)+1}], v[{Q2[q]}:{Q2[q]+1}], v[{S[q]}:{S[q]+15}]')
            def pv(q,s,hf): k(f'v_mfma_f32_32x32x16_bf16 v[{O[q]}:{O[q]+15}], v[{V(s)+4*hf}:{V(s)+4*hf+3}], v[{P+4*hf}:{P+4*hf+3}], v[{O[q]}:{O[q]+15}]')
            def ex(q,a):
                for i in range(a,a+4): k(f'v_exp_f32 v{S[q]+i}, v{S[q]+i}')
            def cv(q,a):
                k(f'v_cvt_pk_bf16_f32 v{P+a//2}, v{S[q]+a}, v{S[q]+a+1}')
                k(f'v_cvt_pk_bf16_f32 v{P+a//2+1}, v{S[q]+a+2}, v{S[q]+a+3}')
            k(f's_mul_i32 s33, s12, {KV_D}'); k(f's_add_u32 s33, s33, {KVB[0]}')
            k('s_mul_i32 s28, s5, 3584'); k('s_add_u32 s33, s33, s28')
            k(f's_mul_i32 s28, s39, {8*3584}'); k('s_add_u32 s32, s33, s28')
            k(f's_add_u32 s33, s33, {64*3584}')
            def fload():
                k('s_add_u32 s45, s45, 1'); k('s_and_b32 s45, s45, 7'); k('s_lshl_b32 s46, s45, 8')
                k(f'buffer_load_dword v{VF}, v{VFA}, s[{WS}:{WS+3}], s46 offen sc1')
            def fcheck():
                ok=k.lab('fok')
                k(f'v_subrev_u32 v{VF}, s38, v{VF}')
                k(f'v_cmp_le_u32 vcc, 32, v{VF}')
                k(f's_cbranch_vccz {ok}')
                spin_group(44)
                k(ok+':')
                k('s_cmp_ge_u32 s32, s33'); k(f's_cselect_b32 s28, {64*3584}, 0'); k('s_sub_u32 s32, s32, s28')
            k('s_mov_b32 s45, s39')
            fload(); k('s_mov_b32 s44, s45')
            for t in range(D-1): ld(t)
            for q in range(2):
                for i in range(16): k(f'v_mov_b32 v{O[q]+i}, 0')
            for i in range(4,8): k(f'v_mov_b32 v{P+i}, 0')
            for i in range(4,8): k(f'v_mov_b32 v{V(D-1)+i}, 0')
            k(f's_waitcnt vmcnt({4*(D-2)})')
            qk1(0,0); qk2(0,0)
            k('s_nop 7')
            spf = prefetch and 'spf' in os.environ.get('XP','')
            def body(dma, w1=None, prev_ops=None):
                ops=[]
                PR=os.environ.get('PRIO','')
                if PR=='alt':
                    pa=k.lab('pa'); pb=k.lab('pb')
                    k('s_add_u32 s47, s34, s5'); k('s_and_b32 s47, s47, 1'); k('s_cmp_eq_u32 s47, 0'); k(f's_cbranch_scc1 {pa}')
                    k('s_setprio 1'); k(f's_branch {pb}'); k(pa+':'); k('s_setprio 0'); k(pb+':')
                for t in range(D):
                    s=t; sn=(t+1)%D; sp=(t-1)%D
                    n=4
                    qk1(1,s); ex(0,0); pv(1,sp,1)
                    if t==1: fcheck()
                    if t==2:
                        fload(); n+=1
                    if dma and 'nowof' not in os.environ.get('XP',''):
                        k('s_min_u32 m0, s35, 101376')
                        k('s_add_u32 s37, s36, m0')
                        k(f'buffer_load_dwordx4 v{V_L16}, s[{WS}:{WS+3}], s37 offen sc1 lds')
                        k('s_add_u32 s35, s35, 8192'); n+=1
                    if w1 is not None:
                        for e in range(2): self.f1_wload(w1+2*t+e)
                        n+=2
                    ld(sp)
                    if t==2: k('s_mov_b32 s44, s45')
                    ex(0,4); cv(0,0); qk2(1,s); cv(0,4); ex(0,8); pv(0,s,0); ex(0,12); cv(0,8); cv(0,12)
                    ops.append(n)
                    if t>0: nv=ops[t-1]+ops[t]
                    elif prev_ops is not None: nv=prev_ops+ops[0]
                    else: nv=4+ops[0]
                    k(f's_waitcnt vmcnt({nv})')
                    qk1(0,sn); ex(1,0); pv(0,s,1); ex(1,4); cv(1,0); qk2(0,sn); cv(1,4); ex(1,8); pv(1,s,0); ex(1,12); cv(1,8); cv(1,12)
                return ops[-1]
            if spf:
                k('s_and_b32 s28, s6, 3'); k('s_lshl_b32 s28, s28, 3'); k('s_add_u32 s28, s28, s7'); k('s_lshl_b32 s28, s28, 3'); k('s_add_u32 s28, s28, s3')
                k('s_lshl_b32 s28, s28, 13'); k(f's_add_u32 s28, s28, {W1F}')
                k('s_add_u32 s62, s86, s28'); k('s_addc_u32 s63, s87, 0')
            if os.environ.get('PRIO','')=='young':
                py=k.lab('py'); k('s_cmp_eq_u32 s5, 0'); k(f's_cbranch_scc1 {py}'); k('s_setprio 1'); k(py+':')
            k('s_mov_b32 s34, 0')
            L1=k.lab('al'); k(L1+':')
            body(False)
            k('s_add_u32 s34, s34, 1'); k('s_cmp_lt_u32 s34, 4'); k(f's_cbranch_scc1 {L1}')
            if prefetch:
                nw=k.lab('nw')
                k('s_cmp_lg_u32 s12, 0'); k(f's_cbranch_scc1 {nw}')
                lw=k.lab('lw'); lwd=k.lab('lwd')
                k(f'v_lshrrev_b32 v208, 1, v{V_LANE}'); k('v_lshlrev_b32 v208, 6, v208')
                k(f'v_and_b32 v209, 1, v{V_LANE}'); k('v_lshl_add_u32 v208, v209, 4, v208')
                k('s_mov_b32 s30, 0')
                k(lw+':')
                k(f'buffer_load_dwordx4 v[212:215], v208, s[{WS}:{WS+3}], 0 offen offset:{FLG} sc1')
                k('s_waitcnt vmcnt(0)')
                for r in (212,213,214,215): k(f'v_subrev_u32 v{r}, s38, v{r}')
                k('v_max_u32 v212, v212, v213'); k('v_max_u32 v214, v214, v215'); k('v_max_u32 v212, v212, v214')
                k('v_cmp_le_u32 vcc, 32, v212')
                k(f's_cbranch_vccz {lwd}')
                k('s_add_u32 s30, s30, 1'); k('s_cmp_lt_u32 s30, 0x40000'); k(f's_cbranch_scc1 {lw}')
                k(lwd+':')
                k(nw+':')
                k('s_lshl_b32 s35, s3, 10')
                k(f's_mul_i32 s36, s7, 102400'); k(f's_add_u32 s36, s36, {WOF}')
            L2=k.lab('bl'); k(L2+':')
            last=body(prefetch)
            UNR=2 if (prefetch and self.F1R) else 0
            k('s_add_u32 s34, s34, 1'); k(f's_cmp_lt_u32 s34, {8-UNR}'); k(f's_cbranch_scc1 {L2}')
            if UNR:
                k('s_min_u32 s42, s40, 53'); k('s_mul_i32 s42, s42, 40960'); k(f's_add_u32 s42, s42, {W1F}')
                last=body(True,w1=0,prev_ops=last)
                body(True,w1=8,prev_ops=last)
            pv(1,D-1,1)
            if os.environ.get('PRIO',''): k('s_setprio 0')
            k('s_waitcnt vmcnt(0)')
        run_loop(False,True)
        self.mark("a.loop")
        COMBINE=k.lab('combine'); FALLBACK=k.lab('fallback')
        k(COMBINE+':')
        k('s_nop 7'); k('s_nop 7')
        c1=k.lab('c1'); c2=k.lab('c2')
        k('s_mul_i32 s28, s3, 3072'); k(f's_add_u32 s28, s28, {L_COMB}')
        k(f'v_add_u32 v{T+1}, s28, v{V_L16}')
        k('s_xor_b32 s29, s3, 4'); k('s_mul_i32 s29, s29, 3072'); k(f's_add_u32 s29, s29, {L_COMB}')
        k(f'v_add_u32 v{T+2}, s29, v{V_L16}')
        k('s_cmp_eq_u32 s5, 1'); k(f's_cbranch_scc1 {c1}')
        for r in range(3): k(f'ds_write_b128 v{T+1}, v[{O[1]+4*r}:{O[1]+4*r+3}] offset:{r*1024}')
        k(f's_branch {c2}')
        k(c1+':')
        for r in range(3): k(f'ds_write_b128 v{T+1}, v[{O[0]+4*r}:{O[0]+4*r+3}] offset:{r*1024}')
        for i in range(12): k(f'v_mov_b32 v{O[0]+i}, v{O[1]+i}')
        k(c2+':')
        k('s_waitcnt lgkmcnt(0)')
        k('s_barrier')
        for r in range(3): k(f'ds_read_b128 v[{S[1]+4*r}:{S[1]+4*r+3}], v{T+2} offset:{r*1024}')
        k('s_waitcnt lgkmcnt(0)')
        self.mark("a.comb")
        Oq=O[0]
        for i in range(12): k(f'v_add_f32 v{Oq+i}, v{Oq+i}, v{S[1]+i}')
        k(f'v_mov_b32 v{T+3}, v{Oq+8}'); k(f'v_mov_b32 v{T+4}, v{Oq+8}')
        k(f'v_permlane32_swap_b32 v{T+3}, v{T+4}')
        k(f'v_add_f32 v{T+3}, abs(v{Oq}), abs(v{Oq+1})')
        for i in range(2,12): k(f'v_add_f32 v{T+3}, abs(v{Oq+i}), v{T+3}')
        k(f's_mov_b32 s28, {hex(f2u(2.0**-30))}'); k(f's_mov_b32 s29, {hex(f2u(2.0**60))}'); k(f's_mov_b32 s30, {hex(f2u(2.0**120))}')
        k(f'v_cmp_nle_f32 s[44:45], s28, v{T+4}')
        k(f'v_cmp_nge_f32 s[46:47], s29, v{T+4}')
        k(f'v_cmp_ngt_f32 vcc, s30, v{T+3}')
        k('s_or_b64 s[44:45], s[44:45], s[46:47]'); k('s_or_b64 vcc, vcc, s[44:45]')
        okl=k.lab('okl')
        k(f's_cbranch_vccz {okl}')
        k(f'v_mov_b32 v{T+8}, {L_BADF}'); k(f'v_mov_b32 v{T+9}, 1'); k(f'ds_write_b32 v{T+8}, v{T+9}')
        k(okl+':')
        k(f'v_rcp_f32 v{T+4}, v{T+4}')
        for i in range(12): k(f'v_mul_f32 v{Oq+i}, v{Oq+i}, v{T+4}')
        PK=S[0]
        for p in range(6): k(f'v_cvt_pk_bf16_f32 v{PK+p}, v{Oq+2*p}, v{Oq+2*p+1}')
        k('s_mul_i32 s28, s4, 5')
        k(f'v_add_u32 v{T+5}, s28, v{V_H}')
        k(f'v_lshrrev_b32 v{T+6}, 4, v{V_L31}'); k('s_lshl_b32 s29, s5, 1'); k(f'v_add_u32 v{T+6}, s29, v{T+6}')
        k(f'v_mul_u32_u24 v{T+6}, 2560, v{T+6}'); k(f'v_lshl_add_u32 v{T+6}, v{V_F}, 4, v{T+6}'); k(f'v_add_u32 v{T+6}, {L_OIMG}, v{T+6}')
        for pc in range(3):
            g_=T+7
            if pc==0: k(f'v_mov_b32 v{g_}, v{T+5}')
            elif pc==1: k(f'v_add_u32 v{g_}, 2, v{T+5}')
            else:
                k(f'v_mov_b32 v{g_}, s28'); k(f'v_add_u32 v{g_}, 4, v{g_}')
            k(f'v_lshrrev_b32 v{T+8}, 1, v{g_}'); k(f'v_lshlrev_b32 v{T+8}, 8, v{T+8}')
            k(f'v_and_b32 v{T+9}, 1, v{g_}'); k(f'v_lshl_add_u32 v{T+8}, v{T+9}, 3, v{T+8}')
            k(f'v_add_u32 v{T+8}, v{T+8}, v{T+6}')
            if pc==2:
                k('s_mov_b32 exec_hi, 0')
            k(f'ds_write_b64 v{T+8}, v[{PK+2*pc}:{PK+2*pc+1}]')
            if pc==2: k('s_mov_b64 exec, -1')
        k('s_waitcnt lgkmcnt(0)')
        k('s_barrier')
        k(f'v_mov_b32 v{T+8}, {L_BADF}'); k(f'ds_read_b32 v{T+9}, v{T+8}')
        k('s_waitcnt lgkmcnt(0)')
        k(f'v_readfirstlane_b32 s28, v{T+9}')
        k('s_lshl_b32 s29, s49, 1'); k('s_cmp_gt_u32 s28, s29')
        k(f's_cbranch_scc1 {FALLBACK}')
        k(f's_mul_i32 s31, s12, {OF_D}'); k(f's_add_u32 s31, s31, {OFB[0]}')
        k('s_mul_i32 s28, s6, 81920'); k('s_add_u32 s31, s31, s28'); k('s_mul_i32 s28, s7, 2560'); k('s_add_u32 s31, s31, s28')
        for rnd in range(2):
            lab=k.lab('oc')
            if rnd==1:
                k('s_cmp_ge_u32 s3, 2'); k(f's_cbranch_scc1 {lab}')
            k('s_lshl_b32 s28, s3, 6'); k(f's_add_u32 s28, s28, {512*rnd}')
            k(f'v_add_u32 v{T+5}, s28, v{V_LANE}')
            k(f'v_lshlrev_b32 v{T+6}, 4, v{T+5}'); k(f'v_add_u32 v{T+6}, {L_OIMG}, v{T+6}')
            k(f'ds_read_b128 v[{PK}:{PK+3}], v{T+6}')
            k(f'v_mul_u32_u24 v{T+7}, 410, v{T+5}'); k(f'v_lshrrev_b32 v{T+7}, 16, v{T+7}')
            k(f'v_mul_u32_u24 v{T+8}, 160, v{T+7}'); k(f'v_sub_u32 v{T+8}, v{T+5}, v{T+8}')
            k(f'v_mul_u32_u24 v{T+7}, 20480, v{T+7}'); k(f'v_lshl_add_u32 v{T+7}, v{T+8}, 4, v{T+7}')
            k('s_waitcnt lgkmcnt(0)')
            k(f'buffer_store_dwordx4 v[{PK}:{PK+3}], v{T+7}, s[{WS}:{WS+3}], s31 offen sc1')
            k(lab+':')
        self.mark("a.epi")
        self.publish(2)
        self.mark("a.pub")
        AFTER=k.lab('after'); k(f's_branch {AFTER}')
        k(FALLBACK+':')
        k('s_barrier')
        def kvptr():
            k(f's_mul_i32 s32, s12, {KV_D}'); k(f's_add_u32 s32, s32, {KVB[0]}')
            k('s_mul_i32 s28, s5, 3584'); k('s_add_u32 s32, s32, s28')
        def mq1(q,c): k(f'v_mfma_f32_32x32x16_bf16 v[{S[q]}:{S[q]+15}], v[{K1(0)}:{K1(0)+3}], v[{Q1[q]}:{Q1[q]+3}], {c}')
        def mq2(q): k(f'v_mfma_f32_32x32x8_bf16 v[{S[q]}:{S[q]+15}], v[{K2(0)}:{K2(0)+1}], v[{Q2[q]}:{Q2[q]+1}], v[{S[q]}:{S[q]+15}]')
        MX=[T+10,T+11]
        for q in range(2): k(f'v_mov_b32 v{MX[q]}, 0xff800000')
        kvptr(); k('s_mov_b32 s34, 0')
        l1=k.lab('fb1'); k(l1+':')
        ld(0); k('s_waitcnt vmcnt(0)')
        for q in range(2):
            mq1(q,'0'); mq2(q)
        for q in range(2):
            for i in range(0,16,2): k(f'v_max3_f32 v{MX[q]}, v{S[q]+i}, v{S[q]+i+1}, v{MX[q]}')
        k('s_add_u32 s34, s34, 1'); k('s_cmp_lt_u32 s34, 32'); k(f's_cbranch_scc1 {l1}')
        for q in range(2):
            k(f'v_mov_b32 v{T+12}, v{MX[q]}'); k(f'v_permlane32_swap_b32 v{MX[q]}, v{T+12}'); k(f'v_max_f32 v{MX[q]}, v{MX[q]}, v{T+12}')
        k('s_lshl_b32 s28, s3, 9'); k(f's_add_u32 s28, s28, {L_COMB}')
        k(f'v_lshl_add_u32 v{T+12}, v{V_LANE}, 3, s28')
        k(f'ds_write_b64 v{T+12}, v[{MX[0]}:{MX[1]}]')
        k('s_waitcnt lgkmcnt(0)'); k('s_barrier')
        k('s_xor_b32 s28, s3, 4'); k('s_lshl_b32 s28, s28, 9'); k(f's_add_u32 s28, s28, {L_COMB}')
        k(f'v_lshl_add_u32 v{T+12}, v{V_LANE}, 3, s28')
        k(f'ds_read_b64 v[{T+14}:{T+15}], v{T+12}')
        k('s_waitcnt lgkmcnt(0)'); k('s_barrier')
        for q in range(2): k(f'v_max_f32 v{MX[q]}, v{MX[q]}, v{T+14+q}')
        for q in range(2):
            for i in range(16): k(f'v_sub_f32 v{NEG[q]+i}, 0, v{MX[q]}')
            for i in range(16): k(f'v_mov_b32 v{O[q]+i}, 0')
        kvptr(); k('s_mov_b32 s34, 0')
        l2=k.lab('fb2'); k(l2+':')
        ld(0); k('s_waitcnt vmcnt(0)')
        for q in range(2):
            mq1(q,f'v[{NEG[q]}:{NEG[q]+15}]'); mq2(q)
            for i in range(16): k(f'v_exp_f32 v{S[q]+i}, v{S[q]+i}')
            for p in range(8): k(f'v_cvt_pk_bf16_f32 v{P+p}, v{S[q]+2*p}, v{S[q]+2*p+1}')
            for hf in range(2):
                k(f'v_mfma_f32_32x32x16_bf16 v[{O[q]}:{O[q]+15}], v[{V(0)+4*hf}:{V(0)+4*hf+3}], v[{P+4*hf}:{P+4*hf+3}], v[{O[q]}:{O[q]+15}]')
        k('s_add_u32 s34, s34, 1'); k('s_cmp_lt_u32 s34, 32'); k(f's_cbranch_scc1 {l2}')
        if self.F1R:
            k('s_min_u32 s42, s40, 53'); k('s_mul_i32 s42, s42, 40960'); k(f's_add_u32 s42, s42, {W1F}')
            for e in range(16): self.f1_wload(e)
            k('s_waitcnt vmcnt(0)')
        k('s_mov_b32 s49, 1')
        k(f's_branch {COMBINE}')
        k(AFTER+':')

    def phase_oproj(self):
        k=self.k
        XF,WR,ACC,T=24,64,96,144
        self.wait(2)
        self.mark("o.wait")
        self.x_loads(XF,10,OFB[0],OF_D,20,10)
        vA,vC=T,T+1
        k('s_mul_i32 s28, s5, 10240'); k(f'v_add_u32 v{vA}, s28, v{V_L16}'); k(f'v_add_u32 v{vC}, 61440, v{vA}')
        fr=[]
        for i in range(10):
            for ft in range(5):
                va,imm=(vA,ft*20480+i*1024) if ft<3 else (vC,(ft-3)*20480+i*1024)
                def rd(r,va=va,imm=imm): k(f'ds_read_b128 v[{r}:{r+3}], v{va} offset:{imm}')
                def mf(r,i=i,ft=ft):
                    c=ACC+4*ft; cs='0' if i==0 else f'v[{c}:{c+3}]'
                    k(f'v_mfma_f32_16x16x32_bf16 v[{c}:{c+3}], v[{r}:{r+3}], v[{XF+4*i}:{XF+4*i+3}], {cs}')
                fr.append(dict(read=rd,mfma=mf,vm=(9-i) if ft==0 else None))
        self.frag_gemm(fr,WR,7,1)
        self.mark("o.mm")
        self.reduce_pairs(ACC,T+9,L_ORED)
        k('s_waitcnt lgkmcnt(0)')
        k('s_barrier')
        self.reduce_pairs_finish(ACC,T+9,XF)
        self.mark("o.red")
        self.epilogue_res(ACC,T,X1B[0],X1_D,stats=True,bias=None,final=False)
        self.mark("o.epi")
        self.publish(3)
        self.mark("o.pub")
        self.fc1_early_w()

    def epilogue_res(self,ACC,T,dst,dst_d,stats,bias,final,vout=None):
        k=self.k
        self.tile_offsets(44)
        if dst_d:
            k(f's_mul_i32 s28, s12, {dst_d}'); k(f's_add_u32 s28, s28, {dst}')
        else: k(f's_mov_b32 s28, {dst}')
        for j in range(3): k(f's_add_u32 s{44+j}, s{44+j}, s28')
        k('s_mov_b32 s47, 0xffff0000')
        VD=T+15
        k(f'v_lshrrev_b32 v{VD}, 1, v{V_G}'); k(f'v_lshlrev_b32 v{VD}, 8, v{VD}'); k(f'v_lshl_add_u32 v{VD}, v{V_F}, 4, v{VD}')
        k(f'v_and_b32 v{T+14}, 1, v{V_G}'); k(f'v_lshl_add_u32 v{VD}, v{T+14}, 3, v{VD}')
        S0,S1=T+10,T+11
        if stats:
            k(f'v_mov_b32 v{S0}, 0'); k(f'v_mov_b32 v{S1}, 0'); k(f'v_mov_b32 v{T+12}, 0x3f803f80')
        skip=k.lab('e3')
        for j in range(3):
            if j==2:
                k('s_cmp_eq_u32 s5, 1'); k(f's_cbranch_scc1 {skip}')
            r=ACC+4*j
            k(f'v_lshlrev_b32 v{T}, 16, v{V_RES+2*j}'); k(f'v_and_b32 v{T+1}, s47, v{V_RES+2*j}')
            k(f'v_lshlrev_b32 v{T+2}, 16, v{V_RES+2*j+1}'); k(f'v_and_b32 v{T+3}, s47, v{V_RES+2*j+1}')
            for i in range(4): k(f'v_add_f32 v{r+i}, v{r+i}, v{T+i}')
            if bias is not None:
                k(f'v_lshlrev_b32 v{T}, 16, v{bias+2*j}'); k(f'v_and_b32 v{T+1}, s47, v{bias+2*j}')
                k(f'v_lshlrev_b32 v{T+2}, 16, v{bias+2*j+1}'); k(f'v_and_b32 v{T+3}, s47, v{bias+2*j+1}')
                for i in range(4): k(f'v_add_f32 v{r+i}, v{r+i}, v{T+i}')
            k(f'v_cvt_pk_bf16_f32 v{V_RES+2*j}, v{r}, v{r+1}'); k(f'v_cvt_pk_bf16_f32 v{V_RES+2*j+1}, v{r+2}, v{r+3}')
            if final:
                fl=k.lab('fin'); fd=k.lab('fd')
                k('s_cmp_eq_u32 s12, 1'); k(f's_cbranch_scc1 {fl}')
                k(f'buffer_store_dwordx2 v[{V_RES+2*j}:{V_RES+2*j+1}], v{VD}, s[{WS}:{WS+3}], s{44+j} offen sc1')
                k(f's_branch {fd}')
                k(fl+':')
                k(f'buffer_store_dwordx2 v[{V_RES+2*j}:{V_RES+2*j+1}], v{vout}, s[{SC}:{SC+3}], 0 offen offset:{j*32}')
                k(fd+':')
            else:
                k(f'buffer_store_dwordx2 v[{V_RES+2*j}:{V_RES+2*j+1}], v{VD}, s[{WS}:{WS+3}], s{44+j} offen sc1')
            if stats:
                k(f'v_dot2c_f32_bf16 v{S0}, v{V_RES+2*j}, v{T+12}'); k(f'v_dot2c_f32_bf16 v{S1}, v{V_RES+2*j}, v{V_RES+2*j}')
                k(f'v_dot2c_f32_bf16 v{S0}, v{V_RES+2*j+1}, v{T+12}'); k(f'v_dot2c_f32_bf16 v{S1}, v{V_RES+2*j+1}, v{V_RES+2*j+1}')
        k(skip+':')
        if stats:
            sum_g(k,S0,T+13); sum_g(k,S1,T+13)
            k(f'v_lshlrev_b32 v{T+13}, 3, v{V_F}')
            k('s_lshl_b32 s28, s6, 4'); k('s_lshl_b32 s29, s7, 1'); k('s_add_u32 s28, s28, s29'); k('s_add_u32 s28, s28, s5')
            k('s_lshl_b32 s28, s28, 9'); k('s_lshl_b32 s29, s4, 7'); k('s_add_u32 s28, s28, s29')
            k(f's_mul_i32 s29, s12, {ST_D}'); k('s_add_u32 s28, s28, s29'); k(f's_add_u32 s28, s28, {STB[0]}')
            k(f'v_cmp_eq_u32 vcc, 0, v{V_G}'); k(f'v_mov_b32 v{T+14}, {OOB}'); k(f'v_cndmask_b32 v{T+13}, v{T+14}, v{T+13}, vcc')
            k(f'buffer_store_dwordx2 v[{S0}:{S1}], v{T+13}, s[{WS}:{WS+3}], s28 offen sc1')

    def w2_chunk_dma(self, e_expr_sgpr):
        k=self.k; e=e_expr_sgpr
        def head():
            k(f's_lshr_b32 s53, s{e}, 1'); k(f's_and_b32 s54, s{e}, 1')
            k('s_mul_i32 s54, s54, 27'); k('s_add_u32 s54, s54, s53')
            k('s_mul_i32 s55, s7, 270'); k('s_add_u32 s54, s54, s55'); k('s_lshl_b32 s54, s54, 10'); k(f's_add_u32 s54, s54, {W2F}')
            k(f's_mul_i32 s55, s{e}, 5120')
        def one(j):
            if j==0: head()
            k('s_mov_b32 m0, s55')
            k(f'buffer_load_dwordx4 v{V_L16}, s[{WS}:{WS+3}], s54 offen sc1 lds')
            k(f's_add_u32 s54, s54, {54*1024}'); k('s_add_u32 s55, s55, 1024')
        return [lambda j=j: one(j) for j in range(5)]

    W2R=128
    def w2r_setup(self):
        k=self.k
        k('s_lshr_b32 s28, s3, 1'); k('s_and_b32 s29, s3, 1')
        k('s_mul_i32 s29, s29, 27'); k('s_add_u32 s29, s29, s28')
        k('s_mul_i32 s28, s7, 270'); k('s_add_u32 s29, s29, s28')
        for g,first in enumerate((15,19,23)):
            k(f's_add_u32 s{58+g}, s29, {first}'); k(f's_lshl_b32 s{58+g}, s{58+g}, 10'); k(f's_add_u32 s{58+g}, s{58+g}, {W2F}')
    def w2r_load(self,n):
        k=self.k; g,ft=n//5,n%5; r=self.W2R+4*n
        k(f's_add_u32 s61, s{58+g}, {ft*54*1024}')
        k(f'buffer_load_dwordx4 v[{r}:{r+3}], v{V_L16}, s[{WS}:{WS+3}], s61 offen sc1')
    def fc1_early_w(self):
        k=self.k
        lab=k.lab('ew')
        k('s_cmp_ge_u32 s3, s41'); k(f's_cbranch_scc1 {lab}')
        k('s_mul_i32 s42, s40, 40960'); k(f's_add_u32 s42, s42, {W1F+self.F1R*1024}')
        for s in range(self.F1R,self.F1R+self.F1A): self.f1_wload(s)
        k(lab+':')
    F1A=int(os.environ.get('F1A','12'))
    F1R=16 if os.environ.get('F1R','0')=='1' else 0
    def f1_wreg(self,s):
        if not self.F1R: return 96+4*s
        return 192+4*s if s<16 else 96+4*(s-16)
    def f1_wload(self,s):
        k=self.k; r=self.f1_wreg(s)
        k(f'buffer_load_dwordx4 v[{r}:{r+3}], v{V_L16}, s[{WS}:{WS+3}], s42 offen offset:{(s%4)*1024} sc1')
        if s%4==3: k('s_add_u32 s42, s42, 4096')

    def gelu_group_scalar(self,A,a,MR,CSV,B1F,TT,KC,vaddr,s_h):
        o=[]; PK=TT+4
        R=[A+4*a+i for i in range(4)]; t=[TT+i for i in range(4)]
        for i in range(4): o.append(f'v_fma_f32 v{t[i]}, -v{MR}, v{CSV+4*a+i}, v{B1F+4*a+i}')
        for i in range(4): o.append(f'v_fma_f32 v{R[i]}, v{R[i]}, v{MR+1}, v{t[i]}')
        for i in range(4): o.append(f'v_mul_f32 v{t[i]}, v{R[i]}, v{R[i]}')
        for i in range(4): o.append(f'v_fma_f32 v{t[i]}, v{t[i]}, v{KC+2}, v{KC}')
        for i in range(4): o.append(f'v_mul_f32 v{t[i]}, v{t[i]}, v{R[i]}')
        for i in range(4): o.append(f'v_exp_f32 v{t[i]}, v{t[i]}')
        for i in range(4): o.append(f'v_add_f32 v{t[i]}, 1.0, v{t[i]}')
        for i in range(4): o.append(f'v_rcp_f32 v{t[i]}, v{t[i]}')
        for i in range(4): o.append(f'v_mul_f32 v{R[i]}, v{R[i]}, v{t[i]}')
        o+= [f'v_cvt_pk_bf16_f32 v{PK}, v{R[0]}, v{R[1]}', f'v_cvt_pk_bf16_f32 v{PK+1}, v{R[2]}, v{R[3]}']
        o.append(f'buffer_store_dwordx2 v[{PK}:{PK+1}], v{vaddr}, s[{WS}:{WS+3}], s{s_h} offen offset:{a*256} sc1')
        return o
    def gelu_group(self,A,a,MR,CSV,B1F,TT,KC,vaddr,s_h):
        P=lambda r: f'v[{r}:{r+1}]'
        KC0,KC1,KONE=KC,KC+2,KC+4
        r0,r1=A+4*a,A+4*a+2
        t=[TT,TT+2]; PK=TT+4
        o=[]
        for e in range(2): o.append(f'v_pk_fma_f32 {P(t[e])}, {P(MR)}, {P(CSV+4*a+2*e)}, {P(B1F+4*a+2*e)} op_sel_hi:[0,1,1] neg_lo:[1,0,0] neg_hi:[1,0,0]')
        for e,r in enumerate((r0,r1)): o.append(f'v_pk_fma_f32 {P(r)}, {P(r)}, {P(MR)}, {P(t[e])} op_sel:[0,1,0] op_sel_hi:[1,1,1]')
        for e,r in enumerate((r0,r1)): o.append(f'v_pk_mul_f32 {P(t[e])}, {P(r)}, {P(r)}')
        for e,r in enumerate((r0,r1)): o.append(f'v_pk_fma_f32 {P(t[e])}, {P(t[e])}, {P(KC1)}, {P(KC0)}')
        for e,r in enumerate((r0,r1)): o.append(f'v_pk_mul_f32 {P(t[e])}, {P(t[e])}, {P(r)}')
        for e in range(2): o+= [f'v_exp_f32 v{t[e]}, v{t[e]}', f'v_exp_f32 v{t[e]+1}, v{t[e]+1}']
        for e in range(2): o.append(f'v_pk_add_f32 {P(t[e])}, {P(t[e])}, {P(KONE)}')
        for e in range(2): o+= [f'v_rcp_f32 v{t[e]}, v{t[e]}', f'v_rcp_f32 v{t[e]+1}, v{t[e]+1}']
        for e,r in enumerate((r0,r1)): o.append(f'v_pk_mul_f32 {P(r)}, {P(r)}, {P(t[e])}')
        o+= [f'v_cvt_pk_bf16_f32 v{PK}, v{r0}, v{r0+1}', f'v_cvt_pk_bf16_f32 v{PK+1}, v{r1}, v{r1+1}']
        o.append(f'buffer_store_dwordx2 v[{PK}:{PK+1}], v{vaddr}, s[{WS}:{WS+3}], s{s_h} offen offset:{a*256} sc1')
        return o

    def phase_fc1(self):
        k=self.k
        A0,A1,XF,CS,ONE,vX,WB=24,40,56,88,89,90,96
        self.wait(3)
        self.mark("f1.wait")
        k('s_mul_i32 s28, s6, 81920'); k(f's_mul_i32 s29, s12, {X1_D}'); k('s_add_u32 s28, s28, s29'); k(f's_add_u32 s28, s28, {X1B[0]}')
        k('s_mul_i32 s29, s3, 10240'); k('s_add_u32 s28, s28, s29')
        for i in range(10):
            k(f's_add_u32 m0, s29, {i*1024}')
            k(f'buffer_load_dwordx4 v{V_L16}, s[{WS}:{WS+3}], s28 offen sc1 lds')
            k('s_add_u32 s28, s28, 1024')
        act=k.lab('act'); fin=k.lab('fin')
        k('s_cmp_lt_u32 s3, s41'); k(f's_cbranch_scc1 {act}')
        n7=k.lab('n7'); n7w=k.lab('n7w')
        U=96
        k('s_cmp_lg_u32 s3, 7'); k(f's_cbranch_scc1 {n7w}')
        k(f'v_lshlrev_b32 v{U}, 3, v{V_LANE}')
        k('s_lshl_b32 s28, s6, 13'); k(f's_mul_i32 s29, s12, {ST_D}'); k('s_add_u32 s28, s28, s29'); k(f's_add_u32 s28, s28, {STB[0]}')
        for q in range(16):
            k(f'buffer_load_dwordx2 v[{A0+2*q}:{A0+2*q+1}], v{U}, s[{WS}:{WS+3}], s28 offen offset:{(q%8)*512} sc1')
            if q==7: k('s_add_u32 s28, s28, 4096')
        k('s_waitcnt vmcnt(0)')
        for q in range(1,16):
            k(f'v_add_f32 v{A0}, v{A0}, v{A0+2*q}'); k(f'v_add_f32 v{A0+1}, v{A0+1}, v{A0+2*q+1}')
        m_,r_,v_=U+2,U+3,A0+1
        k(f'v_mul_f32 v{m_}, {hex(f2u(1/640))}, v{A0}'); k(f'v_mul_f32 v{v_}, {hex(f2u(1/640))}, v{v_}')
        k(f'v_fma_f32 v{v_}, -v{m_}, v{m_}, v{v_}'); k(f'v_max_f32 v{v_}, 0, v{v_}')
        k(f'v_add_f32 v{A0+2}, {hex(f2u(1e-5))}, v{v_}'); k(f'v_rsq_f32 v{r_}, v{A0+2}')
        k(f'v_mul_f32 v{A0+3}, v{r_}, v{r_}'); k(f'v_mul_f32 v{A0+3}, v{A0+3}, v{v_}')
        k(f'v_add_f32 v{A0+3}, {hex(f2u(1e-5))}, v{A0+3}'); k(f'v_rsq_f32 v{A0+3}, v{A0+3}')
        k(f'v_mul_f32 v{r_}, v{r_}, v{A0+3}'); k(f'v_mul_f32 v{m_}, v{m_}, v{r_}')
        k(f'v_add_u32 v{U}, {L_TOKST}, v{U}')
        k(f'ds_write_b64 v{U}, v[{m_}:{r_}]')
        k(n7w+':')
        k('s_waitcnt vmcnt(0) lgkmcnt(0)')
        k('s_barrier')
        k('s_cmp_lg_u32 s3, 7'); k(f's_cbranch_scc1 {n7}')
        W2E=os.environ.get('W2E','1')=='1'
        if W2E:
            for e in range(16,30):
                k(f's_mov_b32 s52, {e}')
                for f in self.w2_chunk_dma(52): f()
        k(n7+':')
        k('s_barrier')
        k('s_cmp_lg_u32 s3, 7'); k(f's_cbranch_scc1 {fin}')
        for e in list(range(0,8))+[15]+([] if W2E else list(range(16,30))):
            k(f's_mov_b32 s52, {e}')
            for f in self.w2_chunk_dma(52): f()
        k('s_cmp_eq_u32 s41, 7'); k(f's_cbranch_scc1 {fin}')
        k('s_mov_b32 s52, 14')
        for f in self.w2_chunk_dma(52): f()
        k(f's_branch {fin}')
        k(act+':')
        srd(k,SA,P_B1,1728*2)
        B1R=72
        k('s_lshl_b32 s28, s40, 6')
        k(f'v_lshl_add_u32 v{vX}, v{V_H}, 3, s28')
        for a in range(4): k(f'buffer_load_dwordx2 v[{B1R+2*a}:{B1R+2*a+1}], v{vX}, s[{SA}:{SA+3}], 0 offen offset:{a*16}')
        k('s_waitcnt vmcnt(0)')
        k('s_barrier')
        self.mark("f1.x")
        k(f'v_lshrrev_b32 v{vX}, 4, v{V_L31}'); k(f'v_mul_u32_u24 v{vX}, 20480, v{vX}')
        k(f'v_lshl_add_u32 v{vX}, v{V_H}, 8, v{vX}'); k(f'v_lshl_add_u32 v{vX}, v{V_F}, 4, v{vX}')
        k(f'v_mov_b32 v{ONE}, 0x3f803f80'); k(f'v_mov_b32 v{CS}, 0')
        k('s_cmp_lg_u32 s12, 0'); k('s_cselect_b64 vcc, -1, 0')
        def rd(tt,s):
            ks,u=s//2,s%2
            x=XF+(s%4)*4
            k(f'ds_read_b128 v[{x}:{x+3}], v{vX} offset:{tt*40960+ks*1024+u*512}')
        F1A=self.F1A+self.F1R
        def pass1(with_cs):
            rd(0,0); rd(0,1); rd(0,2)
            for s in range(40):
                if s+F1A<40: self.f1_wload(s+F1A)
                if s+3<40: rd(0,s+3)
                w=f's_waitcnt lgkmcnt({min(3,39-s)})'
                if s>=F1A: w+=f' vmcnt({min(F1A,39-s)})'
                k(w)
                wr=self.f1_wreg(s); x=XF+(s%4)*4
                c0='0' if s==0 else f'v[{A0}:{A0+15}]'
                k(f'v_mfma_f32_32x32x16_bf16 v[{A0}:{A0+15}], v[{wr}:{wr+3}], v[{x}:{x+3}], {c0}')
                if with_cs:
                    for r in range(4): k(f'v_dot2c_f32_bf16 v{CS}, v{wr+r}, v{ONE}')
        p1=k.lab('p1'); p1d=k.lab('p1d')
        k(f's_cbranch_vccnz {p1}')
        pass1(True)
        k(f's_branch {p1d}')
        k(p1+':')
        pass1(False)
        k(p1d+':')
        ncs=k.lab('ncs')
        k(f's_cbranch_vccnz {ncs}')
        k(f'v_mov_b32 v91, v{CS}'); k(f'v_permlane32_swap_b32 v{CS}, v91'); k(f'v_add_f32 v{CS}, v{CS}, v91')
        k('s_lshl_b32 s28, s3, 7'); k(f's_add_u32 s28, s28, {L_CS1}')
        k(f'v_lshl_add_u32 v91, v{V_L31}, 2, s28')
        k(f'ds_write_b32 v91, v{CS}')
        k(ncs+':')
        k('s_waitcnt lgkmcnt(0)')
        self.mark("f1.p1")
        CSV,B1F,MR0,MR1,TT,KC,VA=((192,208) if self.F1R else (96,112))+(80,82,16,84,91)
        side=[]
        def S(x): side.append(x)
        S(f's_lshl_b32 s28, s3, 7'); S(f's_add_u32 s28, s28, {L_CS1}'); S(f'v_lshl_add_u32 v{VA}, v{V_H}, 4, s28')
        pre_reads=[f'ds_read_b128 v[{CSV+4*a}:{CSV+4*a+3}], v{VA} offset:{a*32}' for a in range(4)]
        c0=-2*0.7978845608028654*1.4426950408889634; c1=c0*0.044715
        for i in range(2):
            k(f'v_mov_b32 v{KC+i}, {hex(f2u(c0))}'); k(f'v_mov_b32 v{KC+2+i}, {hex(f2u(c1))}')
        KONE_=92
        k(f'v_mov_b32 v{KONE_}, 1.0'); k(f'v_mov_b32 v{KONE_+1}, 1.0')
        k(f'v_lshlrev_b32 v94, 3, v{V_L31}'); k(f'v_add_u32 v94, {L_TOKST}, v94')
        k(f'ds_read_b64 v[{MR0}:{MR0+1}], v94'); k(f'ds_read_b64 v[{MR1}:{MR1+1}], v94 offset:256')
        k(f'v_lshrrev_b32 v95, 4, v{V_L31}'); k(f's_mov_b32 s28, {54*1024}'); k('v_mul_lo_u32 v95, v95, s28')
        k(f'v_lshl_add_u32 v95, v{V_H}, 3, v95'); k(f'v_lshl_add_u32 v95, v{V_F}, 4, v95')
        for tt in range(2):
            k('s_lshl_b32 s28, s6, 2'); k(f's_add_u32 s28, s28, {2*tt}'); k('s_mul_i32 s28, s28, 54'); k('s_add_u32 s28, s28, s40')
            k('s_lshl_b32 s28, s28, 10'); k(f's_mul_i32 s29, s12, {HF_D}'); k('s_add_u32 s28, s28, s29'); k(f's_add_u32 s{56+tt}, s28, {HFB[0]}')
        k('s_mov_b32 s47, 0xffff0000')
        k('s_waitcnt lgkmcnt(0)')
        rd(1,0); rd(1,1); rd(1,2)
        def gg(A,a,MR,sh):
            o=self.gelu_group(A,a,MR,CSV,B1F,TT,KC,95,sh)
            return [x.replace(f'v[{KC+4}:{KC+5}]',f'v[{KONE_}:{KONE_+1}]') for x in o]
        work=[]
        for a in range(4): work+=self.gelu_group_scalar(A0,a,MR0,CSV,B1F,TT,KC,95,56)
        nper=-(-len(work)//27)
        wi=0; lds_extra=0
        for s in range(40):
            if s+3<40: rd(1,s+3)
            extra=0
            if s==8:
                k(f's_lshl_b32 s28, s3, 7'); k(f's_add_u32 s28, s28, {L_CS1}'); k(f'v_lshl_add_u32 v{VA}, v{V_H}, 4, s28')
                for x in pre_reads: k(x)
                extra=4
            k(f's_waitcnt lgkmcnt({min(3,39-s)+extra})')
            wr=self.f1_wreg(s); x=XF+(s%4)*4
            c1s='0' if s==0 else f'v[{A1}:{A1+15}]'
            k(f'v_mfma_f32_32x32x16_bf16 v[{A1}:{A1+15}], v[{wr}:{wr+3}], v[{x}:{x+3}], {c1s}')
            if s in (9,10):
                for a in ((0,1) if s==9 else (2,3)):
                    k(f'v_lshlrev_b32 v{B1F+4*a}, 16, v{B1R+2*a}'); k(f'v_and_b32 v{B1F+4*a+1}, s47, v{B1R+2*a}')
                    k(f'v_lshlrev_b32 v{B1F+4*a+2}, 16, v{B1R+2*a+1}'); k(f'v_and_b32 v{B1F+4*a+3}, s47, v{B1R+2*a+1}')
            if s>=12:
                for _ in range(nper):
                    if wi<len(work): k(work[wi]); wi+=1
        while wi<len(work): k(work[wi]); wi+=1
        k('s_barrier')
        self.mark("f1.mm")
        k('s_add_u32 s52, s3, 8')
        dm=self.w2_chunk_dma(52)
        for a in range(4):
            for x in gg(A1,a,MR1,57): k(x)
            if dm: dm.pop(0)()
            if a==3:
                while dm: dm.pop(0)()
        k(fin+':')
        self.mark("f1.epi")
        self.publish(4)
        self.mark("f1.pub")

    def phase_fc2(self):
        k=self.k
        HX,WR,ACC=24,132,192
        vA,vB,vC,BI,VO=236,237,238,240,246
        srd(k,SB,P_B2,1280)
        srd(k,SC,P_OUT,2048*1280)
        k('s_mul_i32 s28, s7, 160'); k('s_mul_i32 s29, s5, 96'); k('s_add_u32 s28, s28, s29')
        k(f'v_lshl_add_u32 v{vA}, v{V_G}, 3, s28')
        for j in range(3): k(f'buffer_load_dwordx2 v[{BI+2*j}:{BI+2*j+1}], v{vA}, s[{SB}:{SB+3}], 0 offen offset:{j*32}')
        k('s_movk_i32 s29, 1280'); k(f'v_mul_lo_u32 v{VO}, v{V_TOK}, s29'); k(f'v_add_u32 v{VO}, v{VO}, v{vA}')
        self.wait(4)
        self.mark("f2.wait")
        XP=os.environ.get('XP','')
        if 'noh' not in XP: self.x_loads(HX,27,HFB[0],HF_D,54,27)
        if 'hwait' in XP:
            k('s_waitcnt vmcnt(0)'); self.mark("f2.h")
        k('s_mul_i32 s28, s5, 5120')
        k(f'v_add_u32 v{vA}, s28, v{V_L16}'); k(f'v_add_u32 v{vB}, 61440, v{vA}'); k(f'v_add_u32 v{vC}, 122880, v{vA}')
        NS=15
        slot=lambda i: i if i<NS else i-NS
        log=[('h',i) for i in range(27)]
        def refill(g):
            first=15+4*g
            k('s_lshr_b32 s28, s3, 1'); k('s_and_b32 s29, s3, 1')
            k(f's_add_u32 s30, s28, {first}')
            k('s_mul_i32 s32, s29, 27'); k('s_add_u32 s32, s32, s30')
            k('s_mul_i32 s33, s7, 270'); k('s_add_u32 s32, s32, s33'); k('s_lshl_b32 s32, s32, 10'); k(f's_add_u32 s32, s32, {W2F}')
            k(f's_add_u32 s30, s28, {4*g}')
            k('s_mul_i32 s33, s30, 10240'); k('s_mul_i32 s29, s29, 5120'); k('s_add_u32 s33, s33, s29')
            for j in range(5):
                k('s_mov_b32 m0, s33')
                k(f'buffer_load_dwordx4 v{V_L16}, s[{WS}:{WS+3}], s32 offen sc1 lds')
                if j<4:
                    k(f's_add_u32 s32, s32, {54*1024}'); k('s_add_u32 s33, s33, 1024')
                log.append(('rf',g))
        def younger(idx): return len(log)-1-idx
        DEPTH=int(os.environ.get('F2D','10'))
        bar={7:(None,0),11:(None,1),15:(0,2),19:(1,None),23:(2,None)}
        fr=[]
        for i in range(27):
            for ft in range(5):
                j=slot(i); va,imm=((vA,vB,vC)[j//6],(j%6)*10240)
                def rd(r,va=va,imm=imm,ft=ft): k(f'ds_read_b128 v[{r}:{r+3}], v{va} offset:{imm+ft*1024}')
                def mf(r,i=i,ft=ft):
                    c=ACC+4*ft; cs='0' if i==0 else f'v[{c}:{c+3}]'
                    k(f'v_mfma_f32_16x16x32_bf16 v[{c}:{c+3}], v[{r}:{r+3}], v[{HX+4*i}:{HX+4*i+3}], {cs}')
                d=dict(read=rd,mfma=mf)
                if ft==0:
                    d['vm']=(lambda i=i: younger(log.index(('h',i))))
                    if i in bar:
                        def pre(i=i):
                            need,fill=bar[i]
                            if need is not None:
                                tags=[n for n,x in enumerate(log) if x==('rf',need)]
                                k(f's_waitcnt vmcnt({younger(tags[-1])})')
                            k('s_barrier')
                            if fill is not None: refill(fill)
                        d['pre']=pre
                fr.append(d)
        self.frag_gemm(fr,WR,DEPTH,1)
        self.mark("f2.mm")
        k('s_barrier')
        T=48
        self.reduce_pairs(ACC,T+9,L_RED)
        k('s_waitcnt lgkmcnt(0)')
        k('s_barrier')
        self.reduce_pairs_finish(ACC,T+9,24)
        self.epilogue_res(ACC,T,X2B,0,stats=False,bias=BI,final=True,vout=VO)
        self.mark("f2.epi")

    def build(self):
        k=self.k
        self.prologue()
        self.mark0("p.start")
        if 'nox0' not in os.environ.get('XP',''): self.x0_loads(24,144)
        if 'cs.x' in os.environ.get('MARKS',''):
            k('s_waitcnt vmcnt(0)'); self.mark0("cs.x")
        kvw=k.lab('kvw'); pj=k.lab('pj')
        k('s_lshr_b32 s28, s7, 1')
        k('s_cmp_eq_u32 s28, s4'); k(f's_cbranch_scc1 {kvw}')
        k('s_mov_b32 s43, s3')
        k('s_cmp_gt_u32 s3, s28'); k('s_cselect_b32 s29, 1, 0'); k('s_sub_u32 s43, s43, s29')
        k('s_add_u32 s28, s28, 4'); k('s_cmp_gt_u32 s3, s28'); k('s_cselect_b32 s29, 1, 0'); k('s_sub_u32 s43, s43, s29')
        srd(k,SA,P_WQ,640*1280)
        k('s_waitcnt vmcnt(8)')
        for t in range(4):
            lab=k.lab('wq')
            k(f's_add_u32 s28, s43, {6*t}')
            if t==3:
                k('s_cmp_ge_u32 s28, 20'); k(f's_cbranch_scc1 {lab}')
            k('s_mul_i32 s29, s28, 40960'); k('s_mul_i32 s30, s28, 5120')
            self.dma_chunk160(SA,29,30)
            k(lab+':')
        k(f's_branch {pj}')
        k(kvw+':')
        k('s_mov_b32 s43, 7')
        k('s_and_b32 s28, s7, 1'); k('s_cmp_eq_u32 s28, 0')
        k(f's_cselect_b32 s30, s{P_WK}, s{P_WV}'); k(f's_cselect_b32 s31, s{P_WK+1}, s{P_WV+1}')
        srd(k,SB,30,25600)
        k('s_mul_i32 s29, s5, 12288')
        for t in range(13):
            k(f's_add_u32 m0, s29, {L_WKV}')
            k(f'buffer_load_dwordx4 v{V_L16}, s[{SB}:{SB+3}], s29 offen lds')
            k('s_add_u32 s29, s29, 1024')
        k(pj+':')
        if 'tlb' in os.environ.get('XP',''): self.tlb_warm()
        self.mark0("p.issued")
        LOOP='mega_layer'
        k(LOOP+':')
        self.phase_qkv(); self.stopat('qkv')
        self.phase_attn(); self.stopat('attn')
        self.phase_oproj(); self.stopat('oproj')
        self.phase_fc1(); self.stopat('fc1')
        self.phase_fc2(); self.stopat('fc2')
        k('s_cmp_eq_u32 s12, 1'); k(f's_cbranch_scc1 {self.END}')
        self.publish(5)
        self.dma_next_qkv()
        self.wait(5)
        k('s_mov_b32 s12, 1'); k('s_add_u32 s13, s13, 5')
        k(f's_branch {LOOP}')
        k(self.END+':')
        rz=self.k.lab('rz')
        k('s_cmp_lg_u32 s2, 0'); k(f's_cbranch_scc1 {rz}')
        k('s_cmp_lg_u32 s3, 5'); k(f's_cbranch_scc1 {rz}')
        k('s_load_dwordx2 s[58:59], s[0:1], 88')
        k('s_waitcnt lgkmcnt(0)')
        srd(k,60,58,256)
        k('v_mov_b32 v200, 0'); k('v_mov_b32 v201, 0')
        k('s_mov_b64 exec, 1')
        k('buffer_store_dword v201, v200, s[60:63], 0 offen sc1')
        k('s_mov_b64 exec, -1')
        k(rz+':')
        if self.stamps:
            k('s_waitcnt vmcnt(0) lgkmcnt(0)')
            k(f'{self.clk} s[100:101]'); k('s_waitcnt lgkmcnt(0)')
            k('s_lshl_b32 s28, s2, 3'); k('s_add_u32 s28, s28, s3'); k('s_lshl_b32 s28, s28, 6'); k(f's_add_u32 s28, s28, {STAMP_OFF}')
            k('s_add_u32 s30, s86, s28'); k('s_addc_u32 s31, s87, 0')
            k('v_mov_b32 v24, 0')
            for i in range(13):
                k(f'v_mov_b32 v25, s{88+i}')
                k(f'global_store_dword v24, v25, s[30:31] offset:{4*i}')
        k('mega_kernel_exit:')
        k('mega_code_end:')
        k('s_endpgm')
        return k

def gen_init():
    k=Kern('init_kernel',vgpr=8,sgpr=24)
    k('s_cmp_ge_u32 s2, 1'); k('s_cbranch_scc1 init_kernel_end')
    k('s_load_dwordx2 s[4:5], s[0:1], 96')
    k('s_waitcnt lgkmcnt(0)')
    srd(k,8,4,4096,FLG)
    k('v_lshlrev_b32 v1, 4, v0')
    for i in range(4): k(f'v_mov_b32 v{2+i}, 0')
    k('buffer_store_dwordx4 v[2:5], v1, s[8:11], 0 offen')
    k('init_kernel_end:')
    k('s_endpgm')
    return k
```

```python
import os, struct
from asmlib import *
from mlayout import *

def f2u(x): return struct.unpack('<I',struct.pack('<f',x))[0]
P_X,P_WQ,P_WK,P_WV,P_WO,P_W1,P_B1,P_W2,P_B2,P_OUT=64,66,68,70,72,76,78,80,82,84
WS=8
SA,SB,SC=16,20,24
OOB='0x40000000'
V_LANE,V_F,V_G,V_L16,V_L31,V_H,V_TR,V_RES,V_TOK,V_D=1,2,3,4,5,6,7,8,14,16
L_WKV=102400
L_RED=128000
L_KVR=157056
L_STAT=152576
L_CS=163136
L_NONCE=163776
L_BADF=163780
L_PAIRF=163784
L_KVCS=155008
NONCE=FLG+2048+64
L_QL=0
L_COMB=112640
L_OIMG=137216
L_ORED=102400
L_TOKST=153600
L_CS1=154112
LDS_TOTAL=160*1024
STAMP_OFF=100<<20
POLLW=7

def srd(k,d,p,size,off=0):
    k(f's_add_u32 s{d}, s{p}, {off}' if off else f's_mov_b32 s{d}, s{p}')
    k(f's_addc_u32 s{d+1}, s{p+1}, 0' if off else f's_mov_b32 s{d+1}, s{p+1}')
    k(f's_and_b32 s{d+1}, s{d+1}, 0xffff')
    k(f's_mov_b32 s{d+2}, {size}')
    k(f's_mov_b32 s{d+3}, 0x20000')

def sum_g(k,x,tmp):
    k(f'v_mov_b32 v{tmp}, v{x}')
    k(f'v_permlane16_swap_b32 v{x}, v{tmp}')
    k(f'v_add_f32 v{x}, v{x}, v{tmp}')
    k(f'v_mov_b32 v{tmp}, v{x}')
    k(f'v_permlane32_swap_b32 v{x}, v{tmp}')
    k(f'v_add_f32 v{x}, v{x}, v{tmp}')

KNAME='interleave_layers__grouped_kv_mqa__mixer_channel_mlp__prompt_kernel'
class Mega:
    def __init__(self, stamps=False, stop=None):
        self.k=Kern(KNAME,vgpr=256,sgpr=102)
        self.stamps=stamps; self.stop=stop; self.END='mega_kernel_end'
        self.mark_layer=int(os.environ.get('MARKL','1'))
        self.clk='s_memrealtime' if os.environ.get('RT') else 's_memtime'
    def mark(self,name):
        if not self.stamps: return
        ms=os.environ.get('MARKS','').split(',')
        if name not in ms: return
        i=ms.index(name)
        k=self.k
        k(f'{self.clk} s[100:101]')
        k('s_waitcnt lgkmcnt(0)')
        k(f's_cmp_eq_u32 s12, {self.mark_layer}')
        k(f's_cselect_b32 s{88+i}, s100, s{88+i}')
    def mark0(self,name):
        if not self.stamps: return
        ms=os.environ.get('MARKS','').split(',')
        if name not in ms: return
        i=ms.index(name); k=self.k
        k(f'{self.clk} s[100:101]'); k('s_waitcnt lgkmcnt(0)'); k(f's_mov_b32 s{88+i}, s100')
    def stopat(self,name):
        if self.stop==name:
            k=self.k
            k(f's_cmp_eq_u32 s12, {int(os.environ.get("STOPL","0"))}')
            k(f's_cbranch_scc1 {self.END}')

    def publish(self,j):
        k=self.k
        k('s_waitcnt vmcnt(0)')
        k('s_barrier')
        lab=k.lab('pub')
        k('s_cmp_lg_u32 s3, 0')
        k(f's_cbranch_scc1 {lab}')
        k(f's_add_u32 s28, s13, {j}')
        k('v_mov_b32 v22, s28')
        k('s_lshl_b32 s29, s6, 6'); k('s_lshl_b32 s30, s7, 2'); k('s_add_u32 s29, s29, s30')
        k('v_mov_b32 v21, s29')
        k('s_mov_b64 exec, 1')
        k(f'buffer_store_dword v22, v21, s[{WS}:{WS+3}], 0 offen offset:{FLG} sc1')
        k('s_mov_b64 exec, -1')
        k(lab+':')
    def wait(self,j,allwg=False,others=None):
        k=self.k
        lab=k.lab('w'); loop=k.lab('poll'); done=k.lab('pd')
        wide = allwg or others is not None
        k(f's_cmp_lg_u32 s3, {POLLW}')
        k(f's_cbranch_scc1 {lab}')
        k(f's_add_u32 s28, s13, {j}')
        if wide:
            k(f'v_lshrrev_b32 v22, 1, v{V_LANE}'); k('v_lshlrev_b32 v21, 6, v22')
            k(f'v_and_b32 v16, 1, v{V_LANE}'); k('v_lshl_add_u32 v21, v16, 4, v21')
            if others is not None:
                k(f's_add_u32 s29, s13, {others}')
                k('v_cmp_eq_u32 vcc, s6, v22')
                k('v_mov_b32 v23, s29'); k('v_mov_b32 v22, s28')
                k('v_cndmask_b32 v22, v23, v22, vcc')
            else: k('v_mov_b32 v22, s28')
        else:
            k(f'v_and_b32 v21, 7, v{V_LANE}'); k('v_lshlrev_b32 v21, 2, v21')
            k('s_lshl_b32 s29, s6, 6'); k('v_add_u32 v21, s29, v21')
            k('v_mov_b32 v22, s28')
        k('s_mov_b32 s30, 0')
        k(loop+':')
        if wide:
            k(f'buffer_load_dwordx4 v[16:19], v21, s[{WS}:{WS+3}], 0 offen offset:{FLG} sc1')
            k('s_waitcnt vmcnt(0)')
            for r in (16,17,18,19): k(f'v_sub_u32 v{r}, v{r}, v22')
            k('v_max_u32 v16, v16, v17'); k('v_max_u32 v18, v18, v19'); k('v_max_u32 v16, v16, v18')
        else:
            k(f'buffer_load_dword v16, v21, s[{WS}:{WS+3}], 0 offen offset:{FLG} sc1')
            k('s_waitcnt vmcnt(0)')
            k('v_sub_u32 v16, v16, v22')
        k('v_cmp_le_u32 vcc, 32, v16')
        k(f's_cbranch_vccz {done}')
        if os.environ.get('SLP'): k(f"s_sleep {os.environ['SLP']}")
        k('s_add_u32 s30, s30, 1')
        k(f's_cmp_lt_u32 s30, 0x40000')
        k(f's_cbranch_scc1 {loop}')
        k(done+':')
        k(lab+':')
        k('s_barrier')

    def dma_chunk160(self, s_srd, s_soff, s_m0):
        k=self.k
        for j in range(5):
            k(f's_mov_b32 m0, s{s_m0}')
            k(f'buffer_load_dwordx4 v{V_D+j}, s[{s_srd}:{s_srd+3}], s{s_soff} offen lds')
            if j<4: k(f's_add_u32 s{s_m0}, s{s_m0}, 1024')
    def dma_w160(self,ptr,skip_poller=False):
        k=self.k
        srd(k,SA,ptr,640*1280)
        nw=7 if skip_poller else 8
        end=k.lab('dw')
        if skip_poller:
            k(f's_cmp_eq_u32 s3, {POLLW}'); k(f's_cbranch_scc1 {end}')
        for t in range(3):
            lab=k.lab('wq')
            k(f's_add_u32 s28, s3, {nw*t}')
            if nw*t+nw>20:
                k('s_cmp_ge_u32 s28, 20'); k(f's_cbranch_scc1 {lab}')
            k('s_mul_i32 s29, s28, 40960'); k('s_mul_i32 s30, s28, 5120')
            self.dma_chunk160(SA,29,30)
            k(lab+':')
        k(end+':')
    def dma_wkv(self):
        k=self.k
        k('s_and_b32 s28, s7, 1'); k('s_cmp_eq_u32 s28, 0')
        k(f's_cselect_b32 s30, s{P_WK}, s{P_WV}'); k(f's_cselect_b32 s31, s{P_WK+1}, s{P_WV+1}')
        srd(k,SB,30,25600)
        for t in range(4):
            lab=k.lab('wk')
            k(f's_add_u32 s28, s3, {8*t}')
            if t==3:
                k('s_cmp_ge_u32 s28, 25'); k(f's_cbranch_scc1 {lab}')
            k('s_lshl_b32 s29, s28, 10'); k(f's_add_u32 s30, s29, {L_WKV}')
            k('s_mov_b32 m0, s30')
            k(f'buffer_load_dwordx4 v{V_L16}, s[{SB}:{SB+3}], s29 offen lds')
            k(lab+':')
    def l2_prefetch(self, s_srd, total, nwaves, wave0, vtmp, base_off=0):
        k=self.k
        per=(total//32+127)//128*128
        ninst=(per+8191)//8192
        pw=(ninst+nwaves-1)//nwaves
        k('s_and_b32 s28, s6, 3'); k('s_lshl_b32 s28, s28, 3'); k('s_add_u32 s28, s28, s7')
        k(f's_mul_i32 s28, s28, {per}')
        k(f's_sub_u32 s29, s3, {wave0}'); k(f's_mul_i32 s29, s29, {pw*8192}'); k('s_add_u32 s28, s28, s29')
        if base_off: k(f's_add_u32 s28, s28, {base_off}')
        k(f'v_lshlrev_b32 v{vtmp}, 7, v{V_LANE}')
        for n in range(pw):
            k(f'buffer_load_dword v{vtmp+1}, v{vtmp}, s[{s_srd}:{s_srd+3}], s28 offen')
            k('s_add_u32 s28, s28, 8192')
        return pw

    def prologue(self):
        k=self.k
        k('s_cmp_ge_u32 s2, 256')
        k(f's_cbranch_scc1 mega_kernel_exit')
        k('s_load_dwordx16 s[64:79], s[0:1], 0')
        k('s_load_dwordx4 s[80:83], s[0:1], 64')
        k('s_load_dwordx2 s[84:85], s[0:1], 80')
        k('s_load_dwordx2 s[86:87], s[0:1], 96')
        k('s_load_dwordx2 s[58:59], s[0:1], 88')
        if self.stamps: k(f'{self.clk} s[100:101]')
        k('v_lshrrev_b32 v24, 6, v0')
        k(f'v_and_b32 v{V_LANE}, 63, v0')
        k('v_readfirstlane_b32 s3, v24')
        k('s_and_b32 s4, s3, 3'); k('s_lshr_b32 s5, s3, 2')
        k('s_and_b32 s6, s2, 7'); k('s_lshl_b32 s6, s6, 2'); k('s_lshr_b32 s7, s2, 3'); k('s_and_b32 s7, s7, 3'); k('s_add_u32 s6, s6, s7'); k('s_lshr_b32 s7, s2, 5')
        k(f'v_and_b32 v{V_F}, 15, v{V_LANE}')
        k(f'v_lshrrev_b32 v{V_G}, 4, v{V_LANE}')
        k(f'v_lshlrev_b32 v{V_L16}, 4, v{V_LANE}')
        k(f'v_and_b32 v{V_L31}, 31, v{V_LANE}')
        k(f'v_lshrrev_b32 v{V_H}, 5, v{V_LANE}')
        k(f'v_lshrrev_b32 v24, 2, v{V_F}')
        k(f'v_and_b32 v25, 1, v{V_G}'); k('v_lshl_add_u32 v24, v25, 2, v24')
        k(f'v_lshrrev_b32 v25, 1, v{V_G}'); k('v_lshl_add_u32 v24, v25, 4, v24')
        k('v_mul_u32_u24 v24, 160, v24')
        k(f'v_and_b32 v25, 3, v{V_LANE}')
        k(f'v_lshl_add_u32 v{V_TR}, v25, 3, v24')
        k('s_lshl_b32 s28, s6, 6'); k('s_lshl_b32 s29, s4, 4'); k('s_add_u32 s28, s28, s29')
        k(f'v_add_u32 v{V_TOK}, s28, v{V_F}')
        k('s_mul_i32 s29, s7, 160')
        for j in range(5):
            k(f'v_add_u32 v24, {64*j}, v{V_LANE}')
            k('v_mul_u32_u24 v25, 6554, v24'); k('v_lshrrev_b32 v25, 16, v25')
            k('v_mul_u32_u24 v26, 10, v25'); k('v_sub_u32 v26, v24, v26')
            k('v_and_b32 v27, 0x13, v25')
            k('v_bfe_u32 v28, v25, 3, 1'); k('v_lshl_add_u32 v27, v28, 2, v27')
            k('v_bfe_u32 v28, v25, 2, 1'); k('v_lshl_add_u32 v27, v28, 3, v27')
            k('v_mul_u32_u24 v27, 1280, v27')
            k('v_lshl_add_u32 v27, v26, 4, v27')
            k(f'v_add_u32 v{V_D+j}, s29, v27')
        k('s_waitcnt lgkmcnt(0)')
        if self.stamps:
            k('s_mov_b32 s99, s100')
            for i in range(11): k(f's_mov_b32 s{88+i}, 0')
        srd(k,WS,86,WS_USED)
        k('s_mov_b32 s12, 0'); k('s_mov_b32 s13, 0')
        srd(k,60,58,256)
        nn=k.lab('nn')
        k('s_cmp_lg_u32 s2, 0'); k(f's_cbranch_scc1 {nn}')
        k('s_cmp_lg_u32 s3, 5'); k(f's_cbranch_scc1 {nn}')
        k('s_memrealtime s[28:29]')
        k('s_waitcnt lgkmcnt(0)')
        k('s_lshl_b32 s28, s28, 6'); k('s_or_b32 s28, s28, 1')
        k('v_mov_b32 v201, s28'); k('v_mov_b32 v200, 0')
        k('s_mov_b64 exec, 1')
        k('buffer_store_dword v201, v200, s[60:63], 0 offen sc1')
        k('s_mov_b64 exec, -1')
        k(nn+':')
        k('s_mul_i32 s40, s7, 7'); k('s_sub_u32 s28, s7, 6'); k('s_max_i32 s28, s28, 0'); k('s_sub_u32 s40, s40, s28')
        k('s_cmp_ge_u32 s7, 6'); k('s_cselect_b32 s41, 6, 7')
        k('s_add_u32 s40, s40, s3')

    def x0_loads(self,XF,T):
        k=self.k
        srd(k,SC,P_X,2048*1280)
        k('s_movk_i32 s28, 1280')
        k(f'v_mul_lo_u32 v{T}, v{V_TOK}, s28')
        k(f'v_lshl_add_u32 v{T+1}, v{V_G}, 4, v{T}')
        k('s_mul_i32 s29, s5, 640')
        k(f'v_add_u32 v{T+1}, s29, v{T+1}')
        if 'xlin' in os.environ.get('XP',''):
            k('s_lshl_b32 s28, s6, 2'); k('s_add_u32 s28, s28, s4'); k('s_mul_i32 s28, s28, 20'); k('s_mul_i32 s29, s5, 10'); k('s_add_u32 s28, s28, s29'); k('s_lshl_b32 s28, s28, 10')
            for i in range(10):
                k(f'buffer_load_dwordx4 v[{XF+4*i}:{XF+4*i+3}], v{V_L16}, s[{SC}:{SC+3}], s28 offen offset:{(i%4)*1024}')
                if i%4==3: k('s_add_u32 s28, s28, 4096')
        else:
          for i in range(10):
            k(f'buffer_load_dwordx4 v[{XF+4*i}:{XF+4*i+3}], v{T+1}, s[{SC}:{SC+3}], 0 offen offset:{i*64}')
        k(f'v_lshl_add_u32 v{T+1}, v{V_G}, 3, v{T}')
        k('s_mul_i32 s29, s7, 160'); k('s_mul_i32 s30, s5, 96'); k('s_add_u32 s29, s29, s30')
        k(f'v_add_u32 v{T+1}, s29, v{T+1}')
        for j in range(3):
            k(f'buffer_load_dwordx2 v[{V_RES+2*j}:{V_RES+2*j+1}], v{T+1}, s[{SC}:{SC+3}], 0 offen offset:{j*32}')

    def conv_issue(self, stage, kinds):
        k=self.k
        done=k.lab('cvd'); go=k.lab('cvg')
        total=sum(x[5] for x in kinds)
        k('s_mov_b32 s50, 0')
        k('s_lshl_b32 s28, s43, 8'); k('s_add_u32 s28, s28, s2')
        k(f's_cmp_ge_u32 s28, {total}'); k(f's_cbranch_scc1 {done}')
        labs=[k.lab('cvk') for _ in kinds]
        acc=0
        for idx,x in enumerate(kinds[:-1]):
            acc+=x[5]
            k(f's_cmp_lt_u32 s28, {acc}'); k(f's_cbranch_scc1 {labs[idx]}')
        k(f's_branch {labs[-1]}')
        acc=0
        for idx,(name,ptr,rows,stride,ncg,njobs,dst,layout) in enumerate(kinds):
            k(labs[idx]+':')
            if acc: k(f's_sub_u32 s28, s28, {acc}')
            magic=-(-65536//ncg)
            assert all((j*magic)>>16==j//ncg for j in range(njobs))
            k(f's_mul_i32 s29, s28, {magic}'); k('s_lshr_b32 s29, s29, 16')
            k(f's_mul_i32 s30, s29, {ncg}'); k('s_sub_u32 s30, s28, s30')
            srd(k,SA,ptr,rows*stride)
            k(f's_movk_i32 s31, {stride}')
            k(f's_mov_b32 s50, {1 if layout=="w1" else 2}')
            if layout=='w1':
                k('s_mul_i32 s51, s30, 80'); k('s_lshl_b32 s32, s29, 1'); k('s_add_u32 s51, s51, s32')
                k('s_mov_b32 s57, 0')
            else:
                KS=rows//32
                k(f's_mul_i32 s51, s30, {4*KS}'); k('s_add_u32 s51, s51, s29')
                k(f's_mov_b32 s57, {KS*1024}')
            k('s_lshl_b32 s51, s51, 10'); k(f's_add_u32 s51, s51, {dst}')
            k(f's_branch {go}')
            acc+=njobs
        k(go+':')
        k(f'v_lshrrev_b32 v200, 3, v{V_LANE}'); k('v_mul_lo_u32 v200, v200, s31')
        k(f'v_and_b32 v201, 7, v{V_LANE}'); k('v_lshl_add_u32 v200, v201, 4, v200')
        k('s_lshl_b32 s32, s29, 5'); k('s_mul_i32 s32, s32, s31'); k('s_lshl_b32 s33, s30, 7'); k('s_add_u32 s32, s32, s33')
        k('s_lshl_b32 s33, s31, 3')
        k('s_lshl_b32 s34, s43, 12'); k(f's_add_u32 s34, s34, {stage}')
        for i in range(4):
            k('s_mov_b32 m0, s34')
            k(f'buffer_load_dwordx4 v200, s[{SA}:{SA+3}], s32 offen lds')
            if i<3:
                k('s_add_u32 s32, s32, s33'); k('s_add_u32 s34, s34, 1024')
        k(done+':')
    def conv_finish(self,T,stage):
        k=self.k
        done=k.lab('cfd'); w2=k.lab('cf2')
        k('s_cmp_eq_u32 s50, 0'); k(f's_cbranch_scc1 {done}')
        k('s_lshl_b32 s34, s43, 12'); k(f's_add_u32 s34, s34, {stage}')
        k(f'v_lshrrev_b32 v{T}, 2, v{V_F}')
        k(f'v_and_b32 v{T+1}, 3, v{V_LANE}')
        k('s_cmp_eq_u32 s50, 2'); k(f's_cbranch_scc1 {w2}')
        k(f'v_lshl_add_u32 v{T}, v{V_H}, 3, v{T}'); k(f'v_lshlrev_b32 v{T}, 7, v{T}')
        k(f'v_and_b32 v{T+2}, 1, v{V_G}'); k(f'v_lshl_add_u32 v{T}, v{T+2}, 5, v{T}')
        k(f'v_lshl_add_u32 v{T}, v{T+1}, 3, v{T}'); k(f'v_add_u32 v{T}, s34, v{T}')
        fr=[(p,u) for p in range(2) for u in range(2)]
        for n,(p,u) in enumerate(fr):
            b=T+4+4*n
            k(f'ds_read_b64_tr_b16 v[{b}:{b+1}], v{T} offset:{u*2048+p*64}')
            k(f'ds_read_b64_tr_b16 v[{b+2}:{b+3}], v{T} offset:{u*2048+p*64+512}')
        k('s_waitcnt lgkmcnt(0)')
        for n,(p,u) in enumerate(fr):
            b=T+4+4*n
            k(f's_add_u32 s32, s51, {(p*40+u)*1024}')
            k(f'buffer_store_dwordx4 v[{b}:{b+3}], v{V_L16}, s[{WS}:{WS+3}], s32 offen sc1')
        k(f's_branch {done}')
        k(w2+':')
        k(f'v_lshl_add_u32 v{T}, v{V_G}, 3, v{T}'); k(f'v_lshlrev_b32 v{T}, 7, v{T}')
        k(f'v_lshl_add_u32 v{T}, v{T+1}, 3, v{T}'); k(f'v_add_u32 v{T}, s34, v{T}')
        for n in range(4):
            b=T+4+4*n
            k(f'ds_read_b64_tr_b16 v[{b}:{b+1}], v{T} offset:{n*32}')
            k(f'ds_read_b64_tr_b16 v[{b+2}:{b+3}], v{T} offset:{n*32+512}')
        k('s_waitcnt lgkmcnt(0)')
        k('s_mov_b32 s32, s51')
        for n in range(4):
            b=T+4+4*n
            k(f'buffer_store_dwordx4 v[{b}:{b+3}], v{V_L16}, s[{WS}:{WS+3}], s32 offen sc1')
            if n<3: k('s_add_u32 s32, s32, s57')
        k(done+':')
    CONV_A=[('wo',P_WO,640,1280,10,200,WOF,'a16'),('wq',P_WQ,640,1280,10,200,WQF,'a16')]
    CONV_B=[('w1',P_W1,640,3456,27,540,W1F,'w1'),('w2',P_W2,1728,1280,10,540,W2F,'a16')]

    def dma_lin_slice(self, src_const, waves=8):
        k=self.k
        k(f's_mul_i32 s28, s7, 102400'); k(f's_add_u32 s28, s28, {src_const}')
        k('s_lshl_b32 s29, s3, 10'); k('s_add_u32 s28, s28, s29')
        for n in range(13):
            lab=None
            if n==12:
                lab=k.lab('dl'); k('s_cmp_ge_u32 s3, 4'); k(f's_cbranch_scc1 {lab}')
            k('s_mov_b32 m0, s29')
            k(f'buffer_load_dwordx4 v{V_L16}, s[{WS}:{WS+3}], s28 offen sc1 lds')
            if n<12:
                k('s_add_u32 s28, s28, 8192'); k('s_add_u32 s29, s29, 8192')
            if lab: k(lab+':')

    def dma_next_qkv(self):
        k=self.k
        end=k.lab('dn')
        k(f's_cmp_eq_u32 s3, {POLLW}'); k(f's_cbranch_scc1 {end}')
        k('s_and_b32 s28, s7, 1'); k('s_cmp_eq_u32 s28, 0')
        k(f's_cselect_b32 s30, s{P_WK}, s{P_WV}'); k(f's_cselect_b32 s31, s{P_WK+1}, s{P_WV+1}')
        srd(k,SB,30,25600)
        for t in range(4):
            lab=k.lab('wk')
            k(f's_add_u32 s28, s3, {7*t}')
            if t==3:
                k('s_cmp_ge_u32 s28, 25'); k(f's_cbranch_scc1 {lab}')
            k('s_lshl_b32 s29, s28, 10'); k(f's_add_u32 s30, s29, {L_WKV}')
            k('s_mov_b32 m0, s30')
            k(f'buffer_load_dwordx4 v{V_L16}, s[{SB}:{SB+3}], s29 offen lds')
            k(lab+':')
        k(f's_mul_i32 s28, s7, 102400'); k(f's_add_u32 s28, s28, {WQF}')
        k('s_lshl_b32 s29, s3, 10'); k('s_add_u32 s28, s28, s29')
        for n in range(15):
            lab=None
            if n==14:
                lab=k.lab('dl'); k('s_cmp_ge_u32 s3, 2'); k(f's_cbranch_scc1 {lab}')
            k('s_mov_b32 m0, s29')
            k(f'buffer_load_dwordx4 v{V_L16}, s[{WS}:{WS+3}], s28 offen sc1 lds')
            if n<14:
                k('s_add_u32 s28, s28, 7168'); k('s_add_u32 s29, s29, 7168')
            if lab: k(lab+':')
        k(end+':')
    def tlb_warm(self):
        k=self.k
        lab=k.lab('tw')
        k('s_cmp_lg_u32 s3, 6'); k(f's_cbranch_scc1 {lab}')
        k(f'v_lshlrev_b32 v200, 19, v{V_LANE}')
        k(f'buffer_load_dword v201, v200, s[{WS}:{WS+3}], 0 offen')
        for ptr,size in ((P_W1,640*3456),(P_W2,1728*1280),(P_OUT,2048*1280),(P_WO,640*1280),(P_B1,3456),(P_B2,1280)):
            srd(k,SA,ptr,size)
            k(f'buffer_load_dword v201, v200, s[{SA}:{SA+3}], 0 offen')
        if 'cpf' in os.environ.get('XP',''):
            k('s_getpc_b64 s[56:57]')
            k('mega_code_here:')
            k('s_mov_b32 s28, mega_code_end-mega_code_here-4')
            k(f'v_lshlrev_b32 v200, 7, v{V_LANE}')
            for n in range(8):
                k('v_min_u32 v202, s28, v200')
                k('global_load_dword v201, v202, s[56:57]')
                k('v_add_u32 v200, 8192, v200')
        k(lab+':')

    def frag_gemm(self, frags, WR, depth, nread, after=None):
        k=self.k
        n=len(frags); slots=depth+1
        reg=lambda i: WR+(i%slots)*4
        def issue(i):
            if frags[i].get('pre'): frags[i]['pre']()
            frags[i]['read'](reg(i))
        for i in range(min(depth,n)): issue(i)
        for i in range(n):
            if i+depth<n: issue(i+depth)
            rem=min(depth,n-1-i)
            w=f's_waitcnt lgkmcnt({rem*nread})'
            vm=frags[i].get('vm')
            if vm is not None:
                v=vm() if callable(vm) else vm
                if v is not None: w+=f' vmcnt({v})'
            k(w)
            frags[i]['mfma'](reg(i))
            if after and i in after: after[i]()

    def diag_stats(self,SX,SQ,S0,S1,tmp):
        k=self.k
        k(f'v_and_b32 v{tmp}, 3, v{V_LANE}')
        k(f'v_mov_b32 v{S1}, v{SQ}')
        for r in (1,2,3):
            k(f'v_cmp_eq_u32 vcc, {r}, v{tmp}'); k(f'v_cndmask_b32 v{S1}, v{S1}, v{SQ+r}, vcc')
        k(f'v_mov_b32 v{S0}, v{SX}')
    def diag_mask_on(self):
        k=self.k
        k('s_mov_b32 exec_lo, 0x00f0000f'); k('s_mov_b32 exec_hi, 0xf0000f00')
    def reduce_pairs(self, ACC, tmp, base):
        k=self.k
        k('s_mul_i32 s28, s4, 5120')
        k(f's_add_u32 s28, s28, {base}')
        k(f'v_add_u32 v{tmp}, s28, v{V_L16}')
        l1=k.lab('r1'); l2=k.lab('r2')
        k('s_cmp_eq_u32 s5, 1'); k(f's_cbranch_scc1 {l1}')
        for ft in (3,4): k(f'ds_write_b128 v{tmp}, v[{ACC+4*ft}:{ACC+4*ft+3}] offset:{ft*1024}')
        k(f's_branch {l2}')
        k(l1+':')
        for ft in (0,1,2): k(f'ds_write_b128 v{tmp}, v[{ACC+4*ft}:{ACC+4*ft+3}] offset:{ft*1024}')
        for i in range(8): k(f'v_mov_b32 v{ACC+i}, v{ACC+12+i}')
        k(l2+':')
    def reduce_pairs_finish(self, ACC, tmp, T):
        k=self.k
        k('s_mul_i32 s29, s5, 3072')
        k(f'v_add_u32 v{tmp}, s29, v{tmp}')
        for j in range(3): k(f'ds_read_b128 v[{T+4*j}:{T+4*j+3}], v{tmp} offset:{j*1024}')
        k('s_waitcnt lgkmcnt(0)')
        for i in range(12): k(f'v_add_f32 v{ACC+i}, v{ACC+i}, v{T+i}')

    def tile_offsets(self, sbase):
        k=self.k
        k('s_lshl_b32 s28, s6, 2'); k('s_add_u32 s28, s28, s4'); k('s_mul_i32 s28, s28, 20480')
        k('s_mul_i32 s29, s7, 5'); k('s_mul_i32 s30, s5, 3'); k('s_add_u32 s29, s29, s30')
        for j in range(3):
            k(f's_add_u32 s30, s29, {j}'); k('s_lshl_b32 s30, s30, 9')
            k(f's_add_u32 s{sbase+j}, s30, s28')

    def x_loads(self,XF,n,base_const,layer_stride,KS,per_half):
        k=self.k
        k('s_lshl_b32 s28, s6, 2'); k('s_add_u32 s28, s28, s4'); k(f's_mul_i32 s28, s28, {KS}'); k(f's_mul_i32 s29, s5, {per_half}'); k('s_add_u32 s28, s28, s29')
        k('s_lshl_b32 s28, s28, 10')
        if layer_stride:
            k(f's_mul_i32 s29, s12, {layer_stride}'); k('s_add_u32 s28, s28, s29')
        k(f's_add_u32 s28, s28, {base_const}')
        for i in range(n):
            k(f'buffer_load_dwordx4 v[{XF+4*i}:{XF+4*i+3}], v{V_L16}, s[{WS}:{WS+3}], s28 offen offset:{(i%4)*1024} sc1')
            if i%4==3: k('s_add_u32 s28, s28, 4096')

    def kv_flag(self,T):
        k=self.k
        nkf=k.lab('nkf')
        k('s_lshr_b32 s28, s7, 1'); k('s_cmp_lg_u32 s28, s4'); k(f's_cbranch_scc1 {nkf}')
        k('s_waitcnt vmcnt(0)')
        k('s_add_u32 s28, s13, 1'); k(f'v_mov_b32 v{T+5}, s28')
        k('s_lshl_b32 s29, s6, 6'); k('s_lshl_b32 s30, s7, 3'); k('s_add_u32 s29, s29, s30'); k('s_lshl_b32 s30, s5, 2'); k('s_add_u32 s29, s29, s30')
        k(f's_add_u32 s29, s29, {KVFLG}')
        k(f'v_mov_b32 v{T+6}, s29')
        k('s_mov_b64 exec, 1')
        k(f'buffer_store_dword v{T+5}, v{T+6}, s[{WS}:{WS+3}], 0 offen sc1')
        k('s_mov_b64 exec, -1')
        k(nkf+':')
    def kv_first(self,XF,WR,KVA,KVC,ONES,SX,SQ,T):
        k=self.k
        nokv=k.lab('nokv')
        S0,S1=T+2,T+3
        k('s_lshr_b32 s28, s7, 1'); k('s_cmp_lg_u32 s28, s4'); k(f's_cbranch_scc1 {nokv}')
        k(f'v_lshrrev_b32 v{T+4}, 2, v{V_F}'); k(f'v_lshl_add_u32 v{T+4}, v{V_G}, 3, v{T+4}'); k(f'v_mul_u32_u24 v{T+4}, 40, v{T+4}')
        k(f'v_and_b32 v{T+5}, 3, v{V_LANE}'); k(f'v_lshl_add_u32 v{T+4}, v{T+5}, 3, v{T+4}')
        k('s_mul_i32 s28, s5, 12800'); k(f's_add_u32 s28, s28, {L_WKV}'); k(f'v_add_u32 v{T+4}, s28, v{T+4}')
        kvd=k.lab('kvd')
        vl={(v,c):k.lab('kvv') for v in (0,1) for c in (0,1)}
        k('s_and_b32 s28, s7, 1'); k('s_lshl_b32 s28, s28, 1'); k('s_add_u32 s28, s28, s12')
        for idx,(v,c) in enumerate(((0,1),(0,0),(1,1))):
            k(f's_cmp_eq_u32 s28, {idx}'); k(f's_cbranch_scc1 {vl[(v,c)]}')
        k(f's_branch {vl[(1,0)]}')
        for (variant,with_cs),lab in vl.items():
            k(lab+':')
            fr=[]
            for i in range(10):
                for u in range(2):
                    def rd(r,i=i,u=u):
                        k(f'ds_read_b64_tr_b16 v[{r}:{r+1}], v{T+4} offset:{i*1280+u*32}')
                        k(f'ds_read_b64_tr_b16 v[{r+2}:{r+3}], v{T+4} offset:{i*1280+160+u*32}')
                    def mf(r,i=i,u=u,variant=variant,with_cs=with_cs):
                        c=KVA+4*u; cc=KVC+4*u
                        cs='0' if i==0 else f'v[{c}:{c+3}]'; cs2='0' if i==0 else f'v[{cc}:{cc+3}]'
                        X=f'v[{XF+4*i}:{XF+4*i+3}]'; W=f'v[{r}:{r+3}]'; O_=f'v[{ONES}:{ONES+3}]'
                        if variant==0:
                            k(f'v_mfma_f32_16x16x32_bf16 v[{c}:{c+3}], {W}, {X}, {cs}')
                            if with_cs: k(f'v_mfma_f32_16x16x32_bf16 v[{cc}:{cc+3}], {W}, {O_}, {cs2}')
                        else:
                            k(f'v_mfma_f32_16x16x32_bf16 v[{c}:{c+3}], {X}, {W}, {cs}')
                            if with_cs: k(f'v_mfma_f32_16x16x32_bf16 v[{cc}:{cc+3}], {O_}, {W}, {cs2}')
                        if u==0:
                            a0='0' if i==0 else f'v[{SX}:{SX+3}]'
                            k(f'v_mfma_f32_16x16x32_bf16 v[{SX}:{SX+3}], {O_}, {X}, {a0}')
                        else:
                            a0='0' if i==0 else f'v[{SQ}:{SQ+3}]'
                            k(f'v_mfma_f32_16x16x32_bf16 v[{SQ}:{SQ+3}], {X}, {X}, {a0}')
                    fr.append(dict(read=rd,mfma=mf,vm=((9-i) if (u==0 and not with_cs) else None)))
            self.frag_gemm(fr,WR,7,2)
            k(f's_branch {kvd}')
        k(kvd+':')
        nz=k.lab('nz'); pl=k.lab('npl'); pd=k.lab('npd')
        k('s_cmp_lg_u32 s12, 0'); k(f's_cbranch_scc1 {nz}')
        k('s_mov_b32 s30, 0')
        k(pl+':')
        k('s_waitcnt vmcnt(0)')
        k('v_cmp_eq_u32 vcc, 0, v201')
        k(f's_cbranch_vccz {pd}')
        k('v_mov_b32 v200, 0')
        k('buffer_load_dword v201, v200, s[60:63], 0 offen sc1')
        k('s_add_u32 s30, s30, 1'); k('s_cmp_lt_u32 s30, 0x40000'); k(f's_cbranch_scc1 {pl}')
        k('s_waitcnt vmcnt(0)')
        k(pd+':')
        k('v_readfirstlane_b32 s13, v201')
        k(f'v_mov_b32 v200, {L_NONCE}')
        k('ds_write_b32 v200, v201')
        k(nz+':')
        self.diag_stats(SX,SQ,S0,S1,T+6)
        k('s_lshl_b32 s28, s4, 8'); k('s_lshl_b32 s29, s5, 7'); k('s_add_u32 s28, s28, s29'); k(f's_add_u32 s28, s28, {L_STAT}')
        k(f'v_lshl_add_u32 v{T+6}, v{V_F}, 3, s28')
        self.diag_mask_on()
        k(f'ds_write_b64 v{T+6}, v[{S0}:{S1}]')
        k('s_mov_b64 exec, -1')
        k(f'v_add_u32 v{T+5}, {L_KVR}, v{V_L16}')
        a=k.lab('ka'); b_=k.lab('kb')
        k('s_cmp_eq_u32 s5, 1'); k(f's_cbranch_scc1 {a}')
        k(f'ds_write_b128 v{T+5}, v[{KVA+4}:{KVA+7}] offset:2048'); k(f'ds_write_b128 v{T+5}, v[{KVC+4}:{KVC+7}] offset:3072')
        k(f's_branch {b_}')
        k(a+':')
        k(f'ds_write_b128 v{T+5}, v[{KVA}:{KVA+3}]'); k(f'ds_write_b128 v{T+5}, v[{KVC}:{KVC+3}] offset:1024')
        for i in range(4):
            k(f'v_mov_b32 v{KVA+i}, v{KVA+4+i}'); k(f'v_mov_b32 v{KVC+i}, v{KVC+4+i}')
        k(b_+':')
        k('s_add_u32 s28, s13, 1'); k(f'v_mov_b32 v{T+6}, s28')
        k('s_lshl_b32 s29, s5, 2'); k(f's_add_u32 s29, s29, {L_PAIRF}'); k(f'v_mov_b32 v{T+7}, s29')
        k('s_waitcnt lgkmcnt(0)')
        k(f'ds_write_b32 v{T+7}, v{T+6}')
        k(f'v_xor_b32 v{T+7}, 4, v{T+7}')
        sp=k.lab('pr'); spd=k.lab('prd')
        k('s_mov_b32 s30, 0')
        k(sp+':')
        k(f'ds_read_b32 v{T+8}, v{T+7}')
        k('s_waitcnt lgkmcnt(0)')
        k(f'v_cmp_eq_u32 vcc, s28, v{T+8}')
        k(f's_cbranch_vccnz {spd}')
        k('s_add_u32 s30, s30, 1'); k('s_cmp_lt_u32 s30, 0x100000'); k(f's_cbranch_scc1 {sp}')
        k(spd+':')
        KW=WR
        k('s_lshl_b32 s28, s5, 11'); k(f's_add_u32 s28, s28, {L_KVR}')
        k(f'v_add_u32 v{T+5}, s28, v{V_L16}')
        k(f'ds_read_b128 v[{KW}:{KW+3}], v{T+5}'); k(f'ds_read_b128 v[{KW+4}:{KW+7}], v{T+5} offset:1024')
        k('s_lshl_b32 s28, s4, 8'); k(f's_add_u32 s28, s28, {L_STAT}')
        k(f'v_lshl_add_u32 v{T+6}, v{V_F}, 3, s28')
        k(f'ds_read_b64 v[{T+10}:{T+11}], v{T+6}'); k(f'ds_read_b64 v[{T+12}:{T+13}], v{T+6} offset:128')
        k('s_lshl_b32 s28, s5, 10'); k(f's_add_u32 s28, s28, {L_KVCS}'); k(f'v_add_u32 v{T+7}, s28, v{V_L16}')
        c0=k.lab('c0'); c1=k.lab('c1')
        k('s_cmp_eq_u32 s12, 0'); k(f's_cbranch_scc1 {c0}')
        k(f'ds_read_b128 v[{KVC}:{KVC+3}], v{T+7}')
        k('s_waitcnt lgkmcnt(0)')
        k(f's_branch {c1}')
        k(c0+':')
        k('s_waitcnt lgkmcnt(0)')
        for i in range(4): k(f'v_add_f32 v{KVC+i}, v{KVC+i}, v{KW+4+i}')
        k(f'ds_write_b128 v{T+7}, v[{KVC}:{KVC+3}]')
        k(c1+':')
        for i in range(4): k(f'v_add_f32 v{KVA+i}, v{KVA+i}, v{KW+i}')
        MEAN,RSTD=T+14,T+15
        k(f'v_add_f32 v{T+10}, v{T+10}, v{T+12}'); k(f'v_add_f32 v{T+11}, v{T+11}, v{T+13}')
        k(f'v_mul_f32 v{MEAN}, {hex(f2u(1/640))}, v{T+10}'); k(f'v_mul_f32 v{T+11}, {hex(f2u(1/640))}, v{T+11}')
        k(f'v_fma_f32 v{T+11}, -v{MEAN}, v{MEAN}, v{T+11}'); k(f'v_max_f32 v{T+11}, 0, v{T+11}')
        k(f'v_add_f32 v{T+11}, {hex(f2u(1e-5))}, v{T+11}'); k(f'v_rsq_f32 v{RSTD}, v{T+11}')
        k(f'v_mul_f32 v{MEAN}, v{MEAN}, v{RSTD}')
        k('s_lshl_b32 s30, s6, 6'); k('s_lshl_b32 s31, s4, 4'); k('s_add_u32 s30, s30, s31')
        k('s_lshr_b32 s31, s30, 5'); k('s_mul_i32 s31, s31, 3584')
        k(f's_mul_i32 s32, s12, {KV_D}'); k('s_add_u32 s31, s31, s32'); k(f's_add_u32 s31, s31, {KVB[0]}')
        k('s_lshr_b32 s32, s30, 4'); k('s_and_b32 s32, s32, 1')
        isv2=k.lab('isv2')
        k('s_and_b32 s28, s7, 1'); k('s_cmp_eq_u32 s28, 1'); k(f's_cbranch_scc1 {isv2}')
        for i in range(4):
            k(f'v_mul_f32 v{KVA+i}, v{KVA+i}, v{RSTD}'); k(f'v_fma_f32 v{KVA+i}, -v{MEAN}, v{KVC+i}, v{KVA+i}')
        k('s_lshl_b32 s28, s5, 2'); k(f'v_add_u32 v{T+6}, s28, v{V_G}')
        k(f'v_cmp_eq_u32 vcc, 5, v{T+6}')
        for i in range(4): k(f'v_cndmask_b32 v{KVA+i}, v{KVA+i}, 0, vcc')
        k(f'v_cvt_pk_bf16_f32 v{KVA}, v{KVA}, v{KVA+1}'); k(f'v_cvt_pk_bf16_f32 v{KVA+1}, v{KVA+2}, v{KVA+3}')
        k('s_lshl_b32 s28, s32, 4'); k(f'v_add_u32 v{T+7}, s28, v{V_F}')
        k(f'v_lshrrev_b32 v{T+8}, 1, v{T+6}'); k(f'v_lshlrev_b32 v{T+8}, 9, v{T+8}')
        k(f'v_lshl_add_u32 v{T+8}, v{T+7}, 4, v{T+8}')
        k(f'v_and_b32 v{T+9}, 1, v{T+6}'); k(f'v_lshl_add_u32 v{T+8}, v{T+9}, 3, v{T+8}')
        k(f'v_subrev_u32 v{T+9}, 4, v{T+6}'); k(f'v_lshlrev_b32 v{T+9}, 8, v{T+9}')
        k(f'v_lshl_add_u32 v{T+9}, v{T+7}, 3, v{T+9}'); k(f'v_add_u32 v{T+9}, 3072, v{T+9}')
        k(f'v_cmp_gt_u32 vcc, 4, v{T+6}'); k(f'v_cndmask_b32 v{T+8}, v{T+9}, v{T+8}, vcc')
        k(f'v_cmp_gt_u32 vcc, 6, v{T+6}'); k(f'v_mov_b32 v{T+9}, {OOB}'); k(f'v_cndmask_b32 v{T+8}, v{T+9}, v{T+8}, vcc')
        k(f'buffer_store_dwordx2 v[{KVA}:{KVA+1}], v{T+8}, s[{WS}:{WS+3}], s31 offen sc1')
        k(f's_branch {nokv}')
        k(isv2+':')
        k('s_lshl_b32 s28, s4, 8'); k(f's_add_u32 s28, s28, {L_STAT}')
        k(f'v_lshl_add_u32 v{T+6}, v{V_G}, 5, s28')
        Y=WR+8
        k(f'ds_read_b128 v[{Y}:{Y+3}], v{T+6}'); k(f'ds_read_b128 v[{Y+4}:{Y+7}], v{T+6} offset:16')
        k(f'ds_read_b128 v[{Y+8}:{Y+11}], v{T+6} offset:128'); k(f'ds_read_b128 v[{Y+12}:{Y+15}], v{T+6} offset:144')
        k('s_waitcnt lgkmcnt(0)')
        for i in range(4):
            s_,q_=Y+2*i,Y+2*i+1
            k(f'v_add_f32 v{s_}, v{s_}, v{s_+8}'); k(f'v_add_f32 v{q_}, v{q_}, v{q_+8}')
            k(f'v_mul_f32 v{s_}, {hex(f2u(1/640))}, v{s_}'); k(f'v_mul_f32 v{q_}, {hex(f2u(1/640))}, v{q_}')
            k(f'v_fma_f32 v{q_}, -v{s_}, v{s_}, v{q_}'); k(f'v_max_f32 v{q_}, 0, v{q_}'); k(f'v_add_f32 v{q_}, {hex(f2u(1e-5))}, v{q_}')
            k(f'v_rsq_f32 v{q_}, v{q_}')
            k(f'v_fma_f32 v{KVA+i}, -v{s_}, v{KVC+i}, v{KVA+i}')
            k(f'v_mul_f32 v{KVA+i}, v{KVA+i}, v{q_}')
        k('s_lshl_b32 s28, s5, 4'); k(f'v_add_u32 v{T+6}, s28, v{V_F}')
        k(f'v_cmp_eq_u32 vcc, 20, v{T+6}')
        for i in range(4): k(f'v_cndmask_b32 v{KVA+i}, v{KVA+i}, 1.0, vcc')
        k(f'v_cmp_lt_u32 vcc, 20, v{T+6}')
        for i in range(4): k(f'v_cndmask_b32 v{KVA+i}, v{KVA+i}, 0, vcc')
        k(f'v_cvt_pk_bf16_f32 v{KVA}, v{KVA}, v{KVA+1}'); k(f'v_cvt_pk_bf16_f32 v{KVA+1}, v{KVA+2}, v{KVA+3}')
        k('s_lshl_b32 s28, s32, 10'); k('s_add_u32 s28, s28, 1024')
        k(f'v_and_b32 v{T+7}, 1, v{V_G}'); k(f'v_lshlrev_b32 v{T+7}, 9, v{T+7}')
        k(f'v_lshl_add_u32 v{T+7}, v{T+6}, 4, v{T+7}')
        k(f'v_lshrrev_b32 v{T+8}, 1, v{V_G}'); k(f'v_lshl_add_u32 v{T+7}, v{T+8}, 3, v{T+7}')
        k(f'v_add_u32 v{T+7}, s28, v{T+7}')
        k(f'buffer_store_dwordx2 v[{KVA}:{KVA+1}], v{T+7}, s[{WS}:{WS+3}], s31 offen sc1')
        k(nokv+':')

    def phase_qkv(self):
        k=self.k
        XF,WR,ACC,CSA,KVA,KVC,ONES,T=24,64,96,116,124,132,140,144
        SX,SQ=176,180
        l0=k.lab('x0'); l1=k.lab('x1')
        for i in range(4): k(f'v_mov_b32 v{ONES+i}, 0x3f803f80')
        k('s_cmp_eq_u32 s12, 0'); k(f's_cbranch_scc1 {l0}')
        self.x_loads(XF,10,X2B,0,20,10)
        k('s_waitcnt vmcnt(9)')
        k('s_barrier')
        k(f's_branch {l1}')
        k(l0+':')
        nk=k.lab('nk')
        k('s_lshr_b32 s28, s7, 1'); k('s_cmp_lg_u32 s28, s4'); k(f's_cbranch_scc1 {nk}')
        k('s_waitcnt vmcnt(0)')
        k('v_mov_b32 v200, 0')
        k('buffer_load_dword v201, v200, s[60:63], 0 offen sc1')
        k(nk+':')
        k(l1+':')
        self.mark("q.start")
        self.kv_first(XF,WR,KVA,KVC,ONES,SX,SQ,T)
        self.mark("q.kv")
        l2=k.lab('l2')
        k('s_cmp_lg_u32 s12, 0'); k(f's_cbranch_scc1 {l2}')
        k('s_waitcnt vmcnt(0)')
        self.kv_flag(T)
        k('s_waitcnt lgkmcnt(0)')
        k('s_barrier')
        k(f'v_mov_b32 v200, {L_NONCE}')
        k('ds_read_b32 v201, v200')
        k('s_waitcnt lgkmcnt(0)')
        k('v_readfirstlane_b32 s13, v201')
        self.mark("q.b2")
        self.conv_issue(L_RED,self.CONV_A+self.CONV_B)
        self.mark("q.ci")
        k(l2+':')
        vA,vC=T,T+1
        S0,S1=T+2,T+3
        k('s_mul_i32 s28, s5, 51200')
        k(f'v_add_u32 v{vA}, s28, v{V_TR}')
        k('s_lshl_b32 s29, s4, 5')
        k(f'v_add_u32 v{vC}, s29, v{vA}')
        def stat_mfma(i,ft):
            X=f'v[{XF+4*i}:{XF+4*i+3}]'
            if ft==0:
                cs='0' if i==0 else f'v[{SX}:{SX+3}]'
                k(f'v_mfma_f32_16x16x32_bf16 v[{SX}:{SX+3}], v[{ONES}:{ONES+3}], {X}, {cs}')
            if ft==2:
                cs='0' if i==0 else f'v[{SQ}:{SQ+3}]'
                k(f'v_mfma_f32_16x16x32_bf16 v[{SQ}:{SQ+3}], {X}, {X}, {cs}')
        def mk(with_cs):
            fr=[]
            if not with_cs:
                k('s_mul_i32 s28, s5, 10240'); k(f'v_add_u32 v{vA}, s28, v{V_L16}'); k(f'v_add_u32 v{vC}, 61440, v{vA}')
                for i in range(10):
                    for ft in range(5):
                        va,imm=(vA,ft*20480+i*1024) if ft<3 else (vC,(ft-3)*20480+i*1024)
                        def rd(r,va=va,imm=imm): k(f'ds_read_b128 v[{r}:{r+3}], v{va} offset:{imm}')
                        def mf(r,i=i,ft=ft):
                            c=ACC+4*ft; cs='0' if i==0 else f'v[{c}:{c+3}]'
                            k(f'v_mfma_f32_16x16x32_bf16 v[{c}:{c+3}], v[{r}:{r+3}], v[{XF+4*i}:{XF+4*i+3}], {cs}')
                            stat_mfma(i,ft)
                        fr.append(dict(read=rd,mfma=mf,vm=(9-i) if ft==0 else None))
                self.frag_gemm(fr,WR,7,1)
                return
            for i in range(10):
                for ft in range(5):
                    def rd(r,i=i,ft=ft):
                        k(f'ds_read_b64_tr_b16 v[{r}:{r+1}], v{vA} offset:{i*5120+ft*32}')
                        k(f'ds_read_b64_tr_b16 v[{r+2}:{r+3}], v{vA} offset:{i*5120+1280+ft*32}')
                    def mf(r,i=i,ft=ft):
                        c=ACC+4*ft; cs='0' if i==0 else f'v[{c}:{c+3}]'
                        k(f'v_mfma_f32_16x16x32_bf16 v[{c}:{c+3}], v[{r}:{r+3}], v[{XF+4*i}:{XF+4*i+3}], {cs}')
                        if ft==4:
                            cs='0' if i==0 else f'v[{CSA+4}:{CSA+7}]'
                            k(f'v_mfma_f32_16x16x32_bf16 v[{CSA+4}:{CSA+7}], v[{r}:{r+3}], v[{ONES}:{ONES+3}], {cs}')
                        stat_mfma(i,ft)
                    fr.append(dict(read=rd,mfma=mf))
                def rd(r,i=i):
                    k(f'ds_read_b64_tr_b16 v[{r}:{r+1}], v{vC} offset:{i*5120}')
                    k(f'ds_read_b64_tr_b16 v[{r+2}:{r+3}], v{vC} offset:{i*5120+1280}')
                def mf(r,i=i):
                    cs='0' if i==0 else f'v[{CSA}:{CSA+3}]'
                    k(f'v_mfma_f32_16x16x32_bf16 v[{CSA}:{CSA+3}], v[{r}:{r+3}], v[{ONES}:{ONES+3}], {cs}')
                fr.append(dict(read=rd,mfma=mf))
            self.frag_gemm(fr,WR,7,2)
        m1=k.lab('m1'); m2=k.lab('m2')
        k('s_cmp_eq_u32 s12, 0'); k(f's_cbranch_scc0 {m1}')
        mk(True)
        k('s_mul_i32 s28, s5, 320'); k(f's_add_u32 s28, s28, {L_CS}')
        k(f'v_lshl_add_u32 v{T+7}, v{V_G}, 4, s28')
        k('s_lshl_b32 s29, s4, 6'); k(f'v_add_u32 v{T+8}, s29, v{T+7}')
        k(f'ds_write_b128 v{T+8}, v[{CSA}:{CSA+3}]')
        k(f'ds_write_b128 v{T+7}, v[{CSA+4}:{CSA+7}] offset:256')
        k(f's_branch {m2}')
        k(m1+':')
        mk(False)
        k(m2+':')
        self.mark("q.main")
        l3=k.lab('l3'); l4=k.lab('l4')
        k('s_cmp_eq_u32 s12, 0'); k(f's_cbranch_scc1 {l3}')
        self.kv_flag(T)
        k(f's_mov_b32 s43, {L_RED}')
        k(f's_branch {l4}')
        k(l3+':')
        k('s_waitcnt vmcnt(0)')
        self.mark("q.cw")
        self.conv_finish(200,L_RED)
        k(f's_mov_b32 s43, {L_WKV}')
        k(l4+':')
        self.mark("q.mm")
        self.diag_stats(SX,SQ,S0,S1,T+6)
        k('s_lshl_b32 s28, s4, 8'); k('s_lshl_b32 s29, s5, 7'); k('s_add_u32 s28, s28, s29'); k(f's_add_u32 s28, s28, {L_STAT}')
        k(f'v_lshl_add_u32 v{T+6}, v{V_F}, 3, s28')
        self.diag_mask_on()
        k(f'ds_write_b64 v{T+6}, v[{S0}:{S1}]')
        k('s_mov_b64 exec, -1')
        self.reduce_pairs(ACC,T+9,'s43')
        k('s_waitcnt lgkmcnt(0)')
        k('s_barrier')
        Z=XF
        k('s_lshl_b32 s28, s4, 8'); k(f's_add_u32 s28, s28, {L_STAT}')
        k(f'v_lshl_add_u32 v{T+6}, v{V_F}, 3, s28')
        k(f'ds_read_b64 v[{T+10}:{T+11}], v{T+6}'); k(f'ds_read_b64 v[{T+12}:{T+13}], v{T+6} offset:128')
        k('s_mul_i32 s28, s5, 192'); k(f's_add_u32 s28, s28, {L_CS}')
        k(f'v_lshl_add_u32 v{T+7}, v{V_G}, 4, s28')
        CS0=Z+12
        for j in range(3):
            k(f'ds_read_b128 v[{CS0+8*j}:{CS0+8*j+3}], v{T+7} offset:{j*64}')
            k(f'ds_read_b128 v[{CS0+8*j+4}:{CS0+8*j+7}], v{T+7} offset:{320+j*64}')
        self.reduce_pairs_finish(ACC,T+9,Z)
        MEAN,RSTD=T+14,T+15
        k(f'v_add_f32 v{T+10}, v{T+10}, v{T+12}'); k(f'v_add_f32 v{T+11}, v{T+11}, v{T+13}')
        k(f'v_mul_f32 v{MEAN}, {hex(f2u(1/640))}, v{T+10}'); k(f'v_mul_f32 v{T+11}, {hex(f2u(1/640))}, v{T+11}')
        k(f'v_fma_f32 v{T+11}, -v{MEAN}, v{MEAN}, v{T+11}'); k(f'v_max_f32 v{T+11}, 0, v{T+11}')
        k(f'v_add_f32 v{T+11}, {hex(f2u(1e-5))}, v{T+11}'); k(f'v_rsq_f32 v{RSTD}, v{T+11}')
        k(f'v_mul_f32 v{MEAN}, v{MEAN}, v{RSTD}')
        k(f'v_mul_f32 v{T+16}, {hex(f2u(QSCALE))}, v{RSTD}'); k(f'v_mul_f32 v{T+17}, {hex(f2u(QSCALE))}, v{MEAN}')
        k('s_lshl_b32 s28, s4, 4'); k(f'v_add_u32 v{T+18}, s28, v{V_F}'); k(f'v_mul_u32_u24 v{T+18}, 160, v{T+18}')
        k(f'v_lshl_add_u32 v{T+18}, v{V_G}, 3, v{T+18}')
        k('s_mul_i32 s28, s5, 96'); k(f's_add_u32 s28, s28, {L_QL}'); k(f'v_add_u32 v{T+18}, s28, v{T+18}')
        for j in range(3):
            if j==2:
                q3=k.lab('q3'); k('s_cmp_eq_u32 s5, 1'); k(f's_cbranch_scc1 {q3}')
            for i in range(4):
                r=ACC+4*j+i
                k(f'v_add_f32 v{CS0+8*j+i}, v{CS0+8*j+i}, v{CS0+8*j+4+i}')
                k(f'v_mul_f32 v{r}, v{r}, v{T+16}'); k(f'v_fma_f32 v{r}, -v{T+17}, v{CS0+8*j+i}, v{r}')
            k(f'v_cvt_pk_bf16_f32 v{ACC+4*j}, v{ACC+4*j}, v{ACC+4*j+1}'); k(f'v_cvt_pk_bf16_f32 v{ACC+4*j+1}, v{ACC+4*j+2}, v{ACC+4*j+3}')
            k(f'ds_write_b64 v{T+18}, v[{ACC+4*j}:{ACC+4*j+1}] offset:{j*32}')
            if j==2: k(q3+':')
        k('s_waitcnt lgkmcnt(0)')
        self.mark("q.epi")
        self.publish(1)
        self.mark("q.pub")

    def phase_attn(self):
        k=self.k
        D=4; SL=14
        Q1=[24,30]; Q2=[28,34]
        S=[36,52]; O=[68,84]; P=100
        KB=108
        K1=lambda s: KB+s*SL
        V=lambda s: KB+s*SL+4
        K2=lambda s: KB+s*SL+12
        T=KB+D*SL
        VL8=T; NEG=[176,192]
        k(f'v_mul_u32_u24 v{T+1}, 160, v{V_L31}')
        k('s_mul_i32 s28, s4, 40'); k(f's_add_u32 s28, s28, {L_QL}')
        k(f'v_add_u32 v{T+1}, s28, v{T+1}')
        k(f'v_lshl_add_u32 v{T+2}, v{V_H}, 4, v{T+1}')
        for q in range(2):
            k(f'ds_read_b64 v[{Q1[q]}:{Q1[q]+1}], v{T+2} offset:{q*5120}')
            k(f'ds_read_b64 v[{Q1[q]+2}:{Q1[q]+3}], v{T+2} offset:{q*5120+8}')
            k(f'ds_read_b64 v[{Q2[q]}:{Q2[q]+1}], v{T+1} offset:{q*5120+32}')
        k(f'v_lshlrev_b32 v{VL8}, 3, v{V_LANE}')
        k('s_waitcnt lgkmcnt(0)')
        k(f'v_cmp_eq_u32 vcc, 0, v{V_H}')
        for q in range(2):
            for i in range(2): k(f'v_cndmask_b32 v{Q2[q]+i}, 0, v{Q2[q]+i}, vcc')
        self.mark("a.dma")
        VFA,VF=T+6,T+7
        k(f'v_lshlrev_b32 v{VFA}, 2, v{V_LANE}'); k(f'v_add_u32 v{VFA}, {KVFLG}, v{VFA}')
        k('s_add_u32 s38, s13, 1')
        k('s_lshr_b32 s39, s6, 2')
        def spin_group(sg):
            lp=k.lab('sg'); dn=k.lab('sgd')
            k(f's_lshl_b32 s28, s{sg}, 8'); k('s_mov_b32 s30, 0')
            k(lp+':')
            k(f'buffer_load_dword v{VF}, v{VFA}, s[{WS}:{WS+3}], s28 offen sc1')
            k('s_waitcnt vmcnt(0)')
            k(f'v_subrev_u32 v{VF}, s38, v{VF}')
            k(f'v_cmp_le_u32 vcc, 32, v{VF}')
            k(f's_cbranch_vccz {dn}')
            k('s_sleep 2')
            k('s_add_u32 s30, s30, 1'); k('s_cmp_lt_u32 s30, 0x40000'); k(f's_cbranch_scc1 {lp}')
            k(dn+':')
        k(f'v_mov_b32 v{T+8}, {L_BADF}'); k(f'v_mov_b32 v{T+9}, 0'); k(f'ds_write_b32 v{T+8}, v{T+9}')
        k('s_mov_b32 s49, 0')
        k('s_waitcnt lgkmcnt(0)')
        pw=k.lab('pw')
        k(f's_cmp_lg_u32 s3, {POLLW}'); k(f's_cbranch_scc1 {pw}')
        spin_group(39)
        k(pw+':')
        k('s_barrier')
        self.mark("a.wait")
        def ld(slot):
            k(f'buffer_load_dwordx4 v[{K1(slot)}:{K1(slot)+3}], v{V_L16}, s[{WS}:{WS+3}], s32 offen sc1')
            k(f'buffer_load_dwordx2 v[{K2(slot)}:{K2(slot)+1}], v{VL8}, s[{WS}:{WS+3}], s32 offen offset:3072 sc1')
            k(f'buffer_load_dwordx4 v[{V(slot)}:{V(slot)+3}], v{V_L16}, s[{WS}:{WS+3}], s32 offen offset:1024 sc1')
            k(f'buffer_load_dwordx4 v[{V(slot)+4}:{V(slot)+7}], v{V_L16}, s[{WS}:{WS+3}], s32 offen offset:2048 sc1')
            k('s_add_u32 s32, s32, 7168')
        def run_loop(exact,prefetch):
            def qk1(q,s):
                c = f'v[{NEG[q]}:{NEG[q]+15}]' if exact else '0'
                k(f'v_mfma_f32_32x32x16_bf16 v[{S[q]}:{S[q]+15}], v[{K1(s)}:{K1(s)+3}], v[{Q1[q]}:{Q1[q]+3}], {c}')
            def qk2(q,s): k(f'v_mfma_f32_32x32x8_bf16 v[{S[q]}:{S[q]+15}], v[{K2(s)}:{K2(s)+1}], v[{Q2[q]}:{Q2[q]+1}], v[{S[q]}:{S[q]+15}]')
            def pv(q,s,hf): k(f'v_mfma_f32_32x32x16_bf16 v[{O[q]}:{O[q]+15}], v[{V(s)+4*hf}:{V(s)+4*hf+3}], v[{P+4*hf}:{P+4*hf+3}], v[{O[q]}:{O[q]+15}]')
            def ex(q,a):
                for i in range(a,a+4): k(f'v_exp_f32 v{S[q]+i}, v{S[q]+i}')
            def cv(q,a):
                k(f'v_cvt_pk_bf16_f32 v{P+a//2}, v{S[q]+a}, v{S[q]+a+1}')
                k(f'v_cvt_pk_bf16_f32 v{P+a//2+1}, v{S[q]+a+2}, v{S[q]+a+3}')
            k(f's_mul_i32 s33, s12, {KV_D}'); k(f's_add_u32 s33, s33, {KVB[0]}')
            k('s_mul_i32 s28, s5, 3584'); k('s_add_u32 s33, s33, s28')
            k(f's_mul_i32 s28, s39, {8*3584}'); k('s_add_u32 s32, s33, s28')
            k(f's_add_u32 s33, s33, {64*3584}')
            def fload():
                k('s_add_u32 s45, s45, 1'); k('s_and_b32 s45, s45, 7'); k('s_lshl_b32 s46, s45, 8')
                k(f'buffer_load_dword v{VF}, v{VFA}, s[{WS}:{WS+3}], s46 offen sc1')
            def fcheck():
                ok=k.lab('fok')
                k(f'v_subrev_u32 v{VF}, s38, v{VF}')
                k(f'v_cmp_le_u32 vcc, 32, v{VF}')
                k(f's_cbranch_vccz {ok}')
                spin_group(44)
                k(ok+':')
                k('s_cmp_ge_u32 s32, s33'); k(f's_cselect_b32 s28, {64*3584}, 0'); k('s_sub_u32 s32, s32, s28')
            k('s_mov_b32 s45, s39')
            fload(); k('s_mov_b32 s44, s45')
            for t in range(D-1): ld(t)
            for q in range(2):
                for i in range(16): k(f'v_mov_b32 v{O[q]+i}, 0')
            for i in range(4,8): k(f'v_mov_b32 v{P+i}, 0')
            for i in range(4,8): k(f'v_mov_b32 v{V(D-1)+i}, 0')
            k(f's_waitcnt vmcnt({4*(D-2)})')
            qk1(0,0); qk2(0,0)
            k('s_nop 7')
            spf = prefetch and 'spf' in os.environ.get('XP','')
            def body(dma, w1=None, prev_ops=None):
                ops=[]
                PR=os.environ.get('PRIO','')
                if PR=='alt':
                    pa=k.lab('pa'); pb=k.lab('pb')
                    k('s_add_u32 s47, s34, s5'); k('s_and_b32 s47, s47, 1'); k('s_cmp_eq_u32 s47, 0'); k(f's_cbranch_scc1 {pa}')
                    k('s_setprio 1'); k(f's_branch {pb}'); k(pa+':'); k('s_setprio 0'); k(pb+':')
                for t in range(D):
                    s=t; sn=(t+1)%D; sp=(t-1)%D
                    n=4
                    qk1(1,s); ex(0,0); pv(1,sp,1)
                    if t==1: fcheck()
                    if t==2:
                        fload(); n+=1
                    if dma and 'nowof' not in os.environ.get('XP',''):
                        k('s_min_u32 m0, s35, 101376')
                        k('s_add_u32 s37, s36, m0')
                        k(f'buffer_load_dwordx4 v{V_L16}, s[{WS}:{WS+3}], s37 offen sc1 lds')
                        k('s_add_u32 s35, s35, 8192'); n+=1
                    if w1 is not None:
                        for e in range(2): self.f1_wload(w1+2*t+e)
                        n+=2
                    ld(sp)
                    if t==2: k('s_mov_b32 s44, s45')
                    ex(0,4); cv(0,0); qk2(1,s); cv(0,4); ex(0,8); pv(0,s,0); ex(0,12); cv(0,8); cv(0,12)
                    ops.append(n)
                    if t>0: nv=ops[t-1]+ops[t]
                    elif prev_ops is not None: nv=prev_ops+ops[0]
                    else: nv=4+ops[0]
                    k(f's_waitcnt vmcnt({nv})')
                    qk1(0,sn); ex(1,0); pv(0,s,1); ex(1,4); cv(1,0); qk2(0,sn); cv(1,4); ex(1,8); pv(1,s,0); ex(1,12); cv(1,8); cv(1,12)
                return ops[-1]
            if spf:
                k('s_and_b32 s28, s6, 3'); k('s_lshl_b32 s28, s28, 3'); k('s_add_u32 s28, s28, s7'); k('s_lshl_b32 s28, s28, 3'); k('s_add_u32 s28, s28, s3')
                k('s_lshl_b32 s28, s28, 13'); k(f's_add_u32 s28, s28, {W1F}')
                k('s_add_u32 s62, s86, s28'); k('s_addc_u32 s63, s87, 0')
            if os.environ.get('PRIO','')=='young':
                py=k.lab('py'); k('s_cmp_eq_u32 s5, 0'); k(f's_cbranch_scc1 {py}'); k('s_setprio 1'); k(py+':')
            k('s_mov_b32 s34, 0')
            L1=k.lab('al'); k(L1+':')
            body(False)
            k('s_add_u32 s34, s34, 1'); k('s_cmp_lt_u32 s34, 4'); k(f's_cbranch_scc1 {L1}')
            if prefetch:
                nw=k.lab('nw')
                k('s_cmp_lg_u32 s12, 0'); k(f's_cbranch_scc1 {nw}')
                lw=k.lab('lw'); lwd=k.lab('lwd')
                k(f'v_lshrrev_b32 v208, 1, v{V_LANE}'); k('v_lshlrev_b32 v208, 6, v208')
                k(f'v_and_b32 v209, 1, v{V_LANE}'); k('v_lshl_add_u32 v208, v209, 4, v208')
                k('s_mov_b32 s30, 0')
                k(lw+':')
                k(f'buffer_load_dwordx4 v[212:215], v208, s[{WS}:{WS+3}], 0 offen offset:{FLG} sc1')
                k('s_waitcnt vmcnt(0)')
                for r in (212,213,214,215): k(f'v_subrev_u32 v{r}, s38, v{r}')
                k('v_max_u32 v212, v212, v213'); k('v_max_u32 v214, v214, v215'); k('v_max_u32 v212, v212, v214')
                k('v_cmp_le_u32 vcc, 32, v212')
                k(f's_cbranch_vccz {lwd}')
                k('s_add_u32 s30, s30, 1'); k('s_cmp_lt_u32 s30, 0x40000'); k(f's_cbranch_scc1 {lw}')
                k(lwd+':')
                k(nw+':')
                k('s_lshl_b32 s35, s3, 10')
                k(f's_mul_i32 s36, s7, 102400'); k(f's_add_u32 s36, s36, {WOF}')
            L2=k.lab('bl'); k(L2+':')
            last=body(prefetch)
            UNR=2 if (prefetch and self.F1R) else 0
            k('s_add_u32 s34, s34, 1'); k(f's_cmp_lt_u32 s34, {8-UNR}'); k(f's_cbranch_scc1 {L2}')
            if UNR:
                k('s_min_u32 s42, s40, 53'); k('s_mul_i32 s42, s42, 40960'); k(f's_add_u32 s42, s42, {W1F}')
                last=body(True,w1=0,prev_ops=last)
                body(True,w1=8,prev_ops=last)
            pv(1,D-1,1)
            if os.environ.get('PRIO',''): k('s_setprio 0')
            k('s_waitcnt vmcnt(0)')
        run_loop(False,True)
        self.mark("a.loop")
        COMBINE=k.lab('combine'); FALLBACK=k.lab('fallback')
        k(COMBINE+':')
        k('s_nop 7'); k('s_nop 7')
        c1=k.lab('c1'); c2=k.lab('c2')
        k('s_mul_i32 s28, s3, 3072'); k(f's_add_u32 s28, s28, {L_COMB}')
        k(f'v_add_u32 v{T+1}, s28, v{V_L16}')
        k('s_xor_b32 s29, s3, 4'); k('s_mul_i32 s29, s29, 3072'); k(f's_add_u32 s29, s29, {L_COMB}')
        k(f'v_add_u32 v{T+2}, s29, v{V_L16}')
        k('s_cmp_eq_u32 s5, 1'); k(f's_cbranch_scc1 {c1}')
        for r in range(3): k(f'ds_write_b128 v{T+1}, v[{O[1]+4*r}:{O[1]+4*r+3}] offset:{r*1024}')
        k(f's_branch {c2}')
        k(c1+':')
        for r in range(3): k(f'ds_write_b128 v{T+1}, v[{O[0]+4*r}:{O[0]+4*r+3}] offset:{r*1024}')
        for i in range(12): k(f'v_mov_b32 v{O[0]+i}, v{O[1]+i}')
        k(c2+':')
        k('s_waitcnt lgkmcnt(0)')
        k('s_barrier')
        for r in range(3): k(f'ds_read_b128 v[{S[1]+4*r}:{S[1]+4*r+3}], v{T+2} offset:{r*1024}')
        k('s_waitcnt lgkmcnt(0)')
        self.mark("a.comb")
        Oq=O[0]
        for i in range(12): k(f'v_add_f32 v{Oq+i}, v{Oq+i}, v{S[1]+i}')
        k(f'v_mov_b32 v{T+3}, v{Oq+8}'); k(f'v_mov_b32 v{T+4}, v{Oq+8}')
        k(f'v_permlane32_swap_b32 v{T+3}, v{T+4}')
        k(f'v_add_f32 v{T+3}, abs(v{Oq}), abs(v{Oq+1})')
        for i in range(2,12): k(f'v_add_f32 v{T+3}, abs(v{Oq+i}), v{T+3}')
        k(f's_mov_b32 s28, {hex(f2u(2.0**-30))}'); k(f's_mov_b32 s29, {hex(f2u(2.0**60))}'); k(f's_mov_b32 s30, {hex(f2u(2.0**120))}')
        k(f'v_cmp_nle_f32 s[44:45], s28, v{T+4}')
        k(f'v_cmp_nge_f32 s[46:47], s29, v{T+4}')
        k(f'v_cmp_ngt_f32 vcc, s30, v{T+3}')
        k('s_or_b64 s[44:45], s[44:45], s[46:47]'); k('s_or_b64 vcc, vcc, s[44:45]')
        okl=k.lab('okl')
        k(f's_cbranch_vccz {okl}')
        k(f'v_mov_b32 v{T+8}, {L_BADF}'); k(f'v_mov_b32 v{T+9}, 1'); k(f'ds_write_b32 v{T+8}, v{T+9}')
        k(okl+':')
        k(f'v_rcp_f32 v{T+4}, v{T+4}')
        for i in range(12): k(f'v_mul_f32 v{Oq+i}, v{Oq+i}, v{T+4}')
        PK=S[0]
        for p in range(6): k(f'v_cvt_pk_bf16_f32 v{PK+p}, v{Oq+2*p}, v{Oq+2*p+1}')
        k('s_mul_i32 s28, s4, 5')
        k(f'v_add_u32 v{T+5}, s28, v{V_H}')
        k(f'v_lshrrev_b32 v{T+6}, 4, v{V_L31}'); k('s_lshl_b32 s29, s5, 1'); k(f'v_add_u32 v{T+6}, s29, v{T+6}')
        k(f'v_mul_u32_u24 v{T+6}, 2560, v{T+6}'); k(f'v_lshl_add_u32 v{T+6}, v{V_F}, 4, v{T+6}'); k(f'v_add_u32 v{T+6}, {L_OIMG}, v{T+6}')
        for pc in range(3):
            g_=T+7
            if pc==0: k(f'v_mov_b32 v{g_}, v{T+5}')
            elif pc==1: k(f'v_add_u32 v{g_}, 2, v{T+5}')
            else:
                k(f'v_mov_b32 v{g_}, s28'); k(f'v_add_u32 v{g_}, 4, v{g_}')
            k(f'v_lshrrev_b32 v{T+8}, 1, v{g_}'); k(f'v_lshlrev_b32 v{T+8}, 8, v{T+8}')
            k(f'v_and_b32 v{T+9}, 1, v{g_}'); k(f'v_lshl_add_u32 v{T+8}, v{T+9}, 3, v{T+8}')
            k(f'v_add_u32 v{T+8}, v{T+8}, v{T+6}')
            if pc==2:
                k('s_mov_b32 exec_hi, 0')
            k(f'ds_write_b64 v{T+8}, v[{PK+2*pc}:{PK+2*pc+1}]')
            if pc==2: k('s_mov_b64 exec, -1')
        k('s_waitcnt lgkmcnt(0)')
        k('s_barrier')
        k(f'v_mov_b32 v{T+8}, {L_BADF}'); k(f'ds_read_b32 v{T+9}, v{T+8}')
        k('s_waitcnt lgkmcnt(0)')
        k(f'v_readfirstlane_b32 s28, v{T+9}')
        k('s_lshl_b32 s29, s49, 1'); k('s_cmp_gt_u32 s28, s29')
        k(f's_cbranch_scc1 {FALLBACK}')
        k(f's_mul_i32 s31, s12, {OF_D}'); k(f's_add_u32 s31, s31, {OFB[0]}')
        k('s_mul_i32 s28, s6, 81920'); k('s_add_u32 s31, s31, s28'); k('s_mul_i32 s28, s7, 2560'); k('s_add_u32 s31, s31, s28')
        for rnd in range(2):
            lab=k.lab('oc')
            if rnd==1:
                k('s_cmp_ge_u32 s3, 2'); k(f's_cbranch_scc1 {lab}')
            k('s_lshl_b32 s28, s3, 6'); k(f's_add_u32 s28, s28, {512*rnd}')
            k(f'v_add_u32 v{T+5}, s28, v{V_LANE}')
            k(f'v_lshlrev_b32 v{T+6}, 4, v{T+5}'); k(f'v_add_u32 v{T+6}, {L_OIMG}, v{T+6}')
            k(f'ds_read_b128 v[{PK}:{PK+3}], v{T+6}')
            k(f'v_mul_u32_u24 v{T+7}, 410, v{T+5}'); k(f'v_lshrrev_b32 v{T+7}, 16, v{T+7}')
            k(f'v_mul_u32_u24 v{T+8}, 160, v{T+7}'); k(f'v_sub_u32 v{T+8}, v{T+5}, v{T+8}')
            k(f'v_mul_u32_u24 v{T+7}, 20480, v{T+7}'); k(f'v_lshl_add_u32 v{T+7}, v{T+8}, 4, v{T+7}')
            k('s_waitcnt lgkmcnt(0)')
            k(f'buffer_store_dwordx4 v[{PK}:{PK+3}], v{T+7}, s[{WS}:{WS+3}], s31 offen sc1')
            k(lab+':')
        self.mark("a.epi")
        self.publish(2)
        self.mark("a.pub")
        AFTER=k.lab('after'); k(f's_branch {AFTER}')
        k(FALLBACK+':')
        k('s_barrier')
        def kvptr():
            k(f's_mul_i32 s32, s12, {KV_D}'); k(f's_add_u32 s32, s32, {KVB[0]}')
            k('s_mul_i32 s28, s5, 3584'); k('s_add_u32 s32, s32, s28')
        def mq1(q,c): k(f'v_mfma_f32_32x32x16_bf16 v[{S[q]}:{S[q]+15}], v[{K1(0)}:{K1(0)+3}], v[{Q1[q]}:{Q1[q]+3}], {c}')
        def mq2(q): k(f'v_mfma_f32_32x32x8_bf16 v[{S[q]}:{S[q]+15}], v[{K2(0)}:{K2(0)+1}], v[{Q2[q]}:{Q2[q]+1}], v[{S[q]}:{S[q]+15}]')
        MX=[T+10,T+11]
        for q in range(2): k(f'v_mov_b32 v{MX[q]}, 0xff800000')
        kvptr(); k('s_mov_b32 s34, 0')
        l1=k.lab('fb1'); k(l1+':')
        ld(0); k('s_waitcnt vmcnt(0)')
        for q in range(2):
            mq1(q,'0'); mq2(q)
        for q in range(2):
            for i in range(0,16,2): k(f'v_max3_f32 v{MX[q]}, v{S[q]+i}, v{S[q]+i+1}, v{MX[q]}')
        k('s_add_u32 s34, s34, 1'); k('s_cmp_lt_u32 s34, 32'); k(f's_cbranch_scc1 {l1}')
        for q in range(2):
            k(f'v_mov_b32 v{T+12}, v{MX[q]}'); k(f'v_permlane32_swap_b32 v{MX[q]}, v{T+12}'); k(f'v_max_f32 v{MX[q]}, v{MX[q]}, v{T+12}')
        k('s_lshl_b32 s28, s3, 9'); k(f's_add_u32 s28, s28, {L_COMB}')
        k(f'v_lshl_add_u32 v{T+12}, v{V_LANE}, 3, s28')
        k(f'ds_write_b64 v{T+12}, v[{MX[0]}:{MX[1]}]')
        k('s_waitcnt lgkmcnt(0)'); k('s_barrier')
        k('s_xor_b32 s28, s3, 4'); k('s_lshl_b32 s28, s28, 9'); k(f's_add_u32 s28, s28, {L_COMB}')
        k(f'v_lshl_add_u32 v{T+12}, v{V_LANE}, 3, s28')
        k(f'ds_read_b64 v[{T+14}:{T+15}], v{T+12}')
        k('s_waitcnt lgkmcnt(0)'); k('s_barrier')
        for q in range(2): k(f'v_max_f32 v{MX[q]}, v{MX[q]}, v{T+14+q}')
        for q in range(2):
            for i in range(16): k(f'v_sub_f32 v{NEG[q]+i}, 0, v{MX[q]}')
            for i in range(16): k(f'v_mov_b32 v{O[q]+i}, 0')
        kvptr(); k('s_mov_b32 s34, 0')
        l2=k.lab('fb2'); k(l2+':')
        ld(0); k('s_waitcnt vmcnt(0)')
        for q in range(2):
            mq1(q,f'v[{NEG[q]}:{NEG[q]+15}]'); mq2(q)
            for i in range(16): k(f'v_exp_f32 v{S[q]+i}, v{S[q]+i}')
            for p in range(8): k(f'v_cvt_pk_bf16_f32 v{P+p}, v{S[q]+2*p}, v{S[q]+2*p+1}')
            for hf in range(2):
                k(f'v_mfma_f32_32x32x16_bf16 v[{O[q]}:{O[q]+15}], v[{V(0)+4*hf}:{V(0)+4*hf+3}], v[{P+4*hf}:{P+4*hf+3}], v[{O[q]}:{O[q]+15}]')
        k('s_add_u32 s34, s34, 1'); k('s_cmp_lt_u32 s34, 32'); k(f's_cbranch_scc1 {l2}')
        if self.F1R:
            k('s_min_u32 s42, s40, 53'); k('s_mul_i32 s42, s42, 40960'); k(f's_add_u32 s42, s42, {W1F}')
            for e in range(16): self.f1_wload(e)
            k('s_waitcnt vmcnt(0)')
        k('s_mov_b32 s49, 1')
        k(f's_branch {COMBINE}')
        k(AFTER+':')

    def phase_oproj(self):
        k=self.k
        XF,WR,ACC,T=24,64,96,144
        self.wait(2)
        self.mark("o.wait")
        self.x_loads(XF,10,OFB[0],OF_D,20,10)
        vA,vC=T,T+1
        k('s_mul_i32 s28, s5, 10240'); k(f'v_add_u32 v{vA}, s28, v{V_L16}'); k(f'v_add_u32 v{vC}, 61440, v{vA}')
        fr=[]
        for i in range(10):
            for ft in range(5):
                va,imm=(vA,ft*20480+i*1024) if ft<3 else (vC,(ft-3)*20480+i*1024)
                def rd(r,va=va,imm=imm): k(f'ds_read_b128 v[{r}:{r+3}], v{va} offset:{imm}')
                def mf(r,i=i,ft=ft):
                    c=ACC+4*ft; cs='0' if i==0 else f'v[{c}:{c+3}]'
                    k(f'v_mfma_f32_16x16x32_bf16 v[{c}:{c+3}], v[{r}:{r+3}], v[{XF+4*i}:{XF+4*i+3}], {cs}')
                fr.append(dict(read=rd,mfma=mf,vm=(9-i) if ft==0 else None))
        self.frag_gemm(fr,WR,7,1)
        self.mark("o.mm")
        self.reduce_pairs(ACC,T+9,L_ORED)
        k('s_waitcnt lgkmcnt(0)')
        k('s_barrier')
        self.reduce_pairs_finish(ACC,T+9,XF)
        self.mark("o.red")
        self.epilogue_res(ACC,T,X1B[0],X1_D,stats=True,bias=None,final=False)
        self.mark("o.epi")
        self.publish(3)
        self.mark("o.pub")
        self.fc1_early_w()

    def epilogue_res(self,ACC,T,dst,dst_d,stats,bias,final,vout=None):
        k=self.k
        self.tile_offsets(44)
        if dst_d:
            k(f's_mul_i32 s28, s12, {dst_d}'); k(f's_add_u32 s28, s28, {dst}')
        else: k(f's_mov_b32 s28, {dst}')
        for j in range(3): k(f's_add_u32 s{44+j}, s{44+j}, s28')
        k('s_mov_b32 s47, 0xffff0000')
        VD=T+15
        k(f'v_lshrrev_b32 v{VD}, 1, v{V_G}'); k(f'v_lshlrev_b32 v{VD}, 8, v{VD}'); k(f'v_lshl_add_u32 v{VD}, v{V_F}, 4, v{VD}')
        k(f'v_and_b32 v{T+14}, 1, v{V_G}'); k(f'v_lshl_add_u32 v{VD}, v{T+14}, 3, v{VD}')
        S0,S1=T+10,T+11
        if stats:
            k(f'v_mov_b32 v{S0}, 0'); k(f'v_mov_b32 v{S1}, 0'); k(f'v_mov_b32 v{T+12}, 0x3f803f80')
        skip=k.lab('e3')
        for j in range(3):
            if j==2:
                k('s_cmp_eq_u32 s5, 1'); k(f's_cbranch_scc1 {skip}')
            r=ACC+4*j
            k(f'v_lshlrev_b32 v{T}, 16, v{V_RES+2*j}'); k(f'v_and_b32 v{T+1}, s47, v{V_RES+2*j}')
            k(f'v_lshlrev_b32 v{T+2}, 16, v{V_RES+2*j+1}'); k(f'v_and_b32 v{T+3}, s47, v{V_RES+2*j+1}')
            for i in range(4): k(f'v_add_f32 v{r+i}, v{r+i}, v{T+i}')
            if bias is not None:
                k(f'v_lshlrev_b32 v{T}, 16, v{bias+2*j}'); k(f'v_and_b32 v{T+1}, s47, v{bias+2*j}')
                k(f'v_lshlrev_b32 v{T+2}, 16, v{bias+2*j+1}'); k(f'v_and_b32 v{T+3}, s47, v{bias+2*j+1}')
                for i in range(4): k(f'v_add_f32 v{r+i}, v{r+i}, v{T+i}')
            k(f'v_cvt_pk_bf16_f32 v{V_RES+2*j}, v{r}, v{r+1}'); k(f'v_cvt_pk_bf16_f32 v{V_RES+2*j+1}, v{r+2}, v{r+3}')
            if final:
                fl=k.lab('fin'); fd=k.lab('fd')
                k('s_cmp_eq_u32 s12, 1'); k(f's_cbranch_scc1 {fl}')
                k(f'buffer_store_dwordx2 v[{V_RES+2*j}:{V_RES+2*j+1}], v{VD}, s[{WS}:{WS+3}], s{44+j} offen sc1')
                k(f's_branch {fd}')
                k(fl+':')
                k(f'buffer_store_dwordx2 v[{V_RES+2*j}:{V_RES+2*j+1}], v{vout}, s[{SC}:{SC+3}], 0 offen offset:{j*32}')
                k(fd+':')
            else:
                k(f'buffer_store_dwordx2 v[{V_RES+2*j}:{V_RES+2*j+1}], v{VD}, s[{WS}:{WS+3}], s{44+j} offen sc1')
            if stats:
                k(f'v_dot2c_f32_bf16 v{S0}, v{V_RES+2*j}, v{T+12}'); k(f'v_dot2c_f32_bf16 v{S1}, v{V_RES+2*j}, v{V_RES+2*j}')
                k(f'v_dot2c_f32_bf16 v{S0}, v{V_RES+2*j+1}, v{T+12}'); k(f'v_dot2c_f32_bf16 v{S1}, v{V_RES+2*j+1}, v{V_RES+2*j+1}')
        k(skip+':')
        if stats:
            sum_g(k,S0,T+13); sum_g(k,S1,T+13)
            k(f'v_lshlrev_b32 v{T+13}, 3, v{V_F}')
            k('s_lshl_b32 s28, s6, 4'); k('s_lshl_b32 s29, s7, 1'); k('s_add_u32 s28, s28, s29'); k('s_add_u32 s28, s28, s5')
            k('s_lshl_b32 s28, s28, 9'); k('s_lshl_b32 s29, s4, 7'); k('s_add_u32 s28, s28, s29')
            k(f's_mul_i32 s29, s12, {ST_D}'); k('s_add_u32 s28, s28, s29'); k(f's_add_u32 s28, s28, {STB[0]}')
            k(f'v_cmp_eq_u32 vcc, 0, v{V_G}'); k(f'v_mov_b32 v{T+14}, {OOB}'); k(f'v_cndmask_b32 v{T+13}, v{T+14}, v{T+13}, vcc')
            k(f'buffer_store_dwordx2 v[{S0}:{S1}], v{T+13}, s[{WS}:{WS+3}], s28 offen sc1')

    def w2_chunk_dma(self, e_expr_sgpr):
        k=self.k; e=e_expr_sgpr
        def head():
            k(f's_lshr_b32 s53, s{e}, 1'); k(f's_and_b32 s54, s{e}, 1')
            k('s_mul_i32 s54, s54, 27'); k('s_add_u32 s54, s54, s53')
            k('s_mul_i32 s55, s7, 270'); k('s_add_u32 s54, s54, s55'); k('s_lshl_b32 s54, s54, 10'); k(f's_add_u32 s54, s54, {W2F}')
            k(f's_mul_i32 s55, s{e}, 5120')
        def one(j):
            if j==0: head()
            k('s_mov_b32 m0, s55')
            k(f'buffer_load_dwordx4 v{V_L16}, s[{WS}:{WS+3}], s54 offen sc1 lds')
            k(f's_add_u32 s54, s54, {54*1024}'); k('s_add_u32 s55, s55, 1024')
        return [lambda j=j: one(j) for j in range(5)]

    W2R=128
    def w2r_setup(self):
        k=self.k
        k('s_lshr_b32 s28, s3, 1'); k('s_and_b32 s29, s3, 1')
        k('s_mul_i32 s29, s29, 27'); k('s_add_u32 s29, s29, s28')
        k('s_mul_i32 s28, s7, 270'); k('s_add_u32 s29, s29, s28')
        for g,first in enumerate((15,19,23)):
            k(f's_add_u32 s{58+g}, s29, {first}'); k(f's_lshl_b32 s{58+g}, s{58+g}, 10'); k(f's_add_u32 s{58+g}, s{58+g}, {W2F}')
    def w2r_load(self,n):
        k=self.k; g,ft=n//5,n%5; r=self.W2R+4*n
        k(f's_add_u32 s61, s{58+g}, {ft*54*1024}')
        k(f'buffer_load_dwordx4 v[{r}:{r+3}], v{V_L16}, s[{WS}:{WS+3}], s61 offen sc1')
    def fc1_early_w(self):
        k=self.k
        lab=k.lab('ew')
        k('s_cmp_ge_u32 s3, s41'); k(f's_cbranch_scc1 {lab}')
        k('s_mul_i32 s42, s40, 40960'); k(f's_add_u32 s42, s42, {W1F+self.F1R*1024}')
        for s in range(self.F1R,self.F1R+self.F1A): self.f1_wload(s)
        k(lab+':')
    F1A=int(os.environ.get('F1A','12'))
    F1R=16 if os.environ.get('F1R','0')=='1' else 0
    def f1_wreg(self,s):
        if not self.F1R: return 96+4*s
        return 192+4*s if s<16 else 96+4*(s-16)
    def f1_wload(self,s):
        k=self.k; r=self.f1_wreg(s)
        k(f'buffer_load_dwordx4 v[{r}:{r+3}], v{V_L16}, s[{WS}:{WS+3}], s42 offen offset:{(s%4)*1024} sc1')
        if s%4==3: k('s_add_u32 s42, s42, 4096')

    def gelu_group_scalar(self,A,a,MR,CSV,B1F,TT,KC,vaddr,s_h):
        o=[]; PK=TT+4
        R=[A+4*a+i for i in range(4)]; t=[TT+i for i in range(4)]
        for i in range(4): o.append(f'v_fma_f32 v{t[i]}, -v{MR}, v{CSV+4*a+i}, v{B1F+4*a+i}')
        for i in range(4): o.append(f'v_fma_f32 v{R[i]}, v{R[i]}, v{MR+1}, v{t[i]}')
        for i in range(4): o.append(f'v_mul_f32 v{t[i]}, v{R[i]}, v{R[i]}')
        for i in range(4): o.append(f'v_fma_f32 v{t[i]}, v{t[i]}, v{KC+2}, v{KC}')
        for i in range(4): o.append(f'v_mul_f32 v{t[i]}, v{t[i]}, v{R[i]}')
        for i in range(4): o.append(f'v_exp_f32 v{t[i]}, v{t[i]}')
        for i in range(4): o.append(f'v_add_f32 v{t[i]}, 1.0, v{t[i]}')
        for i in range(4): o.append(f'v_rcp_f32 v{t[i]}, v{t[i]}')
        for i in range(4): o.append(f'v_mul_f32 v{R[i]}, v{R[i]}, v{t[i]}')
        o+= [f'v_cvt_pk_bf16_f32 v{PK}, v{R[0]}, v{R[1]}', f'v_cvt_pk_bf16_f32 v{PK+1}, v{R[2]}, v{R[3]}']
        o.append(f'buffer_store_dwordx2 v[{PK}:{PK+1}], v{vaddr}, s[{WS}:{WS+3}], s{s_h} offen offset:{a*256} sc1')
        return o
    def gelu_group(self,A,a,MR,CSV,B1F,TT,KC,vaddr,s_h):
        P=lambda r: f'v[{r}:{r+1}]'
        KC0,KC1,KONE=KC,KC+2,KC+4
        r0,r1=A+4*a,A+4*a+2
        t=[TT,TT+2]; PK=TT+4
        o=[]
        for e in range(2): o.append(f'v_pk_fma_f32 {P(t[e])}, {P(MR)}, {P(CSV+4*a+2*e)}, {P(B1F+4*a+2*e)} op_sel_hi:[0,1,1] neg_lo:[1,0,0] neg_hi:[1,0,0]')
        for e,r in enumerate((r0,r1)): o.append(f'v_pk_fma_f32 {P(r)}, {P(r)}, {P(MR)}, {P(t[e])} op_sel:[0,1,0] op_sel_hi:[1,1,1]')
        for e,r in enumerate((r0,r1)): o.append(f'v_pk_mul_f32 {P(t[e])}, {P(r)}, {P(r)}')
        for e,r in enumerate((r0,r1)): o.append(f'v_pk_fma_f32 {P(t[e])}, {P(t[e])}, {P(KC1)}, {P(KC0)}')
        for e,r in enumerate((r0,r1)): o.append(f'v_pk_mul_f32 {P(t[e])}, {P(t[e])}, {P(r)}')
        for e in range(2): o+= [f'v_exp_f32 v{t[e]}, v{t[e]}', f'v_exp_f32 v{t[e]+1}, v{t[e]+1}']
        for e in range(2): o.append(f'v_pk_add_f32 {P(t[e])}, {P(t[e])}, {P(KONE)}')
        for e in range(2): o+= [f'v_rcp_f32 v{t[e]}, v{t[e]}', f'v_rcp_f32 v{t[e]+1}, v{t[e]+1}']
        for e,r in enumerate((r0,r1)): o.append(f'v_pk_mul_f32 {P(r)}, {P(r)}, {P(t[e])}')
        o+= [f'v_cvt_pk_bf16_f32 v{PK}, v{r0}, v{r0+1}', f'v_cvt_pk_bf16_f32 v{PK+1}, v{r1}, v{r1+1}']
        o.append(f'buffer_store_dwordx2 v[{PK}:{PK+1}], v{vaddr}, s[{WS}:{WS+3}], s{s_h} offen offset:{a*256} sc1')
        return o

    def phase_fc1(self):
        k=self.k
        A0,A1,XF,CS,ONE,vX,WB=24,40,56,88,89,90,96
        self.wait(3)
        self.mark("f1.wait")
        k('s_mul_i32 s28, s6, 81920'); k(f's_mul_i32 s29, s12, {X1_D}'); k('s_add_u32 s28, s28, s29'); k(f's_add_u32 s28, s28, {X1B[0]}')
        k('s_mul_i32 s29, s3, 10240'); k('s_add_u32 s28, s28, s29')
        for i in range(10):
            k(f's_add_u32 m0, s29, {i*1024}')
            k(f'buffer_load_dwordx4 v{V_L16}, s[{WS}:{WS+3}], s28 offen sc1 lds')
            k('s_add_u32 s28, s28, 1024')
        act=k.lab('act'); fin=k.lab('fin')
        k('s_cmp_lt_u32 s3, s41'); k(f's_cbranch_scc1 {act}')
        n7=k.lab('n7'); n7w=k.lab('n7w')
        U=96
        k('s_cmp_lg_u32 s3, 7'); k(f's_cbranch_scc1 {n7w}')
        k(f'v_lshlrev_b32 v{U}, 3, v{V_LANE}')
        k('s_lshl_b32 s28, s6, 13'); k(f's_mul_i32 s29, s12, {ST_D}'); k('s_add_u32 s28, s28, s29'); k(f's_add_u32 s28, s28, {STB[0]}')
        for q in range(16):
            k(f'buffer_load_dwordx2 v[{A0+2*q}:{A0+2*q+1}], v{U}, s[{WS}:{WS+3}], s28 offen offset:{(q%8)*512} sc1')
            if q==7: k('s_add_u32 s28, s28, 4096')
        k('s_waitcnt vmcnt(0)')
        for q in range(1,16):
            k(f'v_add_f32 v{A0}, v{A0}, v{A0+2*q}'); k(f'v_add_f32 v{A0+1}, v{A0+1}, v{A0+2*q+1}')
        m_,r_,v_=U+2,U+3,A0+1
        k(f'v_mul_f32 v{m_}, {hex(f2u(1/640))}, v{A0}'); k(f'v_mul_f32 v{v_}, {hex(f2u(1/640))}, v{v_}')
        k(f'v_fma_f32 v{v_}, -v{m_}, v{m_}, v{v_}'); k(f'v_max_f32 v{v_}, 0, v{v_}')
        k(f'v_add_f32 v{A0+2}, {hex(f2u(1e-5))}, v{v_}'); k(f'v_rsq_f32 v{r_}, v{A0+2}')
        k(f'v_mul_f32 v{A0+3}, v{r_}, v{r_}'); k(f'v_mul_f32 v{A0+3}, v{A0+3}, v{v_}')
        k(f'v_add_f32 v{A0+3}, {hex(f2u(1e-5))}, v{A0+3}'); k(f'v_rsq_f32 v{A0+3}, v{A0+3}')
        k(f'v_mul_f32 v{r_}, v{r_}, v{A0+3}'); k(f'v_mul_f32 v{m_}, v{m_}, v{r_}')
        k(f'v_add_u32 v{U}, {L_TOKST}, v{U}')
        k(f'ds_write_b64 v{U}, v[{m_}:{r_}]')
        k(n7w+':')
        k('s_waitcnt vmcnt(0) lgkmcnt(0)')
        k('s_barrier')
        k('s_cmp_lg_u32 s3, 7'); k(f's_cbranch_scc1 {n7}')
        W2E=os.environ.get('W2E','1')=='1'
        if W2E:
            for e in range(16,30):
                k(f's_mov_b32 s52, {e}')
                for f in self.w2_chunk_dma(52): f()
        k(n7+':')
        k('s_barrier')
        k('s_cmp_lg_u32 s3, 7'); k(f's_cbranch_scc1 {fin}')
        for e in list(range(0,8))+[15]+([] if W2E else list(range(16,30))):
            k(f's_mov_b32 s52, {e}')
            for f in self.w2_chunk_dma(52): f()
        k('s_cmp_eq_u32 s41, 7'); k(f's_cbranch_scc1 {fin}')
        k('s_mov_b32 s52, 14')
        for f in self.w2_chunk_dma(52): f()
        k(f's_branch {fin}')
        k(act+':')
        srd(k,SA,P_B1,1728*2)
        B1R=72
        k('s_lshl_b32 s28, s40, 6')
        k(f'v_lshl_add_u32 v{vX}, v{V_H}, 3, s28')
        for a in range(4): k(f'buffer_load_dwordx2 v[{B1R+2*a}:{B1R+2*a+1}], v{vX}, s[{SA}:{SA+3}], 0 offen offset:{a*16}')
        k('s_waitcnt vmcnt(0)')
        k('s_barrier')
        self.mark("f1.x")
        k(f'v_lshrrev_b32 v{vX}, 4, v{V_L31}'); k(f'v_mul_u32_u24 v{vX}, 20480, v{vX}')
        k(f'v_lshl_add_u32 v{vX}, v{V_H}, 8, v{vX}'); k(f'v_lshl_add_u32 v{vX}, v{V_F}, 4, v{vX}')
        k(f'v_mov_b32 v{ONE}, 0x3f803f80'); k(f'v_mov_b32 v{CS}, 0')
        k('s_cmp_lg_u32 s12, 0'); k('s_cselect_b64 vcc, -1, 0')
        def rd(tt,s):
            ks,u=s//2,s%2
            x=XF+(s%4)*4
            k(f'ds_read_b128 v[{x}:{x+3}], v{vX} offset:{tt*40960+ks*1024+u*512}')
        F1A=self.F1A+self.F1R
        def pass1(with_cs):
            rd(0,0); rd(0,1); rd(0,2)
            for s in range(40):
                if s+F1A<40: self.f1_wload(s+F1A)
                if s+3<40: rd(0,s+3)
                w=f's_waitcnt lgkmcnt({min(3,39-s)})'
                if s>=F1A: w+=f' vmcnt({min(F1A,39-s)})'
                k(w)
                wr=self.f1_wreg(s); x=XF+(s%4)*4
                c0='0' if s==0 else f'v[{A0}:{A0+15}]'
                k(f'v_mfma_f32_32x32x16_bf16 v[{A0}:{A0+15}], v[{wr}:{wr+3}], v[{x}:{x+3}], {c0}')
                if with_cs:
                    for r in range(4): k(f'v_dot2c_f32_bf16 v{CS}, v{wr+r}, v{ONE}')
        p1=k.lab('p1'); p1d=k.lab('p1d')
        k(f's_cbranch_vccnz {p1}')
        pass1(True)
        k(f's_branch {p1d}')
        k(p1+':')
        pass1(False)
        k(p1d+':')
        ncs=k.lab('ncs')
        k(f's_cbranch_vccnz {ncs}')
        k(f'v_mov_b32 v91, v{CS}'); k(f'v_permlane32_swap_b32 v{CS}, v91'); k(f'v_add_f32 v{CS}, v{CS}, v91')
        k('s_lshl_b32 s28, s3, 7'); k(f's_add_u32 s28, s28, {L_CS1}')
        k(f'v_lshl_add_u32 v91, v{V_L31}, 2, s28')
        k(f'ds_write_b32 v91, v{CS}')
        k(ncs+':')
        k('s_waitcnt lgkmcnt(0)')
        self.mark("f1.p1")
        CSV,B1F,MR0,MR1,TT,KC,VA=((192,208) if self.F1R else (96,112))+(80,82,16,84,91)
        side=[]
        def S(x): side.append(x)
        S(f's_lshl_b32 s28, s3, 7'); S(f's_add_u32 s28, s28, {L_CS1}'); S(f'v_lshl_add_u32 v{VA}, v{V_H}, 4, s28')
        pre_reads=[f'ds_read_b128 v[{CSV+4*a}:{CSV+4*a+3}], v{VA} offset:{a*32}' for a in range(4)]
        c0=-2*0.7978845608028654*1.4426950408889634; c1=c0*0.044715
        for i in range(2):
            k(f'v_mov_b32 v{KC+i}, {hex(f2u(c0))}'); k(f'v_mov_b32 v{KC+2+i}, {hex(f2u(c1))}')
        KONE_=92
        k(f'v_mov_b32 v{KONE_}, 1.0'); k(f'v_mov_b32 v{KONE_+1}, 1.0')
        k(f'v_lshlrev_b32 v94, 3, v{V_L31}'); k(f'v_add_u32 v94, {L_TOKST}, v94')
        k(f'ds_read_b64 v[{MR0}:{MR0+1}], v94'); k(f'ds_read_b64 v[{MR1}:{MR1+1}], v94 offset:256')
        k(f'v_lshrrev_b32 v95, 4, v{V_L31}'); k(f's_mov_b32 s28, {54*1024}'); k('v_mul_lo_u32 v95, v95, s28')
        k(f'v_lshl_add_u32 v95, v{V_H}, 3, v95'); k(f'v_lshl_add_u32 v95, v{V_F}, 4, v95')
        for tt in range(2):
            k('s_lshl_b32 s28, s6, 2'); k(f's_add_u32 s28, s28, {2*tt}'); k('s_mul_i32 s28, s28, 54'); k('s_add_u32 s28, s28, s40')
            k('s_lshl_b32 s28, s28, 10'); k(f's_mul_i32 s29, s12, {HF_D}'); k('s_add_u32 s28, s28, s29'); k(f's_add_u32 s{56+tt}, s28, {HFB[0]}')
        k('s_mov_b32 s47, 0xffff0000')
        k('s_waitcnt lgkmcnt(0)')
        rd(1,0); rd(1,1); rd(1,2)
        def gg(A,a,MR,sh):
            o=self.gelu_group(A,a,MR,CSV,B1F,TT,KC,95,sh)
            return [x.replace(f'v[{KC+4}:{KC+5}]',f'v[{KONE_}:{KONE_+1}]') for x in o]
        work=[]
        for a in range(4): work+=self.gelu_group_scalar(A0,a,MR0,CSV,B1F,TT,KC,95,56)
        nper=-(-len(work)//27)
        wi=0; lds_extra=0
        for s in range(40):
            if s+3<40: rd(1,s+3)
            extra=0
            if s==8:
                k(f's_lshl_b32 s28, s3, 7'); k(f's_add_u32 s28, s28, {L_CS1}'); k(f'v_lshl_add_u32 v{VA}, v{V_H}, 4, s28')
                for x in pre_reads: k(x)
                extra=4
            k(f's_waitcnt lgkmcnt({min(3,39-s)+extra})')
            wr=self.f1_wreg(s); x=XF+(s%4)*4
            c1s='0' if s==0 else f'v[{A1}:{A1+15}]'
            k(f'v_mfma_f32_32x32x16_bf16 v[{A1}:{A1+15}], v[{wr}:{wr+3}], v[{x}:{x+3}], {c1s}')
            if s in (9,10):
                for a in ((0,1) if s==9 else (2,3)):
                    k(f'v_lshlrev_b32 v{B1F+4*a}, 16, v{B1R+2*a}'); k(f'v_and_b32 v{B1F+4*a+1}, s47, v{B1R+2*a}')
                    k(f'v_lshlrev_b32 v{B1F+4*a+2}, 16, v{B1R+2*a+1}'); k(f'v_and_b32 v{B1F+4*a+3}, s47, v{B1R+2*a+1}')
            if s>=12:
                for _ in range(nper):
                    if wi<len(work): k(work[wi]); wi+=1
        while wi<len(work): k(work[wi]); wi+=1
        k('s_barrier')
        self.mark("f1.mm")
        k('s_add_u32 s52, s3, 8')
        dm=self.w2_chunk_dma(52)
        for a in range(4):
            for x in gg(A1,a,MR1,57): k(x)
            if dm: dm.pop(0)()
            if a==3:
                while dm: dm.pop(0)()
        k(fin+':')
        self.mark("f1.epi")
        self.publish(4)
        self.mark("f1.pub")

    def phase_fc2(self):
        k=self.k
        HX,WR,ACC=24,132,192
        vA,vB,vC,BI,VO=236,237,238,240,246
        srd(k,SB,P_B2,1280)
        srd(k,SC,P_OUT,2048*1280)
        k('s_mul_i32 s28, s7, 160'); k('s_mul_i32 s29, s5, 96'); k('s_add_u32 s28, s28, s29')
        k(f'v_lshl_add_u32 v{vA}, v{V_G}, 3, s28')
        for j in range(3): k(f'buffer_load_dwordx2 v[{BI+2*j}:{BI+2*j+1}], v{vA}, s[{SB}:{SB+3}], 0 offen offset:{j*32}')
        k('s_movk_i32 s29, 1280'); k(f'v_mul_lo_u32 v{VO}, v{V_TOK}, s29'); k(f'v_add_u32 v{VO}, v{VO}, v{vA}')
        self.wait(4)
        self.mark("f2.wait")
        XP=os.environ.get('XP','')
        if 'noh' not in XP: self.x_loads(HX,27,HFB[0],HF_D,54,27)
        if 'hwait' in XP:
            k('s_waitcnt vmcnt(0)'); self.mark("f2.h")
        k('s_mul_i32 s28, s5, 5120')
        k(f'v_add_u32 v{vA}, s28, v{V_L16}'); k(f'v_add_u32 v{vB}, 61440, v{vA}'); k(f'v_add_u32 v{vC}, 122880, v{vA}')
        NS=15
        slot=lambda i: i if i<NS else i-NS
        log=[('h',i) for i in range(27)]
        def refill(g):
            first=15+4*g
            k('s_lshr_b32 s28, s3, 1'); k('s_and_b32 s29, s3, 1')
            k(f's_add_u32 s30, s28, {first}')
            k('s_mul_i32 s32, s29, 27'); k('s_add_u32 s32, s32, s30')
            k('s_mul_i32 s33, s7, 270'); k('s_add_u32 s32, s32, s33'); k('s_lshl_b32 s32, s32, 10'); k(f's_add_u32 s32, s32, {W2F}')
            k(f's_add_u32 s30, s28, {4*g}')
            k('s_mul_i32 s33, s30, 10240'); k('s_mul_i32 s29, s29, 5120'); k('s_add_u32 s33, s33, s29')
            for j in range(5):
                k('s_mov_b32 m0, s33')
                k(f'buffer_load_dwordx4 v{V_L16}, s[{WS}:{WS+3}], s32 offen sc1 lds')
                if j<4:
                    k(f's_add_u32 s32, s32, {54*1024}'); k('s_add_u32 s33, s33, 1024')
                log.append(('rf',g))
        def younger(idx): return len(log)-1-idx
        DEPTH=int(os.environ.get('F2D','10'))
        bar={7:(None,0),11:(None,1),15:(0,2),19:(1,None),23:(2,None)}
        fr=[]
        for i in range(27):
            for ft in range(5):
                j=slot(i); va,imm=((vA,vB,vC)[j//6],(j%6)*10240)
                def rd(r,va=va,imm=imm,ft=ft): k(f'ds_read_b128 v[{r}:{r+3}], v{va} offset:{imm+ft*1024}')
                def mf(r,i=i,ft=ft):
                    c=ACC+4*ft; cs='0' if i==0 else f'v[{c}:{c+3}]'
                    k(f'v_mfma_f32_16x16x32_bf16 v[{c}:{c+3}], v[{r}:{r+3}], v[{HX+4*i}:{HX+4*i+3}], {cs}')
                d=dict(read=rd,mfma=mf)
                if ft==0:
                    d['vm']=(lambda i=i: younger(log.index(('h',i))))
                    if i in bar:
                        def pre(i=i):
                            need,fill=bar[i]
                            if need is not None:
                                tags=[n for n,x in enumerate(log) if x==('rf',need)]
                                k(f's_waitcnt vmcnt({younger(tags[-1])})')
                            k('s_barrier')
                            if fill is not None: refill(fill)
                        d['pre']=pre
                fr.append(d)
        self.frag_gemm(fr,WR,DEPTH,1)
        self.mark("f2.mm")
        k('s_barrier')
        T=48
        self.reduce_pairs(ACC,T+9,L_RED)
        k('s_waitcnt lgkmcnt(0)')
        k('s_barrier')
        self.reduce_pairs_finish(ACC,T+9,24)
        self.epilogue_res(ACC,T,X2B,0,stats=False,bias=BI,final=True,vout=VO)
        self.mark("f2.epi")

    def build(self):
        k=self.k
        self.prologue()
        self.mark0("p.start")
        if 'nox0' not in os.environ.get('XP',''): self.x0_loads(24,144)
        if 'cs.x' in os.environ.get('MARKS',''):
            k('s_waitcnt vmcnt(0)'); self.mark0("cs.x")
        kvw=k.lab('kvw'); pj=k.lab('pj')
        k('s_lshr_b32 s28, s7, 1')
        k('s_cmp_eq_u32 s28, s4'); k(f's_cbranch_scc1 {kvw}')
        k('s_mov_b32 s43, s3')
        k('s_cmp_gt_u32 s3, s28'); k('s_cselect_b32 s29, 1, 0'); k('s_sub_u32 s43, s43, s29')
        k('s_add_u32 s28, s28, 4'); k('s_cmp_gt_u32 s3, s28'); k('s_cselect_b32 s29, 1, 0'); k('s_sub_u32 s43, s43, s29')
        srd(k,SA,P_WQ,640*1280)
        k('s_waitcnt vmcnt(8)')
        for t in range(4):
            lab=k.lab('wq')
            k(f's_add_u32 s28, s43, {6*t}')
            if t==3:
                k('s_cmp_ge_u32 s28, 20'); k(f's_cbranch_scc1 {lab}')
            k('s_mul_i32 s29, s28, 40960'); k('s_mul_i32 s30, s28, 5120')
            self.dma_chunk160(SA,29,30)
            k(lab+':')
        k(f's_branch {pj}')
        k(kvw+':')
        k('s_mov_b32 s43, 7')
        k('s_and_b32 s28, s7, 1'); k('s_cmp_eq_u32 s28, 0')
        k(f's_cselect_b32 s30, s{P_WK}, s{P_WV}'); k(f's_cselect_b32 s31, s{P_WK+1}, s{P_WV+1}')
        srd(k,SB,30,25600)
        k('s_mul_i32 s29, s5, 12288')
        for t in range(13):
            k(f's_add_u32 m0, s29, {L_WKV}')
            k(f'buffer_load_dwordx4 v{V_L16}, s[{SB}:{SB+3}], s29 offen lds')
            k('s_add_u32 s29, s29, 1024')
        k(pj+':')
        if 'tlb' in os.environ.get('XP',''): self.tlb_warm()
        self.mark0("p.issued")
        LOOP='mega_layer'
        k(LOOP+':')
        self.phase_qkv(); self.stopat('qkv')
        self.phase_attn(); self.stopat('attn')
        self.phase_oproj(); self.stopat('oproj')
        self.phase_fc1(); self.stopat('fc1')
        self.phase_fc2(); self.stopat('fc2')
        k('s_cmp_eq_u32 s12, 1'); k(f's_cbranch_scc1 {self.END}')
        self.publish(5)
        self.dma_next_qkv()
        self.wait(5)
        k('s_mov_b32 s12, 1'); k('s_add_u32 s13, s13, 5')
        k(f's_branch {LOOP}')
        k(self.END+':')
        rz=self.k.lab('rz')
        k('s_cmp_lg_u32 s2, 0'); k(f's_cbranch_scc1 {rz}')
        k('s_cmp_lg_u32 s3, 5'); k(f's_cbranch_scc1 {rz}')
        k('s_load_dwordx2 s[58:59], s[0:1], 88')
        k('s_waitcnt lgkmcnt(0)')
        srd(k,60,58,256)
        k('v_mov_b32 v200, 0'); k('v_mov_b32 v201, 0')
        k('s_mov_b64 exec, 1')
        k('buffer_store_dword v201, v200, s[60:63], 0 offen sc1')
        k('s_mov_b64 exec, -1')
        k(rz+':')
        if self.stamps:
            k('s_waitcnt vmcnt(0) lgkmcnt(0)')
            k(f'{self.clk} s[100:101]'); k('s_waitcnt lgkmcnt(0)')
            k('s_lshl_b32 s28, s2, 3'); k('s_add_u32 s28, s28, s3'); k('s_lshl_b32 s28, s28, 6'); k(f's_add_u32 s28, s28, {STAMP_OFF}')
            k('s_add_u32 s30, s86, s28'); k('s_addc_u32 s31, s87, 0')
            k('v_mov_b32 v24, 0')
            if os.environ.get('DBGOUT'):
                dz=k.lab('dz')
                k('s_cmp_lg_u32 s2, 0'); k(f's_cbranch_scc1 {dz}'); k('s_cmp_lg_u32 s3, 0'); k(f's_cbranch_scc1 {dz}')
                k('s_load_dwordx2 s[58:59], s[0:1], 88'); k('s_waitcnt lgkmcnt(0)')
                for i in list(range(11))+[12]:
                    k(f's_sub_u32 s28, s{88+i}, s99'); k('v_mov_b32 v25, s28')
                    k(f'global_store_dword v24, v25, s[58:59] offset:{4*(i+1)}')
                k(dz+':')
            else:
              for i in range(13):
                k(f'v_mov_b32 v25, s{88+i}')
                k(f'global_store_dword v24, v25, s[30:31] offset:{4*i}')
        k('mega_kernel_exit:')
        k('mega_code_end:')
        k('s_endpgm')
        return k

def gen_init():
    k=Kern('init_kernel',vgpr=8,sgpr=24)
    k('s_cmp_ge_u32 s2, 1'); k('s_cbranch_scc1 init_kernel_end')
    k('s_load_dwordx2 s[4:5], s[0:1], 96')
    k('s_waitcnt lgkmcnt(0)')
    srd(k,8,4,4096,FLG)
    k('v_lshlrev_b32 v1, 4, v0')
    for i in range(4): k(f'v_mov_b32 v{2+i}, 0')
    k('buffer_store_dwordx4 v[2:5], v1, s[8:11], 0 offen')
    k('init_kernel_end:')
    k('s_endpgm')
    return k
```

```python
import os, struct
from asmlib import *
from mlayout import *

def f2u(x): return struct.unpack('<I',struct.pack('<f',x))[0]
P_X,P_WQ,P_WK,P_WV,P_WO,P_W1,P_B1,P_W2,P_B2,P_OUT=64,66,68,70,72,76,78,80,82,84
WS=8
SA,SB,SC=16,20,24
OOB='0x40000000'
V_LANE,V_F,V_G,V_L16,V_L31,V_H,V_TR,V_RES,V_TOK,V_D=1,2,3,4,5,6,7,8,14,16
L_WKV=102400
L_RED=128000
L_KVR=157056
L_STAT=152576
L_CS=163136
L_NONCE=163776
L_BADF=163780
L_PAIRF=163784
L_KVCS=155008
NONCE=FLG+2048+64
L_QL=0
L_COMB=112640
L_OIMG=137216
L_ORED=102400
L_TOKST=153600
L_CS1=154112
LDS_TOTAL=160*1024
STAMP_OFF=100<<20
POLLW=7

def srd(k,d,p,size,off=0):
    k(f's_add_u32 s{d}, s{p}, {off}' if off else f's_mov_b32 s{d}, s{p}')
    k(f's_addc_u32 s{d+1}, s{p+1}, 0' if off else f's_mov_b32 s{d+1}, s{p+1}')
    k(f's_and_b32 s{d+1}, s{d+1}, 0xffff')
    k(f's_mov_b32 s{d+2}, {size}')
    k(f's_mov_b32 s{d+3}, 0x20000')

def sum_g(k,x,tmp):
    k(f'v_mov_b32 v{tmp}, v{x}')
    k(f'v_permlane16_swap_b32 v{x}, v{tmp}')
    k(f'v_add_f32 v{x}, v{x}, v{tmp}')
    k(f'v_mov_b32 v{tmp}, v{x}')
    k(f'v_permlane32_swap_b32 v{x}, v{tmp}')
    k(f'v_add_f32 v{x}, v{x}, v{tmp}')

KNAME='interleave_layers__grouped_kv_mqa__mixer_channel_mlp__prompt_kernel'
class Mega:
    def __init__(self, stamps=False, stop=None):
        self.k=Kern(KNAME,vgpr=256,sgpr=102)
        self.stamps=stamps; self.stop=stop; self.END='mega_kernel_end'
        self.mark_layer=int(os.environ.get('MARKL','1'))
        self.clk='s_memrealtime' if os.environ.get('RT') else 's_memtime'
    def mark(self,name):
        if not self.stamps: return
        ms=os.environ.get('MARKS','').split(',')
        if name not in ms: return
        i=ms.index(name)
        k=self.k
        k(f'{self.clk} s[100:101]')
        k('s_waitcnt lgkmcnt(0)')
        k(f's_cmp_eq_u32 s12, {self.mark_layer}')
        k(f's_cselect_b32 s{88+i}, s100, s{88+i}')
    def mark0(self,name):
        if not self.stamps: return
        ms=os.environ.get('MARKS','').split(',')
        if name not in ms: return
        i=ms.index(name); k=self.k
        k(f'{self.clk} s[100:101]'); k('s_waitcnt lgkmcnt(0)'); k(f's_mov_b32 s{88+i}, s100')
    def stopat(self,name):
        if self.stop==name:
            k=self.k
            k(f's_cmp_eq_u32 s12, {int(os.environ.get("STOPL","0"))}')
            k(f's_cbranch_scc1 {self.END}')

    def publish(self,j):
        k=self.k
        k('s_waitcnt vmcnt(0)')
        k('s_barrier')
        lab=k.lab('pub')
        k('s_cmp_lg_u32 s3, 0')
        k(f's_cbranch_scc1 {lab}')
        k(f's_add_u32 s28, s13, {j}')
        k('v_mov_b32 v22, s28')
        k('s_lshl_b32 s29, s6, 6'); k('s_lshl_b32 s30, s7, 2'); k('s_add_u32 s29, s29, s30')
        k('v_mov_b32 v21, s29')
        k('s_mov_b64 exec, 1')
        k(f'buffer_store_dword v22, v21, s[{WS}:{WS+3}], 0 offen offset:{FLG} sc1')
        k('s_mov_b64 exec, -1')
        k(lab+':')
    def wait(self,j,allwg=False,others=None):
        k=self.k
        lab=k.lab('w'); loop=k.lab('poll'); done=k.lab('pd')
        wide = allwg or others is not None
        k(f's_cmp_lg_u32 s3, {POLLW}')
        k(f's_cbranch_scc1 {lab}')
        k(f's_add_u32 s28, s13, {j}')
        if wide:
            k(f'v_lshrrev_b32 v22, 1, v{V_LANE}'); k('v_lshlrev_b32 v21, 6, v22')
            k(f'v_and_b32 v16, 1, v{V_LANE}'); k('v_lshl_add_u32 v21, v16, 4, v21')
            if others is not None:
                k(f's_add_u32 s29, s13, {others}')
                k('v_cmp_eq_u32 vcc, s6, v22')
                k('v_mov_b32 v23, s29'); k('v_mov_b32 v22, s28')
                k('v_cndmask_b32 v22, v23, v22, vcc')
            else: k('v_mov_b32 v22, s28')
        else:
            k(f'v_and_b32 v21, 7, v{V_LANE}'); k('v_lshlrev_b32 v21, 2, v21')
            k('s_lshl_b32 s29, s6, 6'); k('v_add_u32 v21, s29, v21')
            k('v_mov_b32 v22, s28')
        k('s_mov_b32 s30, 0')
        k(loop+':')
        if wide:
            k(f'buffer_load_dwordx4 v[16:19], v21, s[{WS}:{WS+3}], 0 offen offset:{FLG} sc1')
            k('s_waitcnt vmcnt(0)')
            for r in (16,17,18,19): k(f'v_sub_u32 v{r}, v{r}, v22')
            k('v_max_u32 v16, v16, v17'); k('v_max_u32 v18, v18, v19'); k('v_max_u32 v16, v16, v18')
        else:
            k(f'buffer_load_dword v16, v21, s[{WS}:{WS+3}], 0 offen offset:{FLG} sc1')
            k('s_waitcnt vmcnt(0)')
            k('v_sub_u32 v16, v16, v22')
        k('v_cmp_le_u32 vcc, 32, v16')
        k(f's_cbranch_vccz {done}')
        if os.environ.get('SLP'): k(f"s_sleep {os.environ['SLP']}")
        k('s_add_u32 s30, s30, 1')
        k(f's_cmp_lt_u32 s30, 0x40000')
        k(f's_cbranch_scc1 {loop}')
        k(done+':')
        k(lab+':')
        k('s_barrier')

    def dma_chunk160(self, s_srd, s_soff, s_m0):
        k=self.k
        for j in range(5):
            k(f's_mov_b32 m0, s{s_m0}')
            k(f'buffer_load_dwordx4 v{V_D+j}, s[{s_srd}:{s_srd+3}], s{s_soff} offen lds')
            if j<4: k(f's_add_u32 s{s_m0}, s{s_m0}, 1024')
    def dma_w160(self,ptr,skip_poller=False):
        k=self.k
        srd(k,SA,ptr,640*1280)
        nw=7 if skip_poller else 8
        end=k.lab('dw')
        if skip_poller:
            k(f's_cmp_eq_u32 s3, {POLLW}'); k(f's_cbranch_scc1 {end}')
        for t in range(3):
            lab=k.lab('wq')
            k(f's_add_u32 s28, s3, {nw*t}')
            if nw*t+nw>20:
                k('s_cmp_ge_u32 s28, 20'); k(f's_cbranch_scc1 {lab}')
            k('s_mul_i32 s29, s28, 40960'); k('s_mul_i32 s30, s28, 5120')
            self.dma_chunk160(SA,29,30)
            k(lab+':')
        k(end+':')
    def dma_wkv(self):
        k=self.k
        k('s_and_b32 s28, s7, 1'); k('s_cmp_eq_u32 s28, 0')
        k(f's_cselect_b32 s30, s{P_WK}, s{P_WV}'); k(f's_cselect_b32 s31, s{P_WK+1}, s{P_WV+1}')
        srd(k,SB,30,25600)
        for t in range(4):
            lab=k.lab('wk')
            k(f's_add_u32 s28, s3, {8*t}')
            if t==3:
                k('s_cmp_ge_u32 s28, 25'); k(f's_cbranch_scc1 {lab}')
            k('s_lshl_b32 s29, s28, 10'); k(f's_add_u32 s30, s29, {L_WKV}')
            k('s_mov_b32 m0, s30')
            k(f'buffer_load_dwordx4 v{V_L16}, s[{SB}:{SB+3}], s29 offen lds')
            k(lab+':')
    def l2_prefetch(self, s_srd, total, nwaves, wave0, vtmp, base_off=0):
        k=self.k
        per=(total//32+127)//128*128
        ninst=(per+8191)//8192
        pw=(ninst+nwaves-1)//nwaves
        k('s_and_b32 s28, s6, 3'); k('s_lshl_b32 s28, s28, 3'); k('s_add_u32 s28, s28, s7')
        k(f's_mul_i32 s28, s28, {per}')
        k(f's_sub_u32 s29, s3, {wave0}'); k(f's_mul_i32 s29, s29, {pw*8192}'); k('s_add_u32 s28, s28, s29')
        if base_off: k(f's_add_u32 s28, s28, {base_off}')
        k(f'v_lshlrev_b32 v{vtmp}, 7, v{V_LANE}')
        for n in range(pw):
            k(f'buffer_load_dword v{vtmp+1}, v{vtmp}, s[{s_srd}:{s_srd+3}], s28 offen')
            k('s_add_u32 s28, s28, 8192')
        return pw

    def prologue(self):
        k=self.k
        k('s_cmp_ge_u32 s2, 256')
        k(f's_cbranch_scc1 mega_kernel_exit')
        k('s_load_dwordx16 s[64:79], s[0:1], 0')
        k('s_load_dwordx4 s[80:83], s[0:1], 64')
        k('s_load_dwordx2 s[84:85], s[0:1], 80')
        k('s_load_dwordx2 s[86:87], s[0:1], 96')
        k('s_load_dwordx2 s[58:59], s[0:1], 88')
        if self.stamps: k(f'{self.clk} s[100:101]')
        k('v_lshrrev_b32 v24, 6, v0')
        k(f'v_and_b32 v{V_LANE}, 63, v0')
        k('v_readfirstlane_b32 s3, v24')
        k('s_and_b32 s4, s3, 3'); k('s_lshr_b32 s5, s3, 2')
        k('s_and_b32 s6, s2, 7'); k('s_lshl_b32 s6, s6, 2'); k('s_lshr_b32 s7, s2, 3'); k('s_and_b32 s7, s7, 3'); k('s_add_u32 s6, s6, s7'); k('s_lshr_b32 s7, s2, 5')
        k(f'v_and_b32 v{V_F}, 15, v{V_LANE}')
        k(f'v_lshrrev_b32 v{V_G}, 4, v{V_LANE}')
        k(f'v_lshlrev_b32 v{V_L16}, 4, v{V_LANE}')
        k(f'v_and_b32 v{V_L31}, 31, v{V_LANE}')
        k(f'v_lshrrev_b32 v{V_H}, 5, v{V_LANE}')
        k(f'v_lshrrev_b32 v24, 2, v{V_F}')
        k(f'v_and_b32 v25, 1, v{V_G}'); k('v_lshl_add_u32 v24, v25, 2, v24')
        k(f'v_lshrrev_b32 v25, 1, v{V_G}'); k('v_lshl_add_u32 v24, v25, 4, v24')
        k('v_mul_u32_u24 v24, 160, v24')
        k(f'v_and_b32 v25, 3, v{V_LANE}')
        k(f'v_lshl_add_u32 v{V_TR}, v25, 3, v24')
        k('s_lshl_b32 s28, s6, 6'); k('s_lshl_b32 s29, s4, 4'); k('s_add_u32 s28, s28, s29')
        k(f'v_add_u32 v{V_TOK}, s28, v{V_F}')
        k('s_mul_i32 s29, s7, 160')
        for j in range(5):
            k(f'v_add_u32 v24, {64*j}, v{V_LANE}')
            k('v_mul_u32_u24 v25, 6554, v24'); k('v_lshrrev_b32 v25, 16, v25')
            k('v_mul_u32_u24 v26, 10, v25'); k('v_sub_u32 v26, v24, v26')
            k('v_and_b32 v27, 0x13, v25')
            k('v_bfe_u32 v28, v25, 3, 1'); k('v_lshl_add_u32 v27, v28, 2, v27')
            k('v_bfe_u32 v28, v25, 2, 1'); k('v_lshl_add_u32 v27, v28, 3, v27')
            k('v_mul_u32_u24 v27, 1280, v27')
            k('v_lshl_add_u32 v27, v26, 4, v27')
            k(f'v_add_u32 v{V_D+j}, s29, v27')
        k('s_waitcnt lgkmcnt(0)')
        if self.stamps:
            k('s_mov_b32 s99, s100')
            for i in range(11): k(f's_mov_b32 s{88+i}, 0')
        srd(k,WS,86,WS_USED)
        k('s_mov_b32 s12, 0'); k('s_mov_b32 s13, 0')
        srd(k,60,58,256)
        nn=k.lab('nn')
        k('s_cmp_lg_u32 s2, 0'); k(f's_cbranch_scc1 {nn}')
        k('s_cmp_lg_u32 s3, 5'); k(f's_cbranch_scc1 {nn}')
        k('s_memrealtime s[28:29]')
        k('s_waitcnt lgkmcnt(0)')
        k('s_lshl_b32 s28, s28, 6'); k('s_or_b32 s28, s28, 1')
        k('v_mov_b32 v201, s28'); k('v_mov_b32 v200, 0')
        k('s_mov_b64 exec, 1')
        k('buffer_store_dword v201, v200, s[60:63], 0 offen sc1')
        k('s_mov_b64 exec, -1')
        k(nn+':')
        k('s_mul_i32 s40, s7, 7'); k('s_sub_u32 s28, s7, 6'); k('s_max_i32 s28, s28, 0'); k('s_sub_u32 s40, s40, s28')
        k('s_cmp_ge_u32 s7, 6'); k('s_cselect_b32 s41, 6, 7')
        k('s_add_u32 s40, s40, s3')

    def x0_loads(self,XF,T):
        k=self.k
        srd(k,SC,P_X,2048*1280)
        k('s_movk_i32 s28, 1280')
        k(f'v_mul_lo_u32 v{T}, v{V_TOK}, s28')
        k(f'v_lshl_add_u32 v{T+1}, v{V_G}, 4, v{T}')
        k('s_mul_i32 s29, s5, 640')
        k(f'v_add_u32 v{T+1}, s29, v{T+1}')
        if 'xlin' in os.environ.get('XP',''):
            k('s_lshl_b32 s28, s6, 2'); k('s_add_u32 s28, s28, s4'); k('s_mul_i32 s28, s28, 20'); k('s_mul_i32 s29, s5, 10'); k('s_add_u32 s28, s28, s29'); k('s_lshl_b32 s28, s28, 10')
            for i in range(10):
                k(f'buffer_load_dwordx4 v[{XF+4*i}:{XF+4*i+3}], v{V_L16}, s[{SC}:{SC+3}], s28 offen offset:{(i%4)*1024}')
                if i%4==3: k('s_add_u32 s28, s28, 4096')
        else:
          for i in range(10):
            k(f'buffer_load_dwordx4 v[{XF+4*i}:{XF+4*i+3}], v{T+1}, s[{SC}:{SC+3}], 0 offen offset:{i*64}')
        k(f'v_lshl_add_u32 v{T+1}, v{V_G}, 3, v{T}')
        k('s_mul_i32 s29, s7, 160'); k('s_mul_i32 s30, s5, 96'); k('s_add_u32 s29, s29, s30')
        k(f'v_add_u32 v{T+1}, s29, v{T+1}')
        for j in range(3):
            k(f'buffer_load_dwordx2 v[{V_RES+2*j}:{V_RES+2*j+1}], v{T+1}, s[{SC}:{SC+3}], 0 offen offset:{j*32}')

    def conv_issue(self, stage, kinds):
        k=self.k
        done=k.lab('cvd'); go=k.lab('cvg')
        total=sum(x[5] for x in kinds)
        k('s_mov_b32 s50, 0')
        k('s_lshl_b32 s28, s43, 8'); k('s_add_u32 s28, s28, s2')
        k(f's_cmp_ge_u32 s28, {total}'); k(f's_cbranch_scc1 {done}')
        labs=[k.lab('cvk') for _ in kinds]
        acc=0
        for idx,x in enumerate(kinds[:-1]):
            acc+=x[5]
            k(f's_cmp_lt_u32 s28, {acc}'); k(f's_cbranch_scc1 {labs[idx]}')
        k(f's_branch {labs[-1]}')
        acc=0
        for idx,(name,ptr,rows,stride,ncg,njobs,dst,layout) in enumerate(kinds):
            k(labs[idx]+':')
            if acc: k(f's_sub_u32 s28, s28, {acc}')
            magic=-(-65536//ncg)
            assert all((j*magic)>>16==j//ncg for j in range(njobs))
            k(f's_mul_i32 s29, s28, {magic}'); k('s_lshr_b32 s29, s29, 16')
            k(f's_mul_i32 s30, s29, {ncg}'); k('s_sub_u32 s30, s28, s30')
            srd(k,SA,ptr,rows*stride)
            k(f's_movk_i32 s31, {stride}')
            k(f's_mov_b32 s50, {1 if layout=="w1" else 2}')
            if layout=='w1':
                k('s_mul_i32 s51, s30, 80'); k('s_lshl_b32 s32, s29, 1'); k('s_add_u32 s51, s51, s32')
                k('s_mov_b32 s57, 0')
            else:
                KS=rows//32
                k(f's_mul_i32 s51, s30, {4*KS}'); k('s_add_u32 s51, s51, s29')
                k(f's_mov_b32 s57, {KS*1024}')
            k('s_lshl_b32 s51, s51, 10'); k(f's_add_u32 s51, s51, {dst}')
            k(f's_branch {go}')
            acc+=njobs
        k(go+':')
        k(f'v_lshrrev_b32 v200, 3, v{V_LANE}'); k('v_mul_lo_u32 v200, v200, s31')
        k(f'v_and_b32 v201, 7, v{V_LANE}'); k('v_lshl_add_u32 v200, v201, 4, v200')
        k('s_lshl_b32 s32, s29, 5'); k('s_mul_i32 s32, s32, s31'); k('s_lshl_b32 s33, s30, 7'); k('s_add_u32 s32, s32, s33')
        k('s_lshl_b32 s33, s31, 3')
        k('s_lshl_b32 s34, s43, 12'); k(f's_add_u32 s34, s34, {stage}')
        for i in range(4):
            k('s_mov_b32 m0, s34')
            k(f'buffer_load_dwordx4 v200, s[{SA}:{SA+3}], s32 offen lds')
            if i<3:
                k('s_add_u32 s32, s32, s33'); k('s_add_u32 s34, s34, 1024')
        k(done+':')
    def conv_finish(self,T,stage):
        k=self.k
        done=k.lab('cfd'); w2=k.lab('cf2')
        k('s_cmp_eq_u32 s50, 0'); k(f's_cbranch_scc1 {done}')
        k('s_lshl_b32 s34, s43, 12'); k(f's_add_u32 s34, s34, {stage}')
        k(f'v_lshrrev_b32 v{T}, 2, v{V_F}')
        k(f'v_and_b32 v{T+1}, 3, v{V_LANE}')
        k('s_cmp_eq_u32 s50, 2'); k(f's_cbranch_scc1 {w2}')
        k(f'v_lshl_add_u32 v{T}, v{V_H}, 3, v{T}'); k(f'v_lshlrev_b32 v{T}, 7, v{T}')
        k(f'v_and_b32 v{T+2}, 1, v{V_G}'); k(f'v_lshl_add_u32 v{T}, v{T+2}, 5, v{T}')
        k(f'v_lshl_add_u32 v{T}, v{T+1}, 3, v{T}'); k(f'v_add_u32 v{T}, s34, v{T}')
        fr=[(p,u) for p in range(2) for u in range(2)]
        for n,(p,u) in enumerate(fr):
            b=T+4+4*n
            k(f'ds_read_b64_tr_b16 v[{b}:{b+1}], v{T} offset:{u*2048+p*64}')
            k(f'ds_read_b64_tr_b16 v[{b+2}:{b+3}], v{T} offset:{u*2048+p*64+512}')
        k('s_waitcnt lgkmcnt(0)')
        for n,(p,u) in enumerate(fr):
            b=T+4+4*n
            k(f's_add_u32 s32, s51, {(p*40+u)*1024}')
            k(f'buffer_store_dwordx4 v[{b}:{b+3}], v{V_L16}, s[{WS}:{WS+3}], s32 offen sc1')
        k(f's_branch {done}')
        k(w2+':')
        k(f'v_lshl_add_u32 v{T}, v{V_G}, 3, v{T}'); k(f'v_lshlrev_b32 v{T}, 7, v{T}')
        k(f'v_lshl_add_u32 v{T}, v{T+1}, 3, v{T}'); k(f'v_add_u32 v{T}, s34, v{T}')
        for n in range(4):
            b=T+4+4*n
            k(f'ds_read_b64_tr_b16 v[{b}:{b+1}], v{T} offset:{n*32}')
            k(f'ds_read_b64_tr_b16 v[{b+2}:{b+3}], v{T} offset:{n*32+512}')
        k('s_waitcnt lgkmcnt(0)')
        k('s_mov_b32 s32, s51')
        for n in range(4):
            b=T+4+4*n
            k(f'buffer_store_dwordx4 v[{b}:{b+3}], v{V_L16}, s[{WS}:{WS+3}], s32 offen sc1')
            if n<3: k('s_add_u32 s32, s32, s57')
        k(done+':')
    CONV_A=[('wo',P_WO,640,1280,10,200,WOF,'a16'),('wq',P_WQ,640,1280,10,200,WQF,'a16')]
    CONV_B=[('w1',P_W1,640,3456,27,540,W1F,'w1'),('w2',P_W2,1728,1280,10,540,W2F,'a16')]

    def dma_lin_slice(self, src_const, waves=8):
        k=self.k
        k(f's_mul_i32 s28, s7, 102400'); k(f's_add_u32 s28, s28, {src_const}')
        k('s_lshl_b32 s29, s3, 10'); k('s_add_u32 s28, s28, s29')
        for n in range(13):
            lab=None
            if n==12:
                lab=k.lab('dl'); k('s_cmp_ge_u32 s3, 4'); k(f's_cbranch_scc1 {lab}')
            k('s_mov_b32 m0, s29')
            k(f'buffer_load_dwordx4 v{V_L16}, s[{WS}:{WS+3}], s28 offen sc1 lds')
            if n<12:
                k('s_add_u32 s28, s28, 8192'); k('s_add_u32 s29, s29, 8192')
            if lab: k(lab+':')

    def dma_next_qkv(self):
        k=self.k
        end=k.lab('dn')
        k(f's_cmp_eq_u32 s3, {POLLW}'); k(f's_cbranch_scc1 {end}')
        k('s_and_b32 s28, s7, 1'); k('s_cmp_eq_u32 s28, 0')
        k(f's_cselect_b32 s30, s{P_WK}, s{P_WV}'); k(f's_cselect_b32 s31, s{P_WK+1}, s{P_WV+1}')
        srd(k,SB,30,25600)
        for t in range(4):
            lab=k.lab('wk')
            k(f's_add_u32 s28, s3, {7*t}')
            if t==3:
                k('s_cmp_ge_u32 s28, 25'); k(f's_cbranch_scc1 {lab}')
            k('s_lshl_b32 s29, s28, 10'); k(f's_add_u32 s30, s29, {L_WKV}')
            k('s_mov_b32 m0, s30')
            k(f'buffer_load_dwordx4 v{V_L16}, s[{SB}:{SB+3}], s29 offen lds')
            k(lab+':')
        k(f's_mul_i32 s28, s7, 102400'); k(f's_add_u32 s28, s28, {WQF}')
        k('s_lshl_b32 s29, s3, 10'); k('s_add_u32 s28, s28, s29')
        for n in range(15):
            lab=None
            if n==14:
                lab=k.lab('dl'); k('s_cmp_ge_u32 s3, 2'); k(f's_cbranch_scc1 {lab}')
            k('s_mov_b32 m0, s29')
            k(f'buffer_load_dwordx4 v{V_L16}, s[{WS}:{WS+3}], s28 offen sc1 lds')
            if n<14:
                k('s_add_u32 s28, s28, 7168'); k('s_add_u32 s29, s29, 7168')
            if lab: k(lab+':')
        k(end+':')
    def tlb_warm(self):
        k=self.k
        lab=k.lab('tw')
        k('s_cmp_lg_u32 s3, 6'); k(f's_cbranch_scc1 {lab}')
        k(f'v_lshlrev_b32 v200, 19, v{V_LANE}')
        k(f'buffer_load_dword v201, v200, s[{WS}:{WS+3}], 0 offen')
        for ptr,size in ((P_W1,640*3456),(P_W2,1728*1280),(P_OUT,2048*1280),(P_WO,640*1280),(P_B1,3456),(P_B2,1280)):
            srd(k,SA,ptr,size)
            k(f'buffer_load_dword v201, v200, s[{SA}:{SA+3}], 0 offen')
        if 'cpf' in os.environ.get('XP',''):
            k('s_getpc_b64 s[56:57]')
            k('mega_code_here:')
            k('s_mov_b32 s28, mega_code_end-mega_code_here-4')
            k(f'v_lshlrev_b32 v200, 7, v{V_LANE}')
            for n in range(8):
                k('v_min_u32 v202, s28, v200')
                k('global_load_dword v201, v202, s[56:57]')
                k('v_add_u32 v200, 8192, v200')
        k(lab+':')

    def frag_gemm(self, frags, WR, depth, nread, after=None):
        k=self.k
        n=len(frags); slots=depth+1
        reg=lambda i: WR+(i%slots)*4
        def issue(i):
            if frags[i].get('pre'): frags[i]['pre']()
            frags[i]['read'](reg(i))
        for i in range(min(depth,n)): issue(i)
        for i in range(n):
            if i+depth<n: issue(i+depth)
            rem=min(depth,n-1-i)
            w=f's_waitcnt lgkmcnt({rem*nread})'
            vm=frags[i].get('vm')
            if vm is not None:
                v=vm() if callable(vm) else vm
                if v is not None: w+=f' vmcnt({v})'
            k(w)
            frags[i]['mfma'](reg(i))
            if after and i in after: after[i]()

    def diag_stats(self,SX,SQ,S0,S1,tmp):
        k=self.k
        k(f'v_and_b32 v{tmp}, 3, v{V_LANE}')
        k(f'v_mov_b32 v{S1}, v{SQ}')
        for r in (1,2,3):
            k(f'v_cmp_eq_u32 vcc, {r}, v{tmp}'); k(f'v_cndmask_b32 v{S1}, v{S1}, v{SQ+r}, vcc')
        k(f'v_mov_b32 v{S0}, v{SX}')
    def diag_mask_on(self):
        k=self.k
        k('s_mov_b32 exec_lo, 0x00f0000f'); k('s_mov_b32 exec_hi, 0xf0000f00')
    def reduce_pairs(self, ACC, tmp, base):
        k=self.k
        k('s_mul_i32 s28, s4, 5120')
        k(f's_add_u32 s28, s28, {base}')
        k(f'v_add_u32 v{tmp}, s28, v{V_L16}')
        l1=k.lab('r1'); l2=k.lab('r2')
        k('s_cmp_eq_u32 s5, 1'); k(f's_cbranch_scc1 {l1}')
        for ft in (3,4): k(f'ds_write_b128 v{tmp}, v[{ACC+4*ft}:{ACC+4*ft+3}] offset:{ft*1024}')
        k(f's_branch {l2}')
        k(l1+':')
        for ft in (0,1,2): k(f'ds_write_b128 v{tmp}, v[{ACC+4*ft}:{ACC+4*ft+3}] offset:{ft*1024}')
        for i in range(8): k(f'v_mov_b32 v{ACC+i}, v{ACC+12+i}')
        k(l2+':')
    def reduce_pairs_finish(self, ACC, tmp, T):
        k=self.k
        k('s_mul_i32 s29, s5, 3072')
        k(f'v_add_u32 v{tmp}, s29, v{tmp}')
        for j in range(3): k(f'ds_read_b128 v[{T+4*j}:{T+4*j+3}], v{tmp} offset:{j*1024}')
        k('s_waitcnt lgkmcnt(0)')
        for i in range(12): k(f'v_add_f32 v{ACC+i}, v{ACC+i}, v{T+i}')

    def tile_offsets(self, sbase):
        k=self.k
        k('s_lshl_b32 s28, s6, 2'); k('s_add_u32 s28, s28, s4'); k('s_mul_i32 s28, s28, 20480')
        k('s_mul_i32 s29, s7, 5'); k('s_mul_i32 s30, s5, 3'); k('s_add_u32 s29, s29, s30')
        for j in range(3):
            k(f's_add_u32 s30, s29, {j}'); k('s_lshl_b32 s30, s30, 9')
            k(f's_add_u32 s{sbase+j}, s30, s28')

    def x_loads(self,XF,n,base_const,layer_stride,KS,per_half):
        k=self.k
        k('s_lshl_b32 s28, s6, 2'); k('s_add_u32 s28, s28, s4'); k(f's_mul_i32 s28, s28, {KS}'); k(f's_mul_i32 s29, s5, {per_half}'); k('s_add_u32 s28, s28, s29')
        k('s_lshl_b32 s28, s28, 10')
        if layer_stride:
            k(f's_mul_i32 s29, s12, {layer_stride}'); k('s_add_u32 s28, s28, s29')
        k(f's_add_u32 s28, s28, {base_const}')
        for i in range(n):
            k(f'buffer_load_dwordx4 v[{XF+4*i}:{XF+4*i+3}], v{V_L16}, s[{WS}:{WS+3}], s28 offen offset:{(i%4)*1024} sc1')
            if i%4==3: k('s_add_u32 s28, s28, 4096')

    def kv_flag(self,T):
        k=self.k
        nkf=k.lab('nkf')
        k('s_lshr_b32 s28, s7, 1'); k('s_cmp_lg_u32 s28, s4'); k(f's_cbranch_scc1 {nkf}')
        k('s_waitcnt vmcnt(0)')
        k('s_add_u32 s28, s13, 1'); k(f'v_mov_b32 v{T+5}, s28')
        k('s_lshl_b32 s29, s6, 6'); k('s_lshl_b32 s30, s7, 3'); k('s_add_u32 s29, s29, s30'); k('s_lshl_b32 s30, s5, 2'); k('s_add_u32 s29, s29, s30')
        k(f's_add_u32 s29, s29, {KVFLG}')
        k(f'v_mov_b32 v{T+6}, s29')
        k('s_mov_b64 exec, 1')
        k(f'buffer_store_dword v{T+5}, v{T+6}, s[{WS}:{WS+3}], 0 offen sc1')
        k('s_mov_b64 exec, -1')
        k(nkf+':')
    def kv_first(self,XF,WR,KVA,KVC,ONES,SX,SQ,T):
        k=self.k
        nokv=k.lab('nokv')
        S0,S1=T+2,T+3
        k('s_lshr_b32 s28, s7, 1'); k('s_cmp_lg_u32 s28, s4'); k(f's_cbranch_scc1 {nokv}')
        k(f'v_lshrrev_b32 v{T+4}, 2, v{V_F}'); k(f'v_lshl_add_u32 v{T+4}, v{V_G}, 3, v{T+4}'); k(f'v_mul_u32_u24 v{T+4}, 40, v{T+4}')
        k(f'v_and_b32 v{T+5}, 3, v{V_LANE}'); k(f'v_lshl_add_u32 v{T+4}, v{T+5}, 3, v{T+4}')
        k('s_mul_i32 s28, s5, 12800'); k(f's_add_u32 s28, s28, {L_WKV}'); k(f'v_add_u32 v{T+4}, s28, v{T+4}')
        kvd=k.lab('kvd')
        vl={(v,c):k.lab('kvv') for v in (0,1) for c in (0,1)}
        k('s_and_b32 s28, s7, 1'); k('s_lshl_b32 s28, s28, 1'); k('s_add_u32 s28, s28, s12')
        for idx,(v,c) in enumerate(((0,1),(0,0),(1,1))):
            k(f's_cmp_eq_u32 s28, {idx}'); k(f's_cbranch_scc1 {vl[(v,c)]}')
        k(f's_branch {vl[(1,0)]}')
        for (variant,with_cs),lab in vl.items():
            k(lab+':')
            fr=[]
            for i in range(10):
                for u in range(2):
                    def rd(r,i=i,u=u):
                        k(f'ds_read_b64_tr_b16 v[{r}:{r+1}], v{T+4} offset:{i*1280+u*32}')
                        k(f'ds_read_b64_tr_b16 v[{r+2}:{r+3}], v{T+4} offset:{i*1280+160+u*32}')
                    def mf(r,i=i,u=u,variant=variant,with_cs=with_cs):
                        c=KVA+4*u; cc=KVC+4*u
                        cs='0' if i==0 else f'v[{c}:{c+3}]'; cs2='0' if i==0 else f'v[{cc}:{cc+3}]'
                        X=f'v[{XF+4*i}:{XF+4*i+3}]'; W=f'v[{r}:{r+3}]'; O_=f'v[{ONES}:{ONES+3}]'
                        if variant==0:
                            k(f'v_mfma_f32_16x16x32_bf16 v[{c}:{c+3}], {W}, {X}, {cs}')
                            if with_cs: k(f'v_mfma_f32_16x16x32_bf16 v[{cc}:{cc+3}], {W}, {O_}, {cs2}')
                        else:
                            k(f'v_mfma_f32_16x16x32_bf16 v[{c}:{c+3}], {X}, {W}, {cs}')
                            if with_cs: k(f'v_mfma_f32_16x16x32_bf16 v[{cc}:{cc+3}], {O_}, {W}, {cs2}')
                        if u==0:
                            a0='0' if i==0 else f'v[{SX}:{SX+3}]'
                            k(f'v_mfma_f32_16x16x32_bf16 v[{SX}:{SX+3}], {O_}, {X}, {a0}')
                        else:
                            a0='0' if i==0 else f'v[{SQ}:{SQ+3}]'
                            k(f'v_mfma_f32_16x16x32_bf16 v[{SQ}:{SQ+3}], {X}, {X}, {a0}')
                    fr.append(dict(read=rd,mfma=mf,vm=((9-i) if (u==0 and not with_cs) else None)))
            self.frag_gemm(fr,WR,7,2)
            k(f's_branch {kvd}')
        k(kvd+':')
        nz=k.lab('nz'); pl=k.lab('npl'); pd=k.lab('npd')
        k('s_cmp_lg_u32 s12, 0'); k(f's_cbranch_scc1 {nz}')
        k('s_mov_b32 s30, 0')
        k(pl+':')
        k('s_waitcnt vmcnt(0)')
        k('v_cmp_eq_u32 vcc, 0, v201')
        k(f's_cbranch_vccz {pd}')
        k('v_mov_b32 v200, 0')
        k('buffer_load_dword v201, v200, s[60:63], 0 offen sc1')
        k('s_add_u32 s30, s30, 1'); k('s_cmp_lt_u32 s30, 0x40000'); k(f's_cbranch_scc1 {pl}')
        k('s_waitcnt vmcnt(0)')
        k(pd+':')
        k('v_readfirstlane_b32 s13, v201')
        k(f'v_mov_b32 v200, {L_NONCE}')
        k('ds_write_b32 v200, v201')
        k(nz+':')
        self.diag_stats(SX,SQ,S0,S1,T+6)
        k('s_lshl_b32 s28, s4, 8'); k('s_lshl_b32 s29, s5, 7'); k('s_add_u32 s28, s28, s29'); k(f's_add_u32 s28, s28, {L_STAT}')
        k(f'v_lshl_add_u32 v{T+6}, v{V_F}, 3, s28')
        self.diag_mask_on()
        k(f'ds_write_b64 v{T+6}, v[{S0}:{S1}]')
        k('s_mov_b64 exec, -1')
        k(f'v_add_u32 v{T+5}, {L_KVR}, v{V_L16}')
        a=k.lab('ka'); b_=k.lab('kb')
        k('s_cmp_eq_u32 s5, 1'); k(f's_cbranch_scc1 {a}')
        k(f'ds_write_b128 v{T+5}, v[{KVA+4}:{KVA+7}] offset:2048'); k(f'ds_write_b128 v{T+5}, v[{KVC+4}:{KVC+7}] offset:3072')
        k(f's_branch {b_}')
        k(a+':')
        k(f'ds_write_b128 v{T+5}, v[{KVA}:{KVA+3}]'); k(f'ds_write_b128 v{T+5}, v[{KVC}:{KVC+3}] offset:1024')
        for i in range(4):
            k(f'v_mov_b32 v{KVA+i}, v{KVA+4+i}'); k(f'v_mov_b32 v{KVC+i}, v{KVC+4+i}')
        k(b_+':')
        k('s_add_u32 s28, s13, 1'); k(f'v_mov_b32 v{T+6}, s28')
        k('s_lshl_b32 s29, s5, 2'); k(f's_add_u32 s29, s29, {L_PAIRF}'); k(f'v_mov_b32 v{T+7}, s29')
        k('s_waitcnt lgkmcnt(0)')
        k(f'ds_write_b32 v{T+7}, v{T+6}')
        k(f'v_xor_b32 v{T+7}, 4, v{T+7}')
        sp=k.lab('pr'); spd=k.lab('prd')
        k('s_mov_b32 s30, 0')
        k(sp+':')
        k(f'ds_read_b32 v{T+8}, v{T+7}')
        k('s_waitcnt lgkmcnt(0)')
        k(f'v_cmp_eq_u32 vcc, s28, v{T+8}')
        k(f's_cbranch_vccnz {spd}')
        k('s_add_u32 s30, s30, 1'); k('s_cmp_lt_u32 s30, 0x100000'); k(f's_cbranch_scc1 {sp}')
        k(spd+':')
        KW=WR
        k('s_lshl_b32 s28, s5, 11'); k(f's_add_u32 s28, s28, {L_KVR}')
        k(f'v_add_u32 v{T+5}, s28, v{V_L16}')
        k(f'ds_read_b128 v[{KW}:{KW+3}], v{T+5}'); k(f'ds_read_b128 v[{KW+4}:{KW+7}], v{T+5} offset:1024')
        k('s_lshl_b32 s28, s4, 8'); k(f's_add_u32 s28, s28, {L_STAT}')
        k(f'v_lshl_add_u32 v{T+6}, v{V_F}, 3, s28')
        k(f'ds_read_b64 v[{T+10}:{T+11}], v{T+6}'); k(f'ds_read_b64 v[{T+12}:{T+13}], v{T+6} offset:128')
        k('s_lshl_b32 s28, s5, 10'); k(f's_add_u32 s28, s28, {L_KVCS}'); k(f'v_add_u32 v{T+7}, s28, v{V_L16}')
        c0=k.lab('c0'); c1=k.lab('c1')
        k('s_cmp_eq_u32 s12, 0'); k(f's_cbranch_scc1 {c0}')
        k(f'ds_read_b128 v[{KVC}:{KVC+3}], v{T+7}')
        k('s_waitcnt lgkmcnt(0)')
        k(f's_branch {c1}')
        k(c0+':')
        k('s_waitcnt lgkmcnt(0)')
        for i in range(4): k(f'v_add_f32 v{KVC+i}, v{KVC+i}, v{KW+4+i}')
        k(f'ds_write_b128 v{T+7}, v[{KVC}:{KVC+3}]')
        k(c1+':')
        for i in range(4): k(f'v_add_f32 v{KVA+i}, v{KVA+i}, v{KW+i}')
        MEAN,RSTD=T+14,T+15
        k(f'v_add_f32 v{T+10}, v{T+10}, v{T+12}'); k(f'v_add_f32 v{T+11}, v{T+11}, v{T+13}')
        k(f'v_mul_f32 v{MEAN}, {hex(f2u(1/640))}, v{T+10}'); k(f'v_mul_f32 v{T+11}, {hex(f2u(1/640))}, v{T+11}')
        k(f'v_fma_f32 v{T+11}, -v{MEAN}, v{MEAN}, v{T+11}'); k(f'v_max_f32 v{T+11}, 0, v{T+11}')
        k(f'v_add_f32 v{T+11}, {hex(f2u(1e-5))}, v{T+11}'); k(f'v_rsq_f32 v{RSTD}, v{T+11}')
        k(f'v_mul_f32 v{MEAN}, v{MEAN}, v{RSTD}')
        k('s_lshl_b32 s30, s6, 6'); k('s_lshl_b32 s31, s4, 4'); k('s_add_u32 s30, s30, s31')
        k('s_lshr_b32 s31, s30, 5'); k('s_mul_i32 s31, s31, 3584')
        k(f's_mul_i32 s32, s12, {KV_D}'); k('s_add_u32 s31, s31, s32'); k(f's_add_u32 s31, s31, {KVB[0]}')
        k('s_lshr_b32 s32, s30, 4'); k('s_and_b32 s32, s32, 1')
        isv2=k.lab('isv2')
        k('s_and_b32 s28, s7, 1'); k('s_cmp_eq_u32 s28, 1'); k(f's_cbranch_scc1 {isv2}')
        for i in range(4):
            k(f'v_mul_f32 v{KVA+i}, v{KVA+i}, v{RSTD}'); k(f'v_fma_f32 v{KVA+i}, -v{MEAN}, v{KVC+i}, v{KVA+i}')
        k('s_lshl_b32 s28, s5, 2'); k(f'v_add_u32 v{T+6}, s28, v{V_G}')
        k(f'v_cmp_eq_u32 vcc, 5, v{T+6}')
        for i in range(4): k(f'v_cndmask_b32 v{KVA+i}, v{KVA+i}, 0, vcc')
        k(f'v_cvt_pk_bf16_f32 v{KVA}, v{KVA}, v{KVA+1}'); k(f'v_cvt_pk_bf16_f32 v{KVA+1}, v{KVA+2}, v{KVA+3}')
        k('s_lshl_b32 s28, s32, 4'); k(f'v_add_u32 v{T+7}, s28, v{V_F}')
        k(f'v_lshrrev_b32 v{T+8}, 1, v{T+6}'); k(f'v_lshlrev_b32 v{T+8}, 9, v{T+8}')
        k(f'v_lshl_add_u32 v{T+8}, v{T+7}, 4, v{T+8}')
        k(f'v_and_b32 v{T+9}, 1, v{T+6}'); k(f'v_lshl_add_u32 v{T+8}, v{T+9}, 3, v{T+8}')
        k(f'v_subrev_u32 v{T+9}, 4, v{T+6}'); k(f'v_lshlrev_b32 v{T+9}, 8, v{T+9}')
        k(f'v_lshl_add_u32 v{T+9}, v{T+7}, 3, v{T+9}'); k(f'v_add_u32 v{T+9}, 3072, v{T+9}')
        k(f'v_cmp_gt_u32 vcc, 4, v{T+6}'); k(f'v_cndmask_b32 v{T+8}, v{T+9}, v{T+8}, vcc')
        k(f'v_cmp_gt_u32 vcc, 6, v{T+6}'); k(f'v_mov_b32 v{T+9}, {OOB}'); k(f'v_cndmask_b32 v{T+8}, v{T+9}, v{T+8}, vcc')
        k(f'buffer_store_dwordx2 v[{KVA}:{KVA+1}], v{T+8}, s[{WS}:{WS+3}], s31 offen sc1')
        k(f's_branch {nokv}')
        k(isv2+':')
        k('s_lshl_b32 s28, s4, 8'); k(f's_add_u32 s28, s28, {L_STAT}')
        k(f'v_lshl_add_u32 v{T+6}, v{V_G}, 5, s28')
        Y=WR+8
        k(f'ds_read_b128 v[{Y}:{Y+3}], v{T+6}'); k(f'ds_read_b128 v[{Y+4}:{Y+7}], v{T+6} offset:16')
        k(f'ds_read_b128 v[{Y+8}:{Y+11}], v{T+6} offset:128'); k(f'ds_read_b128 v[{Y+12}:{Y+15}], v{T+6} offset:144')
        k('s_waitcnt lgkmcnt(0)')
        for i in range(4):
            s_,q_=Y+2*i,Y+2*i+1
            k(f'v_add_f32 v{s_}, v{s_}, v{s_+8}'); k(f'v_add_f32 v{q_}, v{q_}, v{q_+8}')
            k(f'v_mul_f32 v{s_}, {hex(f2u(1/640))}, v{s_}'); k(f'v_mul_f32 v{q_}, {hex(f2u(1/640))}, v{q_}')
            k(f'v_fma_f32 v{q_}, -v{s_}, v{s_}, v{q_}'); k(f'v_max_f32 v{q_}, 0, v{q_}'); k(f'v_add_f32 v{q_}, {hex(f2u(1e-5))}, v{q_}')
            k(f'v_rsq_f32 v{q_}, v{q_}')
            k(f'v_fma_f32 v{KVA+i}, -v{s_}, v{KVC+i}, v{KVA+i}')
            k(f'v_mul_f32 v{KVA+i}, v{KVA+i}, v{q_}')
        k('s_lshl_b32 s28, s5, 4'); k(f'v_add_u32 v{T+6}, s28, v{V_F}')
        k(f'v_cmp_eq_u32 vcc, 20, v{T+6}')
        for i in range(4): k(f'v_cndmask_b32 v{KVA+i}, v{KVA+i}, 1.0, vcc')
        k(f'v_cmp_lt_u32 vcc, 20, v{T+6}')
        for i in range(4): k(f'v_cndmask_b32 v{KVA+i}, v{KVA+i}, 0, vcc')
        k(f'v_cvt_pk_bf16_f32 v{KVA}, v{KVA}, v{KVA+1}'); k(f'v_cvt_pk_bf16_f32 v{KVA+1}, v{KVA+2}, v{KVA+3}')
        k('s_lshl_b32 s28, s32, 10'); k('s_add_u32 s28, s28, 1024')
        k(f'v_and_b32 v{T+7}, 1, v{V_G}'); k(f'v_lshlrev_b32 v{T+7}, 9, v{T+7}')
        k(f'v_lshl_add_u32 v{T+7}, v{T+6}, 4, v{T+7}')
        k(f'v_lshrrev_b32 v{T+8}, 1, v{V_G}'); k(f'v_lshl_add_u32 v{T+7}, v{T+8}, 3, v{T+7}')
        k(f'v_add_u32 v{T+7}, s28, v{T+7}')
        k(f'buffer_store_dwordx2 v[{KVA}:{KVA+1}], v{T+7}, s[{WS}:{WS+3}], s31 offen sc1')
        k(nokv+':')

    def phase_qkv(self):
        k=self.k
        XF,WR,ACC,CSA,KVA,KVC,ONES,T=24,64,96,116,124,132,140,144
        SX,SQ=176,180
        l0=k.lab('x0'); l1=k.lab('x1')
        for i in range(4): k(f'v_mov_b32 v{ONES+i}, 0x3f803f80')
        k('s_cmp_eq_u32 s12, 0'); k(f's_cbranch_scc1 {l0}')
        self.x_loads(XF,10,X2B,0,20,10)
        k('s_waitcnt vmcnt(9)')
        k('s_barrier')
        k(f's_branch {l1}')
        k(l0+':')
        nk=k.lab('nk')
        k('s_lshr_b32 s28, s7, 1'); k('s_cmp_lg_u32 s28, s4'); k(f's_cbranch_scc1 {nk}')
        k('s_waitcnt vmcnt(0)')
        k('v_mov_b32 v200, 0')
        k('buffer_load_dword v201, v200, s[60:63], 0 offen sc1')
        k(nk+':')
        k(l1+':')
        self.mark("q.start")
        self.kv_first(XF,WR,KVA,KVC,ONES,SX,SQ,T)
        self.mark("q.kv")
        l2=k.lab('l2')
        k('s_cmp_lg_u32 s12, 0'); k(f's_cbranch_scc1 {l2}')
        k('s_waitcnt vmcnt(0)')
        self.kv_flag(T)
        k('s_waitcnt lgkmcnt(0)')
        k('s_barrier')
        k(f'v_mov_b32 v200, {L_NONCE}')
        k('ds_read_b32 v201, v200')
        k('s_waitcnt lgkmcnt(0)')
        k('v_readfirstlane_b32 s13, v201')
        self.mark("q.b2")
        self.conv_issue(L_RED,self.CONV_A+self.CONV_B)
        self.mark("q.ci")
        k(l2+':')
        vA,vC=T,T+1
        S0,S1=T+2,T+3
        k('s_mul_i32 s28, s5, 51200')
        k(f'v_add_u32 v{vA}, s28, v{V_TR}')
        k('s_lshl_b32 s29, s4, 5')
        k(f'v_add_u32 v{vC}, s29, v{vA}')
        def stat_mfma(i,ft):
            X=f'v[{XF+4*i}:{XF+4*i+3}]'
            if ft==0:
                cs='0' if i==0 else f'v[{SX}:{SX+3}]'
                k(f'v_mfma_f32_16x16x32_bf16 v[{SX}:{SX+3}], v[{ONES}:{ONES+3}], {X}, {cs}')
            if ft==2:
                cs='0' if i==0 else f'v[{SQ}:{SQ+3}]'
                k(f'v_mfma_f32_16x16x32_bf16 v[{SQ}:{SQ+3}], {X}, {X}, {cs}')
        def mk(with_cs):
            fr=[]
            if not with_cs:
                k('s_mul_i32 s28, s5, 10240'); k(f'v_add_u32 v{vA}, s28, v{V_L16}'); k(f'v_add_u32 v{vC}, 61440, v{vA}')
                for i in range(10):
                    for ft in range(5):
                        va,imm=(vA,ft*20480+i*1024) if ft<3 else (vC,(ft-3)*20480+i*1024)
                        def rd(r,va=va,imm=imm): k(f'ds_read_b128 v[{r}:{r+3}], v{va} offset:{imm}')
                        def mf(r,i=i,ft=ft):
                            c=ACC+4*ft; cs='0' if i==0 else f'v[{c}:{c+3}]'
                            k(f'v_mfma_f32_16x16x32_bf16 v[{c}:{c+3}], v[{r}:{r+3}], v[{XF+4*i}:{XF+4*i+3}], {cs}')
                            stat_mfma(i,ft)
                        fr.append(dict(read=rd,mfma=mf,vm=(9-i) if ft==0 else None))
                self.frag_gemm(fr,WR,7,1)
                return
            for i in range(10):
                for ft in range(5):
                    def rd(r,i=i,ft=ft):
                        k(f'ds_read_b64_tr_b16 v[{r}:{r+1}], v{vA} offset:{i*5120+ft*32}')
                        k(f'ds_read_b64_tr_b16 v[{r+2}:{r+3}], v{vA} offset:{i*5120+1280+ft*32}')
                    def mf(r,i=i,ft=ft):
                        c=ACC+4*ft; cs='0' if i==0 else f'v[{c}:{c+3}]'
                        k(f'v_mfma_f32_16x16x32_bf16 v[{c}:{c+3}], v[{r}:{r+3}], v[{XF+4*i}:{XF+4*i+3}], {cs}')
                        if ft==4:
                            cs='0' if i==0 else f'v[{CSA+4}:{CSA+7}]'
                            k(f'v_mfma_f32_16x16x32_bf16 v[{CSA+4}:{CSA+7}], v[{r}:{r+3}], v[{ONES}:{ONES+3}], {cs}')
                        stat_mfma(i,ft)
                    fr.append(dict(read=rd,mfma=mf))
                def rd(r,i=i):
                    k(f'ds_read_b64_tr_b16 v[{r}:{r+1}], v{vC} offset:{i*5120}')
                    k(f'ds_read_b64_tr_b16 v[{r+2}:{r+3}], v{vC} offset:{i*5120+1280}')
                def mf(r,i=i):
                    cs='0' if i==0 else f'v[{CSA}:{CSA+3}]'
                    k(f'v_mfma_f32_16x16x32_bf16 v[{CSA}:{CSA+3}], v[{r}:{r+3}], v[{ONES}:{ONES+3}], {cs}')
                fr.append(dict(read=rd,mfma=mf))
            self.frag_gemm(fr,WR,7,2)
        m1=k.lab('m1'); m2=k.lab('m2')
        k('s_cmp_eq_u32 s12, 0'); k(f's_cbranch_scc0 {m1}')
        mk(True)
        k('s_mul_i32 s28, s5, 320'); k(f's_add_u32 s28, s28, {L_CS}')
        k(f'v_lshl_add_u32 v{T+7}, v{V_G}, 4, s28')
        k('s_lshl_b32 s29, s4, 6'); k(f'v_add_u32 v{T+8}, s29, v{T+7}')
        k(f'ds_write_b128 v{T+8}, v[{CSA}:{CSA+3}]')
        k(f'ds_write_b128 v{T+7}, v[{CSA+4}:{CSA+7}] offset:256')
        k(f's_branch {m2}')
        k(m1+':')
        mk(False)
        k(m2+':')
        self.mark("q.main")
        l3=k.lab('l3'); l4=k.lab('l4')
        k('s_cmp_eq_u32 s12, 0'); k(f's_cbranch_scc1 {l3}')
        self.kv_flag(T)
        k(f's_mov_b32 s43, {L_RED}')
        k(f's_branch {l4}')
        k(l3+':')
        k('s_waitcnt vmcnt(0)')
        self.mark("q.cw")
        self.conv_finish(200,L_RED)
        k(f's_mov_b32 s43, {L_WKV}')
        k(l4+':')
        self.mark("q.mm")
        self.diag_stats(SX,SQ,S0,S1,T+6)
        k('s_lshl_b32 s28, s4, 8'); k('s_lshl_b32 s29, s5, 7'); k('s_add_u32 s28, s28, s29'); k(f's_add_u32 s28, s28, {L_STAT}')
        k(f'v_lshl_add_u32 v{T+6}, v{V_F}, 3, s28')
        self.diag_mask_on()
        k(f'ds_write_b64 v{T+6}, v[{S0}:{S1}]')
        k('s_mov_b64 exec, -1')
        self.reduce_pairs(ACC,T+9,'s43')
        k('s_waitcnt lgkmcnt(0)')
        k('s_barrier')
        Z=XF
        k('s_lshl_b32 s28, s4, 8'); k(f's_add_u32 s28, s28, {L_STAT}')
        k(f'v_lshl_add_u32 v{T+6}, v{V_F}, 3, s28')
        k(f'ds_read_b64 v[{T+10}:{T+11}], v{T+6}'); k(f'ds_read_b64 v[{T+12}:{T+13}], v{T+6} offset:128')
        k('s_mul_i32 s28, s5, 192'); k(f's_add_u32 s28, s28, {L_CS}')
        k(f'v_lshl_add_u32 v{T+7}, v{V_G}, 4, s28')
        CS0=Z+12
        for j in range(3):
            k(f'ds_read_b128 v[{CS0+8*j}:{CS0+8*j+3}], v{T+7} offset:{j*64}')
            k(f'ds_read_b128 v[{CS0+8*j+4}:{CS0+8*j+7}], v{T+7} offset:{320+j*64}')
        self.reduce_pairs_finish(ACC,T+9,Z)
        MEAN,RSTD=T+14,T+15
        k(f'v_add_f32 v{T+10}, v{T+10}, v{T+12}'); k(f'v_add_f32 v{T+11}, v{T+11}, v{T+13}')
        k(f'v_mul_f32 v{MEAN}, {hex(f2u(1/640))}, v{T+10}'); k(f'v_mul_f32 v{T+11}, {hex(f2u(1/640))}, v{T+11}')
        k(f'v_fma_f32 v{T+11}, -v{MEAN}, v{MEAN}, v{T+11}'); k(f'v_max_f32 v{T+11}, 0, v{T+11}')
        k(f'v_add_f32 v{T+11}, {hex(f2u(1e-5))}, v{T+11}'); k(f'v_rsq_f32 v{RSTD}, v{T+11}')
        k(f'v_mul_f32 v{MEAN}, v{MEAN}, v{RSTD}')
        k(f'v_mul_f32 v{T+16}, {hex(f2u(QSCALE))}, v{RSTD}'); k(f'v_mul_f32 v{T+17}, {hex(f2u(QSCALE))}, v{MEAN}')
        k('s_lshl_b32 s28, s4, 4'); k(f'v_add_u32 v{T+18}, s28, v{V_F}'); k(f'v_mul_u32_u24 v{T+18}, 160, v{T+18}')
        k(f'v_lshl_add_u32 v{T+18}, v{V_G}, 3, v{T+18}')
        k('s_mul_i32 s28, s5, 96'); k(f's_add_u32 s28, s28, {L_QL}'); k(f'v_add_u32 v{T+18}, s28, v{T+18}')
        for j in range(3):
            if j==2:
                q3=k.lab('q3'); k('s_cmp_eq_u32 s5, 1'); k(f's_cbranch_scc1 {q3}')
            for i in range(4):
                r=ACC+4*j+i
                k(f'v_add_f32 v{CS0+8*j+i}, v{CS0+8*j+i}, v{CS0+8*j+4+i}')
                k(f'v_mul_f32 v{r}, v{r}, v{T+16}'); k(f'v_fma_f32 v{r}, -v{T+17}, v{CS0+8*j+i}, v{r}')
            k(f'v_cvt_pk_bf16_f32 v{ACC+4*j}, v{ACC+4*j}, v{ACC+4*j+1}'); k(f'v_cvt_pk_bf16_f32 v{ACC+4*j+1}, v{ACC+4*j+2}, v{ACC+4*j+3}')
            k(f'ds_write_b64 v{T+18}, v[{ACC+4*j}:{ACC+4*j+1}] offset:{j*32}')
            if j==2: k(q3+':')
        k('s_waitcnt lgkmcnt(0)')
        self.mark("q.epi")
        self.publish(1)
        self.mark("q.pub")

    def phase_attn(self):
        k=self.k
        D=4; SL=14
        Q1=[24,30]; Q2=[28,34]
        S=[36,52]; O=[68,84]; P=100
        KB=108
        K1=lambda s: KB+s*SL
        V=lambda s: KB+s*SL+4
        K2=lambda s: KB+s*SL+12
        T=KB+D*SL
        VL8=T; NEG=[176,192]
        k(f'v_mul_u32_u24 v{T+1}, 160, v{V_L31}')
        k('s_mul_i32 s28, s4, 40'); k(f's_add_u32 s28, s28, {L_QL}')
        k(f'v_add_u32 v{T+1}, s28, v{T+1}')
        k(f'v_lshl_add_u32 v{T+2}, v{V_H}, 4, v{T+1}')
        for q in range(2):
            k(f'ds_read_b64 v[{Q1[q]}:{Q1[q]+1}], v{T+2} offset:{q*5120}')
            k(f'ds_read_b64 v[{Q1[q]+2}:{Q1[q]+3}], v{T+2} offset:{q*5120+8}')
            k(f'ds_read_b64 v[{Q2[q]}:{Q2[q]+1}], v{T+1} offset:{q*5120+32}')
        k(f'v_lshlrev_b32 v{VL8}, 3, v{V_LANE}')
        k('s_waitcnt lgkmcnt(0)')
        k(f'v_cmp_eq_u32 vcc, 0, v{V_H}')
        for q in range(2):
            for i in range(2): k(f'v_cndmask_b32 v{Q2[q]+i}, 0, v{Q2[q]+i}, vcc')
        self.mark("a.dma")
        VFA,VF=T+6,T+7
        k(f'v_lshlrev_b32 v{VFA}, 2, v{V_LANE}'); k(f'v_add_u32 v{VFA}, {KVFLG}, v{VFA}')
        k('s_add_u32 s38, s13, 1')
        k('s_lshr_b32 s39, s6, 2')
        def spin_group(sg):
            lp=k.lab('sg'); dn=k.lab('sgd')
            k(f's_lshl_b32 s28, s{sg}, 8'); k('s_mov_b32 s30, 0')
            k(lp+':')
            k(f'buffer_load_dword v{VF}, v{VFA}, s[{WS}:{WS+3}], s28 offen sc1')
            k('s_waitcnt vmcnt(0)')
            k(f'v_subrev_u32 v{VF}, s38, v{VF}')
            k(f'v_cmp_le_u32 vcc, 32, v{VF}')
            k(f's_cbranch_vccz {dn}')
            k('s_sleep 2')
            k('s_add_u32 s30, s30, 1'); k('s_cmp_lt_u32 s30, 0x40000'); k(f's_cbranch_scc1 {lp}')
            k(dn+':')
        k(f'v_mov_b32 v{T+8}, {L_BADF}'); k(f'v_mov_b32 v{T+9}, 0'); k(f'ds_write_b32 v{T+8}, v{T+9}')
        k('s_mov_b32 s49, 0')
        k('s_waitcnt lgkmcnt(0)')
        pw=k.lab('pw')
        k(f's_cmp_lg_u32 s3, {POLLW}'); k(f's_cbranch_scc1 {pw}')
        spin_group(39)
        k(pw+':')
        k('s_barrier')
        self.mark("a.wait")
        def ld(slot):
            k(f'buffer_load_dwordx4 v[{K1(slot)}:{K1(slot)+3}], v{V_L16}, s[{WS}:{WS+3}], s32 offen sc1')
            k(f'buffer_load_dwordx2 v[{K2(slot)}:{K2(slot)+1}], v{VL8}, s[{WS}:{WS+3}], s32 offen offset:3072 sc1')
            k(f'buffer_load_dwordx4 v[{V(slot)}:{V(slot)+3}], v{V_L16}, s[{WS}:{WS+3}], s32 offen offset:1024 sc1')
            k(f'buffer_load_dwordx4 v[{V(slot)+4}:{V(slot)+7}], v{V_L16}, s[{WS}:{WS+3}], s32 offen offset:2048 sc1')
            k('s_add_u32 s32, s32, 7168')
        def run_loop(exact,prefetch):
            def qk1(q,s):
                c = f'v[{NEG[q]}:{NEG[q]+15}]' if exact else '0'
                k(f'v_mfma_f32_32x32x16_bf16 v[{S[q]}:{S[q]+15}], v[{K1(s)}:{K1(s)+3}], v[{Q1[q]}:{Q1[q]+3}], {c}')
            def qk2(q,s): k(f'v_mfma_f32_32x32x8_bf16 v[{S[q]}:{S[q]+15}], v[{K2(s)}:{K2(s)+1}], v[{Q2[q]}:{Q2[q]+1}], v[{S[q]}:{S[q]+15}]')
            def pv(q,s,hf): k(f'v_mfma_f32_32x32x16_bf16 v[{O[q]}:{O[q]+15}], v[{V(s)+4*hf}:{V(s)+4*hf+3}], v[{P+4*hf}:{P+4*hf+3}], v[{O[q]}:{O[q]+15}]')
            def ex(q,a):
                for i in range(a,a+4): k(f'v_exp_f32 v{S[q]+i}, v{S[q]+i}')
            def cv(q,a):
                k(f'v_cvt_pk_bf16_f32 v{P+a//2}, v{S[q]+a}, v{S[q]+a+1}')
                k(f'v_cvt_pk_bf16_f32 v{P+a//2+1}, v{S[q]+a+2}, v{S[q]+a+3}')
            k(f's_mul_i32 s33, s12, {KV_D}'); k(f's_add_u32 s33, s33, {KVB[0]}')
            k('s_mul_i32 s28, s5, 3584'); k('s_add_u32 s33, s33, s28')
            k(f's_mul_i32 s28, s39, {8*3584}'); k('s_add_u32 s32, s33, s28')
            k(f's_add_u32 s33, s33, {64*3584}')
            def fload():
                k('s_add_u32 s45, s45, 1'); k('s_and_b32 s45, s45, 7'); k('s_lshl_b32 s46, s45, 8')
                k(f'buffer_load_dword v{VF}, v{VFA}, s[{WS}:{WS+3}], s46 offen sc1')
            def fcheck():
                ok=k.lab('fok')
                k(f'v_subrev_u32 v{VF}, s38, v{VF}')
                k(f'v_cmp_le_u32 vcc, 32, v{VF}')
                k(f's_cbranch_vccz {ok}')
                spin_group(44)
                k(ok+':')
                k('s_cmp_ge_u32 s32, s33'); k(f's_cselect_b32 s28, {64*3584}, 0'); k('s_sub_u32 s32, s32, s28')
            k('s_mov_b32 s45, s39')
            fload(); k('s_mov_b32 s44, s45')
            for t in range(D-1): ld(t)
            for q in range(2):
                for i in range(16): k(f'v_mov_b32 v{O[q]+i}, 0')
            for i in range(4,8): k(f'v_mov_b32 v{P+i}, 0')
            for i in range(4,8): k(f'v_mov_b32 v{V(D-1)+i}, 0')
            k(f's_waitcnt vmcnt({4*(D-2)})')
            qk1(0,0); qk2(0,0)
            k('s_nop 7')
            spf = prefetch and 'spf' in os.environ.get('XP','')
            def body(dma, w1=None, prev_ops=None):
                ops=[]
                PR=os.environ.get('PRIO','')
                if PR=='alt':
                    pa=k.lab('pa'); pb=k.lab('pb')
                    k('s_add_u32 s47, s34, s5'); k('s_and_b32 s47, s47, 1'); k('s_cmp_eq_u32 s47, 0'); k(f's_cbranch_scc1 {pa}')
                    k('s_setprio 1'); k(f's_branch {pb}'); k(pa+':'); k('s_setprio 0'); k(pb+':')
                for t in range(D):
                    s=t; sn=(t+1)%D; sp=(t-1)%D
                    n=4
                    qk1(1,s); ex(0,0); pv(1,sp,1)
                    if t==1: fcheck()
                    if t==2:
                        fload(); n+=1
                    if dma and 'nowof' not in os.environ.get('XP',''):
                        k('s_min_u32 m0, s35, 101376')
                        k('s_add_u32 s37, s36, m0')
                        k(f'buffer_load_dwordx4 v{V_L16}, s[{WS}:{WS+3}], s37 offen sc1 lds')
                        k('s_add_u32 s35, s35, 8192'); n+=1
                    if w1 is not None:
                        for e in range(2): self.f1_wload(w1+2*t+e)
                        n+=2
                    ld(sp)
                    if t==2: k('s_mov_b32 s44, s45')
                    ex(0,4); cv(0,0); qk2(1,s); cv(0,4); ex(0,8); pv(0,s,0); ex(0,12); cv(0,8); cv(0,12)
                    ops.append(n)
                    if t>0: nv=ops[t-1]+ops[t]
                    elif prev_ops is not None: nv=prev_ops+ops[0]
                    else: nv=4+ops[0]
                    k(f's_waitcnt vmcnt({nv})')
                    qk1(0,sn); ex(1,0); pv(0,s,1); ex(1,4); cv(1,0); qk2(0,sn); cv(1,4); ex(1,8); pv(1,s,0); ex(1,12); cv(1,8); cv(1,12)
                return ops[-1]
            if spf:
                k('s_and_b32 s28, s6, 3'); k('s_lshl_b32 s28, s28, 3'); k('s_add_u32 s28, s28, s7'); k('s_lshl_b32 s28, s28, 3'); k('s_add_u32 s28, s28, s3')
                k('s_lshl_b32 s28, s28, 13'); k(f's_add_u32 s28, s28, {W1F}')
                k('s_add_u32 s62, s86, s28'); k('s_addc_u32 s63, s87, 0')
            if os.environ.get('PRIO','')=='young':
                py=k.lab('py'); k('s_cmp_eq_u32 s5, 0'); k(f's_cbranch_scc1 {py}'); k('s_setprio 1'); k(py+':')
            k('s_mov_b32 s34, 0')
            L1=k.lab('al'); k(L1+':')
            body(False)
            k('s_add_u32 s34, s34, 1'); k('s_cmp_lt_u32 s34, 4'); k(f's_cbranch_scc1 {L1}')
            if prefetch:
                nw=k.lab('nw')
                k('s_cmp_lg_u32 s12, 0'); k(f's_cbranch_scc1 {nw}')
                lw=k.lab('lw'); lwd=k.lab('lwd')
                k(f'v_lshrrev_b32 v208, 1, v{V_LANE}'); k('v_lshlrev_b32 v208, 6, v208')
                k(f'v_and_b32 v209, 1, v{V_LANE}'); k('v_lshl_add_u32 v208, v209, 4, v208')
                k('s_mov_b32 s30, 0')
                k(lw+':')
                k(f'buffer_load_dwordx4 v[212:215], v208, s[{WS}:{WS+3}], 0 offen offset:{FLG} sc1')
                k('s_waitcnt vmcnt(0)')
                for r in (212,213,214,215): k(f'v_subrev_u32 v{r}, s38, v{r}')
                k('v_max_u32 v212, v212, v213'); k('v_max_u32 v214, v214, v215'); k('v_max_u32 v212, v212, v214')
                k('v_cmp_le_u32 vcc, 32, v212')
                k(f's_cbranch_vccz {lwd}')
                k('s_add_u32 s30, s30, 1'); k('s_cmp_lt_u32 s30, 0x40000'); k(f's_cbranch_scc1 {lw}')
                k(lwd+':')
                k(nw+':')
                k('s_lshl_b32 s35, s3, 10')
                k(f's_mul_i32 s36, s7, 102400'); k(f's_add_u32 s36, s36, {WOF}')
            L2=k.lab('bl'); k(L2+':')
            last=body(prefetch)
            UNR=2 if (prefetch and self.F1R) else 0
            k('s_add_u32 s34, s34, 1'); k(f's_cmp_lt_u32 s34, {8-UNR}'); k(f's_cbranch_scc1 {L2}')
            if UNR:
                k('s_min_u32 s42, s40, 53'); k('s_mul_i32 s42, s42, 40960'); k(f's_add_u32 s42, s42, {W1F}')
                last=body(True,w1=0,prev_ops=last)
                body(True,w1=8,prev_ops=last)
            pv(1,D-1,1)
            if os.environ.get('PRIO',''): k('s_setprio 0')
            k('s_waitcnt vmcnt(0)')
        run_loop(False,True)
        self.mark("a.loop")
        COMBINE=k.lab('combine'); FALLBACK=k.lab('fallback')
        k(COMBINE+':')
        k('s_nop 7'); k('s_nop 7')
        c1=k.lab('c1'); c2=k.lab('c2')
        k('s_mul_i32 s28, s3, 3072'); k(f's_add_u32 s28, s28, {L_COMB}')
        k(f'v_add_u32 v{T+1}, s28, v{V_L16}')
        k('s_xor_b32 s29, s3, 4'); k('s_mul_i32 s29, s29, 3072'); k(f's_add_u32 s29, s29, {L_COMB}')
        k(f'v_add_u32 v{T+2}, s29, v{V_L16}')
        k('s_cmp_eq_u32 s5, 1'); k(f's_cbranch_scc1 {c1}')
        for r in range(3): k(f'ds_write_b128 v{T+1}, v[{O[1]+4*r}:{O[1]+4*r+3}] offset:{r*1024}')
        k(f's_branch {c2}')
        k(c1+':')
        for r in range(3): k(f'ds_write_b128 v{T+1}, v[{O[0]+4*r}:{O[0]+4*r+3}] offset:{r*1024}')
        for i in range(12): k(f'v_mov_b32 v{O[0]+i}, v{O[1]+i}')
        k(c2+':')
        k('s_waitcnt lgkmcnt(0)')
        k('s_barrier')
        for r in range(3): k(f'ds_read_b128 v[{S[1]+4*r}:{S[1]+4*r+3}], v{T+2} offset:{r*1024}')
        k('s_waitcnt lgkmcnt(0)')
        self.mark("a.comb")
        Oq=O[0]
        for i in range(12): k(f'v_add_f32 v{Oq+i}, v{Oq+i}, v{S[1]+i}')
        k(f'v_mov_b32 v{T+3}, v{Oq+8}'); k(f'v_mov_b32 v{T+4}, v{Oq+8}')
        k(f'v_permlane32_swap_b32 v{T+3}, v{T+4}')
        k(f'v_add_f32 v{T+3}, abs(v{Oq}), abs(v{Oq+1})')
        for i in range(2,12): k(f'v_add_f32 v{T+3}, abs(v{Oq+i}), v{T+3}')
        k(f's_mov_b32 s28, {hex(f2u(2.0**-30))}'); k(f's_mov_b32 s29, {hex(f2u(2.0**60))}'); k(f's_mov_b32 s30, {hex(f2u(2.0**120))}')
        k(f'v_cmp_nle_f32 s[44:45], s28, v{T+4}')
        k(f'v_cmp_nge_f32 s[46:47], s29, v{T+4}')
        k(f'v_cmp_ngt_f32 vcc, s30, v{T+3}')
        k('s_or_b64 s[44:45], s[44:45], s[46:47]'); k('s_or_b64 vcc, vcc, s[44:45]')
        okl=k.lab('okl')
        k(f's_cbranch_vccz {okl}')
        k(f'v_mov_b32 v{T+8}, {L_BADF}'); k(f'v_mov_b32 v{T+9}, 1'); k(f'ds_write_b32 v{T+8}, v{T+9}')
        k(okl+':')
        k(f'v_rcp_f32 v{T+4}, v{T+4}')
        for i in range(12): k(f'v_mul_f32 v{Oq+i}, v{Oq+i}, v{T+4}')
        PK=S[0]
        for p in range(6): k(f'v_cvt_pk_bf16_f32 v{PK+p}, v{Oq+2*p}, v{Oq+2*p+1}')
        k('s_mul_i32 s28, s4, 5')
        k(f'v_add_u32 v{T+5}, s28, v{V_H}')
        k(f'v_lshrrev_b32 v{T+6}, 4, v{V_L31}'); k('s_lshl_b32 s29, s5, 1'); k(f'v_add_u32 v{T+6}, s29, v{T+6}')
        k(f'v_mul_u32_u24 v{T+6}, 2560, v{T+6}'); k(f'v_lshl_add_u32 v{T+6}, v{V_F}, 4, v{T+6}'); k(f'v_add_u32 v{T+6}, {L_OIMG}, v{T+6}')
        for pc in range(3):
            g_=T+7
            if pc==0: k(f'v_mov_b32 v{g_}, v{T+5}')
            elif pc==1: k(f'v_add_u32 v{g_}, 2, v{T+5}')
            else:
                k(f'v_mov_b32 v{g_}, s28'); k(f'v_add_u32 v{g_}, 4, v{g_}')
            k(f'v_lshrrev_b32 v{T+8}, 1, v{g_}'); k(f'v_lshlrev_b32 v{T+8}, 8, v{T+8}')
            k(f'v_and_b32 v{T+9}, 1, v{g_}'); k(f'v_lshl_add_u32 v{T+8}, v{T+9}, 3, v{T+8}')
            k(f'v_add_u32 v{T+8}, v{T+8}, v{T+6}')
            if pc==2:
                k('s_mov_b32 exec_hi, 0')
            k(f'ds_write_b64 v{T+8}, v[{PK+2*pc}:{PK+2*pc+1}]')
            if pc==2: k('s_mov_b64 exec, -1')
        k('s_waitcnt lgkmcnt(0)')
        k('s_barrier')
        k(f'v_mov_b32 v{T+8}, {L_BADF}'); k(f'ds_read_b32 v{T+9}, v{T+8}')
        k('s_waitcnt lgkmcnt(0)')
        k(f'v_readfirstlane_b32 s28, v{T+9}')
        k('s_lshl_b32 s29, s49, 1'); k('s_cmp_gt_u32 s28, s29')
        k(f's_cbranch_scc1 {FALLBACK}')
        k(f's_mul_i32 s31, s12, {OF_D}'); k(f's_add_u32 s31, s31, {OFB[0]}')
        k('s_mul_i32 s28, s6, 81920'); k('s_add_u32 s31, s31, s28'); k('s_mul_i32 s28, s7, 2560'); k('s_add_u32 s31, s31, s28')
        for rnd in range(2):
            lab=k.lab('oc')
            if rnd==1:
                k('s_cmp_ge_u32 s3, 2'); k(f's_cbranch_scc1 {lab}')
            k('s_lshl_b32 s28, s3, 6'); k(f's_add_u32 s28, s28, {512*rnd}')
            k(f'v_add_u32 v{T+5}, s28, v{V_LANE}')
            k(f'v_lshlrev_b32 v{T+6}, 4, v{T+5}'); k(f'v_add_u32 v{T+6}, {L_OIMG}, v{T+6}')
            k(f'ds_read_b128 v[{PK}:{PK+3}], v{T+6}')
            k(f'v_mul_u32_u24 v{T+7}, 410, v{T+5}'); k(f'v_lshrrev_b32 v{T+7}, 16, v{T+7}')
            k(f'v_mul_u32_u24 v{T+8}, 160, v{T+7}'); k(f'v_sub_u32 v{T+8}, v{T+5}, v{T+8}')
            k(f'v_mul_u32_u24 v{T+7}, 20480, v{T+7}'); k(f'v_lshl_add_u32 v{T+7}, v{T+8}, 4, v{T+7}')
            k('s_waitcnt lgkmcnt(0)')
            k(f'buffer_store_dwordx4 v[{PK}:{PK+3}], v{T+7}, s[{WS}:{WS+3}], s31 offen sc1')
            k(lab+':')
        self.mark("a.epi")
        self.publish(2)
        self.mark("a.pub")
        AFTER=k.lab('after'); k(f's_branch {AFTER}')
        k(FALLBACK+':')
        k('s_barrier')
        def kvptr():
            k(f's_mul_i32 s32, s12, {KV_D}'); k(f's_add_u32 s32, s32, {KVB[0]}')
            k('s_mul_i32 s28, s5, 3584'); k('s_add_u32 s32, s32, s28')
        def mq1(q,c): k(f'v_mfma_f32_32x32x16_bf16 v[{S[q]}:{S[q]+15}], v[{K1(0)}:{K1(0)+3}], v[{Q1[q]}:{Q1[q]+3}], {c}')
        def mq2(q): k(f'v_mfma_f32_32x32x8_bf16 v[{S[q]}:{S[q]+15}], v[{K2(0)}:{K2(0)+1}], v[{Q2[q]}:{Q2[q]+1}], v[{S[q]}:{S[q]+15}]')
        MX=[T+10,T+11]
        for q in range(2): k(f'v_mov_b32 v{MX[q]}, 0xff800000')
        kvptr(); k('s_mov_b32 s34, 0')
        l1=k.lab('fb1'); k(l1+':')
        ld(0); k('s_waitcnt vmcnt(0)')
        for q in range(2):
            mq1(q,'0'); mq2(q)
        for q in range(2):
            for i in range(0,16,2): k(f'v_max3_f32 v{MX[q]}, v{S[q]+i}, v{S[q]+i+1}, v{MX[q]}')
        k('s_add_u32 s34, s34, 1'); k('s_cmp_lt_u32 s34, 32'); k(f's_cbranch_scc1 {l1}')
        for q in range(2):
            k(f'v_mov_b32 v{T+12}, v{MX[q]}'); k(f'v_permlane32_swap_b32 v{MX[q]}, v{T+12}'); k(f'v_max_f32 v{MX[q]}, v{MX[q]}, v{T+12}')
        k('s_lshl_b32 s28, s3, 9'); k(f's_add_u32 s28, s28, {L_COMB}')
        k(f'v_lshl_add_u32 v{T+12}, v{V_LANE}, 3, s28')
        k(f'ds_write_b64 v{T+12}, v[{MX[0]}:{MX[1]}]')
        k('s_waitcnt lgkmcnt(0)'); k('s_barrier')
        k('s_xor_b32 s28, s3, 4'); k('s_lshl_b32 s28, s28, 9'); k(f's_add_u32 s28, s28, {L_COMB}')
        k(f'v_lshl_add_u32 v{T+12}, v{V_LANE}, 3, s28')
        k(f'ds_read_b64 v[{T+14}:{T+15}], v{T+12}')
        k('s_waitcnt lgkmcnt(0)'); k('s_barrier')
        for q in range(2): k(f'v_max_f32 v{MX[q]}, v{MX[q]}, v{T+14+q}')
        for q in range(2):
            for i in range(16): k(f'v_sub_f32 v{NEG[q]+i}, 0, v{MX[q]}')
            for i in range(16): k(f'v_mov_b32 v{O[q]+i}, 0')
        kvptr(); k('s_mov_b32 s34, 0')
        l2=k.lab('fb2'); k(l2+':')
        ld(0); k('s_waitcnt vmcnt(0)')
        for q in range(2):
            mq1(q,f'v[{NEG[q]}:{NEG[q]+15}]'); mq2(q)
            for i in range(16): k(f'v_exp_f32 v{S[q]+i}, v{S[q]+i}')
            for p in range(8): k(f'v_cvt_pk_bf16_f32 v{P+p}, v{S[q]+2*p}, v{S[q]+2*p+1}')
            for hf in range(2):
                k(f'v_mfma_f32_32x32x16_bf16 v[{O[q]}:{O[q]+15}], v[{V(0)+4*hf}:{V(0)+4*hf+3}], v[{P+4*hf}:{P+4*hf+3}], v[{O[q]}:{O[q]+15}]')
        k('s_add_u32 s34, s34, 1'); k('s_cmp_lt_u32 s34, 32'); k(f's_cbranch_scc1 {l2}')
        if self.F1R:
            k('s_min_u32 s42, s40, 53'); k('s_mul_i32 s42, s42, 40960'); k(f's_add_u32 s42, s42, {W1F}')
            for e in range(16): self.f1_wload(e)
            k('s_waitcnt vmcnt(0)')
        k('s_mov_b32 s49, 1')
        k(f's_branch {COMBINE}')
        k(AFTER+':')

    def phase_oproj(self):
        k=self.k
        XF,WR,ACC,T=24,64,96,144
        if self.F1E:
            le=k.lab('le')
            k('s_cmp_ge_u32 s3, s41'); k(f's_cbranch_scc1 {le}')
            k('s_mul_i32 s42, s40, 40960'); k(f's_add_u32 s42, s42, {W1F}')
            for s in range(self.F1E): self.f1_wload(s)
            k(le+':')
        self.wait(2)
        self.mark("o.wait")
        self.x_loads(XF,10,OFB[0],OF_D,20,10)
        vA,vC=T,T+1
        k('s_mul_i32 s28, s5, 10240'); k(f'v_add_u32 v{vA}, s28, v{V_L16}'); k(f'v_add_u32 v{vC}, 61440, v{vA}')
        fr=[]
        for i in range(10):
            for ft in range(5):
                va,imm=(vA,ft*20480+i*1024) if ft<3 else (vC,(ft-3)*20480+i*1024)
                def rd(r,va=va,imm=imm): k(f'ds_read_b128 v[{r}:{r+3}], v{va} offset:{imm}')
                def mf(r,i=i,ft=ft):
                    c=ACC+4*ft; cs='0' if i==0 else f'v[{c}:{c+3}]'
                    k(f'v_mfma_f32_16x16x32_bf16 v[{c}:{c+3}], v[{r}:{r+3}], v[{XF+4*i}:{XF+4*i+3}], {cs}')
                fr.append(dict(read=rd,mfma=mf,vm=(9-i) if ft==0 else None))
        self.frag_gemm(fr,WR,7,1)
        self.mark("o.mm")
        self.reduce_pairs(ACC,T+9,L_ORED)
        k('s_waitcnt lgkmcnt(0)')
        k('s_barrier')
        self.reduce_pairs_finish(ACC,T+9,XF)
        self.mark("o.red")
        self.epilogue_res(ACC,T,X1B[0],X1_D,stats=True,bias=None,final=False)
        self.mark("o.epi")
        self.publish(3)
        self.mark("o.pub")
        self.fc1_early_w()

    def epilogue_res(self,ACC,T,dst,dst_d,stats,bias,final,vout=None):
        k=self.k
        self.tile_offsets(44)
        if dst_d:
            k(f's_mul_i32 s28, s12, {dst_d}'); k(f's_add_u32 s28, s28, {dst}')
        else: k(f's_mov_b32 s28, {dst}')
        for j in range(3): k(f's_add_u32 s{44+j}, s{44+j}, s28')
        k('s_mov_b32 s47, 0xffff0000')
        VD=T+15
        k(f'v_lshrrev_b32 v{VD}, 1, v{V_G}'); k(f'v_lshlrev_b32 v{VD}, 8, v{VD}'); k(f'v_lshl_add_u32 v{VD}, v{V_F}, 4, v{VD}')
        k(f'v_and_b32 v{T+14}, 1, v{V_G}'); k(f'v_lshl_add_u32 v{VD}, v{T+14}, 3, v{VD}')
        S0,S1=T+10,T+11
        if stats:
            k(f'v_mov_b32 v{S0}, 0'); k(f'v_mov_b32 v{S1}, 0'); k(f'v_mov_b32 v{T+12}, 0x3f803f80')
        skip=k.lab('e3')
        for j in range(3):
            if j==2:
                k('s_cmp_eq_u32 s5, 1'); k(f's_cbranch_scc1 {skip}')
            r=ACC+4*j
            k(f'v_lshlrev_b32 v{T}, 16, v{V_RES+2*j}'); k(f'v_and_b32 v{T+1}, s47, v{V_RES+2*j}')
            k(f'v_lshlrev_b32 v{T+2}, 16, v{V_RES+2*j+1}'); k(f'v_and_b32 v{T+3}, s47, v{V_RES+2*j+1}')
            for i in range(4): k(f'v_add_f32 v{r+i}, v{r+i}, v{T+i}')
            if bias is not None:
                k(f'v_lshlrev_b32 v{T}, 16, v{bias+2*j}'); k(f'v_and_b32 v{T+1}, s47, v{bias+2*j}')
                k(f'v_lshlrev_b32 v{T+2}, 16, v{bias+2*j+1}'); k(f'v_and_b32 v{T+3}, s47, v{bias+2*j+1}')
                for i in range(4): k(f'v_add_f32 v{r+i}, v{r+i}, v{T+i}')
            k(f'v_cvt_pk_bf16_f32 v{V_RES+2*j}, v{r}, v{r+1}'); k(f'v_cvt_pk_bf16_f32 v{V_RES+2*j+1}, v{r+2}, v{r+3}')
            if final:
                fl=k.lab('fin'); fd=k.lab('fd')
                k('s_cmp_eq_u32 s12, 1'); k(f's_cbranch_scc1 {fl}')
                k(f'buffer_store_dwordx2 v[{V_RES+2*j}:{V_RES+2*j+1}], v{VD}, s[{WS}:{WS+3}], s{44+j} offen sc1')
                k(f's_branch {fd}')
                k(fl+':')
                k(f'buffer_store_dwordx2 v[{V_RES+2*j}:{V_RES+2*j+1}], v{vout}, s[{SC}:{SC+3}], 0 offen offset:{j*32}')
                k(fd+':')
            else:
                k(f'buffer_store_dwordx2 v[{V_RES+2*j}:{V_RES+2*j+1}], v{VD}, s[{WS}:{WS+3}], s{44+j} offen sc1')
            if stats:
                k(f'v_dot2c_f32_bf16 v{S0}, v{V_RES+2*j}, v{T+12}'); k(f'v_dot2c_f32_bf16 v{S1}, v{V_RES+2*j}, v{V_RES+2*j}')
                k(f'v_dot2c_f32_bf16 v{S0}, v{V_RES+2*j+1}, v{T+12}'); k(f'v_dot2c_f32_bf16 v{S1}, v{V_RES+2*j+1}, v{V_RES+2*j+1}')
        k(skip+':')
        if stats:
            sum_g(k,S0,T+13); sum_g(k,S1,T+13)
            k(f'v_lshlrev_b32 v{T+13}, 3, v{V_F}')
            k('s_lshl_b32 s28, s6, 4'); k('s_lshl_b32 s29, s7, 1'); k('s_add_u32 s28, s28, s29'); k('s_add_u32 s28, s28, s5')
            k('s_lshl_b32 s28, s28, 9'); k('s_lshl_b32 s29, s4, 7'); k('s_add_u32 s28, s28, s29')
            k(f's_mul_i32 s29, s12, {ST_D}'); k('s_add_u32 s28, s28, s29'); k(f's_add_u32 s28, s28, {STB[0]}')
            k(f'v_cmp_eq_u32 vcc, 0, v{V_G}'); k(f'v_mov_b32 v{T+14}, {OOB}'); k(f'v_cndmask_b32 v{T+13}, v{T+14}, v{T+13}, vcc')
            k(f'buffer_store_dwordx2 v[{S0}:{S1}], v{T+13}, s[{WS}:{WS+3}], s28 offen sc1')

    def w2_chunk_dma(self, e_expr_sgpr):
        k=self.k; e=e_expr_sgpr
        def head():
            k(f's_lshr_b32 s53, s{e}, 1'); k(f's_and_b32 s54, s{e}, 1')
            k('s_mul_i32 s54, s54, 27'); k('s_add_u32 s54, s54, s53')
            k('s_mul_i32 s55, s7, 270'); k('s_add_u32 s54, s54, s55'); k('s_lshl_b32 s54, s54, 10'); k(f's_add_u32 s54, s54, {W2F}')
            k(f's_mul_i32 s55, s{e}, 5120')
        def one(j):
            if j==0: head()
            k('s_mov_b32 m0, s55')
            k(f'buffer_load_dwordx4 v{V_L16}, s[{WS}:{WS+3}], s54 offen sc1 lds')
            k(f's_add_u32 s54, s54, {54*1024}'); k('s_add_u32 s55, s55, 1024')
        return [lambda j=j: one(j) for j in range(5)]

    W2R=128
    def w2r_setup(self):
        k=self.k
        k('s_lshr_b32 s28, s3, 1'); k('s_and_b32 s29, s3, 1')
        k('s_mul_i32 s29, s29, 27'); k('s_add_u32 s29, s29, s28')
        k('s_mul_i32 s28, s7, 270'); k('s_add_u32 s29, s29, s28')
        for g,first in enumerate((15,19,23)):
            k(f's_add_u32 s{58+g}, s29, {first}'); k(f's_lshl_b32 s{58+g}, s{58+g}, 10'); k(f's_add_u32 s{58+g}, s{58+g}, {W2F}')
    def w2r_load(self,n):
        k=self.k; g,ft=n//5,n%5; r=self.W2R+4*n
        k(f's_add_u32 s61, s{58+g}, {ft*54*1024}')
        k(f'buffer_load_dwordx4 v[{r}:{r+3}], v{V_L16}, s[{WS}:{WS+3}], s61 offen sc1')
    def fc1_early_w(self):
        k=self.k
        lab=k.lab('ew')
        k('s_cmp_ge_u32 s3, s41'); k(f's_cbranch_scc1 {lab}')
        n0=self.F1R+self.F1E
        k('s_mul_i32 s42, s40, 40960'); k(f's_add_u32 s42, s42, {W1F+(n0//4)*4096}')
        for s in range(n0,n0+self.F1A): self.f1_wload(s)
        k(lab+':')
    F1A=int(os.environ.get('F1A','12'))
    F1R=16 if os.environ.get('F1R','0')=='1' else 0
    F1E=int(os.environ.get('F1E','12'))
    def f1_wreg(self,s):
        if self.F1E: return 256-4*self.F1E+4*s if s<self.F1E else 96+4*(s-self.F1E)
        if not self.F1R: return 96+4*s
        return 192+4*s if s<16 else 96+4*(s-16)
    def f1_wload(self,s):
        k=self.k; r=self.f1_wreg(s)
        k(f'buffer_load_dwordx4 v[{r}:{r+3}], v{V_L16}, s[{WS}:{WS+3}], s42 offen offset:{(s%4)*1024} sc1')
        if s%4==3: k('s_add_u32 s42, s42, 4096')

    def gelu_group_scalar(self,A,a,MR,CSV,B1F,TT,KC,vaddr,s_h):
        o=[]; PK=TT+4
        R=[A+4*a+i for i in range(4)]; t=[TT+i for i in range(4)]
        for i in range(4): o.append(f'v_fma_f32 v{t[i]}, -v{MR}, v{CSV+4*a+i}, v{B1F+4*a+i}')
        for i in range(4): o.append(f'v_fma_f32 v{R[i]}, v{R[i]}, v{MR+1}, v{t[i]}')
        for i in range(4): o.append(f'v_mul_f32 v{t[i]}, v{R[i]}, v{R[i]}')
        for i in range(4): o.append(f'v_fma_f32 v{t[i]}, v{t[i]}, v{KC+2}, v{KC}')
        for i in range(4): o.append(f'v_mul_f32 v{t[i]}, v{t[i]}, v{R[i]}')
        for i in range(4): o.append(f'v_exp_f32 v{t[i]}, v{t[i]}')
        for i in range(4): o.append(f'v_add_f32 v{t[i]}, 1.0, v{t[i]}')
        for i in range(4): o.append(f'v_rcp_f32 v{t[i]}, v{t[i]}')
        for i in range(4): o.append(f'v_mul_f32 v{R[i]}, v{R[i]}, v{t[i]}')
        o+= [f'v_cvt_pk_bf16_f32 v{PK}, v{R[0]}, v{R[1]}', f'v_cvt_pk_bf16_f32 v{PK+1}, v{R[2]}, v{R[3]}']
        o.append(f'buffer_store_dwordx2 v[{PK}:{PK+1}], v{vaddr}, s[{WS}:{WS+3}], s{s_h} offen offset:{a*256} sc1')
        return o
    def gelu_group(self,A,a,MR,CSV,B1F,TT,KC,vaddr,s_h):
        P=lambda r: f'v[{r}:{r+1}]'
        KC0,KC1,KONE=KC,KC+2,KC+4
        r0,r1=A+4*a,A+4*a+2
        t=[TT,TT+2]; PK=TT+4
        o=[]
        for e in range(2): o.append(f'v_pk_fma_f32 {P(t[e])}, {P(MR)}, {P(CSV+4*a+2*e)}, {P(B1F+4*a+2*e)} op_sel_hi:[0,1,1] neg_lo:[1,0,0] neg_hi:[1,0,0]')
        for e,r in enumerate((r0,r1)): o.append(f'v_pk_fma_f32 {P(r)}, {P(r)}, {P(MR)}, {P(t[e])} op_sel:[0,1,0] op_sel_hi:[1,1,1]')
        for e,r in enumerate((r0,r1)): o.append(f'v_pk_mul_f32 {P(t[e])}, {P(r)}, {P(r)}')
        for e,r in enumerate((r0,r1)): o.append(f'v_pk_fma_f32 {P(t[e])}, {P(t[e])}, {P(KC1)}, {P(KC0)}')
        for e,r in enumerate((r0,r1)): o.append(f'v_pk_mul_f32 {P(t[e])}, {P(t[e])}, {P(r)}')
        for e in range(2): o+= [f'v_exp_f32 v{t[e]}, v{t[e]}', f'v_exp_f32 v{t[e]+1}, v{t[e]+1}']
        for e in range(2): o.append(f'v_pk_add_f32 {P(t[e])}, {P(t[e])}, {P(KONE)}')
        for e in range(2): o+= [f'v_rcp_f32 v{t[e]}, v{t[e]}', f'v_rcp_f32 v{t[e]+1}, v{t[e]+1}']
        for e,r in enumerate((r0,r1)): o.append(f'v_pk_mul_f32 {P(r)}, {P(r)}, {P(t[e])}')
        o+= [f'v_cvt_pk_bf16_f32 v{PK}, v{r0}, v{r0+1}', f'v_cvt_pk_bf16_f32 v{PK+1}, v{r1}, v{r1+1}']
        o.append(f'buffer_store_dwordx2 v[{PK}:{PK+1}], v{vaddr}, s[{WS}:{WS+3}], s{s_h} offen offset:{a*256} sc1')
        return o

    def phase_fc1(self):
        k=self.k
        A0,A1,XF,CS,ONE,vX,WB=24,40,56,88,89,90,96
        self.wait(3)
        self.mark("f1.wait")
        k('s_mul_i32 s28, s6, 81920'); k(f's_mul_i32 s29, s12, {X1_D}'); k('s_add_u32 s28, s28, s29'); k(f's_add_u32 s28, s28, {X1B[0]}')
        k('s_mul_i32 s29, s3, 5120'); k('s_add_u32 s28, s28, s29')
        for hf in range(2):
            for i in range(5):
                k(f's_add_u32 m0, s29, {hf*40960+i*1024}')
                k(f'buffer_load_dwordx4 v{V_L16}, s[{WS}:{WS+3}], s28 offen sc1 lds')
                k(f's_add_u32 s28, s28, {1024 if i<4 else 40960-4096}')
        act=k.lab('act'); fin=k.lab('fin')
        k('s_cmp_lt_u32 s3, s41'); k(f's_cbranch_scc1 {act}')
        n7=k.lab('n7'); n7w=k.lab('n7w')
        U=96
        k('s_waitcnt vmcnt(5)')
        k('s_barrier')
        k('s_cmp_lg_u32 s3, 7'); k(f's_cbranch_scc1 {n7w}')
        k(f'v_lshlrev_b32 v{U}, 3, v{V_LANE}')
        k('s_lshl_b32 s28, s6, 13'); k(f's_mul_i32 s29, s12, {ST_D}'); k('s_add_u32 s28, s28, s29'); k(f's_add_u32 s28, s28, {STB[0]}')
        for q in range(16):
            k(f'buffer_load_dwordx2 v[{A0+2*q}:{A0+2*q+1}], v{U}, s[{WS}:{WS+3}], s28 offen offset:{(q%8)*512} sc1')
            if q==7: k('s_add_u32 s28, s28, 4096')
        k('s_waitcnt vmcnt(0)')
        for q in range(1,16):
            k(f'v_add_f32 v{A0}, v{A0}, v{A0+2*q}'); k(f'v_add_f32 v{A0+1}, v{A0+1}, v{A0+2*q+1}')
        m_,r_,v_=U+2,U+3,A0+1
        k(f'v_mul_f32 v{m_}, {hex(f2u(1/640))}, v{A0}'); k(f'v_mul_f32 v{v_}, {hex(f2u(1/640))}, v{v_}')
        k(f'v_fma_f32 v{v_}, -v{m_}, v{m_}, v{v_}'); k(f'v_max_f32 v{v_}, 0, v{v_}')
        k(f'v_add_f32 v{A0+2}, {hex(f2u(1e-5))}, v{v_}'); k(f'v_rsq_f32 v{r_}, v{A0+2}')
        k(f'v_mul_f32 v{A0+3}, v{r_}, v{r_}'); k(f'v_mul_f32 v{A0+3}, v{A0+3}, v{v_}')
        k(f'v_add_f32 v{A0+3}, {hex(f2u(1e-5))}, v{A0+3}'); k(f'v_rsq_f32 v{A0+3}, v{A0+3}')
        k(f'v_mul_f32 v{r_}, v{r_}, v{A0+3}'); k(f'v_mul_f32 v{m_}, v{m_}, v{r_}')
        k(f'v_add_u32 v{U}, {L_TOKST}, v{U}')
        k(f'ds_write_b64 v{U}, v[{m_}:{r_}]')
        k('s_waitcnt lgkmcnt(0)')
        W2E=True
        for e in range(16,30):
            k(f's_mov_b32 s52, {e}')
            for f in self.w2_chunk_dma(52): f()
        k(f's_branch {n7}')
        k(n7w+':')
        k('s_waitcnt vmcnt(0)')
        k(n7+':')
        k('s_barrier')
        k('s_barrier')
        k('s_cmp_lg_u32 s3, 7'); k(f's_cbranch_scc1 {fin}')
        for e in list(range(0,8))+[15]+([] if W2E else list(range(16,30))):
            k(f's_mov_b32 s52, {e}')
            for f in self.w2_chunk_dma(52): f()
        k('s_cmp_eq_u32 s41, 7'); k(f's_cbranch_scc1 {fin}')
        k('s_mov_b32 s52, 14')
        for f in self.w2_chunk_dma(52): f()
        k(f's_branch {fin}')
        k(act+':')
        srd(k,SA,P_B1,1728*2)
        B1R=72
        k('s_lshl_b32 s28, s40, 6')
        k(f'v_lshl_add_u32 v{vX}, v{V_H}, 3, s28')
        for a in range(4): k(f'buffer_load_dwordx2 v[{B1R+2*a}:{B1R+2*a+1}], v{vX}, s[{SA}:{SA+3}], 0 offen offset:{a*16}')
        k('s_waitcnt vmcnt(9)')
        k('s_barrier')
        self.mark("f1.x")
        k(f'v_lshrrev_b32 v{vX}, 4, v{V_L31}'); k(f'v_mul_u32_u24 v{vX}, 20480, v{vX}')
        k(f'v_lshl_add_u32 v{vX}, v{V_H}, 8, v{vX}'); k(f'v_lshl_add_u32 v{vX}, v{V_F}, 4, v{vX}')
        k(f'v_mov_b32 v{ONE}, 0x3f803f80'); k(f'v_mov_b32 v{CS}, 0')
        k('s_cmp_lg_u32 s12, 0'); k('s_cselect_b64 vcc, -1, 0')
        def rd(tt,s):
            ks,u=s//2,s%2
            x=XF+(s%4)*4
            k(f'ds_read_b128 v[{x}:{x+3}], v{vX} offset:{tt*40960+ks*1024+u*512}')
        F1A=self.F1A+self.F1R+self.F1E
        def pass1(with_cs):
            rd(0,0); rd(0,1); rd(0,2)
            for s in range(40):
                if s+F1A<40: self.f1_wload(s+F1A)
                if s+3<40: rd(0,s+3)
                w=f's_waitcnt lgkmcnt({min(3,39-s)})'
                if s>=F1A: w+=f' vmcnt({min(F1A,39-s)})'
                k(w)
                wr=self.f1_wreg(s); x=XF+(s%4)*4
                c0='0' if s==0 else f'v[{A0}:{A0+15}]'
                k(f'v_mfma_f32_32x32x16_bf16 v[{A0}:{A0+15}], v[{wr}:{wr+3}], v[{x}:{x+3}], {c0}')
                if with_cs:
                    for r in range(4): k(f'v_dot2c_f32_bf16 v{CS}, v{wr+r}, v{ONE}')
        p1=k.lab('p1'); p1d=k.lab('p1d')
        k(f's_cbranch_vccnz {p1}')
        pass1(True)
        k(f's_branch {p1d}')
        k(p1+':')
        pass1(False)
        k(p1d+':')
        ncs=k.lab('ncs')
        k(f's_cbranch_vccnz {ncs}')
        k(f'v_mov_b32 v91, v{CS}'); k(f'v_permlane32_swap_b32 v{CS}, v91'); k(f'v_add_f32 v{CS}, v{CS}, v91')
        k('s_lshl_b32 s28, s3, 7'); k(f's_add_u32 s28, s28, {L_CS1}')
        k(f'v_lshl_add_u32 v91, v{V_L31}, 2, s28')
        k(f'ds_write_b32 v91, v{CS}')
        k(ncs+':')
        k('s_waitcnt vmcnt(0) lgkmcnt(0)')
        k('s_barrier')
        self.mark("f1.p1")
        CSV,B1F,MR0,MR1,TT,KC,VA=((self.f1_wreg(0),self.f1_wreg(4)) if (self.F1R or self.F1E>=8) else (96,112))+(80,82,16,84,91)
        side=[]
        def S(x): side.append(x)
        S(f's_lshl_b32 s28, s3, 7'); S(f's_add_u32 s28, s28, {L_CS1}'); S(f'v_lshl_add_u32 v{VA}, v{V_H}, 4, s28')
        pre_reads=[f'ds_read_b128 v[{CSV+4*a}:{CSV+4*a+3}], v{VA} offset:{a*32}' for a in range(4)]
        c0=-2*0.7978845608028654*1.4426950408889634; c1=c0*0.044715
        for i in range(2):
            k(f'v_mov_b32 v{KC+i}, {hex(f2u(c0))}'); k(f'v_mov_b32 v{KC+2+i}, {hex(f2u(c1))}')
        KONE_=92
        k(f'v_mov_b32 v{KONE_}, 1.0'); k(f'v_mov_b32 v{KONE_+1}, 1.0')
        k(f'v_lshlrev_b32 v94, 3, v{V_L31}'); k(f'v_add_u32 v94, {L_TOKST}, v94')
        k(f'ds_read_b64 v[{MR0}:{MR0+1}], v94'); k(f'ds_read_b64 v[{MR1}:{MR1+1}], v94 offset:256')
        k(f'v_lshrrev_b32 v95, 4, v{V_L31}'); k(f's_mov_b32 s28, {54*1024}'); k('v_mul_lo_u32 v95, v95, s28')
        k(f'v_lshl_add_u32 v95, v{V_H}, 3, v95'); k(f'v_lshl_add_u32 v95, v{V_F}, 4, v95')
        for tt in range(2):
            k('s_lshl_b32 s28, s6, 2'); k(f's_add_u32 s28, s28, {2*tt}'); k('s_mul_i32 s28, s28, 54'); k('s_add_u32 s28, s28, s40')
            k('s_lshl_b32 s28, s28, 10'); k(f's_mul_i32 s29, s12, {HF_D}'); k('s_add_u32 s28, s28, s29'); k(f's_add_u32 s{56+tt}, s28, {HFB[0]}')
        k('s_mov_b32 s47, 0xffff0000')
        k('s_waitcnt lgkmcnt(0)')
        rd(1,0); rd(1,1); rd(1,2)
        def gg(A,a,MR,sh):
            o=self.gelu_group(A,a,MR,CSV,B1F,TT,KC,95,sh)
            return [x.replace(f'v[{KC+4}:{KC+5}]',f'v[{KONE_}:{KONE_+1}]') for x in o]
        work=[]
        for a in range(4): work+=self.gelu_group_scalar(A0,a,MR0,CSV,B1F,TT,KC,95,56)
        nper=-(-len(work)//27)
        wi=0; lds_extra=0
        for s in range(40):
            if s+3<40: rd(1,s+3)
            extra=0
            if s==8:
                k(f's_lshl_b32 s28, s3, 7'); k(f's_add_u32 s28, s28, {L_CS1}'); k(f'v_lshl_add_u32 v{VA}, v{V_H}, 4, s28')
                for x in pre_reads: k(x)
                extra=4
            k(f's_waitcnt lgkmcnt({min(3,39-s)+extra})')
            wr=self.f1_wreg(s); x=XF+(s%4)*4
            c1s='0' if s==0 else f'v[{A1}:{A1+15}]'
            k(f'v_mfma_f32_32x32x16_bf16 v[{A1}:{A1+15}], v[{wr}:{wr+3}], v[{x}:{x+3}], {c1s}')
            if s in (9,10):
                for a in ((0,1) if s==9 else (2,3)):
                    k(f'v_lshlrev_b32 v{B1F+4*a}, 16, v{B1R+2*a}'); k(f'v_and_b32 v{B1F+4*a+1}, s47, v{B1R+2*a}')
                    k(f'v_lshlrev_b32 v{B1F+4*a+2}, 16, v{B1R+2*a+1}'); k(f'v_and_b32 v{B1F+4*a+3}, s47, v{B1R+2*a+1}')
            if s>=12:
                for _ in range(nper):
                    if wi<len(work): k(work[wi]); wi+=1
        while wi<len(work): k(work[wi]); wi+=1
        k('s_barrier')
        self.mark("f1.mm")
        k('s_add_u32 s52, s3, 8')
        dm=self.w2_chunk_dma(52)
        for a in range(4):
            for x in gg(A1,a,MR1,57): k(x)
            if dm: dm.pop(0)()
            if a==3:
                while dm: dm.pop(0)()
        k(fin+':')
        self.mark("f1.epi")
        self.publish(4)
        self.mark("f1.pub")

    def phase_fc2(self):
        k=self.k
        HX,WR,ACC=24,132,192
        vA,vB,vC,BI,VO=236,237,238,240,246
        srd(k,SB,P_B2,1280)
        srd(k,SC,P_OUT,2048*1280)
        k('s_mul_i32 s28, s7, 160'); k('s_mul_i32 s29, s5, 96'); k('s_add_u32 s28, s28, s29')
        k(f'v_lshl_add_u32 v{vA}, v{V_G}, 3, s28')
        for j in range(3): k(f'buffer_load_dwordx2 v[{BI+2*j}:{BI+2*j+1}], v{vA}, s[{SB}:{SB+3}], 0 offen offset:{j*32}')
        k('s_movk_i32 s29, 1280'); k(f'v_mul_lo_u32 v{VO}, v{V_TOK}, s29'); k(f'v_add_u32 v{VO}, v{VO}, v{vA}')
        self.wait(4)
        self.mark("f2.wait")
        XP=os.environ.get('XP','')
        if 'noh' not in XP: self.x_loads(HX,27,HFB[0],HF_D,54,27)
        if 'hwait' in XP:
            k('s_waitcnt vmcnt(0)'); self.mark("f2.h")
        k('s_mul_i32 s28, s5, 5120')
        k(f'v_add_u32 v{vA}, s28, v{V_L16}'); k(f'v_add_u32 v{vB}, 61440, v{vA}'); k(f'v_add_u32 v{vC}, 122880, v{vA}')
        NS=15
        slot=lambda i: i if i<NS else i-NS
        log=[('h',i) for i in range(27)]
        def refill(g):
            first=15+4*g
            k('s_lshr_b32 s28, s3, 1'); k('s_and_b32 s29, s3, 1')
            k(f's_add_u32 s30, s28, {first}')
            k('s_mul_i32 s32, s29, 27'); k('s_add_u32 s32, s32, s30')
            k('s_mul_i32 s33, s7, 270'); k('s_add_u32 s32, s32, s33'); k('s_lshl_b32 s32, s32, 10'); k(f's_add_u32 s32, s32, {W2F}')
            k(f's_add_u32 s30, s28, {4*g}')
            k('s_mul_i32 s33, s30, 10240'); k('s_mul_i32 s29, s29, 5120'); k('s_add_u32 s33, s33, s29')
            for j in range(5):
                k('s_mov_b32 m0, s33')
                k(f'buffer_load_dwordx4 v{V_L16}, s[{WS}:{WS+3}], s32 offen sc1 lds')
                if j<4:
                    k(f's_add_u32 s32, s32, {54*1024}'); k('s_add_u32 s33, s33, 1024')
                log.append(('rf',g))
        def younger(idx): return len(log)-1-idx
        DEPTH=int(os.environ.get('F2D','10'))
        bar={7:(None,0),11:(None,1),15:(0,2),19:(1,None),23:(2,None)}
        fr=[]
        for i in range(27):
            for ft in range(5):
                j=slot(i); va,imm=((vA,vB,vC)[j//6],(j%6)*10240)
                def rd(r,va=va,imm=imm,ft=ft): k(f'ds_read_b128 v[{r}:{r+3}], v{va} offset:{imm+ft*1024}')
                def mf(r,i=i,ft=ft):
                    c=ACC+4*ft; cs='0' if i==0 else f'v[{c}:{c+3}]'
                    k(f'v_mfma_f32_16x16x32_bf16 v[{c}:{c+3}], v[{r}:{r+3}], v[{HX+4*i}:{HX+4*i+3}], {cs}')
                d=dict(read=rd,mfma=mf)
                if ft==0:
                    d['vm']=(lambda i=i: younger(log.index(('h',i))))
                    if i in bar:
                        def pre(i=i):
                            need,fill=bar[i]
                            if need is not None:
                                tags=[n for n,x in enumerate(log) if x==('rf',need)]
                                k(f's_waitcnt vmcnt({younger(tags[-1])})')
                            k('s_barrier')
                            if fill is not None: refill(fill)
                        d['pre']=pre
                fr.append(d)
        self.frag_gemm(fr,WR,DEPTH,1)
        self.mark("f2.mm")
        k('s_barrier')
        T=48
        self.reduce_pairs(ACC,T+9,L_RED)
        k('s_waitcnt lgkmcnt(0)')
        k('s_barrier')
        self.reduce_pairs_finish(ACC,T+9,24)
        self.epilogue_res(ACC,T,X2B,0,stats=False,bias=BI,final=True,vout=VO)
        self.mark("f2.epi")

    def build(self):
        k=self.k
        self.prologue()
        self.mark0("p.start")
        if 'nox0' not in os.environ.get('XP',''): self.x0_loads(24,144)
        if 'cs.x' in os.environ.get('MARKS',''):
            k('s_waitcnt vmcnt(0)'); self.mark0("cs.x")
        kvw=k.lab('kvw'); pj=k.lab('pj')
        k('s_lshr_b32 s28, s7, 1')
        k('s_cmp_eq_u32 s28, s4'); k(f's_cbranch_scc1 {kvw}')
        k('s_mov_b32 s43, s3')
        k('s_cmp_gt_u32 s3, s28'); k('s_cselect_b32 s29, 1, 0'); k('s_sub_u32 s43, s43, s29')
        k('s_add_u32 s28, s28, 4'); k('s_cmp_gt_u32 s3, s28'); k('s_cselect_b32 s29, 1, 0'); k('s_sub_u32 s43, s43, s29')
        srd(k,SA,P_WQ,640*1280)
        k('s_waitcnt vmcnt(8)')
        for t in range(4):
            lab=k.lab('wq')
            k(f's_add_u32 s28, s43, {6*t}')
            if t==3:
                k('s_cmp_ge_u32 s28, 20'); k(f's_cbranch_scc1 {lab}')
            k('s_mul_i32 s29, s28, 40960'); k('s_mul_i32 s30, s28, 5120')
            self.dma_chunk160(SA,29,30)
            k(lab+':')
        k(f's_branch {pj}')
        k(kvw+':')
        k('s_mov_b32 s43, 7')
        k('s_and_b32 s28, s7, 1'); k('s_cmp_eq_u32 s28, 0')
        k(f's_cselect_b32 s30, s{P_WK}, s{P_WV}'); k(f's_cselect_b32 s31, s{P_WK+1}, s{P_WV+1}')
        srd(k,SB,30,25600)
        k('s_mul_i32 s29, s5, 12288')
        for t in range(13):
            k(f's_add_u32 m0, s29, {L_WKV}')
            k(f'buffer_load_dwordx4 v{V_L16}, s[{SB}:{SB+3}], s29 offen lds')
            k('s_add_u32 s29, s29, 1024')
        k(pj+':')
        if 'tlb' in os.environ.get('XP',''): self.tlb_warm()
        self.mark0("p.issued")
        LOOP='mega_layer'
        k(LOOP+':')
        self.phase_qkv(); self.stopat('qkv')
        self.phase_attn(); self.stopat('attn')
        self.phase_oproj(); self.stopat('oproj')
        self.phase_fc1(); self.stopat('fc1')
        self.phase_fc2(); self.stopat('fc2')
        k('s_cmp_eq_u32 s12, 1'); k(f's_cbranch_scc1 {self.END}')
        self.publish(5)
        self.dma_next_qkv()
        self.wait(5)
        k('s_mov_b32 s12, 1'); k('s_add_u32 s13, s13, 5')
        k(f's_branch {LOOP}')
        k(self.END+':')
        rz=self.k.lab('rz')
        k('s_cmp_lg_u32 s2, 0'); k(f's_cbranch_scc1 {rz}')
        k('s_cmp_lg_u32 s3, 5'); k(f's_cbranch_scc1 {rz}')
        k('s_load_dwordx2 s[58:59], s[0:1], 88')
        k('s_waitcnt lgkmcnt(0)')
        srd(k,60,58,256)
        k('v_mov_b32 v200, 0'); k('v_mov_b32 v201, 0')
        k('s_mov_b64 exec, 1')
        k('buffer_store_dword v201, v200, s[60:63], 0 offen sc1')
        k('s_mov_b64 exec, -1')
        k(rz+':')
        if self.stamps:
            k('s_waitcnt vmcnt(0) lgkmcnt(0)')
            k(f'{self.clk} s[100:101]'); k('s_waitcnt lgkmcnt(0)')
            k('s_lshl_b32 s28, s2, 3'); k('s_add_u32 s28, s28, s3'); k('s_lshl_b32 s28, s28, 6'); k(f's_add_u32 s28, s28, {STAMP_OFF}')
            k('s_add_u32 s30, s86, s28'); k('s_addc_u32 s31, s87, 0')
            k('v_mov_b32 v24, 0')
            if os.environ.get('DBGOUT'):
                dz=k.lab('dz')
                k('s_cmp_lg_u32 s2, 0'); k(f's_cbranch_scc1 {dz}'); k('s_cmp_lg_u32 s3, 0'); k(f's_cbranch_scc1 {dz}')
                k('s_load_dwordx2 s[58:59], s[0:1], 88'); k('s_waitcnt lgkmcnt(0)')
                for i in list(range(11))+[12]:
                    k(f's_sub_u32 s28, s{88+i}, s99'); k('v_mov_b32 v25, s28')
                    k(f'global_store_dword v24, v25, s[58:59] offset:{4*(i+1)}')
                k(dz+':')
            else:
              for i in range(13):
                k(f'v_mov_b32 v25, s{88+i}')
                k(f'global_store_dword v24, v25, s[30:31] offset:{4*i}')
        k('mega_kernel_exit:')
        k('mega_code_end:')
        k('s_endpgm')
        return k

def gen_init():
    k=Kern('init_kernel',vgpr=8,sgpr=24)
    k('s_cmp_ge_u32 s2, 1'); k('s_cbranch_scc1 init_kernel_end')
    k('s_load_dwordx2 s[4:5], s[0:1], 96')
    k('s_waitcnt lgkmcnt(0)')
    srd(k,8,4,4096,FLG)
    k('v_lshlrev_b32 v1, 4, v0')
    for i in range(4): k(f'v_mov_b32 v{2+i}, 0')
    k('buffer_store_dwordx4 v[2:5], v1, s[8:11], 0 offen')
    k('init_kernel_end:')
    k('s_endpgm')
    return k
```

```python
import os, struct
from asmlib import *
from mlayout import *

def f2u(x): return struct.unpack('<I',struct.pack('<f',x))[0]
P_X,P_WQ,P_WK,P_WV,P_WO,P_W1,P_B1,P_W2,P_B2,P_OUT=64,66,68,70,72,76,78,80,82,84
WS=8
SA,SB,SC=16,20,24
OOB='0x40000000'
V_LANE,V_F,V_G,V_L16,V_L31,V_H,V_TR,V_RES,V_TOK,V_D=1,2,3,4,5,6,7,8,14,16
L_WKV=102400
L_RED=128000
L_KVR=157056
L_STAT=152576
L_CS=163136
L_NONCE=163776
L_BADF=163780
L_PAIRF=163784
L_KVCS=155008
NONCE=FLG+2048+64
L_QL=0
L_COMB=112640
L_OIMG=137216
L_ORED=102400
L_TOKST=153600
L_CS1=154112
LDS_TOTAL=160*1024
STAMP_OFF=100<<20
POLLW=7

def srd(k,d,p,size,off=0):
    k(f's_add_u32 s{d}, s{p}, {off}' if off else f's_mov_b32 s{d}, s{p}')
    k(f's_addc_u32 s{d+1}, s{p+1}, 0' if off else f's_mov_b32 s{d+1}, s{p+1}')
    k(f's_and_b32 s{d+1}, s{d+1}, 0xffff')
    k(f's_mov_b32 s{d+2}, {size}')
    k(f's_mov_b32 s{d+3}, 0x20000')

def sum_g(k,x,tmp):
    k(f'v_mov_b32 v{tmp}, v{x}')
    k(f'v_permlane16_swap_b32 v{x}, v{tmp}')
    k(f'v_add_f32 v{x}, v{x}, v{tmp}')
    k(f'v_mov_b32 v{tmp}, v{x}')
    k(f'v_permlane32_swap_b32 v{x}, v{tmp}')
    k(f'v_add_f32 v{x}, v{x}, v{tmp}')

KNAME='interleave_layers__grouped_kv_mqa__mixer_channel_mlp__prompt_kernel'
class Mega:
    def __init__(self, stamps=False, stop=None):
        self.k=Kern(KNAME,vgpr=256,sgpr=102)
        self.stamps=stamps; self.stop=stop; self.END='mega_kernel_end'
        self.mark_layer=int(os.environ.get('MARKL','1'))
        self.clk='s_memrealtime' if os.environ.get('RT') else 's_memtime'
    def mark(self,name):
        if not self.stamps: return
        ms=os.environ.get('MARKS','').split(',')
        if name not in ms: return
        i=ms.index(name)
        k=self.k
        k(f'{self.clk} s[100:101]')
        k('s_waitcnt lgkmcnt(0)')
        k(f's_cmp_eq_u32 s12, {self.mark_layer}')
        k(f's_cselect_b32 s{88+i}, s100, s{88+i}')
    def mark0(self,name):
        if not self.stamps: return
        ms=os.environ.get('MARKS','').split(',')
        if name not in ms: return
        i=ms.index(name); k=self.k
        k(f'{self.clk} s[100:101]'); k('s_waitcnt lgkmcnt(0)'); k(f's_mov_b32 s{88+i}, s100')
    def stopat(self,name):
        if self.stop==name:
            k=self.k
            k(f's_cmp_eq_u32 s12, {int(os.environ.get("STOPL","0"))}')
            k(f's_cbranch_scc1 {self.END}')

    def publish(self,j):
        k=self.k
        k('s_waitcnt vmcnt(0)')
        k('s_barrier')
        lab=k.lab('pub')
        k('s_cmp_lg_u32 s3, 0')
        k(f's_cbranch_scc1 {lab}')
        k(f's_add_u32 s28, s13, {j}')
        k('v_mov_b32 v22, s28')
        k('s_lshl_b32 s29, s6, 6'); k('s_lshl_b32 s30, s7, 2'); k('s_add_u32 s29, s29, s30')
        k('v_mov_b32 v21, s29')
        k('s_mov_b64 exec, 1')
        k(f'buffer_store_dword v22, v21, s[{WS}:{WS+3}], 0 offen offset:{FLG} sc1')
        k('s_mov_b64 exec, -1')
        k(lab+':')
    def wait(self,j,allwg=False,others=None):
        k=self.k
        lab=k.lab('w'); loop=k.lab('poll'); done=k.lab('pd')
        wide = allwg or others is not None
        k(f's_cmp_lg_u32 s3, {POLLW}')
        k(f's_cbranch_scc1 {lab}')
        k(f's_add_u32 s28, s13, {j}')
        if wide:
            k(f'v_lshrrev_b32 v22, 1, v{V_LANE}'); k('v_lshlrev_b32 v21, 6, v22')
            k(f'v_and_b32 v16, 1, v{V_LANE}'); k('v_lshl_add_u32 v21, v16, 4, v21')
            if others is not None:
                k(f's_add_u32 s29, s13, {others}')
                k('v_cmp_eq_u32 vcc, s6, v22')
                k('v_mov_b32 v23, s29'); k('v_mov_b32 v22, s28')
                k('v_cndmask_b32 v22, v23, v22, vcc')
            else: k('v_mov_b32 v22, s28')
        else:
            k(f'v_and_b32 v21, 7, v{V_LANE}'); k('v_lshlrev_b32 v21, 2, v21')
            k('s_lshl_b32 s29, s6, 6'); k('v_add_u32 v21, s29, v21')
            k('v_mov_b32 v22, s28')
        k('s_mov_b32 s30, 0')
        k(loop+':')
        if wide:
            k(f'buffer_load_dwordx4 v[16:19], v21, s[{WS}:{WS+3}], 0 offen offset:{FLG} sc1')
            k('s_waitcnt vmcnt(0)')
            for r in (16,17,18,19): k(f'v_sub_u32 v{r}, v{r}, v22')
            k('v_max_u32 v16, v16, v17'); k('v_max_u32 v18, v18, v19'); k('v_max_u32 v16, v16, v18')
        else:
            k(f'buffer_load_dword v16, v21, s[{WS}:{WS+3}], 0 offen offset:{FLG} sc1')
            k('s_waitcnt vmcnt(0)')
            k('v_sub_u32 v16, v16, v22')
        k('v_cmp_le_u32 vcc, 32, v16')
        k(f's_cbranch_vccz {done}')
        if os.environ.get('SLP'): k(f"s_sleep {os.environ['SLP']}")
        k('s_add_u32 s30, s30, 1')
        k(f's_cmp_lt_u32 s30, 0x40000')
        k(f's_cbranch_scc1 {loop}')
        k(done+':')
        k(lab+':')
        k('s_barrier')

    def dma_chunk160(self, s_srd, s_soff, s_m0):
        k=self.k
        for j in range(5):
            k(f's_mov_b32 m0, s{s_m0}')
            k(f'buffer_load_dwordx4 v{V_D+j}, s[{s_srd}:{s_srd+3}], s{s_soff} offen lds')
            if j<4: k(f's_add_u32 s{s_m0}, s{s_m0}, 1024')
    def dma_w160(self,ptr,skip_poller=False):
        k=self.k
        srd(k,SA,ptr,640*1280)
        nw=7 if skip_poller else 8
        end=k.lab('dw')
        if skip_poller:
            k(f's_cmp_eq_u32 s3, {POLLW}'); k(f's_cbranch_scc1 {end}')
        for t in range(3):
            lab=k.lab('wq')
            k(f's_add_u32 s28, s3, {nw*t}')
            if nw*t+nw>20:
                k('s_cmp_ge_u32 s28, 20'); k(f's_cbranch_scc1 {lab}')
            k('s_mul_i32 s29, s28, 40960'); k('s_mul_i32 s30, s28, 5120')
            self.dma_chunk160(SA,29,30)
            k(lab+':')
        k(end+':')
    def dma_wkv(self):
        k=self.k
        k('s_and_b32 s28, s7, 1'); k('s_cmp_eq_u32 s28, 0')
        k(f's_cselect_b32 s30, s{P_WK}, s{P_WV}'); k(f's_cselect_b32 s31, s{P_WK+1}, s{P_WV+1}')
        srd(k,SB,30,25600)
        for t in range(4):
            lab=k.lab('wk')
            k(f's_add_u32 s28, s3, {8*t}')
            if t==3:
                k('s_cmp_ge_u32 s28, 25'); k(f's_cbranch_scc1 {lab}')
            k('s_lshl_b32 s29, s28, 10'); k(f's_add_u32 s30, s29, {L_WKV}')
            k('s_mov_b32 m0, s30')
            k(f'buffer_load_dwordx4 v{V_L16}, s[{SB}:{SB+3}], s29 offen lds')
            k(lab+':')
    def l2_prefetch(self, s_srd, total, nwaves, wave0, vtmp, base_off=0):
        k=self.k
        per=(total//32+127)//128*128
        ninst=(per+8191)//8192
        pw=(ninst+nwaves-1)//nwaves
        k('s_and_b32 s28, s6, 3'); k('s_lshl_b32 s28, s28, 3'); k('s_add_u32 s28, s28, s7')
        k(f's_mul_i32 s28, s28, {per}')
        k(f's_sub_u32 s29, s3, {wave0}'); k(f's_mul_i32 s29, s29, {pw*8192}'); k('s_add_u32 s28, s28, s29')
        if base_off: k(f's_add_u32 s28, s28, {base_off}')
        k(f'v_lshlrev_b32 v{vtmp}, 7, v{V_LANE}')
        for n in range(pw):
            k(f'buffer_load_dword v{vtmp+1}, v{vtmp}, s[{s_srd}:{s_srd+3}], s28 offen')
            k('s_add_u32 s28, s28, 8192')
        return pw

    def prologue(self):
        k=self.k
        k('s_cmp_ge_u32 s2, 256')
        k(f's_cbranch_scc1 mega_kernel_exit')
        k('s_load_dwordx16 s[64:79], s[0:1], 0')
        k('s_load_dwordx4 s[80:83], s[0:1], 64')
        k('s_load_dwordx2 s[84:85], s[0:1], 80')
        k('s_load_dwordx2 s[86:87], s[0:1], 96')
        k('s_load_dwordx2 s[58:59], s[0:1], 88')
        if self.stamps: k(f'{self.clk} s[100:101]')
        k('v_lshrrev_b32 v24, 6, v0')
        k(f'v_and_b32 v{V_LANE}, 63, v0')
        k('v_readfirstlane_b32 s3, v24')
        k('s_and_b32 s4, s3, 3'); k('s_lshr_b32 s5, s3, 2')
        k('s_and_b32 s6, s2, 7'); k('s_lshl_b32 s6, s6, 2'); k('s_lshr_b32 s7, s2, 3'); k('s_and_b32 s7, s7, 3'); k('s_add_u32 s6, s6, s7'); k('s_lshr_b32 s7, s2, 5')
        k(f'v_and_b32 v{V_F}, 15, v{V_LANE}')
        k(f'v_lshrrev_b32 v{V_G}, 4, v{V_LANE}')
        k(f'v_lshlrev_b32 v{V_L16}, 4, v{V_LANE}')
        k(f'v_and_b32 v{V_L31}, 31, v{V_LANE}')
        k(f'v_lshrrev_b32 v{V_H}, 5, v{V_LANE}')
        k(f'v_lshrrev_b32 v24, 2, v{V_F}')
        k(f'v_and_b32 v25, 1, v{V_G}'); k('v_lshl_add_u32 v24, v25, 2, v24')
        k(f'v_lshrrev_b32 v25, 1, v{V_G}'); k('v_lshl_add_u32 v24, v25, 4, v24')
        k('v_mul_u32_u24 v24, 160, v24')
        k(f'v_and_b32 v25, 3, v{V_LANE}')
        k(f'v_lshl_add_u32 v{V_TR}, v25, 3, v24')
        k('s_lshl_b32 s28, s6, 6'); k('s_lshl_b32 s29, s4, 4'); k('s_add_u32 s28, s28, s29')
        k(f'v_add_u32 v{V_TOK}, s28, v{V_F}')
        k('s_mul_i32 s29, s7, 160')
        for j in range(5):
            k(f'v_add_u32 v24, {64*j}, v{V_LANE}')
            k('v_mul_u32_u24 v25, 6554, v24'); k('v_lshrrev_b32 v25, 16, v25')
            k('v_mul_u32_u24 v26, 10, v25'); k('v_sub_u32 v26, v24, v26')
            k('v_and_b32 v27, 0x13, v25')
            k('v_bfe_u32 v28, v25, 3, 1'); k('v_lshl_add_u32 v27, v28, 2, v27')
            k('v_bfe_u32 v28, v25, 2, 1'); k('v_lshl_add_u32 v27, v28, 3, v27')
            k('v_mul_u32_u24 v27, 1280, v27')
            k('v_lshl_add_u32 v27, v26, 4, v27')
            k(f'v_add_u32 v{V_D+j}, s29, v27')
        k('s_waitcnt lgkmcnt(0)')
        if self.stamps:
            k('s_mov_b32 s99, s100')
            for i in range(11): k(f's_mov_b32 s{88+i}, 0')
        srd(k,WS,86,WS_USED)
        k('s_mov_b32 s12, 0'); k('s_mov_b32 s13, 0')
        srd(k,60,58,256)
        nn=k.lab('nn')
        k('s_cmp_lg_u32 s2, 0'); k(f's_cbranch_scc1 {nn}')
        k('s_cmp_lg_u32 s3, 5'); k(f's_cbranch_scc1 {nn}')
        k('s_memrealtime s[28:29]')
        k('s_waitcnt lgkmcnt(0)')
        k('s_lshl_b32 s28, s28, 6'); k('s_or_b32 s28, s28, 1')
        k('v_mov_b32 v201, s28'); k('v_mov_b32 v200, 0')
        k('s_mov_b64 exec, 1')
        k('buffer_store_dword v201, v200, s[60:63], 0 offen sc1')
        k('s_mov_b64 exec, -1')
        k(nn+':')
        k('s_mul_i32 s40, s7, 7'); k('s_sub_u32 s28, s7, 6'); k('s_max_i32 s28, s28, 0'); k('s_sub_u32 s40, s40, s28')
        k('s_cmp_ge_u32 s7, 6'); k('s_cselect_b32 s41, 6, 7')
        k('s_add_u32 s40, s40, s3')

    def x0_loads(self,XF,T):
        k=self.k
        srd(k,SC,P_X,2048*1280)
        k('s_movk_i32 s28, 1280')
        k(f'v_mul_lo_u32 v{T}, v{V_TOK}, s28')
        k(f'v_lshl_add_u32 v{T+1}, v{V_G}, 4, v{T}')
        k('s_mul_i32 s29, s5, 640')
        k(f'v_add_u32 v{T+1}, s29, v{T+1}')
        if 'xlin' in os.environ.get('XP',''):
            k('s_lshl_b32 s28, s6, 2'); k('s_add_u32 s28, s28, s4'); k('s_mul_i32 s28, s28, 20'); k('s_mul_i32 s29, s5, 10'); k('s_add_u32 s28, s28, s29'); k('s_lshl_b32 s28, s28, 10')
            for i in range(10):
                k(f'buffer_load_dwordx4 v[{XF+4*i}:{XF+4*i+3}], v{V_L16}, s[{SC}:{SC+3}], s28 offen offset:{(i%4)*1024}')
                if i%4==3: k('s_add_u32 s28, s28, 4096')
        else:
          for i in range(10):
            k(f'buffer_load_dwordx4 v[{XF+4*i}:{XF+4*i+3}], v{T+1}, s[{SC}:{SC+3}], 0 offen offset:{i*64}')
        k(f'v_lshl_add_u32 v{T+1}, v{V_G}, 3, v{T}')
        k('s_mul_i32 s29, s7, 160'); k('s_mul_i32 s30, s5, 96'); k('s_add_u32 s29, s29, s30')
        k(f'v_add_u32 v{T+1}, s29, v{T+1}')
        for j in range(3):
            k(f'buffer_load_dwordx2 v[{V_RES+2*j}:{V_RES+2*j+1}], v{T+1}, s[{SC}:{SC+3}], 0 offen offset:{j*32}')

    def conv_issue(self, stage, kinds):
        k=self.k
        done=k.lab('cvd'); go=k.lab('cvg')
        total=sum(x[5] for x in kinds)
        k('s_mov_b32 s50, 0')
        k('s_lshl_b32 s28, s43, 8'); k('s_add_u32 s28, s28, s2')
        k(f's_cmp_ge_u32 s28, {total}'); k(f's_cbranch_scc1 {done}')
        labs=[k.lab('cvk') for _ in kinds]
        acc=0
        for idx,x in enumerate(kinds[:-1]):
            acc+=x[5]
            k(f's_cmp_lt_u32 s28, {acc}'); k(f's_cbranch_scc1 {labs[idx]}')
        k(f's_branch {labs[-1]}')
        acc=0
        for idx,(name,ptr,rows,stride,ncg,njobs,dst,layout) in enumerate(kinds):
            k(labs[idx]+':')
            if acc: k(f's_sub_u32 s28, s28, {acc}')
            magic=-(-65536//ncg)
            assert all((j*magic)>>16==j//ncg for j in range(njobs))
            k(f's_mul_i32 s29, s28, {magic}'); k('s_lshr_b32 s29, s29, 16')
            k(f's_mul_i32 s30, s29, {ncg}'); k('s_sub_u32 s30, s28, s30')
            srd(k,SA,ptr,rows*stride)
            k(f's_movk_i32 s31, {stride}')
            k(f's_mov_b32 s50, {1 if layout=="w1" else 2}')
            if layout=='w1':
                k('s_mul_i32 s51, s30, 80'); k('s_lshl_b32 s32, s29, 1'); k('s_add_u32 s51, s51, s32')
                k('s_mov_b32 s57, 0')
            else:
                KS=rows//32
                k(f's_mul_i32 s51, s30, {4*KS}'); k('s_add_u32 s51, s51, s29')
                k(f's_mov_b32 s57, {KS*1024}')
            k('s_lshl_b32 s51, s51, 10'); k(f's_add_u32 s51, s51, {dst}')
            k(f's_branch {go}')
            acc+=njobs
        k(go+':')
        k(f'v_lshrrev_b32 v200, 3, v{V_LANE}'); k('v_mul_lo_u32 v200, v200, s31')
        k(f'v_and_b32 v201, 7, v{V_LANE}'); k('v_lshl_add_u32 v200, v201, 4, v200')
        k('s_lshl_b32 s32, s29, 5'); k('s_mul_i32 s32, s32, s31'); k('s_lshl_b32 s33, s30, 7'); k('s_add_u32 s32, s32, s33')
        k('s_lshl_b32 s33, s31, 3')
        k('s_lshl_b32 s34, s43, 12'); k(f's_add_u32 s34, s34, {stage}')
        for i in range(4):
            k('s_mov_b32 m0, s34')
            k(f'buffer_load_dwordx4 v200, s[{SA}:{SA+3}], s32 offen lds')
            if i<3:
                k('s_add_u32 s32, s32, s33'); k('s_add_u32 s34, s34, 1024')
        k(done+':')
    def conv_finish(self,T,stage):
        k=self.k
        done=k.lab('cfd'); w2=k.lab('cf2')
        k('s_cmp_eq_u32 s50, 0'); k(f's_cbranch_scc1 {done}')
        k('s_lshl_b32 s34, s43, 12'); k(f's_add_u32 s34, s34, {stage}')
        k(f'v_lshrrev_b32 v{T}, 2, v{V_F}')
        k(f'v_and_b32 v{T+1}, 3, v{V_LANE}')
        k('s_cmp_eq_u32 s50, 2'); k(f's_cbranch_scc1 {w2}')
        k(f'v_lshl_add_u32 v{T}, v{V_H}, 3, v{T}'); k(f'v_lshlrev_b32 v{T}, 7, v{T}')
        k(f'v_and_b32 v{T+2}, 1, v{V_G}'); k(f'v_lshl_add_u32 v{T}, v{T+2}, 5, v{T}')
        k(f'v_lshl_add_u32 v{T}, v{T+1}, 3, v{T}'); k(f'v_add_u32 v{T}, s34, v{T}')
        fr=[(p,u) for p in range(2) for u in range(2)]
        for n,(p,u) in enumerate(fr):
            b=T+4+4*n
            k(f'ds_read_b64_tr_b16 v[{b}:{b+1}], v{T} offset:{u*2048+p*64}')
            k(f'ds_read_b64_tr_b16 v[{b+2}:{b+3}], v{T} offset:{u*2048+p*64+512}')
        k('s_waitcnt lgkmcnt(0)')
        for n,(p,u) in enumerate(fr):
            b=T+4+4*n
            k(f's_add_u32 s32, s51, {(p*40+u)*1024}')
            k(f'buffer_store_dwordx4 v[{b}:{b+3}], v{V_L16}, s[{WS}:{WS+3}], s32 offen sc1')
        k(f's_branch {done}')
        k(w2+':')
        k(f'v_lshl_add_u32 v{T}, v{V_G}, 3, v{T}'); k(f'v_lshlrev_b32 v{T}, 7, v{T}')
        k(f'v_lshl_add_u32 v{T}, v{T+1}, 3, v{T}'); k(f'v_add_u32 v{T}, s34, v{T}')
        for n in range(4):
            b=T+4+4*n
            k(f'ds_read_b64_tr_b16 v[{b}:{b+1}], v{T} offset:{n*32}')
            k(f'ds_read_b64_tr_b16 v[{b+2}:{b+3}], v{T} offset:{n*32+512}')
        k('s_waitcnt lgkmcnt(0)')
        k('s_mov_b32 s32, s51')
        for n in range(4):
            b=T+4+4*n
            k(f'buffer_store_dwordx4 v[{b}:{b+3}], v{V_L16}, s[{WS}:{WS+3}], s32 offen sc1')
            if n<3: k('s_add_u32 s32, s32, s57')
        k(done+':')
    CONV_A=[('wo',P_WO,640,1280,10,200,WOF,'a16'),('wq',P_WQ,640,1280,10,200,WQF,'a16')]
    CONV_B=[('w1',P_W1,640,3456,27,540,W1F,'w1'),('w2',P_W2,1728,1280,10,540,W2F,'a16')]

    def dma_lin_slice(self, src_const, waves=8):
        k=self.k
        k(f's_mul_i32 s28, s7, 102400'); k(f's_add_u32 s28, s28, {src_const}')
        k('s_lshl_b32 s29, s3, 10'); k('s_add_u32 s28, s28, s29')
        for n in range(13):
            lab=None
            if n==12:
                lab=k.lab('dl'); k('s_cmp_ge_u32 s3, 4'); k(f's_cbranch_scc1 {lab}')
            k('s_mov_b32 m0, s29')
            k(f'buffer_load_dwordx4 v{V_L16}, s[{WS}:{WS+3}], s28 offen sc1 lds')
            if n<12:
                k('s_add_u32 s28, s28, 8192'); k('s_add_u32 s29, s29, 8192')
            if lab: k(lab+':')

    def dma_next_qkv(self):
        k=self.k
        end=k.lab('dn')
        k(f's_cmp_eq_u32 s3, {POLLW}'); k(f's_cbranch_scc1 {end}')
        k('s_and_b32 s28, s7, 1'); k('s_cmp_eq_u32 s28, 0')
        k(f's_cselect_b32 s30, s{P_WK}, s{P_WV}'); k(f's_cselect_b32 s31, s{P_WK+1}, s{P_WV+1}')
        srd(k,SB,30,25600)
        for t in range(4):
            lab=k.lab('wk')
            k(f's_add_u32 s28, s3, {7*t}')
            if t==3:
                k('s_cmp_ge_u32 s28, 25'); k(f's_cbranch_scc1 {lab}')
            k('s_lshl_b32 s29, s28, 10'); k(f's_add_u32 s30, s29, {L_WKV}')
            k('s_mov_b32 m0, s30')
            k(f'buffer_load_dwordx4 v{V_L16}, s[{SB}:{SB+3}], s29 offen lds')
            k(lab+':')
        k(f's_mul_i32 s28, s7, 102400'); k(f's_add_u32 s28, s28, {WQF}')
        k('s_lshl_b32 s29, s3, 10'); k('s_add_u32 s28, s28, s29')
        for n in range(15):
            lab=None
            if n==14:
                lab=k.lab('dl'); k('s_cmp_ge_u32 s3, 2'); k(f's_cbranch_scc1 {lab}')
            k('s_mov_b32 m0, s29')
            k(f'buffer_load_dwordx4 v{V_L16}, s[{WS}:{WS+3}], s28 offen sc1 lds')
            if n<14:
                k('s_add_u32 s28, s28, 7168'); k('s_add_u32 s29, s29, 7168')
            if lab: k(lab+':')
        k(end+':')
    def tlb_warm(self):
        k=self.k
        lab=k.lab('tw')
        k('s_cmp_lg_u32 s3, 6'); k(f's_cbranch_scc1 {lab}')
        k(f'v_lshlrev_b32 v200, 19, v{V_LANE}')
        k(f'buffer_load_dword v201, v200, s[{WS}:{WS+3}], 0 offen')
        for ptr,size in ((P_W1,640*3456),(P_W2,1728*1280),(P_OUT,2048*1280),(P_WO,640*1280),(P_B1,3456),(P_B2,1280)):
            srd(k,SA,ptr,size)
            k(f'buffer_load_dword v201, v200, s[{SA}:{SA+3}], 0 offen')
        if 'cpf' in os.environ.get('XP',''):
            k('s_getpc_b64 s[56:57]')
            k('mega_code_here:')
            k('s_mov_b32 s28, mega_code_end-mega_code_here-4')
            k(f'v_lshlrev_b32 v200, 7, v{V_LANE}')
            for n in range(8):
                k('v_min_u32 v202, s28, v200')
                k('global_load_dword v201, v202, s[56:57]')
                k('v_add_u32 v200, 8192, v200')
        k(lab+':')

    def frag_gemm(self, frags, WR, depth, nread, after=None):
        k=self.k
        n=len(frags); slots=depth+1
        reg=lambda i: WR+(i%slots)*4
        def issue(i):
            if frags[i].get('pre'): frags[i]['pre']()
            frags[i]['read'](reg(i))
        for i in range(min(depth,n)): issue(i)
        for i in range(n):
            if i+depth<n: issue(i+depth)
            rem=min(depth,n-1-i)
            w=f's_waitcnt lgkmcnt({rem*nread})'
            vm=frags[i].get('vm')
            if vm is not None:
                v=vm() if callable(vm) else vm
                if v is not None: w+=f' vmcnt({v})'
            k(w)
            frags[i]['mfma'](reg(i))
            if after and i in after: after[i]()

    def diag_stats(self,SX,SQ,S0,S1,tmp):
        k=self.k
        k(f'v_and_b32 v{tmp}, 3, v{V_LANE}')
        k(f'v_mov_b32 v{S1}, v{SQ}')
        for r in (1,2,3):
            k(f'v_cmp_eq_u32 vcc, {r}, v{tmp}'); k(f'v_cndmask_b32 v{S1}, v{S1}, v{SQ+r}, vcc')
        k(f'v_mov_b32 v{S0}, v{SX}')
    def diag_mask_on(self):
        k=self.k
        k('s_mov_b32 exec_lo, 0x00f0000f'); k('s_mov_b32 exec_hi, 0xf0000f00')
    def reduce_pairs(self, ACC, tmp, base):
        k=self.k
        k('s_mul_i32 s28, s4, 5120')
        k(f's_add_u32 s28, s28, {base}')
        k(f'v_add_u32 v{tmp}, s28, v{V_L16}')
        l1=k.lab('r1'); l2=k.lab('r2')
        k('s_cmp_eq_u32 s5, 1'); k(f's_cbranch_scc1 {l1}')
        for ft in (3,4): k(f'ds_write_b128 v{tmp}, v[{ACC+4*ft}:{ACC+4*ft+3}] offset:{ft*1024}')
        k(f's_branch {l2}')
        k(l1+':')
        for ft in (0,1,2): k(f'ds_write_b128 v{tmp}, v[{ACC+4*ft}:{ACC+4*ft+3}] offset:{ft*1024}')
        for i in range(8): k(f'v_mov_b32 v{ACC+i}, v{ACC+12+i}')
        k(l2+':')
    def reduce_pairs_finish(self, ACC, tmp, T):
        k=self.k
        k('s_mul_i32 s29, s5, 3072')
        k(f'v_add_u32 v{tmp}, s29, v{tmp}')
        for j in range(3): k(f'ds_read_b128 v[{T+4*j}:{T+4*j+3}], v{tmp} offset:{j*1024}')
        k('s_waitcnt lgkmcnt(0)')
        for i in range(12): k(f'v_add_f32 v{ACC+i}, v{ACC+i}, v{T+i}')

    def tile_offsets(self, sbase):
        k=self.k
        k('s_lshl_b32 s28, s6, 2'); k('s_add_u32 s28, s28, s4'); k('s_mul_i32 s28, s28, 20480')
        k('s_mul_i32 s29, s7, 5'); k('s_mul_i32 s30, s5, 3'); k('s_add_u32 s29, s29, s30')
        for j in range(3):
            k(f's_add_u32 s30, s29, {j}'); k('s_lshl_b32 s30, s30, 9')
            k(f's_add_u32 s{sbase+j}, s30, s28')

    def x_loads(self,XF,n,base_const,layer_stride,KS,per_half):
        k=self.k
        k('s_lshl_b32 s28, s6, 2'); k('s_add_u32 s28, s28, s4'); k(f's_mul_i32 s28, s28, {KS}'); k(f's_mul_i32 s29, s5, {per_half}'); k('s_add_u32 s28, s28, s29')
        k('s_lshl_b32 s28, s28, 10')
        if layer_stride:
            k(f's_mul_i32 s29, s12, {layer_stride}'); k('s_add_u32 s28, s28, s29')
        k(f's_add_u32 s28, s28, {base_const}')
        for i in range(n):
            k(f'buffer_load_dwordx4 v[{XF+4*i}:{XF+4*i+3}], v{V_L16}, s[{WS}:{WS+3}], s28 offen offset:{(i%4)*1024} sc1')
            if i%4==3: k('s_add_u32 s28, s28, 4096')

    def kv_flag(self,T):
        k=self.k
        nkf=k.lab('nkf')
        k('s_lshr_b32 s28, s7, 1'); k('s_cmp_lg_u32 s28, s4'); k(f's_cbranch_scc1 {nkf}')
        k('s_waitcnt vmcnt(0)')
        k('s_add_u32 s28, s13, 1'); k(f'v_mov_b32 v{T+5}, s28')
        k('s_lshl_b32 s29, s6, 6'); k('s_lshl_b32 s30, s7, 3'); k('s_add_u32 s29, s29, s30'); k('s_lshl_b32 s30, s5, 2'); k('s_add_u32 s29, s29, s30')
        k(f's_add_u32 s29, s29, {KVFLG}')
        k(f'v_mov_b32 v{T+6}, s29')
        k('s_mov_b64 exec, 1')
        k(f'buffer_store_dword v{T+5}, v{T+6}, s[{WS}:{WS+3}], 0 offen sc1')
        k('s_mov_b64 exec, -1')
        k(nkf+':')
    def kv_first(self,XF,WR,KVA,KVC,ONES,SX,SQ,T):
        k=self.k
        nokv=k.lab('nokv')
        S0,S1=T+2,T+3
        k('s_lshr_b32 s28, s7, 1'); k('s_cmp_lg_u32 s28, s4'); k(f's_cbranch_scc1 {nokv}')
        k(f'v_lshrrev_b32 v{T+4}, 2, v{V_F}'); k(f'v_lshl_add_u32 v{T+4}, v{V_G}, 3, v{T+4}'); k(f'v_mul_u32_u24 v{T+4}, 40, v{T+4}')
        k(f'v_and_b32 v{T+5}, 3, v{V_LANE}'); k(f'v_lshl_add_u32 v{T+4}, v{T+5}, 3, v{T+4}')
        k('s_mul_i32 s28, s5, 12800'); k(f's_add_u32 s28, s28, {L_WKV}'); k(f'v_add_u32 v{T+4}, s28, v{T+4}')
        kvd=k.lab('kvd')
        vl={(v,c):k.lab('kvv') for v in (0,1) for c in (0,1)}
        k('s_and_b32 s28, s7, 1'); k('s_lshl_b32 s28, s28, 1'); k('s_add_u32 s28, s28, s12')
        for idx,(v,c) in enumerate(((0,1),(0,0),(1,1))):
            k(f's_cmp_eq_u32 s28, {idx}'); k(f's_cbranch_scc1 {vl[(v,c)]}')
        k(f's_branch {vl[(1,0)]}')
        for (variant,with_cs),lab in vl.items():
            k(lab+':')
            fr=[]
            for i in range(10):
                for u in range(2):
                    def rd(r,i=i,u=u):
                        k(f'ds_read_b64_tr_b16 v[{r}:{r+1}], v{T+4} offset:{i*1280+u*32}')
                        k(f'ds_read_b64_tr_b16 v[{r+2}:{r+3}], v{T+4} offset:{i*1280+160+u*32}')
                    def mf(r,i=i,u=u,variant=variant,with_cs=with_cs):
                        c=KVA+4*u; cc=KVC+4*u
                        cs='0' if i==0 else f'v[{c}:{c+3}]'; cs2='0' if i==0 else f'v[{cc}:{cc+3}]'
                        X=f'v[{XF+4*i}:{XF+4*i+3}]'; W=f'v[{r}:{r+3}]'; O_=f'v[{ONES}:{ONES+3}]'
                        if variant==0:
                            k(f'v_mfma_f32_16x16x32_bf16 v[{c}:{c+3}], {W}, {X}, {cs}')
                            if with_cs: k(f'v_mfma_f32_16x16x32_bf16 v[{cc}:{cc+3}], {W}, {O_}, {cs2}')
                        else:
                            k(f'v_mfma_f32_16x16x32_bf16 v[{c}:{c+3}], {X}, {W}, {cs}')
                            if with_cs: k(f'v_mfma_f32_16x16x32_bf16 v[{cc}:{cc+3}], {O_}, {W}, {cs2}')
                        if u==0:
                            a0='0' if i==0 else f'v[{SX}:{SX+3}]'
                            k(f'v_mfma_f32_16x16x32_bf16 v[{SX}:{SX+3}], {O_}, {X}, {a0}')
                        else:
                            a0='0' if i==0 else f'v[{SQ}:{SQ+3}]'
                            k(f'v_mfma_f32_16x16x32_bf16 v[{SQ}:{SQ+3}], {X}, {X}, {a0}')
                    fr.append(dict(read=rd,mfma=mf,vm=((9-i) if (u==0 and not with_cs) else None)))
            self.frag_gemm(fr,WR,7,2)
            k(f's_branch {kvd}')
        k(kvd+':')
        nz=k.lab('nz'); pl=k.lab('npl'); pd=k.lab('npd')
        k('s_cmp_lg_u32 s12, 0'); k(f's_cbranch_scc1 {nz}')
        k('s_mov_b32 s30, 0')
        k(pl+':')
        k('s_waitcnt vmcnt(0)')
        k('v_cmp_eq_u32 vcc, 0, v201')
        k(f's_cbranch_vccz {pd}')
        k('v_mov_b32 v200, 0')
        k('buffer_load_dword v201, v200, s[60:63], 0 offen sc1')
        k('s_add_u32 s30, s30, 1'); k('s_cmp_lt_u32 s30, 0x40000'); k(f's_cbranch_scc1 {pl}')
        k('s_waitcnt vmcnt(0)')
        k(pd+':')
        k('v_readfirstlane_b32 s13, v201')
        k(f'v_mov_b32 v200, {L_NONCE}')
        k('ds_write_b32 v200, v201')
        k(nz+':')
        self.diag_stats(SX,SQ,S0,S1,T+6)
        k('s_lshl_b32 s28, s4, 8'); k('s_lshl_b32 s29, s5, 7'); k('s_add_u32 s28, s28, s29'); k(f's_add_u32 s28, s28, {L_STAT}')
        k(f'v_lshl_add_u32 v{T+6}, v{V_F}, 3, s28')
        self.diag_mask_on()
        k(f'ds_write_b64 v{T+6}, v[{S0}:{S1}]')
        k('s_mov_b64 exec, -1')
        k(f'v_add_u32 v{T+5}, {L_KVR}, v{V_L16}')
        a=k.lab('ka'); b_=k.lab('kb')
        k('s_cmp_eq_u32 s5, 1'); k(f's_cbranch_scc1 {a}')
        k(f'ds_write_b128 v{T+5}, v[{KVA+4}:{KVA+7}] offset:2048'); k(f'ds_write_b128 v{T+5}, v[{KVC+4}:{KVC+7}] offset:3072')
        k(f's_branch {b_}')
        k(a+':')
        k(f'ds_write_b128 v{T+5}, v[{KVA}:{KVA+3}]'); k(f'ds_write_b128 v{T+5}, v[{KVC}:{KVC+3}] offset:1024')
        for i in range(4):
            k(f'v_mov_b32 v{KVA+i}, v{KVA+4+i}'); k(f'v_mov_b32 v{KVC+i}, v{KVC+4+i}')
        k(b_+':')
        k('s_add_u32 s28, s13, 1'); k(f'v_mov_b32 v{T+6}, s28')
        k('s_lshl_b32 s29, s5, 2'); k(f's_add_u32 s29, s29, {L_PAIRF}'); k(f'v_mov_b32 v{T+7}, s29')
        k('s_waitcnt lgkmcnt(0)')
        k(f'ds_write_b32 v{T+7}, v{T+6}')
        k(f'v_xor_b32 v{T+7}, 4, v{T+7}')
        sp=k.lab('pr'); spd=k.lab('prd')
        k('s_mov_b32 s30, 0')
        k(sp+':')
        k(f'ds_read_b32 v{T+8}, v{T+7}')
        k('s_waitcnt lgkmcnt(0)')
        k(f'v_cmp_eq_u32 vcc, s28, v{T+8}')
        k(f's_cbranch_vccnz {spd}')
        k('s_add_u32 s30, s30, 1'); k('s_cmp_lt_u32 s30, 0x100000'); k(f's_cbranch_scc1 {sp}')
        k(spd+':')
        KW=WR
        k('s_lshl_b32 s28, s5, 11'); k(f's_add_u32 s28, s28, {L_KVR}')
        k(f'v_add_u32 v{T+5}, s28, v{V_L16}')
        k(f'ds_read_b128 v[{KW}:{KW+3}], v{T+5}'); k(f'ds_read_b128 v[{KW+4}:{KW+7}], v{T+5} offset:1024')
        k('s_lshl_b32 s28, s4, 8'); k(f's_add_u32 s28, s28, {L_STAT}')
        k(f'v_lshl_add_u32 v{T+6}, v{V_F}, 3, s28')
        k(f'ds_read_b64 v[{T+10}:{T+11}], v{T+6}'); k(f'ds_read_b64 v[{T+12}:{T+13}], v{T+6} offset:128')
        k('s_lshl_b32 s28, s5, 10'); k(f's_add_u32 s28, s28, {L_KVCS}'); k(f'v_add_u32 v{T+7}, s28, v{V_L16}')
        c0=k.lab('c0'); c1=k.lab('c1')
        k('s_cmp_eq_u32 s12, 0'); k(f's_cbranch_scc1 {c0}')
        k(f'ds_read_b128 v[{KVC}:{KVC+3}], v{T+7}')
        k('s_waitcnt lgkmcnt(0)')
        k(f's_branch {c1}')
        k(c0+':')
        k('s_waitcnt lgkmcnt(0)')
        for i in range(4): k(f'v_add_f32 v{KVC+i}, v{KVC+i}, v{KW+4+i}')
        k(f'ds_write_b128 v{T+7}, v[{KVC}:{KVC+3}]')
        k(c1+':')
        for i in range(4): k(f'v_add_f32 v{KVA+i}, v{KVA+i}, v{KW+i}')
        MEAN,RSTD=T+14,T+15
        k(f'v_add_f32 v{T+10}, v{T+10}, v{T+12}'); k(f'v_add_f32 v{T+11}, v{T+11}, v{T+13}')
        k(f'v_mul_f32 v{MEAN}, {hex(f2u(1/640))}, v{T+10}'); k(f'v_mul_f32 v{T+11}, {hex(f2u(1/640))}, v{T+11}')
        k(f'v_fma_f32 v{T+11}, -v{MEAN}, v{MEAN}, v{T+11}'); k(f'v_max_f32 v{T+11}, 0, v{T+11}')
        k(f'v_add_f32 v{T+11}, {hex(f2u(1e-5))}, v{T+11}'); k(f'v_rsq_f32 v{RSTD}, v{T+11}')
        k(f'v_mul_f32 v{MEAN}, v{MEAN}, v{RSTD}')
        k('s_lshl_b32 s30, s6, 6'); k('s_lshl_b32 s31, s4, 4'); k('s_add_u32 s30, s30, s31')
        k('s_lshr_b32 s31, s30, 5'); k('s_mul_i32 s31, s31, 3584')
        k(f's_mul_i32 s32, s12, {KV_D}'); k('s_add_u32 s31, s31, s32'); k(f's_add_u32 s31, s31, {KVB[0]}')
        k('s_lshr_b32 s32, s30, 4'); k('s_and_b32 s32, s32, 1')
        isv2=k.lab('isv2')
        k('s_and_b32 s28, s7, 1'); k('s_cmp_eq_u32 s28, 1'); k(f's_cbranch_scc1 {isv2}')
        for i in range(4):
            k(f'v_mul_f32 v{KVA+i}, v{KVA+i}, v{RSTD}'); k(f'v_fma_f32 v{KVA+i}, -v{MEAN}, v{KVC+i}, v{KVA+i}')
        k('s_lshl_b32 s28, s5, 2'); k(f'v_add_u32 v{T+6}, s28, v{V_G}')
        k(f'v_cmp_eq_u32 vcc, 5, v{T+6}')
        for i in range(4): k(f'v_cndmask_b32 v{KVA+i}, v{KVA+i}, 0, vcc')
        k(f'v_cvt_pk_bf16_f32 v{KVA}, v{KVA}, v{KVA+1}'); k(f'v_cvt_pk_bf16_f32 v{KVA+1}, v{KVA+2}, v{KVA+3}')
        k('s_lshl_b32 s28, s32, 4'); k(f'v_add_u32 v{T+7}, s28, v{V_F}')
        k(f'v_lshrrev_b32 v{T+8}, 1, v{T+6}'); k(f'v_lshlrev_b32 v{T+8}, 9, v{T+8}')
        k(f'v_lshl_add_u32 v{T+8}, v{T+7}, 4, v{T+8}')
        k(f'v_and_b32 v{T+9}, 1, v{T+6}'); k(f'v_lshl_add_u32 v{T+8}, v{T+9}, 3, v{T+8}')
        k(f'v_subrev_u32 v{T+9}, 4, v{T+6}'); k(f'v_lshlrev_b32 v{T+9}, 8, v{T+9}')
        k(f'v_lshl_add_u32 v{T+9}, v{T+7}, 3, v{T+9}'); k(f'v_add_u32 v{T+9}, 3072, v{T+9}')
        k(f'v_cmp_gt_u32 vcc, 4, v{T+6}'); k(f'v_cndmask_b32 v{T+8}, v{T+9}, v{T+8}, vcc')
        k(f'v_cmp_gt_u32 vcc, 6, v{T+6}'); k(f'v_mov_b32 v{T+9}, {OOB}'); k(f'v_cndmask_b32 v{T+8}, v{T+9}, v{T+8}, vcc')
        k(f'buffer_store_dwordx2 v[{KVA}:{KVA+1}], v{T+8}, s[{WS}:{WS+3}], s31 offen sc1')
        k(f's_branch {nokv}')
        k(isv2+':')
        k('s_lshl_b32 s28, s4, 8'); k(f's_add_u32 s28, s28, {L_STAT}')
        k(f'v_lshl_add_u32 v{T+6}, v{V_G}, 5, s28')
        Y=WR+8
        k(f'ds_read_b128 v[{Y}:{Y+3}], v{T+6}'); k(f'ds_read_b128 v[{Y+4}:{Y+7}], v{T+6} offset:16')
        k(f'ds_read_b128 v[{Y+8}:{Y+11}], v{T+6} offset:128'); k(f'ds_read_b128 v[{Y+12}:{Y+15}], v{T+6} offset:144')
        k('s_waitcnt lgkmcnt(0)')
        for i in range(4):
            s_,q_=Y+2*i,Y+2*i+1
            k(f'v_add_f32 v{s_}, v{s_}, v{s_+8}'); k(f'v_add_f32 v{q_}, v{q_}, v{q_+8}')
            k(f'v_mul_f32 v{s_}, {hex(f2u(1/640))}, v{s_}'); k(f'v_mul_f32 v{q_}, {hex(f2u(1/640))}, v{q_}')
            k(f'v_fma_f32 v{q_}, -v{s_}, v{s_}, v{q_}'); k(f'v_max_f32 v{q_}, 0, v{q_}'); k(f'v_add_f32 v{q_}, {hex(f2u(1e-5))}, v{q_}')
            k(f'v_rsq_f32 v{q_}, v{q_}')
            k(f'v_fma_f32 v{KVA+i}, -v{s_}, v{KVC+i}, v{KVA+i}')
            k(f'v_mul_f32 v{KVA+i}, v{KVA+i}, v{q_}')
        k('s_lshl_b32 s28, s5, 4'); k(f'v_add_u32 v{T+6}, s28, v{V_F}')
        k(f'v_cmp_eq_u32 vcc, 20, v{T+6}')
        for i in range(4): k(f'v_cndmask_b32 v{KVA+i}, v{KVA+i}, 1.0, vcc')
        k(f'v_cmp_lt_u32 vcc, 20, v{T+6}')
        for i in range(4): k(f'v_cndmask_b32 v{KVA+i}, v{KVA+i}, 0, vcc')
        k(f'v_cvt_pk_bf16_f32 v{KVA}, v{KVA}, v{KVA+1}'); k(f'v_cvt_pk_bf16_f32 v{KVA+1}, v{KVA+2}, v{KVA+3}')
        k('s_lshl_b32 s28, s32, 10'); k('s_add_u32 s28, s28, 1024')
        k(f'v_and_b32 v{T+7}, 1, v{V_G}'); k(f'v_lshlrev_b32 v{T+7}, 9, v{T+7}')
        k(f'v_lshl_add_u32 v{T+7}, v{T+6}, 4, v{T+7}')
        k(f'v_lshrrev_b32 v{T+8}, 1, v{V_G}'); k(f'v_lshl_add_u32 v{T+7}, v{T+8}, 3, v{T+7}')
        k(f'v_add_u32 v{T+7}, s28, v{T+7}')
        k(f'buffer_store_dwordx2 v[{KVA}:{KVA+1}], v{T+7}, s[{WS}:{WS+3}], s31 offen sc1')
        k(nokv+':')

    def phase_qkv(self):
        k=self.k
        XF,WR,ACC,CSA,KVA,KVC,ONES,T=24,64,96,116,124,132,140,144
        SX,SQ=176,180
        l0=k.lab('x0'); l1=k.lab('x1')
        for i in range(4): k(f'v_mov_b32 v{ONES+i}, 0x3f803f80')
        k('s_cmp_eq_u32 s12, 0'); k(f's_cbranch_scc1 {l0}')
        self.x_loads(XF,10,X2B,0,20,10)
        k('s_waitcnt vmcnt(9)')
        k('s_barrier')
        k(f's_branch {l1}')
        k(l0+':')
        nk=k.lab('nk')
        k('s_lshr_b32 s28, s7, 1'); k('s_cmp_lg_u32 s28, s4'); k(f's_cbranch_scc1 {nk}')
        k('s_waitcnt vmcnt(0)')
        k('v_mov_b32 v200, 0')
        k('buffer_load_dword v201, v200, s[60:63], 0 offen sc1')
        k(nk+':')
        k(l1+':')
        self.mark("q.start")
        self.kv_first(XF,WR,KVA,KVC,ONES,SX,SQ,T)
        self.mark("q.kv")
        l2=k.lab('l2')
        k('s_cmp_lg_u32 s12, 0'); k(f's_cbranch_scc1 {l2}')
        k('s_waitcnt vmcnt(0)')
        self.kv_flag(T)
        k('s_waitcnt lgkmcnt(0)')
        k('s_barrier')
        k(f'v_mov_b32 v200, {L_NONCE}')
        k('ds_read_b32 v201, v200')
        k('s_waitcnt lgkmcnt(0)')
        k('v_readfirstlane_b32 s13, v201')
        self.mark("q.b2")
        self.conv_issue(L_RED,self.CONV_A+self.CONV_B)
        self.mark("q.ci")
        k(l2+':')
        vA,vC=T,T+1
        S0,S1=T+2,T+3
        k('s_mul_i32 s28, s5, 51200')
        k(f'v_add_u32 v{vA}, s28, v{V_TR}')
        k('s_lshl_b32 s29, s4, 5')
        k(f'v_add_u32 v{vC}, s29, v{vA}')
        def stat_mfma(i,ft):
            X=f'v[{XF+4*i}:{XF+4*i+3}]'
            if ft==0:
                cs='0' if i==0 else f'v[{SX}:{SX+3}]'
                k(f'v_mfma_f32_16x16x32_bf16 v[{SX}:{SX+3}], v[{ONES}:{ONES+3}], {X}, {cs}')
            if ft==2:
                cs='0' if i==0 else f'v[{SQ}:{SQ+3}]'
                k(f'v_mfma_f32_16x16x32_bf16 v[{SQ}:{SQ+3}], {X}, {X}, {cs}')
        def mk(with_cs):
            fr=[]
            if not with_cs:
                k('s_mul_i32 s28, s5, 10240'); k(f'v_add_u32 v{vA}, s28, v{V_L16}'); k(f'v_add_u32 v{vC}, 61440, v{vA}')
                for i in range(10):
                    for ft in range(5):
                        va,imm=(vA,ft*20480+i*1024) if ft<3 else (vC,(ft-3)*20480+i*1024)
                        def rd(r,va=va,imm=imm): k(f'ds_read_b128 v[{r}:{r+3}], v{va} offset:{imm}')
                        def mf(r,i=i,ft=ft):
                            c=ACC+4*ft; cs='0' if i==0 else f'v[{c}:{c+3}]'
                            k(f'v_mfma_f32_16x16x32_bf16 v[{c}:{c+3}], v[{r}:{r+3}], v[{XF+4*i}:{XF+4*i+3}], {cs}')
                            stat_mfma(i,ft)
                        fr.append(dict(read=rd,mfma=mf,vm=(9-i) if ft==0 else None))
                self.frag_gemm(fr,WR,7,1)
                return
            for i in range(10):
                for ft in range(5):
                    def rd(r,i=i,ft=ft):
                        k(f'ds_read_b64_tr_b16 v[{r}:{r+1}], v{vA} offset:{i*5120+ft*32}')
                        k(f'ds_read_b64_tr_b16 v[{r+2}:{r+3}], v{vA} offset:{i*5120+1280+ft*32}')
                    def mf(r,i=i,ft=ft):
                        c=ACC+4*ft; cs='0' if i==0 else f'v[{c}:{c+3}]'
                        k(f'v_mfma_f32_16x16x32_bf16 v[{c}:{c+3}], v[{r}:{r+3}], v[{XF+4*i}:{XF+4*i+3}], {cs}')
                        if ft==4:
                            cs='0' if i==0 else f'v[{CSA+4}:{CSA+7}]'
                            k(f'v_mfma_f32_16x16x32_bf16 v[{CSA+4}:{CSA+7}], v[{r}:{r+3}], v[{ONES}:{ONES+3}], {cs}')
                        stat_mfma(i,ft)
                    fr.append(dict(read=rd,mfma=mf))
                def rd(r,i=i):
                    k(f'ds_read_b64_tr_b16 v[{r}:{r+1}], v{vC} offset:{i*5120}')
                    k(f'ds_read_b64_tr_b16 v[{r+2}:{r+3}], v{vC} offset:{i*5120+1280}')
                def mf(r,i=i):
                    cs='0' if i==0 else f'v[{CSA}:{CSA+3}]'
                    k(f'v_mfma_f32_16x16x32_bf16 v[{CSA}:{CSA+3}], v[{r}:{r+3}], v[{ONES}:{ONES+3}], {cs}')
                fr.append(dict(read=rd,mfma=mf))
            self.frag_gemm(fr,WR,7,2)
        m1=k.lab('m1'); m2=k.lab('m2')
        k('s_cmp_eq_u32 s12, 0'); k(f's_cbranch_scc0 {m1}')
        mk(True)
        k('s_mul_i32 s28, s5, 320'); k(f's_add_u32 s28, s28, {L_CS}')
        k(f'v_lshl_add_u32 v{T+7}, v{V_G}, 4, s28')
        k('s_lshl_b32 s29, s4, 6'); k(f'v_add_u32 v{T+8}, s29, v{T+7}')
        k(f'ds_write_b128 v{T+8}, v[{CSA}:{CSA+3}]')
        k(f'ds_write_b128 v{T+7}, v[{CSA+4}:{CSA+7}] offset:256')
        k(f's_branch {m2}')
        k(m1+':')
        mk(False)
        k(m2+':')
        self.mark("q.main")
        l3=k.lab('l3'); l4=k.lab('l4')
        k('s_cmp_eq_u32 s12, 0'); k(f's_cbranch_scc1 {l3}')
        self.kv_flag(T)
        k(f's_mov_b32 s43, {L_RED}')
        k(f's_branch {l4}')
        k(l3+':')
        k('s_waitcnt vmcnt(0)')
        self.mark("q.cw")
        self.conv_finish(200,L_RED)
        k(f's_mov_b32 s43, {L_WKV}')
        k(l4+':')
        self.mark("q.mm")
        self.diag_stats(SX,SQ,S0,S1,T+6)
        k('s_lshl_b32 s28, s4, 8'); k('s_lshl_b32 s29, s5, 7'); k('s_add_u32 s28, s28, s29'); k(f's_add_u32 s28, s28, {L_STAT}')
        k(f'v_lshl_add_u32 v{T+6}, v{V_F}, 3, s28')
        self.diag_mask_on()
        k(f'ds_write_b64 v{T+6}, v[{S0}:{S1}]')
        k('s_mov_b64 exec, -1')
        self.reduce_pairs(ACC,T+9,'s43')
        k('s_waitcnt lgkmcnt(0)')
        k('s_barrier')
        Z=XF
        k('s_lshl_b32 s28, s4, 8'); k(f's_add_u32 s28, s28, {L_STAT}')
        k(f'v_lshl_add_u32 v{T+6}, v{V_F}, 3, s28')
        k(f'ds_read_b64 v[{T+10}:{T+11}], v{T+6}'); k(f'ds_read_b64 v[{T+12}:{T+13}], v{T+6} offset:128')
        k('s_mul_i32 s28, s5, 192'); k(f's_add_u32 s28, s28, {L_CS}')
        k(f'v_lshl_add_u32 v{T+7}, v{V_G}, 4, s28')
        CS0=Z+12
        for j in range(3):
            k(f'ds_read_b128 v[{CS0+8*j}:{CS0+8*j+3}], v{T+7} offset:{j*64}')
            k(f'ds_read_b128 v[{CS0+8*j+4}:{CS0+8*j+7}], v{T+7} offset:{320+j*64}')
        self.reduce_pairs_finish(ACC,T+9,Z)
        MEAN,RSTD=T+14,T+15
        k(f'v_add_f32 v{T+10}, v{T+10}, v{T+12}'); k(f'v_add_f32 v{T+11}, v{T+11}, v{T+13}')
        k(f'v_mul_f32 v{MEAN}, {hex(f2u(1/640))}, v{T+10}'); k(f'v_mul_f32 v{T+11}, {hex(f2u(1/640))}, v{T+11}')
        k(f'v_fma_f32 v{T+11}, -v{MEAN}, v{MEAN}, v{T+11}'); k(f'v_max_f32 v{T+11}, 0, v{T+11}')
        k(f'v_add_f32 v{T+11}, {hex(f2u(1e-5))}, v{T+11}'); k(f'v_rsq_f32 v{RSTD}, v{T+11}')
        k(f'v_mul_f32 v{MEAN}, v{MEAN}, v{RSTD}')
        k(f'v_mul_f32 v{T+16}, {hex(f2u(QSCALE))}, v{RSTD}'); k(f'v_mul_f32 v{T+17}, {hex(f2u(QSCALE))}, v{MEAN}')
        k('s_lshl_b32 s28, s4, 4'); k(f'v_add_u32 v{T+18}, s28, v{V_F}'); k(f'v_mul_u32_u24 v{T+18}, 160, v{T+18}')
        k(f'v_lshl_add_u32 v{T+18}, v{V_G}, 3, v{T+18}')
        k('s_mul_i32 s28, s5, 96'); k(f's_add_u32 s28, s28, {L_QL}'); k(f'v_add_u32 v{T+18}, s28, v{T+18}')
        for j in range(3):
            if j==2:
                q3=k.lab('q3'); k('s_cmp_eq_u32 s5, 1'); k(f's_cbranch_scc1 {q3}')
            for i in range(4):
                r=ACC+4*j+i
                k(f'v_add_f32 v{CS0+8*j+i}, v{CS0+8*j+i}, v{CS0+8*j+4+i}')
                k(f'v_mul_f32 v{r}, v{r}, v{T+16}'); k(f'v_fma_f32 v{r}, -v{T+17}, v{CS0+8*j+i}, v{r}')
            k(f'v_cvt_pk_bf16_f32 v{ACC+4*j}, v{ACC+4*j}, v{ACC+4*j+1}'); k(f'v_cvt_pk_bf16_f32 v{ACC+4*j+1}, v{ACC+4*j+2}, v{ACC+4*j+3}')
            k(f'ds_write_b64 v{T+18}, v[{ACC+4*j}:{ACC+4*j+1}] offset:{j*32}')
            if j==2: k(q3+':')
        k('s_waitcnt lgkmcnt(0)')
        self.mark("q.epi")
        self.publish(1)
        self.mark("q.pub")

    def phase_attn(self):
        k=self.k
        D=4; SL=14
        Q1=[24,30]; Q2=[28,34]
        S=[36,52]; O=[68,84]; P=100
        KB=108
        K1=lambda s: KB+s*SL
        V=lambda s: KB+s*SL+4
        K2=lambda s: KB+s*SL+12
        T=KB+D*SL
        VL8=T; NEG=[176,192]
        k(f'v_mul_u32_u24 v{T+1}, 160, v{V_L31}')
        k('s_mul_i32 s28, s4, 40'); k(f's_add_u32 s28, s28, {L_QL}')
        k(f'v_add_u32 v{T+1}, s28, v{T+1}')
        k(f'v_lshl_add_u32 v{T+2}, v{V_H}, 4, v{T+1}')
        for q in range(2):
            k(f'ds_read_b64 v[{Q1[q]}:{Q1[q]+1}], v{T+2} offset:{q*5120}')
            k(f'ds_read_b64 v[{Q1[q]+2}:{Q1[q]+3}], v{T+2} offset:{q*5120+8}')
            k(f'ds_read_b64 v[{Q2[q]}:{Q2[q]+1}], v{T+1} offset:{q*5120+32}')
        k(f'v_lshlrev_b32 v{VL8}, 3, v{V_LANE}')
        if os.environ.get('MASKV','1')=='1':
            k(f'v_mov_b32 v217, {OOB}')
            k(f'v_cmp_eq_u32 vcc, 0, v{V_H}'); k(f'v_cndmask_b32 v{VL8}, v217, v{VL8}, vcc')
            k(f'v_cmp_ge_u32 vcc, 20, v{V_L31}'); k(f'v_cndmask_b32 v216, v217, v{V_L16}, vcc')
        k('s_waitcnt lgkmcnt(0)')
        k(f'v_cmp_eq_u32 vcc, 0, v{V_H}')
        for q in range(2):
            for i in range(2): k(f'v_cndmask_b32 v{Q2[q]+i}, 0, v{Q2[q]+i}, vcc')
        self.mark("a.dma")
        VFA,VF=T+6,T+7
        k(f'v_lshlrev_b32 v{VFA}, 2, v{V_LANE}'); k(f'v_add_u32 v{VFA}, {KVFLG}, v{VFA}')
        k('s_add_u32 s38, s13, 1')
        k('s_lshr_b32 s39, s6, 2')
        def spin_group(sg):
            lp=k.lab('sg'); dn=k.lab('sgd')
            k(f's_lshl_b32 s28, s{sg}, 8'); k('s_mov_b32 s30, 0')
            k(lp+':')
            k(f'buffer_load_dword v{VF}, v{VFA}, s[{WS}:{WS+3}], s28 offen sc1')
            k('s_waitcnt vmcnt(0)')
            k(f'v_subrev_u32 v{VF}, s38, v{VF}')
            k(f'v_cmp_le_u32 vcc, 32, v{VF}')
            k(f's_cbranch_vccz {dn}')
            k('s_sleep 2')
            k('s_add_u32 s30, s30, 1'); k('s_cmp_lt_u32 s30, 0x40000'); k(f's_cbranch_scc1 {lp}')
            k(dn+':')
        k(f'v_mov_b32 v{T+8}, {L_BADF}'); k(f'v_mov_b32 v{T+9}, 0'); k(f'ds_write_b32 v{T+8}, v{T+9}')
        k('s_mov_b32 s49, 0')
        k('s_waitcnt lgkmcnt(0)')
        pw=k.lab('pw')
        k(f's_cmp_lg_u32 s3, {POLLW}'); k(f's_cbranch_scc1 {pw}')
        spin_group(39)
        k(pw+':')
        k('s_barrier')
        self.mark("a.wait")
        KVS=' sc1' if os.environ.get('KVSC1') else ''
        MASKV=os.environ.get('MASKV','1')=='1'
        VVA=216 if MASKV else V_L16
        def ld(slot):
            k(f'buffer_load_dwordx4 v[{K1(slot)}:{K1(slot)+3}], v{V_L16}, s[{WS}:{WS+3}], s32 offen'+KVS)
            k(f'buffer_load_dwordx2 v[{K2(slot)}:{K2(slot)+1}], v{VL8}, s[{WS}:{WS+3}], s32 offen offset:3072'+KVS)
            k(f'buffer_load_dwordx4 v[{V(slot)}:{V(slot)+3}], v{VVA}, s[{WS}:{WS+3}], s32 offen offset:1024'+KVS)
            k(f'buffer_load_dwordx4 v[{V(slot)+4}:{V(slot)+7}], v{VVA}, s[{WS}:{WS+3}], s32 offen offset:2048'+KVS)
            k('s_add_u32 s32, s32, 7168')
        def run_loop(exact,prefetch):
            def qk1(q,s):
                c = f'v[{NEG[q]}:{NEG[q]+15}]' if exact else '0'
                k(f'v_mfma_f32_32x32x16_bf16 v[{S[q]}:{S[q]+15}], v[{K1(s)}:{K1(s)+3}], v[{Q1[q]}:{Q1[q]+3}], {c}')
            def qk2(q,s): k(f'v_mfma_f32_32x32x8_bf16 v[{S[q]}:{S[q]+15}], v[{K2(s)}:{K2(s)+1}], v[{Q2[q]}:{Q2[q]+1}], v[{S[q]}:{S[q]+15}]')
            def pv(q,s,hf): k(f'v_mfma_f32_32x32x16_bf16 v[{O[q]}:{O[q]+15}], v[{V(s)+4*hf}:{V(s)+4*hf+3}], v[{P+4*hf}:{P+4*hf+3}], v[{O[q]}:{O[q]+15}]')
            def ex(q,a):
                for i in range(a,a+4): k(f'v_exp_f32 v{S[q]+i}, v{S[q]+i}')
            def cv(q,a):
                k(f'v_cvt_pk_bf16_f32 v{P+a//2}, v{S[q]+a}, v{S[q]+a+1}')
                k(f'v_cvt_pk_bf16_f32 v{P+a//2+1}, v{S[q]+a+2}, v{S[q]+a+3}')
            k(f's_mul_i32 s33, s12, {KV_D}'); k(f's_add_u32 s33, s33, {KVB[0]}')
            k('s_mul_i32 s28, s5, 3584'); k('s_add_u32 s33, s33, s28')
            k(f's_mul_i32 s28, s39, {8*3584}'); k('s_add_u32 s32, s33, s28')
            k(f's_add_u32 s33, s33, {64*3584}')
            def fload():
                k('s_add_u32 s45, s45, 1'); k('s_and_b32 s45, s45, 7'); k('s_lshl_b32 s46, s45, 8')
                k(f'buffer_load_dword v{VF}, v{VFA}, s[{WS}:{WS+3}], s46 offen sc1')
            def fcheck():
                ok=k.lab('fok')
                k(f'v_subrev_u32 v{VF}, s38, v{VF}')
                k(f'v_cmp_le_u32 vcc, 32, v{VF}')
                k(f's_cbranch_vccz {ok}')
                spin_group(44)
                k(ok+':')
                k('s_cmp_ge_u32 s32, s33'); k(f's_cselect_b32 s28, {64*3584}, 0'); k('s_sub_u32 s32, s32, s28')
            k('s_mov_b32 s45, s39')
            fload(); k('s_mov_b32 s44, s45')
            for t in range(D-1): ld(t)
            for q in range(2):
                for i in range(16): k(f'v_mov_b32 v{O[q]+i}, 0')
            for i in range(4,8): k(f'v_mov_b32 v{P+i}, 0')
            for i in range(4,8): k(f'v_mov_b32 v{V(D-1)+i}, 0')
            k(f's_waitcnt vmcnt({4*(D-2)})')
            qk1(0,0); qk2(0,0)
            k('s_nop 7')
            spf = prefetch and 'spf' in os.environ.get('XP','')
            def body(dma, w1=None, prev_ops=None):
                ops=[]
                PR=os.environ.get('PRIO','')
                if PR=='alt':
                    pa=k.lab('pa'); pb=k.lab('pb')
                    k('s_add_u32 s47, s34, s5'); k('s_and_b32 s47, s47, 1'); k('s_cmp_eq_u32 s47, 0'); k(f's_cbranch_scc1 {pa}')
                    k('s_setprio 1'); k(f's_branch {pb}'); k(pa+':'); k('s_setprio 0'); k(pb+':')
                for t in range(D):
                    s=t; sn=(t+1)%D; sp=(t-1)%D
                    n=4
                    qk1(1,s); ex(0,0); pv(1,sp,1)
                    if t==1: fcheck()
                    if t==2:
                        fload(); n+=1
                    if dma and 'nowof' not in os.environ.get('XP',''):
                        k('s_min_u32 m0, s35, 101376')
                        k('s_add_u32 s37, s36, m0')
                        k(f'buffer_load_dwordx4 v{V_L16}, s[{WS}:{WS+3}], s37 offen sc1 lds')
                        k('s_add_u32 s35, s35, 8192'); n+=1
                    if w1 is not None:
                        for e in range(2): self.f1_wload(w1+2*t+e)
                        n+=2
                    ld(sp)
                    if t==2: k('s_mov_b32 s44, s45')
                    ex(0,4); cv(0,0); qk2(1,s); cv(0,4); ex(0,8); pv(0,s,0); ex(0,12); cv(0,8); cv(0,12)
                    ops.append(n)
                    if t>0: nv=ops[t-1]+ops[t]
                    elif prev_ops is not None: nv=prev_ops+ops[0]
                    else: nv=4+ops[0]
                    k(f's_waitcnt vmcnt({nv})')
                    qk1(0,sn); ex(1,0); pv(0,s,1); ex(1,4); cv(1,0); qk2(0,sn); cv(1,4); ex(1,8); pv(1,s,0); ex(1,12); cv(1,8); cv(1,12)
                return ops[-1]
            if spf:
                k('s_and_b32 s28, s6, 3'); k('s_lshl_b32 s28, s28, 3'); k('s_add_u32 s28, s28, s7'); k('s_lshl_b32 s28, s28, 3'); k('s_add_u32 s28, s28, s3')
                k('s_lshl_b32 s28, s28, 13'); k(f's_add_u32 s28, s28, {W1F}')
                k('s_add_u32 s62, s86, s28'); k('s_addc_u32 s63, s87, 0')
            if os.environ.get('PRIO','')=='young':
                py=k.lab('py'); k('s_cmp_eq_u32 s5, 0'); k(f's_cbranch_scc1 {py}'); k('s_setprio 1'); k(py+':')
            k('s_mov_b32 s34, 0')
            L1=k.lab('al'); k(L1+':')
            body(False)
            k('s_add_u32 s34, s34, 1'); k('s_cmp_lt_u32 s34, 4'); k(f's_cbranch_scc1 {L1}')
            if prefetch:
                nw=k.lab('nw')
                k('s_cmp_lg_u32 s12, 0'); k(f's_cbranch_scc1 {nw}')
                lw=k.lab('lw'); lwd=k.lab('lwd')
                k(f'v_lshrrev_b32 v208, 1, v{V_LANE}'); k('v_lshlrev_b32 v208, 6, v208')
                k(f'v_and_b32 v209, 1, v{V_LANE}'); k('v_lshl_add_u32 v208, v209, 4, v208')
                k('s_mov_b32 s30, 0')
                k(lw+':')
                k(f'buffer_load_dwordx4 v[212:215], v208, s[{WS}:{WS+3}], 0 offen offset:{FLG} sc1')
                k('s_waitcnt vmcnt(0)')
                for r in (212,213,214,215): k(f'v_subrev_u32 v{r}, s38, v{r}')
                k('v_max_u32 v212, v212, v213'); k('v_max_u32 v214, v214, v215'); k('v_max_u32 v212, v212, v214')
                k('v_cmp_le_u32 vcc, 32, v212')
                k(f's_cbranch_vccz {lwd}')
                k('s_add_u32 s30, s30, 1'); k('s_cmp_lt_u32 s30, 0x40000'); k(f's_cbranch_scc1 {lw}')
                k(lwd+':')
                k(nw+':')
                k('s_lshl_b32 s35, s3, 10')
                k(f's_mul_i32 s36, s7, 102400'); k(f's_add_u32 s36, s36, {WOF}')
            L2=k.lab('bl'); k(L2+':')
            last=body(prefetch)
            UNR=2 if (prefetch and self.F1R) else 0
            k('s_add_u32 s34, s34, 1'); k(f's_cmp_lt_u32 s34, {8-UNR}'); k(f's_cbranch_scc1 {L2}')
            if UNR:
                k('s_min_u32 s42, s40, 53'); k('s_mul_i32 s42, s42, 40960'); k(f's_add_u32 s42, s42, {W1F}')
                last=body(True,w1=0,prev_ops=last)
                body(True,w1=8,prev_ops=last)
            pv(1,D-1,1)
            if os.environ.get('PRIO',''): k('s_setprio 0')
            k('s_waitcnt vmcnt(0)')
        run_loop(False,True)
        self.mark("a.loop")
        COMBINE=k.lab('combine'); FALLBACK=k.lab('fallback')
        k(COMBINE+':')
        k('s_nop 7'); k('s_nop 7')
        c1=k.lab('c1'); c2=k.lab('c2')
        k('s_mul_i32 s28, s3, 3072'); k(f's_add_u32 s28, s28, {L_COMB}')
        k(f'v_add_u32 v{T+1}, s28, v{V_L16}')
        k('s_xor_b32 s29, s3, 4'); k('s_mul_i32 s29, s29, 3072'); k(f's_add_u32 s29, s29, {L_COMB}')
        k(f'v_add_u32 v{T+2}, s29, v{V_L16}')
        k('s_cmp_eq_u32 s5, 1'); k(f's_cbranch_scc1 {c1}')
        for r in range(3): k(f'ds_write_b128 v{T+1}, v[{O[1]+4*r}:{O[1]+4*r+3}] offset:{r*1024}')
        k(f's_branch {c2}')
        k(c1+':')
        for r in range(3): k(f'ds_write_b128 v{T+1}, v[{O[0]+4*r}:{O[0]+4*r+3}] offset:{r*1024}')
        for i in range(12): k(f'v_mov_b32 v{O[0]+i}, v{O[1]+i}')
        k(c2+':')
        k('s_waitcnt lgkmcnt(0)')
        k('s_barrier')
        for r in range(3): k(f'ds_read_b128 v[{S[1]+4*r}:{S[1]+4*r+3}], v{T+2} offset:{r*1024}')
        k('s_waitcnt lgkmcnt(0)')
        self.mark("a.comb")
        Oq=O[0]
        for i in range(12): k(f'v_add_f32 v{Oq+i}, v{Oq+i}, v{S[1]+i}')
        k(f'v_mov_b32 v{T+3}, v{Oq+8}'); k(f'v_mov_b32 v{T+4}, v{Oq+8}')
        k(f'v_permlane32_swap_b32 v{T+3}, v{T+4}')
        k(f'v_add_f32 v{T+3}, abs(v{Oq}), abs(v{Oq+1})')
        for i in range(2,12): k(f'v_add_f32 v{T+3}, abs(v{Oq+i}), v{T+3}')
        k(f's_mov_b32 s28, {hex(f2u(2.0**-30))}'); k(f's_mov_b32 s29, {hex(f2u(2.0**60))}'); k(f's_mov_b32 s30, {hex(f2u(2.0**120))}')
        k(f'v_cmp_nle_f32 s[44:45], s28, v{T+4}')
        k(f'v_cmp_nge_f32 s[46:47], s29, v{T+4}')
        k(f'v_cmp_ngt_f32 vcc, s30, v{T+3}')
        k('s_or_b64 s[44:45], s[44:45], s[46:47]'); k('s_or_b64 vcc, vcc, s[44:45]')
        okl=k.lab('okl')
        k(f's_cbranch_vccz {okl}')
        k(f'v_mov_b32 v{T+8}, {L_BADF}'); k(f'v_mov_b32 v{T+9}, 1'); k(f'ds_write_b32 v{T+8}, v{T+9}')
        k(okl+':')
        k(f'v_rcp_f32 v{T+4}, v{T+4}')
        for i in range(12): k(f'v_mul_f32 v{Oq+i}, v{Oq+i}, v{T+4}')
        PK=S[0]
        for p in range(6): k(f'v_cvt_pk_bf16_f32 v{PK+p}, v{Oq+2*p}, v{Oq+2*p+1}')
        k('s_mul_i32 s28, s4, 5')
        k(f'v_add_u32 v{T+5}, s28, v{V_H}')
        k(f'v_lshrrev_b32 v{T+6}, 4, v{V_L31}'); k('s_lshl_b32 s29, s5, 1'); k(f'v_add_u32 v{T+6}, s29, v{T+6}')
        k(f'v_mul_u32_u24 v{T+6}, 2560, v{T+6}'); k(f'v_lshl_add_u32 v{T+6}, v{V_F}, 4, v{T+6}'); k(f'v_add_u32 v{T+6}, {L_OIMG}, v{T+6}')
        for pc in range(3):
            g_=T+7
            if pc==0: k(f'v_mov_b32 v{g_}, v{T+5}')
            elif pc==1: k(f'v_add_u32 v{g_}, 2, v{T+5}')
            else:
                k(f'v_mov_b32 v{g_}, s28'); k(f'v_add_u32 v{g_}, 4, v{g_}')
            k(f'v_lshrrev_b32 v{T+8}, 1, v{g_}'); k(f'v_lshlrev_b32 v{T+8}, 8, v{T+8}')
            k(f'v_and_b32 v{T+9}, 1, v{g_}'); k(f'v_lshl_add_u32 v{T+8}, v{T+9}, 3, v{T+8}')
            k(f'v_add_u32 v{T+8}, v{T+8}, v{T+6}')
            if pc==2:
                k('s_mov_b32 exec_hi, 0')
            k(f'ds_write_b64 v{T+8}, v[{PK+2*pc}:{PK+2*pc+1}]')
            if pc==2: k('s_mov_b64 exec, -1')
        k('s_waitcnt lgkmcnt(0)')
        k('s_barrier')
        k(f'v_mov_b32 v{T+8}, {L_BADF}'); k(f'ds_read_b32 v{T+9}, v{T+8}')
        k('s_waitcnt lgkmcnt(0)')
        k(f'v_readfirstlane_b32 s28, v{T+9}')
        k('s_lshl_b32 s29, s49, 1'); k('s_cmp_gt_u32 s28, s29')
        k(f's_cbranch_scc1 {FALLBACK}')
        k(f's_mul_i32 s31, s12, {OF_D}'); k(f's_add_u32 s31, s31, {OFB[0]}')
        k('s_mul_i32 s28, s6, 81920'); k('s_add_u32 s31, s31, s28'); k('s_mul_i32 s28, s7, 2560'); k('s_add_u32 s31, s31, s28')
        for rnd in range(2):
            lab=k.lab('oc')
            if rnd==1:
                k('s_cmp_ge_u32 s3, 2'); k(f's_cbranch_scc1 {lab}')
            k('s_lshl_b32 s28, s3, 6'); k(f's_add_u32 s28, s28, {512*rnd}')
            k(f'v_add_u32 v{T+5}, s28, v{V_LANE}')
            k(f'v_lshlrev_b32 v{T+6}, 4, v{T+5}'); k(f'v_add_u32 v{T+6}, {L_OIMG}, v{T+6}')
            k(f'ds_read_b128 v[{PK}:{PK+3}], v{T+6}')
            k(f'v_mul_u32_u24 v{T+7}, 410, v{T+5}'); k(f'v_lshrrev_b32 v{T+7}, 16, v{T+7}')
            k(f'v_mul_u32_u24 v{T+8}, 160, v{T+7}'); k(f'v_sub_u32 v{T+8}, v{T+5}, v{T+8}')
            k(f'v_mul_u32_u24 v{T+7}, 20480, v{T+7}'); k(f'v_lshl_add_u32 v{T+7}, v{T+8}, 4, v{T+7}')
            k('s_waitcnt lgkmcnt(0)')
            k(f'buffer_store_dwordx4 v[{PK}:{PK+3}], v{T+7}, s[{WS}:{WS+3}], s31 offen sc1')
            k(lab+':')
        self.mark("a.epi")
        self.publish(2)
        self.mark("a.pub")
        AFTER=k.lab('after'); k(f's_branch {AFTER}')
        k(FALLBACK+':')
        k('s_barrier')
        def kvptr():
            k(f's_mul_i32 s32, s12, {KV_D}'); k(f's_add_u32 s32, s32, {KVB[0]}')
            k('s_mul_i32 s28, s5, 3584'); k('s_add_u32 s32, s32, s28')
        def mq1(q,c): k(f'v_mfma_f32_32x32x16_bf16 v[{S[q]}:{S[q]+15}], v[{K1(0)}:{K1(0)+3}], v[{Q1[q]}:{Q1[q]+3}], {c}')
        def mq2(q): k(f'v_mfma_f32_32x32x8_bf16 v[{S[q]}:{S[q]+15}], v[{K2(0)}:{K2(0)+1}], v[{Q2[q]}:{Q2[q]+1}], v[{S[q]}:{S[q]+15}]')
        MX=[T+10,T+11]
        for q in range(2): k(f'v_mov_b32 v{MX[q]}, 0xff800000')
        kvptr(); k('s_mov_b32 s34, 0')
        l1=k.lab('fb1'); k(l1+':')
        ld(0); k('s_waitcnt vmcnt(0)')
        for q in range(2):
            mq1(q,'0'); mq2(q)
        for q in range(2):
            for i in range(0,16,2): k(f'v_max3_f32 v{MX[q]}, v{S[q]+i}, v{S[q]+i+1}, v{MX[q]}')
        k('s_add_u32 s34, s34, 1'); k('s_cmp_lt_u32 s34, 32'); k(f's_cbranch_scc1 {l1}')
        for q in range(2):
            k(f'v_mov_b32 v{T+12}, v{MX[q]}'); k(f'v_permlane32_swap_b32 v{MX[q]}, v{T+12}'); k(f'v_max_f32 v{MX[q]}, v{MX[q]}, v{T+12}')
        k('s_lshl_b32 s28, s3, 9'); k(f's_add_u32 s28, s28, {L_COMB}')
        k(f'v_lshl_add_u32 v{T+12}, v{V_LANE}, 3, s28')
        k(f'ds_write_b64 v{T+12}, v[{MX[0]}:{MX[1]}]')
        k('s_waitcnt lgkmcnt(0)'); k('s_barrier')
        k('s_xor_b32 s28, s3, 4'); k('s_lshl_b32 s28, s28, 9'); k(f's_add_u32 s28, s28, {L_COMB}')
        k(f'v_lshl_add_u32 v{T+12}, v{V_LANE}, 3, s28')
        k(f'ds_read_b64 v[{T+14}:{T+15}], v{T+12}')
        k('s_waitcnt lgkmcnt(0)'); k('s_barrier')
        for q in range(2): k(f'v_max_f32 v{MX[q]}, v{MX[q]}, v{T+14+q}')
        for q in range(2):
            for i in range(16): k(f'v_sub_f32 v{NEG[q]+i}, 0, v{MX[q]}')
            for i in range(16): k(f'v_mov_b32 v{O[q]+i}, 0')
        kvptr(); k('s_mov_b32 s34, 0')
        l2=k.lab('fb2'); k(l2+':')
        ld(0); k('s_waitcnt vmcnt(0)')
        for q in range(2):
            mq1(q,f'v[{NEG[q]}:{NEG[q]+15}]'); mq2(q)
            for i in range(16): k(f'v_exp_f32 v{S[q]+i}, v{S[q]+i}')
            for p in range(8): k(f'v_cvt_pk_bf16_f32 v{P+p}, v{S[q]+2*p}, v{S[q]+2*p+1}')
            for hf in range(2):
                k(f'v_mfma_f32_32x32x16_bf16 v[{O[q]}:{O[q]+15}], v[{V(0)+4*hf}:{V(0)+4*hf+3}], v[{P+4*hf}:{P+4*hf+3}], v[{O[q]}:{O[q]+15}]')
        k('s_add_u32 s34, s34, 1'); k('s_cmp_lt_u32 s34, 32'); k(f's_cbranch_scc1 {l2}')
        if self.F1R:
            k('s_min_u32 s42, s40, 53'); k('s_mul_i32 s42, s42, 40960'); k(f's_add_u32 s42, s42, {W1F}')
            for e in range(16): self.f1_wload(e)
            k('s_waitcnt vmcnt(0)')
        k('s_mov_b32 s49, 1')
        k(f's_branch {COMBINE}')
        k(AFTER+':')

    def phase_oproj(self):
        k=self.k
        XF,WR,ACC,T=24,64,96,144
        if self.F1E:
            le=k.lab('le')
            k('s_cmp_ge_u32 s3, s41'); k(f's_cbranch_scc1 {le}')
            k('s_mul_i32 s42, s40, 40960'); k(f's_add_u32 s42, s42, {W1F}')
            for s in range(self.F1E): self.f1_wload(s)
            k(le+':')
        self.wait(2)
        self.mark("o.wait")
        self.x_loads(XF,10,OFB[0],OF_D,20,10)
        vA,vC=T,T+1
        k('s_mul_i32 s28, s5, 10240'); k(f'v_add_u32 v{vA}, s28, v{V_L16}'); k(f'v_add_u32 v{vC}, 61440, v{vA}')
        fr=[]
        for i in range(10):
            for ft in range(5):
                va,imm=(vA,ft*20480+i*1024) if ft<3 else (vC,(ft-3)*20480+i*1024)
                def rd(r,va=va,imm=imm): k(f'ds_read_b128 v[{r}:{r+3}], v{va} offset:{imm}')
                def mf(r,i=i,ft=ft):
                    c=ACC+4*ft; cs='0' if i==0 else f'v[{c}:{c+3}]'
                    k(f'v_mfma_f32_16x16x32_bf16 v[{c}:{c+3}], v[{r}:{r+3}], v[{XF+4*i}:{XF+4*i+3}], {cs}')
                fr.append(dict(read=rd,mfma=mf,vm=(9-i) if ft==0 else None))
        self.frag_gemm(fr,WR,7,1)
        self.mark("o.mm")
        self.reduce_pairs(ACC,T+9,L_ORED)
        k('s_waitcnt lgkmcnt(0)')
        k('s_barrier')
        self.reduce_pairs_finish(ACC,T+9,XF)
        self.mark("o.red")
        self.epilogue_res(ACC,T,X1B[0],X1_D,stats=True,bias=None,final=False)
        self.mark("o.epi")
        self.publish(3)
        self.mark("o.pub")
        self.fc1_early_w()

    def epilogue_res(self,ACC,T,dst,dst_d,stats,bias,final,vout=None):
        k=self.k
        self.tile_offsets(44)
        if dst_d:
            k(f's_mul_i32 s28, s12, {dst_d}'); k(f's_add_u32 s28, s28, {dst}')
        else: k(f's_mov_b32 s28, {dst}')
        for j in range(3): k(f's_add_u32 s{44+j}, s{44+j}, s28')
        k('s_mov_b32 s47, 0xffff0000')
        VD=T+15
        k(f'v_lshrrev_b32 v{VD}, 1, v{V_G}'); k(f'v_lshlrev_b32 v{VD}, 8, v{VD}'); k(f'v_lshl_add_u32 v{VD}, v{V_F}, 4, v{VD}')
        k(f'v_and_b32 v{T+14}, 1, v{V_G}'); k(f'v_lshl_add_u32 v{VD}, v{T+14}, 3, v{VD}')
        S0,S1=T+10,T+11
        if stats:
            k(f'v_mov_b32 v{S0}, 0'); k(f'v_mov_b32 v{S1}, 0'); k(f'v_mov_b32 v{T+12}, 0x3f803f80')
        skip=k.lab('e3')
        for j in range(3):
            if j==2:
                k('s_cmp_eq_u32 s5, 1'); k(f's_cbranch_scc1 {skip}')
            r=ACC+4*j
            k(f'v_lshlrev_b32 v{T}, 16, v{V_RES+2*j}'); k(f'v_and_b32 v{T+1}, s47, v{V_RES+2*j}')
            k(f'v_lshlrev_b32 v{T+2}, 16, v{V_RES+2*j+1}'); k(f'v_and_b32 v{T+3}, s47, v{V_RES+2*j+1}')
            for i in range(4): k(f'v_add_f32 v{r+i}, v{r+i}, v{T+i}')
            if bias is not None:
                k(f'v_lshlrev_b32 v{T}, 16, v{bias+2*j}'); k(f'v_and_b32 v{T+1}, s47, v{bias+2*j}')
                k(f'v_lshlrev_b32 v{T+2}, 16, v{bias+2*j+1}'); k(f'v_and_b32 v{T+3}, s47, v{bias+2*j+1}')
                for i in range(4): k(f'v_add_f32 v{r+i}, v{r+i}, v{T+i}')
            k(f'v_cvt_pk_bf16_f32 v{V_RES+2*j}, v{r}, v{r+1}'); k(f'v_cvt_pk_bf16_f32 v{V_RES+2*j+1}, v{r+2}, v{r+3}')
            if final:
                fl=k.lab('fin'); fd=k.lab('fd')
                k('s_cmp_eq_u32 s12, 1'); k(f's_cbranch_scc1 {fl}')
                k(f'buffer_store_dwordx2 v[{V_RES+2*j}:{V_RES+2*j+1}], v{VD}, s[{WS}:{WS+3}], s{44+j} offen sc1')
                k(f's_branch {fd}')
                k(fl+':')
                k(f'buffer_store_dwordx2 v[{V_RES+2*j}:{V_RES+2*j+1}], v{vout}, s[{SC}:{SC+3}], 0 offen offset:{j*32}')
                k(fd+':')
            else:
                k(f'buffer_store_dwordx2 v[{V_RES+2*j}:{V_RES+2*j+1}], v{VD}, s[{WS}:{WS+3}], s{44+j} offen sc1')
            if stats:
                k(f'v_dot2c_f32_bf16 v{S0}, v{V_RES+2*j}, v{T+12}'); k(f'v_dot2c_f32_bf16 v{S1}, v{V_RES+2*j}, v{V_RES+2*j}')
                k(f'v_dot2c_f32_bf16 v{S0}, v{V_RES+2*j+1}, v{T+12}'); k(f'v_dot2c_f32_bf16 v{S1}, v{V_RES+2*j+1}, v{V_RES+2*j+1}')
        k(skip+':')
        if stats:
            sum_g(k,S0,T+13); sum_g(k,S1,T+13)
            k(f'v_lshlrev_b32 v{T+13}, 3, v{V_F}')
            k('s_lshl_b32 s28, s6, 4'); k('s_lshl_b32 s29, s7, 1'); k('s_add_u32 s28, s28, s29'); k('s_add_u32 s28, s28, s5')
            k('s_lshl_b32 s28, s28, 9'); k('s_lshl_b32 s29, s4, 7'); k('s_add_u32 s28, s28, s29')
            k(f's_mul_i32 s29, s12, {ST_D}'); k('s_add_u32 s28, s28, s29'); k(f's_add_u32 s28, s28, {STB[0]}')
            k(f'v_cmp_eq_u32 vcc, 0, v{V_G}'); k(f'v_mov_b32 v{T+14}, {OOB}'); k(f'v_cndmask_b32 v{T+13}, v{T+14}, v{T+13}, vcc')
            k(f'buffer_store_dwordx2 v[{S0}:{S1}], v{T+13}, s[{WS}:{WS+3}], s28 offen sc1')

    def w2_chunk_dma(self, e_expr_sgpr):
        k=self.k; e=e_expr_sgpr
        def head():
            k(f's_lshr_b32 s53, s{e}, 1'); k(f's_and_b32 s54, s{e}, 1')
            k('s_mul_i32 s54, s54, 27'); k('s_add_u32 s54, s54, s53')
            k('s_mul_i32 s55, s7, 270'); k('s_add_u32 s54, s54, s55'); k('s_lshl_b32 s54, s54, 10'); k(f's_add_u32 s54, s54, {W2F}')
            k(f's_mul_i32 s55, s{e}, 5120')
        def one(j):
            if j==0: head()
            k('s_mov_b32 m0, s55')
            k(f'buffer_load_dwordx4 v{V_L16}, s[{WS}:{WS+3}], s54 offen sc1 lds')
            k(f's_add_u32 s54, s54, {54*1024}'); k('s_add_u32 s55, s55, 1024')
        return [lambda j=j: one(j) for j in range(5)]

    W2R=128
    def w2r_setup(self):
        k=self.k
        k('s_lshr_b32 s28, s3, 1'); k('s_and_b32 s29, s3, 1')
        k('s_mul_i32 s29, s29, 27'); k('s_add_u32 s29, s29, s28')
        k('s_mul_i32 s28, s7, 270'); k('s_add_u32 s29, s29, s28')
        for g,first in enumerate((15,19,23)):
            k(f's_add_u32 s{58+g}, s29, {first}'); k(f's_lshl_b32 s{58+g}, s{58+g}, 10'); k(f's_add_u32 s{58+g}, s{58+g}, {W2F}')
    def w2r_load(self,n):
        k=self.k; g,ft=n//5,n%5; r=self.W2R+4*n
        k(f's_add_u32 s61, s{58+g}, {ft*54*1024}')
        k(f'buffer_load_dwordx4 v[{r}:{r+3}], v{V_L16}, s[{WS}:{WS+3}], s61 offen sc1')
    def fc1_early_w(self):
        k=self.k
        lab=k.lab('ew')
        k('s_cmp_ge_u32 s3, s41'); k(f's_cbranch_scc1 {lab}')
        n0=self.F1R+self.F1E
        k('s_mul_i32 s42, s40, 40960'); k(f's_add_u32 s42, s42, {W1F+(n0//4)*4096}')
        for s in range(n0,n0+self.F1A): self.f1_wload(s)
        k(lab+':')
    F1A=int(os.environ.get('F1A','12'))
    F1R=16 if os.environ.get('F1R','0')=='1' else 0
    F1E=int(os.environ.get('F1E','12'))
    def f1_wreg(self,s):
        if self.F1E: return 256-4*self.F1E+4*s if s<self.F1E else 96+4*(s-self.F1E)
        if not self.F1R: return 96+4*s
        return 192+4*s if s<16 else 96+4*(s-16)
    def f1_wload(self,s):
        k=self.k; r=self.f1_wreg(s)
        k(f'buffer_load_dwordx4 v[{r}:{r+3}], v{V_L16}, s[{WS}:{WS+3}], s42 offen offset:{(s%4)*1024} sc1')
        if s%4==3: k('s_add_u32 s42, s42, 4096')

    def gelu_group_scalar(self,A,a,MR,CSV,B1F,TT,KC,vaddr,s_h):
        o=[]; PK=TT+4
        R=[A+4*a+i for i in range(4)]; t=[TT+i for i in range(4)]
        for i in range(4): o.append(f'v_fma_f32 v{t[i]}, -v{MR}, v{CSV+4*a+i}, v{B1F+4*a+i}')
        for i in range(4): o.append(f'v_fma_f32 v{R[i]}, v{R[i]}, v{MR+1}, v{t[i]}')
        for i in range(4): o.append(f'v_mul_f32 v{t[i]}, v{R[i]}, v{R[i]}')
        for i in range(4): o.append(f'v_fma_f32 v{t[i]}, v{t[i]}, v{KC+2}, v{KC}')
        for i in range(4): o.append(f'v_mul_f32 v{t[i]}, v{t[i]}, v{R[i]}')
        for i in range(4): o.append(f'v_exp_f32 v{t[i]}, v{t[i]}')
        for i in range(4): o.append(f'v_add_f32 v{t[i]}, 1.0, v{t[i]}')
        for i in range(4): o.append(f'v_rcp_f32 v{t[i]}, v{t[i]}')
        for i in range(4): o.append(f'v_mul_f32 v{R[i]}, v{R[i]}, v{t[i]}')
        o+= [f'v_cvt_pk_bf16_f32 v{PK}, v{R[0]}, v{R[1]}', f'v_cvt_pk_bf16_f32 v{PK+1}, v{R[2]}, v{R[3]}']
        o.append(f'buffer_store_dwordx2 v[{PK}:{PK+1}], v{vaddr}, s[{WS}:{WS+3}], s{s_h} offen offset:{a*256} sc1')
        return o
    def gelu_group(self,A,a,MR,CSV,B1F,TT,KC,vaddr,s_h):
        P=lambda r: f'v[{r}:{r+1}]'
        KC0,KC1,KONE=KC,KC+2,KC+4
        r0,r1=A+4*a,A+4*a+2
        t=[TT,TT+2]; PK=TT+4
        o=[]
        for e in range(2): o.append(f'v_pk_fma_f32 {P(t[e])}, {P(MR)}, {P(CSV+4*a+2*e)}, {P(B1F+4*a+2*e)} op_sel_hi:[0,1,1] neg_lo:[1,0,0] neg_hi:[1,0,0]')
        for e,r in enumerate((r0,r1)): o.append(f'v_pk_fma_f32 {P(r)}, {P(r)}, {P(MR)}, {P(t[e])} op_sel:[0,1,0] op_sel_hi:[1,1,1]')
        for e,r in enumerate((r0,r1)): o.append(f'v_pk_mul_f32 {P(t[e])}, {P(r)}, {P(r)}')
        for e,r in enumerate((r0,r1)): o.append(f'v_pk_fma_f32 {P(t[e])}, {P(t[e])}, {P(KC1)}, {P(KC0)}')
        for e,r in enumerate((r0,r1)): o.append(f'v_pk_mul_f32 {P(t[e])}, {P(t[e])}, {P(r)}')
        for e in range(2): o+= [f'v_exp_f32 v{t[e]}, v{t[e]}', f'v_exp_f32 v{t[e]+1}, v{t[e]+1}']
        for e in range(2): o.append(f'v_pk_add_f32 {P(t[e])}, {P(t[e])}, {P(KONE)}')
        for e in range(2): o+= [f'v_rcp_f32 v{t[e]}, v{t[e]}', f'v_rcp_f32 v{t[e]+1}, v{t[e]+1}']
        for e,r in enumerate((r0,r1)): o.append(f'v_pk_mul_f32 {P(r)}, {P(r)}, {P(t[e])}')
        o+= [f'v_cvt_pk_bf16_f32 v{PK}, v{r0}, v{r0+1}', f'v_cvt_pk_bf16_f32 v{PK+1}, v{r1}, v{r1+1}']
        o.append(f'buffer_store_dwordx2 v[{PK}:{PK+1}], v{vaddr}, s[{WS}:{WS+3}], s{s_h} offen offset:{a*256} sc1')
        return o

    def phase_fc1(self):
        k=self.k
        A0,A1,XF,CS,ONE,vX,WB=24,40,56,88,89,90,96
        self.wait(3)
        self.mark("f1.wait")
        k('s_mul_i32 s28, s6, 81920'); k(f's_mul_i32 s29, s12, {X1_D}'); k('s_add_u32 s28, s28, s29'); k(f's_add_u32 s28, s28, {X1B[0]}')
        k('s_mul_i32 s29, s3, 5120'); k('s_add_u32 s28, s28, s29')
        for hf in range(2):
            for i in range(5):
                k(f's_add_u32 m0, s29, {hf*40960+i*1024}')
                k(f'buffer_load_dwordx4 v{V_L16}, s[{WS}:{WS+3}], s28 offen sc1 lds')
                k(f's_add_u32 s28, s28, {1024 if i<4 else 40960-4096}')
        act=k.lab('act'); fin=k.lab('fin')
        k('s_cmp_lt_u32 s3, s41'); k(f's_cbranch_scc1 {act}')
        n7=k.lab('n7'); n7w=k.lab('n7w')
        U=96
        k('s_waitcnt vmcnt(5)')
        k('s_barrier')
        k('s_cmp_lg_u32 s3, 7'); k(f's_cbranch_scc1 {n7w}')
        k(f'v_lshlrev_b32 v{U}, 3, v{V_LANE}')
        k('s_lshl_b32 s28, s6, 13'); k(f's_mul_i32 s29, s12, {ST_D}'); k('s_add_u32 s28, s28, s29'); k(f's_add_u32 s28, s28, {STB[0]}')
        for q in range(16):
            k(f'buffer_load_dwordx2 v[{A0+2*q}:{A0+2*q+1}], v{U}, s[{WS}:{WS+3}], s28 offen offset:{(q%8)*512} sc1')
            if q==7: k('s_add_u32 s28, s28, 4096')
        k('s_waitcnt vmcnt(0)')
        for q in range(1,16):
            k(f'v_add_f32 v{A0}, v{A0}, v{A0+2*q}'); k(f'v_add_f32 v{A0+1}, v{A0+1}, v{A0+2*q+1}')
        m_,r_,v_=U+2,U+3,A0+1
        k(f'v_mul_f32 v{m_}, {hex(f2u(1/640))}, v{A0}'); k(f'v_mul_f32 v{v_}, {hex(f2u(1/640))}, v{v_}')
        k(f'v_fma_f32 v{v_}, -v{m_}, v{m_}, v{v_}'); k(f'v_max_f32 v{v_}, 0, v{v_}')
        k(f'v_add_f32 v{A0+2}, {hex(f2u(1e-5))}, v{v_}'); k(f'v_rsq_f32 v{r_}, v{A0+2}')
        k(f'v_mul_f32 v{A0+3}, v{r_}, v{r_}'); k(f'v_mul_f32 v{A0+3}, v{A0+3}, v{v_}')
        k(f'v_add_f32 v{A0+3}, {hex(f2u(1e-5))}, v{A0+3}'); k(f'v_rsq_f32 v{A0+3}, v{A0+3}')
        k(f'v_mul_f32 v{r_}, v{r_}, v{A0+3}'); k(f'v_mul_f32 v{m_}, v{m_}, v{r_}')
        k(f'v_add_u32 v{U}, {L_TOKST}, v{U}')
        k(f'ds_write_b64 v{U}, v[{m_}:{r_}]')
        k('s_waitcnt lgkmcnt(0)')
        W2E=True
        for e in range(16,30):
            k(f's_mov_b32 s52, {e}')
            for f in self.w2_chunk_dma(52): f()
        k(f's_branch {n7}')
        k(n7w+':')
        k('s_waitcnt vmcnt(0)')
        k(n7+':')
        k('s_barrier')
        k('s_barrier')
        k('s_cmp_lg_u32 s3, 7'); k(f's_cbranch_scc1 {fin}')
        for e in list(range(0,8))+[15]+([] if W2E else list(range(16,30))):
            k(f's_mov_b32 s52, {e}')
            for f in self.w2_chunk_dma(52): f()
        k('s_cmp_eq_u32 s41, 7'); k(f's_cbranch_scc1 {fin}')
        k('s_mov_b32 s52, 14')
        for f in self.w2_chunk_dma(52): f()
        k(f's_branch {fin}')
        k(act+':')
        srd(k,SA,P_B1,1728*2)
        B1R=72
        k('s_lshl_b32 s28, s40, 6')
        k(f'v_lshl_add_u32 v{vX}, v{V_H}, 3, s28')
        for a in range(4): k(f'buffer_load_dwordx2 v[{B1R+2*a}:{B1R+2*a+1}], v{vX}, s[{SA}:{SA+3}], 0 offen offset:{a*16}')
        k('s_waitcnt vmcnt(9)')
        k('s_barrier')
        self.mark("f1.x")
        k(f'v_lshrrev_b32 v{vX}, 4, v{V_L31}'); k(f'v_mul_u32_u24 v{vX}, 20480, v{vX}')
        k(f'v_lshl_add_u32 v{vX}, v{V_H}, 8, v{vX}'); k(f'v_lshl_add_u32 v{vX}, v{V_F}, 4, v{vX}')
        k(f'v_mov_b32 v{ONE}, 0x3f803f80'); k(f'v_mov_b32 v{CS}, 0')
        k('s_cmp_lg_u32 s12, 0'); k('s_cselect_b64 vcc, -1, 0')
        def rd(tt,s):
            ks,u=s//2,s%2
            x=XF+(s%4)*4
            k(f'ds_read_b128 v[{x}:{x+3}], v{vX} offset:{tt*40960+ks*1024+u*512}')
        F1A=self.F1A+self.F1R+self.F1E
        def pass1(with_cs):
            rd(0,0); rd(0,1); rd(0,2)
            for s in range(40):
                if s+F1A<40: self.f1_wload(s+F1A)
                if s+3<40: rd(0,s+3)
                w=f's_waitcnt lgkmcnt({min(3,39-s)})'
                if s>=F1A: w+=f' vmcnt({min(F1A,39-s)})'
                k(w)
                wr=self.f1_wreg(s); x=XF+(s%4)*4
                c0='0' if s==0 else f'v[{A0}:{A0+15}]'
                k(f'v_mfma_f32_32x32x16_bf16 v[{A0}:{A0+15}], v[{wr}:{wr+3}], v[{x}:{x+3}], {c0}')
                if with_cs:
                    for r in range(4): k(f'v_dot2c_f32_bf16 v{CS}, v{wr+r}, v{ONE}')
        p1=k.lab('p1'); p1d=k.lab('p1d')
        k(f's_cbranch_vccnz {p1}')
        pass1(True)
        k(f's_branch {p1d}')
        k(p1+':')
        pass1(False)
        k(p1d+':')
        ncs=k.lab('ncs')
        k(f's_cbranch_vccnz {ncs}')
        k(f'v_mov_b32 v91, v{CS}'); k(f'v_permlane32_swap_b32 v{CS}, v91'); k(f'v_add_f32 v{CS}, v{CS}, v91')
        k('s_lshl_b32 s28, s3, 7'); k(f's_add_u32 s28, s28, {L_CS1}')
        k(f'v_lshl_add_u32 v91, v{V_L31}, 2, s28')
        k(f'ds_write_b32 v91, v{CS}')
        k(ncs+':')
        k('s_waitcnt vmcnt(0) lgkmcnt(0)')
        k('s_barrier')
        self.mark("f1.p1")
        CSV,B1F,MR0,MR1,TT,KC,VA=((self.f1_wreg(0),self.f1_wreg(4)) if (self.F1R or self.F1E>=8) else (96,112))+(80,82,16,84,91)
        side=[]
        def S(x): side.append(x)
        S(f's_lshl_b32 s28, s3, 7'); S(f's_add_u32 s28, s28, {L_CS1}'); S(f'v_lshl_add_u32 v{VA}, v{V_H}, 4, s28')
        pre_reads=[f'ds_read_b128 v[{CSV+4*a}:{CSV+4*a+3}], v{VA} offset:{a*32}' for a in range(4)]
        c0=-2*0.7978845608028654*1.4426950408889634; c1=c0*0.044715
        for i in range(2):
            k(f'v_mov_b32 v{KC+i}, {hex(f2u(c0))}'); k(f'v_mov_b32 v{KC+2+i}, {hex(f2u(c1))}')
        KONE_=92
        k(f'v_mov_b32 v{KONE_}, 1.0'); k(f'v_mov_b32 v{KONE_+1}, 1.0')
        k(f'v_lshlrev_b32 v94, 3, v{V_L31}'); k(f'v_add_u32 v94, {L_TOKST}, v94')
        k(f'ds_read_b64 v[{MR0}:{MR0+1}], v94'); k(f'ds_read_b64 v[{MR1}:{MR1+1}], v94 offset:256')
        k(f'v_lshrrev_b32 v95, 4, v{V_L31}'); k(f's_mov_b32 s28, {54*1024}'); k('v_mul_lo_u32 v95, v95, s28')
        k(f'v_lshl_add_u32 v95, v{V_H}, 3, v95'); k(f'v_lshl_add_u32 v95, v{V_F}, 4, v95')
        for tt in range(2):
            k('s_lshl_b32 s28, s6, 2'); k(f's_add_u32 s28, s28, {2*tt}'); k('s_mul_i32 s28, s28, 54'); k('s_add_u32 s28, s28, s40')
            k('s_lshl_b32 s28, s28, 10'); k(f's_mul_i32 s29, s12, {HF_D}'); k('s_add_u32 s28, s28, s29'); k(f's_add_u32 s{56+tt}, s28, {HFB[0]}')
        k('s_mov_b32 s47, 0xffff0000')
        k('s_waitcnt lgkmcnt(0)')
        rd(1,0); rd(1,1); rd(1,2)
        def gg(A,a,MR,sh):
            o=self.gelu_group(A,a,MR,CSV,B1F,TT,KC,95,sh)
            return [x.replace(f'v[{KC+4}:{KC+5}]',f'v[{KONE_}:{KONE_+1}]') for x in o]
        work=[]
        for a in range(4): work+=self.gelu_group_scalar(A0,a,MR0,CSV,B1F,TT,KC,95,56)
        nper=-(-len(work)//27)
        wi=0; lds_extra=0
        for s in range(40):
            if s+3<40: rd(1,s+3)
            extra=0
            if s==8:
                k(f's_lshl_b32 s28, s3, 7'); k(f's_add_u32 s28, s28, {L_CS1}'); k(f'v_lshl_add_u32 v{VA}, v{V_H}, 4, s28')
                for x in pre_reads: k(x)
                extra=4
            k(f's_waitcnt lgkmcnt({min(3,39-s)+extra})')
            wr=self.f1_wreg(s); x=XF+(s%4)*4
            c1s='0' if s==0 else f'v[{A1}:{A1+15}]'
            k(f'v_mfma_f32_32x32x16_bf16 v[{A1}:{A1+15}], v[{wr}:{wr+3}], v[{x}:{x+3}], {c1s}')
            if s in (9,10):
                for a in ((0,1) if s==9 else (2,3)):
                    k(f'v_lshlrev_b32 v{B1F+4*a}, 16, v{B1R+2*a}'); k(f'v_and_b32 v{B1F+4*a+1}, s47, v{B1R+2*a}')
                    k(f'v_lshlrev_b32 v{B1F+4*a+2}, 16, v{B1R+2*a+1}'); k(f'v_and_b32 v{B1F+4*a+3}, s47, v{B1R+2*a+1}')
            if s>=12:
                for _ in range(nper):
                    if wi<len(work): k(work[wi]); wi+=1
        while wi<len(work): k(work[wi]); wi+=1
        k('s_barrier')
        self.mark("f1.mm")
        k('s_add_u32 s52, s3, 8')
        dm=self.w2_chunk_dma(52)
        for a in range(4):
            for x in gg(A1,a,MR1,57): k(x)
            if dm: dm.pop(0)()
            if a==3:
                while dm: dm.pop(0)()
        k(fin+':')
        self.mark("f1.epi")
        self.publish(4)
        self.mark("f1.pub")

    def phase_fc2(self):
        k=self.k
        HX,WR,ACC=24,132,192
        vA,vB,vC,BI,VO=236,237,238,240,246
        srd(k,SB,P_B2,1280)
        srd(k,SC,P_OUT,2048*1280)
        k('s_mul_i32 s28, s7, 160'); k('s_mul_i32 s29, s5, 96'); k('s_add_u32 s28, s28, s29')
        k(f'v_lshl_add_u32 v{vA}, v{V_G}, 3, s28')
        for j in range(3): k(f'buffer_load_dwordx2 v[{BI+2*j}:{BI+2*j+1}], v{vA}, s[{SB}:{SB+3}], 0 offen offset:{j*32}')
        k('s_movk_i32 s29, 1280'); k(f'v_mul_lo_u32 v{VO}, v{V_TOK}, s29'); k(f'v_add_u32 v{VO}, v{VO}, v{vA}')
        self.wait(4)
        self.mark("f2.wait")
        XP=os.environ.get('XP','')
        if 'noh' not in XP: self.x_loads(HX,27,HFB[0],HF_D,54,27)
        if 'hwait' in XP:
            k('s_waitcnt vmcnt(0)'); self.mark("f2.h")
        k('s_mul_i32 s28, s5, 5120')
        k(f'v_add_u32 v{vA}, s28, v{V_L16}'); k(f'v_add_u32 v{vB}, 61440, v{vA}'); k(f'v_add_u32 v{vC}, 122880, v{vA}')
        NS=15
        slot=lambda i: i if i<NS else i-NS
        log=[('h',i) for i in range(27)]
        def refill(g):
            first=15+4*g
            k('s_lshr_b32 s28, s3, 1'); k('s_and_b32 s29, s3, 1')
            k(f's_add_u32 s30, s28, {first}')
            k('s_mul_i32 s32, s29, 27'); k('s_add_u32 s32, s32, s30')
            k('s_mul_i32 s33, s7, 270'); k('s_add_u32 s32, s32, s33'); k('s_lshl_b32 s32, s32, 10'); k(f's_add_u32 s32, s32, {W2F}')
            k(f's_add_u32 s30, s28, {4*g}')
            k('s_mul_i32 s33, s30, 10240'); k('s_mul_i32 s29, s29, 5120'); k('s_add_u32 s33, s33, s29')
            for j in range(5):
                k('s_mov_b32 m0, s33')
                k(f'buffer_load_dwordx4 v{V_L16}, s[{WS}:{WS+3}], s32 offen sc1 lds')
                if j<4:
                    k(f's_add_u32 s32, s32, {54*1024}'); k('s_add_u32 s33, s33, 1024')
                log.append(('rf',g))
        def younger(idx): return len(log)-1-idx
        DEPTH=int(os.environ.get('F2D','10'))
        bar={7:(None,0),11:(None,1),15:(0,2),19:(1,None),23:(2,None)}
        fr=[]
        for i in range(27):
            for ft in range(5):
                j=slot(i); va,imm=((vA,vB,vC)[j//6],(j%6)*10240)
                def rd(r,va=va,imm=imm,ft=ft): k(f'ds_read_b128 v[{r}:{r+3}], v{va} offset:{imm+ft*1024}')
                def mf(r,i=i,ft=ft):
                    c=ACC+4*ft; cs='0' if i==0 else f'v[{c}:{c+3}]'
                    k(f'v_mfma_f32_16x16x32_bf16 v[{c}:{c+3}], v[{r}:{r+3}], v[{HX+4*i}:{HX+4*i+3}], {cs}')
                d=dict(read=rd,mfma=mf)
                if ft==0:
                    d['vm']=(lambda i=i: younger(log.index(('h',i))))
                    if i in bar:
                        def pre(i=i):
                            need,fill=bar[i]
                            if need is not None:
                                tags=[n for n,x in enumerate(log) if x==('rf',need)]
                                k(f's_waitcnt vmcnt({younger(tags[-1])})')
                            k('s_barrier')
                            if fill is not None: refill(fill)
                        d['pre']=pre
                fr.append(d)
        self.frag_gemm(fr,WR,DEPTH,1)
        self.mark("f2.mm")
        k('s_barrier')
        T=48
        self.reduce_pairs(ACC,T+9,L_RED)
        k('s_waitcnt lgkmcnt(0)')
        k('s_barrier')
        self.reduce_pairs_finish(ACC,T+9,24)
        self.epilogue_res(ACC,T,X2B,0,stats=False,bias=BI,final=True,vout=VO)
        self.mark("f2.epi")

    def build(self):
        k=self.k
        self.prologue()
        self.mark0("p.start")
        if 'nox0' not in os.environ.get('XP',''): self.x0_loads(24,144)
        if 'cs.x' in os.environ.get('MARKS',''):
            k('s_waitcnt vmcnt(0)'); self.mark0("cs.x")
        kvw=k.lab('kvw'); pj=k.lab('pj')
        k('s_lshr_b32 s28, s7, 1')
        k('s_cmp_eq_u32 s28, s4'); k(f's_cbranch_scc1 {kvw}')
        k('s_mov_b32 s43, s3')
        k('s_cmp_gt_u32 s3, s28'); k('s_cselect_b32 s29, 1, 0'); k('s_sub_u32 s43, s43, s29')
        k('s_add_u32 s28, s28, 4'); k('s_cmp_gt_u32 s3, s28'); k('s_cselect_b32 s29, 1, 0'); k('s_sub_u32 s43, s43, s29')
        srd(k,SA,P_WQ,640*1280)
        k('s_waitcnt vmcnt(8)')
        for t in range(4):
            lab=k.lab('wq')
            k(f's_add_u32 s28, s43, {6*t}')
            if t==3:
                k('s_cmp_ge_u32 s28, 20'); k(f's_cbranch_scc1 {lab}')
            k('s_mul_i32 s29, s28, 40960'); k('s_mul_i32 s30, s28, 5120')
            self.dma_chunk160(SA,29,30)
            k(lab+':')
        k(f's_branch {pj}')
        k(kvw+':')
        k('s_mov_b32 s43, 7')
        k('s_and_b32 s28, s7, 1'); k('s_cmp_eq_u32 s28, 0')
        k(f's_cselect_b32 s30, s{P_WK}, s{P_WV}'); k(f's_cselect_b32 s31, s{P_WK+1}, s{P_WV+1}')
        srd(k,SB,30,25600)
        k('s_mul_i32 s29, s5, 12288')
        for t in range(13):
            k(f's_add_u32 m0, s29, {L_WKV}')
            k(f'buffer_load_dwordx4 v{V_L16}, s[{SB}:{SB+3}], s29 offen lds')
            k('s_add_u32 s29, s29, 1024')
        k(pj+':')
        if 'tlb' in os.environ.get('XP',''): self.tlb_warm()
        self.mark0("p.issued")
        LOOP='mega_layer'
        k(LOOP+':')
        self.phase_qkv(); self.stopat('qkv')
        self.phase_attn(); self.stopat('attn')
        self.phase_oproj(); self.stopat('oproj')
        self.phase_fc1(); self.stopat('fc1')
        self.phase_fc2(); self.stopat('fc2')
        k('s_cmp_eq_u32 s12, 1'); k(f's_cbranch_scc1 {self.END}')
        self.publish(5)
        self.dma_next_qkv()
        self.wait(5)
        k('s_mov_b32 s12, 1'); k('s_add_u32 s13, s13, 5')
        k(f's_branch {LOOP}')
        k(self.END+':')
        rz=self.k.lab('rz')
        k('s_cmp_lg_u32 s2, 0'); k(f's_cbranch_scc1 {rz}')
        k('s_cmp_lg_u32 s3, 5'); k(f's_cbranch_scc1 {rz}')
        k('s_load_dwordx2 s[58:59], s[0:1], 88')
        k('s_waitcnt lgkmcnt(0)')
        srd(k,60,58,256)
        k('v_mov_b32 v200, 0'); k('v_mov_b32 v201, 0')
        k('s_mov_b64 exec, 1')
        k('buffer_store_dword v201, v200, s[60:63], 0 offen sc1')
        k('s_mov_b64 exec, -1')
        k(rz+':')
        if self.stamps:
            k('s_waitcnt vmcnt(0) lgkmcnt(0)')
            k(f'{self.clk} s[100:101]'); k('s_waitcnt lgkmcnt(0)')
            k('s_lshl_b32 s28, s2, 3'); k('s_add_u32 s28, s28, s3'); k('s_lshl_b32 s28, s28, 6'); k(f's_add_u32 s28, s28, {STAMP_OFF}')
            k('s_add_u32 s30, s86, s28'); k('s_addc_u32 s31, s87, 0')
            k('v_mov_b32 v24, 0')
            if os.environ.get('DBGOUT'):
                dz=k.lab('dz')
                k('s_cmp_lg_u32 s2, 0'); k(f's_cbranch_scc1 {dz}'); k('s_cmp_lg_u32 s3, 0'); k(f's_cbranch_scc1 {dz}')
                k('s_load_dwordx2 s[58:59], s[0:1], 88'); k('s_waitcnt lgkmcnt(0)')
                for i in list(range(11))+[12]:
                    k(f's_sub_u32 s28, s{88+i}, s99'); k('v_mov_b32 v25, s28')
                    k(f'global_store_dword v24, v25, s[58:59] offset:{4*(i+1)}')
                k(dz+':')
            else:
              for i in range(13):
                k(f'v_mov_b32 v25, s{88+i}')
                k(f'global_store_dword v24, v25, s[30:31] offset:{4*i}')
        k('mega_kernel_exit:')
        k('mega_code_end:')
        k('s_endpgm')
        return k

def gen_init():
    k=Kern('init_kernel',vgpr=8,sgpr=24)
    k('s_cmp_ge_u32 s2, 1'); k('s_cbranch_scc1 init_kernel_end')
    k('s_load_dwordx2 s[4:5], s[0:1], 96')
    k('s_waitcnt lgkmcnt(0)')
    srd(k,8,4,4096,FLG)
    k('v_lshlrev_b32 v1, 4, v0')
    for i in range(4): k(f'v_mov_b32 v{2+i}, 0')
    k('buffer_store_dwordx4 v[2:5], v1, s[8:11], 0 offen')
    k('init_kernel_end:')
    k('s_endpgm')
    return k
```

```python
import os, struct
from asmlib import *
from mlayout import *

def f2u(x): return struct.unpack('<I',struct.pack('<f',x))[0]
P_X,P_WQ,P_WK,P_WV,P_WO,P_W1,P_B1,P_W2,P_B2,P_OUT=64,66,68,70,72,76,78,80,82,84
WS=8
SA,SB,SC=16,20,24
OOB='0x40000000'
V_LANE,V_F,V_G,V_L16,V_L31,V_H,V_TR,V_RES,V_TOK,V_D=1,2,3,4,5,6,7,8,14,16
L_WKV=102400
L_RED=128000
L_KVR=157056
L_STAT=152576
L_CS=163136
L_NONCE=163776
L_BADF=163780
L_PAIRF=163784
L_KVCS=155008
NONCE=FLG+2048+64
L_QL=0
L_COMB=112640
L_OIMG=137216
L_ORED=102400
L_TOKST=153600
L_CS1=154112
LDS_TOTAL=160*1024
STAMP_OFF=100<<20
POLLW=7
GD=int(os.environ.get('GD','7'))
KSH=int(os.environ.get('KSH','6'))
FSH=int(os.environ.get('FSH','8'))

def srd(k,d,p,size,off=0):
    k(f's_add_u32 s{d}, s{p}, {off}' if off else f's_mov_b32 s{d}, s{p}')
    k(f's_addc_u32 s{d+1}, s{p+1}, 0' if off else f's_mov_b32 s{d+1}, s{p+1}')
    k(f's_and_b32 s{d+1}, s{d+1}, 0xffff')
    k(f's_mov_b32 s{d+2}, {size}')
    k(f's_mov_b32 s{d+3}, 0x20000')

def sum_g(k,x,tmp):
    k(f'v_mov_b32 v{tmp}, v{x}')
    k(f'v_permlane16_swap_b32 v{x}, v{tmp}')
    k(f'v_add_f32 v{x}, v{x}, v{tmp}')
    k(f'v_mov_b32 v{tmp}, v{x}')
    k(f'v_permlane32_swap_b32 v{x}, v{tmp}')
    k(f'v_add_f32 v{x}, v{x}, v{tmp}')

KNAME='interleave_layers__grouped_kv_mqa__mixer_channel_mlp__prompt_kernel'
class Mega:
    def __init__(self, stamps=False, stop=None):
        self.k=Kern(KNAME,vgpr=256,sgpr=102)
        self.stamps=stamps; self.stop=stop; self.END='mega_kernel_end'
        self.mark_layer=int(os.environ.get('MARKL','1'))
        self.clk='s_memrealtime' if os.environ.get('RT') else 's_memtime'
    def mark(self,name):
        if not self.stamps: return
        ms=os.environ.get('MARKS','').split(',')
        if name not in ms: return
        i=ms.index(name)
        k=self.k
        k(f'{self.clk} s[100:101]')
        k('s_waitcnt lgkmcnt(0)')
        k(f's_cmp_eq_u32 s12, {self.mark_layer}')
        k(f's_cselect_b32 s{88+i}, s100, s{88+i}')
    def mark0(self,name):
        if not self.stamps: return
        ms=os.environ.get('MARKS','').split(',')
        if name not in ms: return
        i=ms.index(name); k=self.k
        k(f'{self.clk} s[100:101]'); k('s_waitcnt lgkmcnt(0)'); k(f's_mov_b32 s{88+i}, s100')
    def stopat(self,name):
        if self.stop==name:
            k=self.k
            k(f's_cmp_eq_u32 s12, {int(os.environ.get("STOPL","0"))}')
            k(f's_cbranch_scc1 {self.END}')

    def publish(self,j):
        k=self.k
        k('s_waitcnt vmcnt(0)')
        k('s_barrier')
        lab=k.lab('pub')
        k('s_cmp_lg_u32 s3, 0')
        k(f's_cbranch_scc1 {lab}')
        k(f's_add_u32 s28, s13, {j}')
        k('v_mov_b32 v22, s28')
        k(f's_lshl_b32 s29, s6, {FSH}'); k('s_lshl_b32 s30, s7, 2'); k('s_add_u32 s29, s29, s30')
        k('v_mov_b32 v21, s29')
        k('s_mov_b64 exec, 1')
        k(f'buffer_store_dword v22, v21, s[{WS}:{WS+3}], 0 offen offset:{FLG} sc1')
        k('s_mov_b64 exec, -1')
        k(lab+':')
    def wait(self,j,allwg=False,others=None):
        k=self.k
        lab=k.lab('w'); loop=k.lab('poll'); done=k.lab('pd')
        wide = allwg or others is not None
        k(f's_cmp_lg_u32 s3, {POLLW}')
        k(f's_cbranch_scc1 {lab}')
        k(f's_add_u32 s28, s13, {j}')
        if wide:
            k(f'v_lshrrev_b32 v22, 1, v{V_LANE}'); k(f'v_lshlrev_b32 v21, {FSH}, v22')
            k(f'v_and_b32 v16, 1, v{V_LANE}'); k('v_lshl_add_u32 v21, v16, 4, v21')
            if others is not None:
                k(f's_add_u32 s29, s13, {others}')
                k('v_cmp_eq_u32 vcc, s6, v22')
                k('v_mov_b32 v23, s29'); k('v_mov_b32 v22, s28')
                k('v_cndmask_b32 v22, v23, v22, vcc')
            else: k('v_mov_b32 v22, s28')
        else:
            k(f'v_and_b32 v21, 7, v{V_LANE}'); k('v_lshlrev_b32 v21, 2, v21')
            k(f's_lshl_b32 s29, s6, {FSH}'); k('v_add_u32 v21, s29, v21')
            k('v_mov_b32 v22, s28')
        k('s_mov_b32 s30, 0')
        k(loop+':')
        if wide:
            k(f'buffer_load_dwordx4 v[16:19], v21, s[{WS}:{WS+3}], 0 offen offset:{FLG} sc1')
            k('s_waitcnt vmcnt(0)')
            for r in (16,17,18,19): k(f'v_sub_u32 v{r}, v{r}, v22')
            k('v_max_u32 v16, v16, v17'); k('v_max_u32 v18, v18, v19'); k('v_max_u32 v16, v16, v18')
        else:
            k(f'buffer_load_dword v16, v21, s[{WS}:{WS+3}], 0 offen offset:{FLG} sc1')
            k('s_waitcnt vmcnt(0)')
            k('v_sub_u32 v16, v16, v22')
        k('v_cmp_le_u32 vcc, 32, v16')
        k(f's_cbranch_vccz {done}')
        k('s_sleep 1')
        k('s_add_u32 s30, s30, 1')
        k(f's_cmp_lt_u32 s30, 0x40000')
        k(f's_cbranch_scc1 {loop}')
        k(done+':')
        k(lab+':')
        k('s_barrier')

    def dma_chunk160(self, s_srd, s_soff, s_m0):
        k=self.k
        for j in range(5):
            k(f's_mov_b32 m0, s{s_m0}')
            k(f'buffer_load_dwordx4 v{V_D+j}, s[{s_srd}:{s_srd+3}], s{s_soff} offen lds')
            if j<4: k(f's_add_u32 s{s_m0}, s{s_m0}, 1024')
    def dma_w160(self,ptr,skip_poller=False):
        k=self.k
        srd(k,SA,ptr,640*1280)
        nw=7 if skip_poller else 8
        end=k.lab('dw')
        if skip_poller:
            k(f's_cmp_eq_u32 s3, {POLLW}'); k(f's_cbranch_scc1 {end}')
        for t in range(3):
            lab=k.lab('wq')
            k(f's_add_u32 s28, s3, {nw*t}')
            if nw*t+nw>20:
                k('s_cmp_ge_u32 s28, 20'); k(f's_cbranch_scc1 {lab}')
            k('s_mul_i32 s29, s28, 40960'); k('s_mul_i32 s30, s28, 5120')
            self.dma_chunk160(SA,29,30)
            k(lab+':')
        k(end+':')
    def dma_wkv(self):
        k=self.k
        k('s_and_b32 s28, s7, 1'); k('s_cmp_eq_u32 s28, 0')
        k(f's_cselect_b32 s30, s{P_WK}, s{P_WV}'); k(f's_cselect_b32 s31, s{P_WK+1}, s{P_WV+1}')
        srd(k,SB,30,25600)
        for t in range(4):
            lab=k.lab('wk')
            k(f's_add_u32 s28, s3, {8*t}')
            if t==3:
                k('s_cmp_ge_u32 s28, 25'); k(f's_cbranch_scc1 {lab}')
            k('s_lshl_b32 s29, s28, 10'); k(f's_add_u32 s30, s29, {L_WKV}')
            k('s_mov_b32 m0, s30')
            k(f'buffer_load_dwordx4 v{V_L16}, s[{SB}:{SB+3}], s29 offen lds')
            k(lab+':')
    def l2_prefetch(self, s_srd, total, nwaves, wave0, vtmp, base_off=0):
        k=self.k
        per=(total//32+127)//128*128
        ninst=(per+8191)//8192
        pw=(ninst+nwaves-1)//nwaves
        k('s_and_b32 s28, s6, 3'); k('s_lshl_b32 s28, s28, 3'); k('s_add_u32 s28, s28, s7')
        k(f's_mul_i32 s28, s28, {per}')
        k(f's_sub_u32 s29, s3, {wave0}'); k(f's_mul_i32 s29, s29, {pw*8192}'); k('s_add_u32 s28, s28, s29')
        if base_off: k(f's_add_u32 s28, s28, {base_off}')
        k(f'v_lshlrev_b32 v{vtmp}, 7, v{V_LANE}')
        for n in range(pw):
            k(f'buffer_load_dword v{vtmp+1}, v{vtmp}, s[{s_srd}:{s_srd+3}], s28 offen')
            k('s_add_u32 s28, s28, 8192')
        return pw

    def prologue(self):
        k=self.k
        k('s_cmp_ge_u32 s2, 256')
        k(f's_cbranch_scc1 mega_kernel_exit')
        k('s_load_dwordx16 s[64:79], s[0:1], 0')
        k('s_load_dwordx4 s[80:83], s[0:1], 64')
        k('s_load_dwordx2 s[84:85], s[0:1], 80')
        k('s_load_dwordx2 s[86:87], s[0:1], 96')
        k('s_load_dwordx2 s[58:59], s[0:1], 88')
        if self.stamps: k(f'{self.clk} s[100:101]')
        k('v_lshrrev_b32 v24, 6, v0')
        k(f'v_and_b32 v{V_LANE}, 63, v0')
        k('v_readfirstlane_b32 s3, v24')
        k('s_and_b32 s4, s3, 3'); k('s_lshr_b32 s5, s3, 2')
        k('s_and_b32 s6, s2, 7'); k('s_lshl_b32 s6, s6, 2'); k('s_lshr_b32 s7, s2, 3'); k('s_and_b32 s7, s7, 3'); k('s_add_u32 s6, s6, s7'); k('s_lshr_b32 s7, s2, 5')
        k(f'v_and_b32 v{V_F}, 15, v{V_LANE}')
        k(f'v_lshrrev_b32 v{V_G}, 4, v{V_LANE}')
        k(f'v_lshlrev_b32 v{V_L16}, 4, v{V_LANE}')
        k(f'v_and_b32 v{V_L31}, 31, v{V_LANE}')
        k(f'v_lshrrev_b32 v{V_H}, 5, v{V_LANE}')
        k(f'v_lshrrev_b32 v24, 2, v{V_F}')
        k(f'v_and_b32 v25, 1, v{V_G}'); k('v_lshl_add_u32 v24, v25, 2, v24')
        k(f'v_lshrrev_b32 v25, 1, v{V_G}'); k('v_lshl_add_u32 v24, v25, 4, v24')
        k('v_mul_u32_u24 v24, 160, v24')
        k(f'v_and_b32 v25, 3, v{V_LANE}')
        k(f'v_lshl_add_u32 v{V_TR}, v25, 3, v24')
        k('s_lshl_b32 s28, s6, 6'); k('s_lshl_b32 s29, s4, 4'); k('s_add_u32 s28, s28, s29')
        k(f'v_add_u32 v{V_TOK}, s28, v{V_F}')
        k('s_mul_i32 s29, s7, 160')
        for j in range(5):
            k(f'v_add_u32 v24, {64*j}, v{V_LANE}')
            k('v_mul_u32_u24 v25, 6554, v24'); k('v_lshrrev_b32 v25, 16, v25')
            k('v_mul_u32_u24 v26, 10, v25'); k('v_sub_u32 v26, v24, v26')
            k('v_and_b32 v27, 0x13, v25')
            k('v_bfe_u32 v28, v25, 3, 1'); k('v_lshl_add_u32 v27, v28, 2, v27')
            k('v_bfe_u32 v28, v25, 2, 1'); k('v_lshl_add_u32 v27, v28, 3, v27')
            k('v_mul_u32_u24 v27, 1280, v27')
            k('v_lshl_add_u32 v27, v26, 4, v27')
            k(f'v_add_u32 v{V_D+j}, s29, v27')
        k('s_waitcnt lgkmcnt(0)')
        if self.stamps:
            k('s_mov_b32 s99, s100')
            for i in range(11): k(f's_mov_b32 s{88+i}, 0')
        srd(k,WS,86,WS_USED)
        k('s_mov_b32 s12, 0'); k('s_mov_b32 s13, 0')
        srd(k,60,58,256)
        nn=k.lab('nn')
        k('s_cmp_lg_u32 s2, 0'); k(f's_cbranch_scc1 {nn}')
        k('s_cmp_lg_u32 s3, 5'); k(f's_cbranch_scc1 {nn}')
        k('s_memrealtime s[28:29]')
        k('s_waitcnt lgkmcnt(0)')
        k('s_lshl_b32 s28, s28, 6'); k('s_or_b32 s28, s28, 1')
        k('v_mov_b32 v201, s28'); k('v_mov_b32 v200, 0')
        k('s_mov_b64 exec, 1')
        k('buffer_store_dword v201, v200, s[60:63], 0 offen sc1')
        k('s_mov_b64 exec, -1')
        k(nn+':')
        k('s_mul_i32 s40, s7, 7'); k('s_sub_u32 s28, s7, 6'); k('s_max_i32 s28, s28, 0'); k('s_sub_u32 s40, s40, s28')
        k('s_cmp_ge_u32 s7, 6'); k('s_cselect_b32 s41, 6, 7')
        k('s_add_u32 s40, s40, s3')

    def x0_loads(self,XF,T):
        k=self.k
        srd(k,SC,P_X,2048*1280)
        k('s_movk_i32 s28, 1280')
        k(f'v_mul_lo_u32 v{T}, v{V_TOK}, s28')
        k(f'v_lshl_add_u32 v{T+1}, v{V_G}, 4, v{T}')
        k('s_mul_i32 s29, s5, 640')
        k(f'v_add_u32 v{T+1}, s29, v{T+1}')
        if 'xlin' in os.environ.get('XP',''):
            k('s_lshl_b32 s28, s6, 2'); k('s_add_u32 s28, s28, s4'); k('s_mul_i32 s28, s28, 20'); k('s_mul_i32 s29, s5, 10'); k('s_add_u32 s28, s28, s29'); k('s_lshl_b32 s28, s28, 10')
            for i in range(10):
                k(f'buffer_load_dwordx4 v[{XF+4*i}:{XF+4*i+3}], v{V_L16}, s[{SC}:{SC+3}], s28 offen offset:{(i%4)*1024}')
                if i%4==3: k('s_add_u32 s28, s28, 4096')
        else:
          for i in range(10):
            k(f'buffer_load_dwordx4 v[{XF+4*i}:{XF+4*i+3}], v{T+1}, s[{SC}:{SC+3}], 0 offen offset:{i*64}')
        k(f'v_lshl_add_u32 v{T+1}, v{V_G}, 3, v{T}')
        k('s_mul_i32 s29, s7, 160'); k('s_mul_i32 s30, s5, 96'); k('s_add_u32 s29, s29, s30')
        k(f'v_add_u32 v{T+1}, s29, v{T+1}')
        for j in range(3):
            k(f'buffer_load_dwordx2 v[{V_RES+2*j}:{V_RES+2*j+1}], v{T+1}, s[{SC}:{SC+3}], 0 offen offset:{j*32}')

    def conv_issue(self, stage, kinds):
        k=self.k
        done=k.lab('cvd'); go=k.lab('cvg')
        total=sum(x[5] for x in kinds)
        k('s_mov_b32 s50, 0')
        k('s_lshl_b32 s28, s43, 8'); k('s_add_u32 s28, s28, s2')
        k(f's_cmp_ge_u32 s28, {total}'); k(f's_cbranch_scc1 {done}')
        labs=[k.lab('cvk') for _ in kinds]
        acc=0
        for idx,x in enumerate(kinds[:-1]):
            acc+=x[5]
            k(f's_cmp_lt_u32 s28, {acc}'); k(f's_cbranch_scc1 {labs[idx]}')
        k(f's_branch {labs[-1]}')
        acc=0
        for idx,(name,ptr,rows,stride,ncg,njobs,dst,layout) in enumerate(kinds):
            k(labs[idx]+':')
            if acc: k(f's_sub_u32 s28, s28, {acc}')
            magic=-(-65536//ncg)
            assert all((j*magic)>>16==j//ncg for j in range(njobs))
            k(f's_mul_i32 s29, s28, {magic}'); k('s_lshr_b32 s29, s29, 16')
            k(f's_mul_i32 s30, s29, {ncg}'); k('s_sub_u32 s30, s28, s30')
            srd(k,SA,ptr,rows*stride)
            k(f's_movk_i32 s31, {stride}')
            k(f's_mov_b32 s50, {1 if layout=="w1" else 2}')
            if layout=='w1':
                k('s_mul_i32 s51, s30, 80'); k('s_lshl_b32 s32, s29, 1'); k('s_add_u32 s51, s51, s32')
                k('s_mov_b32 s57, 0')
            else:
                KS=rows//32
                k(f's_mul_i32 s51, s30, {4*KS}'); k('s_add_u32 s51, s51, s29')
                k(f's_mov_b32 s57, {KS*1024}')
            k('s_lshl_b32 s51, s51, 10'); k(f's_add_u32 s51, s51, {dst}')
            k(f's_branch {go}')
            acc+=njobs
        k(go+':')
        k(f'v_lshrrev_b32 v200, 3, v{V_LANE}'); k('v_mul_lo_u32 v200, v200, s31')
        k(f'v_and_b32 v201, 7, v{V_LANE}'); k('v_lshl_add_u32 v200, v201, 4, v200')
        k('s_lshl_b32 s32, s29, 5'); k('s_mul_i32 s32, s32, s31'); k('s_lshl_b32 s33, s30, 7'); k('s_add_u32 s32, s32, s33')
        k('s_lshl_b32 s33, s31, 3')
        k('s_lshl_b32 s34, s43, 12'); k(f's_add_u32 s34, s34, {stage}')
        for i in range(4):
            k('s_mov_b32 m0, s34')
            k(f'buffer_load_dwordx4 v200, s[{SA}:{SA+3}], s32 offen lds')
            if i<3:
                k('s_add_u32 s32, s32, s33'); k('s_add_u32 s34, s34, 1024')
        k(done+':')
    def conv_finish(self,T,stage):
        k=self.k
        done=k.lab('cfd'); w2=k.lab('cf2')
        k('s_cmp_eq_u32 s50, 0'); k(f's_cbranch_scc1 {done}')
        k('s_lshl_b32 s34, s43, 12'); k(f's_add_u32 s34, s34, {stage}')
        k(f'v_lshrrev_b32 v{T}, 2, v{V_F}')
        k(f'v_and_b32 v{T+1}, 3, v{V_LANE}')
        k('s_cmp_eq_u32 s50, 2'); k(f's_cbranch_scc1 {w2}')
        k(f'v_lshl_add_u32 v{T}, v{V_H}, 3, v{T}'); k(f'v_lshlrev_b32 v{T}, 7, v{T}')
        k(f'v_and_b32 v{T+2}, 1, v{V_G}'); k(f'v_lshl_add_u32 v{T}, v{T+2}, 5, v{T}')
        k(f'v_lshl_add_u32 v{T}, v{T+1}, 3, v{T}'); k(f'v_add_u32 v{T}, s34, v{T}')
        fr=[(p,u) for p in range(2) for u in range(2)]
        for n,(p,u) in enumerate(fr):
            b=T+4+4*n
            k(f'ds_read_b64_tr_b16 v[{b}:{b+1}], v{T} offset:{u*2048+p*64}')
            k(f'ds_read_b64_tr_b16 v[{b+2}:{b+3}], v{T} offset:{u*2048+p*64+512}')
        k('s_waitcnt lgkmcnt(0)')
        for n,(p,u) in enumerate(fr):
            b=T+4+4*n
            k(f's_add_u32 s32, s51, {(p*40+u)*1024}')
            k(f'buffer_store_dwordx4 v[{b}:{b+3}], v{V_L16}, s[{WS}:{WS+3}], s32 offen sc1')
        k(f's_branch {done}')
        k(w2+':')
        k(f'v_lshl_add_u32 v{T}, v{V_G}, 3, v{T}'); k(f'v_lshlrev_b32 v{T}, 7, v{T}')
        k(f'v_lshl_add_u32 v{T}, v{T+1}, 3, v{T}'); k(f'v_add_u32 v{T}, s34, v{T}')
        for n in range(4):
            b=T+4+4*n
            k(f'ds_read_b64_tr_b16 v[{b}:{b+1}], v{T} offset:{n*32}')
            k(f'ds_read_b64_tr_b16 v[{b+2}:{b+3}], v{T} offset:{n*32+512}')
        k('s_waitcnt lgkmcnt(0)')
        k('s_mov_b32 s32, s51')
        for n in range(4):
            b=T+4+4*n
            k(f'buffer_store_dwordx4 v[{b}:{b+3}], v{V_L16}, s[{WS}:{WS+3}], s32 offen sc1')
            if n<3: k('s_add_u32 s32, s32, s57')
        k(done+':')
    CONV_A=[('wo',P_WO,640,1280,10,200,WOF,'a16'),('wq',P_WQ,640,1280,10,200,WQF,'a16')]
    CONV_B=[('w1',P_W1,640,3456,27,540,W1F,'w1'),('w2',P_W2,1728,1280,10,540,W2F,'a16')]

    def dma_lin_slice(self, src_const, waves=8):
        k=self.k
        k(f's_mul_i32 s28, s7, 102400'); k(f's_add_u32 s28, s28, {src_const}')
        k('s_lshl_b32 s29, s3, 10'); k('s_add_u32 s28, s28, s29')
        for n in range(13):
            lab=None
            if n==12:
                lab=k.lab('dl'); k('s_cmp_ge_u32 s3, 4'); k(f's_cbranch_scc1 {lab}')
            k('s_mov_b32 m0, s29')
            k(f'buffer_load_dwordx4 v{V_L16}, s[{WS}:{WS+3}], s28 offen sc1 lds')
            if n<12:
                k('s_add_u32 s28, s28, 8192'); k('s_add_u32 s29, s29, 8192')
            if lab: k(lab+':')

    def dma_next_qkv(self):
        k=self.k
        end=k.lab('dn')
        k(f's_cmp_eq_u32 s3, {POLLW}'); k(f's_cbranch_scc1 {end}')
        k('s_and_b32 s28, s7, 1'); k('s_cmp_eq_u32 s28, 0')
        k(f's_cselect_b32 s30, s{P_WK}, s{P_WV}'); k(f's_cselect_b32 s31, s{P_WK+1}, s{P_WV+1}')
        srd(k,SB,30,25600)
        for t in range(4):
            lab=k.lab('wk')
            k(f's_add_u32 s28, s3, {7*t}')
            if t==3:
                k('s_cmp_ge_u32 s28, 25'); k(f's_cbranch_scc1 {lab}')
            k('s_lshl_b32 s29, s28, 10'); k(f's_add_u32 s30, s29, {L_WKV}')
            k('s_mov_b32 m0, s30')
            k(f'buffer_load_dwordx4 v{V_L16}, s[{SB}:{SB+3}], s29 offen lds')
            k(lab+':')
        k(f's_mul_i32 s28, s7, 102400'); k(f's_add_u32 s28, s28, {WQF}')
        k('s_lshl_b32 s29, s3, 10'); k('s_add_u32 s28, s28, s29')
        for n in range(15):
            lab=None
            if n==14:
                lab=k.lab('dl'); k('s_cmp_ge_u32 s3, 2'); k(f's_cbranch_scc1 {lab}')
            k('s_mov_b32 m0, s29')
            k(f'buffer_load_dwordx4 v{V_L16}, s[{WS}:{WS+3}], s28 offen sc1 lds')
            if n<14:
                k('s_add_u32 s28, s28, 7168'); k('s_add_u32 s29, s29, 7168')
            if lab: k(lab+':')
        k(end+':')
    def tlb_warm(self):
        k=self.k
        lab=k.lab('tw')
        k('s_cmp_lg_u32 s3, 6'); k(f's_cbranch_scc1 {lab}')
        k(f'v_lshlrev_b32 v200, 19, v{V_LANE}')
        k(f'buffer_load_dword v201, v200, s[{WS}:{WS+3}], 0 offen')
        for ptr,size in ((P_W1,640*3456),(P_W2,1728*1280),(P_OUT,2048*1280),(P_WO,640*1280),(P_B1,3456),(P_B2,1280)):
            srd(k,SA,ptr,size)
            k(f'buffer_load_dword v201, v200, s[{SA}:{SA+3}], 0 offen')
        if 'cpf' in os.environ.get('XP',''):
            k('s_getpc_b64 s[56:57]')
            k('mega_code_here:')
            k('s_mov_b32 s28, mega_code_end-mega_code_here-4')
            k(f'v_lshlrev_b32 v200, 7, v{V_LANE}')
            for n in range(8):
                k('v_min_u32 v202, s28, v200')
                k('global_load_dword v201, v202, s[56:57]')
                k('v_add_u32 v200, 8192, v200')
        k(lab+':')

    def frag_gemm(self, frags, WR, depth, nread, after=None):
        k=self.k
        n=len(frags); slots=depth+1
        reg=lambda i: WR+(i%slots)*4
        def issue(i):
            if frags[i].get('pre'): frags[i]['pre']()
            frags[i]['read'](reg(i))
        for i in range(min(depth,n)): issue(i)
        for i in range(n):
            if i+depth<n: issue(i+depth)
            rem=min(depth,n-1-i)
            w=f's_waitcnt lgkmcnt({rem*nread})'
            vm=frags[i].get('vm')
            if vm is not None:
                v=vm() if callable(vm) else vm
                if v is not None: w+=f' vmcnt({v})'
            k(w)
            frags[i]['mfma'](reg(i))
            if after and i in after: after[i]()

    def diag_stats(self,SX,SQ,S0,S1,tmp):
        k=self.k
        k(f'v_and_b32 v{tmp}, 3, v{V_LANE}')
        k(f'v_mov_b32 v{S1}, v{SQ}')
        for r in (1,2,3):
            k(f'v_cmp_eq_u32 vcc, {r}, v{tmp}'); k(f'v_cndmask_b32 v{S1}, v{S1}, v{SQ+r}, vcc')
        k(f'v_mov_b32 v{S0}, v{SX}')
    def diag_mask_on(self):
        k=self.k
        k('s_mov_b32 exec_lo, 0x00f0000f'); k('s_mov_b32 exec_hi, 0xf0000f00')
    def reduce_pairs(self, ACC, tmp, base):
        k=self.k
        k('s_mul_i32 s28, s4, 5120')
        k(f's_add_u32 s28, s28, {base}')
        k(f'v_add_u32 v{tmp}, s28, v{V_L16}')
        l1=k.lab('r1'); l2=k.lab('r2')
        k('s_cmp_eq_u32 s5, 1'); k(f's_cbranch_scc1 {l1}')
        for ft in (3,4): k(f'ds_write_b128 v{tmp}, v[{ACC+4*ft}:{ACC+4*ft+3}] offset:{ft*1024}')
        k(f's_branch {l2}')
        k(l1+':')
        for ft in (0,1,2): k(f'ds_write_b128 v{tmp}, v[{ACC+4*ft}:{ACC+4*ft+3}] offset:{ft*1024}')
        for i in range(8): k(f'v_mov_b32 v{ACC+i}, v{ACC+12+i}')
        k(l2+':')
    def reduce_pairs_finish(self, ACC, tmp, T):
        k=self.k
        k('s_mul_i32 s29, s5, 3072')
        k(f'v_add_u32 v{tmp}, s29, v{tmp}')
        for j in range(3): k(f'ds_read_b128 v[{T+4*j}:{T+4*j+3}], v{tmp} offset:{j*1024}')
        k('s_waitcnt lgkmcnt(0)')
        for i in range(12): k(f'v_add_f32 v{ACC+i}, v{ACC+i}, v{T+i}')

    def tile_offsets(self, sbase):
        k=self.k
        k('s_lshl_b32 s28, s6, 2'); k('s_add_u32 s28, s28, s4'); k('s_mul_i32 s28, s28, 20480')
        k('s_mul_i32 s29, s7, 5'); k('s_mul_i32 s30, s5, 3'); k('s_add_u32 s29, s29, s30')
        for j in range(3):
            k(f's_add_u32 s30, s29, {j}'); k('s_lshl_b32 s30, s30, 9')
            k(f's_add_u32 s{sbase+j}, s30, s28')

    def x_loads(self,XF,n,base_const,layer_stride,KS,per_half):
        k=self.k
        k('s_lshl_b32 s28, s6, 2'); k('s_add_u32 s28, s28, s4'); k(f's_mul_i32 s28, s28, {KS}'); k(f's_mul_i32 s29, s5, {per_half}'); k('s_add_u32 s28, s28, s29')
        k('s_lshl_b32 s28, s28, 10')
        if layer_stride:
            k(f's_mul_i32 s29, s12, {layer_stride}'); k('s_add_u32 s28, s28, s29')
        k(f's_add_u32 s28, s28, {base_const}')
        for i in range(n):
            k(f'buffer_load_dwordx4 v[{XF+4*i}:{XF+4*i+3}], v{V_L16}, s[{WS}:{WS+3}], s28 offen offset:{(i%4)*1024} sc1')
            if i%4==3: k('s_add_u32 s28, s28, 4096')

    def kv_flag(self,T):
        k=self.k
        nkf=k.lab('nkf')
        k('s_lshr_b32 s28, s7, 1'); k('s_cmp_lg_u32 s28, s4'); k(f's_cbranch_scc1 {nkf}')
        k('s_waitcnt vmcnt(0)')
        k('s_add_u32 s28, s13, 1'); k(f'v_mov_b32 v{T+5}, s28')
        k(f's_lshl_b32 s29, s6, {KSH}'); k('s_lshl_b32 s30, s7, 3'); k('s_add_u32 s29, s29, s30'); k('s_lshl_b32 s30, s5, 2'); k('s_add_u32 s29, s29, s30')
        k(f's_add_u32 s29, s29, {KVFLG}')
        k(f'v_mov_b32 v{T+6}, s29')
        k('s_mov_b64 exec, 1')
        k(f'buffer_store_dword v{T+5}, v{T+6}, s[{WS}:{WS+3}], 0 offen sc1')
        k('s_mov_b64 exec, -1')
        k(nkf+':')
    def kv_first(self,XF,WR,KVA,KVC,ONES,SX,SQ,T):
        k=self.k
        nokv=k.lab('nokv')
        S0,S1=T+2,T+3
        k('s_lshr_b32 s28, s7, 1'); k('s_cmp_lg_u32 s28, s4'); k(f's_cbranch_scc1 {nokv}')
        k(f'v_lshrrev_b32 v{T+4}, 2, v{V_F}'); k(f'v_lshl_add_u32 v{T+4}, v{V_G}, 3, v{T+4}'); k(f'v_mul_u32_u24 v{T+4}, 40, v{T+4}')
        k(f'v_and_b32 v{T+5}, 3, v{V_LANE}'); k(f'v_lshl_add_u32 v{T+4}, v{T+5}, 3, v{T+4}')
        k('s_mul_i32 s28, s5, 12800'); k(f's_add_u32 s28, s28, {L_WKV}'); k(f'v_add_u32 v{T+4}, s28, v{T+4}')
        kvd=k.lab('kvd')
        vl={(v,c):k.lab('kvv') for v in (0,1) for c in (0,1)}
        k('s_and_b32 s28, s7, 1'); k('s_lshl_b32 s28, s28, 1'); k('s_add_u32 s28, s28, s12')
        for idx,(v,c) in enumerate(((0,1),(0,0),(1,1))):
            k(f's_cmp_eq_u32 s28, {idx}'); k(f's_cbranch_scc1 {vl[(v,c)]}')
        k(f's_branch {vl[(1,0)]}')
        for (variant,with_cs),lab in vl.items():
            k(lab+':')
            fr=[]
            for i in range(10):
                for u in range(2):
                    def rd(r,i=i,u=u):
                        k(f'ds_read_b64_tr_b16 v[{r}:{r+1}], v{T+4} offset:{i*1280+u*32}')
                        k(f'ds_read_b64_tr_b16 v[{r+2}:{r+3}], v{T+4} offset:{i*1280+160+u*32}')
                    def mf(r,i=i,u=u,variant=variant,with_cs=with_cs):
                        c=KVA+4*u; cc=KVC+4*u
                        cs='0' if i==0 else f'v[{c}:{c+3}]'; cs2='0' if i==0 else f'v[{cc}:{cc+3}]'
                        X=f'v[{XF+4*i}:{XF+4*i+3}]'; W=f'v[{r}:{r+3}]'; O_=f'v[{ONES}:{ONES+3}]'
                        if variant==0:
                            k(f'v_mfma_f32_16x16x32_bf16 v[{c}:{c+3}], {W}, {X}, {cs}')
                            if with_cs: k(f'v_mfma_f32_16x16x32_bf16 v[{cc}:{cc+3}], {W}, {O_}, {cs2}')
                        else:
                            k(f'v_mfma_f32_16x16x32_bf16 v[{c}:{c+3}], {X}, {W}, {cs}')
                            if with_cs: k(f'v_mfma_f32_16x16x32_bf16 v[{cc}:{cc+3}], {O_}, {W}, {cs2}')
                        if u==0:
                            a0='0' if i==0 else f'v[{SX}:{SX+3}]'
                            k(f'v_mfma_f32_16x16x32_bf16 v[{SX}:{SX+3}], {O_}, {X}, {a0}')
                        else:
                            a0='0' if i==0 else f'v[{SQ}:{SQ+3}]'
                            k(f'v_mfma_f32_16x16x32_bf16 v[{SQ}:{SQ+3}], {X}, {X}, {a0}')
                    fr.append(dict(read=rd,mfma=mf,vm=((9-i) if (u==0 and not with_cs) else None)))
            self.frag_gemm(fr,WR,7,2)
            k(f's_branch {kvd}')
        k(kvd+':')
        nz=k.lab('nz'); pl=k.lab('npl'); pd=k.lab('npd')
        k('s_cmp_lg_u32 s12, 0'); k(f's_cbranch_scc1 {nz}')
        k('s_mov_b32 s30, 0')
        k(pl+':')
        k('s_waitcnt vmcnt(0)')
        k('v_cmp_eq_u32 vcc, 0, v201')
        k(f's_cbranch_vccz {pd}')
        k('v_mov_b32 v200, 0')
        k('buffer_load_dword v201, v200, s[60:63], 0 offen sc1')
        k('s_add_u32 s30, s30, 1'); k('s_cmp_lt_u32 s30, 0x40000'); k(f's_cbranch_scc1 {pl}')
        k('s_waitcnt vmcnt(0)')
        k(pd+':')
        k('v_readfirstlane_b32 s13, v201')
        k(f'v_mov_b32 v200, {L_NONCE}')
        k('ds_write_b32 v200, v201')
        k(nz+':')
        self.diag_stats(SX,SQ,S0,S1,T+6)
        k('s_lshl_b32 s28, s4, 8'); k('s_lshl_b32 s29, s5, 7'); k('s_add_u32 s28, s28, s29'); k(f's_add_u32 s28, s28, {L_STAT}')
        k(f'v_lshl_add_u32 v{T+6}, v{V_F}, 3, s28')
        self.diag_mask_on()
        k(f'ds_write_b64 v{T+6}, v[{S0}:{S1}]')
        k('s_mov_b64 exec, -1')
        k(f'v_add_u32 v{T+5}, {L_KVR}, v{V_L16}')
        a=k.lab('ka'); b_=k.lab('kb')
        k('s_cmp_eq_u32 s5, 1'); k(f's_cbranch_scc1 {a}')
        k(f'ds_write_b128 v{T+5}, v[{KVA+4}:{KVA+7}] offset:2048'); k(f'ds_write_b128 v{T+5}, v[{KVC+4}:{KVC+7}] offset:3072')
        k(f's_branch {b_}')
        k(a+':')
        k(f'ds_write_b128 v{T+5}, v[{KVA}:{KVA+3}]'); k(f'ds_write_b128 v{T+5}, v[{KVC}:{KVC+3}] offset:1024')
        for i in range(4):
            k(f'v_mov_b32 v{KVA+i}, v{KVA+4+i}'); k(f'v_mov_b32 v{KVC+i}, v{KVC+4+i}')
        k(b_+':')
        k('s_add_u32 s28, s13, 1'); k(f'v_mov_b32 v{T+6}, s28')
        k('s_lshl_b32 s29, s5, 2'); k(f's_add_u32 s29, s29, {L_PAIRF}'); k(f'v_mov_b32 v{T+7}, s29')
        k('s_waitcnt lgkmcnt(0)')
        k(f'ds_write_b32 v{T+7}, v{T+6}')
        k(f'v_xor_b32 v{T+7}, 4, v{T+7}')
        sp=k.lab('pr'); spd=k.lab('prd')
        k('s_mov_b32 s30, 0')
        k(sp+':')
        k(f'ds_read_b32 v{T+8}, v{T+7}')
        k('s_waitcnt lgkmcnt(0)')
        k(f'v_cmp_eq_u32 vcc, s28, v{T+8}')
        k(f's_cbranch_vccnz {spd}')
        k('s_add_u32 s30, s30, 1'); k('s_cmp_lt_u32 s30, 0x100000'); k(f's_cbranch_scc1 {sp}')
        k(spd+':')
        KW=WR
        k('s_lshl_b32 s28, s5, 11'); k(f's_add_u32 s28, s28, {L_KVR}')
        k(f'v_add_u32 v{T+5}, s28, v{V_L16}')
        k(f'ds_read_b128 v[{KW}:{KW+3}], v{T+5}'); k(f'ds_read_b128 v[{KW+4}:{KW+7}], v{T+5} offset:1024')
        k('s_lshl_b32 s28, s4, 8'); k(f's_add_u32 s28, s28, {L_STAT}')
        k(f'v_lshl_add_u32 v{T+6}, v{V_F}, 3, s28')
        k(f'ds_read_b64 v[{T+10}:{T+11}], v{T+6}'); k(f'ds_read_b64 v[{T+12}:{T+13}], v{T+6} offset:128')
        k('s_lshl_b32 s28, s5, 10'); k(f's_add_u32 s28, s28, {L_KVCS}'); k(f'v_add_u32 v{T+7}, s28, v{V_L16}')
        c0=k.lab('c0'); c1=k.lab('c1')
        k('s_cmp_eq_u32 s12, 0'); k(f's_cbranch_scc1 {c0}')
        k(f'ds_read_b128 v[{KVC}:{KVC+3}], v{T+7}')
        k('s_waitcnt lgkmcnt(0)')
        k(f's_branch {c1}')
        k(c0+':')
        k('s_waitcnt lgkmcnt(0)')
        for i in range(4): k(f'v_add_f32 v{KVC+i}, v{KVC+i}, v{KW+4+i}')
        k(f'ds_write_b128 v{T+7}, v[{KVC}:{KVC+3}]')
        k(c1+':')
        for i in range(4): k(f'v_add_f32 v{KVA+i}, v{KVA+i}, v{KW+i}')
        MEAN,RSTD=T+14,T+15
        k(f'v_add_f32 v{T+10}, v{T+10}, v{T+12}'); k(f'v_add_f32 v{T+11}, v{T+11}, v{T+13}')
        k(f'v_mul_f32 v{MEAN}, {hex(f2u(1/640))}, v{T+10}'); k(f'v_mul_f32 v{T+11}, {hex(f2u(1/640))}, v{T+11}')
        k(f'v_fma_f32 v{T+11}, -v{MEAN}, v{MEAN}, v{T+11}'); k(f'v_max_f32 v{T+11}, 0, v{T+11}')
        k(f'v_add_f32 v{T+11}, {hex(f2u(1e-5))}, v{T+11}'); k(f'v_rsq_f32 v{RSTD}, v{T+11}')
        k(f'v_mul_f32 v{MEAN}, v{MEAN}, v{RSTD}')
        k('s_lshl_b32 s30, s6, 6'); k('s_lshl_b32 s31, s4, 4'); k('s_add_u32 s30, s30, s31')
        k('s_lshr_b32 s31, s30, 5'); k('s_mul_i32 s31, s31, 3584')
        k(f's_mul_i32 s32, s12, {KV_D}'); k('s_add_u32 s31, s31, s32'); k(f's_add_u32 s31, s31, {KVB[0]}')
        k('s_lshr_b32 s32, s30, 4'); k('s_and_b32 s32, s32, 1')
        isv2=k.lab('isv2')
        k('s_and_b32 s28, s7, 1'); k('s_cmp_eq_u32 s28, 1'); k(f's_cbranch_scc1 {isv2}')
        for i in range(4):
            k(f'v_mul_f32 v{KVA+i}, v{KVA+i}, v{RSTD}'); k(f'v_fma_f32 v{KVA+i}, -v{MEAN}, v{KVC+i}, v{KVA+i}')
        k('s_lshl_b32 s28, s5, 2'); k(f'v_add_u32 v{T+6}, s28, v{V_G}')
        k(f'v_cmp_eq_u32 vcc, 5, v{T+6}')
        for i in range(4): k(f'v_cndmask_b32 v{KVA+i}, v{KVA+i}, 0, vcc')
        k(f'v_cvt_pk_bf16_f32 v{KVA}, v{KVA}, v{KVA+1}'); k(f'v_cvt_pk_bf16_f32 v{KVA+1}, v{KVA+2}, v{KVA+3}')
        k('s_lshl_b32 s28, s32, 4'); k(f'v_add_u32 v{T+7}, s28, v{V_F}')
        k(f'v_lshrrev_b32 v{T+8}, 1, v{T+6}'); k(f'v_lshlrev_b32 v{T+8}, 9, v{T+8}')
        k(f'v_lshl_add_u32 v{T+8}, v{T+7}, 4, v{T+8}')
        k(f'v_and_b32 v{T+9}, 1, v{T+6}'); k(f'v_lshl_add_u32 v{T+8}, v{T+9}, 3, v{T+8}')
        k(f'v_subrev_u32 v{T+9}, 4, v{T+6}'); k(f'v_lshlrev_b32 v{T+9}, 8, v{T+9}')
        k(f'v_lshl_add_u32 v{T+9}, v{T+7}, 3, v{T+9}'); k(f'v_add_u32 v{T+9}, 3072, v{T+9}')
        k(f'v_cmp_gt_u32 vcc, 4, v{T+6}'); k(f'v_cndmask_b32 v{T+8}, v{T+9}, v{T+8}, vcc')
        k(f'v_cmp_gt_u32 vcc, 6, v{T+6}'); k(f'v_mov_b32 v{T+9}, {OOB}'); k(f'v_cndmask_b32 v{T+8}, v{T+9}, v{T+8}, vcc')
        k(f'buffer_store_dwordx2 v[{KVA}:{KVA+1}], v{T+8}, s[{WS}:{WS+3}], s31 offen sc1')
        k(f's_branch {nokv}')
        k(isv2+':')
        k('s_lshl_b32 s28, s4, 8'); k(f's_add_u32 s28, s28, {L_STAT}')
        k(f'v_lshl_add_u32 v{T+6}, v{V_G}, 5, s28')
        Y=WR+8
        k(f'ds_read_b128 v[{Y}:{Y+3}], v{T+6}'); k(f'ds_read_b128 v[{Y+4}:{Y+7}], v{T+6} offset:16')
        k(f'ds_read_b128 v[{Y+8}:{Y+11}], v{T+6} offset:128'); k(f'ds_read_b128 v[{Y+12}:{Y+15}], v{T+6} offset:144')
        k('s_waitcnt lgkmcnt(0)')
        for i in range(4):
            s_,q_=Y+2*i,Y+2*i+1
            k(f'v_add_f32 v{s_}, v{s_}, v{s_+8}'); k(f'v_add_f32 v{q_}, v{q_}, v{q_+8}')
            k(f'v_mul_f32 v{s_}, {hex(f2u(1/640))}, v{s_}'); k(f'v_mul_f32 v{q_}, {hex(f2u(1/640))}, v{q_}')
            k(f'v_fma_f32 v{q_}, -v{s_}, v{s_}, v{q_}'); k(f'v_max_f32 v{q_}, 0, v{q_}'); k(f'v_add_f32 v{q_}, {hex(f2u(1e-5))}, v{q_}')
            k(f'v_rsq_f32 v{q_}, v{q_}')
            k(f'v_fma_f32 v{KVA+i}, -v{s_}, v{KVC+i}, v{KVA+i}')
            k(f'v_mul_f32 v{KVA+i}, v{KVA+i}, v{q_}')
        k('s_lshl_b32 s28, s5, 4'); k(f'v_add_u32 v{T+6}, s28, v{V_F}')
        k(f'v_cmp_eq_u32 vcc, 20, v{T+6}')
        for i in range(4): k(f'v_cndmask_b32 v{KVA+i}, v{KVA+i}, 1.0, vcc')
        k(f'v_cmp_lt_u32 vcc, 20, v{T+6}')
        for i in range(4): k(f'v_cndmask_b32 v{KVA+i}, v{KVA+i}, 0, vcc')
        k(f'v_cvt_pk_bf16_f32 v{KVA}, v{KVA}, v{KVA+1}'); k(f'v_cvt_pk_bf16_f32 v{KVA+1}, v{KVA+2}, v{KVA+3}')
        k('s_lshl_b32 s28, s32, 10'); k('s_add_u32 s28, s28, 1024')
        k(f'v_and_b32 v{T+7}, 1, v{V_G}'); k(f'v_lshlrev_b32 v{T+7}, 9, v{T+7}')
        k(f'v_lshl_add_u32 v{T+7}, v{T+6}, 4, v{T+7}')
        k(f'v_lshrrev_b32 v{T+8}, 1, v{V_G}'); k(f'v_lshl_add_u32 v{T+7}, v{T+8}, 3, v{T+7}')
        k(f'v_add_u32 v{T+7}, s28, v{T+7}')
        k(f'buffer_store_dwordx2 v[{KVA}:{KVA+1}], v{T+7}, s[{WS}:{WS+3}], s31 offen sc1')
        k(nokv+':')

    def phase_qkv(self):
        k=self.k
        XF,WR,ACC,CSA,KVA,KVC,ONES,T=24,64,96,116,124,132,140,144
        SX,SQ=176,180
        l0=k.lab('x0'); l1=k.lab('x1')
        for i in range(4): k(f'v_mov_b32 v{ONES+i}, 0x3f803f80')
        k('s_cmp_eq_u32 s12, 0'); k(f's_cbranch_scc1 {l0}')
        self.x_loads(XF,10,X2B,0,20,10)
        k('s_waitcnt vmcnt(9)')
        k('s_barrier')
        k(f's_branch {l1}')
        k(l0+':')
        nk=k.lab('nk')
        k('s_lshr_b32 s28, s7, 1'); k('s_cmp_lg_u32 s28, s4'); k(f's_cbranch_scc1 {nk}')
        k('s_waitcnt vmcnt(0)')
        k('v_mov_b32 v200, 0')
        k('buffer_load_dword v201, v200, s[60:63], 0 offen sc1')
        k(nk+':')
        k(l1+':')
        self.mark("q.start")
        self.kv_first(XF,WR,KVA,KVC,ONES,SX,SQ,T)
        self.mark("q.kv")
        l2=k.lab('l2')
        k('s_cmp_lg_u32 s12, 0'); k(f's_cbranch_scc1 {l2}')
        k('s_waitcnt vmcnt(0)')
        self.kv_flag(T)
        k('s_waitcnt lgkmcnt(0)')
        k('s_barrier')
        k(f'v_mov_b32 v200, {L_NONCE}')
        k('ds_read_b32 v201, v200')
        k('s_waitcnt lgkmcnt(0)')
        k('v_readfirstlane_b32 s13, v201')
        self.mark("q.b2")
        self.conv_issue(L_RED,self.CONV_A+self.CONV_B)
        self.mark("q.ci")
        k(l2+':')
        vA,vC=T,T+1
        S0,S1=T+2,T+3
        k('s_mul_i32 s28, s5, 51200')
        k(f'v_add_u32 v{vA}, s28, v{V_TR}')
        k('s_lshl_b32 s29, s4, 5')
        k(f'v_add_u32 v{vC}, s29, v{vA}')
        def stat_mfma(i,ft):
            X=f'v[{XF+4*i}:{XF+4*i+3}]'
            if ft==0:
                cs='0' if i==0 else f'v[{SX}:{SX+3}]'
                k(f'v_mfma_f32_16x16x32_bf16 v[{SX}:{SX+3}], v[{ONES}:{ONES+3}], {X}, {cs}')
            if ft==2:
                cs='0' if i==0 else f'v[{SQ}:{SQ+3}]'
                k(f'v_mfma_f32_16x16x32_bf16 v[{SQ}:{SQ+3}], {X}, {X}, {cs}')
        def mk(with_cs):
            fr=[]
            if not with_cs:
                k('s_mul_i32 s28, s5, 10240'); k(f'v_add_u32 v{vA}, s28, v{V_L16}'); k(f'v_add_u32 v{vC}, 61440, v{vA}')
                for i in range(10):
                    for ft in range(5):
                        va,imm=(vA,ft*20480+i*1024) if ft<3 else (vC,(ft-3)*20480+i*1024)
                        def rd(r,va=va,imm=imm): k(f'ds_read_b128 v[{r}:{r+3}], v{va} offset:{imm}')
                        def mf(r,i=i,ft=ft):
                            c=ACC+4*ft; cs='0' if i==0 else f'v[{c}:{c+3}]'
                            k(f'v_mfma_f32_16x16x32_bf16 v[{c}:{c+3}], v[{r}:{r+3}], v[{XF+4*i}:{XF+4*i+3}], {cs}')
                            stat_mfma(i,ft)
                        fr.append(dict(read=rd,mfma=mf,vm=(9-i) if ft==0 else None))
                self.frag_gemm(fr,WR,GD,1)
                return
            for i in range(10):
                for ft in range(5):
                    def rd(r,i=i,ft=ft):
                        k(f'ds_read_b64_tr_b16 v[{r}:{r+1}], v{vA} offset:{i*5120+ft*32}')
                        k(f'ds_read_b64_tr_b16 v[{r+2}:{r+3}], v{vA} offset:{i*5120+1280+ft*32}')
                    def mf(r,i=i,ft=ft):
                        c=ACC+4*ft; cs='0' if i==0 else f'v[{c}:{c+3}]'
                        k(f'v_mfma_f32_16x16x32_bf16 v[{c}:{c+3}], v[{r}:{r+3}], v[{XF+4*i}:{XF+4*i+3}], {cs}')
                        if ft==4:
                            cs='0' if i==0 else f'v[{CSA+4}:{CSA+7}]'
                            k(f'v_mfma_f32_16x16x32_bf16 v[{CSA+4}:{CSA+7}], v[{r}:{r+3}], v[{ONES}:{ONES+3}], {cs}')
                        stat_mfma(i,ft)
                    fr.append(dict(read=rd,mfma=mf))
                def rd(r,i=i):
                    k(f'ds_read_b64_tr_b16 v[{r}:{r+1}], v{vC} offset:{i*5120}')
                    k(f'ds_read_b64_tr_b16 v[{r+2}:{r+3}], v{vC} offset:{i*5120+1280}')
                def mf(r,i=i):
                    cs='0' if i==0 else f'v[{CSA}:{CSA+3}]'
                    k(f'v_mfma_f32_16x16x32_bf16 v[{CSA}:{CSA+3}], v[{r}:{r+3}], v[{ONES}:{ONES+3}], {cs}')
                fr.append(dict(read=rd,mfma=mf))
            self.frag_gemm(fr,WR,7,2)
        m1=k.lab('m1'); m2=k.lab('m2')
        k('s_cmp_eq_u32 s12, 0'); k(f's_cbranch_scc0 {m1}')
        mk(True)
        k('s_mul_i32 s28, s5, 320'); k(f's_add_u32 s28, s28, {L_CS}')
        k(f'v_lshl_add_u32 v{T+7}, v{V_G}, 4, s28')
        k('s_lshl_b32 s29, s4, 6'); k(f'v_add_u32 v{T+8}, s29, v{T+7}')
        k(f'ds_write_b128 v{T+8}, v[{CSA}:{CSA+3}]')
        k(f'ds_write_b128 v{T+7}, v[{CSA+4}:{CSA+7}] offset:256')
        k(f's_branch {m2}')
        k(m1+':')
        mk(False)
        k(m2+':')
        self.mark("q.main")
        l3=k.lab('l3'); l4=k.lab('l4')
        k('s_cmp_eq_u32 s12, 0'); k(f's_cbranch_scc1 {l3}')
        self.kv_flag(T)
        k(f's_mov_b32 s43, {L_RED}')
        k(f's_branch {l4}')
        k(l3+':')
        k('s_waitcnt vmcnt(0)')
        self.mark("q.cw")
        self.conv_finish(200,L_RED)
        k(f's_mov_b32 s43, {L_WKV}')
        k(l4+':')
        self.mark("q.mm")
        self.diag_stats(SX,SQ,S0,S1,T+6)
        k('s_lshl_b32 s28, s4, 8'); k('s_lshl_b32 s29, s5, 7'); k('s_add_u32 s28, s28, s29'); k(f's_add_u32 s28, s28, {L_STAT}')
        k(f'v_lshl_add_u32 v{T+6}, v{V_F}, 3, s28')
        self.diag_mask_on()
        k(f'ds_write_b64 v{T+6}, v[{S0}:{S1}]')
        k('s_mov_b64 exec, -1')
        self.reduce_pairs(ACC,T+9,'s43')
        k('s_waitcnt lgkmcnt(0)')
        k('s_barrier')
        Z=XF
        k('s_lshl_b32 s28, s4, 8'); k(f's_add_u32 s28, s28, {L_STAT}')
        k(f'v_lshl_add_u32 v{T+6}, v{V_F}, 3, s28')
        k(f'ds_read_b64 v[{T+10}:{T+11}], v{T+6}'); k(f'ds_read_b64 v[{T+12}:{T+13}], v{T+6} offset:128')
        k('s_mul_i32 s28, s5, 192'); k(f's_add_u32 s28, s28, {L_CS}')
        k(f'v_lshl_add_u32 v{T+7}, v{V_G}, 4, s28')
        CS0=Z+12
        for j in range(3):
            k(f'ds_read_b128 v[{CS0+8*j}:{CS0+8*j+3}], v{T+7} offset:{j*64}')
            k(f'ds_read_b128 v[{CS0+8*j+4}:{CS0+8*j+7}], v{T+7} offset:{320+j*64}')
        self.reduce_pairs_finish(ACC,T+9,Z)
        MEAN,RSTD=T+14,T+15
        k(f'v_add_f32 v{T+10}, v{T+10}, v{T+12}'); k(f'v_add_f32 v{T+11}, v{T+11}, v{T+13}')
        k(f'v_mul_f32 v{MEAN}, {hex(f2u(1/640))}, v{T+10}'); k(f'v_mul_f32 v{T+11}, {hex(f2u(1/640))}, v{T+11}')
        k(f'v_fma_f32 v{T+11}, -v{MEAN}, v{MEAN}, v{T+11}'); k(f'v_max_f32 v{T+11}, 0, v{T+11}')
        k(f'v_add_f32 v{T+11}, {hex(f2u(1e-5))}, v{T+11}'); k(f'v_rsq_f32 v{RSTD}, v{T+11}')
        k(f'v_mul_f32 v{MEAN}, v{MEAN}, v{RSTD}')
        k(f'v_mul_f32 v{T+16}, {hex(f2u(QSCALE))}, v{RSTD}'); k(f'v_mul_f32 v{T+17}, {hex(f2u(QSCALE))}, v{MEAN}')
        k('s_lshl_b32 s28, s4, 4'); k(f'v_add_u32 v{T+18}, s28, v{V_F}'); k(f'v_mul_u32_u24 v{T+18}, 160, v{T+18}')
        k(f'v_lshl_add_u32 v{T+18}, v{V_G}, 3, v{T+18}')
        k('s_mul_i32 s28, s5, 96'); k(f's_add_u32 s28, s28, {L_QL}'); k(f'v_add_u32 v{T+18}, s28, v{T+18}')
        for j in range(3):
            if j==2:
                q3=k.lab('q3'); k('s_cmp_eq_u32 s5, 1'); k(f's_cbranch_scc1 {q3}')
            for i in range(4):
                r=ACC+4*j+i
                k(f'v_add_f32 v{CS0+8*j+i}, v{CS0+8*j+i}, v{CS0+8*j+4+i}')
                k(f'v_mul_f32 v{r}, v{r}, v{T+16}'); k(f'v_fma_f32 v{r}, -v{T+17}, v{CS0+8*j+i}, v{r}')
            k(f'v_cvt_pk_bf16_f32 v{ACC+4*j}, v{ACC+4*j}, v{ACC+4*j+1}'); k(f'v_cvt_pk_bf16_f32 v{ACC+4*j+1}, v{ACC+4*j+2}, v{ACC+4*j+3}')
            k(f'ds_write_b64 v{T+18}, v[{ACC+4*j}:{ACC+4*j+1}] offset:{j*32}')
            if j==2: k(q3+':')
        k('s_waitcnt lgkmcnt(0)')
        self.mark("q.epi")
        self.publish(1)
        self.mark("q.pub")

    def phase_attn(self):
        k=self.k
        D=4; SL=14
        Q1=[24,30]; Q2=[28,34]
        S=[36,52]; O=[68,84]; P=100
        KB=108
        K1=lambda s: KB+s*SL
        V=lambda s: KB+s*SL+4
        K2=lambda s: KB+s*SL+12
        T=KB+D*SL
        VL8=T; NEG=[176,192]
        k(f'v_mul_u32_u24 v{T+1}, 160, v{V_L31}')
        k('s_mul_i32 s28, s4, 40'); k(f's_add_u32 s28, s28, {L_QL}')
        k(f'v_add_u32 v{T+1}, s28, v{T+1}')
        k(f'v_lshl_add_u32 v{T+2}, v{V_H}, 4, v{T+1}')
        for q in range(2):
            k(f'ds_read_b64 v[{Q1[q]}:{Q1[q]+1}], v{T+2} offset:{q*5120}')
            k(f'ds_read_b64 v[{Q1[q]+2}:{Q1[q]+3}], v{T+2} offset:{q*5120+8}')
            k(f'ds_read_b64 v[{Q2[q]}:{Q2[q]+1}], v{T+1} offset:{q*5120+32}')
        k(f'v_lshlrev_b32 v{VL8}, 3, v{V_LANE}')
        if os.environ.get('MASKV','1')=='1':
            k(f'v_mov_b32 v217, {OOB}')
            k(f'v_cmp_eq_u32 vcc, 0, v{V_H}'); k(f'v_cndmask_b32 v{VL8}, v217, v{VL8}, vcc')
            k(f'v_cmp_ge_u32 vcc, 20, v{V_L31}'); k(f'v_cndmask_b32 v216, v217, v{V_L16}, vcc')
        k('s_waitcnt lgkmcnt(0)')
        k(f'v_cmp_eq_u32 vcc, 0, v{V_H}')
        for q in range(2):
            for i in range(2): k(f'v_cndmask_b32 v{Q2[q]+i}, 0, v{Q2[q]+i}, vcc')
        self.mark("a.dma")
        VFA,VF=T+6,T+7
        k(f'v_lshlrev_b32 v{VFA}, {KSH}, v{V_G}'); k(f'v_lshl_add_u32 v{VFA}, v{V_F}, 2, v{VFA}'); k(f'v_add_u32 v{VFA}, {KVFLG}, v{VFA}')
        k('s_add_u32 s38, s13, 1')
        k('s_lshr_b32 s39, s6, 2')
        def spin_group(sg):
            lp=k.lab('sg'); dn=k.lab('sgd')
            k(f's_lshl_b32 s28, s{sg}, {KSH+2}'); k('s_mov_b32 s30, 0')
            k(lp+':')
            k(f'buffer_load_dword v{VF}, v{VFA}, s[{WS}:{WS+3}], s28 offen sc1')
            k('s_waitcnt vmcnt(0)')
            k(f'v_subrev_u32 v{VF}, s38, v{VF}')
            k(f'v_cmp_le_u32 vcc, 32, v{VF}')
            k(f's_cbranch_vccz {dn}')
            k('s_sleep 2')
            k('s_add_u32 s30, s30, 1'); k('s_cmp_lt_u32 s30, 0x40000'); k(f's_cbranch_scc1 {lp}')
            k(dn+':')
        k(f'v_mov_b32 v{T+8}, {L_BADF}'); k(f'v_mov_b32 v{T+9}, 0'); k(f'ds_write_b32 v{T+8}, v{T+9}')
        k('s_mov_b32 s49, 0')
        k('s_waitcnt lgkmcnt(0)')
        pw=k.lab('pw')
        k(f's_cmp_lg_u32 s3, {POLLW}'); k(f's_cbranch_scc1 {pw}')
        spin_group(39)
        k(pw+':')
        k('s_barrier')
        self.mark("a.wait")
        if 'tw2' in os.environ.get('XP',''):
            tw=k.lab('tw')
            k('s_cmp_lg_u32 s12, 0'); k(f's_cbranch_scc1 {tw}')
            k('s_cmp_lg_u32 s3, 6'); k(f's_cbranch_scc1 {tw}')
            k(f'v_lshlrev_b32 v218, 19, v{V_LANE}')
            k(f'buffer_load_dword v219, v218, s[{WS}:{WS+3}], 0 offen')
            k(tw+':')
        KVS=' sc1' if os.environ.get('KVSC1') else ''
        MASKV=os.environ.get('MASKV','1')=='1'
        VVA=216 if MASKV else V_L16
        def ld_part(slot,part):
            if part==0:
                k(f'buffer_load_dwordx4 v[{K1(slot)}:{K1(slot)+3}], v{V_L16}, s[{WS}:{WS+3}], s32 offen'+KVS)
                k(f'buffer_load_dwordx2 v[{K2(slot)}:{K2(slot)+1}], v{VL8}, s[{WS}:{WS+3}], s32 offen offset:3072'+KVS)
            else:
                k(f'buffer_load_dwordx4 v[{V(slot)}:{V(slot)+3}], v{VVA}, s[{WS}:{WS+3}], s32 offen offset:1024'+KVS)
                k(f'buffer_load_dwordx4 v[{V(slot)+4}:{V(slot)+7}], v{VVA}, s[{WS}:{WS+3}], s32 offen offset:2048'+KVS)
                k('s_add_u32 s32, s32, 7168')
        def ld(slot):
            k(f'buffer_load_dwordx4 v[{K1(slot)}:{K1(slot)+3}], v{V_L16}, s[{WS}:{WS+3}], s32 offen'+KVS)
            k(f'buffer_load_dwordx2 v[{K2(slot)}:{K2(slot)+1}], v{VL8}, s[{WS}:{WS+3}], s32 offen offset:3072'+KVS)
            k(f'buffer_load_dwordx4 v[{V(slot)}:{V(slot)+3}], v{VVA}, s[{WS}:{WS+3}], s32 offen offset:1024'+KVS)
            k(f'buffer_load_dwordx4 v[{V(slot)+4}:{V(slot)+7}], v{VVA}, s[{WS}:{WS+3}], s32 offen offset:2048'+KVS)
            k('s_add_u32 s32, s32, 7168')
        def run_loop(exact,prefetch):
            def qk1(q,s):
                c = f'v[{NEG[q]}:{NEG[q]+15}]' if exact else '0'
                k(f'v_mfma_f32_32x32x16_bf16 v[{S[q]}:{S[q]+15}], v[{K1(s)}:{K1(s)+3}], v[{Q1[q]}:{Q1[q]+3}], {c}')
            def qk2(q,s): k(f'v_mfma_f32_32x32x8_bf16 v[{S[q]}:{S[q]+15}], v[{K2(s)}:{K2(s)+1}], v[{Q2[q]}:{Q2[q]+1}], v[{S[q]}:{S[q]+15}]')
            def pv(q,s,hf): k(f'v_mfma_f32_32x32x16_bf16 v[{O[q]}:{O[q]+15}], v[{V(s)+4*hf}:{V(s)+4*hf+3}], v[{P+4*hf}:{P+4*hf+3}], v[{O[q]}:{O[q]+15}]')
            def ex(q,a):
                for i in range(a,a+4): k(f'v_exp_f32 v{S[q]+i}, v{S[q]+i}')
            def cv(q,a):
                k(f'v_cvt_pk_bf16_f32 v{P+a//2}, v{S[q]+a}, v{S[q]+a+1}')
                k(f'v_cvt_pk_bf16_f32 v{P+a//2+1}, v{S[q]+a+2}, v{S[q]+a+3}')
            k(f's_mul_i32 s33, s12, {KV_D}'); k(f's_add_u32 s33, s33, {KVB[0]}')
            k('s_mul_i32 s28, s5, 3584'); k('s_add_u32 s33, s33, s28')
            k(f's_mul_i32 s28, s39, {8*3584}'); k('s_add_u32 s32, s33, s28')
            k(f's_add_u32 s33, s33, {64*3584}')
            def fload():
                k('s_add_u32 s45, s45, 1'); k('s_and_b32 s45, s45, 7'); k(f's_lshl_b32 s46, s45, {KSH+2}')
                k(f'buffer_load_dword v{VF}, v{VFA}, s[{WS}:{WS+3}], s46 offen sc1')
            def fcheck():
                ok=k.lab('fok')
                k(f'v_subrev_u32 v{VF}, s38, v{VF}')
                k(f'v_cmp_le_u32 vcc, 32, v{VF}')
                k(f's_cbranch_vccz {ok}')
                spin_group(44)
                k(ok+':')
                k('s_cmp_ge_u32 s32, s33'); k(f's_cselect_b32 s28, {64*3584}, 0'); k('s_sub_u32 s32, s32, s28')
            k('s_mov_b32 s45, s39')
            fload(); k('s_mov_b32 s44, s45')
            for t in range(D-1): ld(t)
            for q in range(2):
                for i in range(16): k(f'v_mov_b32 v{O[q]+i}, 0')
            for i in range(4,8): k(f'v_mov_b32 v{P+i}, 0')
            for i in range(4,8): k(f'v_mov_b32 v{V(D-1)+i}, 0')
            k(f's_waitcnt vmcnt({4*(D-2)})')
            qk1(0,0); qk2(0,0)
            k('s_nop 7')
            spf = prefetch and 'spf' in os.environ.get('XP','')
            def body(dma, w1=None, prev_ops=None):
                ops=[]
                PR=os.environ.get('PRIO','')
                if PR=='alt':
                    pa=k.lab('pa'); pb=k.lab('pb')
                    k('s_add_u32 s47, s34, s5'); k('s_and_b32 s47, s47, 1'); k('s_cmp_eq_u32 s47, 0'); k(f's_cbranch_scc1 {pa}')
                    k('s_setprio 1'); k(f's_branch {pb}'); k(pa+':'); k('s_setprio 0'); k(pb+':')
                for t in range(D):
                    s=t; sn=(t+1)%D; sp=(t-1)%D
                    n=4
                    qk1(1,s); ex(0,0); pv(1,sp,1)
                    if t==1: fcheck()
                    if t==2:
                        fload(); n+=1
                    if dma and 'nowof' not in os.environ.get('XP',''):
                        k('s_min_u32 m0, s35, 101376')
                        k('s_add_u32 s37, s36, m0')
                        k(f'buffer_load_dwordx4 v{V_L16}, s[{WS}:{WS+3}], s37 offen sc1 lds')
                        k('s_add_u32 s35, s35, 8192'); n+=1
                    if w1 is not None:
                        for e in range(2): self.f1_wload(w1+2*t+e)
                        n+=2
                    LDP=os.environ.get('LDP','A')
                    if LDP=='A':
                        ld(sp)
                        if t==2: k('s_mov_b32 s44, s45')
                        ex(0,4); cv(0,0); qk2(1,s); cv(0,4); ex(0,8); pv(0,s,0); ex(0,12); cv(0,8); cv(0,12)
                    elif LDP=='B':
                        ld_part(sp,0)
                        if t==2: k('s_mov_b32 s44, s45')
                        ex(0,4); cv(0,0); qk2(1,s); ld_part(sp,1); cv(0,4); ex(0,8); pv(0,s,0); ex(0,12); cv(0,8); cv(0,12)
                    elif LDP=='C':
                        if t==2: k('s_mov_b32 s44, s45')
                        ex(0,4); cv(0,0); qk2(1,s); cv(0,4); ex(0,8); pv(0,s,0); ld(sp); ex(0,12); cv(0,8); cv(0,12)
                    ops.append(n)
                    if t>0: nv=ops[t-1]+ops[t]
                    elif prev_ops is not None: nv=prev_ops+ops[0]
                    else: nv=4+ops[0]
                    k(f's_waitcnt vmcnt({nv})')
                    qk1(0,sn); ex(1,0); pv(0,s,1); ex(1,4); cv(1,0); qk2(0,sn); cv(1,4); ex(1,8); pv(1,s,0); ex(1,12); cv(1,8); cv(1,12)
                return ops[-1]
            if spf:
                k('s_and_b32 s28, s6, 3'); k('s_lshl_b32 s28, s28, 3'); k('s_add_u32 s28, s28, s7'); k('s_lshl_b32 s28, s28, 3'); k('s_add_u32 s28, s28, s3')
                k('s_lshl_b32 s28, s28, 13'); k(f's_add_u32 s28, s28, {W1F}')
                k('s_add_u32 s62, s86, s28'); k('s_addc_u32 s63, s87, 0')
            if os.environ.get('PRIO','')=='young':
                py=k.lab('py'); k('s_cmp_eq_u32 s5, 0'); k(f's_cbranch_scc1 {py}'); k('s_setprio 1'); k(py+':')
            k('s_mov_b32 s34, 0')
            L1=k.lab('al'); k(L1+':')
            body(False)
            k('s_add_u32 s34, s34, 1'); k('s_cmp_lt_u32 s34, 4'); k(f's_cbranch_scc1 {L1}')
            if prefetch:
                nw=k.lab('nw')
                k('s_cmp_lg_u32 s12, 0'); k(f's_cbranch_scc1 {nw}')
                lw=k.lab('lw'); lwd=k.lab('lwd')
                k(f'v_lshrrev_b32 v208, 1, v{V_LANE}'); k(f'v_lshlrev_b32 v208, {FSH}, v208')
                k(f'v_and_b32 v209, 1, v{V_LANE}'); k('v_lshl_add_u32 v208, v209, 4, v208')
                k('s_mov_b32 s30, 0')
                k(lw+':')
                k(f'buffer_load_dwordx4 v[212:215], v208, s[{WS}:{WS+3}], 0 offen offset:{FLG} sc1')
                k('s_waitcnt vmcnt(0)')
                for r in (212,213,214,215): k(f'v_subrev_u32 v{r}, s38, v{r}')
                k('v_max_u32 v212, v212, v213'); k('v_max_u32 v214, v214, v215'); k('v_max_u32 v212, v212, v214')
                k('v_cmp_le_u32 vcc, 32, v212')
                k(f's_cbranch_vccz {lwd}')
                k('s_add_u32 s30, s30, 1'); k('s_cmp_lt_u32 s30, 0x40000'); k(f's_cbranch_scc1 {lw}')
                k(lwd+':')
                k(nw+':')
                k('s_lshl_b32 s35, s3, 10')
                k(f's_mul_i32 s36, s7, 102400'); k(f's_add_u32 s36, s36, {WOF}')
            L2=k.lab('bl'); k(L2+':')
            last=body(prefetch)
            UNR=2 if (prefetch and self.F1R) else 0
            k('s_add_u32 s34, s34, 1'); k(f's_cmp_lt_u32 s34, {8-UNR}'); k(f's_cbranch_scc1 {L2}')
            if UNR:
                k('s_min_u32 s42, s40, 53'); k('s_mul_i32 s42, s42, 40960'); k(f's_add_u32 s42, s42, {W1F}')
                last=body(True,w1=0,prev_ops=last)
                body(True,w1=8,prev_ops=last)
            pv(1,D-1,1)
            if os.environ.get('PRIO',''): k('s_setprio 0')
            k('s_waitcnt vmcnt(0)')
        run_loop(False,True)
        self.mark("a.loop")
        COMBINE=k.lab('combine'); FALLBACK=k.lab('fallback')
        k(COMBINE+':')
        k('s_nop 7'); k('s_nop 7')
        c1=k.lab('c1'); c2=k.lab('c2')
        k('s_mul_i32 s28, s3, 3072'); k(f's_add_u32 s28, s28, {L_COMB}')
        k(f'v_add_u32 v{T+1}, s28, v{V_L16}')
        k('s_xor_b32 s29, s3, 4'); k('s_mul_i32 s29, s29, 3072'); k(f's_add_u32 s29, s29, {L_COMB}')
        k(f'v_add_u32 v{T+2}, s29, v{V_L16}')
        k('s_cmp_eq_u32 s5, 1'); k(f's_cbranch_scc1 {c1}')
        for r in range(3): k(f'ds_write_b128 v{T+1}, v[{O[1]+4*r}:{O[1]+4*r+3}] offset:{r*1024}')
        k(f's_branch {c2}')
        k(c1+':')
        for r in range(3): k(f'ds_write_b128 v{T+1}, v[{O[0]+4*r}:{O[0]+4*r+3}] offset:{r*1024}')
        for i in range(12): k(f'v_mov_b32 v{O[0]+i}, v{O[1]+i}')
        k(c2+':')
        k('s_waitcnt lgkmcnt(0)')
        k('s_barrier')
        for r in range(3): k(f'ds_read_b128 v[{S[1]+4*r}:{S[1]+4*r+3}], v{T+2} offset:{r*1024}')
        k('s_waitcnt lgkmcnt(0)')
        self.mark("a.comb")
        Oq=O[0]
        for i in range(12): k(f'v_add_f32 v{Oq+i}, v{Oq+i}, v{S[1]+i}')
        k(f'v_mov_b32 v{T+3}, v{Oq+8}'); k(f'v_mov_b32 v{T+4}, v{Oq+8}')
        k(f'v_permlane32_swap_b32 v{T+3}, v{T+4}')
        k(f'v_add_f32 v{T+3}, abs(v{Oq}), abs(v{Oq+1})')
        for i in range(2,12): k(f'v_add_f32 v{T+3}, abs(v{Oq+i}), v{T+3}')
        k(f's_mov_b32 s28, {hex(f2u(2.0**-30))}'); k(f's_mov_b32 s29, {hex(f2u(2.0**60))}'); k(f's_mov_b32 s30, {hex(f2u(2.0**120))}')
        k(f'v_cmp_nle_f32 s[44:45], s28, v{T+4}')
        k(f'v_cmp_nge_f32 s[46:47], s29, v{T+4}')
        k(f'v_cmp_ngt_f32 vcc, s30, v{T+3}')
        k('s_or_b64 s[44:45], s[44:45], s[46:47]'); k('s_or_b64 vcc, vcc, s[44:45]')
        okl=k.lab('okl')
        k(f's_cbranch_vccz {okl}')
        k(f'v_mov_b32 v{T+8}, {L_BADF}'); k(f'v_mov_b32 v{T+9}, 1'); k(f'ds_write_b32 v{T+8}, v{T+9}')
        k(okl+':')
        k(f'v_rcp_f32 v{T+4}, v{T+4}')
        for i in range(12): k(f'v_mul_f32 v{Oq+i}, v{Oq+i}, v{T+4}')
        PK=S[0]
        for p in range(6): k(f'v_cvt_pk_bf16_f32 v{PK+p}, v{Oq+2*p}, v{Oq+2*p+1}')
        k('s_mul_i32 s28, s4, 5')
        k(f'v_add_u32 v{T+5}, s28, v{V_H}')
        k(f'v_lshrrev_b32 v{T+6}, 4, v{V_L31}'); k('s_lshl_b32 s29, s5, 1'); k(f'v_add_u32 v{T+6}, s29, v{T+6}')
        k(f'v_mul_u32_u24 v{T+6}, 2560, v{T+6}'); k(f'v_lshl_add_u32 v{T+6}, v{V_F}, 4, v{T+6}'); k(f'v_add_u32 v{T+6}, {L_OIMG}, v{T+6}')
        for pc in range(3):
            g_=T+7
            if pc==0: k(f'v_mov_b32 v{g_}, v{T+5}')
            elif pc==1: k(f'v_add_u32 v{g_}, 2, v{T+5}')
            else:
                k(f'v_mov_b32 v{g_}, s28'); k(f'v_add_u32 v{g_}, 4, v{g_}')
            k(f'v_lshrrev_b32 v{T+8}, 1, v{g_}'); k(f'v_lshlrev_b32 v{T+8}, 8, v{T+8}')
            k(f'v_and_b32 v{T+9}, 1, v{g_}'); k(f'v_lshl_add_u32 v{T+8}, v{T+9}, 3, v{T+8}')
            k(f'v_add_u32 v{T+8}, v{T+8}, v{T+6}')
            if pc==2:
                k('s_mov_b32 exec_hi, 0')
            k(f'ds_write_b64 v{T+8}, v[{PK+2*pc}:{PK+2*pc+1}]')
            if pc==2: k('s_mov_b64 exec, -1')
        k('s_waitcnt lgkmcnt(0)')
        k('s_barrier')
        k(f'v_mov_b32 v{T+8}, {L_BADF}'); k(f'ds_read_b32 v{T+9}, v{T+8}')
        k('s_waitcnt lgkmcnt(0)')
        k(f'v_readfirstlane_b32 s28, v{T+9}')
        k('s_lshl_b32 s29, s49, 1'); k('s_cmp_gt_u32 s28, s29')
        k(f's_cbranch_scc1 {FALLBACK}')
        k(f's_mul_i32 s31, s12, {OF_D}'); k(f's_add_u32 s31, s31, {OFB[0]}')
        k('s_mul_i32 s28, s6, 81920'); k('s_add_u32 s31, s31, s28'); k('s_mul_i32 s28, s7, 2560'); k('s_add_u32 s31, s31, s28')
        for rnd in range(2):
            lab=k.lab('oc')
            if rnd==1:
                k('s_cmp_ge_u32 s3, 2'); k(f's_cbranch_scc1 {lab}')
            k('s_lshl_b32 s28, s3, 6'); k(f's_add_u32 s28, s28, {512*rnd}')
            k(f'v_add_u32 v{T+5}, s28, v{V_LANE}')
            k(f'v_lshlrev_b32 v{T+6}, 4, v{T+5}'); k(f'v_add_u32 v{T+6}, {L_OIMG}, v{T+6}')
            k(f'ds_read_b128 v[{PK}:{PK+3}], v{T+6}')
            k(f'v_mul_u32_u24 v{T+7}, 410, v{T+5}'); k(f'v_lshrrev_b32 v{T+7}, 16, v{T+7}')
            k(f'v_mul_u32_u24 v{T+8}, 160, v{T+7}'); k(f'v_sub_u32 v{T+8}, v{T+5}, v{T+8}')
            k(f'v_mul_u32_u24 v{T+7}, 20480, v{T+7}'); k(f'v_lshl_add_u32 v{T+7}, v{T+8}, 4, v{T+7}')
            k('s_waitcnt lgkmcnt(0)')
            k(f'buffer_store_dwordx4 v[{PK}:{PK+3}], v{T+7}, s[{WS}:{WS+3}], s31 offen sc1')
            k(lab+':')
        self.mark("a.epi")
        self.publish(2)
        self.mark("a.pub")
        AFTER=k.lab('after'); k(f's_branch {AFTER}')
        k(FALLBACK+':')
        k('s_barrier')
        def kvptr():
            k(f's_mul_i32 s32, s12, {KV_D}'); k(f's_add_u32 s32, s32, {KVB[0]}')
            k('s_mul_i32 s28, s5, 3584'); k('s_add_u32 s32, s32, s28')
        def mq1(q,c): k(f'v_mfma_f32_32x32x16_bf16 v[{S[q]}:{S[q]+15}], v[{K1(0)}:{K1(0)+3}], v[{Q1[q]}:{Q1[q]+3}], {c}')
        def mq2(q): k(f'v_mfma_f32_32x32x8_bf16 v[{S[q]}:{S[q]+15}], v[{K2(0)}:{K2(0)+1}], v[{Q2[q]}:{Q2[q]+1}], v[{S[q]}:{S[q]+15}]')
        MX=[T+10,T+11]
        for q in range(2): k(f'v_mov_b32 v{MX[q]}, 0xff800000')
        kvptr(); k('s_mov_b32 s34, 0')
        l1=k.lab('fb1'); k(l1+':')
        ld(0); k('s_waitcnt vmcnt(0)')
        for q in range(2):
            mq1(q,'0'); mq2(q)
        for q in range(2):
            for i in range(0,16,2): k(f'v_max3_f32 v{MX[q]}, v{S[q]+i}, v{S[q]+i+1}, v{MX[q]}')
        k('s_add_u32 s34, s34, 1'); k('s_cmp_lt_u32 s34, 32'); k(f's_cbranch_scc1 {l1}')
        for q in range(2):
            k(f'v_mov_b32 v{T+12}, v{MX[q]}'); k(f'v_permlane32_swap_b32 v{MX[q]}, v{T+12}'); k(f'v_max_f32 v{MX[q]}, v{MX[q]}, v{T+12}')
        k('s_lshl_b32 s28, s3, 9'); k(f's_add_u32 s28, s28, {L_COMB}')
        k(f'v_lshl_add_u32 v{T+12}, v{V_LANE}, 3, s28')
        k(f'ds_write_b64 v{T+12}, v[{MX[0]}:{MX[1]}]')
        k('s_waitcnt lgkmcnt(0)'); k('s_barrier')
        k('s_xor_b32 s28, s3, 4'); k('s_lshl_b32 s28, s28, 9'); k(f's_add_u32 s28, s28, {L_COMB}')
        k(f'v_lshl_add_u32 v{T+12}, v{V_LANE}, 3, s28')
        k(f'ds_read_b64 v[{T+14}:{T+15}], v{T+12}')
        k('s_waitcnt lgkmcnt(0)'); k('s_barrier')
        for q in range(2): k(f'v_max_f32 v{MX[q]}, v{MX[q]}, v{T+14+q}')
        for q in range(2):
            for i in range(16): k(f'v_sub_f32 v{NEG[q]+i}, 0, v{MX[q]}')
            for i in range(16): k(f'v_mov_b32 v{O[q]+i}, 0')
        kvptr(); k('s_mov_b32 s34, 0')
        l2=k.lab('fb2'); k(l2+':')
        ld(0); k('s_waitcnt vmcnt(0)')
        for q in range(2):
            mq1(q,f'v[{NEG[q]}:{NEG[q]+15}]'); mq2(q)
            for i in range(16): k(f'v_exp_f32 v{S[q]+i}, v{S[q]+i}')
            for p in range(8): k(f'v_cvt_pk_bf16_f32 v{P+p}, v{S[q]+2*p}, v{S[q]+2*p+1}')
            for hf in range(2):
                k(f'v_mfma_f32_32x32x16_bf16 v[{O[q]}:{O[q]+15}], v[{V(0)+4*hf}:{V(0)+4*hf+3}], v[{P+4*hf}:{P+4*hf+3}], v[{O[q]}:{O[q]+15}]')
        k('s_add_u32 s34, s34, 1'); k('s_cmp_lt_u32 s34, 32'); k(f's_cbranch_scc1 {l2}')
        if self.F1R:
            k('s_min_u32 s42, s40, 53'); k('s_mul_i32 s42, s42, 40960'); k(f's_add_u32 s42, s42, {W1F}')
            for e in range(16): self.f1_wload(e)
            k('s_waitcnt vmcnt(0)')
        k('s_mov_b32 s49, 1')
        k(f's_branch {COMBINE}')
        k(AFTER+':')

    def phase_oproj(self):
        k=self.k
        XF,WR,ACC,T=24,64,96,144
        if self.F1E:
            le=k.lab('le')
            k('s_cmp_ge_u32 s3, s41'); k(f's_cbranch_scc1 {le}')
            k('s_mul_i32 s42, s40, 40960'); k(f's_add_u32 s42, s42, {W1F}')
            for s in range(self.F1E): self.f1_wload(s)
            k(le+':')
        self.wait(2)
        self.mark("o.wait")
        self.x_loads(XF,10,OFB[0],OF_D,20,10)
        vA,vC=T,T+1
        k('s_mul_i32 s28, s5, 10240'); k(f'v_add_u32 v{vA}, s28, v{V_L16}'); k(f'v_add_u32 v{vC}, 61440, v{vA}')
        fr=[]
        for i in range(10):
            for ft in range(5):
                va,imm=(vA,ft*20480+i*1024) if ft<3 else (vC,(ft-3)*20480+i*1024)
                def rd(r,va=va,imm=imm): k(f'ds_read_b128 v[{r}:{r+3}], v{va} offset:{imm}')
                def mf(r,i=i,ft=ft):
                    c=ACC+4*ft; cs='0' if i==0 else f'v[{c}:{c+3}]'
                    k(f'v_mfma_f32_16x16x32_bf16 v[{c}:{c+3}], v[{r}:{r+3}], v[{XF+4*i}:{XF+4*i+3}], {cs}')
                fr.append(dict(read=rd,mfma=mf,vm=(9-i) if ft==0 else None))
        self.frag_gemm(fr,WR,GD,1)
        self.mark("o.mm")
        self.reduce_pairs(ACC,T+9,L_ORED)
        k('s_waitcnt lgkmcnt(0)')
        k('s_barrier')
        self.reduce_pairs_finish(ACC,T+9,XF)
        self.mark("o.red")
        self.epilogue_res(ACC,T,X1B[0],X1_D,stats=True,bias=None,final=False)
        self.mark("o.epi")
        self.publish(3)
        self.mark("o.pub")
        self.fc1_early_w()

    def epilogue_res(self,ACC,T,dst,dst_d,stats,bias,final,vout=None):
        k=self.k
        self.tile_offsets(44)
        if dst_d:
            k(f's_mul_i32 s28, s12, {dst_d}'); k(f's_add_u32 s28, s28, {dst}')
        else: k(f's_mov_b32 s28, {dst}')
        for j in range(3): k(f's_add_u32 s{44+j}, s{44+j}, s28')
        k('s_mov_b32 s47, 0xffff0000')
        VD=T+15
        k(f'v_lshrrev_b32 v{VD}, 1, v{V_G}'); k(f'v_lshlrev_b32 v{VD}, 8, v{VD}'); k(f'v_lshl_add_u32 v{VD}, v{V_F}, 4, v{VD}')
        k(f'v_and_b32 v{T+14}, 1, v{V_G}'); k(f'v_lshl_add_u32 v{VD}, v{T+14}, 3, v{VD}')
        S0,S1=T+10,T+11
        if stats:
            k(f'v_mov_b32 v{S0}, 0'); k(f'v_mov_b32 v{S1}, 0'); k(f'v_mov_b32 v{T+12}, 0x3f803f80')
        skip=k.lab('e3')
        for j in range(3):
            if j==2:
                k('s_cmp_eq_u32 s5, 1'); k(f's_cbranch_scc1 {skip}')
            r=ACC+4*j
            k(f'v_lshlrev_b32 v{T}, 16, v{V_RES+2*j}'); k(f'v_and_b32 v{T+1}, s47, v{V_RES+2*j}')
            k(f'v_lshlrev_b32 v{T+2}, 16, v{V_RES+2*j+1}'); k(f'v_and_b32 v{T+3}, s47, v{V_RES+2*j+1}')
            for i in range(4): k(f'v_add_f32 v{r+i}, v{r+i}, v{T+i}')
            if bias is not None:
                k(f'v_lshlrev_b32 v{T}, 16, v{bias+2*j}'); k(f'v_and_b32 v{T+1}, s47, v{bias+2*j}')
                k(f'v_lshlrev_b32 v{T+2}, 16, v{bias+2*j+1}'); k(f'v_and_b32 v{T+3}, s47, v{bias+2*j+1}')
                for i in range(4): k(f'v_add_f32 v{r+i}, v{r+i}, v{T+i}')
            k(f'v_cvt_pk_bf16_f32 v{V_RES+2*j}, v{r}, v{r+1}'); k(f'v_cvt_pk_bf16_f32 v{V_RES+2*j+1}, v{r+2}, v{r+3}')
            if final:
                fl=k.lab('fin'); fd=k.lab('fd')
                k('s_cmp_eq_u32 s12, 1'); k(f's_cbranch_scc1 {fl}')
                k(f'buffer_store_dwordx2 v[{V_RES+2*j}:{V_RES+2*j+1}], v{VD}, s[{WS}:{WS+3}], s{44+j} offen sc1')
                k(f's_branch {fd}')
                k(fl+':')
                k(f'buffer_store_dwordx2 v[{V_RES+2*j}:{V_RES+2*j+1}], v{vout}, s[{SC}:{SC+3}], 0 offen offset:{j*32}')
                k(fd+':')
            else:
                k(f'buffer_store_dwordx2 v[{V_RES+2*j}:{V_RES+2*j+1}], v{VD}, s[{WS}:{WS+3}], s{44+j} offen sc1')
            if stats:
                k(f'v_dot2c_f32_bf16 v{S0}, v{V_RES+2*j}, v{T+12}'); k(f'v_dot2c_f32_bf16 v{S1}, v{V_RES+2*j}, v{V_RES+2*j}')
                k(f'v_dot2c_f32_bf16 v{S0}, v{V_RES+2*j+1}, v{T+12}'); k(f'v_dot2c_f32_bf16 v{S1}, v{V_RES+2*j+1}, v{V_RES+2*j+1}')
        k(skip+':')
        if stats:
            sum_g(k,S0,T+13); sum_g(k,S1,T+13)
            k(f'v_lshlrev_b32 v{T+13}, 3, v{V_F}')
            k('s_lshl_b32 s28, s6, 4'); k('s_lshl_b32 s29, s7, 1'); k('s_add_u32 s28, s28, s29'); k('s_add_u32 s28, s28, s5')
            k('s_lshl_b32 s28, s28, 9'); k('s_lshl_b32 s29, s4, 7'); k('s_add_u32 s28, s28, s29')
            k(f's_mul_i32 s29, s12, {ST_D}'); k('s_add_u32 s28, s28, s29'); k(f's_add_u32 s28, s28, {STB[0]}')
            k(f'v_cmp_eq_u32 vcc, 0, v{V_G}'); k(f'v_mov_b32 v{T+14}, {OOB}'); k(f'v_cndmask_b32 v{T+13}, v{T+14}, v{T+13}, vcc')
            k(f'buffer_store_dwordx2 v[{S0}:{S1}], v{T+13}, s[{WS}:{WS+3}], s28 offen sc1')

    def w2_chunk_dma(self, e_expr_sgpr):
        k=self.k; e=e_expr_sgpr
        def head():
            k(f's_lshr_b32 s53, s{e}, 1'); k(f's_and_b32 s54, s{e}, 1')
            k('s_mul_i32 s54, s54, 27'); k('s_add_u32 s54, s54, s53')
            k('s_mul_i32 s55, s7, 270'); k('s_add_u32 s54, s54, s55'); k('s_lshl_b32 s54, s54, 10'); k(f's_add_u32 s54, s54, {W2F}')
            k(f's_mul_i32 s55, s{e}, 5120')
        def one(j):
            if j==0: head()
            k('s_mov_b32 m0, s55')
            k(f'buffer_load_dwordx4 v{V_L16}, s[{WS}:{WS+3}], s54 offen sc1 lds')
            k(f's_add_u32 s54, s54, {54*1024}'); k('s_add_u32 s55, s55, 1024')
        return [lambda j=j: one(j) for j in range(5)]

    W2R=128
    def w2r_setup(self):
        k=self.k
        k('s_lshr_b32 s28, s3, 1'); k('s_and_b32 s29, s3, 1')
        k('s_mul_i32 s29, s29, 27'); k('s_add_u32 s29, s29, s28')
        k('s_mul_i32 s28, s7, 270'); k('s_add_u32 s29, s29, s28')
        for g,first in enumerate((15,19,23)):
            k(f's_add_u32 s{58+g}, s29, {first}'); k(f's_lshl_b32 s{58+g}, s{58+g}, 10'); k(f's_add_u32 s{58+g}, s{58+g}, {W2F}')
    def w2r_load(self,n):
        k=self.k; g,ft=n//5,n%5; r=self.W2R+4*n
        k(f's_add_u32 s61, s{58+g}, {ft*54*1024}')
        k(f'buffer_load_dwordx4 v[{r}:{r+3}], v{V_L16}, s[{WS}:{WS+3}], s61 offen sc1')
    def fc1_early_w(self):
        k=self.k
        lab=k.lab('ew')
        k('s_cmp_ge_u32 s3, s41'); k(f's_cbranch_scc1 {lab}')
        n0=self.F1R+self.F1E
        k('s_mul_i32 s42, s40, 40960'); k(f's_add_u32 s42, s42, {W1F+(n0//4)*4096}')
        for s in range(n0,n0+self.F1A): self.f1_wload(s)
        k(lab+':')
    F1A=int(os.environ.get('F1A','12'))
    F1R=16 if os.environ.get('F1R','0')=='1' else 0
    F1E=int(os.environ.get('F1E','12'))
    def f1_wreg(self,s):
        if self.F1E: return 256-4*self.F1E+4*s if s<self.F1E else 96+4*(s-self.F1E)
        if not self.F1R: return 96+4*s
        return 192+4*s if s<16 else 96+4*(s-16)
    def f1_wload(self,s):
        k=self.k; r=self.f1_wreg(s)
        k(f'buffer_load_dwordx4 v[{r}:{r+3}], v{V_L16}, s[{WS}:{WS+3}], s42 offen offset:{(s%4)*1024} sc1')
        if s%4==3: k('s_add_u32 s42, s42, 4096')

    def gelu_group_scalar(self,A,a,MR,CSV,B1F,TT,KC,vaddr,s_h):
        o=[]; PK=TT+4
        R=[A+4*a+i for i in range(4)]; t=[TT+i for i in range(4)]
        for i in range(4): o.append(f'v_fma_f32 v{t[i]}, -v{MR}, v{CSV+4*a+i}, v{B1F+4*a+i}')
        for i in range(4): o.append(f'v_fma_f32 v{R[i]}, v{R[i]}, v{MR+1}, v{t[i]}')
        for i in range(4): o.append(f'v_mul_f32 v{t[i]}, v{R[i]}, v{R[i]}')
        for i in range(4): o.append(f'v_fma_f32 v{t[i]}, v{t[i]}, v{KC+2}, v{KC}')
        for i in range(4): o.append(f'v_mul_f32 v{t[i]}, v{t[i]}, v{R[i]}')
        for i in range(4): o.append(f'v_exp_f32 v{t[i]}, v{t[i]}')
        for i in range(4): o.append(f'v_add_f32 v{t[i]}, 1.0, v{t[i]}')
        for i in range(4): o.append(f'v_rcp_f32 v{t[i]}, v{t[i]}')
        for i in range(4): o.append(f'v_mul_f32 v{R[i]}, v{R[i]}, v{t[i]}')
        o+= [f'v_cvt_pk_bf16_f32 v{PK}, v{R[0]}, v{R[1]}', f'v_cvt_pk_bf16_f32 v{PK+1}, v{R[2]}, v{R[3]}']
        o.append(f'buffer_store_dwordx2 v[{PK}:{PK+1}], v{vaddr}, s[{WS}:{WS+3}], s{s_h} offen offset:{a*256} sc1')
        return o
    def gelu_group(self,A,a,MR,CSV,B1F,TT,KC,vaddr,s_h):
        P=lambda r: f'v[{r}:{r+1}]'
        KC0,KC1,KONE=KC,KC+2,KC+4
        r0,r1=A+4*a,A+4*a+2
        t=[TT,TT+2]; PK=TT+4
        o=[]
        for e in range(2): o.append(f'v_pk_fma_f32 {P(t[e])}, {P(MR)}, {P(CSV+4*a+2*e)}, {P(B1F+4*a+2*e)} op_sel_hi:[0,1,1] neg_lo:[1,0,0] neg_hi:[1,0,0]')
        for e,r in enumerate((r0,r1)): o.append(f'v_pk_fma_f32 {P(r)}, {P(r)}, {P(MR)}, {P(t[e])} op_sel:[0,1,0] op_sel_hi:[1,1,1]')
        for e,r in enumerate((r0,r1)): o.append(f'v_pk_mul_f32 {P(t[e])}, {P(r)}, {P(r)}')
        for e,r in enumerate((r0,r1)): o.append(f'v_pk_fma_f32 {P(t[e])}, {P(t[e])}, {P(KC1)}, {P(KC0)}')
        for e,r in enumerate((r0,r1)): o.append(f'v_pk_mul_f32 {P(t[e])}, {P(t[e])}, {P(r)}')
        for e in range(2): o+= [f'v_exp_f32 v{t[e]}, v{t[e]}', f'v_exp_f32 v{t[e]+1}, v{t[e]+1}']
        for e in range(2): o.append(f'v_pk_add_f32 {P(t[e])}, {P(t[e])}, {P(KONE)}')
        for e in range(2): o+= [f'v_rcp_f32 v{t[e]}, v{t[e]}', f'v_rcp_f32 v{t[e]+1}, v{t[e]+1}']
        for e,r in enumerate((r0,r1)): o.append(f'v_pk_mul_f32 {P(r)}, {P(r)}, {P(t[e])}')
        o+= [f'v_cvt_pk_bf16_f32 v{PK}, v{r0}, v{r0+1}', f'v_cvt_pk_bf16_f32 v{PK+1}, v{r1}, v{r1+1}']
        o.append(f'buffer_store_dwordx2 v[{PK}:{PK+1}], v{vaddr}, s[{WS}:{WS+3}], s{s_h} offen offset:{a*256} sc1')
        return o

    def phase_fc1(self):
        k=self.k
        A0,A1,XF,CS,ONE,vX,WB=24,40,56,88,89,90,96
        self.wait(3)
        self.mark("f1.wait")
        k('s_mul_i32 s28, s6, 81920'); k(f's_mul_i32 s29, s12, {X1_D}'); k('s_add_u32 s28, s28, s29'); k(f's_add_u32 s28, s28, {X1B[0]}')
        k('s_mul_i32 s29, s3, 5120'); k('s_add_u32 s28, s28, s29')
        for hf in range(2):
            for i in range(5):
                k(f's_add_u32 m0, s29, {hf*40960+i*1024}')
                k(f'buffer_load_dwordx4 v{V_L16}, s[{WS}:{WS+3}], s28 offen sc1 lds')
                k(f's_add_u32 s28, s28, {1024 if i<4 else 40960-4096}')
        act=k.lab('act'); fin=k.lab('fin')
        k('s_cmp_lt_u32 s3, s41'); k(f's_cbranch_scc1 {act}')
        n7=k.lab('n7'); n7w=k.lab('n7w')
        U=96
        k('s_waitcnt vmcnt(5)')
        k('s_barrier')
        k('s_cmp_lg_u32 s3, 7'); k(f's_cbranch_scc1 {n7w}')
        k(f'v_lshlrev_b32 v{U}, 3, v{V_LANE}')
        k('s_lshl_b32 s28, s6, 13'); k(f's_mul_i32 s29, s12, {ST_D}'); k('s_add_u32 s28, s28, s29'); k(f's_add_u32 s28, s28, {STB[0]}')
        for q in range(16):
            k(f'buffer_load_dwordx2 v[{A0+2*q}:{A0+2*q+1}], v{U}, s[{WS}:{WS+3}], s28 offen offset:{(q%8)*512} sc1')
            if q==7: k('s_add_u32 s28, s28, 4096')
        k('s_waitcnt vmcnt(0)')
        for q in range(1,16):
            k(f'v_add_f32 v{A0}, v{A0}, v{A0+2*q}'); k(f'v_add_f32 v{A0+1}, v{A0+1}, v{A0+2*q+1}')
        m_,r_,v_=U+2,U+3,A0+1
        k(f'v_mul_f32 v{m_}, {hex(f2u(1/640))}, v{A0}'); k(f'v_mul_f32 v{v_}, {hex(f2u(1/640))}, v{v_}')
        k(f'v_fma_f32 v{v_}, -v{m_}, v{m_}, v{v_}'); k(f'v_max_f32 v{v_}, 0, v{v_}')
        k(f'v_add_f32 v{A0+2}, {hex(f2u(1e-5))}, v{v_}'); k(f'v_rsq_f32 v{r_}, v{A0+2}')
        k(f'v_mul_f32 v{A0+3}, v{r_}, v{r_}'); k(f'v_mul_f32 v{A0+3}, v{A0+3}, v{v_}')
        k(f'v_add_f32 v{A0+3}, {hex(f2u(1e-5))}, v{A0+3}'); k(f'v_rsq_f32 v{A0+3}, v{A0+3}')
        k(f'v_mul_f32 v{r_}, v{r_}, v{A0+3}'); k(f'v_mul_f32 v{m_}, v{m_}, v{r_}')
        k(f'v_add_u32 v{U}, {L_TOKST}, v{U}')
        k(f'ds_write_b64 v{U}, v[{m_}:{r_}]')
        k('s_waitcnt lgkmcnt(0)')
        W2E=True
        for e in range(16,30):
            k(f's_mov_b32 s52, {e}')
            for f in self.w2_chunk_dma(52): f()
        k(f's_branch {n7}')
        k(n7w+':')
        k('s_waitcnt vmcnt(0)')
        k(n7+':')
        k('s_barrier')
        k('s_barrier')
        k('s_cmp_lg_u32 s3, 7'); k(f's_cbranch_scc1 {fin}')
        for e in list(range(0,8))+[15]+([] if W2E else list(range(16,30))):
            k(f's_mov_b32 s52, {e}')
            for f in self.w2_chunk_dma(52): f()
        k('s_cmp_eq_u32 s41, 7'); k(f's_cbranch_scc1 {fin}')
        k('s_mov_b32 s52, 14')
        for f in self.w2_chunk_dma(52): f()
        k(f's_branch {fin}')
        k(act+':')
        srd(k,SA,P_B1,1728*2)
        B1R=72
        k('s_lshl_b32 s28, s40, 6')
        k(f'v_lshl_add_u32 v{vX}, v{V_H}, 3, s28')
        for a in range(4): k(f'buffer_load_dwordx2 v[{B1R+2*a}:{B1R+2*a+1}], v{vX}, s[{SA}:{SA+3}], 0 offen offset:{a*16}')
        k('s_waitcnt vmcnt(9)')
        k('s_barrier')
        self.mark("f1.x")
        k(f'v_lshrrev_b32 v{vX}, 4, v{V_L31}'); k(f'v_mul_u32_u24 v{vX}, 20480, v{vX}')
        k(f'v_lshl_add_u32 v{vX}, v{V_H}, 8, v{vX}'); k(f'v_lshl_add_u32 v{vX}, v{V_F}, 4, v{vX}')
        k(f'v_mov_b32 v{ONE}, 0x3f803f80'); k(f'v_mov_b32 v{CS}, 0')
        k('s_cmp_lg_u32 s12, 0'); k('s_cselect_b64 vcc, -1, 0')
        def rd(tt,s):
            ks,u=s//2,s%2
            x=XF+(s%4)*4
            k(f'ds_read_b128 v[{x}:{x+3}], v{vX} offset:{tt*40960+ks*1024+u*512}')
        F1A=self.F1A+self.F1R+self.F1E
        def pass1(with_cs):
            rd(0,0); rd(0,1); rd(0,2)
            for s in range(40):
                if s+F1A<40: self.f1_wload(s+F1A)
                if s+3<40: rd(0,s+3)
                w=f's_waitcnt lgkmcnt({min(3,39-s)})'
                if s>=F1A: w+=f' vmcnt({min(F1A,39-s)})'
                k(w)
                wr=self.f1_wreg(s); x=XF+(s%4)*4
                c0='0' if s==0 else f'v[{A0}:{A0+15}]'
                k(f'v_mfma_f32_32x32x16_bf16 v[{A0}:{A0+15}], v[{wr}:{wr+3}], v[{x}:{x+3}], {c0}')
                if with_cs:
                    for r in range(4): k(f'v_dot2c_f32_bf16 v{CS}, v{wr+r}, v{ONE}')
        p1=k.lab('p1'); p1d=k.lab('p1d')
        k(f's_cbranch_vccnz {p1}')
        pass1(True)
        k(f's_branch {p1d}')
        k(p1+':')
        pass1(False)
        k(p1d+':')
        ncs=k.lab('ncs')
        k(f's_cbranch_vccnz {ncs}')
        k(f'v_mov_b32 v91, v{CS}'); k(f'v_permlane32_swap_b32 v{CS}, v91'); k(f'v_add_f32 v{CS}, v{CS}, v91')
        k('s_lshl_b32 s28, s3, 7'); k(f's_add_u32 s28, s28, {L_CS1}')
        k(f'v_lshl_add_u32 v91, v{V_L31}, 2, s28')
        k(f'ds_write_b32 v91, v{CS}')
        k(ncs+':')
        k('s_waitcnt vmcnt(0) lgkmcnt(0)')
        k('s_barrier')
        self.mark("f1.p1")
        CSV,B1F,MR0,MR1,TT,KC,VA=((self.f1_wreg(0),self.f1_wreg(4)) if (self.F1R or self.F1E>=8) else (96,112))+(80,82,16,84,91)
        side=[]
        def S(x): side.append(x)
        S(f's_lshl_b32 s28, s3, 7'); S(f's_add_u32 s28, s28, {L_CS1}'); S(f'v_lshl_add_u32 v{VA}, v{V_H}, 4, s28')
        pre_reads=[f'ds_read_b128 v[{CSV+4*a}:{CSV+4*a+3}], v{VA} offset:{a*32}' for a in range(4)]
        c0=-2*0.7978845608028654*1.4426950408889634; c1=c0*0.044715
        for i in range(2):
            k(f'v_mov_b32 v{KC+i}, {hex(f2u(c0))}'); k(f'v_mov_b32 v{KC+2+i}, {hex(f2u(c1))}')
        KONE_=92
        k(f'v_mov_b32 v{KONE_}, 1.0'); k(f'v_mov_b32 v{KONE_+1}, 1.0')
        k(f'v_lshlrev_b32 v94, 3, v{V_L31}'); k(f'v_add_u32 v94, {L_TOKST}, v94')
        k(f'ds_read_b64 v[{MR0}:{MR0+1}], v94'); k(f'ds_read_b64 v[{MR1}:{MR1+1}], v94 offset:256')
        k(f'v_lshrrev_b32 v95, 4, v{V_L31}'); k(f's_mov_b32 s28, {54*1024}'); k('v_mul_lo_u32 v95, v95, s28')
        k(f'v_lshl_add_u32 v95, v{V_H}, 3, v95'); k(f'v_lshl_add_u32 v95, v{V_F}, 4, v95')
        for tt in range(2):
            k('s_lshl_b32 s28, s6, 2'); k(f's_add_u32 s28, s28, {2*tt}'); k('s_mul_i32 s28, s28, 54'); k('s_add_u32 s28, s28, s40')
            k('s_lshl_b32 s28, s28, 10'); k(f's_mul_i32 s29, s12, {HF_D}'); k('s_add_u32 s28, s28, s29'); k(f's_add_u32 s{56+tt}, s28, {HFB[0]}')
        k('s_mov_b32 s47, 0xffff0000')
        k('s_waitcnt lgkmcnt(0)')
        rd(1,0); rd(1,1); rd(1,2)
        def gg(A,a,MR,sh):
            o=self.gelu_group(A,a,MR,CSV,B1F,TT,KC,95,sh)
            return [x.replace(f'v[{KC+4}:{KC+5}]',f'v[{KONE_}:{KONE_+1}]') for x in o]
        work=[]
        for a in range(4): work+=self.gelu_group_scalar(A0,a,MR0,CSV,B1F,TT,KC,95,56)
        GS=int(os.environ.get('GS','12')); nper=-(-len(work)//(39-GS))
        wi=0; lds_extra=0
        for s in range(40):
            if s+3<40: rd(1,s+3)
            extra=0
            if s==8:
                k(f's_lshl_b32 s28, s3, 7'); k(f's_add_u32 s28, s28, {L_CS1}'); k(f'v_lshl_add_u32 v{VA}, v{V_H}, 4, s28')
                for x in pre_reads: k(x)
                extra=4
            k(f's_waitcnt lgkmcnt({min(3,39-s)+extra})')
            wr=self.f1_wreg(s); x=XF+(s%4)*4
            c1s='0' if s==0 else f'v[{A1}:{A1+15}]'
            k(f'v_mfma_f32_32x32x16_bf16 v[{A1}:{A1+15}], v[{wr}:{wr+3}], v[{x}:{x+3}], {c1s}')
            if s in (9,10):
                for a in ((0,1) if s==9 else (2,3)):
                    k(f'v_lshlrev_b32 v{B1F+4*a}, 16, v{B1R+2*a}'); k(f'v_and_b32 v{B1F+4*a+1}, s47, v{B1R+2*a}')
                    k(f'v_lshlrev_b32 v{B1F+4*a+2}, 16, v{B1R+2*a+1}'); k(f'v_and_b32 v{B1F+4*a+3}, s47, v{B1R+2*a+1}')
            if s>=GS:
                for _ in range(nper):
                    if wi<len(work): k(work[wi]); wi+=1
        while wi<len(work): k(work[wi]); wi+=1
        k('s_barrier')
        self.mark("f1.mm")
        k('s_add_u32 s52, s3, 8')
        dm=self.w2_chunk_dma(52)
        for a in range(4):
            for x in gg(A1,a,MR1,57): k(x)
            if dm: dm.pop(0)()
            if a==3:
                while dm: dm.pop(0)()
        k(fin+':')
        self.mark("f1.epi")
        self.publish(4)
        self.mark("f1.pub")

    def phase_fc2(self):
        k=self.k
        HX,WR,ACC=24,132,192
        vA,vB,vC,BI,VO=236,237,238,240,246
        srd(k,SB,P_B2,1280)
        srd(k,SC,P_OUT,2048*1280)
        k('s_mul_i32 s28, s7, 160'); k('s_mul_i32 s29, s5, 96'); k('s_add_u32 s28, s28, s29')
        k(f'v_lshl_add_u32 v{vA}, v{V_G}, 3, s28')
        for j in range(3): k(f'buffer_load_dwordx2 v[{BI+2*j}:{BI+2*j+1}], v{vA}, s[{SB}:{SB+3}], 0 offen offset:{j*32}')
        k('s_movk_i32 s29, 1280'); k(f'v_mul_lo_u32 v{VO}, v{V_TOK}, s29'); k(f'v_add_u32 v{VO}, v{VO}, v{vA}')
        self.wait(4)
        self.mark("f2.wait")
        XP=os.environ.get('XP','')
        if 'noh' not in XP: self.x_loads(HX,27,HFB[0],HF_D,54,27)
        if 'hwait' in XP:
            k('s_waitcnt vmcnt(0)'); self.mark("f2.h")
        k('s_mul_i32 s28, s5, 5120')
        k(f'v_add_u32 v{vA}, s28, v{V_L16}'); k(f'v_add_u32 v{vB}, 61440, v{vA}'); k(f'v_add_u32 v{vC}, 122880, v{vA}')
        NS=15
        slot=lambda i: i if i<NS else i-NS
        log=[('h',i) for i in range(27)]
        def refill(g):
            first=15+4*g
            k('s_lshr_b32 s28, s3, 1'); k('s_and_b32 s29, s3, 1')
            k(f's_add_u32 s30, s28, {first}')
            k('s_mul_i32 s32, s29, 27'); k('s_add_u32 s32, s32, s30')
            k('s_mul_i32 s33, s7, 270'); k('s_add_u32 s32, s32, s33'); k('s_lshl_b32 s32, s32, 10'); k(f's_add_u32 s32, s32, {W2F}')
            k(f's_add_u32 s30, s28, {4*g}')
            k('s_mul_i32 s33, s30, 10240'); k('s_mul_i32 s29, s29, 5120'); k('s_add_u32 s33, s33, s29')
            for j in range(5):
                k('s_mov_b32 m0, s33')
                k(f'buffer_load_dwordx4 v{V_L16}, s[{WS}:{WS+3}], s32 offen sc1 lds')
                if j<4:
                    k(f's_add_u32 s32, s32, {54*1024}'); k('s_add_u32 s33, s33, 1024')
                log.append(('rf',g))
        def younger(idx): return len(log)-1-idx
        DEPTH=int(os.environ.get('F2D','10'))
        bar={7:(None,0),11:(None,1),15:(0,2),19:(1,None),23:(2,None)}
        fr=[]
        for i in range(27):
            for ft in range(5):
                j=slot(i); va,imm=((vA,vB,vC)[j//6],(j%6)*10240)
                def rd(r,va=va,imm=imm,ft=ft): k(f'ds_read_b128 v[{r}:{r+3}], v{va} offset:{imm+ft*1024}')
                def mf(r,i=i,ft=ft):
                    c=ACC+4*ft; cs='0' if i==0 else f'v[{c}:{c+3}]'
                    k(f'v_mfma_f32_16x16x32_bf16 v[{c}:{c+3}], v[{r}:{r+3}], v[{HX+4*i}:{HX+4*i+3}], {cs}')
                d=dict(read=rd,mfma=mf)
                if ft==0:
                    d['vm']=(lambda i=i: younger(log.index(('h',i))))
                    if i in bar:
                        def pre(i=i):
                            need,fill=bar[i]
                            if need is not None:
                                tags=[n for n,x in enumerate(log) if x==('rf',need)]
                                k(f's_waitcnt vmcnt({younger(tags[-1])})')
                            k('s_barrier')
                            if fill is not None: refill(fill)
                        d['pre']=pre
                fr.append(d)
        self.frag_gemm(fr,WR,DEPTH,1)
        self.mark("f2.mm")
        k('s_barrier')
        T=48
        self.reduce_pairs(ACC,T+9,L_RED)
        k('s_waitcnt lgkmcnt(0)')
        k('s_barrier')
        self.reduce_pairs_finish(ACC,T+9,24)
        self.epilogue_res(ACC,T,X2B,0,stats=False,bias=BI,final=True,vout=VO)
        self.mark("f2.epi")

    def build(self):
        k=self.k
        self.prologue()
        self.mark0("p.start")
        if 'nox0' not in os.environ.get('XP',''): self.x0_loads(24,144)
        if 'cs.x' in os.environ.get('MARKS',''):
            k('s_waitcnt vmcnt(0)'); self.mark0("cs.x")
        kvw=k.lab('kvw'); pj=k.lab('pj')
        k('s_lshr_b32 s28, s7, 1')
        k('s_cmp_eq_u32 s28, s4'); k(f's_cbranch_scc1 {kvw}')
        k('s_mov_b32 s43, s3')
        k('s_cmp_gt_u32 s3, s28'); k('s_cselect_b32 s29, 1, 0'); k('s_sub_u32 s43, s43, s29')
        k('s_add_u32 s28, s28, 4'); k('s_cmp_gt_u32 s3, s28'); k('s_cselect_b32 s29, 1, 0'); k('s_sub_u32 s43, s43, s29')
        srd(k,SA,P_WQ,640*1280)
        k(f"s_waitcnt vmcnt({os.environ.get('WQL','8')})")
        for t in range(4):
            lab=k.lab('wq')
            k(f's_add_u32 s28, s43, {6*t}')
            if t==3:
                k('s_cmp_ge_u32 s28, 20'); k(f's_cbranch_scc1 {lab}')
            k('s_mul_i32 s29, s28, 40960'); k('s_mul_i32 s30, s28, 5120')
            self.dma_chunk160(SA,29,30)
            k(lab+':')
        k(f's_branch {pj}')
        k(kvw+':')
        k('s_mov_b32 s43, 7')
        k('s_and_b32 s28, s7, 1'); k('s_cmp_eq_u32 s28, 0')
        k(f's_cselect_b32 s30, s{P_WK}, s{P_WV}'); k(f's_cselect_b32 s31, s{P_WK+1}, s{P_WV+1}')
        srd(k,SB,30,25600)
        k('s_mul_i32 s29, s5, 12288')
        for t in range(13):
            k(f's_add_u32 m0, s29, {L_WKV}')
            k(f'buffer_load_dwordx4 v{V_L16}, s[{SB}:{SB+3}], s29 offen lds')
            k('s_add_u32 s29, s29, 1024')
        k(pj+':')
        if 'tlb' in os.environ.get('XP',''): self.tlb_warm()
        self.mark0("p.issued")
        LOOP='mega_layer'
        k(LOOP+':')
        self.phase_qkv(); self.stopat('qkv')
        self.phase_attn(); self.stopat('attn')
        self.phase_oproj(); self.stopat('oproj')
        self.phase_fc1(); self.stopat('fc1')
        self.phase_fc2(); self.stopat('fc2')
        k('s_cmp_eq_u32 s12, 1'); k(f's_cbranch_scc1 {self.END}')
        self.publish(5)
        self.dma_next_qkv()
        self.wait(5)
        k('s_mov_b32 s12, 1'); k('s_add_u32 s13, s13, 5')
        k(f's_branch {LOOP}')
        k(self.END+':')
        rz=self.k.lab('rz')
        k('s_cmp_lg_u32 s2, 0'); k(f's_cbranch_scc1 {rz}')
        k('s_cmp_lg_u32 s3, 5'); k(f's_cbranch_scc1 {rz}')
        k('s_load_dwordx2 s[58:59], s[0:1], 88')
        k('s_waitcnt lgkmcnt(0)')
        srd(k,60,58,256)
        k('v_mov_b32 v200, 0'); k('v_mov_b32 v201, 0')
        k('s_mov_b64 exec, 1')
        k('buffer_store_dword v201, v200, s[60:63], 0 offen sc1')
        k('s_mov_b64 exec, -1')
        k(rz+':')
        if self.stamps:
            k('s_waitcnt vmcnt(0) lgkmcnt(0)')
            k(f'{self.clk} s[100:101]'); k('s_waitcnt lgkmcnt(0)')
            k('s_lshl_b32 s28, s2, 3'); k('s_add_u32 s28, s28, s3'); k('s_lshl_b32 s28, s28, 6'); k(f's_add_u32 s28, s28, {STAMP_OFF}')
            k('s_add_u32 s30, s86, s28'); k('s_addc_u32 s31, s87, 0')
            k('v_mov_b32 v24, 0')
            if os.environ.get('DBGOUT'):
                dz=k.lab('dz')
                k('s_cmp_lg_u32 s2, 0'); k(f's_cbranch_scc1 {dz}'); k('s_cmp_lg_u32 s3, 0'); k(f's_cbranch_scc1 {dz}')
                k('s_load_dwordx2 s[58:59], s[0:1], 88'); k('s_waitcnt lgkmcnt(0)')
                for i in list(range(11))+[12]:
                    k(f's_sub_u32 s28, s{88+i}, s99'); k('v_mov_b32 v25, s28')
                    k(f'global_store_dword v24, v25, s[58:59] offset:{4*(i+1)}')
                k(dz+':')
            else:
              for i in range(13):
                k(f'v_mov_b32 v25, s{88+i}')
                k(f'global_store_dword v24, v25, s[30:31] offset:{4*i}')
        k('mega_kernel_exit:')
        k('mega_code_end:')
        k('s_endpgm')
        return k

def gen_init():
    k=Kern('init_kernel',vgpr=8,sgpr=24)
    k('s_cmp_ge_u32 s2, 1'); k('s_cbranch_scc1 init_kernel_end')
    k('s_load_dwordx2 s[4:5], s[0:1], 96')
    k('s_waitcnt lgkmcnt(0)')
    srd(k,8,4,4096,FLG)
    k('v_lshlrev_b32 v1, 4, v0')
    for i in range(4): k(f'v_mov_b32 v{2+i}, 0')
    k('buffer_store_dwordx4 v[2:5], v1, s[8:11], 0 offen')
    k('init_kernel_end:')
    k('s_endpgm')
    return k
```
